```python
import torch

def _softmax(x, axis=-1):
    return torch.softmax(x, dim=axis)
def _gelu(x):
    return torch.nn.functional.gelu(x, approximate="tanh")
def _silu(x):
    return torch.nn.functional.silu(x)
def _sigmoid(x):
    return torch.sigmoid(x)
def _layernorm(x, axis=-1, eps=1e-5):
    m = x.mean(dim=axis, keepdim=True)
    v = x.var(dim=axis, keepdim=True, unbiased=False)
    return (x - m) / torch.sqrt(v + eps)
def _scatter_add(tgt, idx, src, axis=0):
    return tgt.clone().index_add_(axis, idx, src)
def _segment_sum(src, seg, n):
    out = torch.zeros((n,) + src.shape[1:], dtype=src.dtype)
    return out.index_add_(0, seg, src)
def _pad(x, pw):
    flat = tuple(v for pair in reversed(pw) for v in pair)
    return torch.nn.functional.pad(x, flat)

kernel_name = 'concat_heads__mha_block_cached__gqa_block_cached__near_ridge'

def setup_inputs():

    _w = (lambda a: (lambda t: t.to(torch.bfloat16) if t.is_floating_point() else t)(torch.as_tensor(a)))
    def _A_setup():
        B, Sq, D = 8, 144, 1024
        H, Sk, Dh = 32, 1024, 128
        return {
            "x": _w((lambda *s: torch.randn(*s, dtype=torch.bfloat16) * 0.8)(B, Sq, D)),
            "k_cache": _w((lambda *s: torch.randn(*s, dtype=torch.bfloat16) * 0.8)(B, H, Sk, Dh)),
            "v_cache": _w((lambda *s: torch.randn(*s, dtype=torch.bfloat16) * 0.05)(B, H, Sk, Dh)),
            "wq": _w((lambda *s: torch.randn(*s, dtype=torch.bfloat16) * 0.8)(D, H * Dh) * (D ** -0.5)),
            "wo": _w((lambda *s: torch.randn(*s, dtype=torch.bfloat16) * 0.05)(H * Dh, D) * ((H * Dh) ** -0.5)),
        }
    _A_in = _A_setup()

    def _B_setup():
        B, Sq, D = 8, 144, 1024
        Hq, Hkv, Sk, Dh = 32, 32, 1024, 128
        assert Hq % Hkv == 0, (Hq, Hkv)
        return {
            "x": _w((lambda *s: torch.randn(*s, dtype=torch.bfloat16) * 0.8)(B, Sq, D)),
            "k_cache": _w((lambda *s: torch.randn(*s, dtype=torch.bfloat16) * 0.8)(B, Hkv, Sk, Dh)),
            "v_cache": _w((lambda *s: torch.randn(*s, dtype=torch.bfloat16) * 0.05)(B, Hkv, Sk, Dh)),
            "wq": _w((lambda *s: torch.randn(*s, dtype=torch.bfloat16) * 0.8)(D, Hq * Dh) * (D ** -0.5)),
            "wo": _w((lambda *s: torch.randn(*s, dtype=torch.bfloat16) * 0.05)(Hq * Dh, D) * ((Hq * Dh) ** -0.5)),
        }
    _B_in = _B_setup()

    return {
        "A_x": _A_in["x"],
        "A_k_cache": _A_in["k_cache"],
        "A_v_cache": _A_in["v_cache"],
        "A_wq": _A_in["wq"],
        "A_wo": _A_in["wo"],
        "B_x": _B_in["x"],
        "B_k_cache": _B_in["k_cache"],
        "B_v_cache": _B_in["v_cache"],
        "B_wq": _B_in["wq"],
        "B_wo": _B_in["wo"],
    }

def reference(A_x, A_k_cache, A_v_cache, A_wq, A_wo, B_x, B_k_cache, B_v_cache, B_wq, B_wo):
    def _A_ref(x, k_cache, v_cache, wq, wo):
        B, Sq, D = x.shape
        H, Dh = 32, 128
        q = (lambda x, *d: x.permute(*d))((x @ wq).reshape(B, Sq, H, Dh), 0, 2, 1, 3)
        scores = torch.einsum("bhqd,bhkd->bhqk", q, k_cache) * (Dh ** -0.5)
        p = _softmax(scores, axis=-1)
        o = torch.einsum("bhqk,bhkd->bhqd", p, v_cache)
        return (lambda x, *d: x.permute(*d))(o, 0, 2, 1, 3).reshape(B, Sq, H * Dh) @ wo

    def _B_ref(x, k_cache, v_cache, wq, wo):
        B, Sq, D = x.shape
        Hq, Dh = 32, 128
        Hkv = k_cache.shape[1]
        rep = Hq // Hkv
        q = (lambda x, *d: x.permute(*d))((x @ wq).reshape(B, Sq, Hq, Dh), 0, 2, 1, 3)
        k = (lambda x, n, axis: torch.repeat_interleave(x, n, dim=axis))(k_cache, rep, axis=1)
        v = (lambda x, n, axis: torch.repeat_interleave(x, n, dim=axis))(v_cache, rep, axis=1)
        scores = torch.einsum("bhqd,bhkd->bhqk", q, k) * (Dh ** -0.5)
        p = _softmax(scores, axis=-1)
        o = torch.einsum("bhqk,bhkd->bhqd", p, v)
        return (lambda x, *d: x.permute(*d))(o, 0, 2, 1, 3).reshape(B, Sq, Hq * Dh) @ wo

    a = _A_ref(A_x, A_k_cache, A_v_cache, A_wq, A_wo)
    b = _B_ref(B_x, B_k_cache, B_v_cache, B_wq, B_wo)
    return torch.concatenate([a, b], axis=-1)
```

```python
import re

_R = re.compile(r'^(-?)(?:abs\()?([vas])(?:\[(\d+):(\d+)\]|(\d+))\)?$')

def regs_of(tok):
    tok = tok.strip()
    if tok in ('vcc',): return [('s', 106), ('s', 107)]
    if tok == 'vcc_lo': return [('s', 106)]
    if tok == 'vcc_hi': return [('s', 107)]
    if tok == 'm0': return [('s', 124)]
    if tok == 'exec': return [('s', 126), ('s', 127)]
    m = _R.match(tok)
    if not m: return []
    f = m.group(2)
    if m.group(3) is not None:
        return [(f, i) for i in range(int(m.group(3)), int(m.group(4)) + 1)]
    return [(f, int(m.group(5)))]

TRANS = ('v_exp_f32', 'v_log_f32', 'v_rcp_f32', 'v_rsq_f32', 'v_sqrt_f32')

class Ins:
    __slots__ = ('text', 'op', 'ops', 'defs', 'uses', 'kind', 'ws', 'comment')
    def __init__(self, text):
        self.text = text
        t = text.split(';')[0].strip()
        parts = t.split(None, 1)
        self.op = parts[0] if parts else ''
        rest = parts[1] if len(parts) > 1 else ''
        ops = [o.strip() for o in rest.split(',')] if rest else []
        if ops:
            last = ops[-1].split()
            ops = ops[:-1] + [last[0]] if last else ops[:-1]
        self.ops = ops
        self.ws = 1
        op = self.op
        defs, uses = [], []
        kind = 'other'
        R = regs_of
        if op.endswith(':') or op.startswith('.') or op == '':
            kind = 'label'; self.ws = 0
        elif op == 's_nop':
            kind = 'nop'; self.ws = int(ops[0], 0) + 1
        elif op.startswith('v_mfma'):
            kind = 'mfma'; defs = R(ops[0]); uses = R(ops[1]) + R(ops[2]) + R(ops[3])
        elif op.startswith('ds_read') or op.startswith('ds_bpermute') or op.startswith('ds_swizzle'):
            kind = 'dsread'; defs = R(ops[0]); uses = sum((R(o) for o in ops[1:]), [])
        elif op.startswith('ds_write'):
            kind = 'dswrite'; uses = sum((R(o) for o in ops), [])
        elif op.startswith('buffer_load') or op.startswith('global_load'):
            if ' lds' in t or op.startswith('global_load_lds'):
                kind = 'dma'; uses = sum((R(o) for o in ops), []) + R('m0')
            else:
                kind = 'vload'; defs = R(ops[0]); uses = sum((R(o) for o in ops[1:]), [])
        elif op.startswith('buffer_store') or op.startswith('global_store'):
            kind = 'vstore'; uses = sum((R(o) for o in ops), [])
        elif op.startswith('global_atomic') or op.startswith('buffer_atomic'):
            kind = 'vstore'; uses = sum((R(o) for o in ops), [])
        elif op.startswith('v_cmp'):
            kind = 'valu'; defs = R(ops[0]); uses = sum((R(o) for o in ops[1:]), [])
        elif op.startswith('v_permlane') and 'swap' in op:
            kind = 'permlane'; defs = R(ops[0]) + R(ops[1]); uses = list(defs)
        elif op.startswith('v_readfirstlane') or op.startswith('v_readlane'):
            kind = 'readlane'; defs = R(ops[0]); uses = sum((R(o) for o in ops[1:]), [])
        elif op.startswith('v_'):
            kind = 'trans' if op.replace('_e32', '').replace('_e64', '') in TRANS else 'valu'
            defs = R(ops[0]); uses = sum((R(o) for o in ops[1:]), [])
            if op.startswith('v_fmac') or op.startswith('v_swap'):
                uses += defs
                if op.startswith('v_swap'): defs = defs + R(ops[1])
            if op.startswith('v_cndmask') and len(ops) == 3: uses += R('vcc')
            if op.startswith('v_add_co') or op.startswith('v_addc_co'): defs += R(ops[1])
            if '_dpp' in op or 'row_' in t or 'quad_perm' in t: kind = 'dpp'
        elif op.startswith('s_waitcnt') or op in ('s_barrier', 's_endpgm', 's_setprio', 's_sleep'):
            kind = 'sync'
        elif op.startswith('s_cbranch') or op == 's_branch':
            kind = 'branch'
        elif op.startswith('s_cmp') or op.startswith('s_bitcmp'):
            kind = 'salu'; uses = sum((R(o) for o in ops), [])
        elif op.startswith('s_load') or op.startswith('s_memtime') or op.startswith('s_memrealtime') or op.startswith('s_buffer_load'):
            kind = 'smem'; defs = R(ops[0]); uses = sum((R(o) for o in ops[1:]), [])
        elif op.startswith('s_'):
            kind = 'salu'; defs = R(ops[0]) if ops else []; uses = sum((R(o) for o in ops[1:]), [])
            if 'saveexec' in op: defs += R('exec')
        self.defs, self.uses, self.kind = defs, uses, kind

VALU_KINDS = ('valu', 'trans', 'permlane', 'readlane', 'dpp')

def mfma_passes(op):
    return 8 if '32x32' in op else 4

def check_hazards(ins_list, name=''):
    probs = []
    n = len(ins_list)
    for i, c in enumerate(ins_list):
        if c.kind in ('label', 'nop', 'sync', 'branch'): continue
        dist = 0
        j = i - 1
        cu = set(c.uses); cd = set(c.defs)
        while j >= 0 and dist < 20:
            p = ins_list[j]
            need = 0; why = ''
            pd = set(p.defs)
            if p.kind == 'mfma':
                ps = mfma_passes(p.op)
                raw = {4: 8, 8: 12}[ps]
                if c.kind == 'mfma':
                    ab = set(regs_of(c.ops[1]) + regs_of(c.ops[2]))
                    cc = set(regs_of(c.ops[3]))
                    if pd & ab: need, why = raw, 'mfma D -> mfma A/B'
                    elif pd & cc:
                        if regs_of(c.ops[3]) == p.defs and mfma_passes(c.op) == ps: need = 0
                        else: need, why = {4: 6, 8: 10}[ps], 'mfma D -> mfma C overlap'
                    if pd & cd and not (pd & cc): need, why = max(need, raw), 'mfma D -> mfma D WAW'
                elif c.kind in VALU_KINDS or c.kind in ('dsread', 'dswrite', 'vload', 'vstore', 'dma'):
                    if pd & cu or pd & cd: need, why = raw, 'mfma D -> valu/mem'
                    pc = set(regs_of(p.ops[3]))
                    if c.kind in VALU_KINDS and (pc & cd):
                        w = {4: 3, 8: 7}[ps]
                        if w > need: need, why = w, 'mfma C WAR valu'
            elif p.kind in VALU_KINDS:
                vd = {r for r in pd if r[0] in 'va'}
                sd = {r for r in pd if r[0] == 's'}
                if c.kind == 'mfma' and (vd & cu): need, why = 2, 'valu -> mfma'
                if p.kind == 'trans' and c.kind in VALU_KINDS and c.kind != 'trans' and (vd & cu): need, why = max(need, 1), 'trans -> valu'
                if p.kind == 'trans' and c.kind == 'trans' and (vd & cu): need, why = max(need, 1), 'trans -> trans'
                if c.kind == 'readlane' and (vd & cu): need, why = max(need, 1), 'valu -> readlane'
                if c.kind in ('permlane', 'dpp') and (vd & cu): need, why = max(need, 2), 'valu -> permlane/dpp'
                if sd:
                    if c.kind in VALU_KINDS and (sd & cu): need, why = max(need, 2), 'valu sgpr -> valu const'
                    if c.kind in ('vload', 'vstore', 'dma') and (sd & cu): need, why = max(need, 5), 'valu sgpr -> vmem'
                    if c.kind == 'readlane' and (sd & cu): need, why = max(need, 4), 'valu sgpr -> lane select'
                    if c.kind in ('salu',) and (sd & cu): need, why = max(need, 1), 'valu sgpr -> salu (pad)'
            elif p.kind == 'salu':
                if ('s', 124) in pd and c.kind == 'dma': need, why = 1, 'm0 -> dma'
            elif p.kind == 'vstore':
                if ('x4' in p.op or 'x3' in p.op) and c.kind in VALU_KINDS + ('dsread', 'vload', 'mfma'):
                    data = set(regs_of(p.ops[0])) if p.op.startswith('buffer') else set(regs_of(p.ops[1]))
                    if p.op.startswith('global') and len(p.ops) >= 2: data = set(regs_of(p.ops[1]))
                    if data & cd: need, why = 2, 'store data WAR'
            if need > dist:
                probs.append((i, need - dist, why + f' [{p.text.strip()}] -> [{c.text.strip()}]'))
            dist += p.ws
            j -= 1
    return probs

class Prog:
    def __init__(self):
        self.items = []
    def __call__(self, text):
        for line in text.split('\n'):
            line = line.strip()
            if not line: continue
            self.items.append(Ins(line))
    def label(self, name):
        self.items.append(Ins(name + ':'))
    def extend(self, other):
        self.items.extend(other.items if isinstance(other, Prog) else other)
    def text(self):
        out = []
        for it in self.items:
            out.append(it.text if it.kind == 'label' else '  ' + it.text)
        return '\n'.join(out) + '\n'

def fix_hazards(items, wrap=None):
    items = list(items)
    pre = list(wrap) if wrap else []
    guard = 0
    while True:
        guard += 1
        assert guard < 10000
        allv = pre + items
        probs = [p for p in check_hazards(allv) if p[0] >= len(pre)]
        if not probs: return items
        i, extra, why = probs[0]
        extra = max(e for (k, e, w) in probs if k == i)
        idx = i - len(pre)
        items.insert(idx, Ins(f's_nop {extra - 1}'))

def auto_lgkm(items, entry=None):
    fifo = list(entry) if entry else []
    out = []
    for it in items:
        if it.kind == 'sync' and it.op == 's_waitcnt':
            m = re.search(r'lgkmcnt\((\d+)\)', it.text)
            if m:
                nn = int(m.group(1))
                fifo = fifo[len(fifo) - nn:] if nn < len(fifo) else fifo
                if nn == 0: fifo = []
            out.append(it); continue
        touched = set(it.uses) | set(it.defs)
        need = -1
        for p, d in enumerate(fifo):
            if d and (touched & d): need = p
        if it.kind == 'dswrite' or it.kind == 'dsread':
            pass
        if need >= 0:
            nn = len(fifo) - 1 - need
            assert nn <= 15
            out.append(Ins(f's_waitcnt lgkmcnt({nn})'))
            fifo = fifo[need + 1:]
        if it.kind in ('dsread', 'dswrite'):
            if len(fifo) >= 15:
                out.append(Ins('s_waitcnt lgkmcnt(14)'))
                fifo = fifo[len(fifo) - 14:]
            fifo.append(set(it.defs) if it.kind == 'dsread' else set())
        out.append(it)
    return out, fifo

def finalize_linear(items, entry=None):
    it2, fifo = auto_lgkm(items, entry)
    it3 = fix_hazards(it2)
    return it3, fifo

def finalize_loop(body):
    b1, f1 = auto_lgkm(body, None)
    b2, f2 = auto_lgkm(body, f1)
    b3, f3 = auto_lgkm(body, f2)
    assert [i.text for i in b2] == [i.text for i in b3], 'loop waits not converged'
    b4 = fix_hazards(b2, wrap=b2)
    b5 = fix_hazards(b4, wrap=b4)
    return b5, f2

KD = """.section .rodata,"a"
.p2align 6
.amdhsa_kernel {name}
  .amdhsa_next_free_vgpr {vgpr}
  .amdhsa_next_free_sgpr {sgpr}
  .amdhsa_accum_offset {acc}
  .amdhsa_group_segment_fixed_size 0
  .amdhsa_kernarg_size 104
  .amdhsa_user_sgpr_count 2
  .amdhsa_user_sgpr_kernarg_segment_ptr 1
  .amdhsa_system_sgpr_workgroup_id_x 1
.end_amdhsa_kernel
.text
"""
def kernel_text(name, prog_text, vgpr, sgpr, acc):
    return (f".p2align 8\n.globl {name}\n.type {name},@function\n{name}:\n" + prog_text + KD.format(name=name, vgpr=vgpr, sgpr=sgpr, acc=acc))
```

```python
from asmlib import *
import math

RING = 0
SLOT = 32768
STG = 98304
XB = [STG, STG + 18432]
WB = [STG + 36864 + 8192 * i for i in range(3)]
QX = STG
LDS_TOTAL = 163840
O_WS_OFF = 0
CSCALE = math.log2(math.e) / math.sqrt(128.0)

import struct
def f2u(x): return struct.unpack('<I', struct.pack('<f', x))[0]

V_LANE = 1
V_RING = 10
V_KPAT, V_VPAT, V_KA, V_VA = 20, 24, 28, 32
V_P = 36
V_MX, V_T1, V_T2, V_T3 = 48, 49, 50, 51
V_ONES = 52
V_NEGM = 56
V_L = 76
V_S = 96
V_KF = {'A': 120, 'B': 184}
V_VF = {'A': 152, 'B': 216}
A_O = 0
A_Q = 160
V_XD0, V_XD1, V_WD = 96, 97, 98
V_XPAT = 100
V_WPAT = 104
V_XA = 106
V_WA = 110
QF_W = [120, 156]
QF_X = [136, 172]

S_W, S_QH, S_HH, S_BLK, S_B, S_H0 = 24, 25, 26, 27, 28, 29
S_CH, S_DSLOT, S_RSLOT, S_CNT = 30, 31, 32, 33
S_T = 34
S_GOFF, S_LB, S_TMP, S_TMP2 = 41, 42, 40, 43
S_XI, S_WI, S_XOFF, S_WOFF, S_XBUF, S_WBUF, S_XRB, S_WRB = 44, 45, 46, 47, 48, 49, 50, 51
S_XDEL_G, S_XDEL_L, S_XW_G, S_XW_L, S_WW_G, S_WW_L = 52, 53, 54, 55, 56, 57
S_ITEM = 58
S_FL = 59
S_QI = 70

def acc_o(slot, jl): return A_O + slot * 32 + jl * 4
def q_frag(slot, jp): return A_Q + slot * 16 + jp * 4
def rng(f, b, n=4): return f"{f}[{b}:{b+n-1}]"

def interleave(M, fillers, start=0):
    out = []
    k = 0
    for i, m in enumerate(M):
        out.append(m)
        if i >= start and k < len(fillers):
            out += fillers[k]; k += 1
    while k < len(fillers):
        out += fillers[k]; k += 1
    return out

def spread(M, groups, start=0):
    m = len(M) - start
    n = len(groups)
    out = []
    for i, x in enumerate(M):
        out.append(x)
        if i >= start:
            k = i - start
            for g in groups[(k * n) // m:((k + 1) * n) // m]:
                out += g
    return out

class FA:
    def __init__(self, name='fa_kernel', nt_kv=True, nt_w=False, nt_x=False, dbg=None, order='early'):
        self.name = name
        self.nt_kv = ' nt' if nt_kv else ''
        self.nt_w = ' nt' if nt_w else ''
        self.nt_x = ' nt' if nt_x else ''
        self.dbg = dbg
        self.order = order
        self.rare = []
        self.uid = 0

    def setup(self):
        P = Prog()
        n = self.name
        P(f"""
        s_cmp_ge_u32 s2, 256
        s_cbranch_scc1 {n}_done
        s_and_b32 s39, s2, 7
        s_lshr_b32 s40, s2, 3
        s_lshr_b32 s{S_BLK}, s39, 2
        s_and_b32 s39, s39, 3
        s_and_b32 s{S_B}, s40, 7
        s_lshr_b32 s40, s40, 3
        s_lshl_b32 s39, s39, 3
        s_lshl_b32 s40, s40, 1
        s_add_u32 s{S_H0}, s39, s40
        s_mul_i32 s39, s{S_BLK}, 40
        s_add_u32 s60, s0, s39
        s_addc_u32 s61, s1, 0
        s_load_dwordx2 s[4:5], s[60:61], 0
        s_load_dwordx2 s[62:63], s[60:61], 8
        s_load_dwordx2 s[64:65], s[60:61], 16
        s_load_dwordx2 s[66:67], s[60:61], 24
        s_load_dwordx2 s[68:69], s[0:1], 96
        v_lshrrev_b32 v2, 6, v0
        v_and_b32 v{V_LANE}, 63, v0
        v_readfirstlane_b32 s{S_W}, v2
        s_and_b32 s{S_QH}, s{S_W}, 1
        s_lshr_b32 s{S_HH}, s{S_W}, 1
        """)
        L = V_LANE
        P(f"""
        v_lshrrev_b32 v2, 4, v{L}
        v_and_b32 v3, 15, v{L}
        v_xor_b32 v4, v3, v2
        v_lshlrev_b32 v5, 2, v2
        v_xor_b32 v5, v3, v5
        s_cmp_eq_u32 s{S_QH}, 0
        s_cselect_b32 s39, 64, 16
        s_cselect_b64 vcc, -1, 0
        v_cndmask_b32 v4, v5, v4, vcc
        v_lshlrev_b32 v4, 4, v4
        v_lshlrev_b32 v2, 8, v2
        v_add_u32 v{V_RING}, v4, v2
        v_xor_b32 v{V_RING+1}, s39, v{V_RING}
        s_lshl_b32 s40, s39, 1
        v_xor_b32 v{V_RING+2}, s40, v{V_RING}
        s_add_u32 s40, s40, s39
        v_xor_b32 v{V_RING+3}, s40, v{V_RING}
        """)
        P(f"""
        v_and_b32 v3, 15, v{L}
        v_lshrrev_b32 v2, 4, v{L}
        v_xor_b32 v4, v2, v3
        v_lshlrev_b32 v4, 4, v4
        v_lshlrev_b32 v5, 8, v3
        s_lshl_b32 s39, s{S_HH}, 14
        v_add_u32 v5, s39, v5
        """)
        for jp in range(4):
            P(f"v_xor_b32 v6, {64*jp}, v4\nv_add_u32 v{V_KPAT+jp}, v5, v6")
        P(f"""
        v_lshrrev_b32 v3, 2, v{L}
        v_and_b32 v3, 3, v3
        v_and_b32 v4, 3, v{L}
        v_xor_b32 v4, v4, v2
        v_lshlrev_b32 v4, 4, v4
        v_lshlrev_b32 v5, 6, v3
        v_add_u32 v4, v4, v5
        v_lshlrev_b32 v5, 2, v2
        v_add_u32 v5, v5, v3
        v_lshlrev_b32 v5, 8, v5
        s_lshl_b32 s39, s{S_HH}, 14
        s_add_u32 s39, s39, 8192
        v_add_u32 v5, s39, v5
        """)
        for ml in range(4):
            P(f"""
            s_lshl_b32 s39, s{S_HH}, 1
            s_add_u32 s39, s39, {ml}
            s_and_b32 s39, s39, 3
            s_lshl_b32 s39, s39, 6
            v_xor_b32 v6, s39, v4
            v_add_u32 v{V_VPAT+ml}, v5, v6
            """)
        for r in range(4):
            P(f"v_mov_b32 v{V_ONES+r}, 0x3f803f80")
        P("s_waitcnt lgkmcnt(0)")
        P(f"""
        s_cmp_eq_u32 s{S_QH}, 0
        s_cselect_b32 s8, s62, s64
        s_cselect_b32 s9, s63, s65
        s_lshl_b32 s39, s{S_B}, 5
        s_add_u32 s39, s39, s{S_H0}
        s_lshr_b32 s40, s39, 14
        s_lshl_b32 s39, s39, 18
        s_add_u32 s8, s8, s39
        s_addc_u32 s9, s9, s40
        s_lshl_b32 s39, s{S_HH}, 17
        s_add_u32 s8, s8, s39
        s_addc_u32 s9, s9, 0
        s_and_b32 s9, s9, 0xffff
        s_sub_u32 s10, {2*262144}, s39
        s_mov_b32 s11, 0x20000
        s_mul_i32 s39, s{S_B}, {144*2048}
        s_add_u32 s12, s4, s39
        s_addc_u32 s13, s5, 0
        s_and_b32 s13, s13, 0xffff
        s_mov_b32 s14, {144*2048}
        s_mov_b32 s15, 0x20000
        s_lshl_b32 s39, s{S_H0}, 8
        s_add_u32 s16, s66, s39
        s_addc_u32 s17, s67, 0
        s_and_b32 s17, s17, 0xffff
        s_sub_u32 s18, {1024*8192}, s39
        s_mov_b32 s19, 0x20000
        s_lshl_b32 s39, s{S_BLK}, 3
        s_add_u32 s39, s39, s{S_B}
        s_lshl_b32 s39, s39, 5
        s_add_u32 s39, s39, s{S_H0}
        s_mul_i32 s39, s39, 36864
        s_add_u32 s20, s68, s39
        s_addc_u32 s21, s69, 0
        s_add_u32 s20, s20, {O_WS_OFF}
        s_addc_u32 s21, s21, 0
        s_and_b32 s21, s21, 0xffff
        s_mov_b32 s22, {2*36864}
        s_mov_b32 s23, 0x20000
        s_mov_b32 s{S_CH}, 0
        s_mov_b32 s{S_DSLOT}, 0
        s_mov_b32 s{S_GOFF}, 0
        s_mov_b32 s{S_RSLOT}, 0
        s_mov_b32 s{S_ITEM}, 0
        """)
        return P

    def ring_groups(self):
        G = []
        nt = self.nt_kv
        G.append([f"s_lshl_b32 s{S_LB}, s{S_W}, 13", f"s_add_u32 s{S_LB}, s{S_LB}, s{S_DSLOT}"])
        for m in range(8):
            g = []
            if m == 0: g += [f"s_mov_b32 m0, s{S_LB}", f"s_mov_b32 s{S_TMP}, s{S_GOFF}"]
            if m == 4: g += [f"s_add_u32 m0, s{S_LB}, 4096", f"s_add_u32 s{S_TMP}, s{S_GOFF}, 4096"]
            g.append(f"buffer_load_dwordx4 v{V_RING + (m & 3)}, s[8:11], s{S_TMP} offen offset:{(m & 3) * 1024}{nt} lds")
            G.append(g)
        G.append([f"s_add_u32 s{S_CH}, s{S_CH}, 1",
                  f"s_add_u32 s{S_GOFF}, s{S_GOFF}, 8192",
                  f"s_and_b32 s{S_TMP}, s{S_CH}, 15",
                  f"s_cmp_eq_u32 s{S_TMP}, 0",
                  f"s_cselect_b32 s{S_TMP}, 131072, 0",
                  f"s_add_u32 s{S_GOFF}, s{S_GOFF}, s{S_TMP}",
                  f"s_add_u32 s{S_DSLOT}, s{S_DSLOT}, {SLOT}",
                  f"s_cmp_eq_u32 s{S_DSLOT}, {3*SLOT}",
                  f"s_cselect_b32 s{S_DSLOT}, 0, s{S_DSLOT}"])
        return G

    def ring_fill(self):
        P = Prog()
        for _ in range(3):
            for g in self.ring_groups():
                for x in g: P(x)
        return P

    def qp(self, tag):
        n = self.name
        L = V_LANE
        P = Prog()
        P(f"""
        v_lshrrev_b32 v2, 3, v{L}
        v_and_b32 v3, 7, v{L}
        v_lshrrev_b32 v4, 4, v{L}
        v_xor_b32 v3, v3, v4
        v_lshlrev_b32 v3, 4, v3
        v_lshlrev_b32 v2, 11, v2
        v_add_u32 v2, v2, v3
        s_and_b32 s39, s{S_W}, 1
        s_lshl_b32 s39, s39, 6
        v_xor_b32 v{V_XD0}, s39, v2
        v_xor_b32 v{V_XD1}, 64, v{V_XD0}
        """)
        P(f"""
        v_lshrrev_b32 v2, 4, v{L}
        v_and_b32 v3, 15, v{L}
        v_lshlrev_b32 v4, 2, v2
        v_xor_b32 v3, v3, v4
        v_xor_b32 v3, s{S_W}, v3
        v_lshlrev_b32 v3, 4, v3
        v_lshlrev_b32 v4, 13, v2
        v_add_u32 v{V_WD}, v3, v4
        """)
        P(f"""
        v_and_b32 v3, 15, v{L}
        v_lshrrev_b32 v4, 1, v3
        v_xor_b32 v4, v4, v2
        v_lshlrev_b32 v4, 4, v4
        v_lshlrev_b32 v5, 7, v3
        v_xor_b32 v6, 64, v4
        v_add_u32 v4, v4, v5
        v_add_u32 v6, v6, v5
        s_lshl_b32 s39, s{S_QH}, 13
        v_add_u32 v{V_XPAT}, s39, v4
        v_add_u32 v{V_XPAT+1}, s39, v6
        v_add_u32 v{V_XPAT+2}, {8*2048}, v4
        v_add_u32 v{V_XPAT+3}, {8*2048}, v6
        """)
        P(f"""
        v_lshrrev_b32 v3, 2, v{L}
        v_and_b32 v3, 3, v3
        v_and_b32 v4, 3, v{L}
        v_xor_b32 v4, v4, v2
        v_lshlrev_b32 v4, 4, v4
        v_lshlrev_b32 v5, 6, v3
        v_add_u32 v4, v4, v5
        v_lshlrev_b32 v5, 3, v2
        v_add_u32 v5, v5, v3
        v_lshlrev_b32 v5, 8, v5
        """)
        for p in range(2):
            P(f"""
            s_xor_b32 s39, s{S_QH}, {p}
            s_lshl_b32 s40, s{S_HH}, 1
            s_add_u32 s39, s39, s40
            s_lshl_b32 s39, s39, 6
            v_xor_b32 v6, s39, v4
            v_add_u32 v{V_WPAT+p}, v5, v6
            """)
        for r in range(72):
            P(f"v_accvgpr_write_b32 a{r}, 0")
        P(f"""
        s_mul_i32 s{S_XW_G}, s{S_W}, {5*8*2048}
        s_mul_i32 s{S_XW_L}, s{S_W}, {5*1024}
        s_cmp_eq_u32 s{S_W}, 3
        s_cselect_b32 s{S_XDEL_G}, {2*8*2048}, 0
        s_cselect_b32 s{S_XDEL_L}, {2*1024}, 0
        s_lshl_b32 s{S_WW_G}, s{S_W}, 16
        s_lshl_b32 s39, s{S_QI}, 8
        s_add_u32 s{S_WW_G}, s{S_WW_G}, s39
        s_lshl_b32 s{S_WW_L}, s{S_W}, 11
        s_mov_b32 s{S_XI}, 0
        s_mov_b32 s{S_WI}, 0
        s_mov_b32 s{S_XBUF}, {XB[0]}
        s_mov_b32 s{S_WBUF}, {WB[0]}
        s_mov_b32 s{S_XRB}, {XB[0]}
        s_mov_b32 s{S_WRB}, {WB[0]}
        """)
        def x_groups():
            G = []
            G.append([f"s_lshl_b32 s{S_XOFF}, s{S_XI}, 7",
                      f"s_add_u32 s{S_XOFF}, s{S_XOFF}, s{S_XW_G}",
                      f"s_cmp_lt_u32 s{S_XI}, 16",
                      f"s_cselect_b32 s{S_XOFF}, s{S_XOFF}, {144*2048 + 4*8*2048}",
                      f"s_add_u32 s{S_TMP2}, s{S_XBUF}, s{S_XW_L}"])
            for x in range(5):
                g = [f"s_add_u32 m0, s{S_TMP2}, {x*1024}", f"s_add_u32 s{S_TMP}, s{S_XOFF}, {x*8*2048}"]
                if x >= 3:
                    g += [f"s_sub_u32 m0, m0, s{S_XDEL_L}", f"s_sub_u32 s{S_TMP}, s{S_TMP}, s{S_XDEL_G}"]
                g.append(f"buffer_load_dwordx4 v{V_XD0 + (x & 1)}, s[12:15], s{S_TMP} offen{self.nt_x} lds")
                G.append(g)
            G.append([f"s_add_u32 s{S_XI}, s{S_XI}, 1",
                      f"s_xor_b32 s{S_XBUF}, s{S_XBUF}, {XB[0] ^ XB[1]}"])
            return G
        def w_groups():
            G = []
            G.append([f"s_lshl_b32 s{S_WOFF}, s{S_WI}, 18",
                      f"s_add_u32 s{S_WOFF}, s{S_WOFF}, s{S_WW_G}",
                      f"s_add_u32 s{S_TMP2}, s{S_WBUF}, s{S_WW_L}"])
            for x in range(2):
                G.append([f"s_add_u32 m0, s{S_TMP2}, {x*1024}", f"s_add_u32 s{S_TMP}, s{S_WOFF}, {x*4*8192}",
                          f"buffer_load_dwordx4 v{V_WD}, s[16:19], s{S_TMP} offen{self.nt_w} lds"])
            G.append([f"s_add_u32 s{S_WI}, s{S_WI}, 1",
                      f"s_min_u32 s{S_WI}, s{S_WI}, 32",
                      f"s_add_u32 s{S_WBUF}, s{S_WBUF}, 8192",
                      f"s_cmp_eq_u32 s{S_WBUF}, {WB[2] + 8192}",
                      f"s_cselect_b32 s{S_WBUF}, {WB[0]}, s{S_WBUF}"])
            return G
        def addr_groups(ss_next):
            G = [[f"v_add_u32 v{V_WA+p}, s{S_WRB}, v{V_WPAT+p}"] for p in range(2)]
            G += [[f"v_add_u32 v{V_XA}, s{S_XRB}, v{V_XPAT+ss_next}"], [f"v_add_u32 v{V_XA+1}, s{S_XRB}, v{V_XPAT+2+ss_next}"]]
            adv = [f"s_add_u32 s{S_WRB}, s{S_WRB}, 8192", f"s_cmp_eq_u32 s{S_WRB}, {WB[2] + 8192}", f"s_cselect_b32 s{S_WRB}, {WB[0]}, s{S_WRB}"]
            if ss_next == 1: adv.append(f"s_xor_b32 s{S_XRB}, s{S_XRB}, {XB[0] ^ XB[1]}")
            G.append(adv)
            return G
        def read_groups(k):
            G = []
            for jl in range(4):
                a = QF_W[k] + 4 * jl
                p, h = jl >> 1, jl & 1
                G.append([f"ds_read_b64_tr_b16 v[{a}:{a+1}], v{V_WA+p} offset:{8*h}"])
                G.append([f"ds_read_b64_tr_b16 v[{a+2}:{a+3}], v{V_WA+p} offset:{8*h+1024}"])
            for t in range(4):
                G.append([f"ds_read_b128 {rng('v', QF_X[k]+4*t)}, v{V_XA} offset:{t*2048}"])
            G.append([f"ds_read_b128 {rng('v', QF_X[k]+16)}, v{V_XA+1}"])
            return G
        def mf(k):
            M = []
            for t in range(4):
                for jl in range(4):
                    a = 16 * t + 4 * jl
                    M.append(f"v_mfma_f32_16x16x32_bf16 {rng('a', a)}, {rng('v', QF_W[k]+4*jl)}, {rng('v', QF_X[k]+4*t)}, {rng('a', a)}")
            for x in range(2):
                a = 64 + 4 * x
                M.append(f"v_mfma_f32_16x16x32_bf16 {rng('a', a)}, {rng('v', QF_W[k]+4*x)}, {rng('v', QF_X[k]+16)}, {rng('a', a)}")
            return M
        for G in (x_groups(), x_groups(), w_groups(), w_groups(), w_groups()):
            for g in G:
                for x in g: P(x)
        P("s_waitcnt vmcnt(0)\ns_barrier")
        for g in addr_groups(0) + read_groups(0) + addr_groups(1):
            for x in g: P(x)
        P(f"s_waitcnt lgkmcnt(0)\ns_mov_b32 s{S_CNT}, 16")
        pre, _ = finalize_linear(P.items)
        body = Prog()
        for ss in range(2):
            body(f"s_waitcnt vmcnt({7 if ss == 0 else 2}) lgkmcnt(0)")
            body("s_barrier")
            nxt = 1 - ss
            R = read_groups(nxt)
            D = w_groups() + (x_groups() if ss == 1 else [])
            seq = []
            ri = di = 0
            seq += R[:4]; ri = 4
            while ri < len(R) or di < len(D):
                if di < len(D): seq.append(D[di]); di += 1
                if ri < len(R): seq.append(R[ri]); ri += 1
            lr = max(i for i, g in enumerate(seq) if g[0].startswith('ds_read'))
            seq = seq[:lr+1] + addr_groups(ss) + seq[lr+1:]
            for x in spread(mf(ss), seq): body(x)
        body(f"s_sub_u32 s{S_CNT}, s{S_CNT}, 1\ns_cmp_lg_u32 s{S_CNT}, 0")
        b, _ = finalize_loop(body.items)
        out = Prog(); out.extend(pre)
        out.label(f"{n}_qp{tag}")
        out.extend(b)
        out(f"s_cbranch_scc1 {n}_qp{tag}")
        E = Prog()
        E("s_waitcnt vmcnt(0) lgkmcnt(0)\ns_nop 7\ns_barrier")
        E(f"""
        s_mov_b32 s39, {f2u(CSCALE):#x}
        v_lshlrev_b32 v2, 4, v{L}
        v_add_u32 v2, {QX}, v2
        s_lshl_b32 s40, s{S_QH}, 14
        s_lshl_b32 s{S_TMP2}, s{S_HH}, 11
        s_add_u32 s40, s40, s{S_TMP2}
        s_lshl_b32 s{S_TMP2}, s{S_QH}, 10
        s_add_u32 s{S_XOFF}, s40, s{S_TMP2}
        s_xor_b32 s{S_TMP2}, s{S_TMP2}, 1024
        s_add_u32 s{S_WOFF}, s40, s{S_TMP2}
        v_add_u32 v3, s{S_XOFF}, v2
        v_add_u32 v4, s{S_WOFF}, v2
        s_lshl_b32 s40, s{S_HH}, 11
        s_lshl_b32 s{S_TMP2}, s{S_QH}, 10
        s_add_u32 s40, s40, s{S_TMP2}
        v_add_u32 v5, s40, v2
        """)
        def conv(acc_lo, dst):
            for r in range(8):
                E(f"v_accvgpr_read_b32 v{dst+4+r}, a{acc_lo+r}")
            for r in range(8):
                E(f"v_mul_f32 v{dst+4+r}, s39, v{dst+4+r}")
            for r in range(4):
                E(f"v_cvt_pk_bf16_f32 v{dst+r}, v{dst+4+2*r}, v{dst+5+2*r}")
        k = 0
        for t in range(4):
            for p in range(2):
                d = 120 + 12 * (k % 8); k += 1
                conv(16 * t + 8 * p, d)
                E(f"ds_write_b128 v{3+p}, {rng('v', d)} offset:{t*4096}")
        d = 120 + 12 * (k % 8)
        conv(64, d)
        E(f"ds_write_b128 v5, {rng('v', d)} offset:{8*4096}")
        E("s_waitcnt lgkmcnt(0)\ns_barrier")
        e, _ = finalize_linear(E.items)
        out.extend(e)
        return out

    def lq(self):
        L = V_LANE
        P = Prog()
        P(f"""
        v_lshlrev_b32 v2, 4, v{L}
        v_add_u32 v2, {QX}, v2
        s_lshl_b32 s39, s{S_QH}, 14
        v_add_u32 v3, s39, v2
        """)
        for t in range(4):
            for jp in range(4):
                P(f"ds_read_b128 {rng('a', q_frag(t, jp))}, v3 offset:{t*4096 + jp*1024}")
        for jp in range(4):
            P(f"ds_read_b128 {rng('a', q_frag(4, jp))}, v2 offset:{8*4096 + jp*1024}")
        P("s_waitcnt lgkmcnt(0)")
        it, _ = finalize_linear(P.items)
        o = Prog(); o.extend(it)
        return o

    def s_mfmas(self, unit, sb):
        slot, fs = unit
        M = []
        for kt in range(2):
            for jp in range(4):
                d = V_S + sb * 8 + kt * 4
                c = rng('v', V_NEGM + slot * 4) if jp == 0 else rng('v', d)
                M.append(f"v_mfma_f32_16x16x32_bf16 {rng('v', d)}, {rng('v', V_KF[fs] + (kt*4+jp)*4)}, {rng('a', q_frag(slot, jp))}, {c}")
        return M
    def pv_mfmas(self, unit, pb):
        slot, fs = unit
        M = []
        p = rng('v', V_P + pb * 4)
        for jl in range(8):
            M.append(f"v_mfma_f32_16x16x32_bf16 {rng('a', acc_o(slot, jl))}, {rng('v', V_VF[fs] + jl*4)}, {p}, {rng('a', acc_o(slot, jl))}")
        M.append(f"v_mfma_f32_16x16x32_bf16 {rng('v', V_L + slot*4)}, {rng('v', V_ONES)}, {p}, {rng('v', V_L + slot*4)}")
        return M
    def softmax_ops(self, unit, sb, pb):
        slot, fs = unit
        s = V_S + sb * 8
        p = V_P + pb * 4
        self.uid += 1
        u = self.uid
        lab_r, lab_b = f"{self.name}_rare{u}", f"{self.name}_back{u}"
        G = [[f"v_max3_f32 v{V_MX}, v{s}, v{s+1}, v{s+2}"],
             [f"v_max3_f32 v{V_MX}, v{V_MX}, v{s+3}, v{s+4}"],
             [f"v_max3_f32 v{V_MX}, v{V_MX}, v{s+5}, v{s+6}"],
             [f"v_max_f32 v{V_MX}, v{V_MX}, v{s+7}"],
             [f"v_cmp_lt_f32 vcc, s{S_T+slot}, v{V_MX}", f"s_cbranch_vccnz {lab_r}", f"{lab_b}:"],
             [f"v_exp_f32 v{s}, v{s}"], [f"v_exp_f32 v{s+1}, v{s+1}"], [f"v_exp_f32 v{s+2}, v{s+2}"],
             [f"v_cvt_pk_bf16_f32 v{p}, v{s}, v{s+1}"],
             [f"v_exp_f32 v{s+3}, v{s+3}"], [f"v_exp_f32 v{s+4}, v{s+4}"],
             [f"v_cvt_pk_bf16_f32 v{p+1}, v{s+2}, v{s+3}"],
             [f"v_exp_f32 v{s+5}, v{s+5}"], [f"v_exp_f32 v{s+6}, v{s+6}"],
             [f"v_cvt_pk_bf16_f32 v{p+2}, v{s+4}, v{s+5}"],
             [f"v_exp_f32 v{s+7}, v{s+7}"],
             [f"v_cvt_pk_bf16_f32 v{p+3}, v{s+6}, v{s+7}"]]
        R = Prog()
        R.label(lab_r)
        R(f"""
        s_nop 7
        v_mov_b32 v{V_T1}, v{V_MX}
        s_nop 1
        v_permlane16_swap_b32 v{V_MX}, v{V_T1}
        s_nop 1
        v_max_f32 v{V_MX}, v{V_MX}, v{V_T1}
        v_mov_b32 v{V_T1}, v{V_MX}
        s_nop 1
        v_permlane32_swap_b32 v{V_MX}, v{V_T1}
        s_nop 1
        v_max_f32 v{V_MX}, v{V_MX}, v{V_T1}
        s_ashr_i32 s{S_FL}, s{S_T+slot}, 31
        s_and_b32 s{S_FL}, s{S_FL}, 0xff800000
        s_mov_b32 s{S_T+slot}, 0x41000000
        v_max_f32 v{V_MX}, s{S_FL}, v{V_MX}
        """)
        for r in range(8): R(f"v_sub_f32 v{s+r}, v{s+r}, v{V_MX}")
        for r in range(4): R(f"v_sub_f32 v{V_NEGM+slot*4+r}, v{V_NEGM+slot*4+r}, v{V_MX}")
        R(f"v_max_f32 v{V_T1}, 0, v{V_MX}")
        R(f"v_sub_f32 v{V_T1}, 0, v{V_T1}")
        R(f"v_exp_f32 v{V_T1}, v{V_T1}")
        R("s_nop 1")
        for r in range(4): R(f"v_mul_f32 v{V_L+slot*4+r}, v{V_L+slot*4+r}, v{V_T1}")
        for r in range(32):
            a = A_O + slot * 32 + r
            R(f"v_accvgpr_read_b32 v{V_T2}, a{a}\ns_nop 0\nv_mul_f32 v{V_T2}, v{V_T2}, v{V_T1}\ns_nop 0\nv_accvgpr_write_b32 a{a}, v{V_T2}")
        R("s_nop 2")
        R(f"s_branch {lab_b}")
        self.rare.append(R)
        return G
    def kv_reads(self, fs, which):
        G = []
        if which == 'K':
            for kt in range(2):
                for jp in range(4):
                    G.append([f"ds_read_b128 {rng('v', V_KF[fs] + (kt*4+jp)*4)}, v{V_KA+jp} offset:{kt*4096}"])
        else:
            for jl in range(8):
                a = V_VF[fs] + jl * 4
                ml, h = jl >> 1, jl & 1
                G.append([f"ds_read_b64_tr_b16 v[{a}:{a+1}], v{V_VA+ml} offset:{8*h}"])
                G.append([f"ds_read_b64_tr_b16 v[{a+2}:{a+3}], v{V_VA+ml} offset:{8*h+4096}"])
        return G
    def kv_addr(self):
        G = [[f"v_add_u32 v{V_KA+j}, s{S_RSLOT}, v{V_KPAT+j}"] for j in range(4)]
        G += [[f"v_add_u32 v{V_VA+j}, s{S_RSLOT}, v{V_VPAT+j}"] for j in range(4)]
        G.append([f"s_add_u32 s{S_RSLOT}, s{S_RSLOT}, {SLOT}", f"s_cmp_eq_u32 s{S_RSLOT}, {3*SLOT}", f"s_cselect_b32 s{S_RSLOT}, 0, s{S_RSLOT}"])
        return G

    def units(self, qh):
        if qh == 0: return [(0,'A'),(1,'A'),(2,'A'),(3,'A'),(4,'A'),(0,'B'),(1,'B'),(2,'B'),(3,'B')]
        return [(0,'A'),(1,'A'),(2,'A'),(3,'A'),(0,'B'),(1,'B'),(2,'B'),(3,'B'),(4,'B')]

    def attn_body(self, qh, last):
        U = self.units(qh)
        B = Prog()
        for g in range(9):
            if g in (0, 4):
                B("s_waitcnt vmcnt(8) lgkmcnt(0)")
                B("s_barrier")
            M = []
            if not (last and g + 2 >= 9):
                M += self.s_mfmas(U[(g + 2) % 9], (g + 2) % 3)
            M += self.pv_mfmas(U[g], g % 3)
            V = []
            if not (last and g + 1 >= 9):
                V = self.softmax_ops(U[(g + 1) % 9], (g + 1) % 3, (g + 1) % 3)
            X = []
            if g == 0: X = self.kv_reads('B', 'K') + self.ring_groups()[:5]
            if g == 1: X = self.ring_groups()[5:] + self.kv_reads('B', 'V')[:8]
            if g == 2: X = self.kv_reads('B', 'V')[8:] + (self.kv_addr() if not last else [])
            if g == 4:
                X = (self.kv_reads('A', 'K') if not last else []) + self.ring_groups()[:5]
            if g == 5:
                X = self.ring_groups()[5:] + (self.kv_reads('A', 'V')[:8] if not last else [])
            if g == 6:
                X = (self.kv_reads('A', 'V')[8:] + self.kv_addr()) if not last else []
            n = len(M)
            fill = []
            for i in range(max(n, len(V), len(X))):
                f = []
                if i < len(V): f += V[i]
                if i < len(X): f += X[i]
                fill.append(f)
            for x in interleave(M, fill): B(x)
        return B

    def attention(self, qh, tag):
        n = self.name
        U = self.units(qh)
        P = Prog()
        L = V_LANE
        for r in range(160): P(f"v_accvgpr_write_b32 a{A_O + r}, 0")
        for r in range(20): P(f"v_mov_b32 v{V_L + r}, 0\nv_mov_b32 v{V_NEGM + r}, 0")
        for s in range(5): P(f"s_mov_b32 s{S_T+s}, 0xff800000")
        P("s_waitcnt vmcnt(0)\ns_barrier")
        for g in self.kv_addr() + self.kv_reads('A', 'K') + self.kv_reads('A', 'V') + self.kv_addr():
            for x in g: P(x)
        for x in self.s_mfmas(U[0], 0) + self.s_mfmas(U[1], 1): P(x)
        P("s_nop 7")
        for g in self.softmax_ops(U[0], 0, 0):
            for x in g: P(x)
        P(f"s_waitcnt lgkmcnt(0)\ns_mov_b32 s{S_CNT}, 7")
        pre, _ = finalize_linear(P.items)
        out = Prog(); out.extend(pre)
        body, _ = finalize_loop(self.attn_body(qh, False).items)
        out.label(f"{n}_at{tag}")
        out.extend(body)
        out(f"s_sub_u32 s{S_CNT}, s{S_CNT}, 1\ns_cmp_lg_u32 s{S_CNT}, 0\ns_cbranch_scc1 {n}_at{tag}")
        lastb = self.attn_body(qh, True)
        l1, f = auto_lgkm(body, None)
        l2, _ = auto_lgkm(lastb.items, f)
        l3 = fix_hazards(l2, wrap=body)
        out.extend(l3)
        return out

    def combine(self, qh):
        L = V_LANE
        E = Prog()
        MLO = 32768
        E("s_nop 7\ns_waitcnt lgkmcnt(0)\ns_barrier")
        E(f"""
        v_lshlrev_b32 v2, 2, v{L}
        v_add_u32 v2, {STG + MLO}, v2
        s_mul_i32 s39, s{S_W}, 2560
        v_add_u32 v3, s39, v2
        v_lshlrev_b32 v8, 4, v{L}
        v_add_u32 v8, {STG}, v8
        s_lshl_b32 s39, s{S_W}, 13
        s_lshl_b32 s40, s{S_HH}, 12
        s_add_u32 s{S_TMP2}, s39, s40
        v_add_u32 v5, s{S_TMP2}, v8
        s_xor_b32 s{S_TMP2}, s{S_TMP2}, 4096
        v_add_u32 v6, s{S_TMP2}, v8
        """)
        for s_ in range(5):
            E(f"ds_write_b32 v3, v{V_NEGM + s_*4} offset:{s_*512}")
            E(f"ds_write_b32 v3, v{V_L + s_*4} offset:{s_*512 + 256}")
        for jl in range(8):
            E(f"ds_write_b128 v{5 + (jl >> 2)}, {rng('a', acc_o(4, jl))} offset:{(jl & 3)*1024}")
        E("s_waitcnt lgkmcnt(0)\ns_barrier")
        E(f"""
        s_xor_b32 s39, s{S_W}, 2
        s_mul_i32 s39, s39, 2560
        v_add_u32 v4, s39, v2
        s_lshl_b32 s39, s{S_W}, 11
        v_add_u32 v5, s39, v8
        """)
        for s_ in range(4):
            E(f"ds_read_b32 v{120 + 2*s_}, v4 offset:{s_*512}")
            E(f"ds_read_b32 v{121 + 2*s_}, v4 offset:{s_*512 + 256}")
        for ww in range(4):
            E(f"ds_read_b32 v{128 + 2*ww}, v2 offset:{ww*2560 + 4*512}")
            E(f"ds_read_b32 v{129 + 2*ww}, v2 offset:{ww*2560 + 4*512 + 256}")
        for ww in range(4):
            for x in range(2):
                E(f"ds_read_b128 {rng('v', 160 + (ww*2+x)*4)}, v5 offset:{ww*8192 + x*1024}")
        for s_ in range(4):
            nm, l_ = V_NEGM + 4 * s_, V_L + 4 * s_
            no, lo = 120 + 2 * s_, 121 + 2 * s_
            E(f"""
            v_min_f32 v2, v{nm}, v{no}
            v_sub_f32 v6, v2, v{nm}
            v_sub_f32 v7, v2, v{no}
            v_exp_f32 v6, v6
            v_exp_f32 v7, v7
            s_nop 0
            v_mul_f32 v9, v6, v{l_}
            v_fma_f32 v9, v7, v{lo}, v9
            v_rcp_f32 v9, v9
            s_nop 0
            v_mul_f32 v{140+2*s_}, v6, v9
            v_mul_f32 v{141+2*s_}, v7, v9
            """)
        E(f"""
        v_min_f32 v2, v128, v130
        v_min_f32 v6, v132, v134
        v_min_f32 v2, v2, v6
        """)
        for ww in range(4):
            E(f"v_sub_f32 v{148+ww}, v2, v{128+2*ww}\nv_exp_f32 v{148+ww}, v{148+ww}")
        E(f"""
        s_nop 0
        v_mul_f32 v9, v148, v129
        v_fma_f32 v9, v149, v131, v9
        v_fma_f32 v9, v150, v133, v9
        v_fma_f32 v9, v151, v135, v9
        v_rcp_f32 v9, v9
        s_nop 0
        """)
        for ww in range(4): E(f"v_mul_f32 v{148+ww}, v{148+ww}, v9")
        for r in range(8):
            E(f"v_mul_f32 v{192+r}, v{160+r}, v148")
            for ww in range(1, 4):
                E(f"v_fma_f32 v{192+r}, v{160+ww*8+r}, v{148+ww}, v{192+r}")
        for r in range(4):
            E(f"v_cvt_pk_bf16_f32 v{200+r}, v{192+2*r}, v{193+2*r}")
        E(f"""
        v_and_b32 v6, 15, v{L}
        v_lshlrev_b32 v6, 8, v6
        v_lshrrev_b32 v7, 4, v{L}
        v_lshlrev_b32 v7, 4, v7
        v_add_u32 v7, v6, v7
        s_mul_i32 s{S_XOFF}, s{S_ITEM}, 36864
        s_lshl_b32 s39, s{S_W}, 6
        s_add_u32 s39, s39, {128*256}
        s_add_u32 s39, s39, s{S_XOFF}
        buffer_store_dwordx4 {rng('v', 200)}, v7, s[20:23], s39 offen
        s_lshl_b32 s39, s{S_QH}, 14
        s_lshl_b32 s40, s{S_HH}, 7
        s_add_u32 s39, s39, s40
        s_add_u32 s{S_XOFF}, s{S_XOFF}, s39
        """)
        E("s_waitcnt lgkmcnt(0)\ns_barrier")
        E(f"""
        s_lshl_b32 s39, s{S_W}, 14
        v_add_u32 v3, s39, v8
        s_xor_b32 s39, s39, {2 << 14}
        v_add_u32 v4, s39, v8
        """)
        for s_ in range(4):
            for x in range(4):
                E(f"ds_write_b128 v3, {rng('a', acc_o(s_, 4 + x))} offset:{(s_*4+x)*1024}")
        E("s_waitcnt lgkmcnt(0)\ns_barrier")
        for s_ in range(4):
            base = 152 + (s_ % 2) * 48
            for x in range(4):
                E(f"ds_read_b128 {rng('v', base + 4*x)}, v4 offset:{(s_*4+x)*1024}")
            for r in range(16):
                E(f"v_accvgpr_read_b32 v{base+16+r}, a{acc_o(s_, 0) + r}")
            for r in range(16):
                E(f"v_mul_f32 v{base+16+r}, v{base+16+r}, v{140+2*s_}")
            for r in range(16):
                E(f"v_fma_f32 v{base+16+r}, v{base+r}, v{141+2*s_}, v{base+16+r}")
            for r in range(8):
                E(f"v_cvt_pk_bf16_f32 v{base+32+r}, v{base+16+2*r}, v{base+17+2*r}")
            E(f"s_add_u32 s39, s{S_XOFF}, {s_*4096}")
            for p in range(2):
                E(f"buffer_store_dwordx4 {rng('v', base+32+4*p)}, v7, s[20:23], s39 offen offset:{64*p}")
        E("s_waitcnt lgkmcnt(0)\ns_barrier")
        it, _ = finalize_linear(E.items)
        o = Prog(); o.extend(it)
        return o

    def build(self):
        n = self.name
        out = Prog()
        st, _ = finalize_linear(self.setup().items)
        out.extend(st)
        out.label(f"{n}_item")
        out(f"s_mov_b32 s{S_QI}, s{S_ITEM}")
        out.extend(self.qp('x'))
        out(f"s_cmp_lg_u32 s{S_ITEM}, 0\ns_cbranch_scc1 {n}_nofill")
        out.extend(self.ring_fill())
        out.label(f"{n}_nofill")
        out.extend(self.lq())
        out(f"s_cmp_lg_u32 s{S_QH}, 0\ns_cbranch_scc1 {n}_q1")
        out.extend(self.attention(0, 'a'))
        out.extend(self.combine(0))
        out(f"s_branch {n}_next")
        out.label(f"{n}_q1")
        out.extend(self.attention(1, 'b'))
        out.extend(self.combine(1))
        out.label(f"{n}_next")
        out(f"s_add_u32 s{S_ITEM}, s{S_ITEM}, 1\ns_cmp_lt_u32 s{S_ITEM}, 2\ns_cbranch_scc1 {n}_item")
        out.label(f"{n}_done")
        out("s_endpgm")
        for r in self.rare: out.extend(r)
        return kernel_text(n, out.text(), vgpr=512, sgpr=80, acc=256), LDS_TOTAL

if __name__ == '__main__':
    fa = FA()
    txt, lds = fa.build()
    hdr = f"; @launch kernel=fa_kernel grid=(256,1,1) block=(256,1,1) lds={lds}\n"
    open('fa.s', 'w').write(hdr + '.amdgcn_target "amdgcn-amd-amdhsa--gfx950"\n.text\n' + txt)
```

```python
from asmlib import *

O_WS_OFF = 0
STG = 53248
WOFF = 36864

def interleave(M, fillers, start=0, per=1):
    out = []
    k = 0
    for i, m in enumerate(M):
        out.append(m)
        if i >= start:
            for _ in range(per):
                if k < len(fillers):
                    out += fillers[k]; k += 1
    while k < len(fillers):
        out += fillers[k]; k += 1
    return out

def gen_oproj(name='oproj_kernel', pf_dist=6, no_mfma=False, no_dma=False, pf=True, pf_flags='', o_off=O_WS_OFF, contig=True, same=0, no_reads=False):
    ORS = 8 if contig else 13
    OSTG = 36864 if contig else 256
    OM = 1024 if contig else 32768
    OOBO = 144*8192
    P = Prog()
    P(f"""
    s_cmp_ge_u32 s2, 256
    s_cbranch_scc1 {name}_done
    s_load_dwordx2 s[4:5], s[0:1], 96
    s_load_dwordx2 s[6:7], s[0:1], 80
    s_load_dwordx2 s[8:9], s[0:1], 32
    s_load_dwordx2 s[10:11], s[0:1], 72
    v_lshrrev_b32 v1, 6, v0
    v_and_b32 v2, 63, v0
    v_readfirstlane_b32 s24, v1
    s_and_b32 s32, s2, 7
    s_lshr_b32 s33, s2, 3
    s_lshr_b32 s25, s32, 2
    s_and_b32 s34, s32, 1
    s_lshl_b32 s34, s34, 2
    s_and_b32 s41, s33, 3
    s_add_u32 s26, s34, s41
    s_lshr_b32 s34, s32, 1
    s_and_b32 s34, s34, 1
    s_lshl_b32 s34, s34, 3
    s_lshr_b32 s42, s33, 2
    s_add_u32 s27, s34, s42
    """)
    if same == 1: P("s_mov_b32 s25, 0\ns_mov_b32 s26, 0\ns_mov_b32 s27, 0")
    if same == 2: P("s_mov_b32 s25, 0\ns_mov_b32 s26, s41\ns_mov_b32 s27, s42")
    P("""
    v_lshrrev_b32 v3, 4, v2
    v_and_b32 v4, 15, v2
    v_xor_b32 v5, v4, v3
    v_lshlrev_b32 v5, 4, v5
    v_lshlrev_b32 v6, ORS_, v3
    v_add_u32 v24, v5, v6
    v_xor_b32 v25, 64, v24
    v_xor_b32 v26, 128, v24
    v_xor_b32 v27, 192, v24
    v_lshrrev_b32 v3, 3, v2
    v_and_b32 v4, 7, v2
    v_lshrrev_b32 v5, 4, v2
    v_and_b32 v5, 1, v5
    v_lshlrev_b32 v5, 1, v5
    v_xor_b32 v4, v4, v5
    v_lshlrev_b32 v4, 4, v4
    v_lshlrev_b32 v3, 11, v3
    v_add_u32 v14, v3, v4
    v_xor_b32 v15, 64, v14
    v_and_b32 v3, 15, v2
    v_lshrrev_b32 v4, 4, v2
    s_lshl_b32 s32, s24, 2
    v_add_u32 v5, s32, v4
    v_xor_b32 v5, v5, v3
    v_lshlrev_b32 v5, 4, v5
    v_lshlrev_b32 v6, 8, v3
    v_add_u32 v16, v5, v6
    v_lshrrev_b32 v3, 2, v2
    v_and_b32 v3, 3, v3
    v_and_b32 v5, 3, v2
    v_lshlrev_b32 v6, 3, v4
    v_add_u32 v6, v6, v3
    s_lshl_b32 s32, s24, 5
    v_add_u32 v6, s32, v6
    v_lshlrev_b32 v6, 7, v6
    v_lshrrev_b32 v7, 1, v3
    v_and_b32 v8, 1, v4
    v_lshlrev_b32 v8, 1, v8
    v_add_u32 v7, v7, v8
    v_lshlrev_b32 v7, 5, v7
    v_lshlrev_b32 v5, 3, v5
    v_add_u32 v6, v6, v7
    v_add_u32 v17, v6, v5
    v_xor_b32 v18, 32, v17
    v_xor_b32 v19, 64, v17
    v_xor_b32 v20, 96, v17
    """.replace('ORS_', str(ORS)))
    P(f"""
    s_mul_i32 s32, s42, 36
    v_add_u32 v3, s32, v2
    v_lshrrev_b32 v4, 1, v3
    v_lshlrev_b32 v4, {ORS}, v4
    v_and_b32 v3, 1, v3
    v_lshlrev_b32 v3, 7, v3
    v_add_u32 v21, v3, v4
    v_mov_b32 v5, 0x7f000000
    v_cmp_gt_u32 vcc, 36, v2
    s_nop 1
    v_cndmask_b32 v21, v5, v21, vcc
    s_lshl_b32 s32, s41, 5
    v_add_u32 v3, s32, v2
    v_lshlrev_b32 v22, 11, v3
    v_cmp_gt_u32 vcc, 32, v2
    s_nop 1
    v_cndmask_b32 v22, v5, v22, vcc
    """)
    for r in range(144):
        P(f"v_accvgpr_write_b32 a{r}, 0")
    P("s_waitcnt lgkmcnt(0)")
    P(f"""
    s_lshl_b32 s32, s25, 3
    s_add_u32 s32, s32, s26
    s_mul_i32 s32, s32, {144*8192}
    s_add_u32 s12, s4, s32
    s_addc_u32 s13, s5, 0
    s_add_u32 s12, s12, {o_off}
    s_addc_u32 s13, s13, 0
    s_and_b32 s13, s13, 0xffff
    s_mov_b32 s14, {144*8192}
    s_mov_b32 s15, 0x20000
    s_cmp_eq_u32 s25, 0
    s_cselect_b32 s16, s8, s10
    s_cselect_b32 s17, s9, s11
    s_lshl_b32 s32, s27, 7
    s_add_u32 s16, s16, s32
    s_addc_u32 s17, s17, 0
    s_and_b32 s17, s17, 0xffff
    s_sub_u32 s18, {4096*2048}, s32
    s_mov_b32 s19, 0x20000
    s_mul_i32 s32, s26, {144*4096}
    s_lshl_b32 s33, s25, 11
    s_add_u32 s32, s32, s33
    s_lshl_b32 s33, s27, 7
    s_add_u32 s32, s32, s33
    s_add_u32 s20, s6, s32
    s_addc_u32 s21, s7, 0
    s_and_b32 s21, s21, 0xffff
    s_sub_u32 s22, {8*144*4096}, s32
    s_mov_b32 s23, 0x20000
    """)
    P(f"""
    s_mul_i32 s36, s24, {12*OM}
    s_mul_i32 s37, s24, {6*16384}
    s_mul_i32 s45, s24, {12*1024}
    s_mul_i32 s46, s24, {6*1024}
    s_add_u32 s46, s46, {WOFF}
    s_cmp_eq_u32 s24, 2
    s_cselect_b32 s43, {16*16384}, 0
    s_cselect_b32 s44, {16*1024}, 0
    s_mov_b32 s28, 0
    s_mov_b32 s29, 0
    s_mov_b32 s30, 0
    """)
    def dma_groups():
        L = []
        L.append([f"s_add_u32 s38, s45, s29", f"s_add_u32 s39, s46, s29"])
        for mm in range(12):
            L.append([f"s_add_u32 m0, s38, {mm*1024}",
                      f"s_add_u32 s40, s36, {mm*OM}",
                      f"buffer_load_dwordx4 v{24 + (mm & 3)}, s[12:15], s40 offen lds"])
        for pp in range(6):
            g = [f"s_add_u32 m0, s39, {pp*1024}", f"s_add_u32 s40, s37, {pp*16384}"]
            if pp >= 4:
                g += ["s_sub_u32 m0, m0, s44", "s_sub_u32 s40, s40, s43"]
            g.append(f"buffer_load_dwordx4 v{14 + (pp & 1)}, s[16:19], s40 offen lds")
            L.append(g)
        L.append([f"s_add_u32 s28, s28, 1",
                  f"s_add_u32 s36, s36, {OSTG}",
                  f"s_add_u32 s37, s37, {1<<18}",
                  f"s_add_u32 s29, s29, {STG}",
                  f"s_cmp_eq_u32 s29, {3*STG}",
                  f"s_cselect_b32 s29, 0, s29",
                  f"s_cmp_lt_u32 s28, 32",
                  f"s_cselect_b32 s36, s36, {144*8192}",
                  f"s_cselect_b32 s37, s37, {4096*2048}"])
        return L
    def pf_groups():
        L = []
        L.append([f"s_mul_i32 s40, s47, {OSTG}", f"buffer_load_dword v23, v21, s[12:15], s40 offen{pf_flags}"])
        L.append([f"s_lshl_b32 s40, s47, 18", f"buffer_load_dword v29, v22, s[16:19], s40 offen{pf_flags}"])
        L.append([f"s_add_u32 s47, s47, 1", f"s_min_u32 s47, s47, 32"])
        return L
    FB = [32, 32 + 52]
    def reads(setk):
        b = FB[setk]
        L = []
        for j in range(4):
            a = b + 36 + 4 * j
            L.append([f"ds_read_b64_tr_b16 v[{a}:{a+1}], v{140+j} offset:{WOFF}"])
            L.append([f"ds_read_b64_tr_b16 v[{a+2}:{a+3}], v{140+j} offset:{WOFF+512}"])
        for t in range(9):
            L.append([f"ds_read_b128 v[{b+4*t}:{b+4*t+3}], v144 offset:{t*4096}"])
        return L
    def read_addr():
        return [[f"v_add_u32 v{140+j}, s30, v{17+j}"] for j in range(4)] + [["v_add_u32 v144, s30, v16"],
               [f"s_add_u32 s30, s30, {STG}", f"s_cmp_eq_u32 s30, {3*STG}", "s_cselect_b32 s30, 0, s30"]]
    def mfmas(setk):
        b = FB[setk]
        L = []
        for t in range(9):
            for j in range(4):
                a = b + 36 + 4 * j
                acc = 16 * t + 4 * j
                L.append(f"v_mfma_f32_16x16x32_bf16 a[{acc}:{acc+3}], v[{a}:{a+3}], v[{b+4*t}:{b+4*t+3}], a[{acc}:{acc+3}]")
        return L
    P(f"s_cmp_eq_u32 s24, 3\ns_cbranch_scc1 {name}_h_pro")
    for st in range(3):
        for g in dma_groups():
            for x in g: P(x)
    P("s_waitcnt vmcnt(36)")
    P(f"s_branch {name}_pro_done")
    P.label(f"{name}_h_pro")
    P("s_mov_b32 s47, 3")
    if pf:
        for st in range(pf_dist):
            for g in pf_groups():
                for x in g: P(x)
    P.label(f"{name}_pro_done")
    P("s_barrier")
    for g in read_addr():
        for x in g: P(x)
    for g in reads(0):
        for x in g: P(x)
    for g in read_addr():
        for x in g: P(x)
    P("s_waitcnt lgkmcnt(0)")
    P("s_mov_b32 s31, 16")
    P(f"s_cmp_eq_u32 s24, 3\ns_cbranch_scc1 {name}_hloop")
    pre, _ = finalize_linear(P.items)
    out = Prog(); out.extend(pre)
    for role in ('stage', 'help'):
        body = Prog()
        for half in range(2):
            cur, nxt = half, 1 - half
            if role == 'stage': body("s_waitcnt vmcnt(18) lgkmcnt(0)")
            else: body("s_waitcnt lgkmcnt(0)")
            body("s_barrier")
            M = mfmas(cur) if not no_mfma else []
            R = reads(nxt) if not no_reads else [['ds_read_b32 v150, v144']]
            if role == 'stage':
                D = dma_groups() if not no_dma else []
                seq = []
                ri = 0
                seq += R[0:4]; ri = 4
                di = 0
                while ri < len(R) or di < len(D):
                    if di < len(D): seq.append(D[di]); di += 1
                    if ri < len(R): seq.append(R[ri]); ri += 1
                seq = seq[:30] + read_addr() + seq[30:] if len(seq) > 30 else seq + read_addr()
            else:
                seq = R + (pf_groups() if pf else []) + read_addr()
            flat = [g for g in seq if not (g[0].startswith('v_add_u32 v14') or g[0].startswith('s_add_u32 s30'))]
            last_read = max(i for i, g in enumerate(flat) if g[0].startswith('ds_read'))
            seq = flat[:last_read + 1] + read_addr() + flat[last_read + 1:]
            for x in interleave(M, seq): body(x)
        body("s_sub_u32 s31, s31, 1")
        body("s_cmp_lg_u32 s31, 0")
        b_items, fifo = finalize_loop(body.items)
        lab = f"{name}_loop" if role == 'stage' else f"{name}_hloop"
        out.label(lab)
        out.extend(b_items)
        out(f"s_cbranch_scc1 {lab}")
        if role == 'stage': out(f"s_branch {name}_epi")
    out.label(f"{name}_epi")
    E = Prog()
    E("s_waitcnt vmcnt(0) lgkmcnt(0)")
    E("s_nop 7")
    E("s_barrier")
    E(f"""
    v_lshlrev_b32 v3, 4, v2
    s_mul_i32 s32, s24, 36864
    v_add_u32 v4, s32, v3
    """)
    for t in range(9):
        for j in range(4):
            acc = 16 * t + 4 * j
            E(f"ds_write_b128 v4, a[{acc}:{acc+3}] offset:{(t*4+j)*1024}")
    E("s_waitcnt lgkmcnt(0)")
    E("s_barrier")
    E(f"""
    s_lshl_b32 s32, s24, 10
    v_add_u32 v5, s32, v3
    v_add_u32 v6, 36864, v5
    v_add_u32 v7, {2*36864}, v5
    v_add_u32 v8, {3*36864}, v5
    v_and_b32 v9, 15, v2
    v_lshlrev_b32 v9, 12, v9
    v_lshrrev_b32 v21, 4, v2
    v_lshlrev_b32 v21, 3, v21
    v_add_u32 v9, v9, v21
    s_lshl_b32 s32, s24, 5
    v_add_u32 v9, s32, v9
    """)
    for t in range(9):
        base = 32 + 16 * (t % 3)
        for ww in range(4):
            E(f"ds_read_b128 v[{base+4*ww}:{base+4*ww+3}], v{5+ww} offset:{t*4096}")
        for r in range(4):
            E(f"v_add_f32 v{base+r}, v{base+r}, v{base+4+r}")
            E(f"v_add_f32 v{base+8+r}, v{base+8+r}, v{base+12+r}")
        for r in range(4):
            E(f"v_add_f32 v{base+r}, v{base+r}, v{base+8+r}")
        E(f"v_cvt_pk_bf16_f32 v{base}, v{base}, v{base+1}")
        E(f"v_cvt_pk_bf16_f32 v{base+1}, v{base+2}, v{base+3}")
        E(f"s_mov_b32 s33, {t*16*4096}")
        E(f"buffer_store_dwordx2 v[{base}:{base+1}], v9, s[20:23], s33 offen")
    e_items, _ = finalize_linear(E.items)
    out.extend(e_items)
    out.label(f"{name}_done")
    out("s_endpgm")
    return kernel_text(name, out.text(), vgpr=400, sgpr=56, acc=256), 3 * STG

if __name__ == '__main__':
    variants = [('oproj_kernel', {}), ('op_nopf_kernel', dict(pf=False)),
                ('op_dmaonly_kernel', dict(no_mfma=True, pf=False, no_reads=True)),
                ('op_dmaonly_same1_kernel', dict(no_mfma=True, pf=False, no_reads=True, same=1)),
                ('op_dmaonly_same2_kernel', dict(no_mfma=True, pf=False, no_reads=True, same=2)),
                ('op_same1_kernel', dict(pf=False, same=1)),
                ('op_same2_kernel', dict(pf=False, same=2)),
                ]
    hdr = ''; body = ''
    for nm, kw in variants:
        txt, lds = gen_oproj(nm, **kw)
        hdr += f"; @launch kernel={nm} grid=(256,1,1) block=(256,1,1) lds={lds}\n"
        body += txt
    open('op.s', 'w').write(hdr + '.amdgcn_target "amdgcn-amd-amdhsa--gfx950"\n.text\n' + body)
```

```python
import sys
sys.path.insert(0, 'gen')
import importlib
import fa as fa_mod, oproj2
def make(path, fa_kw=None, op_kw=None):
    f = fa_mod.FA(name='fa_kernel', **(fa_kw or {}))
    t1, l1 = f.build()
    t2, l2 = oproj2.gen_oproj('oproj_kernel', **(op_kw or {}))
    hdr = open('concat_heads__mha_block_cached__gqa_block_cached__near_ridge.s.ref').read().split('; Override')[0]
    hdr += f"; @launch kernel=fa_kernel grid=(256,1,1) block=(256,1,1) lds={l1}\n"
    hdr += f"; @launch kernel=oproj_kernel grid=(256,1,1) block=(256,1,1) lds={l2}\n"
    open(path, 'w').write(hdr + '.amdgcn_target "amdgcn-amd-amdhsa--gfx950"\n.text\n' + t1 + t2)
if __name__ == '__main__':
    make('concat_heads__mha_block_cached__gqa_block_cached__near_ridge.s', op_kw=dict(pf=False))
    make('v_nont.s', fa_kw=dict(nt_kv=False), op_kw=dict(pf=False))
    make('v_allnt.s', fa_kw=dict(nt_kv=True, nt_w=True, nt_x=True), op_kw=dict(pf=True))
```

```python
import re

_R = re.compile(r'^(-?)(?:abs\()?([vas])(?:\[(\d+):(\d+)\]|(\d+))\)?$')

def regs_of(tok):
    tok = tok.strip()
    if tok in ('vcc',): return [('s', 106), ('s', 107)]
    if tok == 'vcc_lo': return [('s', 106)]
    if tok == 'vcc_hi': return [('s', 107)]
    if tok == 'm0': return [('s', 124)]
    if tok == 'exec': return [('s', 126), ('s', 127)]
    m = _R.match(tok)
    if not m: return []
    f = m.group(2)
    if m.group(3) is not None:
        return [(f, i) for i in range(int(m.group(3)), int(m.group(4)) + 1)]
    return [(f, int(m.group(5)))]

TRANS = ('v_exp_f32', 'v_log_f32', 'v_rcp_f32', 'v_rsq_f32', 'v_sqrt_f32')

class Ins:
    __slots__ = ('text', 'op', 'ops', 'defs', 'uses', 'kind', 'ws', 'comment')
    def __init__(self, text):
        self.text = text
        t = text.split(';')[0].strip()
        parts = t.split(None, 1)
        self.op = parts[0] if parts else ''
        rest = parts[1] if len(parts) > 1 else ''
        ops = [o.strip() for o in rest.split(',')] if rest else []
        if ops:
            last = ops[-1].split()
            ops = ops[:-1] + [last[0]] if last else ops[:-1]
        self.ops = ops
        self.ws = 1
        op = self.op
        defs, uses = [], []
        kind = 'other'
        R = regs_of
        if op.endswith(':') or op.startswith('.') or op == '':
            kind = 'label'; self.ws = 0
        elif op == 's_nop':
            kind = 'nop'; self.ws = int(ops[0], 0) + 1
        elif op.startswith('v_mfma'):
            kind = 'mfma'; defs = R(ops[0]); uses = R(ops[1]) + R(ops[2]) + R(ops[3])
        elif op.startswith('ds_read') or op.startswith('ds_bpermute') or op.startswith('ds_swizzle'):
            kind = 'dsread'; defs = R(ops[0]); uses = sum((R(o) for o in ops[1:]), [])
        elif op.startswith('ds_write'):
            kind = 'dswrite'; uses = sum((R(o) for o in ops), [])
        elif op.startswith('buffer_load') or op.startswith('global_load'):
            if ' lds' in t or op.startswith('global_load_lds'):
                kind = 'dma'; uses = sum((R(o) for o in ops), []) + R('m0')
            else:
                kind = 'vload'; defs = R(ops[0]); uses = sum((R(o) for o in ops[1:]), [])
        elif op.startswith('buffer_store') or op.startswith('global_store'):
            kind = 'vstore'; uses = sum((R(o) for o in ops), [])
        elif op.startswith('global_atomic') or op.startswith('buffer_atomic'):
            kind = 'vstore'; uses = sum((R(o) for o in ops), [])
        elif op.startswith('v_cmp'):
            kind = 'valu'; defs = R(ops[0]); uses = sum((R(o) for o in ops[1:]), [])
        elif op.startswith('v_permlane') and 'swap' in op:
            kind = 'permlane'; defs = R(ops[0]) + R(ops[1]); uses = list(defs)
        elif op.startswith('v_readfirstlane') or op.startswith('v_readlane'):
            kind = 'readlane'; defs = R(ops[0]); uses = sum((R(o) for o in ops[1:]), [])
        elif op.startswith('v_'):
            kind = 'trans' if op.replace('_e32', '').replace('_e64', '') in TRANS else 'valu'
            defs = R(ops[0]); uses = sum((R(o) for o in ops[1:]), [])
            if op.startswith('v_fmac') or op.startswith('v_swap'):
                uses += defs
                if op.startswith('v_swap'): defs = defs + R(ops[1])
            if op.startswith('v_cndmask') and len(ops) == 3: uses += R('vcc')
            if op.startswith('v_add_co') or op.startswith('v_addc_co'): defs += R(ops[1])
            if '_dpp' in op or 'row_' in t or 'quad_perm' in t: kind = 'dpp'
        elif op.startswith('s_waitcnt') or op in ('s_barrier', 's_endpgm', 's_setprio', 's_sleep'):
            kind = 'sync'
        elif op.startswith('s_cbranch') or op == 's_branch':
            kind = 'branch'
        elif op.startswith('s_cmp') or op.startswith('s_bitcmp'):
            kind = 'salu'; uses = sum((R(o) for o in ops), [])
        elif op.startswith('s_load') or op.startswith('s_memtime') or op.startswith('s_memrealtime') or op.startswith('s_buffer_load'):
            kind = 'smem'; defs = R(ops[0]); uses = sum((R(o) for o in ops[1:]), [])
        elif op.startswith('s_'):
            kind = 'salu'; defs = R(ops[0]) if ops else []; uses = sum((R(o) for o in ops[1:]), [])
            if 'saveexec' in op: defs += R('exec')
        self.defs, self.uses, self.kind = defs, uses, kind

VALU_KINDS = ('valu', 'trans', 'permlane', 'readlane', 'dpp')

def mfma_passes(op):
    return 8 if '32x32' in op else 4

def check_hazards(ins_list, name=''):
    probs = []
    n = len(ins_list)
    for i, c in enumerate(ins_list):
        if c.kind in ('label', 'nop', 'sync', 'branch'): continue
        dist = 0
        j = i - 1
        cu = set(c.uses); cd = set(c.defs)
        while j >= 0 and dist < 20:
            p = ins_list[j]
            need = 0; why = ''
            pd = set(p.defs)
            if p.kind == 'mfma':
                ps = mfma_passes(p.op)
                raw = {4: 8, 8: 12}[ps]
                if c.kind == 'mfma':
                    ab = set(regs_of(c.ops[1]) + regs_of(c.ops[2]))
                    cc = set(regs_of(c.ops[3]))
                    if pd & ab: need, why = raw, 'mfma D -> mfma A/B'
                    elif pd & cc:
                        if regs_of(c.ops[3]) == p.defs and mfma_passes(c.op) == ps: need = 0
                        else: need, why = {4: 6, 8: 10}[ps], 'mfma D -> mfma C overlap'
                    if pd & cd and not (pd & cc): need, why = max(need, raw), 'mfma D -> mfma D WAW'
                elif c.kind in VALU_KINDS or c.kind in ('dsread', 'dswrite', 'vload', 'vstore', 'dma'):
                    if pd & cu or pd & cd: need, why = raw, 'mfma D -> valu/mem'
                    pc = set(regs_of(p.ops[3]))
                    if c.kind in VALU_KINDS and (pc & cd):
                        w = {4: 3, 8: 7}[ps]
                        if w > need: need, why = w, 'mfma C WAR valu'
            elif p.kind in VALU_KINDS:
                vd = {r for r in pd if r[0] in 'va'}
                sd = {r for r in pd if r[0] == 's'}
                if c.kind == 'mfma' and (vd & cu): need, why = 2, 'valu -> mfma'
                if p.kind == 'trans' and c.kind in VALU_KINDS and c.kind != 'trans' and (vd & cu): need, why = max(need, 1), 'trans -> valu'
                if p.kind == 'trans' and c.kind == 'trans' and (vd & cu): need, why = max(need, 1), 'trans -> trans'
                if c.kind == 'readlane' and (vd & cu): need, why = max(need, 1), 'valu -> readlane'
                if c.kind in ('permlane', 'dpp') and (vd & cu): need, why = max(need, 2), 'valu -> permlane/dpp'
                if sd:
                    if c.kind in VALU_KINDS and (sd & cu): need, why = max(need, 2), 'valu sgpr -> valu const'
                    if c.kind in ('vload', 'vstore', 'dma') and (sd & cu): need, why = max(need, 5), 'valu sgpr -> vmem'
                    if c.kind == 'readlane' and (sd & cu): need, why = max(need, 4), 'valu sgpr -> lane select'
                    if c.kind in ('salu',) and (sd & cu): need, why = max(need, 1), 'valu sgpr -> salu (pad)'
            elif p.kind == 'salu':
                if ('s', 124) in pd and c.kind == 'dma': need, why = 1, 'm0 -> dma'
            elif p.kind == 'vstore':
                if ('x4' in p.op or 'x3' in p.op) and c.kind in VALU_KINDS + ('dsread', 'vload', 'mfma'):
                    data = set(regs_of(p.ops[0])) if p.op.startswith('buffer') else set(regs_of(p.ops[1]))
                    if p.op.startswith('global') and len(p.ops) >= 2: data = set(regs_of(p.ops[1]))
                    if data & cd: need, why = 2, 'store data WAR'
            if need > dist:
                probs.append((i, need - dist, why + f' [{p.text.strip()}] -> [{c.text.strip()}]'))
            dist += p.ws
            j -= 1
    return probs

class Prog:
    def __init__(self):
        self.items = []
    def __call__(self, text):
        for line in text.split('\n'):
            line = line.strip()
            if not line: continue
            self.items.append(Ins(line))
    def label(self, name):
        self.items.append(Ins(name + ':'))
    def extend(self, other):
        self.items.extend(other.items if isinstance(other, Prog) else other)
    def text(self):
        out = []
        for it in self.items:
            out.append(it.text if it.kind == 'label' else '  ' + it.text)
        return '\n'.join(out) + '\n'

def fix_hazards(items, wrap=None):
    items = list(items)
    pre = list(wrap) if wrap else []
    guard = 0
    while True:
        guard += 1
        assert guard < 10000
        allv = pre + items
        probs = [p for p in check_hazards(allv) if p[0] >= len(pre)]
        if not probs: return items
        i, extra, why = probs[0]
        extra = max(e for (k, e, w) in probs if k == i)
        idx = i - len(pre)
        items.insert(idx, Ins(f's_nop {extra - 1}'))

def auto_lgkm(items, entry=None, age=48):
    fifo = [list(e) for e in entry] if entry else []
    out = []
    idx = 0
    for it in items:
        idx += 1
        if it.kind == 'sync' and it.op == 's_waitcnt':
            m = re.search(r'lgkmcnt\((\d+)\)', it.text)
            if m:
                nn = int(m.group(1))
                fifo = fifo[len(fifo) - nn:] if nn < len(fifo) else fifo
                if nn == 0: fifo = []
            out.append(it); continue
        touched = set(it.uses) | set(it.defs)
        need = -1
        for p, d in enumerate(fifo):
            if d[0] and (touched & d[0]): need = p
        if need >= 0:
            while need + 1 < len(fifo) and idx - fifo[need + 1][1] >= age: need += 1
            nn = len(fifo) - 1 - need
            assert nn <= 15
            out.append(Ins(f's_waitcnt lgkmcnt({nn})'))
            fifo = fifo[need + 1:]
        if it.kind in ('dsread', 'dswrite'):
            if len(fifo) >= 15:
                need = 0
                while need + 1 < len(fifo) and idx - fifo[need + 1][1] >= age: need += 1
                out.append(Ins(f's_waitcnt lgkmcnt({len(fifo) - 1 - need})'))
                fifo = fifo[need + 1:]
            fifo.append([set(it.defs) if it.kind == 'dsread' else set(), idx])
        out.append(it)
    return out, [[d, i - idx] for d, i in fifo]

def finalize_linear(items, entry=None):
    it2, fifo = auto_lgkm(items, entry)
    it3 = fix_hazards(it2)
    return it3, fifo

def finalize_loop(body):
    b1, f1 = auto_lgkm(body, None)
    b2, f2 = auto_lgkm(body, f1)
    b3, f3 = auto_lgkm(body, f2)
    assert [i.text for i in b2] == [i.text for i in b3], 'loop waits not converged'
    b4 = fix_hazards(b2, wrap=b2)
    b5 = fix_hazards(b4, wrap=b4)
    return b5, f2

KD = """.section .rodata,"a"
.p2align 6
.amdhsa_kernel {name}
  .amdhsa_next_free_vgpr {vgpr}
  .amdhsa_next_free_sgpr {sgpr}
  .amdhsa_accum_offset {acc}
  .amdhsa_group_segment_fixed_size 0
  .amdhsa_kernarg_size 104
  .amdhsa_user_sgpr_count 2
  .amdhsa_user_sgpr_kernarg_segment_ptr 1
  .amdhsa_system_sgpr_workgroup_id_x 1
.end_amdhsa_kernel
.text
"""
def kernel_text(name, prog_text, vgpr, sgpr, acc):
    return (f".p2align 8\n.globl {name}\n.type {name},@function\n{name}:\n" + prog_text + KD.format(name=name, vgpr=vgpr, sgpr=sgpr, acc=acc))
```

```python
from asmlib import *
import math

RING = 0
SLOT = 32768
STG = 98304
XB = [STG, STG + 18432]
WB = [STG + 36864 + 8192 * i for i in range(3)]
QX = STG
LDS_TOTAL = 163840
O_WS_OFF = 0
CSCALE = math.log2(math.e) / math.sqrt(128.0)

import struct
def f2u(x): return struct.unpack('<I', struct.pack('<f', x))[0]

V_LANE = 1
V_RING = 10
V_KPAT, V_VPAT, V_KA, V_VA = 20, 24, 28, 32
V_P = 36
V_MX, V_T1, V_T2, V_T3 = 48, 49, 50, 51
V_ONES = 52
V_NEGM = 56
V_L = 76
V_S = 96
V_KF = {'A': 120, 'B': 184}
V_VF = {'A': 152, 'B': 216}
A_O = 0
A_Q = 160
V_XD, V_WD = 106, 98
QXBASE = 65536
V_PFW, V_PFX, V_PFD = 14, 15, 16
V_RINGK, V_RINGV = 17, 18
V_RINGH = 248
V_VA2 = 252
V_XPAT = 100
V_WPAT = 104
V_XA = 106
V_WA = 110
QF_W = [120, 156]
QF_X = [136, 172]

S_W, S_QH, S_HH, S_BLK, S_B, S_H0 = 24, 25, 26, 27, 28, 29
S_CH, S_DSLOT, S_RSLOT, S_CNT = 30, 31, 32, 33
S_T = 34
S_GOFF, S_LB, S_TMP, S_TMP2 = 41, 42, 40, 43
S_DWRAP, S_DBASE = 30, 42
S_XI, S_WI, S_XOFF, S_WOFF, S_XBUF, S_WBUF, S_XRB, S_WRB = 44, 45, 46, 47, 48, 49, 50, 51
S_XW_G, S_XW_L = 54, 55
S_XC = 96
S_WW_L, S_WLIM = 101, 56
S_BAD, S_SAFE, S_NREC2 = 44, 45, 53
S_ITEM = 58
S_FL = 59
S_QI = 70
S_FLAG = 72
S_LATE, S_PR, S_FI, S_FMAX, S_FG, S_FL2 = 71, 74, 75, 52, 53, 56
S_KVO = 66

QP_PAT = [98, 99, 100, 101, 102, 103, 104, 105, 106, 107, 108, 109, 110]
def qacc(k): return (56 + 4 * k) if k < 10 else (192 + 4 * (k - 10))
def acc_o(slot, jl): return A_O + slot * 32 + jl * 4
def q_frag(slot, jp): return A_Q + slot * 16 + jp * 4
def rng(f, b, n=4): return f"{f}[{b}:{b+n-1}]"

def interleave(M, fillers, start=0):
    out = []
    k = 0
    for i, m in enumerate(M):
        out.append(m)
        if i >= start and k < len(fillers):
            out += fillers[k]; k += 1
    while k < len(fillers):
        out += fillers[k]; k += 1
    return out

def spread(M, groups, start=0):
    m = len(M) - start
    n = len(groups)
    out = []
    for i, x in enumerate(M):
        out.append(x)
        if i >= start:
            k = i - start
            for g in groups[(k * n) // m:((k + 1) * n) // m]:
                out += g
    return out

class FA:
    def __init__(self, name='fa_kernel', nt_kv=True, nt_w=False, nt_x=False, dbg=None, order='early', stamps=False, pf_qp=True, pf_att=True, late_bit=1, x_nodma=False, x_nosm=False, x_nobr=False, x_nord=False, x_nobar=False, x_qv=False, q_nodma=False, q_nord=False, q_nobar=False, q_nowait=False, same_kv=False, x_nohead=False, x_noX=False, x_nomax=False, fill_qp=True, fast=True, force_bad=False):
        self.fast = fast
        self.force_bad = force_bad
        self.fill_qp = fill_qp
        self.x_nomax = x_nomax
        self.x_nohead, self.x_noX = x_nohead, x_noX
        self.same_kv = same_kv
        self.q_nowait = q_nowait
        self.q_nodma, self.q_nord, self.q_nobar = q_nodma, q_nord, q_nobar
        self.x_nodma, self.x_nosm, self.x_nobr, self.x_nord, self.x_nobar, self.x_qv = x_nodma, x_nosm, x_nobr, x_nord, x_nobar, x_qv
        self.pf_qp = pf_qp
        self.pf_att = pf_att
        self.late_bit = late_bit
        self.stamps = stamps
        self.nst = 0
        self.name = name
        self.nt_kv = ' nt' if nt_kv else ''
        self.nt_w = ' nt' if nt_w else ''
        self.nt_x = ' nt' if nt_x else ''
        self.dbg = dbg
        self.order = order
        self.rare = []
        self.uid = 0

    def setup(self):
        P = Prog()
        n = self.name
        P(f"""
        s_cmp_ge_u32 s2, 256
        s_cbranch_scc1 {n}_done
        s_and_b32 s39, s2, 7
        s_lshr_b32 s40, s2, 3
        s_lshr_b32 s{S_BLK}, s39, 2
        s_and_b32 s39, s39, 3
        s_and_b32 s{S_B}, s40, 7
        s_lshr_b32 s40, s40, 3
        s_mov_b32 s{S_PR}, s40
        s_lshl_b32 s39, s39, 3
        s_lshl_b32 s40, s40, 1
        s_add_u32 s{S_H0}, s39, s40
        s_mul_i32 s39, s{S_BLK}, 40
        s_add_u32 s60, s0, s39
        s_addc_u32 s61, s1, 0
        s_load_dwordx2 s[4:5], s[60:61], 0
        s_load_dwordx2 s[62:63], s[60:61], 8
        s_load_dwordx2 s[64:65], s[60:61], 16
        s_load_dwordx2 s[66:67], s[60:61], 24
        s_load_dwordx2 s[68:69], s[0:1], 96
        v_lshrrev_b32 v2, 6, v0
        v_and_b32 v{V_LANE}, 63, v0
        v_readfirstlane_b32 s{S_W}, v2
        s_and_b32 s{S_QH}, s{S_W}, 1
        s_lshr_b32 s{S_HH}, s{S_W}, 1
        """)
        L = V_LANE
        P(f"""
        v_lshrrev_b32 v2, 4, v{L}
        v_and_b32 v3, 15, v{L}
        v_xor_b32 v4, v3, v2
        v_lshlrev_b32 v5, 2, v2
        v_xor_b32 v5, v3, v5
        v_lshlrev_b32 v4, 4, v4
        v_lshlrev_b32 v5, 4, v5
        v_lshlrev_b32 v2, 8, v2
        v_add_u32 v{V_RINGK}, v4, v2
        v_add_u32 v{V_RINGV}, v5, v2
        s_cmp_eq_u32 s{S_QH}, 0
        s_cselect_b32 s39, 64, 16
        s_cselect_b64 vcc, -1, 0
        v_cndmask_b32 v{V_RING}, v{V_RINGV}, v{V_RINGK}, vcc
        v_xor_b32 v{V_RING+1}, s39, v{V_RING}
        s_lshl_b32 s40, s39, 1
        v_xor_b32 v{V_RING+2}, s40, v{V_RING}
        s_add_u32 s40, s40, s39
        v_xor_b32 v{V_RING+3}, s40, v{V_RING}
        v_add_u32 v{V_RINGH}, 4096, v{V_RING}
        v_add_u32 v{V_RINGH+1}, 4096, v{V_RING+1}
        v_add_u32 v{V_RINGH+2}, 4096, v{V_RING+2}
        v_add_u32 v{V_RINGH+3}, 4096, v{V_RING+3}
        """)
        P(self.pf_setup())
        P(f"""
        v_and_b32 v3, 15, v{L}
        v_lshrrev_b32 v2, 4, v{L}
        v_xor_b32 v4, v2, v3
        v_lshlrev_b32 v4, 4, v4
        v_lshlrev_b32 v5, 8, v3
        s_lshl_b32 s39, s{S_HH}, 14
        v_add_u32 v5, s39, v5
        """)
        for jp in range(4):
            P(f"v_xor_b32 v6, {64*jp}, v4\nv_add_u32 v{V_KPAT+jp}, v5, v6")
        P(f"""
        v_lshrrev_b32 v3, 2, v{L}
        v_and_b32 v3, 3, v3
        v_and_b32 v4, 3, v{L}
        v_xor_b32 v4, v4, v2
        v_lshlrev_b32 v4, 4, v4
        v_lshlrev_b32 v5, 6, v3
        v_add_u32 v4, v4, v5
        v_lshlrev_b32 v5, 2, v2
        v_add_u32 v5, v5, v3
        v_lshlrev_b32 v5, 8, v5
        s_lshl_b32 s39, s{S_HH}, 14
        s_add_u32 s39, s39, 8192
        v_add_u32 v5, s39, v5
        """)
        for ml in range(4):
            P(f"""
            s_lshl_b32 s39, s{S_HH}, 1
            s_add_u32 s39, s39, {ml}
            s_and_b32 s39, s39, 3
            s_lshl_b32 s39, s39, 6
            v_xor_b32 v6, s39, v4
            v_add_u32 v{V_VPAT+ml}, v5, v6
            """)
        for r in range(4):
            P(f"v_mov_b32 v{V_ONES+r}, 0x3f803f80")
        P("s_waitcnt lgkmcnt(0)")
        P(f"""
        s_cmp_eq_u32 s{S_QH}, 0
        s_cselect_b32 s8, s62, s64
        s_cselect_b32 s9, s63, s65
        s_lshl_b32 s39, s{S_B}, 5
        s_add_u32 s39, s39, s{S_H0}
        s_lshr_b32 s40, s39, 14
        s_lshl_b32 s39, s39, {18 if not self.same_kv else 31}
        s_and_b32 s39, s39, {'-1' if not self.same_kv else '0'}
        s_add_u32 s8, s8, s39
        s_addc_u32 s9, s9, s40
        s_lshl_b32 s39, s{S_HH}, 13
        s_add_u32 s8, s8, s39
        s_addc_u32 s9, s9, 0
        s_and_b32 s9, s9, 0xffff
        s_sub_u32 s10, {2*262144}, s39
        s_mov_b32 s11, 0x20000
        s_mul_i32 s39, s{S_B}, {144*2048}
        s_add_u32 s12, s4, s39
        s_addc_u32 s13, s5, 0
        s_and_b32 s13, s13, 0xffff
        s_mov_b32 s14, {144*2048}
        s_mov_b32 s15, 0x20000
        s_lshl_b32 s39, s{S_H0}, 8
        s_add_u32 s16, s66, s39
        s_addc_u32 s17, s67, 0
        s_and_b32 s17, s17, 0xffff
        s_sub_u32 s18, {1024*8192}, s39
        s_mov_b32 s19, 0x20000
        s_lshl_b32 s39, s{S_BLK}, 3
        s_add_u32 s39, s39, s{S_B}
        s_lshl_b32 s39, s39, 5
        s_add_u32 s39, s39, s{S_H0}
        s_mul_i32 s39, s39, 36864
        s_add_u32 s20, s68, s39
        s_addc_u32 s21, s69, 0
        s_add_u32 s20, s20, {O_WS_OFF}
        s_addc_u32 s21, s21, 0
        s_and_b32 s21, s21, 0xffff
        s_mov_b32 s22, {2*36864}
        s_mov_b32 s23, 0x20000
        s_lshl_b32 s{S_DBASE}, s{S_W}, 13
        s_mov_b32 s{S_DSLOT}, s{S_DBASE}
        s_add_u32 s{S_DWRAP}, s{S_DBASE}, {3*SLOT}
        s_mov_b32 s{S_GOFF}, 0
        s_mov_b32 s{S_RSLOT}, 0
        s_mov_b32 s{S_ITEM}, 0
        s_mov_b32 s{S_QI}, 0
        s_mov_b32 s{S_FMAX}, 1
        s_lshl_b32 s39, s{S_B}, 5
        s_add_u32 s39, s39, s{S_H0}
        s_lshl_b32 s{S_KVO}, s39, 18
        s_mov_b32 s{S_KVO+1}, 0
        s_mov_b32 s78, 262144
        s_mov_b32 s79, 0x20000
        s_mov_b32 s76, s62
        s_and_b32 s77, s63, 0xffff
        """)
        if self.order == 'early': P(f"s_mov_b32 s{S_LATE}, 0")
        elif self.order == 'late': P(f"s_mov_b32 s{S_LATE}, 1")
        else: P(f"s_lshr_b32 s{S_LATE}, s2, {self.late_bit}\ns_and_b32 s{S_LATE}, s{S_LATE}, 1")
        P(f"""s_xor_b32 s{S_FMAX}, s{S_LATE}, 1
        s_mov_b32 s{S_BAD}, 0
        s_mov_b32 s{S_SAFE}, 0
        s_mov_b32 s{S_NREC2}, s10
        s_sub_u32 s39, s10, 262144
        s_cmp_eq_u32 s{S_LATE}, 0
        s_cselect_b32 s10, s39, s10""")
        P.extend(self.qp_patterns())
        return P

    def ring_instrs(self):
        nt = self.nt_kv
        D = []
        for m in range(8):
            g = []
            if m == 0: g.append(f"s_mov_b32 m0, s{S_DSLOT}")
            if m == 4: g.append(f"s_add_u32 m0, s{S_DSLOT}, 4096")
            v = V_RING + m if m < 4 else V_RINGH + m - 4
            g.append(f"buffer_load_dwordx4 v{v}, s[8:11], s{S_GOFF} offen offset:{(m & 3) * 1024}{nt} lds")
            D.append(g)
        adv = [f"s_add_u32 s{S_GOFF}, s{S_GOFF}, 16384",
               f"s_add_u32 s{S_DSLOT}, s{S_DSLOT}, {SLOT}",
               f"s_cmp_eq_u32 s{S_DSLOT}, s{S_DWRAP}",
               f"s_cselect_b32 s{S_DSLOT}, s{S_DBASE}, s{S_DSLOT}"]
        return D, adv
    def ring_groups(self):
        D, adv = self.ring_instrs()
        return D + [adv]

    def ring_fill(self):
        P = Prog()
        for _ in range(3):
            for g in self.ring_groups():
                for x in g: P(x)
        return P

    def pf_setup(self):
        L = V_LANE
        return f"""
        v_lshrrev_b32 v2, 1, v{L}
        v_lshlrev_b32 v2, 13, v2
        v_and_b32 v3, 1, v{L}
        v_lshlrev_b32 v3, 7, v3
        v_add_u32 v{V_PFW}, v2, v3
        v_lshrrev_b32 v2, 4, v{L}
        v_lshlrev_b32 v2, 11, v2
        v_and_b32 v3, 15, v{L}
        v_lshlrev_b32 v3, 7, v3
        v_add_u32 v{V_PFX}, v2, v3
        """
    def pf_w(self, i_expr_sgpr, head_sgpr):
        return [f"s_lshl_b32 s{S_TMP}, s{S_B}, 20",
                f"s_lshl_b32 s{S_TMP2}, {i_expr_sgpr}, 18",
                f"s_add_u32 s{S_TMP}, s{S_TMP}, s{S_TMP2}",
                f"s_lshl_b32 s{S_TMP2}, {head_sgpr}, 8",
                f"s_add_u32 s{S_TMP}, s{S_TMP}, s{S_TMP2}",
                f"buffer_load_dword v{V_PFD}, v{V_PFW}, s[16:19], s{S_TMP} offen{self.nt_w}"]
    def pf_x(self, i_expr):
        return [f"s_mul_i32 s{S_TMP}, s{S_PR}, {36*2048}",
                f"s_lshl_b32 s{S_TMP2}, {i_expr}, 13",
                f"s_add_u32 s{S_TMP}, s{S_TMP}, s{S_TMP2}",
                f"buffer_load_dword v{V_PFD}, v{V_PFX}, s[12:15], s{S_TMP} offen{self.nt_x}"]

    def qp_patterns(self):
        L = V_LANE
        P = Prog()
        P(f"""
        v_lshrrev_b32 v2, 3, v{L}
        v_and_b32 v3, 7, v{L}
        v_lshrrev_b32 v4, 4, v{L}
        v_xor_b32 v3, v3, v4
        v_lshlrev_b32 v3, 4, v3
        v_lshlrev_b32 v2, 11, v2
        v_add_u32 v2, v2, v3
        """)
        for x in range(5):
            P(f"""
            s_mul_i32 s39, s{S_W}, 5
            s_add_u32 s39, s39, {x}
            s_cmp_gt_u32 s39, 17
            s_cselect_b32 s40, 2, 0
            s_sub_u32 s39, s39, s40
            s_lshl_b32 s{S_XC+x}, s39, 10
            s_and_b32 s40, s39, 1
            s_lshl_b32 s40, s40, 6
            v_xor_b32 v3, s40, v2
            s_lshl_b32 s39, s39, 14
            v_add_u32 v{V_XD+x}, s39, v3
            """)
        P(f"""
        v_lshrrev_b32 v2, 4, v{L}
        v_and_b32 v3, 15, v{L}
        v_lshlrev_b32 v4, 2, v2
        v_xor_b32 v3, v3, v4
        v_xor_b32 v3, s{S_W}, v3
        v_lshlrev_b32 v3, 4, v3
        v_lshlrev_b32 v4, 13, v2
        v_add_u32 v3, v3, v4
        s_lshl_b32 s39, s{S_W}, 16
        v_add_u32 v{V_WD}, s39, v3
        v_add_u32 v{V_WD+1}, 32768, v{V_WD}
        v_and_b32 v3, 15, v{L}
        v_lshrrev_b32 v4, 1, v3
        v_xor_b32 v4, v4, v2
        v_lshlrev_b32 v4, 4, v4
        v_lshlrev_b32 v5, 7, v3
        v_xor_b32 v6, 64, v4
        v_add_u32 v4, v4, v5
        v_add_u32 v6, v6, v5
        s_lshl_b32 s39, s{S_QH}, 13
        s_add_u32 s39, s39, {QXBASE}
        v_add_u32 v{V_XPAT}, s39, v4
        v_add_u32 v{V_XPAT+1}, s39, v6
        v_add_u32 v{V_XPAT+2}, {8*2048 + QXBASE}, v4
        v_add_u32 v{V_XPAT+3}, {8*2048 + QXBASE}, v6
        v_lshrrev_b32 v3, 2, v{L}
        v_and_b32 v3, 3, v3
        v_and_b32 v4, 3, v{L}
        v_xor_b32 v4, v4, v2
        v_lshlrev_b32 v4, 4, v4
        v_lshlrev_b32 v5, 6, v3
        v_add_u32 v4, v4, v5
        v_lshlrev_b32 v5, 3, v2
        v_add_u32 v5, v5, v3
        v_lshlrev_b32 v5, 8, v5
        """)
        for p in range(2):
            P(f"""
            s_xor_b32 s39, s{S_QH}, {p}
            s_lshl_b32 s40, s{S_HH}, 1
            s_add_u32 s39, s39, s40
            s_lshl_b32 s39, s39, 6
            v_xor_b32 v6, s39, v4
            v_add_u32 v{V_WPAT+p}, v5, v6
            """)
        for k, r in enumerate(QP_PAT): P(f"v_accvgpr_write_b32 a{240+k}, v{r}")
        P(f"s_lshl_b32 s{S_WW_L}, s{S_W}, 11")
        return P

    def qp(self, tag):
        n = self.name
        L = V_LANE
        NX, NW = 4, 8
        P = Prog()
        for k, r in enumerate(QP_PAT): P(f"v_accvgpr_read_b32 v{r}, a{240+k}")
        P(f"""
        s_lshl_b32 s{S_WOFF}, s{S_QI}, 8
        s_add_u32 s{S_WLIM}, s{S_WOFF}, {32 << 18}
        s_mov_b32 s{S_XOFF}, 0
        """)
        def x_groups(buf):
            G = [[f"s_cmp_lt_u32 s{S_XOFF}, 2048", f"s_cselect_b32 s{S_TMP2}, s{S_XOFF}, {144*2048}"]]
            for x in range(5):
                G.append([f"s_add_u32 m0, s{S_XC+x}, {QXBASE + buf*18432}",
                          f"buffer_load_dwordx4 v{V_XD+x}, s[12:15], s{S_TMP2} offen{self.nt_x} lds"])
            G.append([f"s_add_u32 s{S_XOFF}, s{S_XOFF}, 128"])
            return G
        def w_groups(buf):
            G = []
            for x in range(2):
                G.append([f"s_add_u32 m0, s{S_WW_L}, {buf*8192 + x*1024}",
                          f"buffer_load_dwordx4 v{V_WD + x}, s[16:19], s{S_WOFF} offen{self.nt_w} lds"])
            G.append([f"s_add_u32 s{S_WOFF}, s{S_WOFF}, {1 << 18}", f"s_min_u32 s{S_WOFF}, s{S_WOFF}, s{S_WLIM}"])
            return G
        def read_groups(k, i):
            G = []
            wb = (i % 8) * 8192
            xb = ((i >> 1) % 4) * 18432
            ss = i & 1
            for jl in range(4):
                a = QF_W[k] + 4 * jl
                p, h = jl >> 1, jl & 1
                G.append([f"ds_read_b64_tr_b16 v[{a}:{a+1}], v{V_WPAT+p} offset:{wb + 8*h}"])
                G.append([f"ds_read_b64_tr_b16 v[{a+2}:{a+3}], v{V_WPAT+p} offset:{wb + 8*h + 1024}"])
            for t in range(4):
                G.append([f"ds_read_b128 {rng('v', QF_X[k]+4*t)}, v{V_XPAT+ss} offset:{xb + t*2048}"])
            G.append([f"ds_read_b128 {rng('v', QF_X[k]+16)}, v{V_XPAT+2+ss} offset:{xb}"])
            return G
        def mf(k):
            M = []
            for t in range(4):
                for jl in range(4):
                    a = qacc(4 * t + jl)
                    M.append(f"v_mfma_f32_16x16x32_bf16 {rng('v', a)}, {rng('v', QF_W[k]+4*jl)}, {rng('v', QF_X[k]+4*t)}, {rng('v', a)}")
            for x in range(2):
                a = qacc(16 + x)
                M.append(f"v_mfma_f32_16x16x32_bf16 {rng('v', a)}, {rng('v', QF_W[k]+4*x)}, {rng('v', QF_X[k]+16)}, {rng('v', a)}")
            return M
        pro = []
        xi = wi = 0
        while xi < NX or wi < NW:
            if xi < NX and 2 * xi <= wi: pro.append(('X', xi)); xi += 1
            elif wi < NW: pro.append(('W', wi)); wi += 1
            else: pro.append(('X', xi)); xi += 1
        cnt = {'X': 5, 'W': 2}
        seq = list(pro)
        def outstanding_after(need):
            last = max(i for i, it in enumerate(seq) if it in need)
            return sum(cnt[k] for k, _ in seq[last + 1:])
        w0 = outstanding_after({('X', 0), ('W', 0)})
        waits = {}
        for i in range(0, 24):
            waits[i] = outstanding_after({('W', i + 1), ('X', (i + 1) >> 1)})
            seq.append(('W', i + NW))
            if i & 1: seq.append(('X', (i >> 1) + NX))
        wr = [min(waits[i] for i in range(r, 24, 8)) for r in range(8)]
        assert max(wr + [w0]) <= 63
        P("s_waitcnt vmcnt(0)\ns_barrier")
        for kind, idx in pro:
            for g in (x_groups(idx) if kind == 'X' else w_groups(idx)):
                for x in g: P(x)
        for k in range(18):
            for r in range(4): P(f"v_mov_b32 v{qacc(k) + r}, 0")
        P(f"s_waitcnt vmcnt({w0})\ns_barrier")
        for g in read_groups(0, 0):
            for x in g: P(x)
        P(f"s_waitcnt lgkmcnt(0)\ns_mov_b32 s{S_CNT}, 4")
        pre, _ = finalize_linear(P.items)
        out = Prog(); out.extend(pre)
        body = Prog()
        for r in range(8):
            ss = r & 1
            if not self.q_nowait: body(f"s_waitcnt vmcnt({wr[r]}) lgkmcnt(0)")
            if not self.q_nobar: body("s_barrier")
            R = read_groups(1 - ss, r + 1)
            D = w_groups(r) + (x_groups(r >> 1) if ss == 1 else [])
            if self.q_nodma: D = []
            if self.q_nord: R = R[:1]
            M = mf(ss)
            fill = [[] for _ in M]
            for i, g in enumerate(R): fill[i] += g
            free = list(range(len(R), len(M))) + list(range(0, len(R), 2))
            gi = 0
            dm = [g for g in D if any('buffer_load' in y for y in g)]
            oth = [g for g in D if not any('buffer_load' in y for y in g)]
            seqD = D
            npos = len(M)
            for i, g in enumerate(seqD):
                pos = min(npos - 1, 2 + (i * (npos - 2)) // max(len(seqD), 1))
                if 'm0' in g[0] and pos > 0 and not any('buffer_load' in y for y in fill[pos - 1]):
                    fill[pos - 1].append(g[0]); fill[pos] += g[1:]
                else:
                    fill[pos] += g
            for x in interleave(M, fill): body(x)
        body(f"s_sub_u32 s{S_CNT}, s{S_CNT}, 1\ns_cmp_lg_u32 s{S_CNT}, 0")
        b, _ = finalize_loop(body.items)
        out.label(f"{n}_qp{tag}")
        out.extend(b)
        out(f"s_cbranch_scc1 {n}_qp{tag}")
        E = Prog()
        E("s_waitcnt vmcnt(0) lgkmcnt(0)\ns_barrier")
        C = Prog()
        C(f"""
        v_mov_b32 v8, {f2u(CSCALE):#x}
        v_mov_b32 v9, {f2u(CSCALE):#x}
        v_lshlrev_b32 v2, 4, v{L}
        v_add_u32 v2, {QX}, v2
        s_lshl_b32 s40, s{S_QH}, 14
        s_lshl_b32 s{S_TMP2}, s{S_HH}, 11
        s_add_u32 s40, s40, s{S_TMP2}
        s_lshl_b32 s{S_TMP2}, s{S_QH}, 10
        s_add_u32 s{S_XOFF}, s40, s{S_TMP2}
        s_xor_b32 s{S_TMP2}, s{S_TMP2}, 1024
        s_add_u32 s{S_WOFF}, s40, s{S_TMP2}
        v_add_u32 v3, s{S_XOFF}, v2
        v_add_u32 v4, s{S_WOFF}, v2
        s_lshl_b32 s40, s{S_HH}, 11
        s_lshl_b32 s{S_TMP2}, s{S_QH}, 10
        s_add_u32 s40, s40, s{S_TMP2}
        v_add_u32 v5, s40, v2
        """)
        def conv(k0, dst):
            for q in range(2):
                a = qacc(k0 + q)
                C(f"v_pk_mul_f32 v[{a}:{a+1}], v[{a}:{a+1}], v[8:9]")
                C(f"v_pk_mul_f32 v[{a+2}:{a+3}], v[{a+2}:{a+3}], v[8:9]")
            for q in range(2):
                a = qacc(k0 + q)
                C(f"v_cvt_pk_bf16_f32 v{dst+2*q}, v{a}, v{a+1}")
                C(f"v_cvt_pk_bf16_f32 v{dst+2*q+1}, v{a+2}, v{a+3}")
        k = 0
        for t in range(4):
            for p in range(2):
                d = 120 + 4 * (k % 16); k += 1
                conv(4 * t + 2 * p, d)
                C(f"ds_write_b128 v{3+p}, {rng('v', d)} offset:{t*4096}")
        d = 120 + 4 * k
        conv(16, d)
        C(f"ds_write_b128 v5, {rng('v', d)} offset:{8*4096}")
        RF = []
        for _ in range(3): RF += self.ring_groups()
        CI = Prog()
        ci = C.items
        step = max(1, len(ci) // len(RF))
        k = 0
        for i, it in enumerate(ci):
            if i % step == 0 and k < len(RF):
                for x in RF[k]: CI(x)
                k += 1
            CI.items.append(it)
        while k < len(RF):
            for x in RF[k]: CI(x)
            k += 1
        E(f"s_cmp_eq_u32 s{S_FMAX}, 0\ns_cbranch_scc1 {n}_qf{tag}")
        e1, _ = finalize_linear(E.items)
        out.extend(e1)
        c1, _ = finalize_linear(CI.items); out.extend(c1)
        out(f"s_branch {n}_qg{tag}")
        out.label(f"{n}_qf{tag}")
        c2, _ = finalize_linear(C.items); out.extend(c2)
        out.label(f"{n}_qg{tag}")
        out(f"s_mov_b32 s{S_FMAX}, 0\ns_waitcnt lgkmcnt(0)\ns_barrier")
        return out

    def lq(self):
        L = V_LANE
        P = Prog()
        P(f"""
        v_lshlrev_b32 v2, 4, v{L}
        v_add_u32 v2, {QX}, v2
        s_lshl_b32 s39, s{S_QH}, 14
        v_add_u32 v3, s39, v2
        """)
        for t in range(4):
            for jp in range(4):
                P(f"ds_read_b128 {rng('a', q_frag(t, jp))}, v3 offset:{t*4096 + jp*1024}")
        for jp in range(4):
            P(f"ds_read_b128 {rng('a', q_frag(4, jp))}, v2 offset:{8*4096 + jp*1024}")
        P("s_waitcnt lgkmcnt(0)")
        it, _ = finalize_linear(P.items)
        o = Prog(); o.extend(it)
        return o

    def s_mfmas(self, unit, sb):
        slot, fs = unit
        M = []
        for kt in range(2):
            for jp in range(4):
                d = V_S + sb * 8 + kt * 4
                c = rng('v', V_NEGM + slot * 4) if jp == 0 else rng('v', d)
                M.append(f"v_mfma_f32_16x16x32_bf16 {rng('v', d)}, {rng('v', V_KF[fs] + (kt*4+jp)*4)}, {rng('a', q_frag(slot, jp))}, {c}")
        return M
    def pv_mfmas(self, unit, pb):
        slot, fs = unit
        M = []
        p = rng('v', V_P + pb * 4)
        for jl in range(8):
            M.append(f"v_mfma_f32_16x16x32_bf16 {rng('a', acc_o(slot, jl))}, {rng('v', V_VF[fs] + jl*4)}, {p}, {rng('a', acc_o(slot, jl))}")
        M.append(f"v_mfma_f32_16x16x32_bf16 {rng('v', V_L + slot*4)}, {rng('v', V_ONES)}, {p}, {rng('v', V_L + slot*4)}")
        return M
    def max_ops(self, unit, sb):
        slot, fs = unit
        s = V_S + sb * 8
        return [[f"v_max3_f32 v{V_MX}, v{s}, v{s+1}, v{s+2}"],
                [f"v_max3_f32 v{V_MX}, v{V_MX}, v{s+3}, v{s+4}"],
                [f"v_max3_f32 v{V_MX}, v{V_MX}, v{s+5}, v{s+6}"],
                [f"v_max_f32 v{V_MX}, v{V_MX}, v{s+7}"],
                [f"v_cmp_lt_f32 vcc, s{S_T+slot}, v{V_MX}"]]
    def check_ops(self, unit, sb):
        slot, fs = unit
        s = V_S + sb * 8
        self.uid += 1
        u = self.uid
        lab_r, lab_b = f"{self.name}_rare{u}", f"{self.name}_back{u}"
        R = Prog()
        R.label(lab_r)
        R(f"""
        s_nop 7
        v_mov_b32 v{V_T1}, v{V_MX}
        s_nop 1
        v_permlane16_swap_b32 v{V_MX}, v{V_T1}
        s_nop 1
        v_max_f32 v{V_MX}, v{V_MX}, v{V_T1}
        v_mov_b32 v{V_T1}, v{V_MX}
        s_nop 1
        v_permlane32_swap_b32 v{V_MX}, v{V_T1}
        s_nop 1
        v_max_f32 v{V_MX}, v{V_MX}, v{V_T1}
        s_ashr_i32 s{S_FL}, s{S_T+slot}, 31
        s_and_b32 s{S_FL}, s{S_FL}, 0xff800000
        s_mov_b32 s{S_T+slot}, 0x41000000
        v_max_f32 v{V_MX}, s{S_FL}, v{V_MX}
        """)
        for r in range(8): R(f"v_sub_f32 v{s+r}, v{s+r}, v{V_MX}")
        for r in range(4): R(f"v_sub_f32 v{V_NEGM+slot*4+r}, v{V_NEGM+slot*4+r}, v{V_MX}")
        R(f"s_cmp_lg_u32 s{S_FL}, 0\ns_cbranch_scc1 {lab_b}")
        R(f"v_sub_f32 v{V_T1}, 0, v{V_MX}")
        R(f"v_exp_f32 v{V_T1}, v{V_T1}")
        R("s_nop 1")
        for r in range(4): R(f"v_mul_f32 v{V_L+slot*4+r}, v{V_L+slot*4+r}, v{V_T1}")
        for r in range(0, 32, 2):
            a = A_O + slot * 32 + r
            R(f"v_accvgpr_read_b32 v{V_T2}, a{a}\nv_accvgpr_read_b32 v{V_T3}, a{a+1}\nv_mul_f32 v{V_T2}, v{V_T2}, v{V_T1}\nv_mul_f32 v{V_T3}, v{V_T3}, v{V_T1}\nv_accvgpr_write_b32 a{a}, v{V_T2}\nv_accvgpr_write_b32 a{a+1}, v{V_T3}")
        R("s_nop 2")
        R(f"s_branch {lab_b}")
        self.rare.append(R)
        return [f"s_cbranch_vccnz {lab_r}", f"{lab_b}:"]
    def exp_ops(self, unit, sb, pb):
        s = V_S + sb * 8
        p = V_P + pb * 4
        return [[f"v_exp_f32 v{s}, v{s}"], [f"v_exp_f32 v{s+1}, v{s+1}"], [f"v_exp_f32 v{s+2}, v{s+2}"],
                [f"v_cvt_pk_bf16_f32 v{p}, v{s}, v{s+1}"],
                [f"v_exp_f32 v{s+3}, v{s+3}"], [f"v_exp_f32 v{s+4}, v{s+4}"],
                [f"v_cvt_pk_bf16_f32 v{p+1}, v{s+2}, v{s+3}"],
                [f"v_exp_f32 v{s+5}, v{s+5}"], [f"v_exp_f32 v{s+6}, v{s+6}"],
                [f"v_cvt_pk_bf16_f32 v{p+2}, v{s+4}, v{s+5}"],
                [f"v_exp_f32 v{s+7}, v{s+7}"],
                [f"v_cvt_pk_bf16_f32 v{p+3}, v{s+6}, v{s+7}"]]
    def kv_reads(self, fs, which):
        G = []
        if which == 'K':
            for kt in range(2):
                for jp in range(4):
                    G.append([f"ds_read_b128 {rng('v', V_KF[fs] + (kt*4+jp)*4)}, v{V_KA+jp} offset:{kt*4096}"])
        else:
            for jl in range(8):
                a = V_VF[fs] + jl * 4
                ml, h = jl >> 1, jl & 1
                va = V_VA if fs == 'A' else V_VA2
                G.append([f"ds_read_b64_tr_b16 v[{a}:{a+1}], v{va+ml} offset:{8*h}"])
                G.append([f"ds_read_b64_tr_b16 v[{a+2}:{a+3}], v{va+ml} offset:{8*h+4096}"])
        return G
    def kv_addr(self, fs):
        va = V_VA if fs == 'A' else V_VA2
        G = [[f"v_add_u32 v{V_KA+j}, s{S_RSLOT}, v{V_KPAT+j}"] for j in range(4)]
        G += [[f"v_add_u32 v{va+j}, s{S_RSLOT}, v{V_VPAT+j}"] for j in range(4)]
        G.append([f"s_add_u32 s{S_RSLOT}, s{S_RSLOT}, {SLOT}", f"s_cmp_eq_u32 s{S_RSLOT}, {3*SLOT}", f"s_cselect_b32 s{S_RSLOT}, 0, s{S_RSLOT}"])
        return G

    def units(self, qh):
        if qh == 0: return [(0,'A'),(1,'A'),(2,'A'),(3,'A'),(4,'A'),(0,'B'),(1,'B'),(2,'B'),(3,'B')]
        return [(0,'A'),(1,'A'),(2,'A'),(3,'A'),(0,'B'),(1,'B'),(2,'B'),(3,'B'),(4,'B')]

    def attn_body(self, qh, last):
        U = self.units(qh)
        B = Prog()
        RG = self.ring_groups()
        for g in range(9):
            if g in (0, 4):
                B("s_waitcnt vmcnt(8) lgkmcnt(0)")
                if not self.x_nobar: B("s_barrier")
            M = []
            if not (last and g + 3 >= 9):
                M += self.s_mfmas(U[(g + 3) % 9], g % 3)
            M += self.pv_mfmas(U[g], g % 3)
            V = []
            head = []
            if not (last and g + 1 >= 9):
                head = self.check_ops(U[(g + 1) % 9], (g + 1) % 3)
                ex = self.exp_ops(U[(g + 1) % 9], (g + 1) % 3, (g + 1) % 3)
            else: ex = []
            mx = self.max_ops(U[(g + 2) % 9], (g + 2) % 3) if not (last and g + 2 >= 9) else []
            V = []
            ei = mi = 0
            pat = "eeemcemecemecemcm" if False else "eemeemeemeemm"
            order = []
            for i in range(17):
                if i in (1, 3, 5, 7, 9) and mi < len(mx): order.append(mx[mi]); mi += 1
                elif ei < len(ex): order.append(ex[ei]); ei += 1
                elif mi < len(mx): order.append(mx[mi]); mi += 1
            V = order
            PF = []
            if False and last and self.pf_att and g in (0, 4):
                self.uid += 1
                lab = f"{self.name}_npf{self.uid}"
                pf = [f"s_or_b32 s39, s{S_LATE}, s{S_ITEM}", f"s_cmp_lg_u32 s39, 0", f"s_cbranch_scc1 {lab}"]
                if g == 0:
                    pf += self.pf_w(f"s{S_W}", "1") + self.pf_x(f"s{S_W}")
                else:
                    pf += [f"s_add_u32 s39, s{S_W}, 4"] + self.pf_x("s39") + [f"s_add_u32 s39, s{S_W}, 8", "s_min_u32 s39, s39, 8"] + self.pf_x("s39")
                pf.append(f"{lab}:")
                PF = [pf]
            KA, VA_ = (self.kv_reads('A', 'K'), self.kv_reads('A', 'V')) if not last else ([], [])
            KB, VB_ = self.kv_reads('B', 'K'), self.kv_reads('B', 'V')
            ADA = self.kv_addr('A') if not last else []
            ADB = self.kv_addr('B') if not last else []
            D, adv = self.ring_instrs()
            H = []
            Lt = []
            if g == 0: H = KB + PF + D[0:1]
            if g == 1: H = VB_[:6] + D[1:4];
            if g == 2: H = VB_[6:11] + D[4:6]; Lt = ADA[:4]
            if g == 3: H = D[6:8] + VB_[11:]; Lt = ADA[4:] + [adv]
            if g == 4: H = KA + PF + D[0:1]
            if g == 5: H = VA_[:5] + D[1:4]
            if g == 6: H = VA_[5:10] + D[4:6]; Lt = ADB[:4]
            if g == 7: H = D[6:8] + VA_[10:]; Lt = ADB[4:8]
            if g == 8: Lt = ADB[8:] + [adv]
            if self.x_nodma: H = [x for x in H if not any('lds' in y and 'buffer_load' in y for y in x)]
            if self.x_nord: H = [x for x in H if not any('ds_read' in y for y in x)]
            if self.x_nosm: V = []; head = []
            if self.x_nobr: head = []
            if self.x_noX: H = []; Lt = []
            if self.x_nomax: V = [[] if (x[0].startswith('v_max') or x[0].startswith('v_cmp')) else x for x in V]; head = []
            n = len(M)
            fill = [list(V[i]) if i < len(V) else [] for i in range(n)]
            light = [i for i in range(n) if not (fill[i] and fill[i][0].startswith('v_exp'))]
            pos = light[:]
            if len(H) > len(pos):
                extra_pos = [i for i in range(n) if i not in pos][:len(H) - len(pos)]
                pos = sorted(pos + extra_pos)
            if H:
                k = len(pos)
                chosen = [pos[(j * k) // len(H)] for j in range(len(H))]
                for j, h in enumerate(H):
                    h = list(h)
                    if ' m0,' in h[0] and chosen[j] > 0 and not any('lds' in y and 'buffer_load' in y for y in fill[chosen[j] - 1]):
                        fill[chosen[j] - 1].append(h[0]); h = h[1:]
                    fill[chosen[j]] += h
            if Lt:
                has_heavy = lambda i: any(('ds_read' in y or 'buffer_load' in y) for y in fill[i])
                last_dma = max([i for i in range(n) if any('buffer_load' in y for y in fill[i])] + [-1])
                free = [i for i in light if not has_heavy(i)] + [i for i in range(n) if i not in light]
                used = set()
                for l_ in Lt:
                    need_after = last_dma if any(f"s{S_GOFF}," in y for y in l_) else -1
                    cand = [i for i in free if i not in used and i > need_after] or [n - 1]
                    if any(f"s{S_RSLOT}, s{S_RSLOT}" in y for y in l_):
                        la = max([i for i in range(n) if any(f"s{S_RSLOT}, v" in y for y in fill[i])] + [-1])
                        cand = [i for i in range(n) if i >= la]
                        cand = [max(cand[0], 0)]
                    i = cand[0]; used.add(i)
                    fill[i] += l_
            extra = V[n:]
            for x in head: B(x)
            for x in interleave(M, fill + extra): B(x)
        return B

    def attention(self, qh, tag):
        n = self.name
        U = self.units(qh)
        P = Prog()
        for r in range(160): P(f"v_accvgpr_write_b32 a{A_O + r}, 0")
        for r in range(20): P(f"v_mov_b32 v{V_L + r}, 0\nv_mov_b32 v{V_NEGM + r}, 0")
        for s in range(5): P(f"s_mov_b32 s{S_T+s}, 0xff800000")
        P("s_waitcnt vmcnt(16)\ns_barrier")
        for g in self.kv_addr('A') + self.kv_reads('A', 'K') + self.kv_reads('A', 'V') + self.kv_addr('B'):
            for x in g: P(x)
        for x in self.s_mfmas(U[0], 0) + self.s_mfmas(U[1], 1) + self.s_mfmas(U[2], 2): P(x)
        if not self.x_nomax:
            for g in self.max_ops(U[0], 0):
                for x in g: P(x)
            P("s_nop 3")
            for x in self.check_ops(U[0], 0): P(x)
        for g in self.exp_ops(U[0], 0, 0) + (self.max_ops(U[1], 1) if not self.x_nomax else []):
            for x in g: P(x)
        P(f"s_waitcnt lgkmcnt(0)\ns_mov_b32 s{S_CNT}, 7")
        pre, _ = finalize_linear(P.items)
        out = Prog(); out.extend(pre)
        body, _ = finalize_loop(self.attn_body(qh, False).items)
        if self.stamps:
            self.stamp(out, 5)
        out.label(f"{n}_at{tag}")
        out.extend(body)
        out(f"s_sub_u32 s{S_CNT}, s{S_CNT}, 1\ns_cmp_lg_u32 s{S_CNT}, 0\ns_cbranch_scc1 {n}_at{tag}")
        if self.stamps:
            self.stamp(out, 6)
        lastb = self.attn_body(qh, True)
        l1, f = auto_lgkm(body, None)
        l2, _ = auto_lgkm(lastb.items, f)
        l3 = fix_hazards(l2, wrap=body)
        out.extend(l3)
        return out

    def combine(self, qh):
        L = V_LANE
        E = Prog()
        MLO = 32768
        E("s_nop 7\ns_waitcnt lgkmcnt(0)\ns_barrier")
        E(f"""s_mov_b64 s[72:73], 0
        s_mov_b32 s{S_XRB}, 0x21800000
        v_mov_b32 v{V_T3}, 0x5d800000
        v_mov_b32 v{V_P}, 0
        v_mov_b32 v{V_P+1}, 0
        v_mov_b32 v{V_P+2}, 0
        v_mov_b32 v{V_P+3}, 0""")
        E(f"""
        v_lshlrev_b32 v2, 2, v{L}
        v_add_u32 v2, {STG + MLO}, v2
        s_mul_i32 s39, s{S_W}, 2560
        v_add_u32 v3, s39, v2
        v_lshlrev_b32 v8, 4, v{L}
        v_add_u32 v8, {STG}, v8
        s_lshl_b32 s39, s{S_W}, 13
        s_lshl_b32 s40, s{S_HH}, 12
        s_add_u32 s{S_TMP2}, s39, s40
        v_add_u32 v5, s{S_TMP2}, v8
        s_xor_b32 s{S_TMP2}, s{S_TMP2}, 4096
        v_add_u32 v6, s{S_TMP2}, v8
        """)
        for s_ in range(5):
            E(f"ds_write_b32 v3, v{V_NEGM + s_*4} offset:{s_*512}")
            E(f"ds_write_b32 v3, v{V_L + s_*4} offset:{s_*512 + 256}")
        for jl in range(8):
            E(f"ds_write_b128 v{5 + (jl >> 2)}, {rng('a', acc_o(4, jl))} offset:{(jl & 3)*1024}")
        E("s_waitcnt lgkmcnt(0)\ns_barrier")
        E(f"""
        s_xor_b32 s39, s{S_W}, 2
        s_mul_i32 s39, s39, 2560
        v_add_u32 v4, s39, v2
        s_lshl_b32 s39, s{S_W}, 11
        v_add_u32 v5, s39, v8
        """)
        for s_ in range(4):
            E(f"ds_read_b32 v{120 + 2*s_}, v4 offset:{s_*512}")
            E(f"ds_read_b32 v{121 + 2*s_}, v4 offset:{s_*512 + 256}")
        for ww in range(4):
            E(f"ds_read_b32 v{128 + 2*ww}, v2 offset:{ww*2560 + 4*512}")
            E(f"ds_read_b32 v{129 + 2*ww}, v2 offset:{ww*2560 + 4*512 + 256}")
        for ww in range(4):
            for x in range(2):
                E(f"ds_read_b128 {rng('v', 160 + (ww*2+x)*4)}, v5 offset:{ww*8192 + x*1024}")
        for s_ in range(4):
            nm, l_ = V_NEGM + 4 * s_, V_L + 4 * s_
            no, lo = 120 + 2 * s_, 121 + 2 * s_
            E(f"""
            v_min_f32 v2, v{nm}, v{no}
            v_sub_f32 v6, v2, v{nm}
            v_sub_f32 v7, v2, v{no}
            v_exp_f32 v6, v6
            v_exp_f32 v7, v7
            s_nop 0
            v_mul_f32 v9, v6, v{l_}
            v_fma_f32 v9, v7, v{lo}, v9
            v_cmp_nge_f32 s[60:61], v9, s{S_XRB}
            v_cmp_nle_f32 vcc, v9, v{V_T3}
            v_rcp_f32 v9, v9
            s_or_b64 s[72:73], s[72:73], s[60:61]
            s_or_b64 s[72:73], s[72:73], vcc
            s_nop 0
            v_mul_f32 v{140+2*s_}, v6, v9
            v_mul_f32 v{141+2*s_}, v7, v9
            """)
        E(f"""
        v_min_f32 v2, v128, v130
        v_min_f32 v6, v132, v134
        v_min_f32 v2, v2, v6
        """)
        for ww in range(4):
            E(f"v_sub_f32 v{148+ww}, v2, v{128+2*ww}\nv_exp_f32 v{148+ww}, v{148+ww}")
        E(f"""
        s_nop 0
        v_mul_f32 v9, v148, v129
        v_fma_f32 v9, v149, v131, v9
        v_fma_f32 v9, v150, v133, v9
        v_fma_f32 v9, v151, v135, v9
        v_cmp_nge_f32 s[60:61], v9, s{S_XRB}
        v_cmp_nle_f32 vcc, v9, v{V_T3}
        v_rcp_f32 v9, v9
        s_or_b64 s[72:73], s[72:73], s[60:61]
        s_or_b64 s[72:73], s[72:73], vcc
        s_nop 0
        """)
        for ww in range(4): E(f"v_mul_f32 v{148+ww}, v{148+ww}, v9")
        for r in range(8):
            E(f"v_mul_f32 v{192+r}, v{160+r}, v148")
            for ww in range(1, 4):
                E(f"v_fma_f32 v{192+r}, v{160+ww*8+r}, v{148+ww}, v{192+r}")
        for r in range(4):
            E(f"v_pk_fma_f32 v[{V_P+2}:{V_P+3}], v[{192+2*r}:{193+2*r}], v[{V_P}:{V_P+1}], v[{V_P+2}:{V_P+3}]")
            E(f"v_cvt_pk_bf16_f32 v{200+r}, v{192+2*r}, v{193+2*r}")
        E(f"""
        v_and_b32 v6, 15, v{L}
        v_lshlrev_b32 v6, 8, v6
        v_lshrrev_b32 v7, 4, v{L}
        v_lshlrev_b32 v7, 4, v7
        v_add_u32 v7, v6, v7
        s_mul_i32 s{S_XOFF}, s{S_ITEM}, 36864
        s_lshl_b32 s39, s{S_W}, 6
        s_add_u32 s39, s39, {128*256}
        s_add_u32 s39, s39, s{S_XOFF}
        buffer_store_dwordx4 {rng('v', 200)}, v7, s[20:23], s39 offen
        s_lshl_b32 s39, s{S_QH}, 14
        s_lshl_b32 s40, s{S_HH}, 7
        s_add_u32 s39, s39, s40
        s_add_u32 s{S_XOFF}, s{S_XOFF}, s39
        """)
        E("s_waitcnt lgkmcnt(0)\ns_barrier")
        E(f"""
        s_lshl_b32 s39, s{S_W}, 14
        v_add_u32 v3, s39, v8
        s_xor_b32 s39, s39, {2 << 14}
        v_add_u32 v4, s39, v8
        """)
        for s_ in range(4):
            for x in range(4):
                E(f"ds_write_b128 v3, {rng('a', acc_o(s_, 4 + x))} offset:{(s_*4+x)*1024}")
        E("s_waitcnt lgkmcnt(0)\ns_barrier")
        for s_ in range(4):
            base = 152 + (s_ % 2) * 48
            for x in range(4):
                E(f"ds_read_b128 {rng('v', base + 4*x)}, v4 offset:{(s_*4+x)*1024}")
            for r in range(16):
                E(f"v_accvgpr_read_b32 v{base+16+r}, a{acc_o(s_, 0) + r}")
            E(f"v_mov_b32 v{V_P+4}, v{140+2*s_}\nv_mov_b32 v{V_P+5}, v{140+2*s_}\nv_mov_b32 v{V_P+6}, v{141+2*s_}\nv_mov_b32 v{V_P+7}, v{141+2*s_}")
            for r in range(0, 16, 2):
                E(f"v_pk_mul_f32 v[{base+16+r}:{base+17+r}], v[{base+16+r}:{base+17+r}], v[{V_P+4}:{V_P+5}]")
            for r in range(0, 16, 2):
                E(f"v_pk_fma_f32 v[{base+16+r}:{base+17+r}], v[{base+r}:{base+r+1}], v[{V_P+6}:{V_P+7}], v[{base+16+r}:{base+17+r}]")
            for r in range(8):
                E(f"v_pk_fma_f32 v[{V_P+2}:{V_P+3}], v[{base+16+2*r}:{base+17+2*r}], v[{V_P}:{V_P+1}], v[{V_P+2}:{V_P+3}]")
                E(f"v_cvt_pk_bf16_f32 v{base+32+r}, v{base+16+2*r}, v{base+17+2*r}")
            E(f"s_add_u32 s39, s{S_XOFF}, {s_*4096}")
            for p in range(2):
                E(f"buffer_store_dwordx4 {rng('v', base+32+4*p)}, v7, s[20:23], s39 offen offset:{64*p}")
        E(f"""
        v_cmp_u_f32 vcc, v{V_P+2}, v{V_P+3}
        s_nop 1
        s_or_b64 s[72:73], s[72:73], vcc
        s_cmp_lg_u64 s[72:73], 0
        s_cselect_b32 s39, 1, {1 if self.force_bad else 0}
        v_mov_b32 v3, s39
        v_lshlrev_b32 v4, 2, v{L}
        s_waitcnt lgkmcnt(0)
        s_barrier
        v_mov_b32 v5, {STG}
        s_lshl_b32 s40, s{S_W}, 2
        v_add_u32 v6, s40, v5
        ds_write_b32 v6, v3
        s_waitcnt lgkmcnt(0)
        s_barrier
        ds_read_b128 v[120:123], v5
        s_waitcnt lgkmcnt(0)
        v_or_b32 v120, v120, v121
        v_or_b32 v122, v122, v123
        v_or_b32 v120, v120, v122
        s_nop 0
        v_readfirstlane_b32 s39, v120
        s_xor_b32 s40, s{S_SAFE}, 1
        s_nop 1
        s_and_b32 s39, s39, s40
        s_lshl_b32 s39, s39, s{S_ITEM}
        s_or_b32 s{S_BAD}, s{S_BAD}, s39
        s_barrier
        """)
        it, _ = finalize_linear(E.items)
        o = Prog(); o.extend(it)
        return o

    def stamp(self, out, idx_expr, sel=None):
        if not self.stamps: return
        base = idx_expr
        u = self.nst; self.nst += 1
        out(f"""s_waitcnt lgkmcnt(0)
        s_memtime s[72:73]
        s_waitcnt lgkmcnt(0)
        s_cmp_eq_u32 s{sel if sel is not None else S_ITEM}, 0
        s_cselect_b32 s{80+base}, s72, s{80+base}
        s_cselect_b32 s{88+base}, s{88+base}, s72""")

    def build(self):
        n = self.name
        out = Prog()
        st, _ = finalize_linear(self.setup().items)
        out.extend(st)
        out.label(f"{n}_qpL")
        self.stamp(out, 0, S_QI)
        out.extend(self.qp('x'))
        self.stamp(out, 1, S_QI)
        out(f"s_xor_b32 s39, s{S_LATE}, 1\ns_or_b32 s39, s39, s{S_QI}\ns_or_b32 s39, s39, s{S_SAFE}\ns_cmp_lg_u32 s39, 0\ns_cbranch_scc1 {n}_nolate0")
        out.extend(self.lq())
        out(f"s_mov_b32 s{S_QI}, 1\ns_mov_b32 s{S_FMAX}, 1\ns_branch {n}_qpL")
        out.label(f"{n}_nolate0")
        out(f"s_xor_b32 s39, s{S_SAFE}, 1\ns_and_b32 s39, s39, s{S_LATE}\ns_cmp_lg_u32 s39, 0\ns_cbranch_scc1 {n}_att")
        out.extend(self.lq())
        out.label(f"{n}_att")
        self.stamp(out, 2)
        out(f"s_cmp_lg_u32 s{S_SAFE}, 0\ns_cbranch_scc1 {n}_safe")
        out(f"s_cmp_lg_u32 s{S_QH}, 0\ns_cbranch_scc1 {n}_q1")
        self.x_nomax = self.fast
        out.extend(self.attention(0, 'a'))
        out(f"s_branch {n}_cmb")
        out.label(f"{n}_q1")
        out.extend(self.attention(1, 'b'))
        out(f"s_branch {n}_cmb")
        out.label(f"{n}_safe")
        self.x_nomax = False
        st, self.stamps = self.stamps, False
        out(f"s_cmp_lg_u32 s{S_QH}, 0\ns_cbranch_scc1 {n}_sq1")
        out.extend(self.attention(0, 'c'))
        out(f"s_branch {n}_cmb")
        out.label(f"{n}_sq1")
        out.extend(self.attention(1, 'd'))
        self.stamps = st
        out.label(f"{n}_cmb")
        self.stamp(out, 3)
        out(f"s_xor_b32 s39, s{S_LATE}, 1\ns_or_b32 s39, s39, s{S_ITEM}\ns_or_b32 s39, s39, s{S_SAFE}\ns_cmp_lg_u32 s39, 0\ns_cbranch_scc1 {n}_nolq")
        out.extend(self.lq())
        out.label(f"{n}_nolq")
        out.extend(self.combine(0))
        self.stamp(out, 4)
        out(f"s_cmp_lg_u32 s{S_SAFE}, 0\ns_cbranch_scc1 {n}_redo")
        out(f"s_add_u32 s{S_ITEM}, s{S_ITEM}, 1\ns_cmp_ge_u32 s{S_ITEM}, 2\ns_cbranch_scc1 {n}_redo")
        out(f"s_cmp_lg_u32 s{S_LATE}, 0\ns_cbranch_scc1 {n}_att")
        out(f"s_mov_b32 s{S_QI}, 1\ns_mov_b32 s{S_FMAX}, 1\ns_mov_b32 s{S_GOFF}, {16*16384}\ns_mov_b32 s10, s{S_NREC2}\ns_branch {n}_qpL")
        out.label(f"{n}_redo")
        out(f"s_cmp_eq_u32 s{S_BAD}, 0\ns_cbranch_scc1 {n}_fin")
        out(f"""s_and_b32 s39, s{S_BAD}, 1
        s_xor_b32 s{S_ITEM}, s39, 1
        s_lshl_b32 s39, 1, s{S_ITEM}
        s_andn2_b32 s{S_BAD}, s{S_BAD}, s39
        s_mov_b32 s{S_QI}, s{S_ITEM}
        s_mov_b32 s{S_SAFE}, 1
        s_mov_b32 s{S_FMAX}, 1
        s_lshl_b32 s{S_GOFF}, s{S_ITEM}, 18
        s_mov_b32 s10, s{S_NREC2}
        s_mov_b32 s{S_DSLOT}, s{S_DBASE}
        s_mov_b32 s{S_RSLOT}, 0
        s_branch {n}_qpL""")
        out.label(f"{n}_fin")
        if self.stamps:
            out(f"""s_lshl_b32 s39, s2, 2
            s_add_u32 s39, s39, s{S_W}
            s_lshl_b32 s39, s39, 6
            s_add_u32 s39, s39, {64 << 20}
            s_add_u32 s68, s68, s39
            s_addc_u32 s69, s69, 0
            v_mov_b32 v2, 0""")
            for i in range(16):
                out(f"v_mov_b32 v3, s{80+i}\nglobal_store_dword v2, v3, s[68:69] offset:{4*i}")
        out.label(f"{n}_done")
        out("s_endpgm")
        labs = {it.text for it in out.items if it.kind == 'label'}
        for r in self.rare:
            back = r.items[-1].ops[0] + ':'
            if back in labs: out.extend(r)
        return kernel_text(n, out.text(), vgpr=512, sgpr=102, acc=256), LDS_TOTAL

if __name__ == '__main__':
    import sys
    variants = [('fa_kernel', dict()), ('fa_mix_kernel', dict(order='mix', late_bit=6)), ('fa_late_kernel', dict(order='late')), ('fa_mix3_kernel', dict(order='mix', late_bit=3)),
                ('fa_mixsafe_kernel', dict(order='mix', late_bit=6, fast=False)), ('fa_forcebad_kernel', dict(order='mix', late_bit=6, force_bad=True))]
    hdr = ''; body = ''
    for nm, kw in variants:
        txt, lds = FA(name=nm, stamps=True, **kw).build()
        hdr += f"; @launch kernel={nm} grid=(256,1,1) block=(256,1,1) lds={lds}\n"
        body += txt
    open('fa.s', 'w').write(hdr + '.amdgcn_target "amdgcn-amd-amdhsa--gfx950"\n.text\n' + body)
```

```python
from asmlib import *

O_WS_OFF = 0
STG = 53248
WOFF = 36864

def interleave(M, fillers, start=0, per=1):
    out = []
    k = 0
    for i, m in enumerate(M):
        out.append(m)
        if i >= start:
            for _ in range(per):
                if k < len(fillers):
                    out += fillers[k]; k += 1
    while k < len(fillers):
        out += fillers[k]; k += 1
    return out

def gen_oproj(name='oproj_kernel', pf_dist=6, no_mfma=False, no_dma=False, pf=True, pf_flags='', o_off=O_WS_OFF, contig=True, same=0, no_reads=False, pf_o=True, stamps=False):
    ORS = 8 if contig else 13
    OSTG = 36864 if contig else 256
    OM = 1024 if contig else 32768
    OOBO = 144*8192
    P = Prog()
    P(f"""
    s_cmp_ge_u32 s2, 256
    s_cbranch_scc1 {name}_done
    s_load_dwordx2 s[4:5], s[0:1], 96
    s_load_dwordx2 s[6:7], s[0:1], 80
    s_load_dwordx2 s[8:9], s[0:1], 32
    s_load_dwordx2 s[10:11], s[0:1], 72
    v_lshrrev_b32 v1, 6, v0
    v_and_b32 v2, 63, v0
    v_readfirstlane_b32 s24, v1
    s_and_b32 s32, s2, 7
    s_lshr_b32 s33, s2, 3
    s_lshr_b32 s25, s32, 2
    s_and_b32 s34, s32, 1
    s_lshl_b32 s34, s34, 2
    s_and_b32 s41, s33, 3
    s_add_u32 s26, s34, s41
    s_lshr_b32 s34, s32, 1
    s_and_b32 s34, s34, 1
    s_lshl_b32 s34, s34, 3
    s_lshr_b32 s42, s33, 2
    s_add_u32 s27, s34, s42
    """)
    if stamps: P("s_waitcnt lgkmcnt(0)\ns_memtime s[50:51]\ns_waitcnt lgkmcnt(0)\ns_mov_b32 s60, s50")
    if stamps: P("s_getreg_b32 s64, hwreg(HW_REG_XCC_ID)")
    if same == 1: P("s_mov_b32 s25, 0\ns_mov_b32 s26, 0\ns_mov_b32 s27, 0")
    if same == 2: P("s_mov_b32 s25, 0\ns_mov_b32 s26, s41\ns_mov_b32 s27, s42")
    P("""
    v_lshrrev_b32 v3, 4, v2
    v_and_b32 v4, 15, v2
    v_xor_b32 v5, v4, v3
    v_lshlrev_b32 v5, 4, v5
    v_lshlrev_b32 v6, ORS_, v3
    v_add_u32 v24, v5, v6
    v_xor_b32 v25, 64, v24
    v_xor_b32 v26, 128, v24
    v_xor_b32 v27, 192, v24
    v_lshrrev_b32 v3, 3, v2
    v_and_b32 v4, 7, v2
    v_lshrrev_b32 v5, 4, v2
    v_and_b32 v5, 1, v5
    v_lshlrev_b32 v5, 1, v5
    v_xor_b32 v4, v4, v5
    v_lshlrev_b32 v4, 4, v4
    v_lshlrev_b32 v3, 11, v3
    v_add_u32 v14, v3, v4
    v_xor_b32 v15, 64, v14
    v_and_b32 v3, 15, v2
    v_lshrrev_b32 v4, 4, v2
    s_lshl_b32 s32, s24, 2
    v_add_u32 v5, s32, v4
    v_xor_b32 v5, v5, v3
    v_lshlrev_b32 v5, 4, v5
    v_lshlrev_b32 v6, 8, v3
    v_add_u32 v16, v5, v6
    v_lshrrev_b32 v3, 2, v2
    v_and_b32 v3, 3, v3
    v_and_b32 v5, 3, v2
    v_lshlrev_b32 v6, 3, v4
    v_add_u32 v6, v6, v3
    s_lshl_b32 s32, s24, 5
    v_add_u32 v6, s32, v6
    v_lshlrev_b32 v6, 7, v6
    v_lshrrev_b32 v7, 1, v3
    v_and_b32 v8, 1, v4
    v_lshlrev_b32 v8, 1, v8
    v_add_u32 v7, v7, v8
    v_lshlrev_b32 v7, 5, v7
    v_lshlrev_b32 v5, 3, v5
    v_add_u32 v6, v6, v7
    v_add_u32 v17, v6, v5
    v_xor_b32 v18, 32, v17
    v_xor_b32 v19, 64, v17
    v_xor_b32 v20, 96, v17
    """.replace('ORS_', str(ORS)))
    P(f"""
    s_mul_i32 s32, s42, 36
    v_add_u32 v3, s32, v2
    v_lshrrev_b32 v4, 1, v3
    v_lshlrev_b32 v4, {ORS}, v4
    v_and_b32 v3, 1, v3
    v_lshlrev_b32 v3, 7, v3
    v_add_u32 v21, v3, v4
    v_mov_b32 v5, 0x7f000000
    v_cmp_gt_u32 vcc, 36, v2
    s_nop 1
    v_cndmask_b32 v21, v5, v21, vcc
    s_lshl_b32 s32, s41, 5
    v_add_u32 v3, s32, v2
    v_lshlrev_b32 v22, 11, v3
    v_cmp_gt_u32 vcc, 32, v2
    s_nop 1
    v_cndmask_b32 v22, v5, v22, vcc
    """)
    for r in range(144):
        P(f"v_accvgpr_write_b32 a{r}, 0")
    P("s_waitcnt lgkmcnt(0)")
    P(f"""
    s_lshl_b32 s32, s25, 3
    s_add_u32 s32, s32, s26
    s_mul_i32 s32, s32, {144*8192}
    s_add_u32 s12, s4, s32
    s_addc_u32 s13, s5, 0
    s_add_u32 s12, s12, {o_off}
    s_addc_u32 s13, s13, 0
    s_and_b32 s13, s13, 0xffff
    s_mov_b32 s14, {144*8192}
    s_mov_b32 s15, 0x20000
    s_cmp_eq_u32 s25, 0
    s_cselect_b32 s16, s8, s10
    s_cselect_b32 s17, s9, s11
    s_lshl_b32 s32, s27, 7
    s_add_u32 s16, s16, s32
    s_addc_u32 s17, s17, 0
    s_and_b32 s17, s17, 0xffff
    s_sub_u32 s18, {4096*2048}, s32
    s_mov_b32 s19, 0x20000
    s_mul_i32 s32, s26, {144*4096}
    s_lshl_b32 s33, s25, 11
    s_add_u32 s32, s32, s33
    s_lshl_b32 s33, s27, 7
    s_add_u32 s32, s32, s33
    s_add_u32 s20, s6, s32
    s_addc_u32 s21, s7, 0
    s_and_b32 s21, s21, 0xffff
    s_sub_u32 s22, {8*144*4096}, s32
    s_mov_b32 s23, 0x20000
    """)
    P(f"""
    s_mul_i32 s36, s24, {12*OM}
    s_mul_i32 s37, s24, {6*16384}
    s_mul_i32 s45, s24, {12*1024}
    s_mul_i32 s46, s24, {6*1024}
    s_add_u32 s46, s46, {WOFF}
    s_cmp_eq_u32 s24, 2
    s_cselect_b32 s43, {16*16384}, 0
    s_cselect_b32 s44, {16*1024}, 0
    s_mov_b32 s28, 0
    s_mov_b32 s29, 0
    s_mov_b32 s30, 0
    """)
    def dma_groups():
        L = []
        L.append([f"s_add_u32 s38, s45, s29", f"s_add_u32 s39, s46, s29"])
        for mm in range(12):
            L.append([f"s_add_u32 m0, s38, {mm*1024}",
                      f"s_add_u32 s40, s36, {mm*OM}",
                      f"buffer_load_dwordx4 v{24 + (mm & 3)}, s[12:15], s40 offen lds"])
        for pp in range(6):
            g = [f"s_add_u32 m0, s39, {pp*1024}", f"s_add_u32 s40, s37, {pp*16384}"]
            if pp >= 4:
                g += ["s_sub_u32 m0, m0, s44", "s_sub_u32 s40, s40, s43"]
            g.append(f"buffer_load_dwordx4 v{14 + (pp & 1)}, s[16:19], s40 offen lds")
            L.append(g)
        L.append([f"s_add_u32 s28, s28, 1",
                  f"s_add_u32 s36, s36, {OSTG}",
                  f"s_add_u32 s37, s37, {1<<18}",
                  f"s_add_u32 s29, s29, {STG}",
                  f"s_cmp_eq_u32 s29, {3*STG}",
                  f"s_cselect_b32 s29, 0, s29",
                  f"s_cmp_lt_u32 s28, 32",
                  f"s_cselect_b32 s36, s36, {144*8192}",
                  f"s_cselect_b32 s37, s37, {4096*2048}"])
        return L
    def pf_groups():
        L = []
        if pf_o:
            L.append([f"s_mul_i32 s40, s47, {OSTG}", "s_mov_b32 exec_hi, 0xf", f"buffer_load_dword v23, v21, s[12:15], s40 offen{pf_flags}", "s_mov_b32 exec_hi, -1"])
        L.append([f"s_lshl_b32 s40, s47, 18", "s_mov_b32 exec_hi, 0", f"buffer_load_dword v29, v22, s[16:19], s40 offen{pf_flags}", "s_mov_b32 exec_hi, -1"])
        L.append([f"s_add_u32 s47, s47, 1", f"s_min_u32 s47, s47, 32"])
        return L
    FB = [32, 32 + 52]
    def reads(setk):
        b = FB[setk]
        L = []
        for j in range(4):
            a = b + 36 + 4 * j
            L.append([f"ds_read_b64_tr_b16 v[{a}:{a+1}], v{140+j} offset:{WOFF}"])
            L.append([f"ds_read_b64_tr_b16 v[{a+2}:{a+3}], v{140+j} offset:{WOFF+512}"])
        for t in range(9):
            L.append([f"ds_read_b128 v[{b+4*t}:{b+4*t+3}], v144 offset:{t*4096}"])
        return L
    def read_addr():
        return [[f"v_add_u32 v{140+j}, s30, v{17+j}"] for j in range(4)] + [["v_add_u32 v144, s30, v16"],
               [f"s_add_u32 s30, s30, {STG}", f"s_cmp_eq_u32 s30, {3*STG}", "s_cselect_b32 s30, 0, s30"]]
    def mfmas(setk):
        b = FB[setk]
        L = []
        for t in range(9):
            for j in range(4):
                a = b + 36 + 4 * j
                acc = 16 * t + 4 * j
                L.append(f"v_mfma_f32_16x16x32_bf16 a[{acc}:{acc+3}], v[{a}:{a+3}], v[{b+4*t}:{b+4*t+3}], a[{acc}:{acc+3}]")
        return L
    P(f"s_cmp_eq_u32 s24, 3\ns_cbranch_scc1 {name}_h_pro")
    for st in range(3):
        for g in dma_groups():
            for x in g: P(x)
    P("s_waitcnt vmcnt(36)")
    P(f"s_branch {name}_pro_done")
    P.label(f"{name}_h_pro")
    P("s_mov_b32 s47, 3")
    if pf:
        for st in range(pf_dist):
            for g in pf_groups():
                for x in g: P(x)
    P.label(f"{name}_pro_done")
    P("s_barrier")
    for g in read_addr():
        for x in g: P(x)
    for g in reads(0):
        for x in g: P(x)
    for g in read_addr():
        for x in g: P(x)
    P("s_waitcnt lgkmcnt(0)")
    if stamps: P("s_waitcnt lgkmcnt(0)\ns_memtime s[50:51]\ns_waitcnt lgkmcnt(0)\ns_mov_b32 s61, s50")
    P("s_mov_b32 s31, 16")
    P(f"s_cmp_eq_u32 s24, 3\ns_cbranch_scc1 {name}_hloop")
    pre, _ = finalize_linear(P.items)
    out = Prog(); out.extend(pre)
    for role in ('stage', 'help'):
        body = Prog()
        for half in range(2):
            cur, nxt = half, 1 - half
            if role == 'stage': body("s_waitcnt vmcnt(18) lgkmcnt(0)")
            else: body("s_waitcnt lgkmcnt(0)")
            body("s_barrier")
            M = mfmas(cur) if not no_mfma else []
            R = reads(nxt) if not no_reads else [['ds_read_b32 v150, v144']]
            if role == 'stage':
                D = dma_groups() if not no_dma else []
                seq = []
                ri = 0
                seq += R[0:4]; ri = 4
                di = 0
                while ri < len(R) or di < len(D):
                    if di < len(D): seq.append(D[di]); di += 1
                    if ri < len(R): seq.append(R[ri]); ri += 1
                seq = seq[:30] + read_addr() + seq[30:] if len(seq) > 30 else seq + read_addr()
            else:
                seq = R + (pf_groups() if pf else []) + read_addr()
            flat = [g for g in seq if not (g[0].startswith('v_add_u32 v14') or g[0].startswith('s_add_u32 s30'))]
            last_read = max(i for i, g in enumerate(flat) if g[0].startswith('ds_read'))
            seq = flat[:last_read + 1] + read_addr() + flat[last_read + 1:]
            for x in interleave(M, seq): body(x)
        body("s_sub_u32 s31, s31, 1")
        body("s_cmp_lg_u32 s31, 0")
        b_items, fifo = finalize_loop(body.items)
        lab = f"{name}_loop" if role == 'stage' else f"{name}_hloop"
        out.label(lab)
        out.extend(b_items)
        out(f"s_cbranch_scc1 {lab}")
        if role == 'stage': out(f"s_branch {name}_epi")
    out.label(f"{name}_epi")
    E = Prog()
    if stamps: E("s_waitcnt lgkmcnt(0)\ns_memtime s[50:51]\ns_waitcnt lgkmcnt(0)\ns_mov_b32 s62, s50")
    E("s_waitcnt vmcnt(0) lgkmcnt(0)")
    E("s_nop 7")
    E("s_barrier")
    E(f"""
    v_lshlrev_b32 v3, 4, v2
    s_mul_i32 s32, s24, 36864
    v_add_u32 v4, s32, v3
    """)
    for t in range(9):
        for j in range(4):
            acc = 16 * t + 4 * j
            E(f"ds_write_b128 v4, a[{acc}:{acc+3}] offset:{(t*4+j)*1024}")
    E("s_waitcnt lgkmcnt(0)")
    E("s_barrier")
    E(f"""
    s_lshl_b32 s32, s24, 10
    v_add_u32 v5, s32, v3
    v_add_u32 v6, 36864, v5
    v_add_u32 v7, {2*36864}, v5
    v_add_u32 v8, {3*36864}, v5
    v_and_b32 v9, 15, v2
    v_lshlrev_b32 v9, 12, v9
    v_lshrrev_b32 v21, 4, v2
    v_lshlrev_b32 v21, 3, v21
    v_add_u32 v9, v9, v21
    s_lshl_b32 s32, s24, 5
    v_add_u32 v9, s32, v9
    """)
    for t in range(9):
        base = 32 + 16 * (t % 3)
        for ww in range(4):
            E(f"ds_read_b128 v[{base+4*ww}:{base+4*ww+3}], v{5+ww} offset:{t*4096}")
        for r in range(4):
            E(f"v_add_f32 v{base+r}, v{base+r}, v{base+4+r}")
            E(f"v_add_f32 v{base+8+r}, v{base+8+r}, v{base+12+r}")
        for r in range(4):
            E(f"v_add_f32 v{base+r}, v{base+r}, v{base+8+r}")
        E(f"v_cvt_pk_bf16_f32 v{base}, v{base}, v{base+1}")
        E(f"v_cvt_pk_bf16_f32 v{base+1}, v{base+2}, v{base+3}")
        E(f"s_mov_b32 s33, {t*16*4096}")
        E(f"buffer_store_dwordx2 v[{base}:{base+1}], v9, s[20:23], s33 offen")
    if stamps: E("s_waitcnt lgkmcnt(0)\ns_memtime s[50:51]\ns_waitcnt lgkmcnt(0)\ns_mov_b32 s63, s50")
    if stamps:
        E(f"""s_lshl_b32 s32, s2, 2
        s_add_u32 s32, s32, s24
        s_lshl_b32 s32, s32, 6
        s_add_u32 s32, s32, {64 << 20}
        s_add_u32 s4, s4, s32
        s_addc_u32 s5, s5, 0
        v_mov_b32 v2, 0""")
        for i in range(5):
            E(f"v_mov_b32 v3, s{60+i}\nglobal_store_dword v2, v3, s[4:5] offset:{4*i}")
    e_items, _ = finalize_linear(E.items)
    out.extend(e_items)
    out.label(f"{name}_done")
    out("s_endpgm")
    return kernel_text(name, out.text(), vgpr=400, sgpr=72, acc=256), 3 * STG

if __name__ == '__main__':
    variants = [('op_nopf_kernel', dict(pf=False, stamps=True)), ('op_pf_kernel', dict(stamps=True)), ('op_same1_kernel', dict(pf=False, same=1, stamps=True)),
                ('op_nodma_kernel', dict(pf=False, no_dma=True, stamps=True)),
                ]
    hdr = ''; body = ''
    for nm, kw in variants:
        txt, lds = gen_oproj(nm, **kw)
        hdr += f"; @launch kernel={nm} grid=(256,1,1) block=(256,1,1) lds={lds}\n"
        body += txt
    open('op.s', 'w').write(hdr + '.amdgcn_target "amdgcn-amd-amdhsa--gfx950"\n.text\n' + body)
```

```python
import sys
sys.path.insert(0, 'gen')
import fa as fa_mod, oproj2
def make(path, fa_kw=None, op_kw=None):
    f = fa_mod.FA(name='fa_kernel', **(fa_kw or {}))
    t1, l1 = f.build()
    t2, l2 = oproj2.gen_oproj('oproj_kernel', **(op_kw or {}))
    hdr = open('concat_heads__mha_block_cached__gqa_block_cached__near_ridge.s.ref').read().split('; Override')[0]
    hdr += f"; @launch kernel=fa_kernel grid=(256,1,1) block=(256,1,1) lds={l1}\n"
    hdr += f"; @launch kernel=oproj_kernel grid=(256,1,1) block=(256,1,1) lds={l2}\n"
    open(path, 'w').write(hdr + '.amdgcn_target "amdgcn-amd-amdhsa--gfx950"\n.text\n' + t1 + t2)
if __name__ == '__main__':
    M = 'cdna_kernels/'
    make(M + 'concat_heads__mha_block_cached__gqa_block_cached__near_ridge.s', fa_kw=dict(order='mix', late_bit=6), op_kw=dict(pf=False))
    make(M + 'v_early.s', fa_kw=dict(order='early'), op_kw=dict(pf=False))
    make(M + 'v_nont.s', fa_kw=dict(order='mix', late_bit=6, nt_kv=False), op_kw=dict(pf=False))
    make(M + 'v_ntw.s', fa_kw=dict(order='mix', late_bit=6, nt_w=True), op_kw=dict(pf=False))
```

```python
import sys
sys.path.insert(0, 'gen')
import fa as fa_mod, oproj2
def make(path, order, fa_kw=None, op_kw=None):
    f = fa_mod.FA(name='fa_kernel', **(fa_kw or {}))
    t1, l1 = f.build()
    t2, l2 = oproj2.gen_oproj('oproj_kernel', **(op_kw or {}))
    hdr = open('concat_heads__mha_block_cached__gqa_block_cached__near_ridge.s.ref').read().split('; Override')[0]
    for k in order:
        if k == 'f': hdr += f"; @launch kernel=fa_kernel grid=(256,1,1) block=(256,1,1) lds={l1}\n"
        else: hdr += f"; @launch kernel=oproj_kernel grid=(256,1,1) block=(256,1,1) lds={l2}\n"
    open(path, 'w').write(hdr + '.amdgcn_target "amdgcn-amd-amdhsa--gfx950"\n.text\n' + t1 + t2)
M = 'cdna_kernels/'
kw = dict(fa_kw=dict(order='mix', late_bit=6), op_kw=dict(pf=False))
make(M + 'e_fo.s', 'fo', **kw)
make(M + 'e_foo.s', 'foo', **kw)
make(M + 'e_ffo.s', 'ffo', **kw)
make(M + 'e_fooo.s', 'fooo', **kw)
```

```python
from asmlib import *
import math

RING = 0
SLOT = 32768
STG = 98304
XB = [STG, STG + 18432]
WB = [STG + 36864 + 8192 * i for i in range(3)]
QX = STG
LDS_TOTAL = 163840
O_WS_OFF = 0
CSCALE = math.log2(math.e) / math.sqrt(128.0)

import struct
def f2u(x): return struct.unpack('<I', struct.pack('<f', x))[0]

V_LANE = 1
V_RING = 10
V_KPAT, V_VPAT, V_KA, V_VA = 20, 24, 28, 32
V_P = 36
V_MX, V_T1, V_T2, V_T3 = 48, 49, 50, 51
V_ONES = 52
V_NEGM = 56
V_L = 76
V_S = 96
V_KF = {'A': 120, 'B': 184}
V_VF = {'A': 152, 'B': 216}
A_O = 0
A_Q = 160
V_XD, V_WD = 106, 98
QXBASE = 65536
V_PFW, V_PFX, V_PFD = 14, 15, 16
V_RINGK, V_RINGV = 17, 18
V_RINGH = 248
V_VA2 = 252
V_XPAT = 100
V_WPAT = 104
V_XA = 106
V_WA = 110
QF_W = [120, 156]
QF_X = [136, 172]

S_W, S_QH, S_HH, S_BLK, S_B, S_H0 = 24, 25, 26, 27, 28, 29
S_CH, S_DSLOT, S_RSLOT, S_CNT = 30, 31, 32, 33
S_T = 34
S_GOFF, S_LB, S_TMP, S_TMP2 = 41, 42, 40, 43
S_DWRAP, S_DBASE = 30, 42
S_XI, S_WI, S_XOFF, S_WOFF, S_XBUF, S_WBUF, S_XRB, S_WRB = 44, 45, 46, 47, 48, 49, 50, 51
S_XW_G, S_XW_L = 54, 55
S_XC = 96
S_WW_L, S_WLIM = 101, 56
S_BAD, S_SAFE, S_NREC2 = 44, 45, 53
S_ITEM = 58
S_FL = 59
S_QI = 70
S_FLAG = 72
S_LATE, S_PR, S_FI, S_FMAX, S_FG, S_FL2 = 71, 74, 75, 52, 53, 56
S_KVO = 66

QP_PAT = [98, 99, 100, 101, 102, 103, 104, 105, 106, 107, 108, 109, 110]
def qacc(k): return (56 + 4 * k) if k < 10 else (192 + 4 * (k - 10))
def acc_o(slot, jl): return A_O + slot * 32 + jl * 4
def q_frag(slot, jp): return A_Q + slot * 16 + jp * 4
def rng(f, b, n=4): return f"{f}[{b}:{b+n-1}]"

def interleave(M, fillers, start=0):
    out = []
    k = 0
    for i, m in enumerate(M):
        out.append(m)
        if i >= start and k < len(fillers):
            out += fillers[k]; k += 1
    while k < len(fillers):
        out += fillers[k]; k += 1
    return out

def spread(M, groups, start=0):
    m = len(M) - start
    n = len(groups)
    out = []
    for i, x in enumerate(M):
        out.append(x)
        if i >= start:
            k = i - start
            for g in groups[(k * n) // m:((k + 1) * n) // m]:
                out += g
    return out

class FA:
    def __init__(self, name='fa_kernel', nt_kv=True, nt_w=False, nt_x=False, dbg=None, order='early', stamps=False, pf_qp=True, pf_att=True, late_bit=1, x_nodma=False, x_nosm=False, x_nobr=False, x_nord=False, x_nobar=False, x_qv=False, q_nodma=False, q_nord=False, q_nobar=False, q_nowait=False, same_kv=False, x_nohead=False, x_noX=False, x_nomax=False, fill_qp=True, fast=True, force_bad=False, pf_wo=False, pf_code=False, op_label=None, dbg_stamps=None):
        self.dbg_stamps = dbg_stamps
        self.pf_wo, self.pf_code, self.op_label = pf_wo, pf_code, op_label
        self.fast = fast
        self.force_bad = force_bad
        self.fill_qp = fill_qp
        self.x_nomax = x_nomax
        self.x_nohead, self.x_noX = x_nohead, x_noX
        self.same_kv = same_kv
        self.q_nowait = q_nowait
        self.q_nodma, self.q_nord, self.q_nobar = q_nodma, q_nord, q_nobar
        self.x_nodma, self.x_nosm, self.x_nobr, self.x_nord, self.x_nobar, self.x_qv = x_nodma, x_nosm, x_nobr, x_nord, x_nobar, x_qv
        self.pf_qp = pf_qp
        self.pf_att = pf_att
        self.late_bit = late_bit
        self.stamps = stamps
        self.nst = 0
        self.name = name
        self.nt_kv = ' nt' if nt_kv else ''
        self.nt_w = ' nt' if nt_w else ''
        self.nt_x = ' nt' if nt_x else ''
        self.dbg = dbg
        self.order = order
        self.rare = []
        self.uid = 0

    def setup(self):
        P = Prog()
        n = self.name
        P(f"""
        s_cmp_ge_u32 s2, 256
        s_cbranch_scc1 {n}_done
        s_and_b32 s39, s2, 7
        s_lshr_b32 s40, s2, 3
        s_lshr_b32 s{S_BLK}, s39, 2
        s_and_b32 s39, s39, 3
        s_and_b32 s{S_B}, s40, 7
        s_lshr_b32 s40, s40, 3
        s_mov_b32 s{S_PR}, s40
        s_lshl_b32 s39, s39, 3
        s_lshl_b32 s40, s40, 1
        s_add_u32 s{S_H0}, s39, s40
        s_mul_i32 s39, s{S_BLK}, 40
        s_add_u32 s60, s0, s39
        s_addc_u32 s61, s1, 0
        s_load_dwordx2 s[4:5], s[60:61], 0
        s_load_dwordx2 s[62:63], s[60:61], 8
        s_load_dwordx2 s[64:65], s[60:61], 16
        s_load_dwordx2 s[66:67], s[60:61], 24
        s_load_dwordx2 s[68:69], s[0:1], 96
        s_load_dwordx2 s[76:77], s[60:61], 32
        v_lshrrev_b32 v2, 6, v0
        v_and_b32 v{V_LANE}, 63, v0
        v_readfirstlane_b32 s{S_W}, v2
        s_and_b32 s{S_QH}, s{S_W}, 1
        s_lshr_b32 s{S_HH}, s{S_W}, 1
        """)
        L = V_LANE
        P(f"""
        v_lshrrev_b32 v2, 4, v{L}
        v_and_b32 v3, 15, v{L}
        v_xor_b32 v4, v3, v2
        v_lshlrev_b32 v5, 2, v2
        v_xor_b32 v5, v3, v5
        v_lshlrev_b32 v4, 4, v4
        v_lshlrev_b32 v5, 4, v5
        v_lshlrev_b32 v2, 8, v2
        v_add_u32 v{V_RINGK}, v4, v2
        v_add_u32 v{V_RINGV}, v5, v2
        s_cmp_eq_u32 s{S_QH}, 0
        s_cselect_b32 s39, 64, 16
        s_cselect_b64 vcc, -1, 0
        v_cndmask_b32 v{V_RING}, v{V_RINGV}, v{V_RINGK}, vcc
        v_xor_b32 v{V_RING+1}, s39, v{V_RING}
        s_lshl_b32 s40, s39, 1
        v_xor_b32 v{V_RING+2}, s40, v{V_RING}
        s_add_u32 s40, s40, s39
        v_xor_b32 v{V_RING+3}, s40, v{V_RING}
        v_add_u32 v{V_RINGH}, 4096, v{V_RING}
        v_add_u32 v{V_RINGH+1}, 4096, v{V_RING+1}
        v_add_u32 v{V_RINGH+2}, 4096, v{V_RING+2}
        v_add_u32 v{V_RINGH+3}, 4096, v{V_RING+3}
        """)
        P(self.pf_setup())
        P(f"""
        v_and_b32 v3, 15, v{L}
        v_lshrrev_b32 v2, 4, v{L}
        v_xor_b32 v4, v2, v3
        v_lshlrev_b32 v4, 4, v4
        v_lshlrev_b32 v5, 8, v3
        s_lshl_b32 s39, s{S_HH}, 14
        v_add_u32 v5, s39, v5
        """)
        for jp in range(4):
            P(f"v_xor_b32 v6, {64*jp}, v4\nv_add_u32 v{V_KPAT+jp}, v5, v6")
        P(f"""
        v_lshrrev_b32 v3, 2, v{L}
        v_and_b32 v3, 3, v3
        v_and_b32 v4, 3, v{L}
        v_xor_b32 v4, v4, v2
        v_lshlrev_b32 v4, 4, v4
        v_lshlrev_b32 v5, 6, v3
        v_add_u32 v4, v4, v5
        v_lshlrev_b32 v5, 2, v2
        v_add_u32 v5, v5, v3
        v_lshlrev_b32 v5, 8, v5
        s_lshl_b32 s39, s{S_HH}, 14
        s_add_u32 s39, s39, 8192
        v_add_u32 v5, s39, v5
        """)
        for ml in range(4):
            P(f"""
            s_lshl_b32 s39, s{S_HH}, 1
            s_add_u32 s39, s39, {ml}
            s_and_b32 s39, s39, 3
            s_lshl_b32 s39, s39, 6
            v_xor_b32 v6, s39, v4
            v_add_u32 v{V_VPAT+ml}, v5, v6
            """)
        if self.pf_code:
            P(f"""
            s_lshr_b32 s39, s2, 3
            s_cmp_ge_u32 s39, 16
            s_cbranch_scc1 {n}_npc
            s_cmp_lg_u32 s{S_W}, 0
            s_cbranch_scc1 {n}_npc
            s_getpc_b64 s[72:73]
            {n}_pc0:
            s_lshl_b32 s39, s39, 13
            s_add_u32 s72, s72, s39
            s_addc_u32 s73, s73, 0
            v_lshlrev_b32 v3, 7, v{L}
            global_load_dword v{V_PFD}, v3, s[72:73]
            {n}_npc:
            """)
        for r in range(4):
            P(f"v_mov_b32 v{V_ONES+r}, 0x3f803f80")
        P("s_waitcnt lgkmcnt(0)")
        P(f"""
        s_cmp_eq_u32 s{S_QH}, 0
        s_cselect_b32 s8, s62, s64
        s_cselect_b32 s9, s63, s65
        s_lshl_b32 s39, s{S_B}, 5
        s_add_u32 s39, s39, s{S_H0}
        s_lshr_b32 s40, s39, 14
        s_lshl_b32 s39, s39, {18 if not self.same_kv else 31}
        s_and_b32 s39, s39, {'-1' if not self.same_kv else '0'}
        s_add_u32 s8, s8, s39
        s_addc_u32 s9, s9, s40
        s_lshl_b32 s39, s{S_HH}, 13
        s_add_u32 s8, s8, s39
        s_addc_u32 s9, s9, 0
        s_and_b32 s9, s9, 0xffff
        s_sub_u32 s10, {2*262144}, s39
        s_mov_b32 s11, 0x20000
        s_mul_i32 s39, s{S_B}, {144*2048}
        s_add_u32 s12, s4, s39
        s_addc_u32 s13, s5, 0
        s_and_b32 s13, s13, 0xffff
        s_mov_b32 s14, {144*2048}
        s_mov_b32 s15, 0x20000
        s_lshl_b32 s39, s{S_H0}, 8
        s_add_u32 s16, s66, s39
        s_addc_u32 s17, s67, 0
        s_and_b32 s17, s17, 0xffff
        s_sub_u32 s18, {1024*8192}, s39
        s_mov_b32 s19, 0x20000
        s_lshl_b32 s39, s{S_BLK}, 3
        s_add_u32 s39, s39, s{S_B}
        s_lshl_b32 s39, s39, 5
        s_add_u32 s39, s39, s{S_H0}
        s_mul_i32 s39, s39, 36864
        s_add_u32 s20, s68, s39
        s_addc_u32 s21, s69, 0
        s_add_u32 s20, s20, {O_WS_OFF}
        s_addc_u32 s21, s21, 0
        s_and_b32 s21, s21, 0xffff
        s_mov_b32 s22, {2*36864}
        s_mov_b32 s23, 0x20000
        s_lshl_b32 s{S_DBASE}, s{S_W}, 13
        s_mov_b32 s{S_DSLOT}, s{S_DBASE}
        s_add_u32 s{S_DWRAP}, s{S_DBASE}, {3*SLOT}
        s_mov_b32 s{S_GOFF}, 0
        s_mov_b32 s{S_RSLOT}, 0
        s_mov_b32 s{S_ITEM}, 0
        s_mov_b32 s{S_QI}, 0
        s_mov_b32 s{S_FMAX}, 1
        s_lshl_b32 s39, s{S_B}, 5
        s_add_u32 s39, s39, s{S_H0}
        s_lshl_b32 s{S_KVO}, s39, 18
        s_mov_b32 s{S_KVO+1}, 0
        s_and_b32 s39, s2, 3
        s_lshl_b32 s39, s39, 5
        s_lshr_b32 s40, s2, 3
        s_add_u32 s39, s39, s40
        s_lshl_b32 s39, s39, 16
        s_add_u32 s76, s76, s39
        s_addc_u32 s77, s77, 0
        s_and_b32 s77, s77, 0xffff
        s_mov_b32 s78, 65536
        s_mov_b32 s79, 0x20000
        v_lshlrev_b32 v19, 7, v{L}
        """)
        if self.order == 'early': P(f"s_mov_b32 s{S_LATE}, 0")
        elif self.order == 'late': P(f"s_mov_b32 s{S_LATE}, 1")
        else: P(f"s_lshr_b32 s{S_LATE}, s2, {self.late_bit}\ns_and_b32 s{S_LATE}, s{S_LATE}, 1")
        P(f"""s_xor_b32 s{S_FMAX}, s{S_LATE}, 1
        s_mov_b32 s{S_BAD}, 0
        s_mov_b32 s{S_SAFE}, 0
        s_mov_b32 s{S_NREC2}, s10
        s_sub_u32 s39, s10, 262144
        s_cmp_eq_u32 s{S_LATE}, 0
        s_cselect_b32 s10, s39, s10""")
        P.extend(self.qp_patterns())
        return P

    def ring_instrs(self):
        nt = self.nt_kv
        D = []
        for m in range(8):
            g = []
            if m == 0: g.append(f"s_mov_b32 m0, s{S_DSLOT}")
            if m == 4: g.append(f"s_add_u32 m0, s{S_DSLOT}, 4096")
            v = V_RING + m if m < 4 else V_RINGH + m - 4
            g.append(f"buffer_load_dwordx4 v{v}, s[8:11], s{S_GOFF} offen offset:{(m & 3) * 1024}{nt} lds")
            D.append(g)
        adv = [f"s_add_u32 s{S_GOFF}, s{S_GOFF}, 16384",
               f"s_add_u32 s{S_DSLOT}, s{S_DSLOT}, {SLOT}",
               f"s_cmp_eq_u32 s{S_DSLOT}, s{S_DWRAP}",
               f"s_cselect_b32 s{S_DSLOT}, s{S_DBASE}, s{S_DSLOT}"]
        return D, adv
    def ring_groups(self):
        D, adv = self.ring_instrs()
        return D + [adv]

    def ring_fill(self):
        P = Prog()
        for _ in range(3):
            for g in self.ring_groups():
                for x in g: P(x)
        return P

    def pf_setup(self):
        L = V_LANE
        return f"""
        v_lshrrev_b32 v2, 1, v{L}
        v_lshlrev_b32 v2, 13, v2
        v_and_b32 v3, 1, v{L}
        v_lshlrev_b32 v3, 7, v3
        v_add_u32 v{V_PFW}, v2, v3
        v_lshrrev_b32 v2, 4, v{L}
        v_lshlrev_b32 v2, 11, v2
        v_and_b32 v3, 15, v{L}
        v_lshlrev_b32 v3, 7, v3
        v_add_u32 v{V_PFX}, v2, v3
        """
    def pf_w(self, i_expr_sgpr, head_sgpr):
        return [f"s_lshl_b32 s{S_TMP}, s{S_B}, 20",
                f"s_lshl_b32 s{S_TMP2}, {i_expr_sgpr}, 18",
                f"s_add_u32 s{S_TMP}, s{S_TMP}, s{S_TMP2}",
                f"s_lshl_b32 s{S_TMP2}, {head_sgpr}, 8",
                f"s_add_u32 s{S_TMP}, s{S_TMP}, s{S_TMP2}",
                f"buffer_load_dword v{V_PFD}, v{V_PFW}, s[16:19], s{S_TMP} offen{self.nt_w}"]
    def pf_x(self, i_expr):
        return [f"s_mul_i32 s{S_TMP}, s{S_PR}, {36*2048}",
                f"s_lshl_b32 s{S_TMP2}, {i_expr}, 13",
                f"s_add_u32 s{S_TMP}, s{S_TMP}, s{S_TMP2}",
                f"buffer_load_dword v{V_PFD}, v{V_PFX}, s[12:15], s{S_TMP} offen{self.nt_x}"]

    def qp_patterns(self):
        L = V_LANE
        P = Prog()
        P(f"""
        v_lshrrev_b32 v2, 3, v{L}
        v_and_b32 v3, 7, v{L}
        v_lshrrev_b32 v4, 4, v{L}
        v_xor_b32 v3, v3, v4
        v_lshlrev_b32 v3, 4, v3
        v_lshlrev_b32 v2, 11, v2
        v_add_u32 v2, v2, v3
        """)
        for x in range(5):
            P(f"""
            s_mul_i32 s39, s{S_W}, 5
            s_add_u32 s39, s39, {x}
            s_cmp_gt_u32 s39, 17
            s_cselect_b32 s40, 2, 0
            s_sub_u32 s39, s39, s40
            s_lshl_b32 s{S_XC+x}, s39, 10
            s_and_b32 s40, s39, 1
            s_lshl_b32 s40, s40, 6
            v_xor_b32 v3, s40, v2
            s_lshl_b32 s39, s39, 14
            v_add_u32 v{V_XD+x}, s39, v3
            """)
        P(f"""
        v_lshrrev_b32 v2, 4, v{L}
        v_and_b32 v3, 15, v{L}
        v_lshlrev_b32 v4, 2, v2
        v_xor_b32 v3, v3, v4
        v_xor_b32 v3, s{S_W}, v3
        v_lshlrev_b32 v3, 4, v3
        v_lshlrev_b32 v4, 13, v2
        v_add_u32 v3, v3, v4
        s_lshl_b32 s39, s{S_W}, 16
        v_add_u32 v{V_WD}, s39, v3
        v_add_u32 v{V_WD+1}, 32768, v{V_WD}
        v_and_b32 v3, 15, v{L}
        v_lshrrev_b32 v4, 1, v3
        v_xor_b32 v4, v4, v2
        v_lshlrev_b32 v4, 4, v4
        v_lshlrev_b32 v5, 7, v3
        v_xor_b32 v6, 64, v4
        v_add_u32 v4, v4, v5
        v_add_u32 v6, v6, v5
        s_lshl_b32 s39, s{S_QH}, 13
        s_add_u32 s39, s39, {QXBASE}
        v_add_u32 v{V_XPAT}, s39, v4
        v_add_u32 v{V_XPAT+1}, s39, v6
        v_add_u32 v{V_XPAT+2}, {8*2048 + QXBASE}, v4
        v_add_u32 v{V_XPAT+3}, {8*2048 + QXBASE}, v6
        v_lshrrev_b32 v3, 2, v{L}
        v_and_b32 v3, 3, v3
        v_and_b32 v4, 3, v{L}
        v_xor_b32 v4, v4, v2
        v_lshlrev_b32 v4, 4, v4
        v_lshlrev_b32 v5, 6, v3
        v_add_u32 v4, v4, v5
        v_lshlrev_b32 v5, 3, v2
        v_add_u32 v5, v5, v3
        v_lshlrev_b32 v5, 8, v5
        """)
        for p in range(2):
            P(f"""
            s_xor_b32 s39, s{S_QH}, {p}
            s_lshl_b32 s40, s{S_HH}, 1
            s_add_u32 s39, s39, s40
            s_lshl_b32 s39, s39, 6
            v_xor_b32 v6, s39, v4
            v_add_u32 v{V_WPAT+p}, v5, v6
            """)
        for k, r in enumerate(QP_PAT): P(f"v_accvgpr_write_b32 a{240+k}, v{r}")
        P(f"s_lshl_b32 s{S_WW_L}, s{S_W}, 11")
        return P

    def qp(self, tag):
        n = self.name
        L = V_LANE
        NX, NW = 4, 8
        P = Prog()
        for k, r in enumerate(QP_PAT): P(f"v_accvgpr_read_b32 v{r}, a{240+k}")
        P(f"""
        s_lshl_b32 s{S_WOFF}, s{S_QI}, 8
        s_add_u32 s{S_WLIM}, s{S_WOFF}, {32 << 18}
        s_mov_b32 s{S_XOFF}, 0
        """)
        def x_groups(buf):
            G = [[f"s_cmp_lt_u32 s{S_XOFF}, 2048", f"s_cselect_b32 s{S_TMP2}, s{S_XOFF}, {144*2048}"]]
            for x in range(5):
                G.append([f"s_add_u32 m0, s{S_XC+x}, {QXBASE + buf*18432}",
                          f"buffer_load_dwordx4 v{V_XD+x}, s[12:15], s{S_TMP2} offen{self.nt_x} lds"])
            G.append([f"s_add_u32 s{S_XOFF}, s{S_XOFF}, 128"])
            return G
        def w_groups(buf):
            G = []
            for x in range(2):
                G.append([f"s_add_u32 m0, s{S_WW_L}, {buf*8192 + x*1024}",
                          f"buffer_load_dwordx4 v{V_WD + x}, s[16:19], s{S_WOFF} offen{self.nt_w} lds"])
            G.append([f"s_add_u32 s{S_WOFF}, s{S_WOFF}, {1 << 18}", f"s_min_u32 s{S_WOFF}, s{S_WOFF}, s{S_WLIM}"])
            return G
        def read_groups(k, i):
            G = []
            wb = (i % 8) * 8192
            xb = ((i >> 1) % 4) * 18432
            ss = i & 1
            for jl in range(4):
                a = QF_W[k] + 4 * jl
                p, h = jl >> 1, jl & 1
                G.append([f"ds_read_b64_tr_b16 v[{a}:{a+1}], v{V_WPAT+p} offset:{wb + 8*h}"])
                G.append([f"ds_read_b64_tr_b16 v[{a+2}:{a+3}], v{V_WPAT+p} offset:{wb + 8*h + 1024}"])
            for t in range(4):
                G.append([f"ds_read_b128 {rng('v', QF_X[k]+4*t)}, v{V_XPAT+ss} offset:{xb + t*2048}"])
            G.append([f"ds_read_b128 {rng('v', QF_X[k]+16)}, v{V_XPAT+2+ss} offset:{xb}"])
            return G
        def mf(k):
            M = []
            for t in range(4):
                for jl in range(4):
                    a = qacc(4 * t + jl)
                    M.append(f"v_mfma_f32_16x16x32_bf16 {rng('v', a)}, {rng('v', QF_W[k]+4*jl)}, {rng('v', QF_X[k]+4*t)}, {rng('v', a)}")
            for x in range(2):
                a = qacc(16 + x)
                M.append(f"v_mfma_f32_16x16x32_bf16 {rng('v', a)}, {rng('v', QF_W[k]+4*x)}, {rng('v', QF_X[k]+16)}, {rng('v', a)}")
            return M
        pro = []
        xi = wi = 0
        while xi < NX or wi < NW:
            if xi < NX and 2 * xi <= wi: pro.append(('X', xi)); xi += 1
            elif wi < NW: pro.append(('W', wi)); wi += 1
            else: pro.append(('X', xi)); xi += 1
        cnt = {'X': 5, 'W': 2}
        seq = list(pro)
        def outstanding_after(need):
            last = max(i for i, it in enumerate(seq) if it in need)
            return sum(cnt[k] for k, _ in seq[last + 1:])
        w0 = outstanding_after({('X', 0), ('W', 0)})
        waits = {}
        for i in range(0, 24):
            waits[i] = outstanding_after({('W', i + 1), ('X', (i + 1) >> 1)})
            seq.append(('W', i + NW))
            if i & 1: seq.append(('X', (i >> 1) + NX))
        wr = [min(waits[i] for i in range(r, 24, 8)) for r in range(8)]
        assert max(wr + [w0]) <= 63
        P("s_waitcnt vmcnt(0)\ns_barrier")
        for kind, idx in pro:
            for g in (x_groups(idx) if kind == 'X' else w_groups(idx)):
                for x in g: P(x)
        for k in range(18):
            for r in range(4): P(f"v_mov_b32 v{qacc(k) + r}, 0")
        P(f"s_waitcnt vmcnt({w0})\ns_barrier")
        for g in read_groups(0, 0):
            for x in g: P(x)
        P(f"s_waitcnt lgkmcnt(0)\ns_mov_b32 s{S_CNT}, 4")
        pre, _ = finalize_linear(P.items)
        out = Prog(); out.extend(pre)
        body = Prog()
        for r in range(8):
            ss = r & 1
            if not self.q_nowait: body(f"s_waitcnt vmcnt({wr[r]}) lgkmcnt(0)")
            if not self.q_nobar: body("s_barrier")
            R = read_groups(1 - ss, r + 1)
            D = w_groups(r) + (x_groups(r >> 1) if ss == 1 else [])
            if self.q_nodma: D = []
            if self.q_nord: R = R[:1]
            M = mf(ss)
            fill = [[] for _ in M]
            for i, g in enumerate(R): fill[i] += g
            free = list(range(len(R), len(M))) + list(range(0, len(R), 2))
            gi = 0
            dm = [g for g in D if any('buffer_load' in y for y in g)]
            oth = [g for g in D if not any('buffer_load' in y for y in g)]
            seqD = D
            npos = len(M)
            for i, g in enumerate(seqD):
                pos = min(npos - 1, 2 + (i * (npos - 2)) // max(len(seqD), 1))
                if 'm0' in g[0] and pos > 0 and not any('buffer_load' in y for y in fill[pos - 1]):
                    fill[pos - 1].append(g[0]); fill[pos] += g[1:]
                else:
                    fill[pos] += g
            for x in interleave(M, fill): body(x)
        body(f"s_sub_u32 s{S_CNT}, s{S_CNT}, 1\ns_cmp_lg_u32 s{S_CNT}, 0")
        b, _ = finalize_loop(body.items)
        out.label(f"{n}_qp{tag}")
        out.extend(b)
        out(f"s_cbranch_scc1 {n}_qp{tag}")
        E = Prog()
        E("s_waitcnt vmcnt(0) lgkmcnt(0)\ns_barrier")
        C = Prog()
        C(f"""
        v_mov_b32 v8, {f2u(CSCALE):#x}
        v_mov_b32 v9, {f2u(CSCALE):#x}
        v_lshlrev_b32 v2, 4, v{L}
        v_add_u32 v2, {QX}, v2
        s_lshl_b32 s40, s{S_QH}, 14
        s_lshl_b32 s{S_TMP2}, s{S_HH}, 11
        s_add_u32 s40, s40, s{S_TMP2}
        s_lshl_b32 s{S_TMP2}, s{S_QH}, 10
        s_add_u32 s{S_XOFF}, s40, s{S_TMP2}
        s_xor_b32 s{S_TMP2}, s{S_TMP2}, 1024
        s_add_u32 s{S_WOFF}, s40, s{S_TMP2}
        v_add_u32 v3, s{S_XOFF}, v2
        v_add_u32 v4, s{S_WOFF}, v2
        s_lshl_b32 s40, s{S_HH}, 11
        s_lshl_b32 s{S_TMP2}, s{S_QH}, 10
        s_add_u32 s40, s40, s{S_TMP2}
        v_add_u32 v5, s40, v2
        """)
        def conv(k0, dst):
            for q in range(2):
                a = qacc(k0 + q)
                C(f"v_pk_mul_f32 v[{a}:{a+1}], v[{a}:{a+1}], v[8:9]")
                C(f"v_pk_mul_f32 v[{a+2}:{a+3}], v[{a+2}:{a+3}], v[8:9]")
            for q in range(2):
                a = qacc(k0 + q)
                C(f"v_cvt_pk_bf16_f32 v{dst+2*q}, v{a}, v{a+1}")
                C(f"v_cvt_pk_bf16_f32 v{dst+2*q+1}, v{a+2}, v{a+3}")
        k = 0
        for t in range(4):
            for p in range(2):
                d = 120 + 4 * (k % 16); k += 1
                conv(4 * t + 2 * p, d)
                C(f"ds_write_b128 v{3+p}, {rng('v', d)} offset:{t*4096}")
        d = 120 + 4 * k
        conv(16, d)
        C(f"ds_write_b128 v5, {rng('v', d)} offset:{8*4096}")
        RF = []
        for _ in range(3): RF += self.ring_groups()
        CI = Prog()
        ci = C.items
        step = max(1, len(ci) // len(RF))
        k = 0
        for i, it in enumerate(ci):
            if i % step == 0 and k < len(RF):
                for x in RF[k]: CI(x)
                k += 1
            CI.items.append(it)
        while k < len(RF):
            for x in RF[k]: CI(x)
            k += 1
        E(f"s_cmp_eq_u32 s{S_FMAX}, 0\ns_cbranch_scc1 {n}_qf{tag}")
        e1, _ = finalize_linear(E.items)
        out.extend(e1)
        c1, _ = finalize_linear(CI.items); out.extend(c1)
        out(f"s_branch {n}_qg{tag}")
        out.label(f"{n}_qf{tag}")
        c2, _ = finalize_linear(C.items); out.extend(c2)
        out.label(f"{n}_qg{tag}")
        out(f"s_mov_b32 s{S_FMAX}, 0\ns_waitcnt lgkmcnt(0)\ns_barrier")
        return out

    def lq(self):
        L = V_LANE
        P = Prog()
        P(f"""
        v_lshlrev_b32 v2, 4, v{L}
        v_add_u32 v2, {QX}, v2
        s_lshl_b32 s39, s{S_QH}, 14
        v_add_u32 v3, s39, v2
        """)
        for t in range(4):
            for jp in range(4):
                P(f"ds_read_b128 {rng('a', q_frag(t, jp))}, v3 offset:{t*4096 + jp*1024}")
        for jp in range(4):
            P(f"ds_read_b128 {rng('a', q_frag(4, jp))}, v2 offset:{8*4096 + jp*1024}")
        P("s_waitcnt lgkmcnt(0)")
        it, _ = finalize_linear(P.items)
        o = Prog(); o.extend(it)
        return o

    def s_mfmas(self, unit, sb):
        slot, fs = unit
        M = []
        for kt in range(2):
            for jp in range(4):
                d = V_S + sb * 8 + kt * 4
                c = rng('v', V_NEGM + slot * 4) if jp == 0 else rng('v', d)
                M.append(f"v_mfma_f32_16x16x32_bf16 {rng('v', d)}, {rng('v', V_KF[fs] + (kt*4+jp)*4)}, {rng('a', q_frag(slot, jp))}, {c}")
        return M
    def pv_mfmas(self, unit, pb):
        slot, fs = unit
        M = []
        p = rng('v', V_P + pb * 4)
        for jl in range(8):
            M.append(f"v_mfma_f32_16x16x32_bf16 {rng('a', acc_o(slot, jl))}, {rng('v', V_VF[fs] + jl*4)}, {p}, {rng('a', acc_o(slot, jl))}")
        M.append(f"v_mfma_f32_16x16x32_bf16 {rng('v', V_L + slot*4)}, {rng('v', V_ONES)}, {p}, {rng('v', V_L + slot*4)}")
        return M
    def max_ops(self, unit, sb):
        slot, fs = unit
        s = V_S + sb * 8
        return [[f"v_max3_f32 v{V_MX}, v{s}, v{s+1}, v{s+2}"],
                [f"v_max3_f32 v{V_MX}, v{V_MX}, v{s+3}, v{s+4}"],
                [f"v_max3_f32 v{V_MX}, v{V_MX}, v{s+5}, v{s+6}"],
                [f"v_max_f32 v{V_MX}, v{V_MX}, v{s+7}"],
                [f"v_cmp_lt_f32 vcc, s{S_T+slot}, v{V_MX}"]]
    def check_ops(self, unit, sb):
        slot, fs = unit
        s = V_S + sb * 8
        self.uid += 1
        u = self.uid
        lab_r, lab_b = f"{self.name}_rare{u}", f"{self.name}_back{u}"
        R = Prog()
        R.label(lab_r)
        R(f"""
        s_nop 7
        v_mov_b32 v{V_T1}, v{V_MX}
        s_nop 1
        v_permlane16_swap_b32 v{V_MX}, v{V_T1}
        s_nop 1
        v_max_f32 v{V_MX}, v{V_MX}, v{V_T1}
        v_mov_b32 v{V_T1}, v{V_MX}
        s_nop 1
        v_permlane32_swap_b32 v{V_MX}, v{V_T1}
        s_nop 1
        v_max_f32 v{V_MX}, v{V_MX}, v{V_T1}
        s_ashr_i32 s{S_FL}, s{S_T+slot}, 31
        s_and_b32 s{S_FL}, s{S_FL}, 0xff800000
        s_mov_b32 s{S_T+slot}, 0x41000000
        v_max_f32 v{V_MX}, s{S_FL}, v{V_MX}
        """)
        for r in range(8): R(f"v_sub_f32 v{s+r}, v{s+r}, v{V_MX}")
        for r in range(4): R(f"v_sub_f32 v{V_NEGM+slot*4+r}, v{V_NEGM+slot*4+r}, v{V_MX}")
        R(f"s_cmp_lg_u32 s{S_FL}, 0\ns_cbranch_scc1 {lab_b}")
        R(f"v_sub_f32 v{V_T1}, 0, v{V_MX}")
        R(f"v_exp_f32 v{V_T1}, v{V_T1}")
        R("s_nop 1")
        for r in range(4): R(f"v_mul_f32 v{V_L+slot*4+r}, v{V_L+slot*4+r}, v{V_T1}")
        for r in range(0, 32, 2):
            a = A_O + slot * 32 + r
            R(f"v_accvgpr_read_b32 v{V_T2}, a{a}\nv_accvgpr_read_b32 v{V_T3}, a{a+1}\nv_mul_f32 v{V_T2}, v{V_T2}, v{V_T1}\nv_mul_f32 v{V_T3}, v{V_T3}, v{V_T1}\nv_accvgpr_write_b32 a{a}, v{V_T2}\nv_accvgpr_write_b32 a{a+1}, v{V_T3}")
        R("s_nop 2")
        R(f"s_branch {lab_b}")
        self.rare.append(R)
        return [f"s_cbranch_vccnz {lab_r}", f"{lab_b}:"]
    def exp_ops(self, unit, sb, pb):
        s = V_S + sb * 8
        p = V_P + pb * 4
        return [[f"v_exp_f32 v{s}, v{s}"], [f"v_exp_f32 v{s+1}, v{s+1}"], [f"v_exp_f32 v{s+2}, v{s+2}"],
                [f"v_cvt_pk_bf16_f32 v{p}, v{s}, v{s+1}"],
                [f"v_exp_f32 v{s+3}, v{s+3}"], [f"v_exp_f32 v{s+4}, v{s+4}"],
                [f"v_cvt_pk_bf16_f32 v{p+1}, v{s+2}, v{s+3}"],
                [f"v_exp_f32 v{s+5}, v{s+5}"], [f"v_exp_f32 v{s+6}, v{s+6}"],
                [f"v_cvt_pk_bf16_f32 v{p+2}, v{s+4}, v{s+5}"],
                [f"v_exp_f32 v{s+7}, v{s+7}"],
                [f"v_cvt_pk_bf16_f32 v{p+3}, v{s+6}, v{s+7}"]]
    def kv_reads(self, fs, which):
        G = []
        if which == 'K':
            for kt in range(2):
                for jp in range(4):
                    G.append([f"ds_read_b128 {rng('v', V_KF[fs] + (kt*4+jp)*4)}, v{V_KA+jp} offset:{kt*4096}"])
        else:
            for jl in range(8):
                a = V_VF[fs] + jl * 4
                ml, h = jl >> 1, jl & 1
                va = V_VA if fs == 'A' else V_VA2
                G.append([f"ds_read_b64_tr_b16 v[{a}:{a+1}], v{va+ml} offset:{8*h}"])
                G.append([f"ds_read_b64_tr_b16 v[{a+2}:{a+3}], v{va+ml} offset:{8*h+4096}"])
        return G
    def kv_addr(self, fs):
        va = V_VA if fs == 'A' else V_VA2
        G = [[f"v_add_u32 v{V_KA+j}, s{S_RSLOT}, v{V_KPAT+j}"] for j in range(4)]
        G += [[f"v_add_u32 v{va+j}, s{S_RSLOT}, v{V_VPAT+j}"] for j in range(4)]
        G.append([f"s_add_u32 s{S_RSLOT}, s{S_RSLOT}, {SLOT}", f"s_cmp_eq_u32 s{S_RSLOT}, {3*SLOT}", f"s_cselect_b32 s{S_RSLOT}, 0, s{S_RSLOT}"])
        return G

    def units(self, qh):
        if qh == 0: return [(0,'A'),(1,'A'),(2,'A'),(3,'A'),(4,'A'),(0,'B'),(1,'B'),(2,'B'),(3,'B')]
        return [(0,'A'),(1,'A'),(2,'A'),(3,'A'),(0,'B'),(1,'B'),(2,'B'),(3,'B'),(4,'B')]

    def attn_body(self, qh, last):
        U = self.units(qh)
        B = Prog()
        RG = self.ring_groups()
        for g in range(9):
            if g in (0, 4):
                B("s_waitcnt vmcnt(8) lgkmcnt(0)")
                if not self.x_nobar: B("s_barrier")
            M = []
            if not (last and g + 3 >= 9):
                M += self.s_mfmas(U[(g + 3) % 9], g % 3)
            M += self.pv_mfmas(U[g], g % 3)
            V = []
            head = []
            if not (last and g + 1 >= 9):
                head = self.check_ops(U[(g + 1) % 9], (g + 1) % 3)
                ex = self.exp_ops(U[(g + 1) % 9], (g + 1) % 3, (g + 1) % 3)
            else: ex = []
            mx = self.max_ops(U[(g + 2) % 9], (g + 2) % 3) if not (last and g + 2 >= 9) else []
            V = []
            ei = mi = 0
            pat = "eeemcemecemecemcm" if False else "eemeemeemeemm"
            order = []
            for i in range(17):
                if i in (1, 3, 5, 7, 9) and mi < len(mx): order.append(mx[mi]); mi += 1
                elif ei < len(ex): order.append(ex[ei]); ei += 1
                elif mi < len(mx): order.append(mx[mi]); mi += 1
            V = order
            PF = []
            if last and self.pf_wo and self.x_nomax == self.fast and g in (0, 4):
                self.uid += 1
                lab = f"{self.name}_npf{self.uid}"
                pf = [f"s_cmp_eq_u32 s{S_ITEM}, 0", f"s_cbranch_scc1 {lab}"]
                pf += [f"s_lshl_b32 s39, s{S_W}, 14", f"s_add_u32 s39, s39, {8192 if g == 4 else 0}",
                       f"buffer_load_dword v{V_PFD}, v19, s[76:79], s39 offen"]
                if self.op_label and g == 0:
                    pf += [f"s_cmp_lg_u32 s{S_W}, 0", f"s_cbranch_scc1 {lab}",
                           f"s_getpc_b64 s[60:61]", f"{lab}_pc:",
                           f"s_add_u32 s60, s60, {self.op_label}-{lab}_pc", f"s_addc_u32 s61, s61, 0",
                           f"global_load_dword v{V_PFD}, v19, s[60:61]", f"global_load_dword v{V_PFD}, v19, s[60:61] offset:0"]
                pf.append(f"{lab}:")
                PF = [pf]
            KA, VA_ = (self.kv_reads('A', 'K'), self.kv_reads('A', 'V')) if not last else ([], [])
            KB, VB_ = self.kv_reads('B', 'K'), self.kv_reads('B', 'V')
            ADA = self.kv_addr('A') if not last else []
            ADB = self.kv_addr('B') if not last else []
            D, adv = self.ring_instrs()
            H = []
            Lt = []
            if g == 0: H = KB + PF + D[0:1]
            if g == 1: H = VB_[:6] + D[1:4];
            if g == 2: H = VB_[6:11] + D[4:6]; Lt = ADA[:4]
            if g == 3: H = D[6:8] + VB_[11:]; Lt = ADA[4:] + [adv]
            if g == 4: H = KA + PF + D[0:1]
            if g == 5: H = VA_[:5] + D[1:4]
            if g == 6: H = VA_[5:10] + D[4:6]; Lt = ADB[:4]
            if g == 7: H = D[6:8] + VA_[10:]; Lt = ADB[4:8]
            if g == 8: Lt = ADB[8:] + [adv]
            if self.x_nodma: H = [x for x in H if not any('lds' in y and 'buffer_load' in y for y in x)]
            if self.x_nord: H = [x for x in H if not any('ds_read' in y for y in x)]
            if self.x_nosm: V = []; head = []
            if self.x_nobr: head = []
            if self.x_noX: H = []; Lt = []
            if self.x_nomax: V = [[] if (x[0].startswith('v_max') or x[0].startswith('v_cmp')) else x for x in V]; head = []
            n = len(M)
            fill = [list(V[i]) if i < len(V) else [] for i in range(n)]
            light = [i for i in range(n) if not (fill[i] and fill[i][0].startswith('v_exp'))]
            pos = light[:]
            if len(H) > len(pos):
                extra_pos = [i for i in range(n) if i not in pos][:len(H) - len(pos)]
                pos = sorted(pos + extra_pos)
            if H:
                k = len(pos)
                chosen = [pos[(j * k) // len(H)] for j in range(len(H))]
                for j, h in enumerate(H):
                    h = list(h)
                    if ' m0,' in h[0] and chosen[j] > 0 and not any('lds' in y and 'buffer_load' in y for y in fill[chosen[j] - 1]):
                        fill[chosen[j] - 1].append(h[0]); h = h[1:]
                    fill[chosen[j]] += h
            if Lt:
                has_heavy = lambda i: any(('ds_read' in y or 'buffer_load' in y) for y in fill[i])
                last_dma = max([i for i in range(n) if any('buffer_load' in y for y in fill[i])] + [-1])
                free = [i for i in light if not has_heavy(i)] + [i for i in range(n) if i not in light]
                used = set()
                for l_ in Lt:
                    need_after = last_dma if any(f"s{S_GOFF}," in y for y in l_) else -1
                    cand = [i for i in free if i not in used and i > need_after] or [n - 1]
                    if any(f"s{S_RSLOT}, s{S_RSLOT}" in y for y in l_):
                        la = max([i for i in range(n) if any(f"s{S_RSLOT}, v" in y for y in fill[i])] + [-1])
                        cand = [i for i in range(n) if i >= la]
                        cand = [max(cand[0], 0)]
                    i = cand[0]; used.add(i)
                    fill[i] += l_
            extra = V[n:]
            for x in head: B(x)
            for x in interleave(M, fill + extra): B(x)
        return B

    def attention(self, qh, tag):
        n = self.name
        U = self.units(qh)
        P = Prog()
        for r in range(160): P(f"v_accvgpr_write_b32 a{A_O + r}, 0")
        for r in range(20): P(f"v_mov_b32 v{V_L + r}, 0\nv_mov_b32 v{V_NEGM + r}, 0")
        for s in range(5): P(f"s_mov_b32 s{S_T+s}, 0xff800000")
        P("s_waitcnt vmcnt(16)\ns_barrier")
        for g in self.kv_addr('A') + self.kv_reads('A', 'K') + self.kv_reads('A', 'V') + self.kv_addr('B'):
            for x in g: P(x)
        for x in self.s_mfmas(U[0], 0) + self.s_mfmas(U[1], 1) + self.s_mfmas(U[2], 2): P(x)
        if not self.x_nomax:
            for g in self.max_ops(U[0], 0):
                for x in g: P(x)
            P("s_nop 3")
            for x in self.check_ops(U[0], 0): P(x)
        for g in self.exp_ops(U[0], 0, 0) + (self.max_ops(U[1], 1) if not self.x_nomax else []):
            for x in g: P(x)
        P(f"s_waitcnt lgkmcnt(0)\ns_mov_b32 s{S_CNT}, 7")
        pre, _ = finalize_linear(P.items)
        out = Prog(); out.extend(pre)
        body, _ = finalize_loop(self.attn_body(qh, False).items)
        if self.stamps:
            self.stamp(out, 5)
        out.label(f"{n}_at{tag}")
        out.extend(body)
        out(f"s_sub_u32 s{S_CNT}, s{S_CNT}, 1\ns_cmp_lg_u32 s{S_CNT}, 0\ns_cbranch_scc1 {n}_at{tag}")
        if self.stamps:
            self.stamp(out, 6)
        lastb = self.attn_body(qh, True)
        l1, f = auto_lgkm(body, None)
        l2, _ = auto_lgkm(lastb.items, f)
        l3 = fix_hazards(l2, wrap=body)
        out.extend(l3)
        return out

    def combine(self, qh):
        L = V_LANE
        E = Prog()
        MLO = 32768
        E("s_nop 7\ns_waitcnt lgkmcnt(0)\ns_barrier")
        E(f"""s_mov_b64 s[72:73], 0
        s_mov_b32 s{S_XRB}, 0x21800000
        v_mov_b32 v{V_T3}, 0x5d800000
        v_mov_b32 v{V_P}, 0
        v_mov_b32 v{V_P+1}, 0
        v_mov_b32 v{V_P+2}, 0
        v_mov_b32 v{V_P+3}, 0""")
        E(f"""
        v_lshlrev_b32 v2, 2, v{L}
        v_add_u32 v2, {STG + MLO}, v2
        s_mul_i32 s39, s{S_W}, 2560
        v_add_u32 v3, s39, v2
        v_lshlrev_b32 v8, 4, v{L}
        v_add_u32 v8, {STG}, v8
        s_lshl_b32 s39, s{S_W}, 13
        s_lshl_b32 s40, s{S_HH}, 12
        s_add_u32 s{S_TMP2}, s39, s40
        v_add_u32 v5, s{S_TMP2}, v8
        s_xor_b32 s{S_TMP2}, s{S_TMP2}, 4096
        v_add_u32 v6, s{S_TMP2}, v8
        """)
        for s_ in range(5):
            E(f"ds_write_b32 v3, v{V_NEGM + s_*4} offset:{s_*512}")
            E(f"ds_write_b32 v3, v{V_L + s_*4} offset:{s_*512 + 256}")
        for jl in range(8):
            E(f"ds_write_b128 v{5 + (jl >> 2)}, {rng('a', acc_o(4, jl))} offset:{(jl & 3)*1024}")
        E("s_waitcnt lgkmcnt(0)\ns_barrier")
        E(f"""
        s_xor_b32 s39, s{S_W}, 2
        s_mul_i32 s39, s39, 2560
        v_add_u32 v4, s39, v2
        s_lshl_b32 s39, s{S_W}, 11
        v_add_u32 v5, s39, v8
        """)
        for s_ in range(4):
            E(f"ds_read_b32 v{120 + 2*s_}, v4 offset:{s_*512}")
            E(f"ds_read_b32 v{121 + 2*s_}, v4 offset:{s_*512 + 256}")
        for ww in range(4):
            E(f"ds_read_b32 v{128 + 2*ww}, v2 offset:{ww*2560 + 4*512}")
            E(f"ds_read_b32 v{129 + 2*ww}, v2 offset:{ww*2560 + 4*512 + 256}")
        for ww in range(4):
            for x in range(2):
                E(f"ds_read_b128 {rng('v', 160 + (ww*2+x)*4)}, v5 offset:{ww*8192 + x*1024}")
        for s_ in range(4):
            nm, l_ = V_NEGM + 4 * s_, V_L + 4 * s_
            no, lo = 120 + 2 * s_, 121 + 2 * s_
            E(f"""
            v_min_f32 v2, v{nm}, v{no}
            v_sub_f32 v6, v2, v{nm}
            v_sub_f32 v7, v2, v{no}
            v_exp_f32 v6, v6
            v_exp_f32 v7, v7
            s_nop 0
            v_mul_f32 v9, v6, v{l_}
            v_fma_f32 v9, v7, v{lo}, v9
            v_cmp_nge_f32 s[60:61], v9, s{S_XRB}
            v_cmp_nle_f32 vcc, v9, v{V_T3}
            v_rcp_f32 v9, v9
            s_or_b64 s[72:73], s[72:73], s[60:61]
            s_or_b64 s[72:73], s[72:73], vcc
            s_nop 0
            v_mul_f32 v{140+2*s_}, v6, v9
            v_mul_f32 v{141+2*s_}, v7, v9
            """)
        E(f"""
        v_min_f32 v2, v128, v130
        v_min_f32 v6, v132, v134
        v_min_f32 v2, v2, v6
        """)
        for ww in range(4):
            E(f"v_sub_f32 v{148+ww}, v2, v{128+2*ww}\nv_exp_f32 v{148+ww}, v{148+ww}")
        E(f"""
        s_nop 0
        v_mul_f32 v9, v148, v129
        v_fma_f32 v9, v149, v131, v9
        v_fma_f32 v9, v150, v133, v9
        v_fma_f32 v9, v151, v135, v9
        v_cmp_nge_f32 s[60:61], v9, s{S_XRB}
        v_cmp_nle_f32 vcc, v9, v{V_T3}
        v_rcp_f32 v9, v9
        s_or_b64 s[72:73], s[72:73], s[60:61]
        s_or_b64 s[72:73], s[72:73], vcc
        s_nop 0
        """)
        for ww in range(4): E(f"v_mul_f32 v{148+ww}, v{148+ww}, v9")
        for r in range(8):
            E(f"v_mul_f32 v{192+r}, v{160+r}, v148")
            for ww in range(1, 4):
                E(f"v_fma_f32 v{192+r}, v{160+ww*8+r}, v{148+ww}, v{192+r}")
        for r in range(4):
            E(f"v_pk_fma_f32 v[{V_P+2}:{V_P+3}], v[{192+2*r}:{193+2*r}], v[{V_P}:{V_P+1}], v[{V_P+2}:{V_P+3}]")
            E(f"v_cvt_pk_bf16_f32 v{200+r}, v{192+2*r}, v{193+2*r}")
        E(f"""
        v_and_b32 v6, 15, v{L}
        v_lshlrev_b32 v6, 8, v6
        v_lshrrev_b32 v7, 4, v{L}
        v_lshlrev_b32 v7, 4, v7
        v_add_u32 v7, v6, v7
        s_mul_i32 s{S_XOFF}, s{S_ITEM}, 36864
        s_lshl_b32 s39, s{S_W}, 6
        s_add_u32 s39, s39, {128*256}
        s_add_u32 s39, s39, s{S_XOFF}
        buffer_store_dwordx4 {rng('v', 200)}, v7, s[20:23], s39 offen
        s_lshl_b32 s39, s{S_QH}, 14
        s_lshl_b32 s40, s{S_HH}, 7
        s_add_u32 s39, s39, s40
        s_add_u32 s{S_XOFF}, s{S_XOFF}, s39
        """)
        E("s_waitcnt lgkmcnt(0)\ns_barrier")
        E(f"""
        s_lshl_b32 s39, s{S_W}, 14
        v_add_u32 v3, s39, v8
        s_xor_b32 s39, s39, {2 << 14}
        v_add_u32 v4, s39, v8
        """)
        for s_ in range(4):
            for x in range(4):
                E(f"ds_write_b128 v3, {rng('a', acc_o(s_, 4 + x))} offset:{(s_*4+x)*1024}")
        E("s_waitcnt lgkmcnt(0)\ns_barrier")
        for s_ in range(4):
            base = 152 + (s_ % 2) * 48
            for x in range(4):
                E(f"ds_read_b128 {rng('v', base + 4*x)}, v4 offset:{(s_*4+x)*1024}")
            for r in range(16):
                E(f"v_accvgpr_read_b32 v{base+16+r}, a{acc_o(s_, 0) + r}")
            E(f"v_mov_b32 v{V_P+4}, v{140+2*s_}\nv_mov_b32 v{V_P+5}, v{140+2*s_}\nv_mov_b32 v{V_P+6}, v{141+2*s_}\nv_mov_b32 v{V_P+7}, v{141+2*s_}")
            for r in range(0, 16, 2):
                E(f"v_pk_mul_f32 v[{base+16+r}:{base+17+r}], v[{base+16+r}:{base+17+r}], v[{V_P+4}:{V_P+5}]")
            for r in range(0, 16, 2):
                E(f"v_pk_fma_f32 v[{base+16+r}:{base+17+r}], v[{base+r}:{base+r+1}], v[{V_P+6}:{V_P+7}], v[{base+16+r}:{base+17+r}]")
            for r in range(8):
                E(f"v_pk_fma_f32 v[{V_P+2}:{V_P+3}], v[{base+16+2*r}:{base+17+2*r}], v[{V_P}:{V_P+1}], v[{V_P+2}:{V_P+3}]")
                E(f"v_cvt_pk_bf16_f32 v{base+32+r}, v{base+16+2*r}, v{base+17+2*r}")
            E(f"s_add_u32 s39, s{S_XOFF}, {s_*4096}")
            for p in range(2):
                E(f"buffer_store_dwordx4 {rng('v', base+32+4*p)}, v7, s[20:23], s39 offen offset:{64*p}")
        E(f"""
        v_cmp_u_f32 vcc, v{V_P+2}, v{V_P+3}
        s_nop 1
        s_or_b64 s[72:73], s[72:73], vcc
        s_cmp_lg_u64 s[72:73], 0
        s_cselect_b32 s39, 1, {1 if self.force_bad else 0}
        v_mov_b32 v3, s39
        v_lshlrev_b32 v4, 2, v{L}
        s_waitcnt lgkmcnt(0)
        s_barrier
        v_mov_b32 v5, {STG}
        s_lshl_b32 s40, s{S_W}, 2
        v_add_u32 v6, s40, v5
        ds_write_b32 v6, v3
        s_waitcnt lgkmcnt(0)
        s_barrier
        ds_read_b128 v[120:123], v5
        s_waitcnt lgkmcnt(0)
        v_or_b32 v120, v120, v121
        v_or_b32 v122, v122, v123
        v_or_b32 v120, v120, v122
        s_nop 0
        v_readfirstlane_b32 s39, v120
        s_xor_b32 s40, s{S_SAFE}, 1
        s_nop 1
        s_and_b32 s39, s39, s40
        s_lshl_b32 s39, s39, s{S_ITEM}
        s_or_b32 s{S_BAD}, s{S_BAD}, s39
        s_barrier
        """)
        it, _ = finalize_linear(E.items)
        o = Prog(); o.extend(it)
        return o

    def stamp(self, out, idx_expr, sel=None):
        if not self.stamps: return
        base = idx_expr
        u = self.nst; self.nst += 1
        out(f"""s_waitcnt lgkmcnt(0)
        {'s_memrealtime' if self.dbg_stamps is not None else 's_memtime'} s[72:73]
        s_waitcnt lgkmcnt(0)
        s_cmp_eq_u32 s{sel if sel is not None else S_ITEM}, 0
        s_cselect_b32 s{80+base}, s72, s{80+base}
        s_cselect_b32 s{88+base}, s{88+base}, s72""")

    def build(self):
        n = self.name
        out = Prog()
        st, _ = finalize_linear(self.setup().items)
        out.extend(st)
        out.label(f"{n}_qpL")
        self.stamp(out, 0, S_QI)
        out.extend(self.qp('x'))
        self.stamp(out, 1, S_QI)
        out(f"s_xor_b32 s39, s{S_LATE}, 1\ns_or_b32 s39, s39, s{S_QI}\ns_or_b32 s39, s39, s{S_SAFE}\ns_cmp_lg_u32 s39, 0\ns_cbranch_scc1 {n}_nolate0")
        out.extend(self.lq())
        out(f"s_mov_b32 s{S_QI}, 1\ns_mov_b32 s{S_FMAX}, 1\ns_branch {n}_qpL")
        out.label(f"{n}_nolate0")
        out(f"s_xor_b32 s39, s{S_SAFE}, 1\ns_and_b32 s39, s39, s{S_LATE}\ns_cmp_lg_u32 s39, 0\ns_cbranch_scc1 {n}_att")
        out.extend(self.lq())
        out.label(f"{n}_att")
        self.stamp(out, 2)
        out(f"s_cmp_lg_u32 s{S_SAFE}, 0\ns_cbranch_scc1 {n}_safe")
        out(f"s_cmp_lg_u32 s{S_QH}, 0\ns_cbranch_scc1 {n}_q1")
        self.x_nomax = self.fast
        out.extend(self.attention(0, 'a'))
        out(f"s_branch {n}_cmb")
        out.label(f"{n}_q1")
        out.extend(self.attention(1, 'b'))
        out(f"s_branch {n}_cmb")
        out.label(f"{n}_safe")
        self.x_nomax = False
        st, self.stamps = self.stamps, False
        out(f"s_cmp_lg_u32 s{S_QH}, 0\ns_cbranch_scc1 {n}_sq1")
        out.extend(self.attention(0, 'c'))
        out(f"s_branch {n}_cmb")
        out.label(f"{n}_sq1")
        out.extend(self.attention(1, 'd'))
        self.stamps = st
        out.label(f"{n}_cmb")
        self.stamp(out, 3)
        out(f"s_xor_b32 s39, s{S_LATE}, 1\ns_or_b32 s39, s39, s{S_ITEM}\ns_or_b32 s39, s39, s{S_SAFE}\ns_cmp_lg_u32 s39, 0\ns_cbranch_scc1 {n}_nolq")
        out.extend(self.lq())
        out.label(f"{n}_nolq")
        out.extend(self.combine(0))
        self.stamp(out, 4)
        out(f"s_cmp_lg_u32 s{S_SAFE}, 0\ns_cbranch_scc1 {n}_redo")
        out(f"s_add_u32 s{S_ITEM}, s{S_ITEM}, 1\ns_cmp_ge_u32 s{S_ITEM}, 2\ns_cbranch_scc1 {n}_redo")
        out(f"s_cmp_lg_u32 s{S_LATE}, 0\ns_cbranch_scc1 {n}_att")
        out(f"s_mov_b32 s{S_QI}, 1\ns_mov_b32 s{S_FMAX}, 1\ns_mov_b32 s{S_GOFF}, {16*16384}\ns_mov_b32 s10, s{S_NREC2}\ns_branch {n}_qpL")
        out.label(f"{n}_redo")
        out(f"s_cmp_eq_u32 s{S_BAD}, 0\ns_cbranch_scc1 {n}_fin")
        out(f"""s_and_b32 s39, s{S_BAD}, 1
        s_xor_b32 s{S_ITEM}, s39, 1
        s_lshl_b32 s39, 1, s{S_ITEM}
        s_andn2_b32 s{S_BAD}, s{S_BAD}, s39
        s_mov_b32 s{S_QI}, s{S_ITEM}
        s_mov_b32 s{S_SAFE}, 1
        s_mov_b32 s{S_FMAX}, 1
        s_lshl_b32 s{S_GOFF}, s{S_ITEM}, 18
        s_mov_b32 s10, s{S_NREC2}
        s_mov_b32 s{S_DSLOT}, s{S_DBASE}
        s_mov_b32 s{S_RSLOT}, 0
        s_branch {n}_qpL""")
        out.label(f"{n}_fin")
        if self.stamps and self.dbg_stamps is not None:
            out(f"""s_cmp_lg_u32 s2, {self.dbg_stamps}
            s_cbranch_scc1 {n}_done
            s_cmp_lg_u32 s{S_W}, 0
            s_cbranch_scc1 {n}_done
            s_memrealtime s[72:73]
            s_waitcnt lgkmcnt(0)
            s_mov_b32 s95, s72
            s_add_u32 s68, s68, {64 << 20}
            s_addc_u32 s69, s69, 0
            v_mov_b32 v2, 0""")
            for i in range(16):
                out(f"v_mov_b32 v3, s{80+i}\nglobal_store_dword v2, v3, s[68:69] offset:{4*i}")
        elif self.stamps:
            out(f"""s_lshl_b32 s39, s2, 2
            s_add_u32 s39, s39, s{S_W}
            s_lshl_b32 s39, s39, 6
            s_add_u32 s39, s39, {64 << 20}
            s_add_u32 s68, s68, s39
            s_addc_u32 s69, s69, 0
            v_mov_b32 v2, 0""")
            for i in range(16):
                out(f"v_mov_b32 v3, s{80+i}\nglobal_store_dword v2, v3, s[68:69] offset:{4*i}")
        out.label(f"{n}_done")
        out("s_endpgm")
        labs = {it.text for it in out.items if it.kind == 'label'}
        for r in self.rare:
            back = r.items[-1].ops[0] + ':'
            if back in labs: out.extend(r)
        return kernel_text(n, out.text(), vgpr=512, sgpr=102, acc=256), LDS_TOTAL

if __name__ == '__main__':
    import sys
    variants = [('fa_kernel', dict()), ('fa_mix_kernel', dict(order='mix', late_bit=6)), ('fa_late_kernel', dict(order='late')), ('fa_mix3_kernel', dict(order='mix', late_bit=3)),
                ('fa_mixsafe_kernel', dict(order='mix', late_bit=6, fast=False)), ('fa_forcebad_kernel', dict(order='mix', late_bit=6, force_bad=True))]
    hdr = ''; body = ''
    for nm, kw in variants:
        txt, lds = FA(name=nm, stamps=True, **kw).build()
        hdr += f"; @launch kernel={nm} grid=(256,1,1) block=(256,1,1) lds={lds}\n"
        body += txt
    open('fa.s', 'w').write(hdr + '.amdgcn_target "amdgcn-amd-amdhsa--gfx950"\n.text\n' + body)
```

```python
import sys
sys.path.insert(0, 'gen')
import fa as fa_mod, oproj2
def make(path, order, fa_kw=None, op_kw=None):
    f = fa_mod.FA(name='fa_kernel', **(fa_kw or {}))
    t1, l1 = f.build()
    t2, l2 = oproj2.gen_oproj('oproj_kernel', **(op_kw or {}))
    hdr = open('concat_heads__mha_block_cached__gqa_block_cached__near_ridge.s.ref').read().split('; Override')[0]
    for k in order:
        if k == 'f': hdr += f"; @launch kernel=fa_kernel grid=(256,1,1) block=(256,1,1) lds={l1}\n"
        else: hdr += f"; @launch kernel=oproj_kernel grid=(256,1,1) block=(256,1,1) lds={l2}\n"
    open(path, 'w').write(hdr + '.amdgcn_target "amdgcn-amd-amdhsa--gfx950"\n.text\n' + t1 + t2)
M = 'cdna_kernels/'
base = dict(order='mix', late_bit=6, pf_wo=True, op_label='oproj_kernel', stamps=True)
make(M + 'e_a.s', 'fo', fa_kw=dict(base, dbg_stamps=0), op_kw=dict(pf=False, stamps=True, dbg=True))
make(M + 'e_b.s', 'fo', fa_kw=dict(base, dbg_stamps=100), op_kw=dict(pf=False, stamps=True, dbg=True))
```

```python
from asmlib import *

O_WS_OFF = 0
STG = 53248
WOFF = 36864

def interleave(M, fillers, start=0, per=1):
    out = []
    k = 0
    for i, m in enumerate(M):
        out.append(m)
        if i >= start:
            for _ in range(per):
                if k < len(fillers):
                    out += fillers[k]; k += 1
    while k < len(fillers):
        out += fillers[k]; k += 1
    return out

def gen_oproj(name='oproj_kernel', pf_dist=6, no_mfma=False, no_dma=False, pf=True, pf_flags='', o_off=O_WS_OFF, contig=True, same=0, no_reads=False, pf_o=True, stamps=False, dbg=False):
    ORS = 8 if contig else 13
    OSTG = 36864 if contig else 256
    OM = 1024 if contig else 32768
    OOBO = 144*8192
    RT = 's_memrealtime' if dbg else 's_memtime'
    P = Prog()
    P(f"""
    s_cmp_ge_u32 s2, 256
    s_cbranch_scc1 {name}_done
    s_load_dwordx2 s[4:5], s[0:1], 96
    s_load_dwordx2 s[6:7], s[0:1], 80
    s_load_dwordx2 s[8:9], s[0:1], 32
    s_load_dwordx2 s[10:11], s[0:1], 72
    v_lshrrev_b32 v1, 6, v0
    v_and_b32 v2, 63, v0
    v_readfirstlane_b32 s24, v1
    s_and_b32 s32, s2, 7
    s_lshr_b32 s33, s2, 3
    s_lshr_b32 s25, s32, 2
    s_and_b32 s34, s32, 1
    s_lshl_b32 s34, s34, 2
    s_and_b32 s41, s33, 3
    s_add_u32 s26, s34, s41
    s_lshr_b32 s34, s32, 1
    s_and_b32 s34, s34, 1
    s_lshl_b32 s34, s34, 3
    s_lshr_b32 s42, s33, 2
    s_add_u32 s27, s34, s42
    """)
    if stamps: P(f"s_waitcnt lgkmcnt(0)\n{RT} s[50:51]\ns_waitcnt lgkmcnt(0)\ns_mov_b32 s60, s50")
    if stamps and not dbg: P("s_getreg_b32 s64, hwreg(HW_REG_XCC_ID)")
    if same == 1: P("s_mov_b32 s25, 0\ns_mov_b32 s26, 0\ns_mov_b32 s27, 0")
    if same == 2: P("s_mov_b32 s25, 0\ns_mov_b32 s26, s41\ns_mov_b32 s27, s42")
    P("""
    v_lshrrev_b32 v3, 4, v2
    v_and_b32 v4, 15, v2
    v_xor_b32 v5, v4, v3
    v_lshlrev_b32 v5, 4, v5
    v_lshlrev_b32 v6, ORS_, v3
    v_add_u32 v24, v5, v6
    v_xor_b32 v25, 64, v24
    v_xor_b32 v26, 128, v24
    v_xor_b32 v27, 192, v24
    v_lshrrev_b32 v3, 3, v2
    v_and_b32 v4, 7, v2
    v_lshrrev_b32 v5, 4, v2
    v_and_b32 v5, 1, v5
    v_lshlrev_b32 v5, 1, v5
    v_xor_b32 v4, v4, v5
    v_lshlrev_b32 v4, 4, v4
    v_lshlrev_b32 v3, 11, v3
    v_add_u32 v14, v3, v4
    v_xor_b32 v15, 64, v14
    v_and_b32 v3, 15, v2
    v_lshrrev_b32 v4, 4, v2
    s_lshl_b32 s32, s24, 2
    v_add_u32 v5, s32, v4
    v_xor_b32 v5, v5, v3
    v_lshlrev_b32 v5, 4, v5
    v_lshlrev_b32 v6, 8, v3
    v_add_u32 v16, v5, v6
    v_lshrrev_b32 v3, 2, v2
    v_and_b32 v3, 3, v3
    v_and_b32 v5, 3, v2
    v_lshlrev_b32 v6, 3, v4
    v_add_u32 v6, v6, v3
    s_lshl_b32 s32, s24, 5
    v_add_u32 v6, s32, v6
    v_lshlrev_b32 v6, 7, v6
    v_lshrrev_b32 v7, 1, v3
    v_and_b32 v8, 1, v4
    v_lshlrev_b32 v8, 1, v8
    v_add_u32 v7, v7, v8
    v_lshlrev_b32 v7, 5, v7
    v_lshlrev_b32 v5, 3, v5
    v_add_u32 v6, v6, v7
    v_add_u32 v17, v6, v5
    v_xor_b32 v18, 32, v17
    v_xor_b32 v19, 64, v17
    v_xor_b32 v20, 96, v17
    """.replace('ORS_', str(ORS)))
    P(f"""
    s_mul_i32 s32, s42, 36
    v_add_u32 v3, s32, v2
    v_lshrrev_b32 v4, 1, v3
    v_lshlrev_b32 v4, {ORS}, v4
    v_and_b32 v3, 1, v3
    v_lshlrev_b32 v3, 7, v3
    v_add_u32 v21, v3, v4
    v_mov_b32 v5, 0x7f000000
    v_cmp_gt_u32 vcc, 36, v2
    s_nop 1
    v_cndmask_b32 v21, v5, v21, vcc
    s_lshl_b32 s32, s41, 5
    v_add_u32 v3, s32, v2
    v_lshlrev_b32 v22, 11, v3
    v_cmp_gt_u32 vcc, 32, v2
    s_nop 1
    v_cndmask_b32 v22, v5, v22, vcc
    """)
    for r in range(144):
        P(f"v_accvgpr_write_b32 a{r}, 0")
    P("s_waitcnt lgkmcnt(0)")
    P(f"""
    s_lshl_b32 s32, s25, 3
    s_add_u32 s32, s32, s26
    s_mul_i32 s32, s32, {144*8192}
    s_add_u32 s12, s4, s32
    s_addc_u32 s13, s5, 0
    s_add_u32 s12, s12, {o_off}
    s_addc_u32 s13, s13, 0
    s_and_b32 s13, s13, 0xffff
    s_mov_b32 s14, {144*8192}
    s_mov_b32 s15, 0x20000
    s_cmp_eq_u32 s25, 0
    s_cselect_b32 s16, s8, s10
    s_cselect_b32 s17, s9, s11
    s_lshl_b32 s32, s27, 7
    s_add_u32 s16, s16, s32
    s_addc_u32 s17, s17, 0
    s_and_b32 s17, s17, 0xffff
    s_sub_u32 s18, {4096*2048}, s32
    s_mov_b32 s19, 0x20000
    s_mul_i32 s32, s26, {144*4096}
    s_lshl_b32 s33, s25, 11
    s_add_u32 s32, s32, s33
    s_lshl_b32 s33, s27, 7
    s_add_u32 s32, s32, s33
    s_add_u32 s20, s6, s32
    s_addc_u32 s21, s7, 0
    s_and_b32 s21, s21, 0xffff
    s_sub_u32 s22, {8*144*4096}, s32
    s_mov_b32 s23, 0x20000
    """)
    P(f"""
    s_mul_i32 s36, s24, {12*OM}
    s_mul_i32 s37, s24, {6*16384}
    s_mul_i32 s45, s24, {12*1024}
    s_mul_i32 s46, s24, {6*1024}
    s_add_u32 s46, s46, {WOFF}
    s_cmp_eq_u32 s24, 2
    s_cselect_b32 s43, {16*16384}, 0
    s_cselect_b32 s44, {16*1024}, 0
    s_mov_b32 s28, 0
    s_mov_b32 s29, 0
    s_mov_b32 s30, 0
    """)
    def dma_groups():
        L = []
        L.append([f"s_add_u32 s38, s45, s29", f"s_add_u32 s39, s46, s29"])
        for mm in range(12):
            L.append([f"s_add_u32 m0, s38, {mm*1024}",
                      f"s_add_u32 s40, s36, {mm*OM}",
                      f"buffer_load_dwordx4 v{24 + (mm & 3)}, s[12:15], s40 offen lds"])
        for pp in range(6):
            g = [f"s_add_u32 m0, s39, {pp*1024}", f"s_add_u32 s40, s37, {pp*16384}"]
            if pp >= 4:
                g += ["s_sub_u32 m0, m0, s44", "s_sub_u32 s40, s40, s43"]
            g.append(f"buffer_load_dwordx4 v{14 + (pp & 1)}, s[16:19], s40 offen lds")
            L.append(g)
        L.append([f"s_add_u32 s28, s28, 1",
                  f"s_add_u32 s36, s36, {OSTG}",
                  f"s_add_u32 s37, s37, {1<<18}",
                  f"s_add_u32 s29, s29, {STG}",
                  f"s_cmp_eq_u32 s29, {3*STG}",
                  f"s_cselect_b32 s29, 0, s29",
                  f"s_cmp_lt_u32 s28, 32",
                  f"s_cselect_b32 s36, s36, {144*8192}",
                  f"s_cselect_b32 s37, s37, {4096*2048}"])
        return L
    def pf_groups():
        L = []
        if pf_o:
            L.append([f"s_mul_i32 s40, s47, {OSTG}", "s_mov_b32 exec_hi, 0xf", f"buffer_load_dword v23, v21, s[12:15], s40 offen{pf_flags}", "s_mov_b32 exec_hi, -1"])
        L.append([f"s_lshl_b32 s40, s47, 18", "s_mov_b32 exec_hi, 0", f"buffer_load_dword v29, v22, s[16:19], s40 offen{pf_flags}", "s_mov_b32 exec_hi, -1"])
        L.append([f"s_add_u32 s47, s47, 1", f"s_min_u32 s47, s47, 32"])
        return L
    FB = [32, 32 + 52]
    def reads(setk):
        b = FB[setk]
        L = []
        for j in range(4):
            a = b + 36 + 4 * j
            L.append([f"ds_read_b64_tr_b16 v[{a}:{a+1}], v{140+j} offset:{WOFF}"])
            L.append([f"ds_read_b64_tr_b16 v[{a+2}:{a+3}], v{140+j} offset:{WOFF+512}"])
        for t in range(9):
            L.append([f"ds_read_b128 v[{b+4*t}:{b+4*t+3}], v144 offset:{t*4096}"])
        return L
    def read_addr():
        return [[f"v_add_u32 v{140+j}, s30, v{17+j}"] for j in range(4)] + [["v_add_u32 v144, s30, v16"],
               [f"s_add_u32 s30, s30, {STG}", f"s_cmp_eq_u32 s30, {3*STG}", "s_cselect_b32 s30, 0, s30"]]
    def mfmas(setk):
        b = FB[setk]
        L = []
        for t in range(9):
            for j in range(4):
                a = b + 36 + 4 * j
                acc = 16 * t + 4 * j
                L.append(f"v_mfma_f32_16x16x32_bf16 a[{acc}:{acc+3}], v[{a}:{a+3}], v[{b+4*t}:{b+4*t+3}], a[{acc}:{acc+3}]")
        return L
    P(f"s_cmp_eq_u32 s24, 3\ns_cbranch_scc1 {name}_h_pro")
    for st in range(3):
        for g in dma_groups():
            for x in g: P(x)
    P("s_waitcnt vmcnt(36)")
    P(f"s_branch {name}_pro_done")
    P.label(f"{name}_h_pro")
    P("s_mov_b32 s47, 3")
    if pf:
        for st in range(pf_dist):
            for g in pf_groups():
                for x in g: P(x)
    P.label(f"{name}_pro_done")
    P("s_barrier")
    for g in read_addr():
        for x in g: P(x)
    for g in reads(0):
        for x in g: P(x)
    for g in read_addr():
        for x in g: P(x)
    P("s_waitcnt lgkmcnt(0)")
    if stamps: P(f"s_waitcnt lgkmcnt(0)\n{RT} s[50:51]\ns_waitcnt lgkmcnt(0)\ns_mov_b32 s61, s50")
    P("s_mov_b32 s31, 16")
    P(f"s_cmp_eq_u32 s24, 3\ns_cbranch_scc1 {name}_hloop")
    pre, _ = finalize_linear(P.items)
    out = Prog(); out.extend(pre)
    for role in ('stage', 'help'):
        body = Prog()
        for half in range(2):
            cur, nxt = half, 1 - half
            if role == 'stage': body("s_waitcnt vmcnt(18) lgkmcnt(0)")
            else: body("s_waitcnt lgkmcnt(0)")
            body("s_barrier")
            M = mfmas(cur) if not no_mfma else []
            R = reads(nxt) if not no_reads else [['ds_read_b32 v150, v144']]
            if role == 'stage':
                D = dma_groups() if not no_dma else []
                seq = []
                ri = 0
                seq += R[0:4]; ri = 4
                di = 0
                while ri < len(R) or di < len(D):
                    if di < len(D): seq.append(D[di]); di += 1
                    if ri < len(R): seq.append(R[ri]); ri += 1
                seq = seq[:30] + read_addr() + seq[30:] if len(seq) > 30 else seq + read_addr()
            else:
                seq = R + (pf_groups() if pf else []) + read_addr()
            flat = [g for g in seq if not (g[0].startswith('v_add_u32 v14') or g[0].startswith('s_add_u32 s30'))]
            last_read = max(i for i, g in enumerate(flat) if g[0].startswith('ds_read'))
            seq = flat[:last_read + 1] + read_addr() + flat[last_read + 1:]
            for x in interleave(M, seq): body(x)
        body("s_sub_u32 s31, s31, 1")
        body("s_cmp_lg_u32 s31, 0")
        b_items, fifo = finalize_loop(body.items)
        lab = f"{name}_loop" if role == 'stage' else f"{name}_hloop"
        out.label(lab)
        out.extend(b_items)
        out(f"s_cbranch_scc1 {lab}")
        if role == 'stage': out(f"s_branch {name}_epi")
    out.label(f"{name}_epi")
    E = Prog()
    if stamps: E(f"s_waitcnt lgkmcnt(0)\n{RT} s[50:51]\ns_waitcnt lgkmcnt(0)\ns_mov_b32 s62, s50")
    E("s_waitcnt vmcnt(0) lgkmcnt(0)")
    E("s_nop 7")
    E("s_barrier")
    E(f"""
    v_lshlrev_b32 v3, 4, v2
    s_mul_i32 s32, s24, 36864
    v_add_u32 v4, s32, v3
    """)
    for t in range(9):
        for j in range(4):
            acc = 16 * t + 4 * j
            E(f"ds_write_b128 v4, a[{acc}:{acc+3}] offset:{(t*4+j)*1024}")
    E("s_waitcnt lgkmcnt(0)")
    E("s_barrier")
    E(f"""
    s_lshl_b32 s32, s24, 10
    v_add_u32 v5, s32, v3
    v_add_u32 v6, 36864, v5
    v_add_u32 v7, {2*36864}, v5
    v_add_u32 v8, {3*36864}, v5
    v_and_b32 v9, 15, v2
    v_lshlrev_b32 v9, 12, v9
    v_lshrrev_b32 v21, 4, v2
    v_lshlrev_b32 v21, 3, v21
    v_add_u32 v9, v9, v21
    s_lshl_b32 s32, s24, 5
    v_add_u32 v9, s32, v9
    """)
    for t in range(9):
        base = 32 + 16 * (t % 3)
        for ww in range(4):
            E(f"ds_read_b128 v[{base+4*ww}:{base+4*ww+3}], v{5+ww} offset:{t*4096}")
        for r in range(4):
            E(f"v_add_f32 v{base+r}, v{base+r}, v{base+4+r}")
            E(f"v_add_f32 v{base+8+r}, v{base+8+r}, v{base+12+r}")
        for r in range(4):
            E(f"v_add_f32 v{base+r}, v{base+r}, v{base+8+r}")
        E(f"v_cvt_pk_bf16_f32 v{base}, v{base}, v{base+1}")
        E(f"v_cvt_pk_bf16_f32 v{base+1}, v{base+2}, v{base+3}")
        E(f"s_mov_b32 s33, {t*16*4096}")
        E(f"buffer_store_dwordx2 v[{base}:{base+1}], v9, s[20:23], s33 offen")
    if stamps: E(f"s_waitcnt lgkmcnt(0)\n{RT} s[50:51]\ns_waitcnt lgkmcnt(0)\ns_mov_b32 s63, s50")
    if stamps and dbg:
        E(f"""s_cmp_lg_u32 s2, 0
        s_cbranch_scc1 {name}_done
        s_cmp_lg_u32 s24, 0
        s_cbranch_scc1 {name}_done
        s_load_dwordx2 s[6:7], s[0:1], 88
        s_add_u32 s4, s4, {64 << 20}
        s_addc_u32 s5, s5, 0
        s_load_dwordx16 s[64:79], s[4:5], 0
        s_waitcnt lgkmcnt(0)
        v_mov_b32 v2, 0""")
        sel = [1, 2, 3, 4, 8, 9, 10, 11, 12, 15]
        for k, i in enumerate(sel):
            E(f"s_sub_u32 s32, s{64+i}, s64\nv_mov_b32 v3, s32\nglobal_store_dword v2, v3, s[6:7] offset:{4*k}")
        for k in range(4):
            E(f"s_sub_u32 s32, s{60+k}, s64\nv_mov_b32 v3, s32\nglobal_store_dword v2, v3, s[6:7] offset:{4*(10+k)}")
    elif stamps:
        E(f"""s_lshl_b32 s32, s2, 2
        s_add_u32 s32, s32, s24
        s_lshl_b32 s32, s32, 6
        s_add_u32 s32, s32, {64 << 20}
        s_add_u32 s4, s4, s32
        s_addc_u32 s5, s5, 0
        v_mov_b32 v2, 0""")
        for i in range(5):
            E(f"v_mov_b32 v3, s{60+i}\nglobal_store_dword v2, v3, s[4:5] offset:{4*i}")
    e_items, _ = finalize_linear(E.items)
    out.extend(e_items)
    out.label(f"{name}_done")
    out("s_endpgm")
    return kernel_text(name, out.text(), vgpr=400, sgpr=96, acc=256), 3 * STG

if __name__ == '__main__':
    variants = [('op_nopf_kernel', dict(pf=False, stamps=True)), ('op_pf_kernel', dict(stamps=True)), ('op_same1_kernel', dict(pf=False, same=1, stamps=True)),
                ('op_nodma_kernel', dict(pf=False, no_dma=True, stamps=True)),
                ]
    hdr = ''; body = ''
    for nm, kw in variants:
        txt, lds = gen_oproj(nm, **kw)
        hdr += f"; @launch kernel={nm} grid=(256,1,1) block=(256,1,1) lds={lds}\n"
        body += txt
    open('op.s', 'w').write(hdr + '.amdgcn_target "amdgcn-amd-amdhsa--gfx950"\n.text\n' + body)
```

```python
from asmlib import *
import math

RING = 0
SLOT = 32768
STG = 98304
XB = [STG, STG + 18432]
WB = [STG + 36864 + 8192 * i for i in range(3)]
QX = STG
LDS_TOTAL = 163840
O_WS_OFF = 0
CSCALE = math.log2(math.e) / math.sqrt(128.0)

import struct
def f2u(x): return struct.unpack('<I', struct.pack('<f', x))[0]

V_LANE = 1
V_RING = 10
V_KPAT, V_VPAT, V_KA, V_VA = 20, 24, 28, 32
V_P = 36
V_MX, V_T1, V_T2, V_T3 = 48, 49, 50, 51
V_ONES = 52
V_NEGM = 56
V_L = 76
V_S = 96
V_KF = {'A': 120, 'B': 184}
V_VF = {'A': 152, 'B': 216}
A_O = 0
A_Q = 160
V_XD, V_WD = 106, 98
QXBASE = 65536
V_PFW, V_PFX, V_PFD = 14, 15, 16
V_RINGK, V_RINGV = 17, 18
V_RINGH = 248
V_VA2 = 252
V_XPAT = 100
V_WPAT = 104
V_XA = 106
V_WA = 110
QF_W = [120, 156]
QF_X = [136, 172]

S_W, S_QH, S_HH, S_BLK, S_B, S_H0 = 24, 25, 26, 27, 28, 29
S_CH, S_DSLOT, S_RSLOT, S_CNT = 30, 31, 32, 33
S_T = 34
S_GOFF, S_LB, S_TMP, S_TMP2 = 41, 42, 40, 43
S_DWRAP, S_DBASE = 30, 42
S_XI, S_WI, S_XOFF, S_WOFF, S_XBUF, S_WBUF, S_XRB, S_WRB = 44, 45, 46, 47, 48, 49, 50, 51
S_XW_G, S_XW_L = 54, 55
S_XC = 96
S_WW_L, S_WLIM = 101, 56
S_BAD, S_SAFE, S_NREC2 = 44, 45, 53
S_ITEM = 58
S_FL = 59
S_QI = 70
S_FLAG = 72
S_LATE, S_PR, S_FI, S_FMAX, S_FG, S_FL2 = 71, 74, 75, 52, 53, 56
S_KVO = 66

QP_PAT = [98, 99, 100, 101, 102, 103, 104, 105, 106, 107, 108, 109, 110]
def qacc(k): return (56 + 4 * k) if k < 10 else (192 + 4 * (k - 10))
def acc_o(slot, jl): return A_O + slot * 32 + jl * 4
def q_frag(slot, jp): return A_Q + slot * 16 + jp * 4
def rng(f, b, n=4): return f"{f}[{b}:{b+n-1}]"

def interleave(M, fillers, start=0):
    out = []
    k = 0
    for i, m in enumerate(M):
        out.append(m)
        if i >= start and k < len(fillers):
            out += fillers[k]; k += 1
    while k < len(fillers):
        out += fillers[k]; k += 1
    return out

def spread(M, groups, start=0):
    m = len(M) - start
    n = len(groups)
    out = []
    for i, x in enumerate(M):
        out.append(x)
        if i >= start:
            k = i - start
            for g in groups[(k * n) // m:((k + 1) * n) // m]:
                out += g
    return out

class FA:
    def __init__(self, name='fa_kernel', nt_kv=True, nt_w=False, nt_x=False, dbg=None, order='early', stamps=False, pf_qp=True, pf_att=True, late_bit=1, x_nodma=False, x_nosm=False, x_nobr=False, x_nord=False, x_nobar=False, x_qv=False, q_nodma=False, q_nord=False, q_nobar=False, q_nowait=False, same_kv=False, x_nohead=False, x_noX=False, x_nomax=False, fill_qp=True, fast=True, force_bad=False, pf_wo=False, pf_code=False, op_label=None, dbg_stamps=None, pf0=False, pf1=False, pf_nt=False, qstamp=False, cstamp=False):
        self.cstamp = cstamp
        self.qstamp = qstamp
        self.pf0, self.pf1 = pf0, pf1
        self.pf_nt = ' nt' if pf_nt else ''
        self.dbg_stamps = dbg_stamps
        self.pf_wo, self.pf_code, self.op_label = pf_wo, pf_code, op_label
        self.fast = fast
        self.force_bad = force_bad
        self.fill_qp = fill_qp
        self.x_nomax = x_nomax
        self.x_nohead, self.x_noX = x_nohead, x_noX
        self.same_kv = same_kv
        self.q_nowait = q_nowait
        self.q_nodma, self.q_nord, self.q_nobar = q_nodma, q_nord, q_nobar
        self.x_nodma, self.x_nosm, self.x_nobr, self.x_nord, self.x_nobar, self.x_qv = x_nodma, x_nosm, x_nobr, x_nord, x_nobar, x_qv
        self.pf_qp = pf_qp
        self.pf_att = pf_att
        self.late_bit = late_bit
        self.stamps = stamps
        self.nst = 0
        self.name = name
        self.nt_kv = ' nt' if nt_kv else ''
        self.nt_w = ' nt' if nt_w else ''
        self.nt_x = ' nt' if nt_x else ''
        self.dbg = dbg
        self.order = order
        self.rare = []
        self.uid = 0

    def setup(self):
        P = Prog()
        n = self.name
        P(f"""
        s_cmp_ge_u32 s2, 256
        s_cbranch_scc1 {n}_done
        s_and_b32 s39, s2, 7
        s_lshr_b32 s40, s2, 3
        s_lshr_b32 s{S_BLK}, s39, 2
        s_and_b32 s39, s39, 3
        s_and_b32 s{S_B}, s40, 7
        s_lshr_b32 s40, s40, 3
        s_mov_b32 s{S_PR}, s40
        s_lshl_b32 s39, s39, 3
        s_lshl_b32 s40, s40, 1
        s_add_u32 s{S_H0}, s39, s40
        s_mul_i32 s39, s{S_BLK}, 40
        s_add_u32 s60, s0, s39
        s_addc_u32 s61, s1, 0
        s_load_dwordx2 s[4:5], s[60:61], 0
        s_load_dwordx2 s[62:63], s[60:61], 8
        s_load_dwordx2 s[64:65], s[60:61], 16
        s_load_dwordx2 s[66:67], s[60:61], 24
        s_load_dwordx2 s[68:69], s[0:1], 96
        s_load_dwordx2 s[76:77], s[60:61], 32
        v_lshrrev_b32 v2, 6, v0
        v_and_b32 v{V_LANE}, 63, v0
        v_readfirstlane_b32 s{S_W}, v2
        s_and_b32 s{S_QH}, s{S_W}, 1
        s_lshr_b32 s{S_HH}, s{S_W}, 1
        """)
        L = V_LANE
        P(f"""
        v_lshrrev_b32 v2, 4, v{L}
        v_and_b32 v3, 15, v{L}
        v_xor_b32 v4, v3, v2
        v_lshlrev_b32 v5, 2, v2
        v_xor_b32 v5, v3, v5
        v_lshlrev_b32 v4, 4, v4
        v_lshlrev_b32 v5, 4, v5
        v_lshlrev_b32 v2, 8, v2
        v_add_u32 v{V_RINGK}, v4, v2
        v_add_u32 v{V_RINGV}, v5, v2
        s_cmp_eq_u32 s{S_QH}, 0
        s_cselect_b32 s39, 64, 16
        s_cselect_b64 vcc, -1, 0
        v_cndmask_b32 v{V_RING}, v{V_RINGV}, v{V_RINGK}, vcc
        v_xor_b32 v{V_RING+1}, s39, v{V_RING}
        s_lshl_b32 s40, s39, 1
        v_xor_b32 v{V_RING+2}, s40, v{V_RING}
        s_add_u32 s40, s40, s39
        v_xor_b32 v{V_RING+3}, s40, v{V_RING}
        v_add_u32 v{V_RINGH}, 4096, v{V_RING}
        v_add_u32 v{V_RINGH+1}, 4096, v{V_RING+1}
        v_add_u32 v{V_RINGH+2}, 4096, v{V_RING+2}
        v_add_u32 v{V_RINGH+3}, 4096, v{V_RING+3}
        """)
        P(self.pf_setup())
        P(f"""
        v_and_b32 v3, 15, v{L}
        v_lshrrev_b32 v2, 4, v{L}
        v_xor_b32 v4, v2, v3
        v_lshlrev_b32 v4, 4, v4
        v_lshlrev_b32 v5, 8, v3
        s_lshl_b32 s39, s{S_HH}, 14
        v_add_u32 v5, s39, v5
        """)
        for jp in range(4):
            P(f"v_xor_b32 v6, {64*jp}, v4\nv_add_u32 v{V_KPAT+jp}, v5, v6")
        P(f"""
        v_lshrrev_b32 v3, 2, v{L}
        v_and_b32 v3, 3, v3
        v_and_b32 v4, 3, v{L}
        v_xor_b32 v4, v4, v2
        v_lshlrev_b32 v4, 4, v4
        v_lshlrev_b32 v5, 6, v3
        v_add_u32 v4, v4, v5
        v_lshlrev_b32 v5, 2, v2
        v_add_u32 v5, v5, v3
        v_lshlrev_b32 v5, 8, v5
        s_lshl_b32 s39, s{S_HH}, 14
        s_add_u32 s39, s39, 8192
        v_add_u32 v5, s39, v5
        """)
        for ml in range(4):
            P(f"""
            s_lshl_b32 s39, s{S_HH}, 1
            s_add_u32 s39, s39, {ml}
            s_and_b32 s39, s39, 3
            s_lshl_b32 s39, s39, 6
            v_xor_b32 v6, s39, v4
            v_add_u32 v{V_VPAT+ml}, v5, v6
            """)
        if self.pf_code:
            P(f"""
            s_lshr_b32 s39, s2, 3
            s_cmp_ge_u32 s39, 16
            s_cbranch_scc1 {n}_npc
            s_cmp_lg_u32 s{S_W}, 0
            s_cbranch_scc1 {n}_npc
            s_getpc_b64 s[72:73]
            {n}_pc0:
            s_lshl_b32 s39, s39, 13
            s_add_u32 s72, s72, s39
            s_addc_u32 s73, s73, 0
            v_lshlrev_b32 v3, 7, v{L}
            global_load_dword v{V_PFD}, v3, s[72:73]
            {n}_npc:
            """)
        for r in range(4):
            P(f"v_mov_b32 v{V_ONES+r}, 0x3f803f80")
        P("s_waitcnt lgkmcnt(0)")
        P(f"""
        s_cmp_eq_u32 s{S_QH}, 0
        s_cselect_b32 s8, s62, s64
        s_cselect_b32 s9, s63, s65
        s_lshl_b32 s39, s{S_B}, 5
        s_add_u32 s39, s39, s{S_H0}
        s_lshr_b32 s40, s39, 14
        s_lshl_b32 s39, s39, {18 if not self.same_kv else 31}
        s_and_b32 s39, s39, {'-1' if not self.same_kv else '0'}
        s_add_u32 s8, s8, s39
        s_addc_u32 s9, s9, s40
        s_lshl_b32 s39, s{S_HH}, 13
        s_add_u32 s8, s8, s39
        s_addc_u32 s9, s9, 0
        s_and_b32 s9, s9, 0xffff
        s_sub_u32 s10, {2*262144}, s39
        s_mov_b32 s11, 0x20000
        s_mul_i32 s39, s{S_B}, {144*2048}
        s_add_u32 s12, s4, s39
        s_addc_u32 s13, s5, 0
        s_and_b32 s13, s13, 0xffff
        s_mov_b32 s14, {144*2048}
        s_mov_b32 s15, 0x20000
        s_lshl_b32 s39, s{S_H0}, 8
        s_add_u32 s16, s66, s39
        s_addc_u32 s17, s67, 0
        s_and_b32 s17, s17, 0xffff
        s_sub_u32 s18, {1024*8192}, s39
        s_mov_b32 s19, 0x20000
        s_lshl_b32 s39, s{S_BLK}, 3
        s_add_u32 s39, s39, s{S_B}
        s_lshl_b32 s39, s39, 5
        s_add_u32 s39, s39, s{S_H0}
        s_mul_i32 s39, s39, 36864
        s_add_u32 s20, s68, s39
        s_addc_u32 s21, s69, 0
        s_add_u32 s20, s20, {O_WS_OFF}
        s_addc_u32 s21, s21, 0
        s_and_b32 s21, s21, 0xffff
        s_mov_b32 s22, {2*36864}
        s_mov_b32 s23, 0x20000
        s_lshl_b32 s{S_DBASE}, s{S_W}, 13
        s_mov_b32 s{S_DSLOT}, s{S_DBASE}
        s_add_u32 s{S_DWRAP}, s{S_DBASE}, {3*SLOT}
        s_mov_b32 s{S_GOFF}, 0
        s_mov_b32 s{S_RSLOT}, 0
        s_mov_b32 s{S_ITEM}, 0
        s_mov_b32 s{S_QI}, 0
        s_mov_b32 s{S_FMAX}, 1
        s_lshl_b32 s39, s{S_B}, 5
        s_add_u32 s39, s39, s{S_H0}
        s_lshl_b32 s{S_KVO}, s39, 18
        s_mov_b32 s{S_KVO+1}, 0
        s_and_b32 s39, s2, 3
        s_lshl_b32 s39, s39, 5
        s_lshr_b32 s40, s2, 3
        s_add_u32 s39, s39, s40
        s_lshl_b32 s39, s39, 16
        s_add_u32 s76, s76, s39
        s_addc_u32 s77, s77, 0
        s_and_b32 s77, s77, 0xffff
        s_mov_b32 s78, 65536
        s_mov_b32 s79, 0x20000
        v_lshlrev_b32 v19, 7, v{L}
        """)
        if self.order == 'early': P(f"s_mov_b32 s{S_LATE}, 0")
        elif self.order == 'late': P(f"s_mov_b32 s{S_LATE}, 1")
        else: P(f"s_lshr_b32 s{S_LATE}, s2, {self.late_bit}\ns_and_b32 s{S_LATE}, s{S_LATE}, 1")
        P(f"""s_xor_b32 s{S_FMAX}, s{S_LATE}, 1
        s_mov_b32 s{S_BAD}, 0
        s_mov_b32 s{S_SAFE}, 0
        s_mov_b32 s{S_NREC2}, s10
        s_sub_u32 s39, s10, 262144
        s_cmp_eq_u32 s{S_LATE}, 0
        s_cselect_b32 s10, s39, s10""")
        if self.pf0:
            for x in self.pf_w(f"s{S_W}", "0"): P(x)
            for x in self.pf_x(f"s{S_W}"): P(x)
            P(f"s_add_u32 s39, s{S_W}, 4")
            for x in self.pf_x("s39"): P(x)
            P(f"s_add_u32 s39, s{S_W}, 8\ns_min_u32 s39, s39, 8")
            for x in self.pf_x("s39"): P(x)
            P(f"s_cmp_eq_u32 s{S_LATE}, 0\ns_cbranch_scc1 {n}_npf0")
            for x in self.pf_w(f"s{S_W}", "1"): P(x)
            P.label(f"{n}_npf0")
        P.extend(self.qp_patterns())
        return P

    def ring_instrs(self):
        nt = self.nt_kv
        D = []
        for m in range(8):
            g = []
            if m == 0: g.append(f"s_mov_b32 m0, s{S_DSLOT}")
            if m == 4: g.append(f"s_add_u32 m0, s{S_DSLOT}, 4096")
            v = V_RING + m if m < 4 else V_RINGH + m - 4
            g.append(f"buffer_load_dwordx4 v{v}, s[8:11], s{S_GOFF} offen offset:{(m & 3) * 1024}{nt} lds")
            D.append(g)
        adv = [f"s_add_u32 s{S_GOFF}, s{S_GOFF}, 16384",
               f"s_add_u32 s{S_DSLOT}, s{S_DSLOT}, {SLOT}",
               f"s_cmp_eq_u32 s{S_DSLOT}, s{S_DWRAP}",
               f"s_cselect_b32 s{S_DSLOT}, s{S_DBASE}, s{S_DSLOT}"]
        return D, adv
    def ring_groups(self):
        D, adv = self.ring_instrs()
        return D + [adv]

    def ring_fill(self):
        P = Prog()
        for _ in range(3):
            for g in self.ring_groups():
                for x in g: P(x)
        return P

    def pf_setup(self):
        L = V_LANE
        return f"""
        v_lshrrev_b32 v2, 1, v{L}
        v_lshlrev_b32 v2, 13, v2
        v_and_b32 v3, 1, v{L}
        v_lshlrev_b32 v3, 7, v3
        v_add_u32 v{V_PFW}, v2, v3
        v_lshrrev_b32 v2, 4, v{L}
        v_lshlrev_b32 v2, 11, v2
        v_and_b32 v3, 15, v{L}
        v_lshlrev_b32 v3, 7, v3
        v_add_u32 v{V_PFX}, v2, v3
        """
    def pf_w(self, i_expr_sgpr, head_sgpr):
        return [f"s_lshl_b32 s{S_TMP}, s{S_B}, 20",
                f"s_lshl_b32 s{S_TMP2}, {i_expr_sgpr}, 18",
                f"s_add_u32 s{S_TMP}, s{S_TMP}, s{S_TMP2}",
                f"s_lshl_b32 s{S_TMP2}, {head_sgpr}, 8",
                f"s_add_u32 s{S_TMP}, s{S_TMP}, s{S_TMP2}",
                f"buffer_load_dword v{V_PFD}, v{V_PFW}, s[16:19], s{S_TMP} offen{self.pf_nt}"]
    def pf_x(self, i_expr):
        return [f"s_mul_i32 s{S_TMP}, s{S_PR}, {36*2048}",
                f"s_lshl_b32 s{S_TMP2}, {i_expr}, 13",
                f"s_add_u32 s{S_TMP}, s{S_TMP}, s{S_TMP2}",
                f"buffer_load_dword v{V_PFD}, v{V_PFX}, s[12:15], s{S_TMP} offen{self.pf_nt}"]

    def qp_patterns(self):
        L = V_LANE
        P = Prog()
        P(f"""
        v_lshrrev_b32 v2, 3, v{L}
        v_and_b32 v3, 7, v{L}
        v_lshrrev_b32 v4, 4, v{L}
        v_xor_b32 v3, v3, v4
        v_lshlrev_b32 v3, 4, v3
        v_lshlrev_b32 v2, 11, v2
        v_add_u32 v2, v2, v3
        """)
        for x in range(5):
            P(f"""
            s_mul_i32 s39, s{S_W}, 5
            s_add_u32 s39, s39, {x}
            s_cmp_gt_u32 s39, 17
            s_cselect_b32 s40, 2, 0
            s_sub_u32 s39, s39, s40
            s_lshl_b32 s{S_XC+x}, s39, 10
            s_and_b32 s40, s39, 1
            s_lshl_b32 s40, s40, 6
            v_xor_b32 v3, s40, v2
            s_lshl_b32 s39, s39, 14
            v_add_u32 v{V_XD+x}, s39, v3
            """)
        P(f"""
        v_lshrrev_b32 v2, 4, v{L}
        v_and_b32 v3, 15, v{L}
        v_lshlrev_b32 v4, 2, v2
        v_xor_b32 v3, v3, v4
        v_xor_b32 v3, s{S_W}, v3
        v_lshlrev_b32 v3, 4, v3
        v_lshlrev_b32 v4, 13, v2
        v_add_u32 v3, v3, v4
        s_lshl_b32 s39, s{S_W}, 16
        v_add_u32 v{V_WD}, s39, v3
        v_add_u32 v{V_WD+1}, 32768, v{V_WD}
        v_and_b32 v3, 15, v{L}
        v_lshrrev_b32 v4, 1, v3
        v_xor_b32 v4, v4, v2
        v_lshlrev_b32 v4, 4, v4
        v_lshlrev_b32 v5, 7, v3
        v_xor_b32 v6, 64, v4
        v_add_u32 v4, v4, v5
        v_add_u32 v6, v6, v5
        s_lshl_b32 s39, s{S_QH}, 13
        s_add_u32 s39, s39, {QXBASE}
        v_add_u32 v{V_XPAT}, s39, v4
        v_add_u32 v{V_XPAT+1}, s39, v6
        v_add_u32 v{V_XPAT+2}, {8*2048 + QXBASE}, v4
        v_add_u32 v{V_XPAT+3}, {8*2048 + QXBASE}, v6
        v_lshrrev_b32 v3, 2, v{L}
        v_and_b32 v3, 3, v3
        v_and_b32 v4, 3, v{L}
        v_xor_b32 v4, v4, v2
        v_lshlrev_b32 v4, 4, v4
        v_lshlrev_b32 v5, 6, v3
        v_add_u32 v4, v4, v5
        v_lshlrev_b32 v5, 3, v2
        v_add_u32 v5, v5, v3
        v_lshlrev_b32 v5, 8, v5
        """)
        for p in range(2):
            P(f"""
            s_xor_b32 s39, s{S_QH}, {p}
            s_lshl_b32 s40, s{S_HH}, 1
            s_add_u32 s39, s39, s40
            s_lshl_b32 s39, s39, 6
            v_xor_b32 v6, s39, v4
            v_add_u32 v{V_WPAT+p}, v5, v6
            """)
        for k, r in enumerate(QP_PAT): P(f"v_accvgpr_write_b32 a{240+k}, v{r}")
        P(f"s_lshl_b32 s{S_WW_L}, s{S_W}, 11")
        return P

    def qp(self, tag):
        n = self.name
        L = V_LANE
        NX, NW = 4, 8
        P = Prog()
        for k, r in enumerate(QP_PAT): P(f"v_accvgpr_read_b32 v{r}, a{240+k}")
        P(f"""
        s_lshl_b32 s{S_WOFF}, s{S_QI}, 8
        s_add_u32 s{S_WLIM}, s{S_WOFF}, {32 << 18}
        s_mov_b32 s{S_XOFF}, 0
        """)
        def x_groups(buf):
            G = [[f"s_cmp_lt_u32 s{S_XOFF}, 2048", f"s_cselect_b32 s{S_TMP2}, s{S_XOFF}, {144*2048}"]]
            for x in range(5):
                G.append([f"s_add_u32 m0, s{S_XC+x}, {QXBASE + buf*18432}",
                          f"buffer_load_dwordx4 v{V_XD+x}, s[12:15], s{S_TMP2} offen{self.nt_x} lds"])
            G.append([f"s_add_u32 s{S_XOFF}, s{S_XOFF}, 128"])
            return G
        def w_groups(buf):
            G = []
            for x in range(2):
                G.append([f"s_add_u32 m0, s{S_WW_L}, {buf*8192 + x*1024}",
                          f"buffer_load_dwordx4 v{V_WD + x}, s[16:19], s{S_WOFF} offen{self.nt_w} lds"])
            G.append([f"s_add_u32 s{S_WOFF}, s{S_WOFF}, {1 << 18}", f"s_min_u32 s{S_WOFF}, s{S_WOFF}, s{S_WLIM}"])
            return G
        def read_groups(k, i):
            G = []
            wb = (i % 8) * 8192
            xb = ((i >> 1) % 4) * 18432
            ss = i & 1
            for jl in range(4):
                a = QF_W[k] + 4 * jl
                p, h = jl >> 1, jl & 1
                G.append([f"ds_read_b64_tr_b16 v[{a}:{a+1}], v{V_WPAT+p} offset:{wb + 8*h}"])
                G.append([f"ds_read_b64_tr_b16 v[{a+2}:{a+3}], v{V_WPAT+p} offset:{wb + 8*h + 1024}"])
            for t in range(4):
                G.append([f"ds_read_b128 {rng('v', QF_X[k]+4*t)}, v{V_XPAT+ss} offset:{xb + t*2048}"])
            G.append([f"ds_read_b128 {rng('v', QF_X[k]+16)}, v{V_XPAT+2+ss} offset:{xb}"])
            return G
        def mf(k):
            M = []
            for t in range(4):
                for jl in range(4):
                    a = qacc(4 * t + jl)
                    M.append(f"v_mfma_f32_16x16x32_bf16 {rng('v', a)}, {rng('v', QF_W[k]+4*jl)}, {rng('v', QF_X[k]+4*t)}, {rng('v', a)}")
            for x in range(2):
                a = qacc(16 + x)
                M.append(f"v_mfma_f32_16x16x32_bf16 {rng('v', a)}, {rng('v', QF_W[k]+4*x)}, {rng('v', QF_X[k]+16)}, {rng('v', a)}")
            return M
        pro = []
        xi = wi = 0
        while xi < NX or wi < NW:
            if xi < NX and 2 * xi <= wi: pro.append(('X', xi)); xi += 1
            elif wi < NW: pro.append(('W', wi)); wi += 1
            else: pro.append(('X', xi)); xi += 1
        cnt = {'X': 5, 'W': 2}
        seq = list(pro)
        def outstanding_after(need):
            last = max(i for i, it in enumerate(seq) if it in need)
            return sum(cnt[k] for k, _ in seq[last + 1:])
        w0 = outstanding_after({('X', 0), ('W', 0)})
        waits = {}
        for i in range(0, 24):
            waits[i] = outstanding_after({('W', i + 1), ('X', (i + 1) >> 1)})
            seq.append(('W', i + NW))
            if i & 1: seq.append(('X', (i >> 1) + NX))
        wr = [min(waits[i] for i in range(r, 24, 8)) for r in range(8)]
        assert max(wr + [w0]) <= 63
        P("s_waitcnt vmcnt(0)\ns_barrier")
        def issue(lst):
            for kind, idx in lst:
                for g in (x_groups(idx) if kind == 'X' else w_groups(idx)):
                    for x in g: P(x)
        n1, n2 = 3, 6
        issue(pro[:n1])
        for k in range(18):
            for r in range(4): P(f"v_mov_b32 v{qacc(k) + r}, 0")
        issue(pro[n1:n2])
        w0 = sum(cnt[k] for k, _ in pro[2:n2])
        P(f"s_waitcnt vmcnt({w0})\ns_barrier")
        if self.qstamp:
            P(f"s_memtime s[72:73]\ns_waitcnt lgkmcnt(0)\ns_cmp_eq_u32 s{S_QI}, 0\ns_cselect_b32 s82, s72, s82")
        for g in read_groups(0, 0):
            for x in g: P(x)
        issue(pro[n2:])
        P(f"s_waitcnt lgkmcnt(0)\ns_mov_b32 s{S_CNT}, 4")
        pre, _ = finalize_linear(P.items)
        out = Prog(); out.extend(pre)
        body = Prog()
        for r in range(8):
            ss = r & 1
            if not self.q_nowait: body(f"s_waitcnt vmcnt({wr[r]}) lgkmcnt(0)")
            if not self.q_nobar: body("s_barrier")
            R = read_groups(1 - ss, r + 1)
            D = w_groups(r) + (x_groups(r >> 1) if ss == 1 else [])
            if self.q_nodma: D = []
            if self.q_nord: R = R[:1]
            M = mf(ss)
            fill = [[] for _ in M]
            for i, g in enumerate(R): fill[i] += g
            free = list(range(len(R), len(M))) + list(range(0, len(R), 2))
            gi = 0
            dm = [g for g in D if any('buffer_load' in y for y in g)]
            oth = [g for g in D if not any('buffer_load' in y for y in g)]
            seqD = D
            npos = len(M)
            for i, g in enumerate(seqD):
                pos = min(npos - 1, 2 + (i * (npos - 2)) // max(len(seqD), 1))
                if 'm0' in g[0] and pos > 0 and not any('buffer_load' in y for y in fill[pos - 1]):
                    fill[pos - 1].append(g[0]); fill[pos] += g[1:]
                else:
                    fill[pos] += g
            for x in interleave(M, fill): body(x)
        if self.qstamp:
            body("s_waitcnt lgkmcnt(0)\ns_memtime s[72:73]\ns_waitcnt lgkmcnt(0)")
            for it in range(4):
                body(f"s_lshl_b32 s39, s{S_QI}, 4\ns_add_u32 s39, s39, s{S_CNT}\ns_cmp_eq_u32 s39, {4 - it}\ns_cselect_b32 s{83+it}, s72, s{83+it}")
        body(f"s_sub_u32 s{S_CNT}, s{S_CNT}, 1\ns_cmp_lg_u32 s{S_CNT}, 0")
        b, _ = finalize_loop(body.items)
        out.label(f"{n}_qp{tag}")
        out.extend(b)
        out(f"s_cbranch_scc1 {n}_qp{tag}")
        E = Prog()
        E("s_waitcnt vmcnt(0) lgkmcnt(0)\ns_barrier")
        C = Prog()
        C(f"""
        v_mov_b32 v8, {f2u(CSCALE):#x}
        v_mov_b32 v9, {f2u(CSCALE):#x}
        v_lshlrev_b32 v2, 4, v{L}
        v_add_u32 v2, {QX}, v2
        s_lshl_b32 s40, s{S_QH}, 14
        s_lshl_b32 s{S_TMP2}, s{S_HH}, 11
        s_add_u32 s40, s40, s{S_TMP2}
        s_lshl_b32 s{S_TMP2}, s{S_QH}, 10
        s_add_u32 s{S_XOFF}, s40, s{S_TMP2}
        s_xor_b32 s{S_TMP2}, s{S_TMP2}, 1024
        s_add_u32 s{S_WOFF}, s40, s{S_TMP2}
        v_add_u32 v3, s{S_XOFF}, v2
        v_add_u32 v4, s{S_WOFF}, v2
        s_lshl_b32 s40, s{S_HH}, 11
        s_lshl_b32 s{S_TMP2}, s{S_QH}, 10
        s_add_u32 s40, s40, s{S_TMP2}
        v_add_u32 v5, s40, v2
        """)
        def conv(k0, dst):
            for q in range(2):
                a = qacc(k0 + q)
                for r in range(4): C(f"v_mul_f32 v{a+r}, v8, v{a+r}")
            for q in range(2):
                a = qacc(k0 + q)
                C(f"v_cvt_pk_bf16_f32 v{dst+2*q}, v{a}, v{a+1}")
                C(f"v_cvt_pk_bf16_f32 v{dst+2*q+1}, v{a+2}, v{a+3}")
        k = 0
        for t in range(4):
            for p in range(2):
                d = 120 + 4 * (k % 16); k += 1
                conv(4 * t + 2 * p, d)
                C(f"ds_write_b128 v{3+p}, {rng('v', d)} offset:{t*4096}")
        d = 120 + 4 * k
        conv(16, d)
        C(f"ds_write_b128 v5, {rng('v', d)} offset:{8*4096}")
        RF = []
        for _ in range(3): RF += self.ring_groups()
        CI = Prog()
        ci = C.items
        step = max(1, len(ci) // len(RF))
        k = 0
        for i, it in enumerate(ci):
            if i % step == 0 and k < len(RF):
                for x in RF[k]: CI(x)
                k += 1
            CI.items.append(it)
        while k < len(RF):
            for x in RF[k]: CI(x)
            k += 1
        E(f"s_cmp_eq_u32 s{S_FMAX}, 0\ns_cbranch_scc1 {n}_qf{tag}")
        e1, _ = finalize_linear(E.items)
        out.extend(e1)
        c1, _ = finalize_linear(CI.items); out.extend(c1)
        out(f"s_branch {n}_qg{tag}")
        out.label(f"{n}_qf{tag}")
        c2, _ = finalize_linear(C.items); out.extend(c2)
        out.label(f"{n}_qg{tag}")
        out(f"s_mov_b32 s{S_FMAX}, 0\ns_waitcnt lgkmcnt(0)\ns_barrier")
        return out

    def lq(self):
        L = V_LANE
        P = Prog()
        P(f"""
        v_lshlrev_b32 v2, 4, v{L}
        v_add_u32 v2, {QX}, v2
        s_lshl_b32 s39, s{S_QH}, 14
        v_add_u32 v3, s39, v2
        """)
        for t in range(4):
            for jp in range(4):
                P(f"ds_read_b128 {rng('a', q_frag(t, jp))}, v3 offset:{t*4096 + jp*1024}")
        for jp in range(4):
            P(f"ds_read_b128 {rng('a', q_frag(4, jp))}, v2 offset:{8*4096 + jp*1024}")
        P("s_waitcnt lgkmcnt(0)")
        it, _ = finalize_linear(P.items)
        o = Prog(); o.extend(it)
        return o

    def s_mfmas(self, unit, sb):
        slot, fs = unit
        M = []
        for kt in range(2):
            for jp in range(4):
                d = V_S + sb * 8 + kt * 4
                c = rng('v', V_NEGM + slot * 4) if jp == 0 else rng('v', d)
                M.append(f"v_mfma_f32_16x16x32_bf16 {rng('v', d)}, {rng('v', V_KF[fs] + (kt*4+jp)*4)}, {rng('a', q_frag(slot, jp))}, {c}")
        return M
    def pv_mfmas(self, unit, pb):
        slot, fs = unit
        M = []
        p = rng('v', V_P + pb * 4)
        for jl in range(8):
            M.append(f"v_mfma_f32_16x16x32_bf16 {rng('a', acc_o(slot, jl))}, {rng('v', V_VF[fs] + jl*4)}, {p}, {rng('a', acc_o(slot, jl))}")
        M.append(f"v_mfma_f32_16x16x32_bf16 {rng('v', V_L + slot*4)}, {rng('v', V_ONES)}, {p}, {rng('v', V_L + slot*4)}")
        return M
    def max_ops(self, unit, sb):
        slot, fs = unit
        s = V_S + sb * 8
        return [[f"v_max3_f32 v{V_MX}, v{s}, v{s+1}, v{s+2}"],
                [f"v_max3_f32 v{V_MX}, v{V_MX}, v{s+3}, v{s+4}"],
                [f"v_max3_f32 v{V_MX}, v{V_MX}, v{s+5}, v{s+6}"],
                [f"v_max_f32 v{V_MX}, v{V_MX}, v{s+7}"],
                [f"v_cmp_lt_f32 vcc, s{S_T+slot}, v{V_MX}"]]
    def check_ops(self, unit, sb):
        slot, fs = unit
        s = V_S + sb * 8
        self.uid += 1
        u = self.uid
        lab_r, lab_b = f"{self.name}_rare{u}", f"{self.name}_back{u}"
        R = Prog()
        R.label(lab_r)
        R(f"""
        s_nop 7
        v_mov_b32 v{V_T1}, v{V_MX}
        s_nop 1
        v_permlane16_swap_b32 v{V_MX}, v{V_T1}
        s_nop 1
        v_max_f32 v{V_MX}, v{V_MX}, v{V_T1}
        v_mov_b32 v{V_T1}, v{V_MX}
        s_nop 1
        v_permlane32_swap_b32 v{V_MX}, v{V_T1}
        s_nop 1
        v_max_f32 v{V_MX}, v{V_MX}, v{V_T1}
        s_ashr_i32 s{S_FL}, s{S_T+slot}, 31
        s_and_b32 s{S_FL}, s{S_FL}, 0xff800000
        s_mov_b32 s{S_T+slot}, 0x41000000
        v_max_f32 v{V_MX}, s{S_FL}, v{V_MX}
        """)
        for r in range(8): R(f"v_sub_f32 v{s+r}, v{s+r}, v{V_MX}")
        for r in range(4): R(f"v_sub_f32 v{V_NEGM+slot*4+r}, v{V_NEGM+slot*4+r}, v{V_MX}")
        R(f"s_cmp_lg_u32 s{S_FL}, 0\ns_cbranch_scc1 {lab_b}")
        R(f"v_sub_f32 v{V_T1}, 0, v{V_MX}")
        R(f"v_exp_f32 v{V_T1}, v{V_T1}")
        R("s_nop 1")
        for r in range(4): R(f"v_mul_f32 v{V_L+slot*4+r}, v{V_L+slot*4+r}, v{V_T1}")
        for r in range(0, 32, 2):
            a = A_O + slot * 32 + r
            R(f"v_accvgpr_read_b32 v{V_T2}, a{a}\nv_accvgpr_read_b32 v{V_T3}, a{a+1}\nv_mul_f32 v{V_T2}, v{V_T2}, v{V_T1}\nv_mul_f32 v{V_T3}, v{V_T3}, v{V_T1}\nv_accvgpr_write_b32 a{a}, v{V_T2}\nv_accvgpr_write_b32 a{a+1}, v{V_T3}")
        R("s_nop 2")
        R(f"s_branch {lab_b}")
        self.rare.append(R)
        return [f"s_cbranch_vccnz {lab_r}", f"{lab_b}:"]
    def exp_ops(self, unit, sb, pb):
        s = V_S + sb * 8
        p = V_P + pb * 4
        return [[f"v_exp_f32 v{s}, v{s}"], [f"v_exp_f32 v{s+1}, v{s+1}"], [f"v_exp_f32 v{s+2}, v{s+2}"],
                [f"v_cvt_pk_bf16_f32 v{p}, v{s}, v{s+1}"],
                [f"v_exp_f32 v{s+3}, v{s+3}"], [f"v_exp_f32 v{s+4}, v{s+4}"],
                [f"v_cvt_pk_bf16_f32 v{p+1}, v{s+2}, v{s+3}"],
                [f"v_exp_f32 v{s+5}, v{s+5}"], [f"v_exp_f32 v{s+6}, v{s+6}"],
                [f"v_cvt_pk_bf16_f32 v{p+2}, v{s+4}, v{s+5}"],
                [f"v_exp_f32 v{s+7}, v{s+7}"],
                [f"v_cvt_pk_bf16_f32 v{p+3}, v{s+6}, v{s+7}"]]
    def kv_reads(self, fs, which):
        G = []
        if which == 'K':
            for kt in range(2):
                for jp in range(4):
                    G.append([f"ds_read_b128 {rng('v', V_KF[fs] + (kt*4+jp)*4)}, v{V_KA+jp} offset:{kt*4096}"])
        else:
            for jl in range(8):
                a = V_VF[fs] + jl * 4
                ml, h = jl >> 1, jl & 1
                va = V_VA if fs == 'A' else V_VA2
                G.append([f"ds_read_b64_tr_b16 v[{a}:{a+1}], v{va+ml} offset:{8*h}"])
                G.append([f"ds_read_b64_tr_b16 v[{a+2}:{a+3}], v{va+ml} offset:{8*h+4096}"])
        return G
    def kv_addr(self, fs):
        va = V_VA if fs == 'A' else V_VA2
        G = [[f"v_add_u32 v{V_KA+j}, s{S_RSLOT}, v{V_KPAT+j}"] for j in range(4)]
        G += [[f"v_add_u32 v{va+j}, s{S_RSLOT}, v{V_VPAT+j}"] for j in range(4)]
        G.append([f"s_add_u32 s{S_RSLOT}, s{S_RSLOT}, {SLOT}", f"s_cmp_eq_u32 s{S_RSLOT}, {3*SLOT}", f"s_cselect_b32 s{S_RSLOT}, 0, s{S_RSLOT}"])
        return G

    def units(self, qh):
        if qh == 0: return [(0,'A'),(1,'A'),(2,'A'),(3,'A'),(4,'A'),(0,'B'),(1,'B'),(2,'B'),(3,'B')]
        return [(0,'A'),(1,'A'),(2,'A'),(3,'A'),(0,'B'),(1,'B'),(2,'B'),(3,'B'),(4,'B')]

    def attn_body(self, qh, last):
        U = self.units(qh)
        B = Prog()
        RG = self.ring_groups()
        for g in range(9):
            if g in (0, 4):
                B("s_waitcnt vmcnt(8) lgkmcnt(0)")
                if not self.x_nobar: B("s_barrier")
            M = []
            if not (last and g + 3 >= 9):
                M += self.s_mfmas(U[(g + 3) % 9], g % 3)
            M += self.pv_mfmas(U[g], g % 3)
            V = []
            head = []
            if not (last and g + 1 >= 9):
                head = self.check_ops(U[(g + 1) % 9], (g + 1) % 3)
                ex = self.exp_ops(U[(g + 1) % 9], (g + 1) % 3, (g + 1) % 3)
            else: ex = []
            mx = self.max_ops(U[(g + 2) % 9], (g + 2) % 3) if not (last and g + 2 >= 9) else []
            V = []
            ei = mi = 0
            pat = "eeemcemecemecemcm" if False else "eemeemeemeemm"
            order = []
            if self.x_nomax and ex:
                e_ = [g_ for g_ in ex if g_[0].startswith('v_exp')]
                c_ = [g_ for g_ in ex if g_[0].startswith('v_cvt')]
                pat = "e-ee-eC-ee-e-eC--"
                ei = ci = 0
                for ch in pat:
                    if ch == 'e': order.append(e_[ei]); ei += 1
                    elif ch == 'C': order.append(c_[ci] + c_[ci + 1]); ci += 2
                    else: order.append([])
            else:
                for i in range(17):
                    if i in (1, 3, 5, 7, 9) and mi < len(mx): order.append(mx[mi]); mi += 1
                    elif ei < len(ex): order.append(ex[ei]); ei += 1
                    elif mi < len(mx): order.append(mx[mi]); mi += 1
            V = order
            PF = []
            if last and self.pf_wo and self.x_nomax == self.fast and g in (0, 4):
                self.uid += 1
                lab = f"{self.name}_npf{self.uid}"
                pf = [f"s_cmp_eq_u32 s{S_ITEM}, 0", f"s_cbranch_scc1 {lab}"]
                pf += [f"s_lshl_b32 s39, s{S_W}, 14", f"s_add_u32 s39, s39, {8192 if g == 4 else 0}",
                       f"buffer_load_dword v{V_PFD}, v19, s[76:79], s39 offen"]
                if self.op_label and g == 0:
                    pf += [f"s_cmp_lg_u32 s{S_W}, 0", f"s_cbranch_scc1 {lab}",
                           f"s_getpc_b64 s[60:61]", f"{lab}_pc:",
                           f"s_add_u32 s60, s60, {self.op_label}-{lab}_pc", f"s_addc_u32 s61, s61, 0",
                           f"global_load_dword v{V_PFD}, v19, s[60:61]", f"global_load_dword v{V_PFD}, v19, s[60:61] offset:0"]
                pf.append(f"{lab}:")
                PF = [pf]
            if last and self.pf1 and self.x_nomax == self.fast and g in (0, 4):
                self.uid += 1
                lab = f"{self.name}_np1{self.uid}"
                pf = [f"s_or_b32 s39, s{S_LATE}, s{S_ITEM}", f"s_cmp_lg_u32 s39, 0", f"s_cbranch_scc1 {lab}"]
                if g == 0:
                    pf += self.pf_w(f"s{S_W}", "1") + self.pf_x(f"s{S_W}")
                else:
                    pf += [f"s_add_u32 s39, s{S_W}, 4"] + self.pf_x("s39") + [f"s_add_u32 s39, s{S_W}, 8", "s_min_u32 s39, s39, 8"] + self.pf_x("s39")
                pf.append(f"{lab}:")
                PF = PF + [pf]
            KA, VA_ = (self.kv_reads('A', 'K'), self.kv_reads('A', 'V')) if not last else ([], [])
            KB, VB_ = self.kv_reads('B', 'K'), self.kv_reads('B', 'V')
            ADA = self.kv_addr('A') if not last else []
            ADB = self.kv_addr('B') if not last else []
            D, adv = self.ring_instrs()
            H = []
            Lt = []
            if g == 0: H = KB + PF + D[0:1]
            if g == 1: H = VB_[:6] + D[1:4];
            if g == 2: H = VB_[6:11] + D[4:6]; Lt = ADA[:4]
            if g == 3: H = D[6:8] + VB_[11:]; Lt = ADA[4:] + [adv]
            if g == 4: H = KA + PF + D[0:1]
            if g == 5: H = VA_[:5] + D[1:4]
            if g == 6: H = VA_[5:10] + D[4:6]; Lt = ADB[:4]
            if g == 7: H = D[6:8] + VA_[10:]; Lt = ADB[4:8]
            if g == 8: Lt = ADB[8:] + [adv]
            if self.x_nomax:
                if g == 0: H = KB + PF
                if g == 1: H = VB_[:5] + D[0:3]
                if g == 2: H = VB_[5:11] + D[3:5]
                if g == 3: H = D[5:8] + VB_[11:]
                if g == 4: H = KA[:7] + PF
                if g == 5: H = KA[7:] + D[0:2] + VA_[:4]
                if g == 6: H = D[2:4] + VA_[4:9]
                if g == 7: H = D[4:6] + VA_[9:14]
                if g == 8: H = VA_[14:] + D[6:8];
            if self.x_nodma: H = [x for x in H if not any('lds' in y and 'buffer_load' in y for y in x)]
            if self.x_nord: H = [x for x in H if not any('ds_read' in y for y in x)]
            if self.x_nosm: V = []; head = []
            if self.x_nobr: head = []
            if self.x_noX: H = []; Lt = []
            if self.x_nomax: V = [[] if (x and (x[0].startswith('v_max') or x[0].startswith('v_cmp'))) else x for x in V]; head = []
            n = len(M)
            fill = [list(V[i]) if i < len(V) else [] for i in range(n)]
            light = [i for i in range(n) if not (fill[i] and fill[i][0].startswith('v_exp'))]
            empty = [i for i in range(n) if not fill[i]]
            pos = light[:]
            if self.x_nomax and empty:
                pos = empty[:]
                more = [i for i in light if i not in pos] + [i for i in range(n) if i not in light]
                if len(H) > len(pos): pos = sorted(pos + more[:len(H) - len(pos)])
            if len(H) > len(pos):
                extra_pos = [i for i in range(n) if i not in pos][:len(H) - len(pos)]
                pos = sorted(pos + extra_pos)
            if H:
                k = len(pos)
                chosen = [pos[(j * k) // len(H)] for j in range(len(H))]
                for j, h in enumerate(H):
                    h = list(h)
                    if ' m0,' in h[0] and chosen[j] > 0 and not any('lds' in y and 'buffer_load' in y for y in fill[chosen[j] - 1]):
                        fill[chosen[j] - 1].append(h[0]); h = h[1:]
                    fill[chosen[j]] += h
            if Lt:
                has_heavy = lambda i: any(('ds_read' in y or 'buffer_load' in y) for y in fill[i])
                last_dma = max([i for i in range(n) if any('buffer_load' in y for y in fill[i])] + [-1])
                free = [i for i in light if not has_heavy(i)] + [i for i in range(n) if i not in light]
                used = set()
                for l_ in Lt:
                    need_after = last_dma if any(f"s{S_GOFF}," in y for y in l_) else -1
                    cand = [i for i in free if i not in used and i > need_after] or [n - 1]
                    if any(f"s{S_RSLOT}, s{S_RSLOT}" in y for y in l_):
                        la = max([i for i in range(n) if any(f"s{S_RSLOT}, v" in y for y in fill[i])] + [-1])
                        cand = [i for i in range(n) if i >= la]
                        cand = [max(cand[0], 0)]
                    i = cand[0]; used.add(i)
                    fill[i] += l_
            extra = V[n:]
            for x in head: B(x)
            for x in interleave(M, fill + extra): B(x)
        return B

    def attention(self, qh, tag):
        n = self.name
        U = self.units(qh)
        P = Prog()
        for r in range(160): P(f"v_accvgpr_write_b32 a{A_O + r}, 0")
        for r in range(20): P(f"v_mov_b32 v{V_L + r}, 0\nv_mov_b32 v{V_NEGM + r}, 0")
        for s in range(5): P(f"s_mov_b32 s{S_T+s}, 0xff800000")
        P("s_waitcnt vmcnt(16)\ns_barrier")
        for g in self.kv_addr('A') + self.kv_reads('A', 'K') + self.kv_reads('A', 'V') + self.kv_addr('B'):
            for x in g: P(x)
        for x in self.s_mfmas(U[0], 0) + self.s_mfmas(U[1], 1) + self.s_mfmas(U[2], 2): P(x)
        if not self.x_nomax:
            for g in self.max_ops(U[0], 0):
                for x in g: P(x)
            P("s_nop 3")
            for x in self.check_ops(U[0], 0): P(x)
        for g in self.exp_ops(U[0], 0, 0) + (self.max_ops(U[1], 1) if not self.x_nomax else []):
            for x in g: P(x)
        P(f"s_waitcnt lgkmcnt(0)\ns_mov_b32 s{S_CNT}, 7")
        pre, _ = finalize_linear(P.items)
        out = Prog(); out.extend(pre)
        body, _ = finalize_loop(self.attn_body(qh, False).items)
        if self.stamps:
            self.stamp(out, 5)
        out.label(f"{n}_at{tag}")
        out.extend(body)
        out(f"s_sub_u32 s{S_CNT}, s{S_CNT}, 1\ns_cmp_lg_u32 s{S_CNT}, 0\ns_cbranch_scc1 {n}_at{tag}")
        if self.stamps:
            self.stamp(out, 6)
        lastb = self.attn_body(qh, True)
        l1, f = auto_lgkm(body, None)
        l2, _ = auto_lgkm(lastb.items, f)
        l3 = fix_hazards(l2, wrap=body)
        out.extend(l3)
        return out

    def combine(self, qh):
        L = V_LANE
        E = Prog()
        MLO = 32768
        if self.cstamp: E(f"s_waitcnt lgkmcnt(0)\ns_memtime s[48:49]\ns_waitcnt lgkmcnt(0)\ns_cmp_eq_u32 s{S_ITEM}, 0\ns_cselect_b32 s82, s48, s82")
        E("s_nop 7\ns_waitcnt lgkmcnt(0)\ns_barrier")
        if self.cstamp: E(f"s_waitcnt lgkmcnt(0)\ns_memtime s[48:49]\ns_waitcnt lgkmcnt(0)\ns_cmp_eq_u32 s{S_ITEM}, 0\ns_cselect_b32 s83, s48, s83")
        E(f"""
        v_lshlrev_b32 v2, 2, v{L}
        v_add_u32 v2, {STG + MLO}, v2
        s_mul_i32 s39, s{S_W}, 2560
        v_add_u32 v3, s39, v2
        v_lshlrev_b32 v8, 4, v{L}
        v_add_u32 v8, {STG}, v8
        s_lshl_b32 s39, s{S_W}, 13
        s_lshl_b32 s40, s{S_HH}, 12
        s_add_u32 s{S_TMP2}, s39, s40
        v_add_u32 v5, s{S_TMP2}, v8
        s_xor_b32 s{S_TMP2}, s{S_TMP2}, 4096
        v_add_u32 v6, s{S_TMP2}, v8
        """)
        for s_ in range(5):
            E(f"ds_write_b32 v3, v{V_NEGM + s_*4} offset:{s_*512}")
            E(f"ds_write_b32 v3, v{V_L + s_*4} offset:{s_*512 + 256}")
        for jl in range(8):
            E(f"ds_write_b128 v{5 + (jl >> 2)}, {rng('a', acc_o(4, jl))} offset:{(jl & 3)*1024}")
        E(f"""s_mov_b64 s[72:73], 0
        s_mov_b32 s{S_XRB}, 0x21800000
        v_mov_b32 v{V_T3}, 0x5d800000
        v_mov_b32 v{V_P}, 0
        v_mov_b32 v{V_P+1}, 0
        v_mov_b32 v{V_P+2}, 0
        v_mov_b32 v{V_P+3}, 0
        s_xor_b32 s39, s{S_W}, 2
        s_mul_i32 s39, s39, 2560
        v_add_u32 v4, s39, v2
        s_lshl_b32 s39, s{S_W}, 11
        v_add_u32 v5, s39, v8
        v_and_b32 v6, 15, v{L}
        v_lshlrev_b32 v6, 8, v6
        v_lshrrev_b32 v7, 4, v{L}
        v_lshlrev_b32 v7, 4, v7
        v_add_u32 v7, v6, v7
        s_mul_i32 s{S_XOFF}, s{S_ITEM}, 36864
        s_lshl_b32 s{S_WOFF}, s{S_W}, 6
        s_add_u32 s{S_WOFF}, s{S_WOFF}, {128*256}
        s_add_u32 s{S_WOFF}, s{S_WOFF}, s{S_XOFF}
        s_lshl_b32 s39, s{S_QH}, 14
        s_lshl_b32 s40, s{S_HH}, 7
        s_add_u32 s39, s39, s40
        s_add_u32 s{S_XOFF}, s{S_XOFF}, s39
        """)
        E("s_waitcnt lgkmcnt(0)\ns_barrier")
        if self.cstamp: E(f"s_waitcnt lgkmcnt(0)\ns_memtime s[48:49]\ns_waitcnt lgkmcnt(0)\ns_cmp_eq_u32 s{S_ITEM}, 0\ns_cselect_b32 s84, s48, s84")
        for s_ in range(4):
            E(f"ds_read_b32 v{120 + 2*s_}, v4 offset:{s_*512}")
            E(f"ds_read_b32 v{121 + 2*s_}, v4 offset:{s_*512 + 256}")
        for ww in range(4):
            E(f"ds_read_b32 v{128 + 2*ww}, v2 offset:{ww*2560 + 4*512}")
            E(f"ds_read_b32 v{129 + 2*ww}, v2 offset:{ww*2560 + 4*512 + 256}")
        for ww in range(4):
            for x in range(2):
                E(f"ds_read_b128 {rng('v', 160 + (ww*2+x)*4)}, v5 offset:{ww*8192 + x*1024}")
        E(f"""
        s_lshl_b32 s39, s{S_W}, 14
        v_add_u32 v3, s39, v8
        s_xor_b32 s39, s39, {2 << 14}
        v_add_u32 v4, s39, v8
        """)
        for s_ in range(4):
            for r in range(16):
                E(f"v_accvgpr_read_b32 v{192 + 16*(s_ % 3) + r if s_ < 3 else 96 + r}, a{acc_o(s_, 0) + r}")
        E("s_waitcnt lgkmcnt(0)\ns_barrier")
        if self.cstamp: E(f"s_waitcnt lgkmcnt(0)\ns_memtime s[48:49]\ns_waitcnt lgkmcnt(0)\ns_cmp_eq_u32 s{S_ITEM}, 0\ns_cselect_b32 s85, s48, s85")
        for s_ in range(4):
            for x in range(4):
                E(f"ds_write_b128 v3, {rng('a', acc_o(s_, 4 + x))} offset:{(s_*4+x)*1024}")
        for s_ in range(4):
            nm, l_ = V_NEGM + 4 * s_, V_L + 4 * s_
            no, lo = 120 + 2 * s_, 121 + 2 * s_
            E(f"""
            v_min_f32 v2, v{nm}, v{no}
            v_sub_f32 v6, v2, v{nm}
            v_sub_f32 v5, v2, v{no}
            v_exp_f32 v6, v6
            v_exp_f32 v5, v5
            s_nop 0
            v_mul_f32 v9, v6, v{l_}
            v_fma_f32 v9, v5, v{lo}, v9
            v_cmp_nge_f32 s[60:61], v9, s{S_XRB}
            v_cmp_nle_f32 vcc, v9, v{V_T3}
            v_rcp_f32 v9, v9
            s_or_b64 s[72:73], s[72:73], s[60:61]
            s_or_b64 s[72:73], s[72:73], vcc
            v_mul_f32 v{136+4*s_}, v6, v9
            v_mul_f32 v{137+4*s_}, v6, v9
            v_mul_f32 v{138+4*s_}, v5, v9
            v_mul_f32 v{139+4*s_}, v5, v9
            """)
        E(f"""
        v_min_f32 v2, v128, v130
        v_min_f32 v6, v132, v134
        v_min_f32 v2, v2, v6
        """)
        for ww in range(4):
            E(f"v_sub_f32 v{152+2*ww}, v2, v{128+2*ww}\nv_exp_f32 v{152+2*ww}, v{152+2*ww}")
        E(f"""
        s_nop 0
        v_mul_f32 v9, v152, v129
        v_fma_f32 v9, v154, v131, v9
        v_fma_f32 v9, v156, v133, v9
        v_fma_f32 v9, v158, v135, v9
        v_cmp_nge_f32 s[60:61], v9, s{S_XRB}
        v_cmp_nle_f32 vcc, v9, v{V_T3}
        v_rcp_f32 v9, v9
        s_or_b64 s[72:73], s[72:73], s[60:61]
        s_or_b64 s[72:73], s[72:73], vcc
        """)
        for ww in range(4): E(f"v_mul_f32 v{152+2*ww}, v{152+2*ww}, v9\nv_mov_b32 v{153+2*ww}, v{152+2*ww}")
        for r in range(8):
            E(f"v_mul_f32 v{112+r}, v{160+r}, v152")
        for ww in range(1, 4):
            for r in range(8):
                E(f"v_fma_f32 v{112+r}, v{160+ww*8+r}, v{152+2*ww}, v{112+r}")
        for r in range(4):
            E(f"v_fma_f32 v{V_P+2}, v{112+2*r}, v{V_P}, v{V_P+2}")
            E(f"v_fma_f32 v{V_P+3}, v{113+2*r}, v{V_P}, v{V_P+3}")
            E(f"v_cvt_pk_bf16_f32 v{V_P+4+r}, v{112+2*r}, v{113+2*r}")
        E(f"buffer_store_dwordx4 {rng('v', V_P+4)}, v7, s[20:23], s{S_WOFF} offen")
        mine = lambda s_: (192 + 16 * s_) if s_ < 3 else 96
        for s_ in range(4):
            for r in range(16):
                E(f"v_mul_f32 v{mine(s_)+r}, v{mine(s_)+r}, v{136+4*s_}")
        if self.cstamp: E(f"s_waitcnt lgkmcnt(0)\ns_memtime s[48:49]\ns_waitcnt lgkmcnt(0)\ns_cmp_eq_u32 s{S_ITEM}, 0\ns_cselect_b32 s86, s48, s86")
        E("s_waitcnt lgkmcnt(0)\ns_barrier")
        if self.cstamp: E(f"s_waitcnt lgkmcnt(0)\ns_memtime s[48:49]\ns_waitcnt lgkmcnt(0)\ns_cmp_eq_u32 s{S_ITEM}, 0\ns_cselect_b32 s87, s48, s87")
        recv = lambda s_: 160 + 16 * (s_ % 2)
        def rd(s_):
            for x in range(4):
                E(f"ds_read_b128 {rng('v', recv(s_) + 4*x)}, v4 offset:{(s_*4+x)*1024}")
        rd(0); rd(1)
        for s_ in range(4):
            m_, rc = mine(s_), recv(s_)
            for r in range(16):
                E(f"v_fma_f32 v{m_+r}, v{rc+r}, v{138+4*s_}, v{m_+r}")
            if s_ + 2 < 4: rd(s_ + 2)
            pk = 56 + 8 * s_
            for r in range(8):
                E(f"v_fma_f32 v{V_P+2}, v{m_+2*r}, v{V_P}, v{V_P+2}")
                E(f"v_fma_f32 v{V_P+3}, v{m_+2*r+1}, v{V_P}, v{V_P+3}")
                E(f"v_cvt_pk_bf16_f32 v{pk+r}, v{m_+2*r}, v{m_+2*r+1}")
            E(f"s_add_u32 s39, s{S_XOFF}, {s_*4096}")
            for p in range(2):
                E(f"buffer_store_dwordx4 {rng('v', pk+4*p)}, v7, s[20:23], s39 offen offset:{64*p}")
        E(f"""
        v_cmp_u_f32 vcc, v{V_P+2}, v{V_P+3}
        s_nop 1
        s_or_b64 s[72:73], s[72:73], vcc
        s_cmp_lg_u64 s[72:73], 0
        s_cselect_b32 s39, 1, {1 if self.force_bad else 0}
        s_xor_b32 s40, s{S_SAFE}, 1
        s_and_b32 s39, s39, s40
        s_lshl_b32 s39, s39, s{S_ITEM}
        s_or_b32 s{S_BAD}, s{S_BAD}, s39
        s_waitcnt lgkmcnt(0)
        """)
        if self.cstamp: E(f"s_waitcnt lgkmcnt(0)\ns_memtime s[48:49]\ns_waitcnt lgkmcnt(0)\ns_cmp_eq_u32 s{S_ITEM}, 0\ns_cselect_b32 s88, s48, s88")
        it, _ = finalize_linear(E.items)
        o = Prog(); o.extend(it)
        return o

    def agree_bad(self):
        E = Prog()
        E(f"""
        s_barrier
        v_mov_b32 v5, {STG}
        s_lshl_b32 s40, s{S_W}, 2
        v_add_u32 v6, s40, v5
        v_mov_b32 v3, s{S_BAD}
        ds_write_b32 v6, v3
        s_waitcnt lgkmcnt(0)
        s_barrier
        ds_read_b128 v[120:123], v5
        s_waitcnt lgkmcnt(0)
        v_or_b32 v120, v120, v121
        v_or_b32 v122, v122, v123
        v_or_b32 v120, v120, v122
        s_nop 0
        v_readfirstlane_b32 s{S_BAD}, v120
        s_nop 3
        """)
        it, _ = finalize_linear(E.items)
        o = Prog(); o.extend(it)
        return o

    def stamp(self, out, idx_expr, sel=None):
        if not self.stamps: return
        if (self.qstamp or self.cstamp) and idx_expr not in (0, 1): return
        base = idx_expr
        u = self.nst; self.nst += 1
        out(f"""s_waitcnt lgkmcnt(0)
        {'s_memrealtime' if self.dbg_stamps is not None else 's_memtime'} s[72:73]
        s_waitcnt lgkmcnt(0)
        s_cmp_eq_u32 s{sel if sel is not None else S_ITEM}, 0
        s_cselect_b32 s{80+base}, s72, s{80+base}
        s_cselect_b32 s{88+base}, s{88+base}, s72""")

    def build(self):
        n = self.name
        out = Prog()
        st, _ = finalize_linear(self.setup().items)
        out.extend(st)
        out.label(f"{n}_qpL")
        self.stamp(out, 0, S_QI)
        out.extend(self.qp('x'))
        self.stamp(out, 1, S_QI)
        out(f"s_xor_b32 s39, s{S_LATE}, 1\ns_or_b32 s39, s39, s{S_QI}\ns_or_b32 s39, s39, s{S_SAFE}\ns_cmp_lg_u32 s39, 0\ns_cbranch_scc1 {n}_nolate0")
        out.extend(self.lq())
        out(f"s_mov_b32 s{S_QI}, 1\ns_mov_b32 s{S_FMAX}, 1\ns_branch {n}_qpL")
        out.label(f"{n}_nolate0")
        out(f"s_xor_b32 s39, s{S_SAFE}, 1\ns_and_b32 s39, s39, s{S_LATE}\ns_cmp_lg_u32 s39, 0\ns_cbranch_scc1 {n}_att")
        out.extend(self.lq())
        out.label(f"{n}_att")
        self.stamp(out, 2)
        out(f"s_cmp_lg_u32 s{S_SAFE}, 0\ns_cbranch_scc1 {n}_safe")
        out(f"s_cmp_lg_u32 s{S_QH}, 0\ns_cbranch_scc1 {n}_q1")
        self.x_nomax = self.fast
        out.extend(self.attention(0, 'a'))
        out(f"s_branch {n}_cmb")
        out.label(f"{n}_q1")
        out.extend(self.attention(1, 'b'))
        out(f"s_branch {n}_cmb")
        out.label(f"{n}_safe")
        self.x_nomax = False
        st, self.stamps = self.stamps, False
        out(f"s_cmp_lg_u32 s{S_QH}, 0\ns_cbranch_scc1 {n}_sq1")
        out.extend(self.attention(0, 'c'))
        out(f"s_branch {n}_cmb")
        out.label(f"{n}_sq1")
        out.extend(self.attention(1, 'd'))
        self.stamps = st
        out.label(f"{n}_cmb")
        self.stamp(out, 3)
        out(f"s_xor_b32 s39, s{S_LATE}, 1\ns_or_b32 s39, s39, s{S_ITEM}\ns_or_b32 s39, s39, s{S_SAFE}\ns_cmp_lg_u32 s39, 0\ns_cbranch_scc1 {n}_nolq")
        out.extend(self.lq())
        out.label(f"{n}_nolq")
        out.extend(self.combine(0))
        self.stamp(out, 4)
        out(f"s_cmp_lg_u32 s{S_SAFE}, 0\ns_cbranch_scc1 {n}_redo")
        out(f"s_add_u32 s{S_ITEM}, s{S_ITEM}, 1\ns_cmp_ge_u32 s{S_ITEM}, 2\ns_cbranch_scc1 {n}_agree")
        out(f"s_cmp_lg_u32 s{S_LATE}, 0\ns_cbranch_scc1 {n}_att")
        out(f"s_mov_b32 s{S_QI}, 1\ns_mov_b32 s{S_FMAX}, 1\ns_mov_b32 s{S_GOFF}, {16*16384}\ns_mov_b32 s10, s{S_NREC2}\ns_branch {n}_qpL")
        out.label(f"{n}_agree")
        out.extend(self.agree_bad())
        out.label(f"{n}_redo")
        out(f"s_cmp_eq_u32 s{S_BAD}, 0\ns_cbranch_scc1 {n}_fin")
        out(f"""s_and_b32 s39, s{S_BAD}, 1
        s_xor_b32 s{S_ITEM}, s39, 1
        s_lshl_b32 s39, 1, s{S_ITEM}
        s_andn2_b32 s{S_BAD}, s{S_BAD}, s39
        s_mov_b32 s{S_QI}, s{S_ITEM}
        s_mov_b32 s{S_SAFE}, 1
        s_mov_b32 s{S_FMAX}, 1
        s_lshl_b32 s{S_GOFF}, s{S_ITEM}, 18
        s_mov_b32 s10, s{S_NREC2}
        s_mov_b32 s{S_DSLOT}, s{S_DBASE}
        s_mov_b32 s{S_RSLOT}, 0
        s_branch {n}_qpL""")
        out.label(f"{n}_fin")
        if self.stamps and self.dbg_stamps is not None:
            out(f"""s_cmp_lg_u32 s2, {self.dbg_stamps}
            s_cbranch_scc1 {n}_done
            s_cmp_lg_u32 s{S_W}, 0
            s_cbranch_scc1 {n}_done
            s_memrealtime s[72:73]
            s_waitcnt lgkmcnt(0)
            s_mov_b32 s95, s72
            s_add_u32 s68, s68, {64 << 20}
            s_addc_u32 s69, s69, 0
            v_mov_b32 v2, 0""")
            for i in range(16):
                out(f"v_mov_b32 v3, s{80+i}\nglobal_store_dword v2, v3, s[68:69] offset:{4*i}")
        elif self.stamps:
            out(f"""s_lshl_b32 s39, s2, 2
            s_add_u32 s39, s39, s{S_W}
            s_lshl_b32 s39, s39, 6
            s_add_u32 s39, s39, {64 << 20}
            s_add_u32 s68, s68, s39
            s_addc_u32 s69, s69, 0
            v_mov_b32 v2, 0""")
            for i in range(16):
                out(f"v_mov_b32 v3, s{80+i}\nglobal_store_dword v2, v3, s[68:69] offset:{4*i}")
        out.label(f"{n}_done")
        out("s_endpgm")
        labs = {it.text for it in out.items if it.kind == 'label'}
        for r in self.rare:
            back = r.items[-1].ops[0] + ':'
            if back in labs: out.extend(r)
        return kernel_text(n, out.text(), vgpr=512, sgpr=102, acc=256), LDS_TOTAL

if __name__ == '__main__':
    import sys
    b = dict(order='mix', late_bit=6, pf1=True)
    variants = [('fa_a_kernel', dict(b)), ('fa_samekv_kernel', dict(b, same_kv=True, nt_kv=False))]
    hdr = ''; body = ''
    for nm, kw in variants:
        txt, lds = FA(name=nm, stamps=True, **kw).build()
        hdr += f"; @launch kernel={nm} grid=(256,1,1) block=(256,1,1) lds={lds}\n"
        body += txt
    open('fa.s', 'w').write(hdr + '.amdgcn_target "amdgcn-amd-amdhsa--gfx950"\n.text\n' + body)
```

```python
from asmlib import *

O_WS_OFF = 0
STG = 53248
WOFF = 36864

def gen_oproj(name='oproj_kernel', o_off=O_WS_OFF, stamps=False, dbg=False, nt_w=False, nt_o=False, nbuf=3, mid=False):
    RT = 's_memrealtime' if dbg else 's_memtime'
    ntw = ' nt' if nt_w else ''
    nto = ' nt' if nt_o else ''
    P = Prog()
    def stamp(X, i):
        if stamps: X(f"s_waitcnt lgkmcnt(0)\n{RT} s[50:51]\ns_waitcnt lgkmcnt(0)\ns_mov_b32 s{60+i}, s50")
    P(f"""
    s_cmp_ge_u32 s2, 256
    s_cbranch_scc1 {name}_done
    s_load_dwordx2 s[4:5], s[0:1], 96
    s_load_dwordx2 s[6:7], s[0:1], 80
    s_load_dwordx2 s[8:9], s[0:1], 32
    s_load_dwordx2 s[10:11], s[0:1], 72
    v_lshrrev_b32 v1, 6, v0
    v_and_b32 v2, 63, v0
    v_readfirstlane_b32 s24, v1
    s_and_b32 s32, s2, 7
    s_lshr_b32 s33, s2, 3
    s_lshr_b32 s25, s32, 2
    s_and_b32 s34, s32, 1
    s_lshl_b32 s34, s34, 2
    s_and_b32 s41, s33, 3
    s_add_u32 s26, s34, s41
    s_lshr_b32 s34, s32, 1
    s_and_b32 s34, s34, 1
    s_lshl_b32 s34, s34, 3
    s_lshr_b32 s42, s33, 2
    s_add_u32 s27, s34, s42
    """)
    P("""
    v_lshrrev_b32 v3, 4, v2
    v_and_b32 v4, 15, v2
    v_xor_b32 v5, v4, v3
    v_lshlrev_b32 v5, 4, v5
    v_lshlrev_b32 v6, 8, v3
    v_add_u32 v10, v5, v6
    """)
    for mm in range(9):
        P(f"""
        s_mul_i32 s32, s24, 9
        s_add_u32 s32, s32, {mm}
        s_and_b32 s33, s32, 3
        s_lshl_b32 s33, s33, 6
        v_xor_b32 v{146+mm}, s33, v10
        s_lshl_b32 s32, s32, 10
        v_add_u32 v{146+mm}, s32, v{146+mm}
        """)
    P("""
    v_lshrrev_b32 v3, 3, v2
    v_and_b32 v4, 7, v2
    v_lshrrev_b32 v5, 4, v2
    v_and_b32 v5, 1, v5
    v_lshlrev_b32 v5, 1, v5
    v_xor_b32 v4, v4, v5
    v_lshlrev_b32 v4, 4, v4
    v_lshlrev_b32 v3, 11, v3
    v_add_u32 v14, v3, v4
    s_lshl_b32 s32, s24, 16
    v_add_u32 v14, s32, v14
    """)
    for pp in range(4):
        P(f"v_xor_b32 v{155+pp}, {64*(pp & 1)}, v14\nv_add_u32 v{155+pp}, {pp*16384}, v{155+pp}")
    P("s_waitcnt lgkmcnt(0)")
    stamp(P, 0)
    P(f"""
    s_lshl_b32 s32, s25, 3
    s_add_u32 s32, s32, s26
    s_mul_i32 s32, s32, {144*8192}
    s_add_u32 s12, s4, s32
    s_addc_u32 s13, s5, 0
    s_add_u32 s12, s12, {o_off}
    s_addc_u32 s13, s13, 0
    s_and_b32 s13, s13, 0xffff
    s_mov_b32 s14, {144*8192}
    s_mov_b32 s15, 0x20000
    s_cmp_eq_u32 s25, 0
    s_cselect_b32 s16, s8, s10
    s_cselect_b32 s17, s9, s11
    s_lshl_b32 s32, s27, 7
    s_add_u32 s16, s16, s32
    s_addc_u32 s17, s17, 0
    s_and_b32 s17, s17, 0xffff
    s_sub_u32 s18, {4096*2048}, s32
    s_mov_b32 s19, 0x20000
    s_mul_i32 s45, s24, {9*1024}
    s_lshl_b32 s46, s24, 12
    s_add_u32 s46, s46, {WOFF}
    s_mov_b32 s36, 0
    s_mov_b32 s37, 0
    s_mov_b32 s29, 0
    s_mov_b32 s30, 0
    """)
    def dma_groups():
        L = [[f"s_add_u32 s38, s45, s29", f"s_add_u32 s39, s46, s29"]]
        for mm in range(9):
            L.append([f"s_add_u32 m0, s38, {mm*1024}", f"buffer_load_dwordx4 v{146+mm}, s[12:15], s36 offen{nto} lds"])
        for pp in range(4):
            L.append([f"s_add_u32 m0, s39, {pp*1024}", f"buffer_load_dwordx4 v{155+pp}, s[16:19], s37 offen{ntw} lds"])
        L.append([f"s_add_u32 s36, s36, 36864", f"s_min_u32 s36, s36, {144*8192}",
                  f"s_add_u32 s37, s37, {1<<18}", f"s_min_u32 s37, s37, {4096*2048}",
                  f"s_add_u32 s29, s29, {STG}", f"s_cmp_eq_u32 s29, {nbuf*STG}", f"s_cselect_b32 s29, 0, s29"])
        return L
    for g in dma_groups():
        for x in g: P(x)
    P("""
    v_and_b32 v3, 15, v2
    v_lshrrev_b32 v4, 4, v2
    s_lshl_b32 s32, s24, 2
    v_add_u32 v5, s32, v4
    v_xor_b32 v5, v5, v3
    v_lshlrev_b32 v5, 4, v5
    v_lshlrev_b32 v6, 8, v3
    v_add_u32 v16, v5, v6
    v_lshrrev_b32 v3, 2, v2
    v_and_b32 v3, 3, v3
    v_and_b32 v5, 3, v2
    v_lshlrev_b32 v6, 3, v4
    v_add_u32 v6, v6, v3
    s_lshl_b32 s32, s24, 5
    v_add_u32 v6, s32, v6
    v_lshlrev_b32 v6, 7, v6
    v_lshrrev_b32 v7, 1, v3
    v_and_b32 v8, 1, v4
    v_lshlrev_b32 v8, 1, v8
    v_add_u32 v7, v7, v8
    v_lshlrev_b32 v7, 5, v7
    v_lshlrev_b32 v5, 3, v5
    v_add_u32 v6, v6, v7
    v_add_u32 v17, v6, v5
    v_xor_b32 v18, 32, v17
    v_xor_b32 v19, 64, v17
    v_xor_b32 v20, 96, v17
    """)
    for st in range(nbuf - 1):
        for g in dma_groups():
            for x in g: P(x)
    P(f"""
    s_mul_i32 s32, s26, {144*4096}
    s_lshl_b32 s33, s25, 11
    s_add_u32 s32, s32, s33
    s_lshl_b32 s33, s27, 7
    s_add_u32 s32, s32, s33
    s_add_u32 s20, s6, s32
    s_addc_u32 s21, s7, 0
    s_and_b32 s21, s21, 0xffff
    s_sub_u32 s22, {8*144*4096}, s32
    s_mov_b32 s23, 0x20000
    """)
    for r in range(144):
        P(f"v_accvgpr_write_b32 a{r}, 0")
    FB = [32, 32 + 52]
    def reads(setk):
        b = FB[setk]
        L = []
        for j in range(4):
            a = b + 36 + 4 * j
            L.append([f"ds_read_b64_tr_b16 v[{a}:{a+1}], v{140+j} offset:{WOFF}"])
            L.append([f"ds_read_b64_tr_b16 v[{a+2}:{a+3}], v{140+j} offset:{WOFF+512}"])
        for t in range(9):
            L.append([f"ds_read_b128 v[{b+4*t}:{b+4*t+3}], v144 offset:{t*4096}"])
        return L
    def read_addr():
        return [[f"v_add_u32 v{140+j}, s30, v{17+j}"] for j in range(4)] + [["v_add_u32 v144, s30, v16"],
               [f"s_add_u32 s30, s30, {STG}", f"s_cmp_eq_u32 s30, {nbuf*STG}", "s_cselect_b32 s30, 0, s30"]]
    def mfmas(setk):
        b = FB[setk]
        L = []
        for t in range(9):
            for j in range(4):
                a = b + 36 + 4 * j
                acc = 16 * t + 4 * j
                L.append(f"v_mfma_f32_16x16x32_bf16 a[{acc}:{acc+3}], v[{a}:{a+3}], v[{b+4*t}:{b+4*t+3}], a[{acc}:{acc+3}]")
        return L
    P(f"s_waitcnt vmcnt({13*(nbuf-1)})\ns_barrier")
    for g in read_addr() + reads(0) + read_addr():
        for x in g: P(x)
    P("s_waitcnt lgkmcnt(0)")
    if mid:
        P("s_barrier")
        for g in dma_groups():
            for x in g: P(x)
    stamp(P, 1)
    P("s_mov_b32 s31, 16")
    pre, _ = finalize_linear(P.items)
    out = Prog(); out.extend(pre)
    body = Prog()
    for half in range(2):
        cur, nxt = half, 1 - half
        body(f"s_waitcnt vmcnt({13*(nbuf-1) if mid else 13*(nbuf-2)}) lgkmcnt(0)")
        body("s_barrier")
        M = mfmas(cur)
        R = reads(nxt)
        D = dma_groups()
        fill = [[] for _ in M]
        if mid:
            for i, g in enumerate(R): fill[i] += g
            fill[21] += ["s_waitcnt lgkmcnt(0)", "s_barrier"]
            for i, g in enumerate(D):
                p = min(22 + i, len(M) - 1)
                if 'm0' in g[0]:
                    fill[p - 1].append(g[0]); fill[p] += g[1:]
                else: fill[p] += g
            for i, g in enumerate(read_addr()): fill[min(17 + i, len(M) - 1)] += g
        else:
            for i, g in enumerate(D):
                p = min(2 * i, len(M) - 8)
                if 'm0' in g[0] and p > 0:
                    fill[p - 1].append(g[0]); fill[p] += g[1:]
                else: fill[p] += g
            for i, g in enumerate(R): fill[min(2 * i + 1, len(M) - 7)] += g
            for i, g in enumerate(read_addr()): fill[len(M) - 6 + i] += g
        for m, f in zip(M, fill):
            body(m)
            for x in f: body(x)
    body("s_sub_u32 s31, s31, 1")
    body("s_cmp_lg_u32 s31, 0")
    b_items, fifo = finalize_loop(body.items)
    out.label(f"{name}_loop")
    out.extend(b_items)
    out(f"s_cbranch_scc1 {name}_loop")
    E = Prog()
    stamp(E, 2)
    E("s_waitcnt vmcnt(0) lgkmcnt(0)")
    E("s_nop 7")
    E("s_barrier")
    E(f"""
    v_lshlrev_b32 v3, 4, v2
    """)
    for j in range(4):
        E(f"""
        s_sub_u32 s32, s24, {j+1}
        s_and_b32 s32, s32, 3
        s_mul_i32 s32, s32, 9216
        s_add_u32 s32, s32, {j*4*9216}
        v_add_u32 v{4+j}, s32, v3
        """)
    for t in range(9):
        for j in range(4):
            acc = 16 * t + 4 * j
            E(f"ds_write_b128 v{4+j}, a[{acc}:{acc+3}] offset:{t*1024}")
    E("s_waitcnt lgkmcnt(0)")
    E("s_barrier")
    E(f"""
    s_mul_i32 s32, s24, {4*9216}
    v_add_u32 v5, s32, v3
    v_and_b32 v9, 15, v2
    v_lshlrev_b32 v9, 12, v9
    v_lshrrev_b32 v21, 4, v2
    v_lshlrev_b32 v21, 3, v21
    v_add_u32 v9, v9, v21
    s_lshl_b32 s32, s24, 5
    v_add_u32 v9, s32, v9
    """)
    for t in range(9):
        base = 32 + 16 * (t % 6)
        for ww in range(4):
            E(f"ds_read_b128 v[{base+4*ww}:{base+4*ww+3}], v5 offset:{ww*9216 + t*1024}")
    E2 = Prog()
    E3 = Prog()
    items = []
    E = E
    return_E = None
    return finish(name, out, E, stamps, dbg, stamp)

def finish(name, out, E, stamps, dbg, stamp):
    reads = [it for it in E.items if it.op == 'ds_read_b128']
    E.items = [it for it in E.items if it.op != 'ds_read_b128']
    def rd(t):
        base = 32 + 16 * (t % 3)
        for ww in range(4):
            E(f"ds_read_b128 v[{base+4*ww}:{base+4*ww+3}], v5 offset:{ww*9216 + t*1024}")
    rd(0); rd(1)
    for t in range(9):
        if t + 2 < 9: rd(t + 2)
        base = 32 + 16 * (t % 3)
        for r in range(4): E(f"v_add_f32 v{base+r}, v{base+r}, v{base+4+r}")
        for r in range(4): E(f"v_add_f32 v{base+8+r}, v{base+8+r}, v{base+12+r}")
        for r in range(4): E(f"v_add_f32 v{base+r}, v{base+r}, v{base+8+r}")
        E(f"v_cvt_pk_bf16_f32 v{90+2*t}, v{base}, v{base+1}")
        E(f"v_cvt_pk_bf16_f32 v{91+2*t}, v{base+2}, v{base+3}")
        E(f"s_mov_b32 s33, {t*16*4096}")
        E(f"buffer_store_dwordx2 v[{90+2*t}:{91+2*t}], v9, s[20:23], s33 offen")
    stamp(E, 3)
    if stamps and dbg:
        E(f"""s_cmp_lg_u32 s2, 0
        s_cbranch_scc1 {name}_done
        s_cmp_lg_u32 s24, 0
        s_cbranch_scc1 {name}_done
        s_load_dwordx2 s[6:7], s[0:1], 88
        s_add_u32 s4, s4, {64 << 20}
        s_addc_u32 s5, s5, 0
        s_load_dwordx16 s[64:79], s[4:5], 0
        s_waitcnt lgkmcnt(0)
        v_mov_b32 v2, 0""")
        sel = [1, 2, 3, 4, 8, 9, 10, 11, 12, 15]
        for k, i in enumerate(sel):
            E(f"s_sub_u32 s32, s{64+i}, s64\nv_mov_b32 v3, s32\nglobal_store_dword v2, v3, s[6:7] offset:{4*k}")
        for k in range(4):
            E(f"s_sub_u32 s32, s{60+k}, s64\nv_mov_b32 v3, s32\nglobal_store_dword v2, v3, s[6:7] offset:{4*(10+k)}")
    elif stamps:
        E(f"""s_lshl_b32 s32, s2, 2
        s_add_u32 s32, s32, s24
        s_lshl_b32 s32, s32, 6
        s_add_u32 s32, s32, {64 << 20}
        s_add_u32 s4, s4, s32
        s_addc_u32 s5, s5, 0
        v_mov_b32 v2, 0""")
        for i in range(5):
            E(f"v_mov_b32 v3, s{60+i}\nglobal_store_dword v2, v3, s[4:5] offset:{4*i}")
    e_items, _ = finalize_linear(E.items)
    out.extend(e_items)
    out.label(f"{name}_done")
    out("s_endpgm")
    return kernel_text(name, out.text(), vgpr=400, sgpr=96, acc=256), 3 * STG

if __name__ == '__main__':
    variants = [('oproj_kernel', dict(stamps=True)), ('op_nomid_kernel', dict(stamps=True, mid=False))]
    hdr = ''; body = ''
    for nm, kw in variants:
        txt, lds = gen_oproj(nm, **kw)
        hdr += f"; @launch kernel={nm} grid=(256,1,1) block=(256,1,1) lds={lds}\n"
        body += txt
    open('op.s', 'w').write(hdr + '.amdgcn_target "amdgcn-amd-amdhsa--gfx950"\n.text\n' + body)
```

```python
import sys
sys.path.insert(0, 'gen')
import fa as fa_mod, oproj3
def make(path, fa_kw=None, op_kw=None, order='fo'):
    f = fa_mod.FA(name='fa_kernel', **(fa_kw or {}))
    t1, l1 = f.build()
    t2, l2 = oproj3.gen_oproj('oproj_kernel', **(op_kw or {}))
    hdr = open('concat_heads__mha_block_cached__gqa_block_cached__near_ridge.s.ref').read().split('; Override')[0]
    for k in order:
        if k == 'f': hdr += f"; @launch kernel=fa_kernel grid=(256,1,1) block=(256,1,1) lds={l1}\n"
        else: hdr += f"; @launch kernel=oproj_kernel grid=(256,1,1) block=(256,1,1) lds={l2}\n"
    open(path, 'w').write(hdr + '.amdgcn_target "amdgcn-amd-amdhsa--gfx950"\n.text\n' + t1 + t2)
if __name__ == '__main__':
    M = 'cdna_kernels/'
    base = dict(order='mix', late_bit=6, pf1=True, pf_wo=True, op_label='oproj_kernel')
    make(M + 'concat_heads__mha_block_cached__gqa_block_cached__near_ridge.s', fa_kw=dict(base))
    make(M + 'e_a.s', fa_kw=dict(base, nt_w=True))
    make(M + 'e_b.s', fa_kw=dict(base, pf0=True))
    make(M + 'e_c.s', fa_kw=dict(base, late_bit=3))
    make(M + 'e_d.s', fa_kw=dict(base, stamps=True, dbg_stamps=0), op_kw=dict(stamps=True, dbg=True))
```

```python
from asmlib import *
import math

RING = 0
SLOT = 32768
STG = 98304
XB = [STG, STG + 18432]
WB = [STG + 36864 + 8192 * i for i in range(3)]
QX = STG
LDS_TOTAL = 163840
O_WS_OFF = 0
CSCALE = math.log2(math.e) / math.sqrt(128.0)

import struct
def f2u(x): return struct.unpack('<I', struct.pack('<f', x))[0]

V_LANE = 1
V_RING = 10
V_KPAT, V_VPAT, V_KA, V_VA = 20, 24, 28, 32
V_P = 36
V_MX, V_T1, V_T2, V_T3 = 48, 49, 50, 51
V_ONES = 52
V_NEGM = 56
V_L = 76
V_S = 96
V_KF = {'A': 120, 'B': 184}
V_VF = {'A': 152, 'B': 216}
A_O = 0
A_Q = 160
V_XD, V_WD = 106, 98
V_WD2 = 96
QXBASE = 65536
V_PFW, V_PFX, V_PFD = 14, 15, 16
V_RINGK, V_RINGV = 17, 18
V_RINGH = 248
V_VA2 = 252
V_XPAT = 100
V_WPAT = 104
V_XA = 106
V_WA = 110
QF_W = [120, 156]
QF_X = [136, 172]

S_W, S_QH, S_HH, S_BLK, S_B, S_H0 = 24, 25, 26, 27, 28, 29
S_CH, S_DSLOT, S_RSLOT, S_CNT = 30, 31, 32, 33
S_T = 34
S_GOFF, S_LB, S_TMP, S_TMP2 = 41, 42, 40, 43
S_DWRAP, S_DBASE = 30, 42
S_XI, S_WI, S_XOFF, S_WOFF, S_XBUF, S_WBUF, S_XRB, S_WRB = 44, 45, 46, 47, 48, 49, 50, 51
S_XW_G, S_XW_L = 54, 55
S_XC = 96
S_WW_L, S_WLIM = 101, 56
S_BAD, S_SAFE, S_NREC2 = 44, 45, 53
S_ITEM = 58
S_FL = 59
S_QI = 70
S_FLAG = 72
S_LATE, S_PR, S_FI, S_FMAX, S_FG, S_FL2 = 71, 74, 75, 52, 53, 56
S_KVO = 66

QP_PAT = [98, 99, 100, 101, 102, 103, 104, 105, 106, 107, 108, 109, 110]
def qacc(k): return (56 + 4 * k) if k < 10 else (192 + 4 * (k - 10))
def acc_o(slot, jl): return A_O + slot * 32 + jl * 4
def q_frag(slot, jp): return A_Q + slot * 16 + jp * 4
def rng(f, b, n=4): return f"{f}[{b}:{b+n-1}]"

def interleave(M, fillers, start=0):
    out = []
    k = 0
    for i, m in enumerate(M):
        out.append(m)
        if i >= start and k < len(fillers):
            out += fillers[k]; k += 1
    while k < len(fillers):
        out += fillers[k]; k += 1
    return out

def spread(M, groups, start=0):
    m = len(M) - start
    n = len(groups)
    out = []
    for i, x in enumerate(M):
        out.append(x)
        if i >= start:
            k = i - start
            for g in groups[(k * n) // m:((k + 1) * n) // m]:
                out += g
    return out

class FA:
    def __init__(self, name='fa_kernel', nt_kv=True, nt_w=False, nt_x=False, dbg=None, order='early', stamps=False, pf_qp=True, pf_att=True, late_bit=1, x_nodma=False, x_nosm=False, x_nobr=False, x_nord=False, x_nobar=False, x_qv=False, q_nodma=False, q_nord=False, q_nobar=False, q_nowait=False, same_kv=False, x_nohead=False, x_noX=False, x_nomax=False, fill_qp=True, fast=True, force_bad=False, pf_wo=False, pf_code=False, op_label=None, dbg_stamps=None, pf0=False, pf1=False, pf_nt=False, qstamp=False, cstamp=False, st_flags='', qp0_nt=False, pf0x=False, rot=False, pf_tlb=False, dbg_rt=False):
        self.dbg_rt = dbg_rt
        self.pf_tlb = pf_tlb
        self.rot = rot
        self.st_flags, self.qp0_nt, self.pf0x = st_flags, qp0_nt, pf0x
        self.cstamp = cstamp
        self.qstamp = qstamp
        self.pf0, self.pf1 = pf0, pf1
        self.pf_nt = ' nt' if pf_nt else ''
        self.dbg_stamps = dbg_stamps
        self.pf_wo, self.pf_code, self.op_label = pf_wo, pf_code, op_label
        self.fast = fast
        self.force_bad = force_bad
        self.fill_qp = fill_qp
        self.x_nomax = x_nomax
        self.x_nohead, self.x_noX = x_nohead, x_noX
        self.same_kv = same_kv
        self.q_nowait = q_nowait
        self.q_nodma, self.q_nord, self.q_nobar = q_nodma, q_nord, q_nobar
        self.x_nodma, self.x_nosm, self.x_nobr, self.x_nord, self.x_nobar, self.x_qv = x_nodma, x_nosm, x_nobr, x_nord, x_nobar, x_qv
        self.pf_qp = pf_qp
        self.pf_att = pf_att
        self.late_bit = late_bit
        self.stamps = stamps
        self.nst = 0
        self.name = name
        self.nt_kv = ' nt' if nt_kv else ''
        self.nt_w = ' nt' if nt_w else ''
        self.nt_x = ' nt' if nt_x else ''
        self.dbg = dbg
        self.order = order
        self.rare = []
        self.uid = 0

    def setup(self):
        P = Prog()
        n = self.name
        P(f"""
        s_cmp_ge_u32 s2, 256
        s_cbranch_scc1 {n}_done
        s_and_b32 s39, s2, 7
        s_lshr_b32 s40, s2, 3
        s_lshr_b32 s{S_BLK}, s39, 2
        s_and_b32 s39, s39, 3
        s_and_b32 s{S_B}, s40, 7
        s_lshr_b32 s40, s40, 3
        s_mov_b32 s{S_PR}, s40
        s_lshl_b32 s39, s39, 3
        s_lshl_b32 s40, s40, 1
        s_add_u32 s{S_H0}, s39, s40
        s_mul_i32 s39, s{S_BLK}, 40
        s_add_u32 s60, s0, s39
        s_addc_u32 s61, s1, 0
        s_load_dwordx2 s[4:5], s[60:61], 0
        s_load_dwordx2 s[62:63], s[60:61], 8
        s_load_dwordx2 s[64:65], s[60:61], 16
        s_load_dwordx2 s[66:67], s[60:61], 24
        s_load_dwordx2 s[68:69], s[0:1], 96
        s_load_dwordx2 s[76:77], s[60:61], 32
        v_lshrrev_b32 v2, 6, v0
        v_and_b32 v{V_LANE}, 63, v0
        v_readfirstlane_b32 s{S_W}, v2
        s_and_b32 s{S_QH}, s{S_W}, 1
        s_lshr_b32 s{S_HH}, s{S_W}, 1
        """)
        L = V_LANE
        P(f"""
        v_lshrrev_b32 v2, 4, v{L}
        v_and_b32 v3, 15, v{L}
        v_xor_b32 v4, v3, v2
        v_lshlrev_b32 v5, 2, v2
        v_xor_b32 v5, v3, v5
        v_lshlrev_b32 v4, 4, v4
        v_lshlrev_b32 v5, 4, v5
        v_lshlrev_b32 v2, 8, v2
        v_add_u32 v{V_RINGK}, v4, v2
        v_add_u32 v{V_RINGV}, v5, v2
        s_cmp_eq_u32 s{S_QH}, 0
        s_cselect_b32 s39, 64, 16
        s_cselect_b64 vcc, -1, 0
        v_cndmask_b32 v{V_RING}, v{V_RINGV}, v{V_RINGK}, vcc
        v_xor_b32 v{V_RING+1}, s39, v{V_RING}
        s_lshl_b32 s40, s39, 1
        v_xor_b32 v{V_RING+2}, s40, v{V_RING}
        s_add_u32 s40, s40, s39
        v_xor_b32 v{V_RING+3}, s40, v{V_RING}
        v_add_u32 v{V_RINGH}, 4096, v{V_RING}
        v_add_u32 v{V_RINGH+1}, 4096, v{V_RING+1}
        v_add_u32 v{V_RINGH+2}, 4096, v{V_RING+2}
        v_add_u32 v{V_RINGH+3}, 4096, v{V_RING+3}
        """)
        P(self.pf_setup())
        P(f"""
        v_and_b32 v3, 15, v{L}
        v_lshrrev_b32 v2, 4, v{L}
        v_xor_b32 v4, v2, v3
        v_lshlrev_b32 v4, 4, v4
        v_lshlrev_b32 v5, 8, v3
        s_lshl_b32 s39, s{S_HH}, 14
        v_add_u32 v5, s39, v5
        """)
        for jp in range(4):
            P(f"v_xor_b32 v6, {64*jp}, v4\nv_add_u32 v{V_KPAT+jp}, v5, v6")
        P(f"""
        v_lshrrev_b32 v3, 2, v{L}
        v_and_b32 v3, 3, v3
        v_and_b32 v4, 3, v{L}
        v_xor_b32 v4, v4, v2
        v_lshlrev_b32 v4, 4, v4
        v_lshlrev_b32 v5, 6, v3
        v_add_u32 v4, v4, v5
        v_lshlrev_b32 v5, 2, v2
        v_add_u32 v5, v5, v3
        v_lshlrev_b32 v5, 8, v5
        s_lshl_b32 s39, s{S_HH}, 14
        s_add_u32 s39, s39, 8192
        v_add_u32 v5, s39, v5
        """)
        for ml in range(4):
            P(f"""
            s_lshl_b32 s39, s{S_HH}, 1
            s_add_u32 s39, s39, {ml}
            s_and_b32 s39, s39, 3
            s_lshl_b32 s39, s39, 6
            v_xor_b32 v6, s39, v4
            v_add_u32 v{V_VPAT+ml}, v5, v6
            """)
        if self.pf_code:
            P(f"""
            s_lshr_b32 s39, s2, 3
            s_cmp_ge_u32 s39, 16
            s_cbranch_scc1 {n}_npc
            s_cmp_lg_u32 s{S_W}, 0
            s_cbranch_scc1 {n}_npc
            s_getpc_b64 s[72:73]
            {n}_pc0:
            s_lshl_b32 s39, s39, 13
            s_add_u32 s72, s72, s39
            s_addc_u32 s73, s73, 0
            v_lshlrev_b32 v3, 7, v{L}
            global_load_dword v{V_PFD}, v3, s[72:73]
            {n}_npc:
            """)
        for r in range(4):
            P(f"v_mov_b32 v{V_ONES+r}, 0x3f803f80")
        P("s_waitcnt lgkmcnt(0)")
        P(f"""
        s_cmp_eq_u32 s{S_QH}, 0
        s_cselect_b32 s8, s62, s64
        s_cselect_b32 s9, s63, s65
        s_lshl_b32 s39, s{S_B}, 5
        s_add_u32 s39, s39, s{S_H0}
        s_lshr_b32 s40, s39, 14
        s_lshl_b32 s39, s39, {18 if not self.same_kv else 31}
        s_and_b32 s39, s39, {'-1' if not self.same_kv else '0'}
        s_add_u32 s8, s8, s39
        s_addc_u32 s9, s9, s40
        s_lshl_b32 s39, s{S_HH}, 13
        s_add_u32 s8, s8, s39
        s_addc_u32 s9, s9, 0
        s_and_b32 s9, s9, 0xffff
        s_sub_u32 s10, {2*262144}, s39
        s_mov_b32 s11, 0x20000
        s_mul_i32 s39, s{S_B}, {144*2048}
        s_add_u32 s12, s4, s39
        s_addc_u32 s13, s5, 0
        s_and_b32 s13, s13, 0xffff
        s_mov_b32 s14, {144*2048}
        s_mov_b32 s15, 0x20000
        s_lshl_b32 s39, s{S_H0}, 8
        s_add_u32 s16, s66, s39
        s_addc_u32 s17, s67, 0
        s_and_b32 s17, s17, 0xffff
        s_sub_u32 s18, {1024*8192}, s39
        s_mov_b32 s19, 0x20000
        s_lshl_b32 s39, s{S_BLK}, 3
        s_add_u32 s39, s39, s{S_B}
        s_lshl_b32 s39, s39, 5
        s_add_u32 s39, s39, s{S_H0}
        s_mul_i32 s39, s39, 36864
        s_add_u32 s20, s68, s39
        s_addc_u32 s21, s69, 0
        s_add_u32 s20, s20, {O_WS_OFF}
        s_addc_u32 s21, s21, 0
        s_and_b32 s21, s21, 0xffff
        s_mov_b32 s22, {2*36864}
        s_mov_b32 s23, 0x20000
        s_lshl_b32 s{S_DBASE}, s{S_W}, 13
        s_mov_b32 s{S_DSLOT}, s{S_DBASE}
        s_add_u32 s{S_DWRAP}, s{S_DBASE}, {3*SLOT}
        s_mov_b32 s{S_GOFF}, 0
        s_mov_b32 s{S_RSLOT}, 0
        s_mov_b32 s{S_ITEM}, 0
        s_mov_b32 s{S_QI}, 0
        s_mov_b32 s{S_FMAX}, 1
        s_lshl_b32 s39, s{S_B}, 5
        s_add_u32 s39, s39, s{S_H0}
        s_lshl_b32 s{S_KVO}, s39, 18
        s_mov_b32 s{S_KVO+1}, 0
        s_and_b32 s39, s2, 3
        s_lshl_b32 s39, s39, 5
        s_lshr_b32 s40, s2, 3
        s_add_u32 s39, s39, s40
        s_lshl_b32 s39, s39, 16
        s_add_u32 s76, s76, s39
        s_addc_u32 s77, s77, 0
        s_and_b32 s77, s77, 0xffff
        s_mov_b32 s78, 65536
        s_mov_b32 s79, 0x20000
        v_lshlrev_b32 v19, 7, v{L}
        """)
        if self.order == 'early': P(f"s_mov_b32 s{S_LATE}, 0")
        elif self.order == 'late': P(f"s_mov_b32 s{S_LATE}, 1")
        else: P(f"s_lshr_b32 s{S_LATE}, s2, {self.late_bit}\ns_and_b32 s{S_LATE}, s{S_LATE}, 1")
        P(f"""s_xor_b32 s{S_FMAX}, s{S_LATE}, 1
        s_mov_b32 s{S_BAD}, 0
        s_mov_b32 s{S_SAFE}, 0
        s_mov_b32 s{S_NREC2}, s10
        s_mov_b32 s{S_QI}, 0""")
        if self.pf0:
            for x in self.pf_w(f"s{S_W}", "0"): P(x)
            for x in self.pf_x(f"s{S_W}"): P(x)
            P(f"s_add_u32 s39, s{S_W}, 4")
            for x in self.pf_x("s39"): P(x)
            P(f"s_add_u32 s39, s{S_W}, 8\ns_min_u32 s39, s39, 8")
            for x in self.pf_x("s39"): P(x)
            P(f"s_cmp_eq_u32 s{S_LATE}, 0\ns_cbranch_scc1 {n}_npf0")
            for x in self.pf_w(f"s{S_W}", "1"): P(x)
            P.label(f"{n}_npf0")
        if self.pf0x:
            for x in self.pf_x(f"s{S_W}"): P(x)
            P(f"s_add_u32 s39, s{S_W}, 4")
            for x in self.pf_x("s39"): P(x)
            P(f"s_add_u32 s39, s{S_W}, 8\ns_min_u32 s39, s39, 8")
            for x in self.pf_x("s39"): P(x)
            P(f"s_cmp_eq_u32 s{S_LATE}, 0\ns_cbranch_scc1 {n}_npf0x")
            for x in self.pf_w(f"s{S_W}", "1"): P(x)
            P.label(f"{n}_npf0x")
        if self.pf_tlb:
            P(f"""
            s_cmp_lg_u32 s{S_W}, 0
            s_cbranch_scc1 {n}_ntlb
            s_lshr_b32 s39, s2, 3
            s_lshl_b32 s39, s39, 18
            v_lshlrev_b32 v2, 13, v{V_LANE}
            s_mov_b32 exec_hi, 0
            buffer_load_dword v{V_PFD}, v2, s[16:19], s39 offen
            s_mul_i32 s39, s{S_PR}, {18*4096}
            v_lshlrev_b32 v2, 12, v{V_LANE}
            s_mov_b32 exec_lo, 0x3ffff
            buffer_load_dword v{V_PFD}, v2, s[12:15], s39 offen
            s_mov_b64 exec, -1
            {n}_ntlb:
            """)
        P(f"""
        s_lshl_b32 s39, s2, 7
        s_add_u32 s39, s39, {48 << 20}
        s_add_u32 s72, s68, s39
        s_addc_u32 s73, s69, 0
        v_mov_b32 v2, 0
        v_lshlrev_b32 v3, 2, v{V_LANE}
        s_mov_b32 exec_hi, 0
        global_store_dword v3, v2, s[72:73]
        s_mov_b32 exec_hi, -1
        """)
        P.extend(self.qp_patterns())
        return P

    def ring_instrs(self):
        nt = self.nt_kv
        D = []
        for m in range(8):
            g = []
            if m == 0: g.append(f"s_mov_b32 m0, s{S_DSLOT}")
            if m == 4: g.append(f"s_add_u32 m0, s{S_DSLOT}, 4096")
            v = V_RING + m if m < 4 else V_RINGH + m - 4
            g.append(f"buffer_load_dwordx4 v{v}, s[8:11], s{S_GOFF} offen offset:{(m & 3) * 1024}{nt} lds")
            D.append(g)
        adv = [f"s_add_u32 s{S_GOFF}, s{S_GOFF}, 16384",
               f"s_add_u32 s{S_DSLOT}, s{S_DSLOT}, {SLOT}",
               f"s_cmp_eq_u32 s{S_DSLOT}, s{S_DWRAP}",
               f"s_cselect_b32 s{S_DSLOT}, s{S_DBASE}, s{S_DSLOT}"]
        return D, adv
    def ring_groups(self):
        D, adv = self.ring_instrs()
        return D + [adv]

    def ring_fill(self):
        P = Prog()
        for _ in range(3):
            for g in self.ring_groups():
                for x in g: P(x)
        return P

    def pf_setup(self):
        L = V_LANE
        return f"""
        v_lshrrev_b32 v2, 1, v{L}
        v_lshlrev_b32 v2, 13, v2
        v_and_b32 v3, 1, v{L}
        v_lshlrev_b32 v3, 7, v3
        v_add_u32 v{V_PFW}, v2, v3
        v_lshrrev_b32 v2, 4, v{L}
        v_lshlrev_b32 v2, 11, v2
        v_and_b32 v3, 15, v{L}
        v_lshlrev_b32 v3, 7, v3
        v_add_u32 v{V_PFX}, v2, v3
        """
    def pf_w(self, i_expr_sgpr, head_sgpr):
        return [f"s_lshl_b32 s{S_TMP}, s{S_B}, 20",
                f"s_lshl_b32 s{S_TMP2}, {i_expr_sgpr}, 18",
                f"s_add_u32 s{S_TMP}, s{S_TMP}, s{S_TMP2}",
                f"s_lshl_b32 s{S_TMP2}, {head_sgpr}, 8",
                f"s_add_u32 s{S_TMP}, s{S_TMP}, s{S_TMP2}",
                f"buffer_load_dword v{V_PFD}, v{V_PFW}, s[16:19], s{S_TMP} offen{self.pf_nt}"]
    def pf_x(self, i_expr):
        return [f"s_mul_i32 s{S_TMP}, s{S_PR}, {36*2048}",
                f"s_lshl_b32 s{S_TMP2}, {i_expr}, 13",
                f"s_add_u32 s{S_TMP}, s{S_TMP}, s{S_TMP2}",
                f"buffer_load_dword v{V_PFD}, v{V_PFX}, s[12:15], s{S_TMP} offen{self.pf_nt}"]

    def qp_patterns(self):
        L = V_LANE
        P = Prog()
        P(f"""
        v_lshrrev_b32 v2, 3, v{L}
        v_and_b32 v3, 7, v{L}
        v_lshrrev_b32 v4, 4, v{L}
        v_xor_b32 v3, v3, v4
        v_lshlrev_b32 v3, 4, v3
        v_lshlrev_b32 v2, 11, v2
        v_add_u32 v2, v2, v3
        """)
        for x in range(5):
            P(f"""
            s_mul_i32 s39, s{S_W}, 5
            s_add_u32 s39, s39, {x}
            s_cmp_gt_u32 s39, 17
            s_cselect_b32 s40, 2, 0
            s_sub_u32 s39, s39, s40
            s_lshl_b32 s{S_XC+x}, s39, 10
            s_and_b32 s40, s39, 1
            s_lshl_b32 s40, s40, 6
            v_xor_b32 v3, s40, v2
            s_lshl_b32 s39, s39, 14
            v_add_u32 v{V_XD+x}, s39, v3
            """)
        P(f"""
        v_lshrrev_b32 v2, 4, v{L}
        v_and_b32 v3, 15, v{L}
        v_lshlrev_b32 v4, 2, v2
        v_xor_b32 v3, v3, v4
        v_xor_b32 v3, s{S_W}, v3
        v_lshlrev_b32 v3, 4, v3
        v_lshlrev_b32 v4, 13, v2
        v_add_u32 v3, v3, v4
        s_lshl_b32 s39, s{S_W}, 16
        v_add_u32 v{V_WD}, s39, v3
        v_add_u32 v{V_WD+1}, 32768, v{V_WD}
        v_and_b32 v3, 15, v{L}
        v_lshrrev_b32 v4, 1, v3
        v_xor_b32 v4, v4, v2
        v_lshlrev_b32 v4, 4, v4
        v_lshlrev_b32 v5, 7, v3
        v_xor_b32 v6, 64, v4
        v_add_u32 v4, v4, v5
        v_add_u32 v6, v6, v5
        s_lshl_b32 s39, s{S_QH}, 13
        s_add_u32 s39, s39, {QXBASE}
        v_add_u32 v{V_XPAT}, s39, v4
        v_add_u32 v{V_XPAT+1}, s39, v6
        v_add_u32 v{V_XPAT+2}, {8*2048 + QXBASE}, v4
        v_add_u32 v{V_XPAT+3}, {8*2048 + QXBASE}, v6
        v_lshrrev_b32 v3, 2, v{L}
        v_and_b32 v3, 3, v3
        v_and_b32 v4, 3, v{L}
        v_xor_b32 v4, v4, v2
        v_lshlrev_b32 v4, 4, v4
        v_lshlrev_b32 v5, 6, v3
        v_add_u32 v4, v4, v5
        v_lshlrev_b32 v5, 3, v2
        v_add_u32 v5, v5, v3
        v_lshlrev_b32 v5, 8, v5
        """)
        for p in range(2):
            P(f"""
            s_xor_b32 s39, s{S_QH}, {p}
            s_lshl_b32 s40, s{S_HH}, 1
            s_add_u32 s39, s39, s40
            s_lshl_b32 s39, s39, 6
            v_xor_b32 v6, s39, v4
            v_add_u32 v{V_WPAT+p}, v5, v6
            """)
        for k, r in enumerate(QP_PAT): P(f"v_accvgpr_write_b32 a{240+k}, v{r}")
        P(f"s_lshl_b32 s{S_WW_L}, s{S_W}, 11")
        return P

    def qp2(self, tag):
        n = self.name
        L = V_LANE
        NX, NW = 4, 4
        FW = [120, 172]; FX = [152, 204]
        P = Prog()
        for k, r in enumerate(QP_PAT): P(f"v_accvgpr_read_b32 v{r}, a{240+k}")
        P(f"""
        v_add_u32 v{V_WD2}, 256, v{V_WD}
        v_add_u32 v{V_WD2+1}, 256, v{V_WD+1}
        s_lshl_b32 s39, s{S_PR}, 1
        s_add_u32 s39, s39, s{S_B}
        s_and_b32 s39, s39, {7 if self.rot else 0}
        s_lshl_b32 s{S_WOFF}, s39, 20
        s_lshl_b32 s{S_XOFF}, s39, 8
        s_mov_b32 s48, 32
        s_mov_b32 s49, 16
        """)
        def x_groups(buf):
            G = [[f"s_cmp_lg_u32 s49, 0", f"s_cselect_b32 s{S_TMP2}, s{S_XOFF}, {144*2048}"]]
            for x in range(5):
                G.append([f"s_add_u32 m0, s{S_XC+x}, {QXBASE + buf*18432}",
                          f"buffer_load_dwordx4 v{V_XD+x}, s[12:15], s{S_TMP2} offen{self.nt_x} lds"])
            G.append([f"s_add_u32 s{S_XOFF}, s{S_XOFF}, 128", f"s_and_b32 s{S_XOFF}, s{S_XOFF}, 2047", f"s_sub_u32 s49, s49, 1", f"s_max_i32 s49, s49, 0"])
            return G
        def w_groups(buf):
            G = [[f"s_cmp_lg_u32 s48, 0", f"s_cselect_b32 s{S_TMP}, s{S_WOFF}, {32 << 18}"]]
            for h in range(2):
                for x in range(2):
                    G.append([f"s_add_u32 m0, s{S_WW_L}, {buf*16384 + h*8192 + x*1024}",
                              f"buffer_load_dwordx4 v{(V_WD if h == 0 else V_WD2) + x}, s[16:19], s{S_TMP} offen{self.nt_w} lds"])
            G.append([f"s_add_u32 s{S_WOFF}, s{S_WOFF}, {1 << 18}", f"s_and_b32 s{S_WOFF}, s{S_WOFF}, {(32 << 18) - 1}", f"s_sub_u32 s48, s48, 1", f"s_max_i32 s48, s48, 0"])
            return G
        def read_groups(k, i):
            G = []
            wb = (i % NW) * 16384
            xb = ((i >> 1) % NX) * 18432
            ss = i & 1
            GX = []
            for t in range(4):
                GX.append([f"ds_read_b128 {rng('v', FX[k]+4*t)}, v{V_XPAT+ss} offset:{xb + t*2048}"])
            GX.append([f"ds_read_b128 {rng('v', FX[k]+16)}, v{V_XPAT+2+ss} offset:{xb}"])
            for h in range(2):
                for jl in range(4):
                    a = FW[k] + 16 * h + 4 * jl
                    p, hh = jl >> 1, jl & 1
                    G.append([f"ds_read_b64_tr_b16 v[{a}:{a+1}], v{V_WPAT+p} offset:{wb + h*8192 + 8*hh}"])
                    G.append([f"ds_read_b64_tr_b16 v[{a+2}:{a+3}], v{V_WPAT+p} offset:{wb + h*8192 + 8*hh + 1024}"])
            return G[:8] + GX + G[8:]
        def qa(h, k): return 72 * h + 4 * k
        def mf(k):
            M = []
            for h in range(2):
                for t in range(4):
                    for jl in range(4):
                        a = qa(h, 4 * t + jl)
                        M.append(f"v_mfma_f32_16x16x32_bf16 {rng('a', a)}, {rng('v', FW[k]+16*h+4*jl)}, {rng('v', FX[k]+4*t)}, {rng('a', a)}")
                for x in range(2):
                    a = qa(h, 16 + x)
                    M.append(f"v_mfma_f32_16x16x32_bf16 {rng('a', a)}, {rng('v', FW[k]+16*h+4*x)}, {rng('v', FX[k]+16)}, {rng('a', a)}")
            return M
        pro = []
        xi = wi = 0
        while xi < NX or wi < NW:
            if xi < NX and 2 * xi <= wi: pro.append(('X', xi)); xi += 1
            elif wi < NW: pro.append(('W', wi)); wi += 1
            else: pro.append(('X', xi)); xi += 1
        cnt = {'X': 5, 'W': 4}
        seq = list(pro)
        def outstanding_after(need):
            last = max(i for i, it in enumerate(seq) if it in need)
            return sum(cnt[k] for k, _ in seq[last + 1:])
        waits = {}
        for i in range(0, 24):
            waits[i] = outstanding_after({('W', i + 1), ('X', (i + 1) >> 1)})
            seq.append(('W', i + NW))
            if i & 1: seq.append(('X', (i >> 1) + NX))
        wr = [min(waits[i] for i in range(r, 24, 8)) for r in range(8)]
        assert max(wr) <= 63
        P("s_waitcnt vmcnt(0)\ns_barrier")
        def issue(lst):
            for kind, idx in lst:
                for g in (x_groups(idx) if kind == 'X' else w_groups(idx)):
                    for x in g: P(x)
        n1, n2 = 2, 4
        issue(pro[:n1])
        for r in range(144): P(f"v_accvgpr_write_b32 a{r}, 0")
        issue(pro[n1:n2])
        w0 = sum(cnt[k] for k, _ in pro[2:n2])
        P(f"s_waitcnt vmcnt({w0})\ns_barrier")
        if self.qstamp:
            P(f"s_memtime s[72:73]\ns_waitcnt lgkmcnt(0)\ns_mov_b32 s82, s72")
        for g in read_groups(0, 0):
            for x in g: P(x)
        issue(pro[n2:])
        P(f"s_waitcnt lgkmcnt(0)\ns_mov_b32 s{S_CNT}, 4")
        pre, _ = finalize_linear(P.items)
        out = Prog(); out.extend(pre)
        body = Prog()
        for r in range(8):
            ss = r & 1
            if not self.q_nowait: body(f"s_waitcnt vmcnt({wr[r]}) lgkmcnt(0)")
            else: body("s_waitcnt lgkmcnt(0)")
            body("s_barrier")
            R = read_groups(1 - ss, r + 1)
            D = w_groups(r % NW) + (x_groups((r >> 1) % NX) if ss == 1 else [])
            if self.q_nodma: D = []
            if self.q_nord: R = R[:1]
            M = mf(ss)
            fill = [[] for _ in M]
            hv = []
            ri = di = 0
            while ri < len(R) or di < len(D):
                for _ in range(2):
                    if ri < len(R): hv.append(R[ri]); ri += 1
                if di < len(D): hv.append(D[di]); di += 1
            npos = len(M)
            k = 0
            for g in hv:
                pos = min(k, npos - 1)
                if 'm0' in g[0] and pos > 0 and not any('buffer_load' in y for y in fill[pos - 1]):
                    fill[pos - 1].append(g[0]); fill[pos] += g[1:]
                else:
                    fill[pos] += g
                if any(('ds_read' in y or 'buffer_load' in y) for y in g): k += 1
            for x in interleave(M, fill): body(x)
        if self.qstamp:
            body("s_waitcnt lgkmcnt(0)\ns_memtime s[72:73]\ns_waitcnt lgkmcnt(0)")
            for it in range(4):
                body(f"s_cmp_eq_u32 s{S_CNT}, {4 - it}\ns_cselect_b32 s{83+it}, s72, s{83+it}")
        body(f"s_sub_u32 s{S_CNT}, s{S_CNT}, 1\ns_cmp_lg_u32 s{S_CNT}, 0")
        b, _ = finalize_loop(body.items)
        out.label(f"{n}_qp{tag}")
        out.extend(b)
        out(f"s_cbranch_scc1 {n}_qp{tag}")
        E = Prog()
        E("s_waitcnt vmcnt(0) lgkmcnt(0)\ns_nop 7\ns_barrier")
        e1, _ = finalize_linear(E.items)
        out.extend(e1)
        return out

    def qconv(self, h, with_fill, nfill=3):
        L = V_LANE
        C = Prog()
        C(f"""
        v_mov_b32 v8, {f2u(CSCALE):#x}
        v_lshlrev_b32 v2, 4, v{L}
        v_add_u32 v2, {QX}, v2
        s_lshl_b32 s40, s{S_QH}, 14
        s_lshl_b32 s{S_TMP2}, s{S_HH}, 11
        s_add_u32 s40, s40, s{S_TMP2}
        s_lshl_b32 s{S_TMP2}, s{S_QH}, 10
        s_add_u32 s{S_XOFF}, s40, s{S_TMP2}
        s_xor_b32 s{S_TMP2}, s{S_TMP2}, 1024
        s_add_u32 s{S_WOFF}, s40, s{S_TMP2}
        v_add_u32 v3, s{S_XOFF}, v2
        v_add_u32 v4, s{S_WOFF}, v2
        s_lshl_b32 s40, s{S_HH}, 11
        s_lshl_b32 s{S_TMP2}, s{S_QH}, 10
        s_add_u32 s40, s40, s{S_TMP2}
        v_add_u32 v5, s40, v2
        """)
        def conv(k0, dst):
            t = dst + 4
            for r in range(8): C(f"v_accvgpr_read_b32 v{t+r}, a{72*h + 4*k0 + r}")
            for r in range(8): C(f"v_mul_f32 v{t+r}, v8, v{t+r}")
            for r in range(4): C(f"v_cvt_pk_bf16_f32 v{dst+r}, v{t+2*r}, v{t+2*r+1}")
        k = 0
        for t in range(4):
            for p in range(2):
                d = 120 + 12 * (k % 9); k += 1
                conv(4 * t + 2 * p, d)
                C(f"ds_write_b128 v{3+p}, {rng('v', d)} offset:{t*4096}")
        d = 120 + 12 * (k % 9)
        conv(16, d)
        C(f"ds_write_b128 v5, {rng('v', d)} offset:{8*4096}")
        if with_fill:
            RF = []
            for _ in range(nfill): RF += self.ring_groups()
            CI = Prog()
            ci = C.items
            step = max(1, len(ci) // len(RF))
            k = 0
            for i, it in enumerate(ci):
                if i % step == 0 and k < len(RF):
                    for x in RF[k]: CI(x)
                    k += 1
                CI.items.append(it)
            while k < len(RF):
                for x in RF[k]: CI(x)
                k += 1
            C = CI
        C("s_waitcnt lgkmcnt(0)\ns_barrier")
        it, _ = finalize_linear(C.items)
        o = Prog(); o.extend(it)
        return o

    def lq(self):
        L = V_LANE
        P = Prog()
        P(f"""
        v_lshlrev_b32 v2, 4, v{L}
        v_add_u32 v2, {QX}, v2
        s_lshl_b32 s39, s{S_QH}, 14
        v_add_u32 v3, s39, v2
        """)
        for t in range(4):
            for jp in range(4):
                P(f"ds_read_b128 {rng('a', q_frag(t, jp))}, v3 offset:{t*4096 + jp*1024}")
        for jp in range(4):
            P(f"ds_read_b128 {rng('a', q_frag(4, jp))}, v2 offset:{8*4096 + jp*1024}")
        P("s_waitcnt lgkmcnt(0)")
        it, _ = finalize_linear(P.items)
        o = Prog(); o.extend(it)
        return o

    def s_mfmas(self, unit, sb):
        slot, fs = unit
        M = []
        for kt in range(2):
            for jp in range(4):
                d = V_S + sb * 8 + kt * 4
                c = rng('v', V_NEGM + slot * 4) if jp == 0 else rng('v', d)
                M.append(f"v_mfma_f32_16x16x32_bf16 {rng('v', d)}, {rng('v', V_KF[fs] + (kt*4+jp)*4)}, {rng('a', q_frag(slot, jp))}, {c}")
        return M
    def pv_mfmas(self, unit, pb):
        slot, fs = unit
        M = []
        p = rng('v', V_P + pb * 4)
        for jl in range(8):
            M.append(f"v_mfma_f32_16x16x32_bf16 {rng('a', acc_o(slot, jl))}, {rng('v', V_VF[fs] + jl*4)}, {p}, {rng('a', acc_o(slot, jl))}")
        M.append(f"v_mfma_f32_16x16x32_bf16 {rng('v', V_L + slot*4)}, {rng('v', V_ONES)}, {p}, {rng('v', V_L + slot*4)}")
        return M
    def max_ops(self, unit, sb):
        slot, fs = unit
        s = V_S + sb * 8
        return [[f"v_max3_f32 v{V_MX}, v{s}, v{s+1}, v{s+2}"],
                [f"v_max3_f32 v{V_MX}, v{V_MX}, v{s+3}, v{s+4}"],
                [f"v_max3_f32 v{V_MX}, v{V_MX}, v{s+5}, v{s+6}"],
                [f"v_max_f32 v{V_MX}, v{V_MX}, v{s+7}"],
                [f"v_cmp_lt_f32 vcc, s{S_T+slot}, v{V_MX}"]]
    def check_ops(self, unit, sb):
        slot, fs = unit
        s = V_S + sb * 8
        self.uid += 1
        u = self.uid
        lab_r, lab_b = f"{self.name}_rare{u}", f"{self.name}_back{u}"
        R = Prog()
        R.label(lab_r)
        R(f"""
        s_nop 7
        v_mov_b32 v{V_T1}, v{V_MX}
        s_nop 1
        v_permlane16_swap_b32 v{V_MX}, v{V_T1}
        s_nop 1
        v_max_f32 v{V_MX}, v{V_MX}, v{V_T1}
        v_mov_b32 v{V_T1}, v{V_MX}
        s_nop 1
        v_permlane32_swap_b32 v{V_MX}, v{V_T1}
        s_nop 1
        v_max_f32 v{V_MX}, v{V_MX}, v{V_T1}
        s_ashr_i32 s{S_FL}, s{S_T+slot}, 31
        s_and_b32 s{S_FL}, s{S_FL}, 0xff800000
        s_mov_b32 s{S_T+slot}, 0x41000000
        v_max_f32 v{V_MX}, s{S_FL}, v{V_MX}
        """)
        for r in range(8): R(f"v_sub_f32 v{s+r}, v{s+r}, v{V_MX}")
        for r in range(4): R(f"v_sub_f32 v{V_NEGM+slot*4+r}, v{V_NEGM+slot*4+r}, v{V_MX}")
        R(f"s_cmp_lg_u32 s{S_FL}, 0\ns_cbranch_scc1 {lab_b}")
        R(f"v_sub_f32 v{V_T1}, 0, v{V_MX}")
        R(f"v_exp_f32 v{V_T1}, v{V_T1}")
        R("s_nop 1")
        for r in range(4): R(f"v_mul_f32 v{V_L+slot*4+r}, v{V_L+slot*4+r}, v{V_T1}")
        for r in range(0, 32, 2):
            a = A_O + slot * 32 + r
            R(f"v_accvgpr_read_b32 v{V_T2}, a{a}\nv_accvgpr_read_b32 v{V_T3}, a{a+1}\nv_mul_f32 v{V_T2}, v{V_T2}, v{V_T1}\nv_mul_f32 v{V_T3}, v{V_T3}, v{V_T1}\nv_accvgpr_write_b32 a{a}, v{V_T2}\nv_accvgpr_write_b32 a{a+1}, v{V_T3}")
        R("s_nop 2")
        R(f"s_branch {lab_b}")
        self.rare.append(R)
        return [f"s_cbranch_vccnz {lab_r}", f"{lab_b}:"]
    def exp_ops(self, unit, sb, pb):
        s = V_S + sb * 8
        p = V_P + pb * 4
        return [[f"v_exp_f32 v{s}, v{s}"], [f"v_exp_f32 v{s+1}, v{s+1}"], [f"v_exp_f32 v{s+2}, v{s+2}"],
                [f"v_cvt_pk_bf16_f32 v{p}, v{s}, v{s+1}"],
                [f"v_exp_f32 v{s+3}, v{s+3}"], [f"v_exp_f32 v{s+4}, v{s+4}"],
                [f"v_cvt_pk_bf16_f32 v{p+1}, v{s+2}, v{s+3}"],
                [f"v_exp_f32 v{s+5}, v{s+5}"], [f"v_exp_f32 v{s+6}, v{s+6}"],
                [f"v_cvt_pk_bf16_f32 v{p+2}, v{s+4}, v{s+5}"],
                [f"v_exp_f32 v{s+7}, v{s+7}"],
                [f"v_cvt_pk_bf16_f32 v{p+3}, v{s+6}, v{s+7}"]]
    def kv_reads(self, fs, which):
        G = []
        if which == 'K':
            for kt in range(2):
                for jp in range(4):
                    G.append([f"ds_read_b128 {rng('v', V_KF[fs] + (kt*4+jp)*4)}, v{V_KA+jp} offset:{kt*4096}"])
        else:
            for jl in range(8):
                a = V_VF[fs] + jl * 4
                ml, h = jl >> 1, jl & 1
                va = V_VA if fs == 'A' else V_VA2
                G.append([f"ds_read_b64_tr_b16 v[{a}:{a+1}], v{va+ml} offset:{8*h}"])
                G.append([f"ds_read_b64_tr_b16 v[{a+2}:{a+3}], v{va+ml} offset:{8*h+4096}"])
        return G
    def kv_addr(self, fs):
        va = V_VA if fs == 'A' else V_VA2
        G = [[f"v_add_u32 v{V_KA+j}, s{S_RSLOT}, v{V_KPAT+j}"] for j in range(4)]
        G += [[f"v_add_u32 v{va+j}, s{S_RSLOT}, v{V_VPAT+j}"] for j in range(4)]
        G.append([f"s_add_u32 s{S_RSLOT}, s{S_RSLOT}, {SLOT}", f"s_cmp_eq_u32 s{S_RSLOT}, {3*SLOT}", f"s_cselect_b32 s{S_RSLOT}, 0, s{S_RSLOT}"])
        return G

    def units(self, qh):
        if qh == 0: return [(0,'A'),(1,'A'),(2,'A'),(3,'A'),(4,'A'),(0,'B'),(1,'B'),(2,'B'),(3,'B')]
        return [(0,'A'),(1,'A'),(2,'A'),(3,'A'),(0,'B'),(1,'B'),(2,'B'),(3,'B'),(4,'B')]

    def attn_body(self, qh, last):
        U = self.units(qh)
        B = Prog()
        RG = self.ring_groups()
        for g in range(9):
            if g in (0, 4):
                B("s_waitcnt vmcnt(8) lgkmcnt(0)")
                if not self.x_nobar: B("s_barrier")
            M = []
            if not (last and g + 3 >= 9):
                M += self.s_mfmas(U[(g + 3) % 9], g % 3)
            M += self.pv_mfmas(U[g], g % 3)
            V = []
            head = []
            if not (last and g + 1 >= 9):
                head = self.check_ops(U[(g + 1) % 9], (g + 1) % 3)
                ex = self.exp_ops(U[(g + 1) % 9], (g + 1) % 3, (g + 1) % 3)
            else: ex = []
            mx = self.max_ops(U[(g + 2) % 9], (g + 2) % 3) if not (last and g + 2 >= 9) else []
            V = []
            ei = mi = 0
            pat = "eeemcemecemecemcm" if False else "eemeemeemeemm"
            order = []
            if self.x_nomax and ex:
                e_ = [g_ for g_ in ex if g_[0].startswith('v_exp')]
                c_ = [g_ for g_ in ex if g_[0].startswith('v_cvt')]
                pat = "e-ee-eC-ee-e-eC--"
                ei = ci = 0
                for ch in pat:
                    if ch == 'e': order.append(e_[ei]); ei += 1
                    elif ch == 'C': order.append(c_[ci] + c_[ci + 1]); ci += 2
                    else: order.append([])
            else:
                for i in range(17):
                    if i in (1, 3, 5, 7, 9) and mi < len(mx): order.append(mx[mi]); mi += 1
                    elif ei < len(ex): order.append(ex[ei]); ei += 1
                    elif mi < len(mx): order.append(mx[mi]); mi += 1
            V = order
            PF = []
            if last and self.pf_wo and self.x_nomax == self.fast and g in (0, 4):
                self.uid += 1
                lab = f"{self.name}_npf{self.uid}"
                pf = [f"s_cmp_eq_u32 s{S_ITEM}, 0", f"s_cbranch_scc1 {lab}"]
                pf += [f"s_lshl_b32 s39, s{S_W}, 14", f"s_add_u32 s39, s39, {8192 if g == 4 else 0}",
                       f"buffer_load_dword v{V_PFD}, v19, s[76:79], s39 offen"]
                if self.op_label and g == 0:
                    pf += [f"s_cmp_lg_u32 s{S_W}, 0", f"s_cbranch_scc1 {lab}",
                           f"s_getpc_b64 s[60:61]", f"{lab}_pc:",
                           f"s_add_u32 s60, s60, {self.op_label}-{lab}_pc", f"s_addc_u32 s61, s61, 0",
                           f"global_load_dword v{V_PFD}, v19, s[60:61]", f"global_load_dword v{V_PFD}, v19, s[60:61] offset:0"]
                pf.append(f"{lab}:")
                PF = [pf]
            if last and self.pf1 and self.x_nomax == self.fast and g in (0, 4):
                self.uid += 1
                lab = f"{self.name}_np1{self.uid}"
                pf = [f"s_or_b32 s39, s{S_LATE}, s{S_ITEM}", f"s_cmp_lg_u32 s39, 0", f"s_cbranch_scc1 {lab}"]
                if g == 0:
                    pf += self.pf_w(f"s{S_W}", "1") + self.pf_x(f"s{S_W}")
                else:
                    pf += [f"s_add_u32 s39, s{S_W}, 4"] + self.pf_x("s39") + [f"s_add_u32 s39, s{S_W}, 8", "s_min_u32 s39, s39, 8"] + self.pf_x("s39")
                pf.append(f"{lab}:")
                PF = PF + [pf]
            KA, VA_ = (self.kv_reads('A', 'K'), self.kv_reads('A', 'V')) if not last else ([], [])
            KB, VB_ = self.kv_reads('B', 'K'), self.kv_reads('B', 'V')
            ADA = self.kv_addr('A') if not last else []
            ADB = self.kv_addr('B') if not last else []
            D, adv = self.ring_instrs()
            H = []
            Lt = []
            if g == 0: H = KB + PF + D[0:1]
            if g == 1: H = VB_[:6] + D[1:4];
            if g == 2: H = VB_[6:11] + D[4:6]; Lt = ADA[:4]
            if g == 3: H = D[6:8] + VB_[11:]; Lt = ADA[4:] + [adv]
            if g == 4: H = KA + PF + D[0:1]
            if g == 5: H = VA_[:5] + D[1:4]
            if g == 6: H = VA_[5:10] + D[4:6]; Lt = ADB[:4]
            if g == 7: H = D[6:8] + VA_[10:]; Lt = ADB[4:8]
            if g == 8: Lt = ADB[8:] + [adv]
            if self.x_nomax:
                if g == 0: H = KB + PF
                if g == 1: H = VB_[:5] + D[0:3]
                if g == 2: H = VB_[5:11] + D[3:5]
                if g == 3: H = D[5:8] + VB_[11:]
                if g == 4: H = KA[:7] + PF
                if g == 5: H = KA[7:] + D[0:2] + VA_[:4]
                if g == 6: H = D[2:4] + VA_[4:9]
                if g == 7: H = D[4:6] + VA_[9:14]
                if g == 8: H = VA_[14:] + D[6:8];
            if self.x_nodma: H = [x for x in H if not any('lds' in y and 'buffer_load' in y for y in x)]
            if self.x_nord: H = [x for x in H if not any('ds_read' in y for y in x)]
            if self.x_nosm: V = []; head = []
            if self.x_nobr: head = []
            if self.x_noX: H = []; Lt = []
            if self.x_nomax: V = [[] if (x and (x[0].startswith('v_max') or x[0].startswith('v_cmp'))) else x for x in V]; head = []
            n = len(M)
            fill = [list(V[i]) if i < len(V) else [] for i in range(n)]
            light = [i for i in range(n) if not (fill[i] and fill[i][0].startswith('v_exp'))]
            empty = [i for i in range(n) if not fill[i]]
            pos = light[:]
            if self.x_nomax and empty:
                pos = empty[:]
                more = [i for i in light if i not in pos] + [i for i in range(n) if i not in light]
                if len(H) > len(pos): pos = sorted(pos + more[:len(H) - len(pos)])
            if len(H) > len(pos):
                extra_pos = [i for i in range(n) if i not in pos][:len(H) - len(pos)]
                pos = sorted(pos + extra_pos)
            if H:
                k = len(pos)
                chosen = [pos[(j * k) // len(H)] for j in range(len(H))]
                for j, h in enumerate(H):
                    h = list(h)
                    if ' m0,' in h[0] and chosen[j] > 0 and not any('lds' in y and 'buffer_load' in y for y in fill[chosen[j] - 1]):
                        fill[chosen[j] - 1].append(h[0]); h = h[1:]
                    fill[chosen[j]] += h
            if Lt:
                has_heavy = lambda i: any(('ds_read' in y or 'buffer_load' in y) for y in fill[i])
                last_dma = max([i for i in range(n) if any('buffer_load' in y for y in fill[i])] + [-1])
                free = [i for i in light if not has_heavy(i)] + [i for i in range(n) if i not in light]
                used = set()
                for l_ in Lt:
                    need_after = last_dma if any(f"s{S_GOFF}," in y for y in l_) else -1
                    cand = [i for i in free if i not in used and i > need_after] or [n - 1]
                    if any(f"s{S_RSLOT}, s{S_RSLOT}" in y for y in l_):
                        la = max([i for i in range(n) if any(f"s{S_RSLOT}, v" in y for y in fill[i])] + [-1])
                        cand = [i for i in range(n) if i >= la]
                        cand = [max(cand[0], 0)]
                    i = cand[0]; used.add(i)
                    fill[i] += l_
            extra = V[n:]
            for x in head: B(x)
            for x in interleave(M, fill + extra): B(x)
        return B

    def attention(self, qh, tag):
        n = self.name
        U = self.units(qh)
        P = Prog()
        for r in range(160): P(f"v_accvgpr_write_b32 a{A_O + r}, 0")
        for r in range(20): P(f"v_mov_b32 v{V_L + r}, 0\nv_mov_b32 v{V_NEGM + r}, 0")
        for s in range(5): P(f"s_mov_b32 s{S_T+s}, 0xff800000")
        P("s_waitcnt vmcnt(16)\ns_barrier")
        for g in self.kv_addr('A') + self.kv_reads('A', 'K') + self.kv_reads('A', 'V') + self.kv_addr('B'):
            for x in g: P(x)
        for x in self.s_mfmas(U[0], 0) + self.s_mfmas(U[1], 1) + self.s_mfmas(U[2], 2): P(x)
        if not self.x_nomax:
            for g in self.max_ops(U[0], 0):
                for x in g: P(x)
            P("s_nop 3")
            for x in self.check_ops(U[0], 0): P(x)
        for g in self.exp_ops(U[0], 0, 0) + (self.max_ops(U[1], 1) if not self.x_nomax else []):
            for x in g: P(x)
        P(f"s_waitcnt lgkmcnt(0)\ns_mov_b32 s{S_CNT}, 7")
        pre, _ = finalize_linear(P.items)
        out = Prog(); out.extend(pre)
        body, _ = finalize_loop(self.attn_body(qh, False).items)
        if self.stamps:
            self.stamp(out, 5)
        out.label(f"{n}_at{tag}")
        out.extend(body)
        out(f"s_sub_u32 s{S_CNT}, s{S_CNT}, 1\ns_cmp_lg_u32 s{S_CNT}, 0\ns_cbranch_scc1 {n}_at{tag}")
        if self.stamps:
            self.stamp(out, 6)
        lastb = self.attn_body(qh, True)
        l1, f = auto_lgkm(body, None)
        l2, _ = auto_lgkm(lastb.items, f)
        l3 = fix_hazards(l2, wrap=body)
        out.extend(l3)
        return out

    def combine(self, qh):
        L = V_LANE
        E = Prog()
        MLO = 32768
        if self.cstamp: E(f"s_waitcnt lgkmcnt(0)\ns_memtime s[48:49]\ns_waitcnt lgkmcnt(0)\ns_cmp_eq_u32 s{S_ITEM}, 0\ns_cselect_b32 s82, s48, s82")
        E("s_nop 7\ns_waitcnt lgkmcnt(0)\ns_barrier")
        if self.cstamp: E(f"s_waitcnt lgkmcnt(0)\ns_memtime s[48:49]\ns_waitcnt lgkmcnt(0)\ns_cmp_eq_u32 s{S_ITEM}, 0\ns_cselect_b32 s83, s48, s83")
        E(f"""
        v_lshlrev_b32 v2, 2, v{L}
        v_add_u32 v2, {STG + MLO}, v2
        s_mul_i32 s39, s{S_W}, 2560
        v_add_u32 v3, s39, v2
        v_lshlrev_b32 v8, 4, v{L}
        v_add_u32 v8, {STG}, v8
        s_lshl_b32 s39, s{S_W}, 13
        s_lshl_b32 s40, s{S_HH}, 12
        s_add_u32 s{S_TMP2}, s39, s40
        v_add_u32 v5, s{S_TMP2}, v8
        s_xor_b32 s{S_TMP2}, s{S_TMP2}, 4096
        v_add_u32 v6, s{S_TMP2}, v8
        """)
        for s_ in range(5):
            E(f"ds_write_b32 v3, v{V_NEGM + s_*4} offset:{s_*512}")
            E(f"ds_write_b32 v3, v{V_L + s_*4} offset:{s_*512 + 256}")
        for jl in range(8):
            E(f"ds_write_b128 v{5 + (jl >> 2)}, {rng('a', acc_o(4, jl))} offset:{(jl & 3)*1024}")
        E(f"""s_mov_b64 s[72:73], 0
        s_mov_b32 s{S_XRB}, 0x21800000
        v_mov_b32 v{V_T3}, 0x5d800000
        v_mov_b32 v{V_P}, 0
        v_mov_b32 v{V_P+1}, 0
        v_mov_b32 v{V_P+2}, 0
        v_mov_b32 v{V_P+3}, 0
        s_xor_b32 s39, s{S_W}, 2
        s_mul_i32 s39, s39, 2560
        v_add_u32 v4, s39, v2
        s_lshl_b32 s39, s{S_W}, 11
        v_add_u32 v5, s39, v8
        v_and_b32 v6, 15, v{L}
        v_lshlrev_b32 v6, 8, v6
        v_lshrrev_b32 v7, 4, v{L}
        v_lshlrev_b32 v7, 4, v7
        v_add_u32 v7, v6, v7
        s_mul_i32 s{S_XOFF}, s{S_ITEM}, 36864
        s_lshl_b32 s{S_WOFF}, s{S_W}, 6
        s_add_u32 s{S_WOFF}, s{S_WOFF}, {128*256}
        s_add_u32 s{S_WOFF}, s{S_WOFF}, s{S_XOFF}
        s_lshl_b32 s39, s{S_QH}, 14
        s_lshl_b32 s40, s{S_HH}, 7
        s_add_u32 s39, s39, s40
        s_add_u32 s{S_XOFF}, s{S_XOFF}, s39
        """)
        E("s_waitcnt lgkmcnt(0)\ns_barrier")
        if self.cstamp: E(f"s_waitcnt lgkmcnt(0)\ns_memtime s[48:49]\ns_waitcnt lgkmcnt(0)\ns_cmp_eq_u32 s{S_ITEM}, 0\ns_cselect_b32 s84, s48, s84")
        for s_ in range(4):
            E(f"ds_read_b32 v{120 + 2*s_}, v4 offset:{s_*512}")
            E(f"ds_read_b32 v{121 + 2*s_}, v4 offset:{s_*512 + 256}")
        for ww in range(4):
            E(f"ds_read_b32 v{128 + 2*ww}, v2 offset:{ww*2560 + 4*512}")
            E(f"ds_read_b32 v{129 + 2*ww}, v2 offset:{ww*2560 + 4*512 + 256}")
        for ww in range(4):
            for x in range(2):
                E(f"ds_read_b128 {rng('v', 160 + (ww*2+x)*4)}, v5 offset:{ww*8192 + x*1024}")
        E(f"""
        s_lshl_b32 s39, s{S_W}, 14
        v_add_u32 v3, s39, v8
        s_xor_b32 s39, s39, {2 << 14}
        v_add_u32 v4, s39, v8
        """)
        for s_ in range(4):
            for r in range(16):
                E(f"v_accvgpr_read_b32 v{192 + 16*(s_ % 3) + r if s_ < 3 else 96 + r}, a{acc_o(s_, 0) + r}")
        E("s_waitcnt lgkmcnt(0)\ns_barrier")
        if self.cstamp: E(f"s_waitcnt lgkmcnt(0)\ns_memtime s[48:49]\ns_waitcnt lgkmcnt(0)\ns_cmp_eq_u32 s{S_ITEM}, 0\ns_cselect_b32 s85, s48, s85")
        for s_ in range(4):
            for x in range(4):
                E(f"ds_write_b128 v3, {rng('a', acc_o(s_, 4 + x))} offset:{(s_*4+x)*1024}")
        for s_ in range(4):
            nm, l_ = V_NEGM + 4 * s_, V_L + 4 * s_
            no, lo = 120 + 2 * s_, 121 + 2 * s_
            E(f"""
            v_min_f32 v2, v{nm}, v{no}
            v_sub_f32 v6, v2, v{nm}
            v_sub_f32 v5, v2, v{no}
            v_exp_f32 v6, v6
            v_exp_f32 v5, v5
            s_nop 0
            v_mul_f32 v9, v6, v{l_}
            v_fma_f32 v9, v5, v{lo}, v9
            v_cmp_nge_f32 s[60:61], v9, s{S_XRB}
            v_cmp_nle_f32 vcc, v9, v{V_T3}
            v_rcp_f32 v9, v9
            s_or_b64 s[72:73], s[72:73], s[60:61]
            s_or_b64 s[72:73], s[72:73], vcc
            v_mul_f32 v{136+4*s_}, v6, v9
            v_mul_f32 v{137+4*s_}, v6, v9
            v_mul_f32 v{138+4*s_}, v5, v9
            v_mul_f32 v{139+4*s_}, v5, v9
            """)
        E(f"""
        v_min_f32 v2, v128, v130
        v_min_f32 v6, v132, v134
        v_min_f32 v2, v2, v6
        """)
        for ww in range(4):
            E(f"v_sub_f32 v{152+2*ww}, v2, v{128+2*ww}\nv_exp_f32 v{152+2*ww}, v{152+2*ww}")
        E(f"""
        s_nop 0
        v_mul_f32 v9, v152, v129
        v_fma_f32 v9, v154, v131, v9
        v_fma_f32 v9, v156, v133, v9
        v_fma_f32 v9, v158, v135, v9
        v_cmp_nge_f32 s[60:61], v9, s{S_XRB}
        v_cmp_nle_f32 vcc, v9, v{V_T3}
        v_rcp_f32 v9, v9
        s_or_b64 s[72:73], s[72:73], s[60:61]
        s_or_b64 s[72:73], s[72:73], vcc
        """)
        for ww in range(4): E(f"v_mul_f32 v{152+2*ww}, v{152+2*ww}, v9\nv_mov_b32 v{153+2*ww}, v{152+2*ww}")
        for r in range(8):
            E(f"v_mul_f32 v{112+r}, v{160+r}, v152")
        for ww in range(1, 4):
            for r in range(8):
                E(f"v_fma_f32 v{112+r}, v{160+ww*8+r}, v{152+2*ww}, v{112+r}")
        for r in range(4):
            E(f"v_fma_f32 v{V_P+2}, v{112+2*r}, v{V_P}, v{V_P+2}")
            E(f"v_fma_f32 v{V_P+3}, v{113+2*r}, v{V_P}, v{V_P+3}")
            E(f"v_cvt_pk_bf16_f32 v{V_P+4+r}, v{112+2*r}, v{113+2*r}")
        E(f"buffer_store_dwordx4 {rng('v', V_P+4)}, v7, s[20:23], s{S_WOFF} offen{self.st_flags}")
        mine = lambda s_: (192 + 16 * s_) if s_ < 3 else 96
        for s_ in range(4):
            for r in range(16):
                E(f"v_mul_f32 v{mine(s_)+r}, v{mine(s_)+r}, v{136+4*s_}")
        if self.cstamp: E(f"s_waitcnt lgkmcnt(0)\ns_memtime s[48:49]\ns_waitcnt lgkmcnt(0)\ns_cmp_eq_u32 s{S_ITEM}, 0\ns_cselect_b32 s86, s48, s86")
        E("s_waitcnt lgkmcnt(0)\ns_barrier")
        if self.cstamp: E(f"s_waitcnt lgkmcnt(0)\ns_memtime s[48:49]\ns_waitcnt lgkmcnt(0)\ns_cmp_eq_u32 s{S_ITEM}, 0\ns_cselect_b32 s87, s48, s87")
        recv = lambda s_: 160 + 16 * (s_ % 2)
        def rd(s_):
            for x in range(4):
                E(f"ds_read_b128 {rng('v', recv(s_) + 4*x)}, v4 offset:{(s_*4+x)*1024}")
        rd(0); rd(1)
        for s_ in range(4):
            m_, rc = mine(s_), recv(s_)
            for r in range(16):
                E(f"v_fma_f32 v{m_+r}, v{rc+r}, v{138+4*s_}, v{m_+r}")
            if s_ + 2 < 4: rd(s_ + 2)
            pk = 56 + 8 * s_
            for r in range(8):
                E(f"v_fma_f32 v{V_P+2}, v{m_+2*r}, v{V_P}, v{V_P+2}")
                E(f"v_fma_f32 v{V_P+3}, v{m_+2*r+1}, v{V_P}, v{V_P+3}")
                E(f"v_cvt_pk_bf16_f32 v{pk+r}, v{m_+2*r}, v{m_+2*r+1}")
            E(f"s_add_u32 s39, s{S_XOFF}, {s_*4096}")
            for p in range(2):
                E(f"buffer_store_dwordx4 {rng('v', pk+4*p)}, v7, s[20:23], s39 offen offset:{64*p}{self.st_flags}")
        E(f"""
        v_cmp_u_f32 vcc, v{V_P+2}, v{V_P+3}
        s_nop 1
        s_or_b64 s[72:73], s[72:73], vcc
        s_cmp_lg_u64 s[72:73], 0
        s_cselect_b32 s39, 1, {1 if self.force_bad else 0}
        s_xor_b32 s40, s{S_SAFE}, 1
        s_and_b32 s39, s39, s40
        s_lshl_b32 s39, s39, s{S_ITEM}
        s_or_b32 s{S_BAD}, s{S_BAD}, s39
        s_waitcnt lgkmcnt(0)
        """)
        if self.cstamp: E(f"s_waitcnt lgkmcnt(0)\ns_memtime s[48:49]\ns_waitcnt lgkmcnt(0)\ns_cmp_eq_u32 s{S_ITEM}, 0\ns_cselect_b32 s88, s48, s88")
        it, _ = finalize_linear(E.items)
        o = Prog(); o.extend(it)
        return o

    def agree_bad(self):
        E = Prog()
        E(f"""
        s_barrier
        v_mov_b32 v5, {STG}
        s_lshl_b32 s40, s{S_W}, 2
        v_add_u32 v6, s40, v5
        v_mov_b32 v3, s{S_BAD}
        ds_write_b32 v6, v3
        s_waitcnt lgkmcnt(0)
        s_barrier
        ds_read_b128 v[120:123], v5
        s_waitcnt lgkmcnt(0)
        v_or_b32 v120, v120, v121
        v_or_b32 v122, v122, v123
        v_or_b32 v120, v120, v122
        s_nop 0
        v_readfirstlane_b32 s{S_BAD}, v120
        s_nop 3
        """)
        it, _ = finalize_linear(E.items)
        o = Prog(); o.extend(it)
        return o

    def stamp(self, out, idx_expr, sel=None):
        if not self.stamps: return
        if (self.qstamp or self.cstamp) and idx_expr not in (0, 1): return
        base = idx_expr
        u = self.nst; self.nst += 1
        out(f"""s_waitcnt lgkmcnt(0)
        {'s_memrealtime' if (self.dbg_stamps is not None or self.dbg_rt) else 's_memtime'} s[72:73]
        s_waitcnt lgkmcnt(0)
        s_cmp_eq_u32 s{sel if sel is not None else S_ITEM}, 0
        s_cselect_b32 s{80+base}, s72, s{80+base}
        s_cselect_b32 s{88+base}, s{88+base}, s72""")

    def build(self):
        n = self.name
        out = Prog()
        st, _ = finalize_linear(self.setup().items)
        out.extend(st)
        out.label(f"{n}_qpL")
        self.stamp(out, 0)
        out.extend(self.qp2('x'))
        out(f"s_cmp_lg_u32 s{S_SAFE}, 0\ns_cbranch_scc1 {n}_qredo")
        out.extend(self.qconv(0, True, 1))
        out.extend(self.lq())
        out("s_barrier")
        out.extend(self.qconv(1, True, 2))
        out(f"s_branch {n}_qdone")
        out.label(f"{n}_qredo")
        out(f"s_cmp_lg_u32 s{S_ITEM}, 0\ns_cbranch_scc1 {n}_qredo1")
        out.extend(self.qconv(0, True))
        out(f"s_branch {n}_qredo2")
        out.label(f"{n}_qredo1")
        out.extend(self.qconv(1, True))
        out.label(f"{n}_qredo2")
        out.extend(self.lq())
        out.label(f"{n}_qdone")
        self.stamp(out, 1)
        out.label(f"{n}_att")
        self.stamp(out, 2)
        out(f"s_cmp_lg_u32 s{S_SAFE}, 0\ns_cbranch_scc1 {n}_safe")
        out(f"s_cmp_lg_u32 s{S_QH}, 0\ns_cbranch_scc1 {n}_q1")
        self.x_nomax = self.fast
        out.extend(self.attention(0, 'a'))
        out(f"s_branch {n}_cmb")
        out.label(f"{n}_q1")
        out.extend(self.attention(1, 'b'))
        out(f"s_branch {n}_cmb")
        out.label(f"{n}_safe")
        self.x_nomax = False
        st, self.stamps = self.stamps, False
        out(f"s_cmp_lg_u32 s{S_QH}, 0\ns_cbranch_scc1 {n}_sq1")
        out.extend(self.attention(0, 'c'))
        out(f"s_branch {n}_cmb")
        out.label(f"{n}_sq1")
        out.extend(self.attention(1, 'd'))
        self.stamps = st
        out.label(f"{n}_cmb")
        self.stamp(out, 3)
        out(f"s_or_b32 s39, s{S_ITEM}, s{S_SAFE}\ns_cmp_lg_u32 s39, 0\ns_cbranch_scc1 {n}_nolq")
        out.extend(self.lq())
        out.label(f"{n}_nolq")
        out.extend(self.combine(0))
        self.stamp(out, 4)
        out(f"s_cmp_lg_u32 s{S_SAFE}, 0\ns_cbranch_scc1 {n}_redo")
        out(f"s_add_u32 s{S_ITEM}, s{S_ITEM}, 1\ns_cmp_ge_u32 s{S_ITEM}, 2\ns_cbranch_scc1 {n}_agree")
        out(f"s_branch {n}_att")
        out.label(f"{n}_agree")
        out.extend(self.agree_bad())
        out.label(f"{n}_redo")
        out(f"s_cmp_eq_u32 s{S_BAD}, 0\ns_cbranch_scc1 {n}_fin")
        out(f"""s_and_b32 s39, s{S_BAD}, 1
        s_xor_b32 s{S_ITEM}, s39, 1
        s_lshl_b32 s39, 1, s{S_ITEM}
        s_andn2_b32 s{S_BAD}, s{S_BAD}, s39
        s_mov_b32 s{S_SAFE}, 1
        s_lshl_b32 s{S_GOFF}, s{S_ITEM}, 18
        s_mov_b32 s{S_DSLOT}, s{S_DBASE}
        s_mov_b32 s{S_RSLOT}, 0
        s_branch {n}_qpL""")
        out.label(f"{n}_fin")
        if self.stamps and self.dbg_stamps is not None:
            out(f"""s_cmp_lg_u32 s2, {self.dbg_stamps}
            s_cbranch_scc1 {n}_done
            s_cmp_lg_u32 s{S_W}, 0
            s_cbranch_scc1 {n}_done
            s_memrealtime s[72:73]
            s_waitcnt lgkmcnt(0)
            s_mov_b32 s95, s72
            s_add_u32 s68, s68, {64 << 20}
            s_addc_u32 s69, s69, 0
            v_mov_b32 v2, 0""")
            for i in range(16):
                out(f"v_mov_b32 v3, s{80+i}\nglobal_store_dword v2, v3, s[68:69] offset:{4*i}")
        elif self.stamps:
            out(f"""s_lshl_b32 s39, s2, 2
            s_add_u32 s39, s39, s{S_W}
            s_lshl_b32 s39, s39, 6
            s_add_u32 s39, s39, {64 << 20}
            s_add_u32 s68, s68, s39
            s_addc_u32 s69, s69, 0
            v_mov_b32 v2, 0""")
            for i in range(16):
                out(f"v_mov_b32 v3, s{80+i}\nglobal_store_dword v2, v3, s[68:69] offset:{4*i}")
        out.label(f"{n}_done")
        out("s_endpgm")
        labs = {it.text for it in out.items if it.kind == 'label'}
        for r in self.rare:
            back = r.items[-1].ops[0] + ':'
            if back in labs: out.extend(r)
        return kernel_text(n, out.text(), vgpr=512, sgpr=102, acc=256), LDS_TOTAL

if __name__ == '__main__':
    import sys
    b = dict(nt_w=True, dbg_rt=True)
    variants = [('fa_a_kernel', dict(b))]
    hdr = ''; body = ''
    for nm, kw in variants:
        txt, lds = FA(name=nm, stamps=True, **kw).build()
        hdr += f"; @launch kernel={nm} grid=(256,1,1) block=(256,1,1) lds={lds}\n"
        body += txt
    open('fa.s', 'w').write(hdr + '.amdgcn_target "amdgcn-amd-amdhsa--gfx950"\n.text\n' + body)
```

```python
from asmlib import *
import math

RING = 0
SLOT = 32768
STG = 98304
XB = [STG, STG + 18432]
WB = [STG + 36864 + 8192 * i for i in range(3)]
QX = STG
LDS_TOTAL = 163840
O_WS_OFF = 0
CSCALE = math.log2(math.e) / math.sqrt(128.0)

import struct
def f2u(x): return struct.unpack('<I', struct.pack('<f', x))[0]

V_LANE = 1
V_RING = 10
V_KPAT, V_VPAT, V_KA, V_VA = 20, 24, 28, 32
V_P = 36
V_MX, V_T1, V_T2, V_T3 = 48, 49, 50, 51
V_ONES = 52
V_NEGM = 56
V_L = 76
V_S = 96
V_KF = {'A': 120, 'B': 184}
V_VF = {'A': 152, 'B': 216}
A_O = 0
A_Q = 160
V_XD, V_WD = 106, 98
QXBASE = 65536
V_PFW, V_PFX, V_PFD = 14, 15, 16
V_RINGK, V_RINGV = 17, 18
V_RINGH = 248
V_VA2 = 252
V_XPAT = 100
V_WPAT = 104
V_XA = 106
V_WA = 110
QF_W = [120, 156]
QF_X = [136, 172]

S_W, S_QH, S_HH, S_BLK, S_B, S_H0 = 24, 25, 26, 27, 28, 29
S_CH, S_DSLOT, S_RSLOT, S_CNT = 30, 31, 32, 33
S_T = 34
S_GOFF, S_LB, S_TMP, S_TMP2 = 41, 42, 40, 43
S_DWRAP, S_DBASE = 30, 42
S_XI, S_WI, S_XOFF, S_WOFF, S_XBUF, S_WBUF, S_XRB, S_WRB = 44, 45, 46, 47, 48, 49, 50, 51
S_XW_G, S_XW_L = 54, 55
S_XC = 96
S_WW_L, S_WLIM = 101, 56
S_BAD, S_SAFE, S_NREC2 = 44, 45, 53
S_ITEM = 58
S_FL = 59
S_QI = 70
S_FLAG = 72
S_LATE, S_PR, S_FI, S_FMAX, S_FG, S_FL2 = 71, 74, 75, 52, 53, 56
S_KVO = 66

QP_PAT = [98, 99, 100, 101, 102, 103, 104, 105, 106, 107, 108, 109, 110]
def qacc(k): return (56 + 4 * k) if k < 10 else (192 + 4 * (k - 10))
def acc_o(slot, jl): return A_O + slot * 32 + jl * 4
def q_frag(slot, jp): return A_Q + slot * 16 + jp * 4
def rng(f, b, n=4): return f"{f}[{b}:{b+n-1}]"

def interleave(M, fillers, start=0):
    out = []
    k = 0
    for i, m in enumerate(M):
        out.append(m)
        if i >= start and k < len(fillers):
            out += fillers[k]; k += 1
    while k < len(fillers):
        out += fillers[k]; k += 1
    return out

def spread(M, groups, start=0):
    m = len(M) - start
    n = len(groups)
    out = []
    for i, x in enumerate(M):
        out.append(x)
        if i >= start:
            k = i - start
            for g in groups[(k * n) // m:((k + 1) * n) // m]:
                out += g
    return out

class FA:
    def __init__(self, name='fa_kernel', nt_kv=True, nt_w=False, nt_x=False, dbg=None, order='early', stamps=False, pf_qp=True, pf_att=True, late_bit=1, x_nodma=False, x_nosm=False, x_nobr=False, x_nord=False, x_nobar=False, x_qv=False, q_nodma=False, q_nord=False, q_nobar=False, q_nowait=False, same_kv=False, x_nohead=False, x_noX=False, x_nomax=False, fill_qp=True, fast=True, force_bad=False, pf_wo=False, pf_code=False, op_label=None, dbg_stamps=None, pf0=False, pf1=False, pf_nt=False, qstamp=False, cstamp=False, st_flags='', qp0_nt=False, pf0x=False):
        self.st_flags, self.qp0_nt, self.pf0x = st_flags, qp0_nt, pf0x
        self.cstamp = cstamp
        self.qstamp = qstamp
        self.pf0, self.pf1 = pf0, pf1
        self.pf_nt = ' nt' if pf_nt else ''
        self.dbg_stamps = dbg_stamps
        self.pf_wo, self.pf_code, self.op_label = pf_wo, pf_code, op_label
        self.fast = fast
        self.force_bad = force_bad
        self.fill_qp = fill_qp
        self.x_nomax = x_nomax
        self.x_nohead, self.x_noX = x_nohead, x_noX
        self.same_kv = same_kv
        self.q_nowait = q_nowait
        self.q_nodma, self.q_nord, self.q_nobar = q_nodma, q_nord, q_nobar
        self.x_nodma, self.x_nosm, self.x_nobr, self.x_nord, self.x_nobar, self.x_qv = x_nodma, x_nosm, x_nobr, x_nord, x_nobar, x_qv
        self.pf_qp = pf_qp
        self.pf_att = pf_att
        self.late_bit = late_bit
        self.stamps = stamps
        self.nst = 0
        self.name = name
        self.nt_kv = ' nt' if nt_kv else ''
        self.nt_w = ' nt' if nt_w else ''
        self.nt_x = ' nt' if nt_x else ''
        self.dbg = dbg
        self.order = order
        self.rare = []
        self.uid = 0

    def setup(self):
        P = Prog()
        n = self.name
        P(f"""
        s_cmp_ge_u32 s2, 256
        s_cbranch_scc1 {n}_done
        s_and_b32 s39, s2, 7
        s_lshr_b32 s40, s2, 3
        s_lshr_b32 s{S_BLK}, s39, 2
        s_and_b32 s39, s39, 3
        s_and_b32 s{S_B}, s40, 7
        s_lshr_b32 s40, s40, 3
        s_mov_b32 s{S_PR}, s40
        s_lshl_b32 s39, s39, 3
        s_lshl_b32 s40, s40, 1
        s_add_u32 s{S_H0}, s39, s40
        s_mul_i32 s39, s{S_BLK}, 40
        s_add_u32 s60, s0, s39
        s_addc_u32 s61, s1, 0
        s_load_dwordx2 s[4:5], s[60:61], 0
        s_load_dwordx2 s[62:63], s[60:61], 8
        s_load_dwordx2 s[64:65], s[60:61], 16
        s_load_dwordx2 s[66:67], s[60:61], 24
        s_load_dwordx2 s[68:69], s[0:1], 96
        s_load_dwordx2 s[76:77], s[60:61], 32
        v_lshrrev_b32 v2, 6, v0
        v_and_b32 v{V_LANE}, 63, v0
        v_readfirstlane_b32 s{S_W}, v2
        s_and_b32 s{S_QH}, s{S_W}, 1
        s_lshr_b32 s{S_HH}, s{S_W}, 1
        """)
        L = V_LANE
        P(f"""
        v_lshrrev_b32 v2, 4, v{L}
        v_and_b32 v3, 15, v{L}
        v_xor_b32 v4, v3, v2
        v_lshlrev_b32 v5, 2, v2
        v_xor_b32 v5, v3, v5
        v_lshlrev_b32 v4, 4, v4
        v_lshlrev_b32 v5, 4, v5
        v_lshlrev_b32 v2, 8, v2
        v_add_u32 v{V_RINGK}, v4, v2
        v_add_u32 v{V_RINGV}, v5, v2
        s_cmp_eq_u32 s{S_QH}, 0
        s_cselect_b32 s39, 64, 16
        s_cselect_b64 vcc, -1, 0
        v_cndmask_b32 v{V_RING}, v{V_RINGV}, v{V_RINGK}, vcc
        v_xor_b32 v{V_RING+1}, s39, v{V_RING}
        s_lshl_b32 s40, s39, 1
        v_xor_b32 v{V_RING+2}, s40, v{V_RING}
        s_add_u32 s40, s40, s39
        v_xor_b32 v{V_RING+3}, s40, v{V_RING}
        v_add_u32 v{V_RINGH}, 4096, v{V_RING}
        v_add_u32 v{V_RINGH+1}, 4096, v{V_RING+1}
        v_add_u32 v{V_RINGH+2}, 4096, v{V_RING+2}
        v_add_u32 v{V_RINGH+3}, 4096, v{V_RING+3}
        """)
        P(self.pf_setup())
        P(f"""
        v_and_b32 v3, 15, v{L}
        v_lshrrev_b32 v2, 4, v{L}
        v_xor_b32 v4, v2, v3
        v_lshlrev_b32 v4, 4, v4
        v_lshlrev_b32 v5, 8, v3
        s_lshl_b32 s39, s{S_HH}, 14
        v_add_u32 v5, s39, v5
        """)
        for jp in range(4):
            P(f"v_xor_b32 v6, {64*jp}, v4\nv_add_u32 v{V_KPAT+jp}, v5, v6")
        P(f"""
        v_lshrrev_b32 v3, 2, v{L}
        v_and_b32 v3, 3, v3
        v_and_b32 v4, 3, v{L}
        v_xor_b32 v4, v4, v2
        v_lshlrev_b32 v4, 4, v4
        v_lshlrev_b32 v5, 6, v3
        v_add_u32 v4, v4, v5
        v_lshlrev_b32 v5, 2, v2
        v_add_u32 v5, v5, v3
        v_lshlrev_b32 v5, 8, v5
        s_lshl_b32 s39, s{S_HH}, 14
        s_add_u32 s39, s39, 8192
        v_add_u32 v5, s39, v5
        """)
        for ml in range(4):
            P(f"""
            s_lshl_b32 s39, s{S_HH}, 1
            s_add_u32 s39, s39, {ml}
            s_and_b32 s39, s39, 3
            s_lshl_b32 s39, s39, 6
            v_xor_b32 v6, s39, v4
            v_add_u32 v{V_VPAT+ml}, v5, v6
            """)
        if self.pf_code:
            P(f"""
            s_lshr_b32 s39, s2, 3
            s_cmp_ge_u32 s39, 16
            s_cbranch_scc1 {n}_npc
            s_cmp_lg_u32 s{S_W}, 0
            s_cbranch_scc1 {n}_npc
            s_getpc_b64 s[72:73]
            {n}_pc0:
            s_lshl_b32 s39, s39, 13
            s_add_u32 s72, s72, s39
            s_addc_u32 s73, s73, 0
            v_lshlrev_b32 v3, 7, v{L}
            global_load_dword v{V_PFD}, v3, s[72:73]
            {n}_npc:
            """)
        for r in range(4):
            P(f"v_mov_b32 v{V_ONES+r}, 0x3f803f80")
        P("s_waitcnt lgkmcnt(0)")
        P(f"""
        s_cmp_eq_u32 s{S_QH}, 0
        s_cselect_b32 s8, s62, s64
        s_cselect_b32 s9, s63, s65
        s_lshl_b32 s39, s{S_B}, 5
        s_add_u32 s39, s39, s{S_H0}
        s_lshr_b32 s40, s39, 14
        s_lshl_b32 s39, s39, {18 if not self.same_kv else 31}
        s_and_b32 s39, s39, {'-1' if not self.same_kv else '0'}
        s_add_u32 s8, s8, s39
        s_addc_u32 s9, s9, s40
        s_lshl_b32 s39, s{S_HH}, 13
        s_add_u32 s8, s8, s39
        s_addc_u32 s9, s9, 0
        s_and_b32 s9, s9, 0xffff
        s_sub_u32 s10, {2*262144}, s39
        s_mov_b32 s11, 0x20000
        s_mul_i32 s39, s{S_B}, {144*2048}
        s_add_u32 s12, s4, s39
        s_addc_u32 s13, s5, 0
        s_and_b32 s13, s13, 0xffff
        s_mov_b32 s14, {144*2048}
        s_mov_b32 s15, 0x20000
        s_lshl_b32 s39, s{S_H0}, 8
        s_add_u32 s16, s66, s39
        s_addc_u32 s17, s67, 0
        s_and_b32 s17, s17, 0xffff
        s_sub_u32 s18, {1024*8192}, s39
        s_mov_b32 s19, 0x20000
        s_lshl_b32 s39, s{S_BLK}, 3
        s_add_u32 s39, s39, s{S_B}
        s_lshl_b32 s39, s39, 5
        s_add_u32 s39, s39, s{S_H0}
        s_mul_i32 s39, s39, 36864
        s_add_u32 s20, s68, s39
        s_addc_u32 s21, s69, 0
        s_add_u32 s20, s20, {O_WS_OFF}
        s_addc_u32 s21, s21, 0
        s_and_b32 s21, s21, 0xffff
        s_mov_b32 s22, {2*36864}
        s_mov_b32 s23, 0x20000
        s_lshl_b32 s{S_DBASE}, s{S_W}, 13
        s_mov_b32 s{S_DSLOT}, s{S_DBASE}
        s_add_u32 s{S_DWRAP}, s{S_DBASE}, {3*SLOT}
        s_mov_b32 s{S_GOFF}, 0
        s_mov_b32 s{S_RSLOT}, 0
        s_mov_b32 s{S_ITEM}, 0
        s_mov_b32 s{S_QI}, 0
        s_mov_b32 s{S_FMAX}, 1
        s_lshl_b32 s39, s{S_B}, 5
        s_add_u32 s39, s39, s{S_H0}
        s_lshl_b32 s{S_KVO}, s39, 18
        s_mov_b32 s{S_KVO+1}, 0
        s_and_b32 s39, s2, 3
        s_lshl_b32 s39, s39, 5
        s_lshr_b32 s40, s2, 3
        s_add_u32 s39, s39, s40
        s_lshl_b32 s39, s39, 16
        s_add_u32 s76, s76, s39
        s_addc_u32 s77, s77, 0
        s_and_b32 s77, s77, 0xffff
        s_mov_b32 s78, 65536
        s_mov_b32 s79, 0x20000
        v_lshlrev_b32 v19, 7, v{L}
        """)
        if self.order == 'early': P(f"s_mov_b32 s{S_LATE}, 0")
        elif self.order == 'late': P(f"s_mov_b32 s{S_LATE}, 1")
        else: P(f"s_lshr_b32 s{S_LATE}, s2, {self.late_bit}\ns_and_b32 s{S_LATE}, s{S_LATE}, 1")
        P(f"""s_xor_b32 s{S_FMAX}, s{S_LATE}, 1
        s_mov_b32 s{S_BAD}, 0
        s_mov_b32 s{S_SAFE}, 0
        s_mov_b32 s{S_NREC2}, s10
        s_sub_u32 s39, s10, 262144
        s_cmp_eq_u32 s{S_LATE}, 0
        s_cselect_b32 s10, s39, s10""")
        if self.pf0:
            for x in self.pf_w(f"s{S_W}", "0"): P(x)
            for x in self.pf_x(f"s{S_W}"): P(x)
            P(f"s_add_u32 s39, s{S_W}, 4")
            for x in self.pf_x("s39"): P(x)
            P(f"s_add_u32 s39, s{S_W}, 8\ns_min_u32 s39, s39, 8")
            for x in self.pf_x("s39"): P(x)
            P(f"s_cmp_eq_u32 s{S_LATE}, 0\ns_cbranch_scc1 {n}_npf0")
            for x in self.pf_w(f"s{S_W}", "1"): P(x)
            P.label(f"{n}_npf0")
        if self.pf0x:
            for x in self.pf_x(f"s{S_W}"): P(x)
            P(f"s_add_u32 s39, s{S_W}, 4")
            for x in self.pf_x("s39"): P(x)
            P(f"s_add_u32 s39, s{S_W}, 8\ns_min_u32 s39, s39, 8")
            for x in self.pf_x("s39"): P(x)
            P(f"s_cmp_eq_u32 s{S_LATE}, 0\ns_cbranch_scc1 {n}_npf0x")
            for x in self.pf_w(f"s{S_W}", "1"): P(x)
            P.label(f"{n}_npf0x")
        P.extend(self.qp_patterns())
        return P

    def ring_instrs(self):
        nt = self.nt_kv
        D = []
        for m in range(8):
            g = []
            if m == 0: g.append(f"s_mov_b32 m0, s{S_DSLOT}")
            if m == 4: g.append(f"s_add_u32 m0, s{S_DSLOT}, 4096")
            v = V_RING + m if m < 4 else V_RINGH + m - 4
            g.append(f"buffer_load_dwordx4 v{v}, s[8:11], s{S_GOFF} offen offset:{(m & 3) * 1024}{nt} lds")
            D.append(g)
        adv = [f"s_add_u32 s{S_GOFF}, s{S_GOFF}, 16384",
               f"s_add_u32 s{S_DSLOT}, s{S_DSLOT}, {SLOT}",
               f"s_cmp_eq_u32 s{S_DSLOT}, s{S_DWRAP}",
               f"s_cselect_b32 s{S_DSLOT}, s{S_DBASE}, s{S_DSLOT}"]
        return D, adv
    def ring_groups(self):
        D, adv = self.ring_instrs()
        return D + [adv]

    def ring_fill(self):
        P = Prog()
        for _ in range(3):
            for g in self.ring_groups():
                for x in g: P(x)
        return P

    def pf_setup(self):
        L = V_LANE
        return f"""
        v_lshrrev_b32 v2, 1, v{L}
        v_lshlrev_b32 v2, 13, v2
        v_and_b32 v3, 1, v{L}
        v_lshlrev_b32 v3, 7, v3
        v_add_u32 v{V_PFW}, v2, v3
        v_lshrrev_b32 v2, 4, v{L}
        v_lshlrev_b32 v2, 11, v2
        v_and_b32 v3, 15, v{L}
        v_lshlrev_b32 v3, 7, v3
        v_add_u32 v{V_PFX}, v2, v3
        """
    def pf_w(self, i_expr_sgpr, head_sgpr):
        return [f"s_lshl_b32 s{S_TMP}, s{S_B}, 20",
                f"s_lshl_b32 s{S_TMP2}, {i_expr_sgpr}, 18",
                f"s_add_u32 s{S_TMP}, s{S_TMP}, s{S_TMP2}",
                f"s_lshl_b32 s{S_TMP2}, {head_sgpr}, 8",
                f"s_add_u32 s{S_TMP}, s{S_TMP}, s{S_TMP2}",
                f"buffer_load_dword v{V_PFD}, v{V_PFW}, s[16:19], s{S_TMP} offen{self.pf_nt}"]
    def pf_x(self, i_expr):
        return [f"s_mul_i32 s{S_TMP}, s{S_PR}, {36*2048}",
                f"s_lshl_b32 s{S_TMP2}, {i_expr}, 13",
                f"s_add_u32 s{S_TMP}, s{S_TMP}, s{S_TMP2}",
                f"buffer_load_dword v{V_PFD}, v{V_PFX}, s[12:15], s{S_TMP} offen{self.pf_nt}"]

    def qp_patterns(self):
        L = V_LANE
        P = Prog()
        P(f"""
        v_lshrrev_b32 v2, 3, v{L}
        v_and_b32 v3, 7, v{L}
        v_lshrrev_b32 v4, 4, v{L}
        v_xor_b32 v3, v3, v4
        v_lshlrev_b32 v3, 4, v3
        v_lshlrev_b32 v2, 11, v2
        v_add_u32 v2, v2, v3
        """)
        for x in range(5):
            P(f"""
            s_mul_i32 s39, s{S_W}, 5
            s_add_u32 s39, s39, {x}
            s_cmp_gt_u32 s39, 17
            s_cselect_b32 s40, 2, 0
            s_sub_u32 s39, s39, s40
            s_lshl_b32 s{S_XC+x}, s39, 10
            s_and_b32 s40, s39, 1
            s_lshl_b32 s40, s40, 6
            v_xor_b32 v3, s40, v2
            s_lshl_b32 s39, s39, 14
            v_add_u32 v{V_XD+x}, s39, v3
            """)
        P(f"""
        v_lshrrev_b32 v2, 4, v{L}
        v_and_b32 v3, 15, v{L}
        v_lshlrev_b32 v4, 2, v2
        v_xor_b32 v3, v3, v4
        v_xor_b32 v3, s{S_W}, v3
        v_lshlrev_b32 v3, 4, v3
        v_lshlrev_b32 v4, 13, v2
        v_add_u32 v3, v3, v4
        s_lshl_b32 s39, s{S_W}, 16
        v_add_u32 v{V_WD}, s39, v3
        v_add_u32 v{V_WD+1}, 32768, v{V_WD}
        v_and_b32 v3, 15, v{L}
        v_lshrrev_b32 v4, 1, v3
        v_xor_b32 v4, v4, v2
        v_lshlrev_b32 v4, 4, v4
        v_lshlrev_b32 v5, 7, v3
        v_xor_b32 v6, 64, v4
        v_add_u32 v4, v4, v5
        v_add_u32 v6, v6, v5
        s_lshl_b32 s39, s{S_QH}, 13
        s_add_u32 s39, s39, {QXBASE}
        v_add_u32 v{V_XPAT}, s39, v4
        v_add_u32 v{V_XPAT+1}, s39, v6
        v_add_u32 v{V_XPAT+2}, {8*2048 + QXBASE}, v4
        v_add_u32 v{V_XPAT+3}, {8*2048 + QXBASE}, v6
        v_lshrrev_b32 v3, 2, v{L}
        v_and_b32 v3, 3, v3
        v_and_b32 v4, 3, v{L}
        v_xor_b32 v4, v4, v2
        v_lshlrev_b32 v4, 4, v4
        v_lshlrev_b32 v5, 6, v3
        v_add_u32 v4, v4, v5
        v_lshlrev_b32 v5, 3, v2
        v_add_u32 v5, v5, v3
        v_lshlrev_b32 v5, 8, v5
        """)
        for p in range(2):
            P(f"""
            s_xor_b32 s39, s{S_QH}, {p}
            s_lshl_b32 s40, s{S_HH}, 1
            s_add_u32 s39, s39, s40
            s_lshl_b32 s39, s39, 6
            v_xor_b32 v6, s39, v4
            v_add_u32 v{V_WPAT+p}, v5, v6
            """)
        for k, r in enumerate(QP_PAT): P(f"v_accvgpr_write_b32 a{240+k}, v{r}")
        P(f"s_lshl_b32 s{S_WW_L}, s{S_W}, 11")
        return P

    def qp(self, tag):
        n = self.name
        L = V_LANE
        NX, NW = 4, 8
        P = Prog()
        for k, r in enumerate(QP_PAT): P(f"v_accvgpr_read_b32 v{r}, a{240+k}")
        P(f"""
        s_lshl_b32 s{S_WOFF}, s{S_QI}, 8
        s_add_u32 s{S_WLIM}, s{S_WOFF}, {32 << 18}
        s_mov_b32 s{S_XOFF}, 0
        """)
        def x_groups(buf):
            G = [[f"s_cmp_lt_u32 s{S_XOFF}, 2048", f"s_cselect_b32 s{S_TMP2}, s{S_XOFF}, {144*2048}"]]
            for x in range(5):
                G.append([f"s_add_u32 m0, s{S_XC+x}, {QXBASE + buf*18432}",
                          f"buffer_load_dwordx4 v{V_XD+x}, s[12:15], s{S_TMP2} offen{self.nt_x} lds"])
            G.append([f"s_add_u32 s{S_XOFF}, s{S_XOFF}, 128"])
            return G
        def w_groups(buf):
            G = []
            for x in range(2):
                G.append([f"s_add_u32 m0, s{S_WW_L}, {buf*8192 + x*1024}",
                          f"buffer_load_dwordx4 v{V_WD + x}, s[16:19], s{S_WOFF} offen{self.nt_w} lds"])
            G.append([f"s_add_u32 s{S_WOFF}, s{S_WOFF}, {1 << 18}", f"s_min_u32 s{S_WOFF}, s{S_WOFF}, s{S_WLIM}"])
            return G
        def read_groups(k, i):
            G = []
            wb = (i % 8) * 8192
            xb = ((i >> 1) % 4) * 18432
            ss = i & 1
            for jl in range(4):
                a = QF_W[k] + 4 * jl
                p, h = jl >> 1, jl & 1
                G.append([f"ds_read_b64_tr_b16 v[{a}:{a+1}], v{V_WPAT+p} offset:{wb + 8*h}"])
                G.append([f"ds_read_b64_tr_b16 v[{a+2}:{a+3}], v{V_WPAT+p} offset:{wb + 8*h + 1024}"])
            for t in range(4):
                G.append([f"ds_read_b128 {rng('v', QF_X[k]+4*t)}, v{V_XPAT+ss} offset:{xb + t*2048}"])
            G.append([f"ds_read_b128 {rng('v', QF_X[k]+16)}, v{V_XPAT+2+ss} offset:{xb}"])
            return G
        def mf(k):
            M = []
            for t in range(4):
                for jl in range(4):
                    a = qacc(4 * t + jl)
                    M.append(f"v_mfma_f32_16x16x32_bf16 {rng('v', a)}, {rng('v', QF_W[k]+4*jl)}, {rng('v', QF_X[k]+4*t)}, {rng('v', a)}")
            for x in range(2):
                a = qacc(16 + x)
                M.append(f"v_mfma_f32_16x16x32_bf16 {rng('v', a)}, {rng('v', QF_W[k]+4*x)}, {rng('v', QF_X[k]+16)}, {rng('v', a)}")
            return M
        pro = []
        xi = wi = 0
        while xi < NX or wi < NW:
            if xi < NX and 2 * xi <= wi: pro.append(('X', xi)); xi += 1
            elif wi < NW: pro.append(('W', wi)); wi += 1
            else: pro.append(('X', xi)); xi += 1
        cnt = {'X': 5, 'W': 2}
        seq = list(pro)
        def outstanding_after(need):
            last = max(i for i, it in enumerate(seq) if it in need)
            return sum(cnt[k] for k, _ in seq[last + 1:])
        w0 = outstanding_after({('X', 0), ('W', 0)})
        waits = {}
        for i in range(0, 24):
            waits[i] = outstanding_after({('W', i + 1), ('X', (i + 1) >> 1)})
            seq.append(('W', i + NW))
            if i & 1: seq.append(('X', (i >> 1) + NX))
        wr = [min(waits[i] for i in range(r, 24, 8)) for r in range(8)]
        assert max(wr + [w0]) <= 63
        P("s_waitcnt vmcnt(0)\ns_barrier")
        def issue(lst):
            for kind, idx in lst:
                for g in (x_groups(idx) if kind == 'X' else w_groups(idx)):
                    for x in g: P(x)
        n1, n2 = 3, 6
        issue(pro[:n1])
        for k in range(18):
            for r in range(4): P(f"v_mov_b32 v{qacc(k) + r}, 0")
        issue(pro[n1:n2])
        w0 = sum(cnt[k] for k, _ in pro[2:n2])
        P(f"s_waitcnt vmcnt({w0})\ns_barrier")
        if self.qstamp:
            P(f"s_memtime s[72:73]\ns_waitcnt lgkmcnt(0)\ns_cmp_eq_u32 s{S_QI}, 0\ns_cselect_b32 s82, s72, s82")
        for g in read_groups(0, 0):
            for x in g: P(x)
        issue(pro[n2:])
        P(f"s_waitcnt lgkmcnt(0)\ns_mov_b32 s{S_CNT}, 4")
        pre, _ = finalize_linear(P.items)
        out = Prog(); out.extend(pre)
        body = Prog()
        for r in range(8):
            ss = r & 1
            if not self.q_nowait: body(f"s_waitcnt vmcnt({wr[r]}) lgkmcnt(0)")
            if not self.q_nobar: body("s_barrier")
            R = read_groups(1 - ss, r + 1)
            D = w_groups(r) + (x_groups(r >> 1) if ss == 1 else [])
            if self.q_nodma: D = []
            if self.q_nord: R = R[:1]
            M = mf(ss)
            fill = [[] for _ in M]
            for i, g in enumerate(R): fill[i] += g
            free = list(range(len(R), len(M))) + list(range(0, len(R), 2))
            gi = 0
            dm = [g for g in D if any('buffer_load' in y for y in g)]
            oth = [g for g in D if not any('buffer_load' in y for y in g)]
            seqD = D
            npos = len(M)
            for i, g in enumerate(seqD):
                pos = min(npos - 1, 2 + (i * (npos - 2)) // max(len(seqD), 1))
                if 'm0' in g[0] and pos > 0 and not any('buffer_load' in y for y in fill[pos - 1]):
                    fill[pos - 1].append(g[0]); fill[pos] += g[1:]
                else:
                    fill[pos] += g
            for x in interleave(M, fill): body(x)
        if self.qstamp:
            body("s_waitcnt lgkmcnt(0)\ns_memtime s[72:73]\ns_waitcnt lgkmcnt(0)")
            for it in range(4):
                body(f"s_lshl_b32 s39, s{S_QI}, 4\ns_add_u32 s39, s39, s{S_CNT}\ns_cmp_eq_u32 s39, {4 - it}\ns_cselect_b32 s{83+it}, s72, s{83+it}")
        body(f"s_sub_u32 s{S_CNT}, s{S_CNT}, 1\ns_cmp_lg_u32 s{S_CNT}, 0")
        b, _ = finalize_loop(body.items)
        out.label(f"{n}_qp{tag}")
        out.extend(b)
        out(f"s_cbranch_scc1 {n}_qp{tag}")
        E = Prog()
        E("s_waitcnt vmcnt(0) lgkmcnt(0)\ns_barrier")
        C = Prog()
        C(f"""
        v_mov_b32 v8, {f2u(CSCALE):#x}
        v_mov_b32 v9, {f2u(CSCALE):#x}
        v_lshlrev_b32 v2, 4, v{L}
        v_add_u32 v2, {QX}, v2
        s_lshl_b32 s40, s{S_QH}, 14
        s_lshl_b32 s{S_TMP2}, s{S_HH}, 11
        s_add_u32 s40, s40, s{S_TMP2}
        s_lshl_b32 s{S_TMP2}, s{S_QH}, 10
        s_add_u32 s{S_XOFF}, s40, s{S_TMP2}
        s_xor_b32 s{S_TMP2}, s{S_TMP2}, 1024
        s_add_u32 s{S_WOFF}, s40, s{S_TMP2}
        v_add_u32 v3, s{S_XOFF}, v2
        v_add_u32 v4, s{S_WOFF}, v2
        s_lshl_b32 s40, s{S_HH}, 11
        s_lshl_b32 s{S_TMP2}, s{S_QH}, 10
        s_add_u32 s40, s40, s{S_TMP2}
        v_add_u32 v5, s40, v2
        """)
        def conv(k0, dst):
            for q in range(2):
                a = qacc(k0 + q)
                for r in range(4): C(f"v_mul_f32 v{a+r}, v8, v{a+r}")
            for q in range(2):
                a = qacc(k0 + q)
                C(f"v_cvt_pk_bf16_f32 v{dst+2*q}, v{a}, v{a+1}")
                C(f"v_cvt_pk_bf16_f32 v{dst+2*q+1}, v{a+2}, v{a+3}")
        k = 0
        for t in range(4):
            for p in range(2):
                d = 120 + 4 * (k % 16); k += 1
                conv(4 * t + 2 * p, d)
                C(f"ds_write_b128 v{3+p}, {rng('v', d)} offset:{t*4096}")
        d = 120 + 4 * k
        conv(16, d)
        C(f"ds_write_b128 v5, {rng('v', d)} offset:{8*4096}")
        RF = []
        for _ in range(3): RF += self.ring_groups()
        CI = Prog()
        ci = C.items
        step = max(1, len(ci) // len(RF))
        k = 0
        for i, it in enumerate(ci):
            if i % step == 0 and k < len(RF):
                for x in RF[k]: CI(x)
                k += 1
            CI.items.append(it)
        while k < len(RF):
            for x in RF[k]: CI(x)
            k += 1
        E(f"s_cmp_eq_u32 s{S_FMAX}, 0\ns_cbranch_scc1 {n}_qf{tag}")
        e1, _ = finalize_linear(E.items)
        out.extend(e1)
        c1, _ = finalize_linear(CI.items); out.extend(c1)
        out(f"s_branch {n}_qg{tag}")
        out.label(f"{n}_qf{tag}")
        c2, _ = finalize_linear(C.items); out.extend(c2)
        out.label(f"{n}_qg{tag}")
        out(f"s_mov_b32 s{S_FMAX}, 0\ns_waitcnt lgkmcnt(0)\ns_barrier")
        return out

    def lq(self):
        L = V_LANE
        P = Prog()
        P(f"""
        v_lshlrev_b32 v2, 4, v{L}
        v_add_u32 v2, {QX}, v2
        s_lshl_b32 s39, s{S_QH}, 14
        v_add_u32 v3, s39, v2
        """)
        for t in range(4):
            for jp in range(4):
                P(f"ds_read_b128 {rng('a', q_frag(t, jp))}, v3 offset:{t*4096 + jp*1024}")
        for jp in range(4):
            P(f"ds_read_b128 {rng('a', q_frag(4, jp))}, v2 offset:{8*4096 + jp*1024}")
        P("s_waitcnt lgkmcnt(0)")
        it, _ = finalize_linear(P.items)
        o = Prog(); o.extend(it)
        return o

    def s_mfmas(self, unit, sb):
        slot, fs = unit
        M = []
        for kt in range(2):
            for jp in range(4):
                d = V_S + sb * 8 + kt * 4
                c = rng('v', V_NEGM + slot * 4) if jp == 0 else rng('v', d)
                M.append(f"v_mfma_f32_16x16x32_bf16 {rng('v', d)}, {rng('v', V_KF[fs] + (kt*4+jp)*4)}, {rng('a', q_frag(slot, jp))}, {c}")
        return M
    def pv_mfmas(self, unit, pb):
        slot, fs = unit
        M = []
        p = rng('v', V_P + pb * 4)
        for jl in range(8):
            M.append(f"v_mfma_f32_16x16x32_bf16 {rng('a', acc_o(slot, jl))}, {rng('v', V_VF[fs] + jl*4)}, {p}, {rng('a', acc_o(slot, jl))}")
        M.append(f"v_mfma_f32_16x16x32_bf16 {rng('v', V_L + slot*4)}, {rng('v', V_ONES)}, {p}, {rng('v', V_L + slot*4)}")
        return M
    def max_ops(self, unit, sb):
        slot, fs = unit
        s = V_S + sb * 8
        return [[f"v_max3_f32 v{V_MX}, v{s}, v{s+1}, v{s+2}"],
                [f"v_max3_f32 v{V_MX}, v{V_MX}, v{s+3}, v{s+4}"],
                [f"v_max3_f32 v{V_MX}, v{V_MX}, v{s+5}, v{s+6}"],
                [f"v_max_f32 v{V_MX}, v{V_MX}, v{s+7}"],
                [f"v_cmp_lt_f32 vcc, s{S_T+slot}, v{V_MX}"]]
    def check_ops(self, unit, sb):
        slot, fs = unit
        s = V_S + sb * 8
        self.uid += 1
        u = self.uid
        lab_r, lab_b = f"{self.name}_rare{u}", f"{self.name}_back{u}"
        R = Prog()
        R.label(lab_r)
        R(f"""
        s_nop 7
        v_mov_b32 v{V_T1}, v{V_MX}
        s_nop 1
        v_permlane16_swap_b32 v{V_MX}, v{V_T1}
        s_nop 1
        v_max_f32 v{V_MX}, v{V_MX}, v{V_T1}
        v_mov_b32 v{V_T1}, v{V_MX}
        s_nop 1
        v_permlane32_swap_b32 v{V_MX}, v{V_T1}
        s_nop 1
        v_max_f32 v{V_MX}, v{V_MX}, v{V_T1}
        s_ashr_i32 s{S_FL}, s{S_T+slot}, 31
        s_and_b32 s{S_FL}, s{S_FL}, 0xff800000
        s_mov_b32 s{S_T+slot}, 0x41000000
        v_max_f32 v{V_MX}, s{S_FL}, v{V_MX}
        """)
        for r in range(8): R(f"v_sub_f32 v{s+r}, v{s+r}, v{V_MX}")
        for r in range(4): R(f"v_sub_f32 v{V_NEGM+slot*4+r}, v{V_NEGM+slot*4+r}, v{V_MX}")
        R(f"s_cmp_lg_u32 s{S_FL}, 0\ns_cbranch_scc1 {lab_b}")
        R(f"v_sub_f32 v{V_T1}, 0, v{V_MX}")
        R(f"v_exp_f32 v{V_T1}, v{V_T1}")
        R("s_nop 1")
        for r in range(4): R(f"v_mul_f32 v{V_L+slot*4+r}, v{V_L+slot*4+r}, v{V_T1}")
        for r in range(0, 32, 2):
            a = A_O + slot * 32 + r
            R(f"v_accvgpr_read_b32 v{V_T2}, a{a}\nv_accvgpr_read_b32 v{V_T3}, a{a+1}\nv_mul_f32 v{V_T2}, v{V_T2}, v{V_T1}\nv_mul_f32 v{V_T3}, v{V_T3}, v{V_T1}\nv_accvgpr_write_b32 a{a}, v{V_T2}\nv_accvgpr_write_b32 a{a+1}, v{V_T3}")
        R("s_nop 2")
        R(f"s_branch {lab_b}")
        self.rare.append(R)
        return [f"s_cbranch_vccnz {lab_r}", f"{lab_b}:"]
    def exp_ops(self, unit, sb, pb):
        s = V_S + sb * 8
        p = V_P + pb * 4
        return [[f"v_exp_f32 v{s}, v{s}"], [f"v_exp_f32 v{s+1}, v{s+1}"], [f"v_exp_f32 v{s+2}, v{s+2}"],
                [f"v_cvt_pk_bf16_f32 v{p}, v{s}, v{s+1}"],
                [f"v_exp_f32 v{s+3}, v{s+3}"], [f"v_exp_f32 v{s+4}, v{s+4}"],
                [f"v_cvt_pk_bf16_f32 v{p+1}, v{s+2}, v{s+3}"],
                [f"v_exp_f32 v{s+5}, v{s+5}"], [f"v_exp_f32 v{s+6}, v{s+6}"],
                [f"v_cvt_pk_bf16_f32 v{p+2}, v{s+4}, v{s+5}"],
                [f"v_exp_f32 v{s+7}, v{s+7}"],
                [f"v_cvt_pk_bf16_f32 v{p+3}, v{s+6}, v{s+7}"]]
    def kv_reads(self, fs, which):
        G = []
        if which == 'K':
            for kt in range(2):
                for jp in range(4):
                    G.append([f"ds_read_b128 {rng('v', V_KF[fs] + (kt*4+jp)*4)}, v{V_KA+jp} offset:{kt*4096}"])
        else:
            for jl in range(8):
                a = V_VF[fs] + jl * 4
                ml, h = jl >> 1, jl & 1
                va = V_VA if fs == 'A' else V_VA2
                G.append([f"ds_read_b64_tr_b16 v[{a}:{a+1}], v{va+ml} offset:{8*h}"])
                G.append([f"ds_read_b64_tr_b16 v[{a+2}:{a+3}], v{va+ml} offset:{8*h+4096}"])
        return G
    def kv_addr(self, fs):
        va = V_VA if fs == 'A' else V_VA2
        G = [[f"v_add_u32 v{V_KA+j}, s{S_RSLOT}, v{V_KPAT+j}"] for j in range(4)]
        G += [[f"v_add_u32 v{va+j}, s{S_RSLOT}, v{V_VPAT+j}"] for j in range(4)]
        G.append([f"s_add_u32 s{S_RSLOT}, s{S_RSLOT}, {SLOT}", f"s_cmp_eq_u32 s{S_RSLOT}, {3*SLOT}", f"s_cselect_b32 s{S_RSLOT}, 0, s{S_RSLOT}"])
        return G

    def units(self, qh):
        if qh == 0: return [(0,'A'),(1,'A'),(2,'A'),(3,'A'),(4,'A'),(0,'B'),(1,'B'),(2,'B'),(3,'B')]
        return [(0,'A'),(1,'A'),(2,'A'),(3,'A'),(0,'B'),(1,'B'),(2,'B'),(3,'B'),(4,'B')]

    def attn_body(self, qh, last):
        U = self.units(qh)
        B = Prog()
        RG = self.ring_groups()
        for g in range(9):
            if g in (0, 4):
                B("s_waitcnt vmcnt(8) lgkmcnt(0)")
                if not self.x_nobar: B("s_barrier")
            M = []
            if not (last and g + 3 >= 9):
                M += self.s_mfmas(U[(g + 3) % 9], g % 3)
            M += self.pv_mfmas(U[g], g % 3)
            V = []
            head = []
            if not (last and g + 1 >= 9):
                head = self.check_ops(U[(g + 1) % 9], (g + 1) % 3)
                ex = self.exp_ops(U[(g + 1) % 9], (g + 1) % 3, (g + 1) % 3)
            else: ex = []
            mx = self.max_ops(U[(g + 2) % 9], (g + 2) % 3) if not (last and g + 2 >= 9) else []
            V = []
            ei = mi = 0
            pat = "eeemcemecemecemcm" if False else "eemeemeemeemm"
            order = []
            if self.x_nomax and ex:
                e_ = [g_ for g_ in ex if g_[0].startswith('v_exp')]
                c_ = [g_ for g_ in ex if g_[0].startswith('v_cvt')]
                pat = "e-ee-eC-ee-e-eC--"
                ei = ci = 0
                for ch in pat:
                    if ch == 'e': order.append(e_[ei]); ei += 1
                    elif ch == 'C': order.append(c_[ci] + c_[ci + 1]); ci += 2
                    else: order.append([])
            else:
                for i in range(17):
                    if i in (1, 3, 5, 7, 9) and mi < len(mx): order.append(mx[mi]); mi += 1
                    elif ei < len(ex): order.append(ex[ei]); ei += 1
                    elif mi < len(mx): order.append(mx[mi]); mi += 1
            V = order
            PF = []
            if last and self.pf_wo and self.x_nomax == self.fast and g in (0, 4):
                self.uid += 1
                lab = f"{self.name}_npf{self.uid}"
                pf = [f"s_cmp_eq_u32 s{S_ITEM}, 0", f"s_cbranch_scc1 {lab}"]
                pf += [f"s_lshl_b32 s39, s{S_W}, 14", f"s_add_u32 s39, s39, {8192 if g == 4 else 0}",
                       f"buffer_load_dword v{V_PFD}, v19, s[76:79], s39 offen"]
                if self.op_label and g == 0:
                    pf += [f"s_cmp_lg_u32 s{S_W}, 0", f"s_cbranch_scc1 {lab}",
                           f"s_getpc_b64 s[60:61]", f"{lab}_pc:",
                           f"s_add_u32 s60, s60, {self.op_label}-{lab}_pc", f"s_addc_u32 s61, s61, 0",
                           f"global_load_dword v{V_PFD}, v19, s[60:61]", f"global_load_dword v{V_PFD}, v19, s[60:61] offset:0"]
                pf.append(f"{lab}:")
                PF = [pf]
            if last and self.pf1 and self.x_nomax == self.fast and g in (0, 4):
                self.uid += 1
                lab = f"{self.name}_np1{self.uid}"
                pf = [f"s_or_b32 s39, s{S_LATE}, s{S_ITEM}", f"s_cmp_lg_u32 s39, 0", f"s_cbranch_scc1 {lab}"]
                if g == 0:
                    pf += self.pf_w(f"s{S_W}", "1") + self.pf_x(f"s{S_W}")
                else:
                    pf += [f"s_add_u32 s39, s{S_W}, 4"] + self.pf_x("s39") + [f"s_add_u32 s39, s{S_W}, 8", "s_min_u32 s39, s39, 8"] + self.pf_x("s39")
                pf.append(f"{lab}:")
                PF = PF + [pf]
            KA, VA_ = (self.kv_reads('A', 'K'), self.kv_reads('A', 'V')) if not last else ([], [])
            KB, VB_ = self.kv_reads('B', 'K'), self.kv_reads('B', 'V')
            ADA = self.kv_addr('A') if not last else []
            ADB = self.kv_addr('B') if not last else []
            D, adv = self.ring_instrs()
            H = []
            Lt = []
            if g == 0: H = KB + PF + D[0:1]
            if g == 1: H = VB_[:6] + D[1:4];
            if g == 2: H = VB_[6:11] + D[4:6]; Lt = ADA[:4]
            if g == 3: H = D[6:8] + VB_[11:]; Lt = ADA[4:] + [adv]
            if g == 4: H = KA + PF + D[0:1]
            if g == 5: H = VA_[:5] + D[1:4]
            if g == 6: H = VA_[5:10] + D[4:6]; Lt = ADB[:4]
            if g == 7: H = D[6:8] + VA_[10:]; Lt = ADB[4:8]
            if g == 8: Lt = ADB[8:] + [adv]
            if self.x_nomax:
                if g == 0: H = KB + PF
                if g == 1: H = VB_[:5] + D[0:3]
                if g == 2: H = VB_[5:11] + D[3:5]
                if g == 3: H = D[5:8] + VB_[11:]
                if g == 4: H = KA[:7] + PF
                if g == 5: H = KA[7:] + D[0:2] + VA_[:4]
                if g == 6: H = D[2:4] + VA_[4:9]
                if g == 7: H = D[4:6] + VA_[9:14]
                if g == 8: H = VA_[14:] + D[6:8];
            if self.x_nodma: H = [x for x in H if not any('lds' in y and 'buffer_load' in y for y in x)]
            if self.x_nord: H = [x for x in H if not any('ds_read' in y for y in x)]
            if self.x_nosm: V = []; head = []
            if self.x_nobr: head = []
            if self.x_noX: H = []; Lt = []
            if self.x_nomax: V = [[] if (x and (x[0].startswith('v_max') or x[0].startswith('v_cmp'))) else x for x in V]; head = []
            n = len(M)
            fill = [list(V[i]) if i < len(V) else [] for i in range(n)]
            light = [i for i in range(n) if not (fill[i] and fill[i][0].startswith('v_exp'))]
            empty = [i for i in range(n) if not fill[i]]
            pos = light[:]
            if self.x_nomax and empty:
                pos = empty[:]
                more = [i for i in light if i not in pos] + [i for i in range(n) if i not in light]
                if len(H) > len(pos): pos = sorted(pos + more[:len(H) - len(pos)])
            if len(H) > len(pos):
                extra_pos = [i for i in range(n) if i not in pos][:len(H) - len(pos)]
                pos = sorted(pos + extra_pos)
            if H:
                k = len(pos)
                chosen = [pos[(j * k) // len(H)] for j in range(len(H))]
                for j, h in enumerate(H):
                    h = list(h)
                    if ' m0,' in h[0] and chosen[j] > 0 and not any('lds' in y and 'buffer_load' in y for y in fill[chosen[j] - 1]):
                        fill[chosen[j] - 1].append(h[0]); h = h[1:]
                    fill[chosen[j]] += h
            if Lt:
                has_heavy = lambda i: any(('ds_read' in y or 'buffer_load' in y) for y in fill[i])
                last_dma = max([i for i in range(n) if any('buffer_load' in y for y in fill[i])] + [-1])
                free = [i for i in light if not has_heavy(i)] + [i for i in range(n) if i not in light]
                used = set()
                for l_ in Lt:
                    need_after = last_dma if any(f"s{S_GOFF}," in y for y in l_) else -1
                    cand = [i for i in free if i not in used and i > need_after] or [n - 1]
                    if any(f"s{S_RSLOT}, s{S_RSLOT}" in y for y in l_):
                        la = max([i for i in range(n) if any(f"s{S_RSLOT}, v" in y for y in fill[i])] + [-1])
                        cand = [i for i in range(n) if i >= la]
                        cand = [max(cand[0], 0)]
                    i = cand[0]; used.add(i)
                    fill[i] += l_
            extra = V[n:]
            for x in head: B(x)
            for x in interleave(M, fill + extra): B(x)
        return B

    def attention(self, qh, tag):
        n = self.name
        U = self.units(qh)
        P = Prog()
        for r in range(160): P(f"v_accvgpr_write_b32 a{A_O + r}, 0")
        for r in range(20): P(f"v_mov_b32 v{V_L + r}, 0\nv_mov_b32 v{V_NEGM + r}, 0")
        for s in range(5): P(f"s_mov_b32 s{S_T+s}, 0xff800000")
        P("s_waitcnt vmcnt(16)\ns_barrier")
        for g in self.kv_addr('A') + self.kv_reads('A', 'K') + self.kv_reads('A', 'V') + self.kv_addr('B'):
            for x in g: P(x)
        for x in self.s_mfmas(U[0], 0) + self.s_mfmas(U[1], 1) + self.s_mfmas(U[2], 2): P(x)
        if not self.x_nomax:
            for g in self.max_ops(U[0], 0):
                for x in g: P(x)
            P("s_nop 3")
            for x in self.check_ops(U[0], 0): P(x)
        for g in self.exp_ops(U[0], 0, 0) + (self.max_ops(U[1], 1) if not self.x_nomax else []):
            for x in g: P(x)
        P(f"s_waitcnt lgkmcnt(0)\ns_mov_b32 s{S_CNT}, 7")
        pre, _ = finalize_linear(P.items)
        out = Prog(); out.extend(pre)
        body, _ = finalize_loop(self.attn_body(qh, False).items)
        if self.stamps:
            self.stamp(out, 5)
        out.label(f"{n}_at{tag}")
        out.extend(body)
        out(f"s_sub_u32 s{S_CNT}, s{S_CNT}, 1\ns_cmp_lg_u32 s{S_CNT}, 0\ns_cbranch_scc1 {n}_at{tag}")
        if self.stamps:
            self.stamp(out, 6)
        lastb = self.attn_body(qh, True)
        l1, f = auto_lgkm(body, None)
        l2, _ = auto_lgkm(lastb.items, f)
        l3 = fix_hazards(l2, wrap=body)
        out.extend(l3)
        return out

    def combine(self, qh):
        L = V_LANE
        E = Prog()
        MLO = 32768
        if self.cstamp: E(f"s_waitcnt lgkmcnt(0)\ns_memtime s[48:49]\ns_waitcnt lgkmcnt(0)\ns_cmp_eq_u32 s{S_ITEM}, 0\ns_cselect_b32 s82, s48, s82")
        E("s_nop 7\ns_waitcnt lgkmcnt(0)\ns_barrier")
        if self.cstamp: E(f"s_waitcnt lgkmcnt(0)\ns_memtime s[48:49]\ns_waitcnt lgkmcnt(0)\ns_cmp_eq_u32 s{S_ITEM}, 0\ns_cselect_b32 s83, s48, s83")
        E(f"""
        v_lshlrev_b32 v2, 2, v{L}
        v_add_u32 v2, {STG + MLO}, v2
        s_mul_i32 s39, s{S_W}, 2560
        v_add_u32 v3, s39, v2
        v_lshlrev_b32 v8, 4, v{L}
        v_add_u32 v8, {STG}, v8
        s_lshl_b32 s39, s{S_W}, 13
        s_lshl_b32 s40, s{S_HH}, 12
        s_add_u32 s{S_TMP2}, s39, s40
        v_add_u32 v5, s{S_TMP2}, v8
        s_xor_b32 s{S_TMP2}, s{S_TMP2}, 4096
        v_add_u32 v6, s{S_TMP2}, v8
        """)
        for s_ in range(5):
            E(f"ds_write_b32 v3, v{V_NEGM + s_*4} offset:{s_*512}")
            E(f"ds_write_b32 v3, v{V_L + s_*4} offset:{s_*512 + 256}")
        for jl in range(8):
            E(f"ds_write_b128 v{5 + (jl >> 2)}, {rng('a', acc_o(4, jl))} offset:{(jl & 3)*1024}")
        E(f"""s_mov_b64 s[72:73], 0
        s_mov_b32 s{S_XRB}, 0x21800000
        v_mov_b32 v{V_T3}, 0x5d800000
        v_mov_b32 v{V_P}, 0
        v_mov_b32 v{V_P+1}, 0
        v_mov_b32 v{V_P+2}, 0
        v_mov_b32 v{V_P+3}, 0
        s_xor_b32 s39, s{S_W}, 2
        s_mul_i32 s39, s39, 2560
        v_add_u32 v4, s39, v2
        s_lshl_b32 s39, s{S_W}, 11
        v_add_u32 v5, s39, v8
        v_and_b32 v6, 15, v{L}
        v_lshlrev_b32 v6, 8, v6
        v_lshrrev_b32 v7, 4, v{L}
        v_lshlrev_b32 v7, 4, v7
        v_add_u32 v7, v6, v7
        s_mul_i32 s{S_XOFF}, s{S_ITEM}, 36864
        s_lshl_b32 s{S_WOFF}, s{S_W}, 6
        s_add_u32 s{S_WOFF}, s{S_WOFF}, {128*256}
        s_add_u32 s{S_WOFF}, s{S_WOFF}, s{S_XOFF}
        s_lshl_b32 s39, s{S_QH}, 14
        s_lshl_b32 s40, s{S_HH}, 7
        s_add_u32 s39, s39, s40
        s_add_u32 s{S_XOFF}, s{S_XOFF}, s39
        """)
        E("s_waitcnt lgkmcnt(0)\ns_barrier")
        if self.cstamp: E(f"s_waitcnt lgkmcnt(0)\ns_memtime s[48:49]\ns_waitcnt lgkmcnt(0)\ns_cmp_eq_u32 s{S_ITEM}, 0\ns_cselect_b32 s84, s48, s84")
        for s_ in range(4):
            E(f"ds_read_b32 v{120 + 2*s_}, v4 offset:{s_*512}")
            E(f"ds_read_b32 v{121 + 2*s_}, v4 offset:{s_*512 + 256}")
        for ww in range(4):
            E(f"ds_read_b32 v{128 + 2*ww}, v2 offset:{ww*2560 + 4*512}")
            E(f"ds_read_b32 v{129 + 2*ww}, v2 offset:{ww*2560 + 4*512 + 256}")
        for ww in range(4):
            for x in range(2):
                E(f"ds_read_b128 {rng('v', 160 + (ww*2+x)*4)}, v5 offset:{ww*8192 + x*1024}")
        E(f"""
        s_lshl_b32 s39, s{S_W}, 14
        v_add_u32 v3, s39, v8
        s_xor_b32 s39, s39, {2 << 14}
        v_add_u32 v4, s39, v8
        """)
        for s_ in range(4):
            for r in range(16):
                E(f"v_accvgpr_read_b32 v{192 + 16*(s_ % 3) + r if s_ < 3 else 96 + r}, a{acc_o(s_, 0) + r}")
        E("s_waitcnt lgkmcnt(0)\ns_barrier")
        if self.cstamp: E(f"s_waitcnt lgkmcnt(0)\ns_memtime s[48:49]\ns_waitcnt lgkmcnt(0)\ns_cmp_eq_u32 s{S_ITEM}, 0\ns_cselect_b32 s85, s48, s85")
        for s_ in range(4):
            for x in range(4):
                E(f"ds_write_b128 v3, {rng('a', acc_o(s_, 4 + x))} offset:{(s_*4+x)*1024}")
        for s_ in range(4):
            nm, l_ = V_NEGM + 4 * s_, V_L + 4 * s_
            no, lo = 120 + 2 * s_, 121 + 2 * s_
            E(f"""
            v_min_f32 v2, v{nm}, v{no}
            v_sub_f32 v6, v2, v{nm}
            v_sub_f32 v5, v2, v{no}
            v_exp_f32 v6, v6
            v_exp_f32 v5, v5
            s_nop 0
            v_mul_f32 v9, v6, v{l_}
            v_fma_f32 v9, v5, v{lo}, v9
            v_cmp_nge_f32 s[60:61], v9, s{S_XRB}
            v_cmp_nle_f32 vcc, v9, v{V_T3}
            v_rcp_f32 v9, v9
            s_or_b64 s[72:73], s[72:73], s[60:61]
            s_or_b64 s[72:73], s[72:73], vcc
            v_mul_f32 v{136+4*s_}, v6, v9
            v_mul_f32 v{137+4*s_}, v6, v9
            v_mul_f32 v{138+4*s_}, v5, v9
            v_mul_f32 v{139+4*s_}, v5, v9
            """)
        E(f"""
        v_min_f32 v2, v128, v130
        v_min_f32 v6, v132, v134
        v_min_f32 v2, v2, v6
        """)
        for ww in range(4):
            E(f"v_sub_f32 v{152+2*ww}, v2, v{128+2*ww}\nv_exp_f32 v{152+2*ww}, v{152+2*ww}")
        E(f"""
        s_nop 0
        v_mul_f32 v9, v152, v129
        v_fma_f32 v9, v154, v131, v9
        v_fma_f32 v9, v156, v133, v9
        v_fma_f32 v9, v158, v135, v9
        v_cmp_nge_f32 s[60:61], v9, s{S_XRB}
        v_cmp_nle_f32 vcc, v9, v{V_T3}
        v_rcp_f32 v9, v9
        s_or_b64 s[72:73], s[72:73], s[60:61]
        s_or_b64 s[72:73], s[72:73], vcc
        """)
        for ww in range(4): E(f"v_mul_f32 v{152+2*ww}, v{152+2*ww}, v9\nv_mov_b32 v{153+2*ww}, v{152+2*ww}")
        for r in range(8):
            E(f"v_mul_f32 v{112+r}, v{160+r}, v152")
        for ww in range(1, 4):
            for r in range(8):
                E(f"v_fma_f32 v{112+r}, v{160+ww*8+r}, v{152+2*ww}, v{112+r}")
        for r in range(4):
            E(f"v_fma_f32 v{V_P+2}, v{112+2*r}, v{V_P}, v{V_P+2}")
            E(f"v_fma_f32 v{V_P+3}, v{113+2*r}, v{V_P}, v{V_P+3}")
            E(f"v_cvt_pk_bf16_f32 v{V_P+4+r}, v{112+2*r}, v{113+2*r}")
        E(f"buffer_store_dwordx4 {rng('v', V_P+4)}, v7, s[20:23], s{S_WOFF} offen{self.st_flags}")
        mine = lambda s_: (192 + 16 * s_) if s_ < 3 else 96
        for s_ in range(4):
            for r in range(16):
                E(f"v_mul_f32 v{mine(s_)+r}, v{mine(s_)+r}, v{136+4*s_}")
        if self.cstamp: E(f"s_waitcnt lgkmcnt(0)\ns_memtime s[48:49]\ns_waitcnt lgkmcnt(0)\ns_cmp_eq_u32 s{S_ITEM}, 0\ns_cselect_b32 s86, s48, s86")
        E("s_waitcnt lgkmcnt(0)\ns_barrier")
        if self.cstamp: E(f"s_waitcnt lgkmcnt(0)\ns_memtime s[48:49]\ns_waitcnt lgkmcnt(0)\ns_cmp_eq_u32 s{S_ITEM}, 0\ns_cselect_b32 s87, s48, s87")
        recv = lambda s_: 160 + 16 * (s_ % 2)
        def rd(s_):
            for x in range(4):
                E(f"ds_read_b128 {rng('v', recv(s_) + 4*x)}, v4 offset:{(s_*4+x)*1024}")
        rd(0); rd(1)
        for s_ in range(4):
            m_, rc = mine(s_), recv(s_)
            for r in range(16):
                E(f"v_fma_f32 v{m_+r}, v{rc+r}, v{138+4*s_}, v{m_+r}")
            if s_ + 2 < 4: rd(s_ + 2)
            pk = 56 + 8 * s_
            for r in range(8):
                E(f"v_fma_f32 v{V_P+2}, v{m_+2*r}, v{V_P}, v{V_P+2}")
                E(f"v_fma_f32 v{V_P+3}, v{m_+2*r+1}, v{V_P}, v{V_P+3}")
                E(f"v_cvt_pk_bf16_f32 v{pk+r}, v{m_+2*r}, v{m_+2*r+1}")
            E(f"s_add_u32 s39, s{S_XOFF}, {s_*4096}")
            for p in range(2):
                E(f"buffer_store_dwordx4 {rng('v', pk+4*p)}, v7, s[20:23], s39 offen offset:{64*p}{self.st_flags}")
        E(f"""
        v_cmp_u_f32 vcc, v{V_P+2}, v{V_P+3}
        s_nop 1
        s_or_b64 s[72:73], s[72:73], vcc
        s_cmp_lg_u64 s[72:73], 0
        s_cselect_b32 s39, 1, {1 if self.force_bad else 0}
        s_xor_b32 s40, s{S_SAFE}, 1
        s_and_b32 s39, s39, s40
        s_lshl_b32 s39, s39, s{S_ITEM}
        s_or_b32 s{S_BAD}, s{S_BAD}, s39
        s_waitcnt lgkmcnt(0)
        """)
        if self.cstamp: E(f"s_waitcnt lgkmcnt(0)\ns_memtime s[48:49]\ns_waitcnt lgkmcnt(0)\ns_cmp_eq_u32 s{S_ITEM}, 0\ns_cselect_b32 s88, s48, s88")
        it, _ = finalize_linear(E.items)
        o = Prog(); o.extend(it)
        return o

    def agree_bad(self):
        E = Prog()
        E(f"""
        s_barrier
        v_mov_b32 v5, {STG}
        s_lshl_b32 s40, s{S_W}, 2
        v_add_u32 v6, s40, v5
        v_mov_b32 v3, s{S_BAD}
        ds_write_b32 v6, v3
        s_waitcnt lgkmcnt(0)
        s_barrier
        ds_read_b128 v[120:123], v5
        s_waitcnt lgkmcnt(0)
        v_or_b32 v120, v120, v121
        v_or_b32 v122, v122, v123
        v_or_b32 v120, v120, v122
        s_nop 0
        v_readfirstlane_b32 s{S_BAD}, v120
        s_nop 3
        """)
        it, _ = finalize_linear(E.items)
        o = Prog(); o.extend(it)
        return o

    def stamp(self, out, idx_expr, sel=None):
        if not self.stamps: return
        if (self.qstamp or self.cstamp) and idx_expr not in (0, 1): return
        base = idx_expr
        u = self.nst; self.nst += 1
        out(f"""s_waitcnt lgkmcnt(0)
        {'s_memrealtime' if self.dbg_stamps is not None else 's_memtime'} s[72:73]
        s_waitcnt lgkmcnt(0)
        s_cmp_eq_u32 s{sel if sel is not None else S_ITEM}, 0
        s_cselect_b32 s{80+base}, s72, s{80+base}
        s_cselect_b32 s{88+base}, s{88+base}, s72""")

    def build(self):
        n = self.name
        out = Prog()
        st, _ = finalize_linear(self.setup().items)
        out.extend(st)
        if self.qp0_nt:
            self.stamp(out, 0, S_QI)
            sv = self.nt_w; self.nt_w = ' nt'
            out.extend(self.qp('z'))
            self.nt_w = sv
            out(f"s_branch {n}_qpE")
        out.label(f"{n}_qpL")
        self.stamp(out, 0, S_QI)
        out.extend(self.qp('x'))
        out.label(f"{n}_qpE")
        self.stamp(out, 1, S_QI)
        out(f"s_xor_b32 s39, s{S_LATE}, 1\ns_or_b32 s39, s39, s{S_QI}\ns_or_b32 s39, s39, s{S_SAFE}\ns_cmp_lg_u32 s39, 0\ns_cbranch_scc1 {n}_nolate0")
        out.extend(self.lq())
        out(f"s_mov_b32 s{S_QI}, 1\ns_mov_b32 s{S_FMAX}, 1\ns_branch {n}_qpL")
        out.label(f"{n}_nolate0")
        out(f"s_xor_b32 s39, s{S_SAFE}, 1\ns_and_b32 s39, s39, s{S_LATE}\ns_cmp_lg_u32 s39, 0\ns_cbranch_scc1 {n}_att")
        out.extend(self.lq())
        out.label(f"{n}_att")
        self.stamp(out, 2)
        out(f"s_cmp_lg_u32 s{S_SAFE}, 0\ns_cbranch_scc1 {n}_safe")
        out(f"s_cmp_lg_u32 s{S_QH}, 0\ns_cbranch_scc1 {n}_q1")
        self.x_nomax = self.fast
        out.extend(self.attention(0, 'a'))
        out(f"s_branch {n}_cmb")
        out.label(f"{n}_q1")
        out.extend(self.attention(1, 'b'))
        out(f"s_branch {n}_cmb")
        out.label(f"{n}_safe")
        self.x_nomax = False
        st, self.stamps = self.stamps, False
        out(f"s_cmp_lg_u32 s{S_QH}, 0\ns_cbranch_scc1 {n}_sq1")
        out.extend(self.attention(0, 'c'))
        out(f"s_branch {n}_cmb")
        out.label(f"{n}_sq1")
        out.extend(self.attention(1, 'd'))
        self.stamps = st
        out.label(f"{n}_cmb")
        self.stamp(out, 3)
        out(f"s_xor_b32 s39, s{S_LATE}, 1\ns_or_b32 s39, s39, s{S_ITEM}\ns_or_b32 s39, s39, s{S_SAFE}\ns_cmp_lg_u32 s39, 0\ns_cbranch_scc1 {n}_nolq")
        out.extend(self.lq())
        out.label(f"{n}_nolq")
        out.extend(self.combine(0))
        self.stamp(out, 4)
        out(f"s_cmp_lg_u32 s{S_SAFE}, 0\ns_cbranch_scc1 {n}_redo")
        out(f"s_add_u32 s{S_ITEM}, s{S_ITEM}, 1\ns_cmp_ge_u32 s{S_ITEM}, 2\ns_cbranch_scc1 {n}_agree")
        out(f"s_cmp_lg_u32 s{S_LATE}, 0\ns_cbranch_scc1 {n}_att")
        out(f"s_mov_b32 s{S_QI}, 1\ns_mov_b32 s{S_FMAX}, 1\ns_mov_b32 s{S_GOFF}, {16*16384}\ns_mov_b32 s10, s{S_NREC2}\ns_branch {n}_qpL")
        out.label(f"{n}_agree")
        out.extend(self.agree_bad())
        out.label(f"{n}_redo")
        out(f"s_cmp_eq_u32 s{S_BAD}, 0\ns_cbranch_scc1 {n}_fin")
        out(f"""s_and_b32 s39, s{S_BAD}, 1
        s_xor_b32 s{S_ITEM}, s39, 1
        s_lshl_b32 s39, 1, s{S_ITEM}
        s_andn2_b32 s{S_BAD}, s{S_BAD}, s39
        s_mov_b32 s{S_QI}, s{S_ITEM}
        s_mov_b32 s{S_SAFE}, 1
        s_mov_b32 s{S_FMAX}, 1
        s_lshl_b32 s{S_GOFF}, s{S_ITEM}, 18
        s_mov_b32 s10, s{S_NREC2}
        s_mov_b32 s{S_DSLOT}, s{S_DBASE}
        s_mov_b32 s{S_RSLOT}, 0
        s_branch {n}_qpL""")
        out.label(f"{n}_fin")
        if self.stamps and self.dbg_stamps is not None:
            out(f"""s_cmp_lg_u32 s2, {self.dbg_stamps}
            s_cbranch_scc1 {n}_done
            s_cmp_lg_u32 s{S_W}, 0
            s_cbranch_scc1 {n}_done
            s_memrealtime s[72:73]
            s_waitcnt lgkmcnt(0)
            s_mov_b32 s95, s72
            s_add_u32 s68, s68, {64 << 20}
            s_addc_u32 s69, s69, 0
            v_mov_b32 v2, 0""")
            for i in range(16):
                out(f"v_mov_b32 v3, s{80+i}\nglobal_store_dword v2, v3, s[68:69] offset:{4*i}")
        elif self.stamps:
            out(f"""s_lshl_b32 s39, s2, 2
            s_add_u32 s39, s39, s{S_W}
            s_lshl_b32 s39, s39, 6
            s_add_u32 s39, s39, {64 << 20}
            s_add_u32 s68, s68, s39
            s_addc_u32 s69, s69, 0
            v_mov_b32 v2, 0""")
            for i in range(16):
                out(f"v_mov_b32 v3, s{80+i}\nglobal_store_dword v2, v3, s[68:69] offset:{4*i}")
        out.label(f"{n}_done")
        out("s_endpgm")
        labs = {it.text for it in out.items if it.kind == 'label'}
        for r in self.rare:
            back = r.items[-1].ops[0] + ':'
            if back in labs: out.extend(r)
        return kernel_text(n, out.text(), vgpr=512, sgpr=102, acc=256), LDS_TOTAL

if __name__ == '__main__':
    import sys
    b = dict(order='mix', late_bit=6, pf1=True)
    variants = [('fa_a_kernel', dict(b)), ('fa_samekv_kernel', dict(b, same_kv=True, nt_kv=False))]
    hdr = ''; body = ''
    for nm, kw in variants:
        txt, lds = FA(name=nm, stamps=True, **kw).build()
        hdr += f"; @launch kernel={nm} grid=(256,1,1) block=(256,1,1) lds={lds}\n"
        body += txt
    open('fa.s', 'w').write(hdr + '.amdgcn_target "amdgcn-amd-amdhsa--gfx950"\n.text\n' + body)
```

```python
from asmlib import *

O_WS_OFF = 0
STG = 53248
WOFF = 36864

def gen_oproj(name='oproj_kernel', o_off=O_WS_OFF, stamps=False, dbg=False, nt_w=False, nt_o=False, nbuf=3, mid=False, st_flags='', rt=False):
    RT = 's_memrealtime' if (dbg or rt) else 's_memtime'
    ntw = ' nt' if nt_w else ''
    nto = ' nt' if nt_o else ''
    P = Prog()
    def stamp(X, i):
        if stamps: X(f"s_waitcnt lgkmcnt(0)\n{RT} s[50:51]\ns_waitcnt lgkmcnt(0)\ns_mov_b32 s{60+i}, s50")
    P(f"""
    s_cmp_ge_u32 s2, 256
    s_cbranch_scc1 {name}_done
    s_load_dwordx2 s[4:5], s[0:1], 96
    s_load_dwordx2 s[6:7], s[0:1], 80
    s_load_dwordx2 s[8:9], s[0:1], 32
    s_load_dwordx2 s[10:11], s[0:1], 72
    STAMP0
    v_lshrrev_b32 v1, 6, v0
    v_and_b32 v2, 63, v0
    v_readfirstlane_b32 s24, v1
    s_and_b32 s32, s2, 7
    s_lshr_b32 s33, s2, 3
    s_lshr_b32 s25, s32, 2
    s_and_b32 s34, s32, 1
    s_lshl_b32 s34, s34, 2
    s_and_b32 s41, s33, 3
    s_add_u32 s26, s34, s41
    s_lshr_b32 s34, s32, 1
    s_and_b32 s34, s34, 1
    s_lshl_b32 s34, s34, 3
    s_lshr_b32 s42, s33, 2
    s_add_u32 s27, s34, s42
    """)
    P.items = [it for it in P.items if it.op != 'STAMP0']
    P("""
    v_lshrrev_b32 v3, 4, v2
    v_and_b32 v4, 15, v2
    v_xor_b32 v5, v4, v3
    v_lshlrev_b32 v5, 4, v5
    v_lshlrev_b32 v6, 8, v3
    v_add_u32 v10, v5, v6
    """)
    for mm in range(9):
        P(f"""
        s_mul_i32 s32, s24, 9
        s_add_u32 s32, s32, {mm}
        s_and_b32 s33, s32, 3
        s_lshl_b32 s33, s33, 6
        v_xor_b32 v{146+mm}, s33, v10
        s_lshl_b32 s32, s32, 10
        v_add_u32 v{146+mm}, s32, v{146+mm}
        """)
    P("""
    v_lshrrev_b32 v3, 3, v2
    v_and_b32 v4, 7, v2
    v_lshrrev_b32 v5, 4, v2
    v_and_b32 v5, 1, v5
    v_lshlrev_b32 v5, 1, v5
    v_xor_b32 v4, v4, v5
    v_lshlrev_b32 v4, 4, v4
    v_lshlrev_b32 v3, 11, v3
    v_add_u32 v14, v3, v4
    s_lshl_b32 s32, s24, 16
    v_add_u32 v14, s32, v14
    """)
    for pp in range(4):
        P(f"v_xor_b32 v{155+pp}, {64*(pp & 1)}, v14\nv_add_u32 v{155+pp}, {pp*16384}, v{155+pp}")
    P("s_waitcnt lgkmcnt(0)")
    stamp(P, 0)
    P(f"""
    s_lshl_b32 s32, s25, 3
    s_add_u32 s32, s32, s26
    s_mul_i32 s32, s32, {144*8192}
    s_add_u32 s12, s4, s32
    s_addc_u32 s13, s5, 0
    s_add_u32 s12, s12, {o_off}
    s_addc_u32 s13, s13, 0
    s_and_b32 s13, s13, 0xffff
    s_mov_b32 s14, {144*8192}
    s_mov_b32 s15, 0x20000
    s_cmp_eq_u32 s25, 0
    s_cselect_b32 s16, s8, s10
    s_cselect_b32 s17, s9, s11
    s_lshl_b32 s32, s27, 7
    s_add_u32 s16, s16, s32
    s_addc_u32 s17, s17, 0
    s_and_b32 s17, s17, 0xffff
    s_sub_u32 s18, {4096*2048}, s32
    s_mov_b32 s19, 0x20000
    s_mul_i32 s45, s24, {9*1024}
    s_lshl_b32 s46, s24, 12
    s_add_u32 s46, s46, {WOFF}
    s_mov_b32 s36, 0
    s_mov_b32 s37, 0
    s_mov_b32 s29, 0
    s_mov_b32 s30, 0
    """)
    def dma_groups():
        L = [[f"s_add_u32 s38, s45, s29", f"s_add_u32 s39, s46, s29"]]
        for mm in range(9):
            L.append([f"s_add_u32 m0, s38, {mm*1024}", f"buffer_load_dwordx4 v{146+mm}, s[12:15], s36 offen{nto} lds"])
        for pp in range(4):
            L.append([f"s_add_u32 m0, s39, {pp*1024}", f"buffer_load_dwordx4 v{155+pp}, s[16:19], s37 offen{ntw} lds"])
        L.append([f"s_add_u32 s36, s36, 36864", f"s_min_u32 s36, s36, {144*8192}",
                  f"s_add_u32 s37, s37, {1<<18}", f"s_min_u32 s37, s37, {4096*2048}",
                  f"s_add_u32 s29, s29, {STG}", f"s_cmp_eq_u32 s29, {nbuf*STG}", f"s_cselect_b32 s29, 0, s29"])
        return L
    for g in dma_groups():
        for x in g: P(x)
    P("""
    v_and_b32 v3, 15, v2
    v_lshrrev_b32 v4, 4, v2
    s_lshl_b32 s32, s24, 2
    v_add_u32 v5, s32, v4
    v_xor_b32 v5, v5, v3
    v_lshlrev_b32 v5, 4, v5
    v_lshlrev_b32 v6, 8, v3
    v_add_u32 v16, v5, v6
    v_lshrrev_b32 v3, 2, v2
    v_and_b32 v3, 3, v3
    v_and_b32 v5, 3, v2
    v_lshlrev_b32 v6, 3, v4
    v_add_u32 v6, v6, v3
    s_lshl_b32 s32, s24, 5
    v_add_u32 v6, s32, v6
    v_lshlrev_b32 v6, 7, v6
    v_lshrrev_b32 v7, 1, v3
    v_and_b32 v8, 1, v4
    v_lshlrev_b32 v8, 1, v8
    v_add_u32 v7, v7, v8
    v_lshlrev_b32 v7, 5, v7
    v_lshlrev_b32 v5, 3, v5
    v_add_u32 v6, v6, v7
    v_add_u32 v17, v6, v5
    v_xor_b32 v18, 32, v17
    v_xor_b32 v19, 64, v17
    v_xor_b32 v20, 96, v17
    """)
    for st in range(nbuf - 1):
        for g in dma_groups():
            for x in g: P(x)
    P(f"""
    s_mul_i32 s32, s26, {144*4096}
    s_lshl_b32 s33, s25, 11
    s_add_u32 s32, s32, s33
    s_lshl_b32 s33, s27, 7
    s_add_u32 s32, s32, s33
    s_add_u32 s20, s6, s32
    s_addc_u32 s21, s7, 0
    s_and_b32 s21, s21, 0xffff
    s_sub_u32 s22, {8*144*4096}, s32
    s_mov_b32 s23, 0x20000
    """)
    for r in range(144):
        P(f"v_accvgpr_write_b32 a{r}, 0")
    FB = [32, 32 + 52]
    def reads(setk):
        b = FB[setk]
        L = []
        for j in range(4):
            a = b + 36 + 4 * j
            L.append([f"ds_read_b64_tr_b16 v[{a}:{a+1}], v{140+j} offset:{WOFF}"])
            L.append([f"ds_read_b64_tr_b16 v[{a+2}:{a+3}], v{140+j} offset:{WOFF+512}"])
        for t in range(9):
            L.append([f"ds_read_b128 v[{b+4*t}:{b+4*t+3}], v144 offset:{t*4096}"])
        return L
    def read_addr():
        return [[f"v_add_u32 v{140+j}, s30, v{17+j}"] for j in range(4)] + [["v_add_u32 v144, s30, v16"],
               [f"s_add_u32 s30, s30, {STG}", f"s_cmp_eq_u32 s30, {nbuf*STG}", "s_cselect_b32 s30, 0, s30"]]
    def mfmas(setk):
        b = FB[setk]
        L = []
        for t in range(9):
            for j in range(4):
                a = b + 36 + 4 * j
                acc = 16 * t + 4 * j
                L.append(f"v_mfma_f32_16x16x32_bf16 a[{acc}:{acc+3}], v[{a}:{a+3}], v[{b+4*t}:{b+4*t+3}], a[{acc}:{acc+3}]")
        return L
    P(f"s_waitcnt vmcnt({13*(nbuf-1)})\ns_barrier")
    for g in read_addr() + reads(0) + read_addr():
        for x in g: P(x)
    P("s_waitcnt lgkmcnt(0)")
    if mid:
        P("s_barrier")
        for g in dma_groups():
            for x in g: P(x)
    stamp(P, 1)
    P("s_mov_b32 s31, 16")
    pre, _ = finalize_linear(P.items)
    out = Prog(); out.extend(pre)
    body = Prog()
    for half in range(2):
        cur, nxt = half, 1 - half
        body(f"s_waitcnt vmcnt({13*(nbuf-1) if mid else 13*(nbuf-2)}) lgkmcnt(0)")
        body("s_barrier")
        M = mfmas(cur)
        R = reads(nxt)
        D = dma_groups()
        fill = [[] for _ in M]
        if mid:
            for i, g in enumerate(R): fill[i] += g
            fill[21] += ["s_waitcnt lgkmcnt(0)", "s_barrier"]
            for i, g in enumerate(D):
                p = min(22 + i, len(M) - 1)
                if 'm0' in g[0]:
                    fill[p - 1].append(g[0]); fill[p] += g[1:]
                else: fill[p] += g
            for i, g in enumerate(read_addr()): fill[min(17 + i, len(M) - 1)] += g
        else:
            for i, g in enumerate(D):
                p = min(2 * i, len(M) - 8)
                if 'm0' in g[0] and p > 0:
                    fill[p - 1].append(g[0]); fill[p] += g[1:]
                else: fill[p] += g
            for i, g in enumerate(R): fill[min(2 * i + 1, len(M) - 7)] += g
            for i, g in enumerate(read_addr()): fill[len(M) - 6 + i] += g
        for m, f in zip(M, fill):
            body(m)
            for x in f: body(x)
    body("s_sub_u32 s31, s31, 1")
    body("s_cmp_lg_u32 s31, 0")
    b_items, fifo = finalize_loop(body.items)
    out.label(f"{name}_loop")
    out.extend(b_items)
    out(f"s_cbranch_scc1 {name}_loop")
    E = Prog()
    stamp(E, 2)
    E("s_waitcnt vmcnt(0) lgkmcnt(0)")
    E("s_nop 7")
    E("s_barrier")
    E(f"""
    v_lshlrev_b32 v3, 4, v2
    """)
    for j in range(4):
        E(f"""
        s_sub_u32 s32, s24, {j+1}
        s_and_b32 s32, s32, 3
        s_mul_i32 s32, s32, 9216
        s_add_u32 s32, s32, {j*4*9216}
        v_add_u32 v{4+j}, s32, v3
        """)
    for t in range(9):
        for j in range(4):
            acc = 16 * t + 4 * j
            E(f"ds_write_b128 v{4+j}, a[{acc}:{acc+3}] offset:{t*1024}")
    E("s_waitcnt lgkmcnt(0)")
    E("s_barrier")
    E(f"""
    s_mul_i32 s32, s24, {4*9216}
    v_add_u32 v5, s32, v3
    v_and_b32 v9, 15, v2
    v_lshlrev_b32 v9, 12, v9
    v_lshrrev_b32 v21, 4, v2
    v_lshlrev_b32 v21, 3, v21
    v_add_u32 v9, v9, v21
    s_lshl_b32 s32, s24, 5
    v_add_u32 v9, s32, v9
    """)
    for t in range(9):
        base = 32 + 16 * (t % 6)
        for ww in range(4):
            E(f"ds_read_b128 v[{base+4*ww}:{base+4*ww+3}], v5 offset:{ww*9216 + t*1024}")
    E2 = Prog()
    E3 = Prog()
    items = []
    E = E
    return_E = None
    return finish(name, out, E, stamps, dbg, stamp, st_flags)

def finish(name, out, E, stamps, dbg, stamp, st_flags):
    reads = [it for it in E.items if it.op == 'ds_read_b128']
    E.items = [it for it in E.items if it.op != 'ds_read_b128']
    def rd(t):
        base = 32 + 16 * (t % 3)
        for ww in range(4):
            E(f"ds_read_b128 v[{base+4*ww}:{base+4*ww+3}], v5 offset:{ww*9216 + t*1024}")
    rd(0); rd(1)
    for t in range(9):
        if t + 2 < 9: rd(t + 2)
        base = 32 + 16 * (t % 3)
        for r in range(4): E(f"v_add_f32 v{base+r}, v{base+r}, v{base+4+r}")
        for r in range(4): E(f"v_add_f32 v{base+8+r}, v{base+8+r}, v{base+12+r}")
        for r in range(4): E(f"v_add_f32 v{base+r}, v{base+r}, v{base+8+r}")
        E(f"v_cvt_pk_bf16_f32 v{90+2*t}, v{base}, v{base+1}")
        E(f"v_cvt_pk_bf16_f32 v{91+2*t}, v{base+2}, v{base+3}")
        E(f"s_mov_b32 s33, {t*16*4096}")
        E(f"buffer_store_dwordx2 v[{90+2*t}:{91+2*t}], v9, s[20:23], s33 offen{st_flags}")
    stamp(E, 3)
    if stamps and dbg:
        E(f"""s_cmp_lg_u32 s2, 0
        s_cbranch_scc1 {name}_done
        s_cmp_lg_u32 s24, 0
        s_cbranch_scc1 {name}_done
        s_load_dwordx2 s[6:7], s[0:1], 88
        s_add_u32 s4, s4, {64 << 20}
        s_addc_u32 s5, s5, 0
        s_load_dwordx16 s[64:79], s[4:5], 0
        s_waitcnt lgkmcnt(0)
        v_mov_b32 v2, 0""")
        sel = [1, 2, 3, 4, 8, 9, 10, 11, 12, 15]
        for k, i in enumerate(sel):
            E(f"s_sub_u32 s32, s{64+i}, s64\nv_mov_b32 v3, s32\nglobal_store_dword v2, v3, s[6:7] offset:{4*k}")
        for k in range(4):
            E(f"s_sub_u32 s32, s{60+k}, s64\nv_mov_b32 v3, s32\nglobal_store_dword v2, v3, s[6:7] offset:{4*(10+k)}")
    elif stamps:
        E(f"""s_lshl_b32 s32, s2, 2
        s_add_u32 s32, s32, s24
        s_lshl_b32 s32, s32, 6
        s_add_u32 s32, s32, {(64 << 20) + (1 << 17)}
        s_add_u32 s4, s4, s32
        s_addc_u32 s5, s5, 0
        v_mov_b32 v2, 0""")
        for i in range(5):
            E(f"v_mov_b32 v3, s{60+i}\nglobal_store_dword v2, v3, s[4:5] offset:{4*i}")
    e_items, _ = finalize_linear(E.items)
    out.extend(e_items)
    out.label(f"{name}_done")
    out("s_endpgm")
    return kernel_text(name, out.text(), vgpr=400, sgpr=96, acc=256), 3 * STG

if __name__ == '__main__':
    variants = [('oproj_kernel', dict(stamps=True)), ('op_nomid_kernel', dict(stamps=True, mid=False))]
    hdr = ''; body = ''
    for nm, kw in variants:
        txt, lds = gen_oproj(nm, **kw)
        hdr += f"; @launch kernel={nm} grid=(256,1,1) block=(256,1,1) lds={lds}\n"
        body += txt
    open('op.s', 'w').write(hdr + '.amdgcn_target "amdgcn-amd-amdhsa--gfx950"\n.text\n' + body)
```

```python
from asmlib import *

O_WS_OFF = 0
XCH_OFF = 32 << 20
FLAG_OFF = 48 << 20
STG = 34816
WOFF = 18432
NB = 4

def rng(f, b, n=4): return f"{f}[{b}:{b+n-1}]"

def gen_oproj(name='oproj_kernel', stamps=False, rt=False, dbg=False, nt_w=False, xfl=' sc1'):
    RT = 's_memrealtime' if (dbg or rt) else 's_memtime'
    ntw = ' nt' if nt_w else ''
    P = Prog()
    def stamp(X, i):
        if stamps: X(f"s_waitcnt lgkmcnt(0)\n{RT} s[50:51]\ns_waitcnt lgkmcnt(0)\ns_mov_b32 s{60+i}, s50")
    P(f"""
    s_cmp_ge_u32 s2, 256
    s_cbranch_scc1 {name}_done
    s_load_dwordx2 s[4:5], s[0:1], 96
    s_load_dwordx2 s[6:7], s[0:1], 80
    s_load_dwordx2 s[8:9], s[0:1], 32
    s_load_dwordx2 s[10:11], s[0:1], 72
    v_lshrrev_b32 v1, 6, v0
    v_and_b32 v2, 63, v0
    v_readfirstlane_b32 s24, v1
    s_and_b32 s32, s2, 7
    s_lshr_b32 s33, s2, 3
    s_lshr_b32 s25, s32, 2
    s_and_b32 s28, s33, 1
    s_and_b32 s34, s32, 1
    s_lshl_b32 s34, s34, 2
    s_lshr_b32 s35, s33, 1
    s_and_b32 s35, s35, 3
    s_add_u32 s26, s34, s35
    s_lshr_b32 s34, s32, 1
    s_and_b32 s34, s34, 1
    s_lshl_b32 s34, s34, 2
    s_lshr_b32 s35, s33, 3
    s_add_u32 s27, s34, s35
    s_and_b32 s29, s24, 1
    s_lshr_b32 s30, s24, 1
    """)
    P("""
    v_lshrrev_b32 v3, 3, v2
    v_and_b32 v4, 7, v2
    v_lshrrev_b32 v5, 4, v2
    v_xor_b32 v4, v4, v5
    v_lshlrev_b32 v4, 4, v4
    v_lshlrev_b32 v3, 8, v3
    v_add_u32 v10, v3, v4
    """)
    for x in range(5):
        P(f"""
        s_mul_i32 s32, s24, 5
        s_add_u32 s32, s32, {x}
        s_cmp_gt_u32 s32, 17
        s_cselect_b32 s33, 2, 0
        s_sub_u32 s32, s32, s33
        s_lshl_b32 s{70+x}, s32, 10
        s_and_b32 s33, s32, 1
        s_lshl_b32 s33, s33, 6
        v_xor_b32 v11, s33, v10
        s_lshl_b32 s32, s32, 11
        v_add_u32 v{146+x}, s32, v11
        """)
    P("""
    v_lshrrev_b32 v3, 4, v2
    v_and_b32 v4, 15, v2
    v_lshlrev_b32 v5, 2, v3
    v_xor_b32 v4, v4, v5
    v_lshlrev_b32 v4, 4, v4
    v_lshlrev_b32 v3, 11, v3
    v_add_u32 v10, v3, v4
    """)
    for x in range(4):
        P(f"""
        s_lshl_b32 s32, s24, 2
        s_add_u32 s32, s32, {x}
        s_and_b32 s33, s32, 7
        s_lshr_b32 s33, s33, 1
        s_lshl_b32 s33, s33, 4
        v_xor_b32 v11, s33, v10
        s_lshl_b32 s32, s32, 13
        v_add_u32 v{151+x}, s32, v11
        """)
    P(f"s_lshl_b32 s75, s24, 12\ns_add_u32 s75, s75, {WOFF}")
    P("s_waitcnt lgkmcnt(0)")
    stamp(P, 0)
    P(f"""
    s_add_u32 s52, s4, {FLAG_OFF}
    s_addc_u32 s53, s5, 0
    s_lshl_b32 s32, s25, 3
    s_add_u32 s32, s32, s26
    s_mul_i32 s32, s32, {32*36864}
    s_add_u32 s12, s4, s32
    s_addc_u32 s13, s5, 0
    s_and_b32 s13, s13, 0xffff
    s_mov_b32 s14, {32*36864}
    s_mov_b32 s15, 0x20000
    s_cmp_eq_u32 s25, 0
    s_cselect_b32 s16, s8, s10
    s_cselect_b32 s17, s9, s11
    s_lshl_b32 s32, s27, 8
    s_add_u32 s16, s16, s32
    s_addc_u32 s17, s17, 0
    s_and_b32 s17, s17, 0xffff
    s_sub_u32 s18, {4096*2048}, s32
    s_mov_b32 s19, 0x20000
    s_mul_i32 s36, s28, {16*36864}
    s_add_u32 s38, s36, {16*36864}
    s_lshl_b32 s37, s28, 22
    s_add_u32 s39, s37, {1 << 22}
    s_mov_b32 s40, 0
    """)
    def dma_groups(buf):
        L = [[f"s_cmp_lt_u32 s36, s38", f"s_cselect_b32 s41, s36, {32*36864}", f"s_cselect_b32 s42, s37, {4096*2048}"]]
        for x in range(5):
            L.append([f"s_add_u32 m0, s{70+x}, {buf*STG}", f"buffer_load_dwordx4 v{146+x}, s[12:15], s41 offen lds"])
        for x in range(4):
            L.append([f"s_add_u32 m0, s75, {buf*STG + x*1024}", f"buffer_load_dwordx4 v{151+x}, s[16:19], s42 offen{ntw} lds"])
        step = 128 if (buf & 1) == 0 else 36864 - 128
        L.append([f"s_add_u32 s36, s36, {step}", f"s_add_u32 s37, s37, {64*2048}"])
        return L
    for g in dma_groups(0):
        for x in g: P(x)
    P(f"""
    v_and_b32 v3, 15, v2
    v_lshrrev_b32 v4, 4, v2
    s_lshl_b32 s32, s29, 2
    v_add_u32 v5, s32, v4
    v_lshrrev_b32 v6, 1, v3
    v_xor_b32 v5, v5, v6
    v_lshlrev_b32 v5, 4, v5
    v_lshlrev_b32 v6, 7, v3
    v_add_u32 v140, v5, v6
    v_add_u32 v141, {2*STG}, v140
    v_lshrrev_b32 v3, 2, v2
    v_and_b32 v3, 3, v3
    v_and_b32 v5, 3, v2
    v_xor_b32 v5, v5, v4
    v_lshlrev_b32 v5, 4, v5
    v_lshlrev_b32 v6, 6, v3
    v_add_u32 v5, v5, v6
    v_lshlrev_b32 v6, 3, v4
    v_add_u32 v6, v6, v3
    v_lshlrev_b32 v6, 8, v6
    s_lshl_b32 s32, s29, 13
    s_add_u32 s32, s32, {WOFF}
    v_add_u32 v6, s32, v6
    """)
    for p in range(2):
        P(f"""
        s_xor_b32 s32, s29, {p}
        s_lshl_b32 s33, s30, 1
        s_add_u32 s32, s32, s33
        s_lshl_b32 s32, s32, 6
        v_xor_b32 v7, s32, v5
        v_add_u32 v{142+p}, v6, v7
        v_add_u32 v{144+p}, {2*STG}, v{142+p}
        """)
    for b in range(1, NB):
        for g in dma_groups(b):
            for x in g: P(x)
    for r in range(144):
        P(f"v_accvgpr_write_b32 a{r}, 0")
    FB = [32, 32 + 52]
    def reads(setk, buf):
        b = FB[setk]
        hi = buf >> 1
        off = (buf & 1) * STG
        L = []
        for jl in range(4):
            a = b + 36 + 4 * jl
            p, h = jl >> 1, jl & 1
            L.append([f"ds_read_b64_tr_b16 v[{a}:{a+1}], v{142+2*hi+p} offset:{off + 8*h}"])
            L.append([f"ds_read_b64_tr_b16 v[{a+2}:{a+3}], v{142+2*hi+p} offset:{off + 8*h + 1024}"])
        for t in range(9):
            L.append([f"ds_read_b128 v[{b+4*t}:{b+4*t+3}], v{140+hi} offset:{off + t*2048}"])
        return L
    def mfmas(setk):
        b = FB[setk]
        L = []
        for t in range(9):
            for j in range(4):
                a = b + 36 + 4 * j
                acc = 16 * t + 4 * j
                L.append(f"v_mfma_f32_16x16x32_bf16 a[{acc}:{acc+3}], v[{a}:{a+3}], v[{b+4*t}:{b+4*t+3}], a[{acc}:{acc+3}]")
        return L
    P(f"s_waitcnt vmcnt({9*(NB-1)})\ns_barrier")
    for g in reads(0, 0):
        for x in g: P(x)
    P("s_waitcnt lgkmcnt(0)")
    stamp(P, 1)
    P("s_mov_b32 s31, 8")
    pre, _ = finalize_linear(P.items)
    out = Prog(); out.extend(pre)
    body = Prog()
    for r in range(NB):
        cur, nxt = r & 1, 1 - (r & 1)
        body(f"s_waitcnt vmcnt({9*(NB-2)}) lgkmcnt(0)")
        body("s_barrier")
        M = mfmas(cur)
        R = reads(nxt, (r + 1) % NB)
        D = dma_groups(r)
        fill = [[] for _ in M]
        hv = []
        ri = di = 0
        while ri < len(R) or di < len(D):
            if di < len(D): hv.append(D[di]); di += 1
            for _ in range(2):
                if ri < len(R): hv.append(R[ri]); ri += 1
        k = 0
        for g in hv:
            pos = min(k, len(M) - 1)
            if 'm0' in g[0] and pos > 0 and not any('buffer_load' in y for y in fill[pos - 1]):
                fill[pos - 1].append(g[0]); fill[pos] += g[1:]
            else: fill[pos] += g
            if any(('ds_read' in y or 'buffer_load' in y) for y in g): k += 1
        for m, f in zip(M, fill):
            body(m)
            for x in f: body(x)
    body("s_sub_u32 s31, s31, 1")
    body("s_cmp_lg_u32 s31, 0")
    b_items, fifo = finalize_loop(body.items)
    out.label(f"{name}_loop")
    out.extend(b_items)
    out(f"s_cbranch_scc1 {name}_loop")
    E = Prog()
    stamp(E, 2)
    E("s_waitcnt vmcnt(0) lgkmcnt(0)\ns_nop 7\ns_barrier")
    E(f"""
    v_lshlrev_b32 v3, 4, v2
    s_mul_i32 s32, s24, 18432
    v_add_u32 v4, s32, v3
    s_xor_b32 s33, s24, 1
    s_mul_i32 s33, s33, 18432
    v_add_u32 v5, s33, v3
    """)
    for t in range(9):
        for x in range(2):
            acc = 16 * t + 8 + 4 * x
            E(f"ds_write_b128 v4, a[{acc}:{acc+3}] offset:{(t*2+x)*1024}")
    for t in range(9):
        for r in range(8): E(f"v_accvgpr_read_b32 v{32+8*t+r}, a{16*t+r}")
    E(f"""
    s_lshl_b32 s32, s2, 1
    s_add_u32 s32, s32, s29
    s_mul_i32 s32, s32, 18432
    s_add_u32 s44, s4, s32
    s_addc_u32 s45, s5, 0
    s_add_u32 s44, s44, {XCH_OFF}
    s_addc_u32 s45, s45, 0
    s_and_b32 s45, s45, 0xffff
    s_mov_b32 s46, 18432
    s_mov_b32 s47, 0x20000
    s_xor_b32 s33, s2, 8
    s_lshl_b32 s32, s33, 1
    s_add_u32 s32, s32, s29
    s_mul_i32 s32, s32, 18432
    s_add_u32 s56, s4, s32
    s_addc_u32 s57, s5, 0
    s_add_u32 s56, s56, {XCH_OFF}
    s_addc_u32 s57, s57, 0
    s_and_b32 s57, s57, 0xffff
    s_mov_b32 s58, 18432
    s_mov_b32 s59, 0x20000
    """)
    E("s_waitcnt lgkmcnt(0)\ns_barrier")
    for half in range(2):
        ts = range(0, 5) if half == 0 else range(5, 9)
        for t in ts:
            for x in range(2):
                E(f"ds_read_b128 {rng('v', 104 + 8*(t % 5) + 4*x)}, v5 offset:{(t*2+x)*1024}")
        for t in ts:
            for r in range(8): E(f"v_add_f32 v{32+8*t+r}, v{32+8*t+r}, v{104+8*(t % 5)+r}")
    E(f"s_cmp_eq_u32 s30, s28\ns_cbranch_scc1 {name}_keep")
    for t in range(9):
        for x in range(2):
            E(f"buffer_store_dwordx4 {rng('v', 32+8*t+4*x)}, v3, s[44:47], 0 offen offset:{0}{xfl}" .replace("0 offen offset:0", f"s{76} offen") if False else f"s_mov_b32 s76, {(t*2+x)*1024}\nbuffer_store_dwordx4 {rng('v', 32+8*t+4*x)}, v3, s[44:47], s76 offen{xfl}")
    E(f"""
    s_waitcnt vmcnt(0)
    s_xor_b32 s33, s2, 8
    s_lshl_b32 s33, s33, 7
    s_lshl_b32 s34, s29, 2
    s_add_u32 s33, s33, s34
    v_mov_b32 v6, s33
    v_mov_b32 v7, 1
    s_mov_b64 exec, 1
    global_store_dword v6, v7, s[52:53] sc1
    s_mov_b64 exec, -1
    s_branch {name}_sync
    """)
    E.label(f"{name}_keep")
    E(f"""
    s_lshl_b32 s33, s2, 7
    s_lshl_b32 s34, s29, 2
    s_add_u32 s33, s33, s34
    v_mov_b32 v6, s33
    s_mov_b32 s35, 0x100000
    """)
    E.label(f"{name}_poll")
    E(f"""
    global_load_dword v7, v6, s[52:53] sc1
    s_waitcnt vmcnt(0)
    v_readfirstlane_b32 s33, v7
    s_sub_u32 s35, s35, 1
    s_cmp_eq_u32 s33, 1
    s_cbranch_scc1 {name}_sync
    s_sleep 1
    s_cmp_lg_u32 s35, 0
    s_cbranch_scc1 {name}_poll
    """)
    E.label(f"{name}_sync")
    stamp(E, 4)
    E("s_barrier")
    E(f"s_cmp_lg_u32 s30, s28\ns_cbranch_scc1 {name}_fin")
    for t in range(9):
        for x in range(2):
            E(f"s_mov_b32 s76, {(t*2+x)*1024}\nbuffer_load_dwordx4 {rng('v', 104 + 8*t + 4*x if t < 4 else 160 + 8*(t-4) + 4*x)}, v3, s[56:59], s76 offen{' sc1' if xfl else ''}")
    E(f"""
    s_mul_i32 s32, s26, {144*4096}
    s_lshl_b32 s33, s25, 11
    s_add_u32 s32, s32, s33
    s_lshl_b32 s33, s27, 8
    s_add_u32 s32, s32, s33
    s_lshl_b32 s33, s30, 7
    s_add_u32 s32, s32, s33
    s_lshl_b32 s33, s29, 6
    s_add_u32 s32, s32, s33
    s_add_u32 s20, s6, s32
    s_addc_u32 s21, s7, 0
    s_and_b32 s21, s21, 0xffff
    s_sub_u32 s22, {8*144*4096}, s32
    s_mov_b32 s23, 0x20000
    v_and_b32 v9, 15, v2
    v_lshlrev_b32 v9, 12, v9
    v_lshrrev_b32 v21, 4, v2
    v_lshlrev_b32 v21, 4, v21
    v_add_u32 v9, v9, v21
    """)
    for t in range(9):
        src = 104 + 8 * t if t < 4 else 160 + 8 * (t - 4)
        E(f"s_waitcnt vmcnt({2*(8-t) + t})")
        for r in range(8): E(f"v_add_f32 v{32+8*t+r}, v{32+8*t+r}, v{src+r}")
        for r in range(4): E(f"v_cvt_pk_bf16_f32 v{208+4*(t % 3)+r}, v{32+8*t+2*r}, v{33+8*t+2*r}")
        E(f"s_mov_b32 s33, {t*16*4096}")
        E(f"buffer_store_dwordx4 {rng('v', 208+4*(t % 3))}, v9, s[20:23], s33 offen")
    E.label(f"{name}_fin")
    stamp(E, 3)
    if stamps and not dbg:
        E(f"""s_lshl_b32 s32, s2, 2
        s_add_u32 s32, s32, s24
        s_lshl_b32 s32, s32, 6
        s_add_u32 s32, s32, {(64 << 20) + (1 << 17)}
        s_add_u32 s4, s4, s32
        s_addc_u32 s5, s5, 0
        v_mov_b32 v2, 0""")
        for i in range(5):
            E(f"v_mov_b32 v3, s{60+i}\nglobal_store_dword v2, v3, s[4:5] offset:{4*i}")
    e_items, _ = finalize_linear(E.items)
    out.extend(e_items)
    out.label(f"{name}_done")
    out("s_endpgm")
    return kernel_text(name, out.text(), vgpr=400, sgpr=96, acc=256), NB * STG
```

```python
import sys, importlib
sys.path.insert(0, 'gen')
import fa as fa_mod, fa_v2, oproj3, oproj4
def make(path, fa_kw=None, op_kw=None, order='fo', mod=fa_mod, opmod=oproj3):
    f = mod.FA(name='fa_kernel', **(fa_kw or {}))
    t1, l1 = f.build()
    t2, l2 = opmod.gen_oproj('oproj_kernel', **(op_kw or {}))
    hdr = open('concat_heads__mha_block_cached__gqa_block_cached__near_ridge.s.ref').read().split('; Override')[0]
    for k in order:
        if k == 'f': hdr += f"; @launch kernel=fa_kernel grid=(256,1,1) block=(256,1,1) lds={l1}\n"
        else: hdr += f"; @launch kernel=oproj_kernel grid=(256,1,1) block=(256,1,1) lds={l2}\n"
    open(path, 'w').write(hdr + '.amdgcn_target "amdgcn-amd-amdhsa--gfx950"\n.text\n' + t1 + t2)
if __name__ == '__main__':
    M = 'cdna_kernels/'
    base = dict(pf_wo=True, op_label='oproj_kernel', nt_w=True)
    make(M + 'e_a.s', fa_kw=dict(base))
    make(M + 'concat_heads__mha_block_cached__gqa_block_cached__near_ridge.s', fa_kw=dict(base), opmod=oproj4)
    make(M + 'e_c.s', fa_kw=dict(base), op_kw=dict(nt_w=True), opmod=oproj4)
    make(M + 'e_d.s', fa_kw=dict(base, pf_wo=False), op_kw=dict(nt_w=True), opmod=oproj4)
```

```python
from asmlib import *
import math

RING = 0
SLOT = 32768
STG = 98304
XB = [STG, STG + 18432]
WB = [STG + 36864 + 8192 * i for i in range(3)]
QX = STG
LDS_TOTAL = 163840
O_WS_OFF = 0
CSCALE = math.log2(math.e) / math.sqrt(128.0)

import struct
def f2u(x): return struct.unpack('<I', struct.pack('<f', x))[0]

V_LANE = 1
V_RING = 10
V_KPAT, V_VPAT, V_KA, V_VA = 20, 24, 28, 32
V_P = 36
V_MX, V_T1, V_T2, V_T3 = 48, 49, 50, 51
V_ONES = 52
V_NEGM = 56
V_L = 76
V_S = 96
V_KF = {'A': 120, 'B': 184}
V_VF = {'A': 152, 'B': 216}
A_O = 0
A_Q = 160
V_XD, V_WD = 106, 98
V_WD2 = 96
V_WPH = 112
V_ZERO = 116
QXBASE = 98304
V_PFW, V_PFX, V_PFD = 14, 15, 16
V_RINGK, V_RINGV = 17, 18
V_RINGH = 248
V_VA2 = 252
V_XPAT = 100
V_WPAT = 104
V_XA = 106
V_WA = 110
QF_W = [120, 156]
QF_X = [136, 172]

S_W, S_QH, S_HH, S_BLK, S_B, S_H0 = 24, 25, 26, 27, 28, 29
S_CH, S_DSLOT, S_RSLOT, S_CNT = 30, 31, 32, 33
S_T = 34
S_GOFF, S_LB, S_TMP, S_TMP2 = 41, 42, 40, 43
S_DWRAP, S_DBASE = 30, 42
S_XI, S_WI, S_XOFF, S_WOFF, S_XBUF, S_WBUF, S_XRB, S_WRB = 44, 45, 46, 47, 48, 49, 50, 51
S_XW_G, S_XW_L = 54, 55
S_XC = 96
S_WW_L, S_WLIM = 101, 56
S_BAD, S_SAFE, S_NREC2 = 44, 45, 53
S_KOOB = 51
S_FREE = 49
S_ITEM = 58
S_FL = 59
S_QI = 70
S_FLAG = 72
S_LATE, S_PR, S_FI, S_FMAX, S_FG, S_FL2 = 71, 74, 75, 52, 53, 56
S_KVO = 66

QP_PAT = [98, 99, 100, 101, 102, 103, 104, 105, 106, 107, 108, 109, 110]
def qacc(k): return (56 + 4 * k) if k < 10 else (192 + 4 * (k - 10))
def acc_o(slot, jl): return A_O + slot * 32 + jl * 4
def q_frag(slot, jp): return A_Q + slot * 16 + jp * 4
def rng(f, b, n=4): return f"{f}[{b}:{b+n-1}]"

def interleave(M, fillers, start=0):
    out = []
    k = 0
    for i, m in enumerate(M):
        out.append(m)
        if i >= start and k < len(fillers):
            out += fillers[k]; k += 1
    while k < len(fillers):
        out += fillers[k]; k += 1
    return out

def spread(M, groups, start=0):
    m = len(M) - start
    n = len(groups)
    out = []
    for i, x in enumerate(M):
        out.append(x)
        if i >= start:
            k = i - start
            for g in groups[(k * n) // m:((k + 1) * n) // m]:
                out += g
    return out

class FA:
    def __init__(self, name='fa_kernel', nt_kv=True, nt_w=False, nt_x=False, dbg=None, order='early', stamps=False, pf_qp=True, pf_att=True, late_bit=1, x_nodma=False, x_nosm=False, x_nobr=False, x_nord=False, x_nobar=False, x_qv=False, q_nodma=False, q_nord=False, q_nobar=False, q_nowait=False, same_kv=False, x_nohead=False, x_noX=False, x_nomax=False, fill_qp=True, fast=True, force_bad=False, pf_wo=False, pf_code=False, op_label=None, dbg_stamps=None, pf0=False, pf1=False, pf_nt=False, qstamp=False, cstamp=False, st_flags='', qp0_nt=False, pf0x=False, rot=False, pf_tlb=False, dbg_rt=False, pf_code2=False, kvreg=False, kvdma=True, qn1=4, cfast=True, c_nost=False, c_nonan=False, c_now=False):
        self.c_nost, self.c_nonan, self.c_now = c_nost, c_nonan, c_now
        self.cfast = cfast
        self.qn1 = qn1
        self.kvdma = kvdma
        self.kvreg = kvreg
        self.pf_code2 = pf_code2
        self.dbg_rt = dbg_rt
        self.pf_tlb = pf_tlb
        self.rot = rot
        self.st_flags, self.qp0_nt, self.pf0x = st_flags, qp0_nt, pf0x
        self.cstamp = cstamp
        self.qstamp = qstamp
        self.pf0, self.pf1 = pf0, pf1
        self.pf_nt = ' nt' if pf_nt else ''
        self.dbg_stamps = dbg_stamps
        self.pf_wo, self.pf_code, self.op_label = pf_wo, pf_code, op_label
        self.fast = fast
        self.force_bad = force_bad
        self.fill_qp = fill_qp
        self.x_nomax = x_nomax
        self.x_nohead, self.x_noX = x_nohead, x_noX
        self.same_kv = same_kv
        self.q_nowait = q_nowait
        self.q_nodma, self.q_nord, self.q_nobar = q_nodma, q_nord, q_nobar
        self.x_nodma, self.x_nosm, self.x_nobr, self.x_nord, self.x_nobar, self.x_qv = x_nodma, x_nosm, x_nobr, x_nord, x_nobar, x_qv
        self.pf_qp = pf_qp
        self.pf_att = pf_att
        self.late_bit = late_bit
        self.stamps = stamps
        self.nst = 0
        self.name = name
        self.nt_kv = ' nt' if nt_kv else ''
        self.nt_w = ' nt' if nt_w else ''
        self.nt_x = ' nt' if nt_x else ''
        self.dbg = dbg
        self.order = order
        self.rare = []
        self.uid = 0

    def setup(self):
        P = Prog()
        n = self.name
        P(f"""
        s_cmp_ge_u32 s2, 256
        s_cbranch_scc1 {n}_done
        s_and_b32 s39, s2, 7
        s_lshr_b32 s40, s2, 3
        s_lshr_b32 s{S_BLK}, s39, 2
        s_and_b32 s39, s39, 3
        s_and_b32 s{S_B}, s40, 7
        s_lshr_b32 s40, s40, 3
        s_mov_b32 s{S_PR}, s40
        s_lshl_b32 s39, s39, 3
        s_lshl_b32 s40, s40, 1
        s_add_u32 s{S_H0}, s39, s40
        s_mul_i32 s39, s{S_BLK}, 40
        s_add_u32 s60, s0, s39
        s_addc_u32 s61, s1, 0
        s_load_dwordx2 s[4:5], s[60:61], 0
        s_load_dwordx2 s[62:63], s[60:61], 8
        s_load_dwordx2 s[64:65], s[60:61], 16
        s_load_dwordx2 s[66:67], s[60:61], 24
        s_load_dwordx2 s[68:69], s[0:1], 96
        s_load_dwordx2 s[76:77], s[60:61], 32
        v_lshrrev_b32 v2, 6, v0
        v_and_b32 v{V_LANE}, 63, v0
        v_readfirstlane_b32 s{S_W}, v2
        s_and_b32 s{S_QH}, s{S_W}, 1
        s_lshr_b32 s{S_HH}, s{S_W}, 1
        """)
        L = V_LANE
        P(f"""
        v_lshrrev_b32 v2, 4, v{L}
        v_and_b32 v3, 15, v{L}
        v_xor_b32 v4, v3, v2
        v_lshlrev_b32 v5, 2, v2
        v_xor_b32 v5, v3, v5
        v_lshlrev_b32 v4, 4, v4
        v_lshlrev_b32 v5, 4, v5
        v_lshlrev_b32 v2, 8, v2
        v_add_u32 v{V_RINGK}, v4, v2
        v_add_u32 v{V_RINGV}, v5, v2
        s_cmp_eq_u32 s{S_QH}, 0
        s_cselect_b32 s39, 64, 16
        s_cselect_b64 vcc, -1, 0
        v_cndmask_b32 v{V_RING}, v{V_RINGV}, v{V_RINGK}, vcc
        v_xor_b32 v{V_RING+1}, s39, v{V_RING}
        s_lshl_b32 s40, s39, 1
        v_xor_b32 v{V_RING+2}, s40, v{V_RING}
        s_add_u32 s40, s40, s39
        v_xor_b32 v{V_RING+3}, s40, v{V_RING}
        v_add_u32 v{V_RINGH}, 4096, v{V_RING}
        v_add_u32 v{V_RINGH+1}, 4096, v{V_RING+1}
        v_add_u32 v{V_RINGH+2}, 4096, v{V_RING+2}
        v_add_u32 v{V_RINGH+3}, 4096, v{V_RING+3}
        """)
        P(self.pf_setup())
        P(f"""
        v_and_b32 v3, 15, v{L}
        v_lshrrev_b32 v2, 4, v{L}
        v_xor_b32 v4, v2, v3
        v_lshlrev_b32 v4, 4, v4
        v_lshlrev_b32 v5, 8, v3
        s_lshl_b32 s39, s{S_HH}, 14
        v_add_u32 v5, s39, v5
        """)
        for jp in range(4):
            P(f"v_xor_b32 v6, {64*jp}, v4\nv_add_u32 v{V_KPAT+jp}, v5, v6")
        P(f"""
        v_lshrrev_b32 v3, 2, v{L}
        v_and_b32 v3, 3, v3
        v_and_b32 v4, 3, v{L}
        v_xor_b32 v4, v4, v2
        v_lshlrev_b32 v4, 4, v4
        v_lshlrev_b32 v5, 6, v3
        v_add_u32 v4, v4, v5
        v_lshlrev_b32 v5, 2, v2
        v_add_u32 v5, v5, v3
        v_lshlrev_b32 v5, 8, v5
        s_lshl_b32 s39, s{S_HH}, 14
        s_add_u32 s39, s39, 8192
        v_add_u32 v5, s39, v5
        """)
        for ml in range(4):
            P(f"""
            s_lshl_b32 s39, s{S_HH}, 1
            s_add_u32 s39, s39, {ml}
            s_and_b32 s39, s39, 3
            s_lshl_b32 s39, s39, 6
            v_xor_b32 v6, s39, v4
            v_add_u32 v{V_VPAT+ml}, v5, v6
            """)
        if self.pf_code:
            P(f"""
            s_lshr_b32 s39, s2, 3
            s_cmp_ge_u32 s39, 16
            s_cbranch_scc1 {n}_npc
            s_cmp_lg_u32 s{S_W}, 0
            s_cbranch_scc1 {n}_npc
            s_getpc_b64 s[72:73]
            {n}_pc0:
            s_lshl_b32 s39, s39, 13
            s_add_u32 s72, s72, s39
            s_addc_u32 s73, s73, 0
            v_lshlrev_b32 v3, 7, v{L}
            global_load_dword v{V_PFD}, v3, s[72:73]
            {n}_npc:
            """)
        for r in range(4):
            P(f"v_mov_b32 v{V_ONES+r}, 0x3f803f80")
        P("s_waitcnt lgkmcnt(0)")
        P(f"""
        s_cmp_eq_u32 s{S_QH}, 0
        s_cselect_b32 s8, s62, s64
        s_cselect_b32 s9, s63, s65
        s_lshl_b32 s39, s{S_B}, 5
        s_add_u32 s39, s39, s{S_H0}
        s_lshr_b32 s40, s39, 14
        s_lshl_b32 s39, s39, {18 if not self.same_kv else 31}
        s_and_b32 s39, s39, {'-1' if not self.same_kv else '0'}
        s_add_u32 s8, s8, s39
        s_addc_u32 s9, s9, s40
        s_lshl_b32 s39, s{S_HH}, 13
        s_add_u32 s8, s8, s39
        s_addc_u32 s9, s9, 0
        s_and_b32 s9, s9, 0xffff
        s_sub_u32 s10, {2*262144}, s39
        s_mov_b32 s11, 0x20000
        s_mul_i32 s39, s{S_B}, {144*2048}
        s_add_u32 s12, s4, s39
        s_addc_u32 s13, s5, 0
        s_and_b32 s13, s13, 0xffff
        s_mov_b32 s14, {144*2048}
        s_mov_b32 s15, 0x20000
        s_lshl_b32 s39, s{S_H0}, 8
        s_add_u32 s16, s66, s39
        s_addc_u32 s17, s67, 0
        s_and_b32 s17, s17, 0xffff
        s_sub_u32 s18, {1024*8192}, s39
        s_mov_b32 s19, 0x20000
        s_lshl_b32 s39, s{S_BLK}, 3
        s_add_u32 s39, s39, s{S_B}
        s_lshl_b32 s39, s39, 5
        s_add_u32 s39, s39, s{S_H0}
        s_mul_i32 s39, s39, 36864
        s_add_u32 s20, s68, s39
        s_addc_u32 s21, s69, 0
        s_add_u32 s20, s20, {O_WS_OFF}
        s_addc_u32 s21, s21, 0
        s_and_b32 s21, s21, 0xffff
        s_mov_b32 s22, {2*36864}
        s_mov_b32 s23, 0x20000
        s_lshl_b32 s{S_DBASE}, s{S_W}, 13
        s_add_u32 s{S_DSLOT}, s{S_DBASE}, {SLOT if self.kvdma else 0}
        s_add_u32 s{S_DWRAP}, s{S_DBASE}, {3*SLOT}
        s_mov_b32 s{S_GOFF}, 0
        s_mov_b32 s{S_RSLOT}, {SLOT if self.kvdma else 0}
        s_mov_b32 s{S_ITEM}, 0
        s_mov_b32 s{S_QI}, 0
        s_mov_b32 s{S_FMAX}, 1
        s_lshl_b32 s39, s{S_B}, 5
        s_add_u32 s39, s39, s{S_H0}
        s_lshl_b32 s{S_KVO}, s39, 18
        s_mov_b32 s{S_KVO+1}, 0
        s_and_b32 s39, s2, 3
        s_lshl_b32 s39, s39, 5
        s_lshr_b32 s40, s2, 3
        s_add_u32 s39, s39, s40
        s_lshl_b32 s39, s39, 16
        s_add_u32 s76, s76, s39
        s_addc_u32 s77, s77, 0
        s_and_b32 s77, s77, 0xffff
        s_mov_b32 s78, 65536
        s_mov_b32 s79, 0x20000
        v_lshlrev_b32 v19, 7, v{L}
        """)
        if self.order == 'early': P(f"s_mov_b32 s{S_LATE}, 0")
        elif self.order == 'late': P(f"s_mov_b32 s{S_LATE}, 1")
        else: P(f"s_lshr_b32 s{S_LATE}, s2, {self.late_bit}\ns_and_b32 s{S_LATE}, s{S_LATE}, 1")
        P(f"""s_xor_b32 s{S_FMAX}, s{S_LATE}, 1
        s_mov_b32 s{S_BAD}, 0
        s_mov_b32 s{S_SAFE}, 0
        s_mov_b32 s{S_NREC2}, s10
        s_mov_b32 s{S_QI}, 0""")
        if self.pf0:
            for x in self.pf_w(f"s{S_W}", "0"): P(x)
            for x in self.pf_x(f"s{S_W}"): P(x)
            P(f"s_add_u32 s39, s{S_W}, 4")
            for x in self.pf_x("s39"): P(x)
            P(f"s_add_u32 s39, s{S_W}, 8\ns_min_u32 s39, s39, 8")
            for x in self.pf_x("s39"): P(x)
            P(f"s_cmp_eq_u32 s{S_LATE}, 0\ns_cbranch_scc1 {n}_npf0")
            for x in self.pf_w(f"s{S_W}", "1"): P(x)
            P.label(f"{n}_npf0")
        if self.pf0x:
            for x in self.pf_x(f"s{S_W}"): P(x)
            P(f"s_add_u32 s39, s{S_W}, 4")
            for x in self.pf_x("s39"): P(x)
            P(f"s_add_u32 s39, s{S_W}, 8\ns_min_u32 s39, s39, 8")
            for x in self.pf_x("s39"): P(x)
            P(f"s_cmp_eq_u32 s{S_LATE}, 0\ns_cbranch_scc1 {n}_npf0x")
            for x in self.pf_w(f"s{S_W}", "1"): P(x)
            P.label(f"{n}_npf0x")
        if self.pf_tlb:
            P(f"""
            s_cmp_lg_u32 s{S_W}, 0
            s_cbranch_scc1 {n}_ntlb
            s_lshr_b32 s39, s2, 3
            s_lshl_b32 s39, s39, 18
            v_lshlrev_b32 v2, 13, v{V_LANE}
            s_mov_b32 exec_hi, 0
            buffer_load_dword v{V_PFD}, v2, s[16:19], s39 offen
            s_mul_i32 s39, s{S_PR}, {18*4096}
            v_lshlrev_b32 v2, 12, v{V_LANE}
            s_mov_b32 exec_lo, 0x3ffff
            buffer_load_dword v{V_PFD}, v2, s[12:15], s39 offen
            s_mov_b64 exec, -1
            {n}_ntlb:
            """)
        P(f"""
        s_lshl_b32 s39, s2, 7
        s_add_u32 s39, s39, {48 << 20}
        s_add_u32 s72, s68, s39
        s_addc_u32 s73, s69, 0
        v_mov_b32 v2, 0
        v_lshlrev_b32 v3, 2, v{V_LANE}
        s_mov_b32 exec_hi, 0
        global_store_dword v3, v2, s[72:73]
        s_mov_b32 exec_hi, -1
        """)
        P.extend(self.qp_patterns())
        return P

    def ring_instrs(self):
        nt = self.nt_kv
        D = []
        for m in range(8):
            g = []
            if m == 0: g.append(f"s_mov_b32 m0, s{S_DSLOT}")
            if m == 4: g.append(f"s_add_u32 m0, s{S_DSLOT}, 4096")
            v = V_RING + m if m < 4 else V_RINGH + m - 4
            g.append(f"buffer_load_dwordx4 v{v}, s[8:11], s{S_GOFF} offen offset:{(m & 3) * 1024}{nt} lds")
            D.append(g)
        adv = [f"s_add_u32 s{S_GOFF}, s{S_GOFF}, 16384",
               f"s_add_u32 s{S_DSLOT}, s{S_DSLOT}, {SLOT}",
               f"s_cmp_eq_u32 s{S_DSLOT}, s{S_DWRAP}",
               f"s_cselect_b32 s{S_DSLOT}, s{S_DBASE}, s{S_DSLOT}"]
        return D, adv
    def ring_groups(self):
        D, adv = self.ring_instrs()
        return D + [adv]

    def ring_fill(self):
        P = Prog()
        for _ in range(3):
            for g in self.ring_groups():
                for x in g: P(x)
        return P

    def pf_setup(self):
        L = V_LANE
        return f"""
        v_lshrrev_b32 v2, 1, v{L}
        v_lshlrev_b32 v2, 13, v2
        v_and_b32 v3, 1, v{L}
        v_lshlrev_b32 v3, 7, v3
        v_add_u32 v{V_PFW}, v2, v3
        v_lshrrev_b32 v2, 4, v{L}
        v_lshlrev_b32 v2, 11, v2
        v_and_b32 v3, 15, v{L}
        v_lshlrev_b32 v3, 7, v3
        v_add_u32 v{V_PFX}, v2, v3
        """
    def pf_w(self, i_expr_sgpr, head_sgpr):
        return [f"s_lshl_b32 s{S_TMP}, s{S_B}, 20",
                f"s_lshl_b32 s{S_TMP2}, {i_expr_sgpr}, 18",
                f"s_add_u32 s{S_TMP}, s{S_TMP}, s{S_TMP2}",
                f"s_lshl_b32 s{S_TMP2}, {head_sgpr}, 8",
                f"s_add_u32 s{S_TMP}, s{S_TMP}, s{S_TMP2}",
                f"buffer_load_dword v{V_PFD}, v{V_PFW}, s[16:19], s{S_TMP} offen{self.pf_nt}"]
    def pf_x(self, i_expr):
        return [f"s_mul_i32 s{S_TMP}, s{S_PR}, {36*2048}",
                f"s_lshl_b32 s{S_TMP2}, {i_expr}, 13",
                f"s_add_u32 s{S_TMP}, s{S_TMP}, s{S_TMP2}",
                f"buffer_load_dword v{V_PFD}, v{V_PFX}, s[12:15], s{S_TMP} offen{self.pf_nt}"]

    def code_pf(self, label, uid, waves_chunks):
        n = self.name
        return [f"s_cmp_ge_u32 s{S_W}, {waves_chunks}", f"s_cbranch_scc1 {n}_ncp{uid}",
                f"s_getpc_b64 s[60:61]", f"{n}_cp{uid}:",
                f"s_add_u32 s60, s60, {label}-{n}_cp{uid}", f"s_addc_u32 s61, s61, 0",
                f"s_lshl_b32 s39, s{S_W}, 13", f"s_add_u32 s60, s60, s39", f"s_addc_u32 s61, s61, 0",
                f"global_load_dword v{V_PFD}, v19, s[60:61]", f"{n}_ncp{uid}:"]

    def qp_patterns(self):
        L = V_LANE
        P = Prog()
        P(f"""
        v_lshrrev_b32 v2, 3, v{L}
        v_and_b32 v3, 7, v{L}
        v_lshrrev_b32 v4, 4, v{L}
        v_xor_b32 v3, v3, v4
        v_lshlrev_b32 v3, 4, v3
        v_lshlrev_b32 v2, 11, v2
        v_add_u32 v2, v2, v3
        """)
        for x in range(5):
            P(f"""
            s_mul_i32 s39, s{S_W}, 5
            s_add_u32 s39, s39, {x}
            s_cmp_gt_u32 s39, 17
            s_cselect_b32 s40, 2, 0
            s_sub_u32 s39, s39, s40
            s_lshl_b32 s{S_XC+x}, s39, 10
            s_and_b32 s40, s39, 1
            s_lshl_b32 s40, s40, 6
            v_xor_b32 v3, s40, v2
            s_lshl_b32 s39, s39, 14
            v_add_u32 v{V_XD+x}, s39, v3
            """)
        P(f"""
        v_lshrrev_b32 v2, 4, v{L}
        v_and_b32 v3, 15, v{L}
        v_lshlrev_b32 v4, 2, v2
        v_xor_b32 v3, v3, v4
        v_xor_b32 v3, s{S_W}, v3
        v_lshlrev_b32 v3, 4, v3
        v_lshlrev_b32 v4, 13, v2
        v_add_u32 v3, v3, v4
        s_lshl_b32 s39, s{S_W}, 16
        v_add_u32 v{V_WD}, s39, v3
        v_add_u32 v{V_WD+1}, 32768, v{V_WD}
        v_and_b32 v3, 15, v{L}
        v_lshrrev_b32 v4, 1, v3
        v_xor_b32 v4, v4, v2
        v_lshlrev_b32 v4, 4, v4
        v_lshlrev_b32 v5, 7, v3
        v_xor_b32 v6, 64, v4
        v_add_u32 v4, v4, v5
        v_add_u32 v6, v6, v5
        s_lshl_b32 s39, s{S_QH}, 13
        s_add_u32 s39, s39, {QXBASE}
        v_add_u32 v{V_XPAT}, s39, v4
        v_add_u32 v{V_XPAT+1}, s39, v6
        v_add_u32 v{V_XPAT+2}, {8*2048 + QXBASE}, v4
        v_add_u32 v{V_XPAT+3}, {8*2048 + QXBASE}, v6
        v_lshrrev_b32 v3, 2, v{L}
        v_and_b32 v3, 3, v3
        v_and_b32 v4, 3, v{L}
        v_xor_b32 v4, v4, v2
        v_lshlrev_b32 v4, 4, v4
        v_lshlrev_b32 v5, 6, v3
        v_add_u32 v4, v4, v5
        v_lshlrev_b32 v5, 3, v2
        v_add_u32 v5, v5, v3
        v_lshlrev_b32 v5, 8, v5
        """)
        for p in range(2):
            P(f"""
            s_xor_b32 s39, s{S_QH}, {p}
            s_lshl_b32 s40, s{S_HH}, 1
            s_add_u32 s39, s39, s40
            s_lshl_b32 s39, s39, 6
            v_xor_b32 v6, s39, v4
            v_add_u32 v{V_WPAT+p}, v5, v6
            """)
        for k, r in enumerate(QP_PAT): P(f"v_accvgpr_write_b32 a{240+k}, v{r}")
        P(f"s_lshl_b32 s{S_WW_L}, s{S_W}, 11")
        return P

    def qp2(self, tag):
        n = self.name
        L = V_LANE
        NX, NW = 3, 6
        XB0 = 98304
        PER = 6
        NIT = 4
        FW = [120, 172]; FX = [152, 204]
        P = Prog()
        for k, r in enumerate(QP_PAT): P(f"v_accvgpr_read_b32 v{r}, a{240+k}")
        P(f"""
        v_add_u32 v{V_WD2}, 256, v{V_WD}
        v_add_u32 v{V_WD2+1}, 256, v{V_WD+1}
        v_add_u32 v{V_WPH}, 65536, v{V_WPAT}
        v_add_u32 v{V_WPH+1}, 65536, v{V_WPAT+1}
        s_mov_b32 s{S_WOFF}, 0
        s_mov_b32 s{S_XOFF}, 0
        """)
        def x_groups(buf):
            G = []
            for x in range(5):
                G.append([f"s_add_u32 m0, s{S_XC+x}, {XB0 + buf*18432}",
                          f"buffer_load_dwordx4 v{V_XD+x}, s[12:15], s{S_XOFF} offen{self.nt_x} lds"])
            G.append([f"s_add_u32 s{S_XOFF}, s{S_XOFF}, 128"])
            return G
        def w_groups(buf):
            G = []
            for h in range(2):
                for x in range(2):
                    G.append([f"s_add_u32 m0, s{S_WW_L}, {buf*16384 + h*8192 + x*1024}",
                              f"buffer_load_dwordx4 v{(V_WD if h == 0 else V_WD2) + x}, s[16:19], s{S_WOFF} offen{self.nt_w} lds"])
            G.append([f"s_add_u32 s{S_WOFF}, s{S_WOFF}, {1 << 18}"])
            return G
        def read_groups(k, i):
            G = []
            wbuf = i % NW
            wp = V_WPAT if wbuf < 4 else V_WPH
            wb = (wbuf % 4) * 16384
            xb = ((i >> 1) % NX) * 18432
            ss = i & 1
            GX = []
            for t in range(4):
                GX.append([f"ds_read_b128 {rng('v', FX[k]+4*t)}, v{V_XPAT+ss} offset:{xb + t*2048}"])
            GX.append([f"ds_read_b128 {rng('v', FX[k]+16)}, v{V_XPAT+2+ss} offset:{xb}"])
            for h in range(2):
                for jl in range(4):
                    a = FW[k] + 16 * h + 4 * jl
                    p, hh = jl >> 1, jl & 1
                    G.append([f"ds_read_b64_tr_b16 v[{a}:{a+1}], v{wp+p} offset:{wb + h*8192 + 8*hh}"])
                    G.append([f"ds_read_b64_tr_b16 v[{a+2}:{a+3}], v{wp+p} offset:{wb + h*8192 + 8*hh + 1024}"])
            return G[:8] + GX + G[8:]
        def qa(h, k): return 72 * h + 4 * k
        def mf(k):
            M = []
            for h in range(2):
                for t in range(4):
                    for jl in range(4):
                        a = qa(h, 4 * t + jl)
                        M.append(f"v_mfma_f32_16x16x32_bf16 {rng('a', a)}, {rng('v', FW[k]+16*h+4*jl)}, {rng('v', FX[k]+4*t)}, {rng('a', a)}")
                for x in range(2):
                    a = qa(h, 16 + x)
                    M.append(f"v_mfma_f32_16x16x32_bf16 {rng('a', a)}, {rng('v', FW[k]+16*h+4*x)}, {rng('v', FX[k]+16)}, {rng('a', a)}")
            return M
        pro = []
        xi = wi = 0
        while xi < NX or wi < NW:
            if xi < NX and 2 * xi <= wi: pro.append(('X', xi)); xi += 1
            elif wi < NW: pro.append(('W', wi)); wi += 1
            else: pro.append(('X', xi)); xi += 1
        cnt = {'X': 5, 'W': 4, 'K': 8}
        kv_at = {27: 0, 29: 1, 31: 2} if self.kvdma else {}
        seq = list(pro)
        def outstanding_after(need):
            idx = [i for i, it in enumerate(seq) if it in need]
            last = max(idx)
            return sum(cnt[k] for k, _ in seq[last + 1:])
        waits = {}
        for i in range(0, 32):
            need = set()
            if i + 1 < 32: need = {('W', i + 1), ('X', (i + 1) >> 1)}
            waits[i] = outstanding_after(need) if need else 63
            if i + NW < 32: seq.append(('W', i + NW))
            if (i & 1) and (i >> 1) + NX < 16: seq.append(('X', (i >> 1) + NX))
            if i in kv_at: seq.append(('K', kv_at[i]))
        wr = [min(waits[i] for i in range(r, NIT * PER, PER)) for r in range(PER)]
        assert max(wr) <= 63
        P("s_waitcnt vmcnt(0)\ns_barrier")
        def issue(lst):
            for kind, idx in lst:
                for g in (x_groups(idx) if kind == 'X' else w_groups(idx)):
                    for x in g: P(x)
        n1 = self.qn1
        n2 = len(pro)
        issue(pro[:n1])
        for r in range(0, 144, 4): P(f"v_mfma_f32_16x16x32_bf16 a[{r}:{r+3}], v[{V_ZERO}:{V_ZERO+3}], v[{V_ZERO}:{V_ZERO+3}], 0")
        issue(pro[n1:n2])
        w0 = sum(cnt[k] for k, _ in pro[2:n2])
        P(f"s_waitcnt vmcnt({w0})\ns_barrier")
        if self.qstamp:
            P(f"s_memtime s[72:73]\ns_waitcnt lgkmcnt(0)\ns_mov_b32 s82, s72")
        for g in read_groups(0, 0):
            for x in g: P(x)
        issue(pro[n2:])
        if self.pf_code2:
            for x in self.code_pf(f"{n}_hot0", 'a', 3): P(x)
        P(f"s_waitcnt lgkmcnt(0)\ns_mov_b32 s{S_CNT}, {NIT}")
        Z = Prog()
        for r in range(4): Z(f"v_mov_b32 v{V_ZERO+r}, 0")
        P.items = Z.items + P.items
        pre, _ = finalize_linear(P.items)
        out = Prog(); out.extend(pre)
        def substep(body, i, wait):
            ss = i & 1
            body(f"s_waitcnt vmcnt({min(wait, 63)}) lgkmcnt(0)")
            body("s_barrier")
            R = read_groups(1 - ss, i + 1) if i + 1 < 32 else []
            D = []
            if i + NW < 32: D += w_groups(i % NW)
            if (i & 1) and (i >> 1) + NX < 16: D += x_groups((i >> 1) % NX)
            if i in kv_at: D += self.ring_groups()
            if self.q_nodma: D = []
            M = mf(ss)
            fill = [[] for _ in M]
            hv = []
            ri = di = 0
            while ri < len(R) or di < len(D):
                for _ in range(2):
                    if ri < len(R): hv.append(R[ri]); ri += 1
                if di < len(D): hv.append(D[di]); di += 1
            npos = len(M)
            k = 0
            for g in hv:
                pos = min(k, npos - 1)
                if 'm0' in g[0] and pos > 0 and not any('buffer_load' in y for y in fill[pos - 1]):
                    fill[pos - 1].append(g[0]); fill[pos] += g[1:]
                else:
                    fill[pos] += g
                if any(('ds_read' in y or 'buffer_load' in y) for y in g): k += 1
            for x in interleave(M, fill): body(x)
        body = Prog()
        for r in range(PER): substep(body, r, wr[r])
        if self.qstamp:
            body("s_waitcnt lgkmcnt(0)\ns_memtime s[72:73]\ns_waitcnt lgkmcnt(0)")
            for it in range(4):
                body(f"s_cmp_eq_u32 s{S_CNT}, {4 - it}\ns_cselect_b32 s{83+it}, s72, s{83+it}")
        body(f"s_sub_u32 s{S_CNT}, s{S_CNT}, 1\ns_cmp_lg_u32 s{S_CNT}, 0")
        b, _ = finalize_loop(body.items)
        out.label(f"{n}_qp{tag}")
        out.extend(b)
        out(f"s_cbranch_scc1 {n}_qp{tag}")
        tail = Prog()
        for i in range(NIT * PER, 32): substep(tail, i, waits[i])
        l1, f = auto_lgkm(b, None)
        l2, _ = auto_lgkm(tail.items, f)
        l3 = fix_hazards(l2, wrap=b)
        out.extend(l3)
        out.label(f"{n}_hot0")
        E = Prog()
        E("s_waitcnt lgkmcnt(0)\ns_nop 7\ns_barrier")
        e1, _ = finalize_linear(E.items)
        out.extend(e1)
        return out

    def qconv(self, h, with_fill, nfill=3):
        L = V_LANE
        C = Prog()
        C(f"""
        v_mov_b32 v8, {f2u(CSCALE):#x}
        v_lshlrev_b32 v2, 4, v{L}
        v_add_u32 v2, {QX}, v2
        s_lshl_b32 s40, s{S_QH}, 14
        s_lshl_b32 s{S_TMP2}, s{S_HH}, 11
        s_add_u32 s40, s40, s{S_TMP2}
        s_lshl_b32 s{S_TMP2}, s{S_QH}, 10
        s_add_u32 s{S_XOFF}, s40, s{S_TMP2}
        s_xor_b32 s{S_TMP2}, s{S_TMP2}, 1024
        s_add_u32 s{S_WOFF}, s40, s{S_TMP2}
        v_add_u32 v3, s{S_XOFF}, v2
        v_add_u32 v4, s{S_WOFF}, v2
        s_lshl_b32 s40, s{S_HH}, 11
        s_lshl_b32 s{S_TMP2}, s{S_QH}, 10
        s_add_u32 s40, s40, s{S_TMP2}
        v_add_u32 v5, s40, v2
        """)
        def conv(k0, dst):
            t = dst + 4
            for r in range(8): C(f"v_accvgpr_read_b32 v{t+r}, a{72*h + 4*k0 + r}")
            for r in range(8): C(f"v_mul_f32 v{t+r}, v8, v{t+r}")
            for r in range(4): C(f"v_cvt_pk_bf16_f32 v{dst+r}, v{t+2*r}, v{t+2*r+1}")
        k = 0
        for t in range(4):
            for p in range(2):
                d = 120 + 12 * (k % 9); k += 1
                conv(4 * t + 2 * p, d)
                C(f"ds_write_b128 v{3+p}, {rng('v', d)} offset:{t*4096}")
        d = 120 + 12 * (k % 9)
        conv(16, d)
        C(f"ds_write_b128 v5, {rng('v', d)} offset:{8*4096}")
        if with_fill:
            RF = []
            for _ in range(nfill): RF += self.ring_groups()
            CI = Prog()
            ci = C.items
            step = max(1, len(ci) // len(RF))
            k = 0
            for i, it in enumerate(ci):
                if i % step == 0 and k < len(RF):
                    for x in RF[k]: CI(x)
                    k += 1
                CI.items.append(it)
            while k < len(RF):
                for x in RF[k]: CI(x)
                k += 1
            C = CI
        C("s_waitcnt lgkmcnt(0)\ns_barrier")
        it, _ = finalize_linear(C.items)
        o = Prog(); o.extend(it)
        return o

    def lq(self):
        L = V_LANE
        P = Prog()
        P(f"""
        v_lshlrev_b32 v2, 4, v{L}
        v_add_u32 v2, {QX}, v2
        s_lshl_b32 s39, s{S_QH}, 14
        v_add_u32 v3, s39, v2
        """)
        for t in range(4):
            for jp in range(4):
                P(f"ds_read_b128 {rng('a', q_frag(t, jp))}, v3 offset:{t*4096 + jp*1024}")
        for jp in range(4):
            P(f"ds_read_b128 {rng('a', q_frag(4, jp))}, v2 offset:{8*4096 + jp*1024}")
        P("s_waitcnt lgkmcnt(0)")
        it, _ = finalize_linear(P.items)
        o = Prog(); o.extend(it)
        return o

    def s_mfmas(self, unit, sb):
        slot, fs = unit
        M = []
        for kt in range(2):
            for jp in range(4):
                d = V_S + sb * 8 + kt * 4
                c = rng('v', V_NEGM + slot * 4) if jp == 0 else rng('v', d)
                M.append(f"v_mfma_f32_16x16x32_bf16 {rng('v', d)}, {rng('v', V_KF[fs] + (kt*4+jp)*4)}, {rng('a', q_frag(slot, jp))}, {c}")
        return M
    def pv_mfmas(self, unit, pb):
        slot, fs = unit
        M = []
        p = rng('v', V_P + pb * 4)
        for jl in range(8):
            M.append(f"v_mfma_f32_16x16x32_bf16 {rng('a', acc_o(slot, jl))}, {rng('v', V_VF[fs] + jl*4)}, {p}, {rng('a', acc_o(slot, jl))}")
        M.append(f"v_mfma_f32_16x16x32_bf16 {rng('v', V_L + slot*4)}, {rng('v', V_ONES)}, {p}, {rng('v', V_L + slot*4)}")
        return M
    def max_ops(self, unit, sb):
        slot, fs = unit
        s = V_S + sb * 8
        return [[f"v_max3_f32 v{V_MX}, v{s}, v{s+1}, v{s+2}"],
                [f"v_max3_f32 v{V_MX}, v{V_MX}, v{s+3}, v{s+4}"],
                [f"v_max3_f32 v{V_MX}, v{V_MX}, v{s+5}, v{s+6}"],
                [f"v_max_f32 v{V_MX}, v{V_MX}, v{s+7}"],
                [f"v_cmp_lt_f32 vcc, s{S_T+slot}, v{V_MX}"]]
    def check_ops(self, unit, sb):
        slot, fs = unit
        s = V_S + sb * 8
        self.uid += 1
        u = self.uid
        lab_r, lab_b = f"{self.name}_rare{u}", f"{self.name}_back{u}"
        R = Prog()
        R.label(lab_r)
        R(f"""
        s_nop 7
        v_mov_b32 v{V_T1}, v{V_MX}
        s_nop 1
        v_permlane16_swap_b32 v{V_MX}, v{V_T1}
        s_nop 1
        v_max_f32 v{V_MX}, v{V_MX}, v{V_T1}
        v_mov_b32 v{V_T1}, v{V_MX}
        s_nop 1
        v_permlane32_swap_b32 v{V_MX}, v{V_T1}
        s_nop 1
        v_max_f32 v{V_MX}, v{V_MX}, v{V_T1}
        s_ashr_i32 s{S_FL}, s{S_T+slot}, 31
        s_and_b32 s{S_FL}, s{S_FL}, 0xff800000
        s_mov_b32 s{S_T+slot}, 0x41000000
        v_max_f32 v{V_MX}, s{S_FL}, v{V_MX}
        """)
        for r in range(8): R(f"v_sub_f32 v{s+r}, v{s+r}, v{V_MX}")
        for r in range(4): R(f"v_sub_f32 v{V_NEGM+slot*4+r}, v{V_NEGM+slot*4+r}, v{V_MX}")
        R(f"s_cmp_lg_u32 s{S_FL}, 0\ns_cbranch_scc1 {lab_b}")
        R(f"v_sub_f32 v{V_T1}, 0, v{V_MX}")
        R(f"v_exp_f32 v{V_T1}, v{V_T1}")
        R("s_nop 1")
        for r in range(4): R(f"v_mul_f32 v{V_L+slot*4+r}, v{V_L+slot*4+r}, v{V_T1}")
        for r in range(0, 32, 2):
            a = A_O + slot * 32 + r
            R(f"v_accvgpr_read_b32 v{V_T2}, a{a}\nv_accvgpr_read_b32 v{V_T3}, a{a+1}\nv_mul_f32 v{V_T2}, v{V_T2}, v{V_T1}\nv_mul_f32 v{V_T3}, v{V_T3}, v{V_T1}\nv_accvgpr_write_b32 a{a}, v{V_T2}\nv_accvgpr_write_b32 a{a+1}, v{V_T3}")
        R("s_nop 2")
        R(f"s_branch {lab_b}")
        self.rare.append(R)
        return [f"s_cbranch_vccnz {lab_r}", f"{lab_b}:"]
    def exp_ops(self, unit, sb, pb):
        s = V_S + sb * 8
        p = V_P + pb * 4
        return [[f"v_exp_f32 v{s}, v{s}"], [f"v_exp_f32 v{s+1}, v{s+1}"], [f"v_exp_f32 v{s+2}, v{s+2}"],
                [f"v_cvt_pk_bf16_f32 v{p}, v{s}, v{s+1}"],
                [f"v_exp_f32 v{s+3}, v{s+3}"], [f"v_exp_f32 v{s+4}, v{s+4}"],
                [f"v_cvt_pk_bf16_f32 v{p+1}, v{s+2}, v{s+3}"],
                [f"v_exp_f32 v{s+5}, v{s+5}"], [f"v_exp_f32 v{s+6}, v{s+6}"],
                [f"v_cvt_pk_bf16_f32 v{p+2}, v{s+4}, v{s+5}"],
                [f"v_exp_f32 v{s+7}, v{s+7}"],
                [f"v_cvt_pk_bf16_f32 v{p+3}, v{s+6}, v{s+7}"]]
    def kv_reads(self, fs, which):
        G = []
        if which == 'K':
            for kt in range(2):
                for jp in range(4):
                    G.append([f"ds_read_b128 {rng('v', V_KF[fs] + (kt*4+jp)*4)}, v{V_KA+jp} offset:{kt*4096}"])
        else:
            for jl in range(8):
                a = V_VF[fs] + jl * 4
                ml, h = jl >> 1, jl & 1
                va = V_VA if fs == 'A' else V_VA2
                G.append([f"ds_read_b64_tr_b16 v[{a}:{a+1}], v{va+ml} offset:{8*h}"])
                G.append([f"ds_read_b64_tr_b16 v[{a+2}:{a+3}], v{va+ml} offset:{8*h+4096}"])
        return G
    def kv_addr(self, fs):
        va = V_VA if fs == 'A' else V_VA2
        G = [[f"v_add_u32 v{V_KA+j}, s{S_RSLOT}, v{V_KPAT+j}"] for j in range(4)]
        G += [[f"v_add_u32 v{va+j}, s{S_RSLOT}, v{V_VPAT+j}"] for j in range(4)]
        G.append([f"s_add_u32 s{S_RSLOT}, s{S_RSLOT}, {SLOT}", f"s_cmp_eq_u32 s{S_RSLOT}, {3*SLOT}", f"s_cselect_b32 s{S_RSLOT}, 0, s{S_RSLOT}"])
        return G

    def units(self, qh):
        if qh == 0: return [(0,'A'),(1,'A'),(2,'A'),(3,'A'),(4,'A'),(0,'B'),(1,'B'),(2,'B'),(3,'B')]
        return [(0,'A'),(1,'A'),(2,'A'),(3,'A'),(0,'B'),(1,'B'),(2,'B'),(3,'B'),(4,'B')]

    def attn_body(self, qh, last):
        U = self.units(qh)
        B = Prog()
        RG = self.ring_groups()
        for g in range(9):
            if g in (0, 4):
                B("s_waitcnt vmcnt(8) lgkmcnt(0)")
                if not self.x_nobar: B("s_barrier")
            M = []
            if not (last and g + 3 >= 9):
                M += self.s_mfmas(U[(g + 3) % 9], g % 3)
            M += self.pv_mfmas(U[g], g % 3)
            V = []
            head = []
            if not (last and g + 1 >= 9):
                head = self.check_ops(U[(g + 1) % 9], (g + 1) % 3)
                ex = self.exp_ops(U[(g + 1) % 9], (g + 1) % 3, (g + 1) % 3)
            else: ex = []
            mx = self.max_ops(U[(g + 2) % 9], (g + 2) % 3) if not (last and g + 2 >= 9) else []
            V = []
            ei = mi = 0
            pat = "eeemcemecemecemcm" if False else "eemeemeemeemm"
            order = []
            if self.x_nomax and ex:
                e_ = [g_ for g_ in ex if g_[0].startswith('v_exp')]
                c_ = [g_ for g_ in ex if g_[0].startswith('v_cvt')]
                pat = "e-ee-eC-ee-e-eC--"
                ei = ci = 0
                for ch in pat:
                    if ch == 'e': order.append(e_[ei]); ei += 1
                    elif ch == 'C': order.append(c_[ci] + c_[ci + 1]); ci += 2
                    else: order.append([])
            else:
                for i in range(17):
                    if i in (1, 3, 5, 7, 9) and mi < len(mx): order.append(mx[mi]); mi += 1
                    elif ei < len(ex): order.append(ex[ei]); ei += 1
                    elif mi < len(mx): order.append(mx[mi]); mi += 1
            V = order
            PF = []
            if last and self.pf_wo and self.x_nomax == self.fast and g in (0, 4):
                self.uid += 1
                lab = f"{self.name}_npf{self.uid}"
                pf = [f"s_cmp_eq_u32 s{S_ITEM}, 0", f"s_cbranch_scc1 {lab}"]
                pf += [f"s_lshl_b32 s39, s{S_W}, 14", f"s_add_u32 s39, s39, {8192 if g == 4 else 0}",
                       f"buffer_load_dword v{V_PFD}, v19, s[76:79], s39 offen"]
                if self.op_label and g == 0:
                    pf += [f"s_cmp_gt_u32 s{S_W}, 1", f"s_cbranch_scc1 {lab}",
                           f"s_getpc_b64 s[60:61]", f"{lab}_pc:",
                           f"s_add_u32 s60, s60, {self.op_label}-{lab}_pc", f"s_addc_u32 s61, s61, 0",
                           f"s_lshl_b32 s39, s{S_W}, 13", f"s_add_u32 s60, s60, s39", f"s_addc_u32 s61, s61, 0",
                           f"global_load_dword v{V_PFD}, v19, s[60:61]"]
                pf.append(f"{lab}:")
                PF = [pf]
            if last and self.pf_code2 and self.x_nomax == self.fast and g == 0:
                self.uid += 1
                lab = f"{self.name}_npc{self.uid}"
                pf = [f"s_or_b32 s39, s{S_ITEM}, s{S_W}", f"s_cmp_lg_u32 s39, 0", f"s_cbranch_scc1 {lab}",
                      f"s_getpc_b64 s[60:61]", f"{lab}_pc:",
                      f"s_add_u32 s60, s60, {self.name}_cmb-{lab}_pc", f"s_addc_u32 s61, s61, 0",
                      f"global_load_dword v{V_PFD}, v19, s[60:61]", f"{lab}:"]
                PF = PF + [pf]
            if last and self.pf1 and self.x_nomax == self.fast and g in (0, 4):
                self.uid += 1
                lab = f"{self.name}_np1{self.uid}"
                pf = [f"s_or_b32 s39, s{S_LATE}, s{S_ITEM}", f"s_cmp_lg_u32 s39, 0", f"s_cbranch_scc1 {lab}"]
                if g == 0:
                    pf += self.pf_w(f"s{S_W}", "1") + self.pf_x(f"s{S_W}")
                else:
                    pf += [f"s_add_u32 s39, s{S_W}, 4"] + self.pf_x("s39") + [f"s_add_u32 s39, s{S_W}, 8", "s_min_u32 s39, s39, 8"] + self.pf_x("s39")
                pf.append(f"{lab}:")
                PF = PF + [pf]
            KA, VA_ = (self.kv_reads('A', 'K'), self.kv_reads('A', 'V')) if not last else ([], [])
            KB, VB_ = self.kv_reads('B', 'K'), self.kv_reads('B', 'V')
            ADA = self.kv_addr('A') if not last else []
            ADB = self.kv_addr('B') if not last else []
            D, adv = self.ring_instrs()
            H = []
            Lt = []
            if g == 0: H = KB + PF + D[0:1]
            if g == 1: H = VB_[:6] + D[1:4];
            if g == 2: H = VB_[6:11] + D[4:6]; Lt = ADA[:4]
            if g == 3: H = D[6:8] + VB_[11:]; Lt = ADA[4:] + [adv]
            if g == 4: H = KA + PF + D[0:1]
            if g == 5: H = VA_[:5] + D[1:4]
            if g == 6: H = VA_[5:10] + D[4:6]; Lt = ADB[:4]
            if g == 7: H = D[6:8] + VA_[10:]; Lt = ADB[4:8]
            if g == 8: Lt = ADB[8:] + [adv]
            if self.x_nomax:
                if g == 0: H = KB + PF
                if g == 1: H = VB_[:5] + D[0:3]
                if g == 2: H = VB_[5:11] + D[3:5]
                if g == 3: H = D[5:8] + VB_[11:]
                if g == 4: H = KA[:7] + PF
                if g == 5: H = KA[7:] + D[0:2] + VA_[:4]
                if g == 6: H = D[2:4] + VA_[4:9]
                if g == 7: H = D[4:6] + VA_[9:14]
                if g == 8: H = VA_[14:] + D[6:8];
            if last and self.x_nomax and self.cfast and g >= 4:
                H = [x for x in H if not any('lds' in y and 'buffer_load' in y for y in x)]
                Lt = [x for x in Lt if not any(f"s{S_GOFF}," in y for y in x)]
                if g == 4: Lt = Lt + [[f"s_sub_u32 s{S_FREE}, s{S_DSLOT}, s{S_DBASE}"]]
            if self.x_nodma: H = [x for x in H if not any('lds' in y and 'buffer_load' in y for y in x)]
            if self.x_nord: H = [x for x in H if not any('ds_read' in y for y in x)]
            if self.x_nosm: V = []; head = []
            if self.x_nobr: head = []
            if self.x_noX: H = []; Lt = []
            if self.x_nomax: V = [[] if (x and (x[0].startswith('v_max') or x[0].startswith('v_cmp'))) else x for x in V]; head = []
            n = len(M)
            fill = [list(V[i]) if i < len(V) else [] for i in range(n)]
            light = [i for i in range(n) if not (fill[i] and fill[i][0].startswith('v_exp'))]
            empty = [i for i in range(n) if not fill[i]]
            pos = light[:]
            if self.x_nomax and empty:
                pos = empty[:]
                more = [i for i in light if i not in pos] + [i for i in range(n) if i not in light]
                if len(H) > len(pos): pos = sorted(pos + more[:len(H) - len(pos)])
            if len(H) > len(pos):
                extra_pos = [i for i in range(n) if i not in pos][:len(H) - len(pos)]
                pos = sorted(pos + extra_pos)
            if H:
                k = len(pos)
                chosen = [pos[(j * k) // len(H)] for j in range(len(H))]
                for j, h in enumerate(H):
                    h = list(h)
                    if ' m0,' in h[0] and chosen[j] > 0 and not any('lds' in y and 'buffer_load' in y for y in fill[chosen[j] - 1]):
                        fill[chosen[j] - 1].append(h[0]); h = h[1:]
                    fill[chosen[j]] += h
            if Lt:
                has_heavy = lambda i: any(('ds_read' in y or 'buffer_load' in y) for y in fill[i])
                last_dma = max([i for i in range(n) if any('buffer_load' in y for y in fill[i])] + [-1])
                free = [i for i in light if not has_heavy(i)] + [i for i in range(n) if i not in light]
                used = set()
                for l_ in Lt:
                    need_after = last_dma if any(f"s{S_GOFF}," in y for y in l_) else -1
                    cand = [i for i in free if i not in used and i > need_after] or [n - 1]
                    if any(f"s{S_RSLOT}, s{S_RSLOT}" in y for y in l_):
                        la = max([i for i in range(n) if any(f"s{S_RSLOT}, v" in y for y in fill[i])] + [-1])
                        cand = [i for i in range(n) if i >= la]
                        cand = [max(cand[0], 0)]
                    i = cand[0]; used.add(i)
                    fill[i] += l_
            extra = V[n:]
            for x in head: B(x)
            for x in interleave(M, fill + extra): B(x)
        return B

    def attention(self, qh, tag):
        n = self.name
        U = self.units(qh)
        P = Prog()
        for r in range(20): P(f"v_mov_b32 v{V_L + r}, 0\nv_mov_b32 v{V_NEGM + r}, 0")
        P("s_nop 1")
        for r in range(0, 160, 4): P(f"v_mfma_f32_16x16x32_bf16 a[{A_O + r}:{A_O + r + 3}], v[{V_L}:{V_L+3}], v[{V_L}:{V_L+3}], 0")
        for s in range(5): P(f"s_mov_b32 s{S_T+s}, 0xff800000")
        P("s_waitcnt vmcnt(16)\ns_barrier")
        for g in self.kv_addr('A') + self.kv_reads('A', 'K') + self.kv_reads('A', 'V') + self.kv_addr('B'):
            for x in g: P(x)
        for x in self.s_mfmas(U[0], 0) + self.s_mfmas(U[1], 1) + self.s_mfmas(U[2], 2): P(x)
        if not self.x_nomax:
            for g in self.max_ops(U[0], 0):
                for x in g: P(x)
            P("s_nop 3")
            for x in self.check_ops(U[0], 0): P(x)
        for g in self.exp_ops(U[0], 0, 0) + (self.max_ops(U[1], 1) if not self.x_nomax else []):
            for x in g: P(x)
        P(f"s_waitcnt lgkmcnt(0)\ns_mov_b32 s{S_CNT}, 7")
        pre, _ = finalize_linear(P.items)
        out = Prog(); out.extend(pre)
        body, _ = finalize_loop(self.attn_body(qh, False).items)
        if self.stamps:
            self.stamp(out, 5)
        out.label(f"{n}_at{tag}")
        out.extend(body)
        out(f"s_sub_u32 s{S_CNT}, s{S_CNT}, 1\ns_cmp_lg_u32 s{S_CNT}, 0\ns_cbranch_scc1 {n}_at{tag}")
        if self.stamps:
            self.stamp(out, 6)
        lastb = self.attn_body(qh, True)
        l1, f = auto_lgkm(body, None)
        l2, _ = auto_lgkm(lastb.items, f)
        l3 = fix_hazards(l2, wrap=body)
        out.extend(l3)
        return out

    def combine(self, qh):
        L = V_LANE
        E = Prog()
        MLO = 32768
        if self.cstamp: E(f"s_waitcnt lgkmcnt(0)\ns_memtime s[48:49]\ns_waitcnt lgkmcnt(0)\ns_cmp_eq_u32 s{S_ITEM}, 0\ns_cselect_b32 s82, s48, s82")
        E("s_nop 7\ns_waitcnt lgkmcnt(0)\ns_barrier")
        if self.cstamp: E(f"s_waitcnt lgkmcnt(0)\ns_memtime s[48:49]\ns_waitcnt lgkmcnt(0)\ns_cmp_eq_u32 s{S_ITEM}, 0\ns_cselect_b32 s83, s48, s83")
        E(f"""
        v_lshlrev_b32 v2, 2, v{L}
        v_add_u32 v2, {STG + MLO}, v2
        s_mul_i32 s39, s{S_W}, 2560
        v_add_u32 v3, s39, v2
        v_lshlrev_b32 v8, 4, v{L}
        v_add_u32 v8, {STG}, v8
        s_lshl_b32 s39, s{S_W}, 13
        s_lshl_b32 s40, s{S_HH}, 12
        s_add_u32 s{S_TMP2}, s39, s40
        v_add_u32 v5, s{S_TMP2}, v8
        s_xor_b32 s{S_TMP2}, s{S_TMP2}, 4096
        v_add_u32 v6, s{S_TMP2}, v8
        """)
        for s_ in range(5):
            E(f"ds_write_b32 v3, v{V_NEGM + s_*4} offset:{s_*512}")
            E(f"ds_write_b32 v3, v{V_L + s_*4} offset:{s_*512 + 256}")
        for jl in range(8):
            E(f"ds_write_b128 v{5 + (jl >> 2)}, {rng('a', acc_o(4, jl))} offset:{(jl & 3)*1024}")
        E(f"""s_mov_b64 s[72:73], 0
        s_mov_b32 s{S_XRB}, 0x21800000
        v_mov_b32 v{V_T3}, 0x5d800000
        v_mov_b32 v{V_P}, 0
        v_mov_b32 v{V_P+1}, 0
        v_mov_b32 v{V_P+2}, 0
        v_mov_b32 v{V_P+3}, 0
        s_xor_b32 s39, s{S_W}, 2
        s_mul_i32 s39, s39, 2560
        v_add_u32 v4, s39, v2
        s_lshl_b32 s39, s{S_W}, 11
        v_add_u32 v5, s39, v8
        v_lshlrev_b32 v7, 4, v{L}
        s_mul_i32 s{S_XOFF}, s{S_ITEM}, 36864
        s_lshl_b32 s{S_WOFF}, s{S_W}, 10
        s_add_u32 s{S_WOFF}, s{S_WOFF}, {32*1024}
        s_add_u32 s{S_WOFF}, s{S_WOFF}, s{S_XOFF}
        s_lshl_b32 s39, s{S_QH}, 14
        s_lshl_b32 s40, s{S_HH}, 11
        s_add_u32 s39, s39, s40
        s_add_u32 s{S_XOFF}, s{S_XOFF}, s39
        """)
        E("s_waitcnt lgkmcnt(0)\ns_barrier")
        if self.cstamp: E(f"s_waitcnt lgkmcnt(0)\ns_memtime s[48:49]\ns_waitcnt lgkmcnt(0)\ns_cmp_eq_u32 s{S_ITEM}, 0\ns_cselect_b32 s84, s48, s84")
        for s_ in range(4):
            E(f"ds_read_b32 v{120 + 2*s_}, v4 offset:{s_*512}")
            E(f"ds_read_b32 v{121 + 2*s_}, v4 offset:{s_*512 + 256}")
        for ww in range(4):
            E(f"ds_read_b32 v{128 + 2*ww}, v2 offset:{ww*2560 + 4*512}")
            E(f"ds_read_b32 v{129 + 2*ww}, v2 offset:{ww*2560 + 4*512 + 256}")
        for ww in range(4):
            for x in range(2):
                E(f"ds_read_b128 {rng('v', 160 + (ww*2+x)*4)}, v5 offset:{ww*8192 + x*1024}")
        E(f"""
        s_lshl_b32 s39, s{S_W}, 14
        v_add_u32 v3, s39, v8
        s_xor_b32 s39, s39, {2 << 14}
        v_add_u32 v4, s39, v8
        """)
        for s_ in range(4):
            for r in range(16):
                E(f"v_accvgpr_read_b32 v{192 + 16*(s_ % 3) + r if s_ < 3 else 96 + r}, a{acc_o(s_, 0) + r}")
        E("s_waitcnt lgkmcnt(0)\ns_barrier")
        if self.cstamp: E(f"s_waitcnt lgkmcnt(0)\ns_memtime s[48:49]\ns_waitcnt lgkmcnt(0)\ns_cmp_eq_u32 s{S_ITEM}, 0\ns_cselect_b32 s85, s48, s85")
        for s_ in range(4):
            for x in range(4):
                E(f"ds_write_b128 v3, {rng('a', acc_o(s_, 4 + x))} offset:{(s_*4+x)*1024}")
        for s_ in range(4):
            nm, l_ = V_NEGM + 4 * s_, V_L + 4 * s_
            no, lo = 120 + 2 * s_, 121 + 2 * s_
            E(f"""
            v_min_f32 v2, v{nm}, v{no}
            v_sub_f32 v6, v2, v{nm}
            v_sub_f32 v5, v2, v{no}
            v_exp_f32 v6, v6
            v_exp_f32 v5, v5
            s_nop 0
            v_mul_f32 v9, v6, v{l_}
            v_fma_f32 v9, v5, v{lo}, v9
            v_cmp_nge_f32 s[60:61], v9, s{S_XRB}
            v_cmp_nle_f32 vcc, v9, v{V_T3}
            v_rcp_f32 v9, v9
            s_or_b64 s[72:73], s[72:73], s[60:61]
            s_or_b64 s[72:73], s[72:73], vcc
            v_mul_f32 v{136+4*s_}, v6, v9
            v_mul_f32 v{137+4*s_}, v6, v9
            v_mul_f32 v{138+4*s_}, v5, v9
            v_mul_f32 v{139+4*s_}, v5, v9
            """)
        E(f"""
        v_min_f32 v2, v128, v130
        v_min_f32 v6, v132, v134
        v_min_f32 v2, v2, v6
        """)
        for ww in range(4):
            E(f"v_sub_f32 v{152+2*ww}, v2, v{128+2*ww}\nv_exp_f32 v{152+2*ww}, v{152+2*ww}")
        E(f"""
        s_nop 0
        v_mul_f32 v9, v152, v129
        v_fma_f32 v9, v154, v131, v9
        v_fma_f32 v9, v156, v133, v9
        v_fma_f32 v9, v158, v135, v9
        v_cmp_nge_f32 s[60:61], v9, s{S_XRB}
        v_cmp_nle_f32 vcc, v9, v{V_T3}
        v_rcp_f32 v9, v9
        s_or_b64 s[72:73], s[72:73], s[60:61]
        s_or_b64 s[72:73], s[72:73], vcc
        """)
        for ww in range(4): E(f"v_mul_f32 v{152+2*ww}, v{152+2*ww}, v9\nv_mov_b32 v{153+2*ww}, v{152+2*ww}")
        for r in range(8):
            E(f"v_mul_f32 v{112+r}, v{160+r}, v152")
        for ww in range(1, 4):
            for r in range(8):
                E(f"v_fma_f32 v{112+r}, v{160+ww*8+r}, v{152+2*ww}, v{112+r}")
        for r in range(4):
            E(f"v_fma_f32 v{V_P+2}, v{112+2*r}, v{V_P}, v{V_P+2}")
            E(f"v_fma_f32 v{V_P+3}, v{113+2*r}, v{V_P}, v{V_P+3}")
            E(f"v_cvt_pk_bf16_f32 v{V_P+4+r}, v{112+2*r}, v{113+2*r}")
        E(f"buffer_store_dwordx4 {rng('v', V_P+4)}, v7, s[20:23], s{S_WOFF} offen{self.st_flags}")
        mine = lambda s_: (192 + 16 * s_) if s_ < 3 else 96
        for s_ in range(4):
            for r in range(16):
                E(f"v_mul_f32 v{mine(s_)+r}, v{mine(s_)+r}, v{136+4*s_}")
        if self.cstamp: E(f"s_waitcnt lgkmcnt(0)\ns_memtime s[48:49]\ns_waitcnt lgkmcnt(0)\ns_cmp_eq_u32 s{S_ITEM}, 0\ns_cselect_b32 s86, s48, s86")
        E("s_waitcnt lgkmcnt(0)\ns_barrier")
        if self.cstamp: E(f"s_waitcnt lgkmcnt(0)\ns_memtime s[48:49]\ns_waitcnt lgkmcnt(0)\ns_cmp_eq_u32 s{S_ITEM}, 0\ns_cselect_b32 s87, s48, s87")
        recv = lambda s_: 160 + 16 * (s_ % 2)
        def rd(s_):
            for x in range(4):
                E(f"ds_read_b128 {rng('v', recv(s_) + 4*x)}, v4 offset:{(s_*4+x)*1024}")
        rd(0); rd(1)
        for s_ in range(4):
            m_, rc = mine(s_), recv(s_)
            for r in range(16):
                E(f"v_fma_f32 v{m_+r}, v{rc+r}, v{138+4*s_}, v{m_+r}")
            if s_ + 2 < 4: rd(s_ + 2)
            pk = 56 + 8 * s_
            for r in range(8):
                E(f"v_fma_f32 v{V_P+2}, v{m_+2*r}, v{V_P}, v{V_P+2}")
                E(f"v_fma_f32 v{V_P+3}, v{m_+2*r+1}, v{V_P}, v{V_P+3}")
                E(f"v_cvt_pk_bf16_f32 v{pk+r}, v{m_+2*r}, v{m_+2*r+1}")
            E(f"s_add_u32 s39, s{S_XOFF}, {s_*4096}")
            for p in range(2):
                E(f"buffer_store_dwordx4 {rng('v', pk+4*p)}, v7, s[20:23], s39 offen offset:{1024*p}{self.st_flags}")
        E(f"""
        v_cmp_u_f32 vcc, v{V_P+2}, v{V_P+3}
        s_nop 1
        s_or_b64 s[72:73], s[72:73], vcc
        s_cmp_lg_u64 s[72:73], 0
        s_cselect_b32 s39, 1, {1 if self.force_bad else 0}
        s_xor_b32 s40, s{S_SAFE}, 1
        s_and_b32 s39, s39, s40
        s_lshl_b32 s39, s39, s{S_ITEM}
        s_or_b32 s{S_BAD}, s{S_BAD}, s39
        s_waitcnt lgkmcnt(0)
        """)
        if self.cstamp: E(f"s_waitcnt lgkmcnt(0)\ns_memtime s[48:49]\ns_waitcnt lgkmcnt(0)\ns_cmp_eq_u32 s{S_ITEM}, 0\ns_cselect_b32 s88, s48, s88")
        it, _ = finalize_linear(E.items)
        o = Prog(); o.extend(it)
        return o

    def combine_fast(self):
        n = self.name
        L = V_LANE
        E = Prog()
        if self.cstamp: E(f"s_waitcnt lgkmcnt(0)\ns_memtime s[64:65]\ns_waitcnt lgkmcnt(0)\ns_cmp_eq_u32 s{S_ITEM}, 1\ns_cselect_b32 s82, s64, s82")
        E("s_nop 7\ns_waitcnt lgkmcnt(0)\ns_barrier")
        if self.cstamp: E(f"s_waitcnt lgkmcnt(0)\ns_memtime s[64:65]\ns_waitcnt lgkmcnt(0)\ns_cmp_eq_u32 s{S_ITEM}, 1\ns_cselect_b32 s83, s64, s83")
        E(f"""
        v_lshlrev_b32 v8, 4, v{L}
        s_lshl_b32 s39, s{S_W}, 14
        s_add_u32 s39, s39, {STG}
        v_add_u32 v3, s39, v8
        s_xor_b32 s40, s{S_W}, 2
        s_lshl_b32 s40, s40, 14
        s_add_u32 s40, s40, {STG}
        v_add_u32 v4, s40, v8
        """)
        for s_ in range(4):
            for x in range(4):
                E(f"ds_write_b128 v3, {rng('a', acc_o(s_, 4 + x))} offset:{(s_*4+x)*1024}")
        for lp in range(4):
            E(f"""
            s_lshl_b32 s39, s{S_HH}, 1
            s_xor_b32 s39, s39, {lp}
            s_sub_u32 s40, s{S_W}, s39
            s_sub_u32 s40, s40, 1
            s_and_b32 s40, s40, 3
            s_mul_i32 s39, s39, 3
            s_add_u32 s39, s39, s40
            s_lshl_b32 s39, s39, 11
            s_cmp_eq_u32 s40, 3
            s_cselect_b32 s39, 24576, s39
            s_add_u32 s39, s39, s{S_FREE}
            v_add_u32 v{120+lp}, s39, v8
            """)
            for x in range(2):
                E(f"ds_write_b128 v{120+lp}, {rng('a', acc_o(4, 2*lp + x))} offset:{x*1024}")
        E(f"""
        v_lshlrev_b32 v2, 2, v{L}
        s_add_u32 s39, s{S_FREE}, 26624
        v_add_u32 v2, s39, v2
        s_mul_i32 s39, s{S_W}, 1280
        v_add_u32 v5, s39, v2
        """)
        for s_ in range(5):
            E(f"ds_write_b32 v5, v{V_L + s_*4} offset:{s_*256}")
        if self.cstamp: E(f"s_waitcnt lgkmcnt(0)\ns_memtime s[64:65]\ns_waitcnt lgkmcnt(0)\ns_cmp_eq_u32 s{S_ITEM}, 1\ns_cselect_b32 s84, s64, s84")
        mine = lambda s_: (192 + 16 * s_) if s_ < 3 else 96
        for s_ in range(4):
            for r in range(16):
                E(f"v_accvgpr_read_b32 v{mine(s_) + r}, a{acc_o(s_, 0) + r}")
        E(f"s_cmp_lg_u32 s{S_QH}, 0\ns_cbranch_scc1 {n}_cf1")
        for r in range(8): E(f"v_accvgpr_read_b32 v{112+r}, a{acc_o(4, 0) + r}")
        E(f"s_branch {n}_cf2")
        E.label(f"{n}_cf1")
        for r in range(8): E(f"v_accvgpr_read_b32 v{112+r}, a{acc_o(4, 2) + r}")
        E.label(f"{n}_cf2")
        E(f"""
        s_mov_b64 s[72:73], 0
        s_mov_b32 s{S_XRB}, 0x21800000
        v_mov_b32 v{V_T3}, 0x5d800000
        v_mov_b32 v{V_P}, 0
        v_mov_b32 v{V_P+2}, 0
        v_mov_b32 v{V_P+3}, 0
        s_xor_b32 s39, s{S_W}, 2
        s_mul_i32 s39, s39, 1280
        v_add_u32 v5, s39, v2
        s_mul_i32 s39, s{S_W}, 6144
        s_add_u32 s39, s39, s{S_FREE}
        v_add_u32 v6, s39, v8
        v_lshlrev_b32 v7, 4, v{L}
        s_mul_i32 s{S_XOFF}, s{S_ITEM}, 36864
        s_lshl_b32 s{S_WOFF}, s{S_W}, 10
        s_add_u32 s{S_WOFF}, s{S_WOFF}, {32*1024}
        s_add_u32 s{S_WOFF}, s{S_WOFF}, s{S_XOFF}
        s_lshl_b32 s39, s{S_QH}, 14
        s_lshl_b32 s40, s{S_HH}, 11
        s_add_u32 s39, s39, s40
        s_add_u32 s{S_XOFF}, s{S_XOFF}, s39
        """)
        if self.cstamp: E(f"s_waitcnt lgkmcnt(0)\ns_memtime s[64:65]\ns_waitcnt lgkmcnt(0)\ns_cmp_eq_u32 s{S_ITEM}, 1\ns_cselect_b32 s85, s64, s85")
        E("s_waitcnt lgkmcnt(0)\ns_barrier")
        for s_ in range(4): E(f"ds_read_b32 v{124+s_}, v5 offset:{s_*256}")
        for ww in range(4): E(f"ds_read_b32 v{128+ww}, v2 offset:{ww*1280 + 4*256}")
        for rk in range(3):
            for x in range(2):
                E(f"ds_read_b128 {rng('v', 136 + (rk*2+x)*4)}, v6 offset:{rk*2048 + x*1024}")
        recv = lambda s_: 160 + 16 * (s_ % 2)
        def rd(s_):
            for x in range(4):
                E(f"ds_read_b128 {rng('v', recv(s_) + 4*x)}, v4 offset:{(s_*4+x)*1024}")
        rd(0)
        for s_ in range(4):
            E(f"""
            v_add_f32 v{124+s_}, v{124+s_}, v{V_L + 4*s_}
            v_cmp_nge_f32 s[60:61], v{124+s_}, s{S_XRB}
            v_cmp_nle_f32 vcc, v{124+s_}, v{V_T3}
            v_rcp_f32 v{124+s_}, v{124+s_}
            s_or_b64 s[72:73], s[72:73], s[60:61]
            s_or_b64 s[72:73], s[72:73], vcc
            """)
        E(f"""
        v_add_f32 v128, v128, v129
        v_add_f32 v130, v130, v131
        v_add_f32 v128, v128, v130
        v_cmp_nge_f32 s[60:61], v128, s{S_XRB}
        v_cmp_nle_f32 vcc, v128, v{V_T3}
        v_rcp_f32 v128, v128
        s_or_b64 s[72:73], s[72:73], s[60:61]
        s_or_b64 s[72:73], s[72:73], vcc
        """)
        rd(1)
        for rk in range(3):
            for r in range(8): E(f"v_add_f32 v{112+r}, v{112+r}, v{136+rk*8+r}")
        for r in range(8): E(f"v_mul_f32 v{112+r}, v{112+r}, v128")
        for r in range(4):
            E(f"v_fma_f32 v{V_P+2}, v{112+2*r}, v{V_P}, v{V_P+2}")
            E(f"v_fma_f32 v{V_P+3}, v{113+2*r}, v{V_P}, v{V_P+3}")
            E(f"v_cvt_pk_bf16_f32 v{V_P+4+r}, v{112+2*r}, v{113+2*r}")
        E(f"buffer_store_dwordx4 {rng('v', V_P+4)}, v7, s[20:23], s{S_WOFF} offen{self.st_flags}")
        if self.cstamp: E(f"s_waitcnt lgkmcnt(0)\ns_memtime s[64:65]\ns_waitcnt lgkmcnt(0)\ns_cmp_eq_u32 s{S_ITEM}, 1\ns_cselect_b32 s86, s64, s86")
        for s_ in range(4):
            m_, rc = mine(s_), recv(s_)
            for r in range(16): E(f"v_add_f32 v{m_+r}, v{m_+r}, v{rc+r}")
            if s_ + 2 < 4: rd(s_ + 2)
            for r in range(16): E(f"v_mul_f32 v{m_+r}, v{m_+r}, v{124+s_}")
            pk = 56 + 8 * s_
            for r in range(8):
                E(f"v_fma_f32 v{V_P+2}, v{m_+2*r}, v{V_P}, v{V_P+2}")
                E(f"v_fma_f32 v{V_P+3}, v{m_+2*r+1}, v{V_P}, v{V_P+3}")
                E(f"v_cvt_pk_bf16_f32 v{pk+r}, v{m_+2*r}, v{m_+2*r+1}")
            E(f"s_add_u32 s39, s{S_XOFF}, {s_*4096}")
            for p in range(2):
                E(f"buffer_store_dwordx4 {rng('v', pk+4*p)}, v7, s[20:23], s39 offen offset:{1024*p}{self.st_flags}")
        if self.cstamp: E(f"s_waitcnt lgkmcnt(0)\ns_memtime s[64:65]\ns_waitcnt lgkmcnt(0)\ns_cmp_eq_u32 s{S_ITEM}, 1\ns_cselect_b32 s87, s64, s87")
        E(f"""
        v_cmp_u_f32 vcc, v{V_P+2}, v{V_P+3}
        s_nop 1
        s_or_b64 s[72:73], s[72:73], vcc
        s_cmp_lg_u64 s[72:73], 0
        s_cselect_b32 s39, 1, {1 if self.force_bad else 0}
        s_lshl_b32 s39, s39, s{S_ITEM}
        s_or_b32 s{S_BAD}, s{S_BAD}, s39
        s_waitcnt lgkmcnt(0)
        s_barrier
        """)
        for g in self.ring_groups():
            for x in g: E(x)
        if self.cstamp: E(f"s_waitcnt lgkmcnt(0)\ns_memtime s[64:65]\ns_waitcnt lgkmcnt(0)\ns_cmp_eq_u32 s{S_ITEM}, 1\ns_cselect_b32 s88, s64, s88")
        if self.c_nost: E.items = [x for x in E.items if not x.op.startswith('buffer_store')]
        if self.c_nonan: E.items = [x for x in E.items if not (x.op == 'v_fma_f32' and f"v{V_P+2}," in x.text or x.op == 'v_fma_f32' and f"v{V_P+3}," in x.text)]
        if self.c_now: E.items = [x for x in E.items if not x.op.startswith('ds_write_b128')]
        it, _ = finalize_linear(E.items)
        o = Prog(); o.extend(it)
        return o

    def agree_bad(self):
        E = Prog()
        E(f"""
        s_barrier
        v_mov_b32 v5, {STG}
        s_lshl_b32 s40, s{S_W}, 2
        v_add_u32 v6, s40, v5
        v_mov_b32 v3, s{S_BAD}
        ds_write_b32 v6, v3
        s_waitcnt lgkmcnt(0)
        s_barrier
        ds_read_b128 v[120:123], v5
        s_waitcnt lgkmcnt(0)
        v_or_b32 v120, v120, v121
        v_or_b32 v122, v122, v123
        v_or_b32 v120, v120, v122
        s_nop 0
        v_readfirstlane_b32 s{S_BAD}, v120
        s_nop 3
        """)
        it, _ = finalize_linear(E.items)
        o = Prog(); o.extend(it)
        return o

    def stamp(self, out, idx_expr, sel=None):
        if not self.stamps: return
        if (self.qstamp or self.cstamp) and idx_expr not in (0, 1): return
        base = idx_expr
        u = self.nst; self.nst += 1
        out(f"""s_waitcnt lgkmcnt(0)
        {'s_memrealtime' if (self.dbg_stamps is not None or self.dbg_rt) else 's_memtime'} s[72:73]
        s_waitcnt lgkmcnt(0)
        s_cmp_eq_u32 s{sel if sel is not None else S_ITEM}, 0
        s_cselect_b32 s{80+base}, s72, s{80+base}
        s_cselect_b32 s{88+base}, s{88+base}, s72""")

    def build(self):
        n = self.name
        out = Prog()
        st, _ = finalize_linear(self.setup().items)
        out.extend(st)
        cold = Prog()
        out.label(f"{n}_qpL")
        self.stamp(out, 0)
        out.extend(self.qp2('x'))
        out(f"s_cmp_lg_u32 s{S_SAFE}, 0\ns_cbranch_scc1 {n}_qredo")
        out.extend(self.qconv(0, not self.kvdma, 1))
        out.extend(self.lq())
        out("s_barrier")
        out.extend(self.qconv(1, not self.kvdma, 2))
        out.label(f"{n}_qdone")
        cold.label(f"{n}_qredo")
        cold(f"s_cmp_lg_u32 s{S_ITEM}, 0\ns_cbranch_scc1 {n}_qredo1")
        cold.extend(self.qconv(0, not self.kvdma))
        cold(f"s_branch {n}_qredo2")
        cold.label(f"{n}_qredo1")
        cold.extend(self.qconv(1, not self.kvdma))
        cold.label(f"{n}_qredo2")
        cold.extend(self.lq())
        cold(f"s_branch {n}_safe")
        self.stamp(out, 1)
        out.label(f"{n}_att")
        self.stamp(out, 2)
        out(f"s_cmp_lg_u32 s{S_QH}, 0\ns_cbranch_scc1 {n}_q1")
        self.x_nomax = self.fast
        out.extend(self.attention(0, 'a'))
        out(f"s_branch {n}_cmb")
        out.label(f"{n}_q1")
        out.extend(self.attention(1, 'b'))
        cold.label(f"{n}_safe")
        self.x_nomax = False
        st, self.stamps = self.stamps, False
        cold(f"s_cmp_lg_u32 s{S_QH}, 0\ns_cbranch_scc1 {n}_sq1")
        cold.extend(self.attention(0, 'c'))
        cold(f"s_branch {n}_scmb")
        cold.label(f"{n}_sq1")
        cold.extend(self.attention(1, 'd'))
        cold(f"s_branch {n}_scmb")
        self.stamps = st
        out.label(f"{n}_cmb")
        self.stamp(out, 3)
        out(f"s_cmp_lg_u32 s{S_ITEM}, 0\ns_cbranch_scc1 {n}_nolq")
        out.extend(self.lq())
        out.label(f"{n}_nolq")
        if self.cfast and self.fast:
            out.extend(self.combine_fast())
        else:
            out.extend(self.combine(0))
        self.stamp(out, 4)
        out(f"s_add_u32 s{S_ITEM}, s{S_ITEM}, 1\ns_cmp_ge_u32 s{S_ITEM}, 2\ns_cbranch_scc1 {n}_agree")
        out(f"s_branch {n}_att")
        cold.label(f"{n}_scmb")
        st2, self.stamps, cs = self.stamps, False, self.cstamp
        self.cstamp = False
        cold.extend(self.combine(0))
        self.stamps, self.cstamp = st2, cs
        cold(f"s_branch {n}_redo")
        out.label(f"{n}_agree")
        out.extend(self.agree_bad())
        out.label(f"{n}_redo")
        out(f"s_cmp_eq_u32 s{S_BAD}, 0\ns_cbranch_scc1 {n}_fin")
        out(f"""s_and_b32 s39, s{S_BAD}, 1
        s_xor_b32 s{S_ITEM}, s39, 1
        s_lshl_b32 s39, 1, s{S_ITEM}
        s_andn2_b32 s{S_BAD}, s{S_BAD}, s39
        s_mov_b32 s{S_SAFE}, 1
        s_lshl_b32 s{S_GOFF}, s{S_ITEM}, 18
        s_add_u32 s{S_DSLOT}, s{S_DBASE}, {SLOT if self.kvdma else 0}
        s_mov_b32 s{S_RSLOT}, {SLOT if self.kvdma else 0}
        s_branch {n}_qpL""")
        out.label(f"{n}_fin")
        self.cold = cold
        if self.stamps and self.dbg_stamps is not None:
            out(f"""s_cmp_lg_u32 s2, {self.dbg_stamps}
            s_cbranch_scc1 {n}_done
            s_cmp_lg_u32 s{S_W}, 0
            s_cbranch_scc1 {n}_done
            s_memrealtime s[72:73]
            s_waitcnt lgkmcnt(0)
            s_mov_b32 s95, s72
            s_add_u32 s68, s68, {64 << 20}
            s_addc_u32 s69, s69, 0
            v_mov_b32 v2, 0""")
            for i in range(16):
                out(f"v_mov_b32 v3, s{80+i}\nglobal_store_dword v2, v3, s[68:69] offset:{4*i}")
        elif self.stamps:
            out(f"""s_lshl_b32 s39, s2, 2
            s_add_u32 s39, s39, s{S_W}
            s_lshl_b32 s39, s39, 6
            s_add_u32 s39, s39, {64 << 20}
            s_add_u32 s68, s68, s39
            s_addc_u32 s69, s69, 0
            v_mov_b32 v2, 0""")
            for i in range(16):
                out(f"v_mov_b32 v3, s{80+i}\nglobal_store_dword v2, v3, s[68:69] offset:{4*i}")
        out.label(f"{n}_done")
        out("s_endpgm")
        out.extend(self.cold)
        labs = {it.text for it in out.items if it.kind == 'label'}
        for r in self.rare:
            back = r.items[-1].ops[0] + ':'
            if back in labs: out.extend(r)
        return kernel_text(n, out.text(), vgpr=512, sgpr=102, acc=256), LDS_TOTAL

if __name__ == '__main__':
    import sys
    b = dict(nt_w=True)
    variants = [('fa_a_kernel', dict(b)), ('fa_nt_kernel', dict(b, st_flags=' nt')), ('fa_sc1_kernel', dict(b, st_flags=' sc1')), ('fa_forcebad_kernel', dict(b, force_bad=True))]
    hdr = ''; body = ''
    for nm, kw in variants:
        txt, lds = FA(name=nm, stamps=True, **kw).build()
        hdr += f"; @launch kernel={nm} grid=(256,1,1) block=(256,1,1) lds={lds}\n"
        body += txt
    open('fa.s', 'w').write(hdr + '.amdgcn_target "amdgcn-amd-amdhsa--gfx950"\n.text\n' + body)
```

```python
from asmlib import *
import math

RING = 0
SLOT = 32768
STG = 98304
XB = [STG, STG + 18432]
WB = [STG + 36864 + 8192 * i for i in range(3)]
QX = STG
LDS_TOTAL = 163840
O_WS_OFF = 0
CSCALE = math.log2(math.e) / math.sqrt(128.0)

import struct
def f2u(x): return struct.unpack('<I', struct.pack('<f', x))[0]

V_LANE = 1
V_RING = 10
V_KPAT, V_VPAT, V_KA, V_VA = 20, 24, 28, 32
V_P = 36
V_MX, V_T1, V_T2, V_T3 = 48, 49, 50, 51
V_ONES = 52
V_NEGM = 56
V_L = 76
V_S = 96
V_KF = {'A': 120, 'B': 184}
V_VF = {'A': 152, 'B': 216}
A_O = 0
A_Q = 160
V_XD, V_WD = 106, 98
V_WD2 = 96
QXBASE = 65536
V_PFW, V_PFX, V_PFD = 14, 15, 16
V_RINGK, V_RINGV = 17, 18
V_RINGH = 248
V_VA2 = 252
V_XPAT = 100
V_WPAT = 104
V_XA = 106
V_WA = 110
QF_W = [120, 156]
QF_X = [136, 172]

S_W, S_QH, S_HH, S_BLK, S_B, S_H0 = 24, 25, 26, 27, 28, 29
S_CH, S_DSLOT, S_RSLOT, S_CNT = 30, 31, 32, 33
S_T = 34
S_GOFF, S_LB, S_TMP, S_TMP2 = 41, 42, 40, 43
S_DWRAP, S_DBASE = 30, 42
S_XI, S_WI, S_XOFF, S_WOFF, S_XBUF, S_WBUF, S_XRB, S_WRB = 44, 45, 46, 47, 48, 49, 50, 51
S_XW_G, S_XW_L = 54, 55
S_XC = 96
S_WW_L, S_WLIM = 101, 56
S_BAD, S_SAFE, S_NREC2 = 44, 45, 53
S_KOOB = 51
S_ITEM = 58
S_FL = 59
S_QI = 70
S_FLAG = 72
S_LATE, S_PR, S_FI, S_FMAX, S_FG, S_FL2 = 71, 74, 75, 52, 53, 56
S_KVO = 66

QP_PAT = [98, 99, 100, 101, 102, 103, 104, 105, 106, 107, 108, 109, 110]
def qacc(k): return (56 + 4 * k) if k < 10 else (192 + 4 * (k - 10))
def acc_o(slot, jl): return A_O + slot * 32 + jl * 4
def q_frag(slot, jp): return A_Q + slot * 16 + jp * 4
def rng(f, b, n=4): return f"{f}[{b}:{b+n-1}]"

def interleave(M, fillers, start=0):
    out = []
    k = 0
    for i, m in enumerate(M):
        out.append(m)
        if i >= start and k < len(fillers):
            out += fillers[k]; k += 1
    while k < len(fillers):
        out += fillers[k]; k += 1
    return out

def spread(M, groups, start=0):
    m = len(M) - start
    n = len(groups)
    out = []
    for i, x in enumerate(M):
        out.append(x)
        if i >= start:
            k = i - start
            for g in groups[(k * n) // m:((k + 1) * n) // m]:
                out += g
    return out

class FA:
    def __init__(self, name='fa_kernel', nt_kv=True, nt_w=False, nt_x=False, dbg=None, order='early', stamps=False, pf_qp=True, pf_att=True, late_bit=1, x_nodma=False, x_nosm=False, x_nobr=False, x_nord=False, x_nobar=False, x_qv=False, q_nodma=False, q_nord=False, q_nobar=False, q_nowait=False, same_kv=False, x_nohead=False, x_noX=False, x_nomax=False, fill_qp=True, fast=True, force_bad=False, pf_wo=False, pf_code=False, op_label=None, dbg_stamps=None, pf0=False, pf1=False, pf_nt=False, qstamp=False, cstamp=False, st_flags='', qp0_nt=False, pf0x=False, rot=False, pf_tlb=False, dbg_rt=False, pf_code2=False, kvreg=True):
        self.kvreg = kvreg
        self.pf_code2 = pf_code2
        self.dbg_rt = dbg_rt
        self.pf_tlb = pf_tlb
        self.rot = rot
        self.st_flags, self.qp0_nt, self.pf0x = st_flags, qp0_nt, pf0x
        self.cstamp = cstamp
        self.qstamp = qstamp
        self.pf0, self.pf1 = pf0, pf1
        self.pf_nt = ' nt' if pf_nt else ''
        self.dbg_stamps = dbg_stamps
        self.pf_wo, self.pf_code, self.op_label = pf_wo, pf_code, op_label
        self.fast = fast
        self.force_bad = force_bad
        self.fill_qp = fill_qp
        self.x_nomax = x_nomax
        self.x_nohead, self.x_noX = x_nohead, x_noX
        self.same_kv = same_kv
        self.q_nowait = q_nowait
        self.q_nodma, self.q_nord, self.q_nobar = q_nodma, q_nord, q_nobar
        self.x_nodma, self.x_nosm, self.x_nobr, self.x_nord, self.x_nobar, self.x_qv = x_nodma, x_nosm, x_nobr, x_nord, x_nobar, x_qv
        self.pf_qp = pf_qp
        self.pf_att = pf_att
        self.late_bit = late_bit
        self.stamps = stamps
        self.nst = 0
        self.name = name
        self.nt_kv = ' nt' if nt_kv else ''
        self.nt_w = ' nt' if nt_w else ''
        self.nt_x = ' nt' if nt_x else ''
        self.dbg = dbg
        self.order = order
        self.rare = []
        self.uid = 0

    def setup(self):
        P = Prog()
        n = self.name
        P(f"""
        s_cmp_ge_u32 s2, 256
        s_cbranch_scc1 {n}_done
        s_and_b32 s39, s2, 7
        s_lshr_b32 s40, s2, 3
        s_lshr_b32 s{S_BLK}, s39, 2
        s_and_b32 s39, s39, 3
        s_and_b32 s{S_B}, s40, 7
        s_lshr_b32 s40, s40, 3
        s_mov_b32 s{S_PR}, s40
        s_lshl_b32 s39, s39, 3
        s_lshl_b32 s40, s40, 1
        s_add_u32 s{S_H0}, s39, s40
        s_mul_i32 s39, s{S_BLK}, 40
        s_add_u32 s60, s0, s39
        s_addc_u32 s61, s1, 0
        s_load_dwordx2 s[4:5], s[60:61], 0
        s_load_dwordx2 s[62:63], s[60:61], 8
        s_load_dwordx2 s[64:65], s[60:61], 16
        s_load_dwordx2 s[66:67], s[60:61], 24
        s_load_dwordx2 s[68:69], s[0:1], 96
        s_load_dwordx2 s[76:77], s[60:61], 32
        v_lshrrev_b32 v2, 6, v0
        v_and_b32 v{V_LANE}, 63, v0
        v_readfirstlane_b32 s{S_W}, v2
        s_and_b32 s{S_QH}, s{S_W}, 1
        s_lshr_b32 s{S_HH}, s{S_W}, 1
        """)
        L = V_LANE
        P(f"""
        v_lshrrev_b32 v2, 4, v{L}
        v_and_b32 v3, 15, v{L}
        v_xor_b32 v4, v3, v2
        v_lshlrev_b32 v5, 2, v2
        v_xor_b32 v5, v3, v5
        v_lshlrev_b32 v4, 4, v4
        v_lshlrev_b32 v5, 4, v5
        v_lshlrev_b32 v2, 8, v2
        v_add_u32 v{V_RINGK}, v4, v2
        v_add_u32 v{V_RINGV}, v5, v2
        s_cmp_eq_u32 s{S_QH}, 0
        s_cselect_b32 s39, 64, 16
        s_cselect_b64 vcc, -1, 0
        v_cndmask_b32 v{V_RING}, v{V_RINGV}, v{V_RINGK}, vcc
        v_xor_b32 v{V_RING+1}, s39, v{V_RING}
        s_lshl_b32 s40, s39, 1
        v_xor_b32 v{V_RING+2}, s40, v{V_RING}
        s_add_u32 s40, s40, s39
        v_xor_b32 v{V_RING+3}, s40, v{V_RING}
        v_add_u32 v{V_RINGH}, 4096, v{V_RING}
        v_add_u32 v{V_RINGH+1}, 4096, v{V_RING+1}
        v_add_u32 v{V_RINGH+2}, 4096, v{V_RING+2}
        v_add_u32 v{V_RINGH+3}, 4096, v{V_RING+3}
        """)
        P(self.pf_setup())
        P(f"""
        v_and_b32 v3, 15, v{L}
        v_lshrrev_b32 v2, 4, v{L}
        v_xor_b32 v4, v2, v3
        v_lshlrev_b32 v4, 4, v4
        v_lshlrev_b32 v5, 8, v3
        s_lshl_b32 s39, s{S_HH}, 14
        v_add_u32 v5, s39, v5
        """)
        for jp in range(4):
            P(f"v_xor_b32 v6, {64*jp}, v4\nv_add_u32 v{V_KPAT+jp}, v5, v6")
        P(f"""
        v_lshrrev_b32 v3, 2, v{L}
        v_and_b32 v3, 3, v3
        v_and_b32 v4, 3, v{L}
        v_xor_b32 v4, v4, v2
        v_lshlrev_b32 v4, 4, v4
        v_lshlrev_b32 v5, 6, v3
        v_add_u32 v4, v4, v5
        v_lshlrev_b32 v5, 2, v2
        v_add_u32 v5, v5, v3
        v_lshlrev_b32 v5, 8, v5
        s_lshl_b32 s39, s{S_HH}, 14
        s_add_u32 s39, s39, 8192
        v_add_u32 v5, s39, v5
        """)
        for ml in range(4):
            P(f"""
            s_lshl_b32 s39, s{S_HH}, 1
            s_add_u32 s39, s39, {ml}
            s_and_b32 s39, s39, 3
            s_lshl_b32 s39, s39, 6
            v_xor_b32 v6, s39, v4
            v_add_u32 v{V_VPAT+ml}, v5, v6
            """)
        if self.pf_code:
            P(f"""
            s_lshr_b32 s39, s2, 3
            s_cmp_ge_u32 s39, 16
            s_cbranch_scc1 {n}_npc
            s_cmp_lg_u32 s{S_W}, 0
            s_cbranch_scc1 {n}_npc
            s_getpc_b64 s[72:73]
            {n}_pc0:
            s_lshl_b32 s39, s39, 13
            s_add_u32 s72, s72, s39
            s_addc_u32 s73, s73, 0
            v_lshlrev_b32 v3, 7, v{L}
            global_load_dword v{V_PFD}, v3, s[72:73]
            {n}_npc:
            """)
        for r in range(4):
            P(f"v_mov_b32 v{V_ONES+r}, 0x3f803f80")
        P("s_waitcnt lgkmcnt(0)")
        P(f"""
        s_cmp_eq_u32 s{S_QH}, 0
        s_cselect_b32 s8, s62, s64
        s_cselect_b32 s9, s63, s65
        s_lshl_b32 s39, s{S_B}, 5
        s_add_u32 s39, s39, s{S_H0}
        s_lshr_b32 s40, s39, 14
        s_lshl_b32 s39, s39, {18 if not self.same_kv else 31}
        s_and_b32 s39, s39, {'-1' if not self.same_kv else '0'}
        s_add_u32 s8, s8, s39
        s_addc_u32 s9, s9, s40
        s_lshl_b32 s39, s{S_HH}, 13
        s_add_u32 s8, s8, s39
        s_addc_u32 s9, s9, 0
        s_and_b32 s9, s9, 0xffff
        s_sub_u32 s10, {2*262144}, s39
        s_mov_b32 s11, 0x20000
        s_mul_i32 s39, s{S_B}, {144*2048}
        s_add_u32 s12, s4, s39
        s_addc_u32 s13, s5, 0
        s_and_b32 s13, s13, 0xffff
        s_mov_b32 s14, {144*2048}
        s_mov_b32 s15, 0x20000
        s_lshl_b32 s39, s{S_H0}, 8
        s_add_u32 s16, s66, s39
        s_addc_u32 s17, s67, 0
        s_and_b32 s17, s17, 0xffff
        s_sub_u32 s18, {1024*8192}, s39
        s_mov_b32 s19, 0x20000
        s_lshl_b32 s39, s{S_BLK}, 3
        s_add_u32 s39, s39, s{S_B}
        s_lshl_b32 s39, s39, 5
        s_add_u32 s39, s39, s{S_H0}
        s_mul_i32 s39, s39, 36864
        s_add_u32 s20, s68, s39
        s_addc_u32 s21, s69, 0
        s_add_u32 s20, s20, {O_WS_OFF}
        s_addc_u32 s21, s21, 0
        s_and_b32 s21, s21, 0xffff
        s_mov_b32 s22, {2*36864}
        s_mov_b32 s23, 0x20000
        s_lshl_b32 s{S_DBASE}, s{S_W}, 13
        s_mov_b32 s{S_DSLOT}, s{S_DBASE}
        s_add_u32 s{S_DWRAP}, s{S_DBASE}, {3*SLOT}
        s_mov_b32 s{S_GOFF}, 0
        s_mov_b32 s{S_RSLOT}, 0
        s_mov_b32 s{S_ITEM}, 0
        s_mov_b32 s{S_QI}, 0
        s_mov_b32 s{S_FMAX}, 1
        s_lshl_b32 s39, s{S_B}, 5
        s_add_u32 s39, s39, s{S_H0}
        s_lshl_b32 s{S_KVO}, s39, 18
        s_mov_b32 s{S_KVO+1}, 0
        s_and_b32 s39, s2, 3
        s_lshl_b32 s39, s39, 5
        s_lshr_b32 s40, s2, 3
        s_add_u32 s39, s39, s40
        s_lshl_b32 s39, s39, 16
        s_add_u32 s76, s76, s39
        s_addc_u32 s77, s77, 0
        s_and_b32 s77, s77, 0xffff
        s_mov_b32 s78, 65536
        s_mov_b32 s79, 0x20000
        v_lshlrev_b32 v19, 7, v{L}
        """)
        if self.order == 'early': P(f"s_mov_b32 s{S_LATE}, 0")
        elif self.order == 'late': P(f"s_mov_b32 s{S_LATE}, 1")
        else: P(f"s_lshr_b32 s{S_LATE}, s2, {self.late_bit}\ns_and_b32 s{S_LATE}, s{S_LATE}, 1")
        P(f"""s_xor_b32 s{S_FMAX}, s{S_LATE}, 1
        s_mov_b32 s{S_BAD}, 0
        s_mov_b32 s{S_SAFE}, 0
        s_mov_b32 s{S_NREC2}, s10
        s_mov_b32 s{S_QI}, 0""")
        if self.pf0:
            for x in self.pf_w(f"s{S_W}", "0"): P(x)
            for x in self.pf_x(f"s{S_W}"): P(x)
            P(f"s_add_u32 s39, s{S_W}, 4")
            for x in self.pf_x("s39"): P(x)
            P(f"s_add_u32 s39, s{S_W}, 8\ns_min_u32 s39, s39, 8")
            for x in self.pf_x("s39"): P(x)
            P(f"s_cmp_eq_u32 s{S_LATE}, 0\ns_cbranch_scc1 {n}_npf0")
            for x in self.pf_w(f"s{S_W}", "1"): P(x)
            P.label(f"{n}_npf0")
        if self.pf0x:
            for x in self.pf_x(f"s{S_W}"): P(x)
            P(f"s_add_u32 s39, s{S_W}, 4")
            for x in self.pf_x("s39"): P(x)
            P(f"s_add_u32 s39, s{S_W}, 8\ns_min_u32 s39, s39, 8")
            for x in self.pf_x("s39"): P(x)
            P(f"s_cmp_eq_u32 s{S_LATE}, 0\ns_cbranch_scc1 {n}_npf0x")
            for x in self.pf_w(f"s{S_W}", "1"): P(x)
            P.label(f"{n}_npf0x")
        if self.pf_tlb:
            P(f"""
            s_cmp_lg_u32 s{S_W}, 0
            s_cbranch_scc1 {n}_ntlb
            s_lshr_b32 s39, s2, 3
            s_lshl_b32 s39, s39, 18
            v_lshlrev_b32 v2, 13, v{V_LANE}
            s_mov_b32 exec_hi, 0
            buffer_load_dword v{V_PFD}, v2, s[16:19], s39 offen
            s_mul_i32 s39, s{S_PR}, {18*4096}
            v_lshlrev_b32 v2, 12, v{V_LANE}
            s_mov_b32 exec_lo, 0x3ffff
            buffer_load_dword v{V_PFD}, v2, s[12:15], s39 offen
            s_mov_b64 exec, -1
            {n}_ntlb:
            """)
        P(f"""
        s_lshl_b32 s39, s2, 7
        s_add_u32 s39, s39, {48 << 20}
        s_add_u32 s72, s68, s39
        s_addc_u32 s73, s69, 0
        v_mov_b32 v2, 0
        v_lshlrev_b32 v3, 2, v{V_LANE}
        s_mov_b32 exec_hi, 0
        global_store_dword v3, v2, s[72:73]
        s_mov_b32 exec_hi, -1
        """)
        P.extend(self.qp_patterns())
        return P

    def ring_instrs(self):
        nt = self.nt_kv
        D = []
        for m in range(8):
            g = []
            if m == 0: g.append(f"s_mov_b32 m0, s{S_DSLOT}")
            if m == 4: g.append(f"s_add_u32 m0, s{S_DSLOT}, 4096")
            v = V_RING + m if m < 4 else V_RINGH + m - 4
            g.append(f"buffer_load_dwordx4 v{v}, s[8:11], s{S_GOFF} offen offset:{(m & 3) * 1024}{nt} lds")
            D.append(g)
        adv = [f"s_add_u32 s{S_GOFF}, s{S_GOFF}, 16384",
               f"s_add_u32 s{S_DSLOT}, s{S_DSLOT}, {SLOT}",
               f"s_cmp_eq_u32 s{S_DSLOT}, s{S_DWRAP}",
               f"s_cselect_b32 s{S_DSLOT}, s{S_DBASE}, s{S_DSLOT}"]
        return D, adv
    def ring_groups(self):
        D, adv = self.ring_instrs()
        return D + [adv]

    def ring_fill(self):
        P = Prog()
        for _ in range(3):
            for g in self.ring_groups():
                for x in g: P(x)
        return P

    def pf_setup(self):
        L = V_LANE
        return f"""
        v_lshrrev_b32 v2, 1, v{L}
        v_lshlrev_b32 v2, 13, v2
        v_and_b32 v3, 1, v{L}
        v_lshlrev_b32 v3, 7, v3
        v_add_u32 v{V_PFW}, v2, v3
        v_lshrrev_b32 v2, 4, v{L}
        v_lshlrev_b32 v2, 11, v2
        v_and_b32 v3, 15, v{L}
        v_lshlrev_b32 v3, 7, v3
        v_add_u32 v{V_PFX}, v2, v3
        """
    def pf_w(self, i_expr_sgpr, head_sgpr):
        return [f"s_lshl_b32 s{S_TMP}, s{S_B}, 20",
                f"s_lshl_b32 s{S_TMP2}, {i_expr_sgpr}, 18",
                f"s_add_u32 s{S_TMP}, s{S_TMP}, s{S_TMP2}",
                f"s_lshl_b32 s{S_TMP2}, {head_sgpr}, 8",
                f"s_add_u32 s{S_TMP}, s{S_TMP}, s{S_TMP2}",
                f"buffer_load_dword v{V_PFD}, v{V_PFW}, s[16:19], s{S_TMP} offen{self.pf_nt}"]
    def pf_x(self, i_expr):
        return [f"s_mul_i32 s{S_TMP}, s{S_PR}, {36*2048}",
                f"s_lshl_b32 s{S_TMP2}, {i_expr}, 13",
                f"s_add_u32 s{S_TMP}, s{S_TMP}, s{S_TMP2}",
                f"buffer_load_dword v{V_PFD}, v{V_PFX}, s[12:15], s{S_TMP} offen{self.pf_nt}"]

    def code_pf(self, label, uid, waves_chunks):
        n = self.name
        return [f"s_cmp_ge_u32 s{S_W}, {waves_chunks}", f"s_cbranch_scc1 {n}_ncp{uid}",
                f"s_getpc_b64 s[60:61]", f"{n}_cp{uid}:",
                f"s_add_u32 s60, s60, {label}-{n}_cp{uid}", f"s_addc_u32 s61, s61, 0",
                f"s_lshl_b32 s39, s{S_W}, 13", f"s_add_u32 s60, s60, s39", f"s_addc_u32 s61, s61, 0",
                f"global_load_dword v{V_PFD}, v19, s[60:61]", f"{n}_ncp{uid}:"]

    def qp_patterns(self):
        L = V_LANE
        P = Prog()
        P(f"""
        v_lshrrev_b32 v2, 3, v{L}
        v_and_b32 v3, 7, v{L}
        v_lshrrev_b32 v4, 4, v{L}
        v_xor_b32 v3, v3, v4
        v_lshlrev_b32 v3, 4, v3
        v_lshlrev_b32 v2, 11, v2
        v_add_u32 v2, v2, v3
        """)
        for x in range(5):
            P(f"""
            s_mul_i32 s39, s{S_W}, 5
            s_add_u32 s39, s39, {x}
            s_cmp_gt_u32 s39, 17
            s_cselect_b32 s40, 2, 0
            s_sub_u32 s39, s39, s40
            s_lshl_b32 s{S_XC+x}, s39, 10
            s_and_b32 s40, s39, 1
            s_lshl_b32 s40, s40, 6
            v_xor_b32 v3, s40, v2
            s_lshl_b32 s39, s39, 14
            v_add_u32 v{V_XD+x}, s39, v3
            """)
        P(f"""
        v_lshrrev_b32 v2, 4, v{L}
        v_and_b32 v3, 15, v{L}
        v_lshlrev_b32 v4, 2, v2
        v_xor_b32 v3, v3, v4
        v_xor_b32 v3, s{S_W}, v3
        v_lshlrev_b32 v3, 4, v3
        v_lshlrev_b32 v4, 13, v2
        v_add_u32 v3, v3, v4
        s_lshl_b32 s39, s{S_W}, 16
        v_add_u32 v{V_WD}, s39, v3
        v_add_u32 v{V_WD+1}, 32768, v{V_WD}
        v_and_b32 v3, 15, v{L}
        v_lshrrev_b32 v4, 1, v3
        v_xor_b32 v4, v4, v2
        v_lshlrev_b32 v4, 4, v4
        v_lshlrev_b32 v5, 7, v3
        v_xor_b32 v6, 64, v4
        v_add_u32 v4, v4, v5
        v_add_u32 v6, v6, v5
        s_lshl_b32 s39, s{S_QH}, 13
        s_add_u32 s39, s39, {QXBASE}
        v_add_u32 v{V_XPAT}, s39, v4
        v_add_u32 v{V_XPAT+1}, s39, v6
        v_add_u32 v{V_XPAT+2}, {8*2048 + QXBASE}, v4
        v_add_u32 v{V_XPAT+3}, {8*2048 + QXBASE}, v6
        v_lshrrev_b32 v3, 2, v{L}
        v_and_b32 v3, 3, v3
        v_and_b32 v4, 3, v{L}
        v_xor_b32 v4, v4, v2
        v_lshlrev_b32 v4, 4, v4
        v_lshlrev_b32 v5, 6, v3
        v_add_u32 v4, v4, v5
        v_lshlrev_b32 v5, 3, v2
        v_add_u32 v5, v5, v3
        v_lshlrev_b32 v5, 8, v5
        """)
        for p in range(2):
            P(f"""
            s_xor_b32 s39, s{S_QH}, {p}
            s_lshl_b32 s40, s{S_HH}, 1
            s_add_u32 s39, s39, s40
            s_lshl_b32 s39, s39, 6
            v_xor_b32 v6, s39, v4
            v_add_u32 v{V_WPAT+p}, v5, v6
            """)
        for k, r in enumerate(QP_PAT): P(f"v_accvgpr_write_b32 a{240+k}, v{r}")
        P(f"s_lshl_b32 s{S_WW_L}, s{S_W}, 11")
        return P

    def qp2(self, tag):
        n = self.name
        L = V_LANE
        NX, NW = 4, 4
        FW = [120, 172]; FX = [152, 204]
        P = Prog()
        for k, r in enumerate(QP_PAT): P(f"v_accvgpr_read_b32 v{r}, a{240+k}")
        P(f"""
        v_add_u32 v{V_WD2}, 256, v{V_WD}
        v_add_u32 v{V_WD2+1}, 256, v{V_WD+1}
        s_lshl_b32 s39, s{S_PR}, 1
        s_add_u32 s39, s39, s{S_B}
        s_and_b32 s39, s39, {7 if self.rot else 0}
        s_lshl_b32 s{S_WOFF}, s39, 20
        s_lshl_b32 s{S_XOFF}, s39, 8
        s_mov_b32 s48, 32
        s_mov_b32 s49, 16
        """)
        def x_groups(buf):
            G = [[f"s_cmp_lg_u32 s49, 0", f"s_cselect_b32 s{S_TMP2}, s{S_XOFF}, {144*2048}"]]
            for x in range(5):
                G.append([f"s_add_u32 m0, s{S_XC+x}, {QXBASE + buf*18432}",
                          f"buffer_load_dwordx4 v{V_XD+x}, s[12:15], s{S_TMP2} offen{self.nt_x} lds"])
            G.append([f"s_add_u32 s{S_XOFF}, s{S_XOFF}, 128", f"s_and_b32 s{S_XOFF}, s{S_XOFF}, 2047", f"s_sub_u32 s49, s49, 1", f"s_max_i32 s49, s49, 0"])
            return G
        def w_groups(buf):
            G = [[f"s_cmp_lg_u32 s48, 0", f"s_cselect_b32 s{S_TMP}, s{S_WOFF}, {32 << 18}"]]
            for h in range(2):
                for x in range(2):
                    G.append([f"s_add_u32 m0, s{S_WW_L}, {buf*16384 + h*8192 + x*1024}",
                              f"buffer_load_dwordx4 v{(V_WD if h == 0 else V_WD2) + x}, s[16:19], s{S_TMP} offen{self.nt_w} lds"])
            G.append([f"s_add_u32 s{S_WOFF}, s{S_WOFF}, {1 << 18}", f"s_and_b32 s{S_WOFF}, s{S_WOFF}, {(32 << 18) - 1}", f"s_sub_u32 s48, s48, 1", f"s_max_i32 s48, s48, 0"])
            return G
        def read_groups(k, i):
            G = []
            wb = (i % NW) * 16384
            xb = ((i >> 1) % NX) * 18432
            ss = i & 1
            GX = []
            for t in range(4):
                GX.append([f"ds_read_b128 {rng('v', FX[k]+4*t)}, v{V_XPAT+ss} offset:{xb + t*2048}"])
            GX.append([f"ds_read_b128 {rng('v', FX[k]+16)}, v{V_XPAT+2+ss} offset:{xb}"])
            for h in range(2):
                for jl in range(4):
                    a = FW[k] + 16 * h + 4 * jl
                    p, hh = jl >> 1, jl & 1
                    G.append([f"ds_read_b64_tr_b16 v[{a}:{a+1}], v{V_WPAT+p} offset:{wb + h*8192 + 8*hh}"])
                    G.append([f"ds_read_b64_tr_b16 v[{a+2}:{a+3}], v{V_WPAT+p} offset:{wb + h*8192 + 8*hh + 1024}"])
            return G[:8] + GX + G[8:]
        def qa(h, k): return 72 * h + 4 * k
        def mf(k):
            M = []
            for h in range(2):
                for t in range(4):
                    for jl in range(4):
                        a = qa(h, 4 * t + jl)
                        M.append(f"v_mfma_f32_16x16x32_bf16 {rng('a', a)}, {rng('v', FW[k]+16*h+4*jl)}, {rng('v', FX[k]+4*t)}, {rng('a', a)}")
                for x in range(2):
                    a = qa(h, 16 + x)
                    M.append(f"v_mfma_f32_16x16x32_bf16 {rng('a', a)}, {rng('v', FW[k]+16*h+4*x)}, {rng('v', FX[k]+16)}, {rng('a', a)}")
            return M
        pro = []
        xi = wi = 0
        while xi < NX or wi < NW:
            if xi < NX and 2 * xi <= wi: pro.append(('X', xi)); xi += 1
            elif wi < NW: pro.append(('W', wi)); wi += 1
            else: pro.append(('X', xi)); xi += 1
        cnt = {'X': 5, 'W': 4, 'K': 8}
        seq = list(pro)
        def outstanding_after(need):
            last = max(i for i, it in enumerate(seq) if it in need)
            return sum(cnt[k] for k, _ in seq[last + 1:])
        waits = {}
        for i in range(0, 24):
            if self.kvreg and i % 8 == 0: seq.append(('K', i // 8))
            waits[i] = outstanding_after({('W', i + 1), ('X', (i + 1) >> 1)})
            seq.append(('W', i + NW))
            if i & 1: seq.append(('X', (i >> 1) + NX))
        wr = [min(waits[i] for i in range(r, 24, 8)) for r in range(8)]
        assert max(wr) <= 63
        P("s_waitcnt vmcnt(0)\ns_barrier")
        def issue(lst):
            for kind, idx in lst:
                for g in (x_groups(idx) if kind == 'X' else w_groups(idx)):
                    for x in g: P(x)
        n1, n2 = 2, 4
        issue(pro[:n1])
        for r in range(144): P(f"v_accvgpr_write_b32 a{r}, 0")
        issue(pro[n1:n2])
        w0 = sum(cnt[k] for k, _ in pro[2:n2])
        P(f"s_waitcnt vmcnt({w0})\ns_barrier")
        if self.qstamp:
            P(f"s_memtime s[72:73]\ns_waitcnt lgkmcnt(0)\ns_mov_b32 s82, s72")
        for g in read_groups(0, 0):
            for x in g: P(x)
        issue(pro[n2:])
        if self.pf_code2:
            for x in self.code_pf(f"{n}_hot0", 'a', 3): P(x)
        P(f"s_waitcnt lgkmcnt(0)\ns_mov_b32 s{S_CNT}, 4")
        pre, _ = finalize_linear(P.items)
        out = Prog(); out.extend(pre)
        body = Prog()
        for r in range(8):
            ss = r & 1
            if not self.q_nowait: body(f"s_waitcnt vmcnt({wr[r]}) lgkmcnt(0)")
            else: body("s_waitcnt lgkmcnt(0)")
            body("s_barrier")
            R = read_groups(1 - ss, r + 1)
            D = w_groups(r % NW) + (x_groups((r >> 1) % NX) if ss == 1 else [])
            if self.q_nodma: D = []
            if self.q_nord: R = R[:1]
            M = mf(ss)
            fill = [[] for _ in M]
            hv = []
            ri = di = 0
            while ri < len(R) or di < len(D):
                for _ in range(2):
                    if ri < len(R): hv.append(R[ri]); ri += 1
                if di < len(D): hv.append(D[di]); di += 1
            npos = len(M)
            k = 0
            for g in hv:
                pos = min(k, npos - 1)
                if 'm0' in g[0] and pos > 0 and not any('buffer_load' in y for y in fill[pos - 1]):
                    fill[pos - 1].append(g[0]); fill[pos] += g[1:]
                else:
                    fill[pos] += g
                if any(('ds_read' in y or 'buffer_load' in y) for y in g): k += 1
            for x in interleave(M, fill): body(x)
        if self.qstamp:
            body("s_waitcnt lgkmcnt(0)\ns_memtime s[72:73]\ns_waitcnt lgkmcnt(0)")
            for it in range(4):
                body(f"s_cmp_eq_u32 s{S_CNT}, {4 - it}\ns_cselect_b32 s{83+it}, s72, s{83+it}")
        body(f"s_sub_u32 s{S_CNT}, s{S_CNT}, 1\ns_cmp_lg_u32 s{S_CNT}, 0")
        b, _ = finalize_loop(body.items)
        def kv_stub(c):
            S_ = Prog()
            for m in range(8):
                v = V_RING + m if m < 4 else V_RINGH + m - 4
                if c is None:
                    S_(f"buffer_load_dwordx4 a[144:147], v{v}, s[8:11], s{S_KOOB} offen")
                else:
                    a = 144 + c * 32 + m * 4
                    S_(f"buffer_load_dwordx4 a[{a}:{a+3}], v{v}, s[8:11], s{S_GOFF} offen offset:{(m & 3) * 1024}{self.nt_kv}")
            if c is not None:
                for x in self.ring_instrs()[1]: S_(x)
            return S_
        if self.kvreg:
            out(f"s_mov_b32 s{S_KOOB}, s10")
            out.extend(kv_stub(None))
        out.label(f"{n}_qp{tag}")
        out.extend(b)
        if self.kvreg:
            out(f"s_cbranch_scc0 {n}_hot0")
            for c in range(3):
                if c < 2: out(f"s_cmp_lg_u32 s{S_CNT}, {3 - c}\ns_cbranch_scc1 {n}_kst{c+1}{tag}")
                out.extend(kv_stub(c))
                out(f"s_branch {n}_qp{tag}")
                if c < 2: out.label(f"{n}_kst{c+1}{tag}")
        else:
            out(f"s_cbranch_scc1 {n}_qp{tag}")
        out.label(f"{n}_hot0")
        E = Prog()
        E("s_waitcnt vmcnt(0) lgkmcnt(0)\ns_nop 7\ns_barrier")
        if self.kvreg:
            E(f"""
            v_lshlrev_b32 v2, 4, v{L}
            s_lshl_b32 s39, s{S_W}, 13
            v_add_u32 v2, s39, v2
            v_add_u32 v3, 65536, v2
            """)
            for c in range(3):
                for m in range(8):
                    a = 144 + c * 32 + m * 4
                    E(f"ds_write_b128 v{2 if c < 2 else 3}, a[{a}:{a+3}] offset:{(c % 2) * 32768 + m * 1024 if c < 2 else m * 1024}")
        e1, _ = finalize_linear(E.items)
        out.extend(e1)
        return out

    def qconv(self, h, with_fill, nfill=3):
        L = V_LANE
        C = Prog()
        C(f"""
        v_mov_b32 v8, {f2u(CSCALE):#x}
        v_lshlrev_b32 v2, 4, v{L}
        v_add_u32 v2, {QX}, v2
        s_lshl_b32 s40, s{S_QH}, 14
        s_lshl_b32 s{S_TMP2}, s{S_HH}, 11
        s_add_u32 s40, s40, s{S_TMP2}
        s_lshl_b32 s{S_TMP2}, s{S_QH}, 10
        s_add_u32 s{S_XOFF}, s40, s{S_TMP2}
        s_xor_b32 s{S_TMP2}, s{S_TMP2}, 1024
        s_add_u32 s{S_WOFF}, s40, s{S_TMP2}
        v_add_u32 v3, s{S_XOFF}, v2
        v_add_u32 v4, s{S_WOFF}, v2
        s_lshl_b32 s40, s{S_HH}, 11
        s_lshl_b32 s{S_TMP2}, s{S_QH}, 10
        s_add_u32 s40, s40, s{S_TMP2}
        v_add_u32 v5, s40, v2
        """)
        def conv(k0, dst):
            t = dst + 4
            for r in range(8): C(f"v_accvgpr_read_b32 v{t+r}, a{72*h + 4*k0 + r}")
            for r in range(8): C(f"v_mul_f32 v{t+r}, v8, v{t+r}")
            for r in range(4): C(f"v_cvt_pk_bf16_f32 v{dst+r}, v{t+2*r}, v{t+2*r+1}")
        k = 0
        for t in range(4):
            for p in range(2):
                d = 120 + 12 * (k % 9); k += 1
                conv(4 * t + 2 * p, d)
                C(f"ds_write_b128 v{3+p}, {rng('v', d)} offset:{t*4096}")
        d = 120 + 12 * (k % 9)
        conv(16, d)
        C(f"ds_write_b128 v5, {rng('v', d)} offset:{8*4096}")
        if with_fill:
            RF = []
            for _ in range(nfill): RF += self.ring_groups()
            CI = Prog()
            ci = C.items
            step = max(1, len(ci) // len(RF))
            k = 0
            for i, it in enumerate(ci):
                if i % step == 0 and k < len(RF):
                    for x in RF[k]: CI(x)
                    k += 1
                CI.items.append(it)
            while k < len(RF):
                for x in RF[k]: CI(x)
                k += 1
            C = CI
        C("s_waitcnt lgkmcnt(0)\ns_barrier")
        it, _ = finalize_linear(C.items)
        o = Prog(); o.extend(it)
        return o

    def lq(self):
        L = V_LANE
        P = Prog()
        P(f"""
        v_lshlrev_b32 v2, 4, v{L}
        v_add_u32 v2, {QX}, v2
        s_lshl_b32 s39, s{S_QH}, 14
        v_add_u32 v3, s39, v2
        """)
        for t in range(4):
            for jp in range(4):
                P(f"ds_read_b128 {rng('a', q_frag(t, jp))}, v3 offset:{t*4096 + jp*1024}")
        for jp in range(4):
            P(f"ds_read_b128 {rng('a', q_frag(4, jp))}, v2 offset:{8*4096 + jp*1024}")
        P("s_waitcnt lgkmcnt(0)")
        it, _ = finalize_linear(P.items)
        o = Prog(); o.extend(it)
        return o

    def s_mfmas(self, unit, sb):
        slot, fs = unit
        M = []
        for kt in range(2):
            for jp in range(4):
                d = V_S + sb * 8 + kt * 4
                c = rng('v', V_NEGM + slot * 4) if jp == 0 else rng('v', d)
                M.append(f"v_mfma_f32_16x16x32_bf16 {rng('v', d)}, {rng('v', V_KF[fs] + (kt*4+jp)*4)}, {rng('a', q_frag(slot, jp))}, {c}")
        return M
    def pv_mfmas(self, unit, pb):
        slot, fs = unit
        M = []
        p = rng('v', V_P + pb * 4)
        for jl in range(8):
            M.append(f"v_mfma_f32_16x16x32_bf16 {rng('a', acc_o(slot, jl))}, {rng('v', V_VF[fs] + jl*4)}, {p}, {rng('a', acc_o(slot, jl))}")
        M.append(f"v_mfma_f32_16x16x32_bf16 {rng('v', V_L + slot*4)}, {rng('v', V_ONES)}, {p}, {rng('v', V_L + slot*4)}")
        return M
    def max_ops(self, unit, sb):
        slot, fs = unit
        s = V_S + sb * 8
        return [[f"v_max3_f32 v{V_MX}, v{s}, v{s+1}, v{s+2}"],
                [f"v_max3_f32 v{V_MX}, v{V_MX}, v{s+3}, v{s+4}"],
                [f"v_max3_f32 v{V_MX}, v{V_MX}, v{s+5}, v{s+6}"],
                [f"v_max_f32 v{V_MX}, v{V_MX}, v{s+7}"],
                [f"v_cmp_lt_f32 vcc, s{S_T+slot}, v{V_MX}"]]
    def check_ops(self, unit, sb):
        slot, fs = unit
        s = V_S + sb * 8
        self.uid += 1
        u = self.uid
        lab_r, lab_b = f"{self.name}_rare{u}", f"{self.name}_back{u}"
        R = Prog()
        R.label(lab_r)
        R(f"""
        s_nop 7
        v_mov_b32 v{V_T1}, v{V_MX}
        s_nop 1
        v_permlane16_swap_b32 v{V_MX}, v{V_T1}
        s_nop 1
        v_max_f32 v{V_MX}, v{V_MX}, v{V_T1}
        v_mov_b32 v{V_T1}, v{V_MX}
        s_nop 1
        v_permlane32_swap_b32 v{V_MX}, v{V_T1}
        s_nop 1
        v_max_f32 v{V_MX}, v{V_MX}, v{V_T1}
        s_ashr_i32 s{S_FL}, s{S_T+slot}, 31
        s_and_b32 s{S_FL}, s{S_FL}, 0xff800000
        s_mov_b32 s{S_T+slot}, 0x41000000
        v_max_f32 v{V_MX}, s{S_FL}, v{V_MX}
        """)
        for r in range(8): R(f"v_sub_f32 v{s+r}, v{s+r}, v{V_MX}")
        for r in range(4): R(f"v_sub_f32 v{V_NEGM+slot*4+r}, v{V_NEGM+slot*4+r}, v{V_MX}")
        R(f"s_cmp_lg_u32 s{S_FL}, 0\ns_cbranch_scc1 {lab_b}")
        R(f"v_sub_f32 v{V_T1}, 0, v{V_MX}")
        R(f"v_exp_f32 v{V_T1}, v{V_T1}")
        R("s_nop 1")
        for r in range(4): R(f"v_mul_f32 v{V_L+slot*4+r}, v{V_L+slot*4+r}, v{V_T1}")
        for r in range(0, 32, 2):
            a = A_O + slot * 32 + r
            R(f"v_accvgpr_read_b32 v{V_T2}, a{a}\nv_accvgpr_read_b32 v{V_T3}, a{a+1}\nv_mul_f32 v{V_T2}, v{V_T2}, v{V_T1}\nv_mul_f32 v{V_T3}, v{V_T3}, v{V_T1}\nv_accvgpr_write_b32 a{a}, v{V_T2}\nv_accvgpr_write_b32 a{a+1}, v{V_T3}")
        R("s_nop 2")
        R(f"s_branch {lab_b}")
        self.rare.append(R)
        return [f"s_cbranch_vccnz {lab_r}", f"{lab_b}:"]
    def exp_ops(self, unit, sb, pb):
        s = V_S + sb * 8
        p = V_P + pb * 4
        return [[f"v_exp_f32 v{s}, v{s}"], [f"v_exp_f32 v{s+1}, v{s+1}"], [f"v_exp_f32 v{s+2}, v{s+2}"],
                [f"v_cvt_pk_bf16_f32 v{p}, v{s}, v{s+1}"],
                [f"v_exp_f32 v{s+3}, v{s+3}"], [f"v_exp_f32 v{s+4}, v{s+4}"],
                [f"v_cvt_pk_bf16_f32 v{p+1}, v{s+2}, v{s+3}"],
                [f"v_exp_f32 v{s+5}, v{s+5}"], [f"v_exp_f32 v{s+6}, v{s+6}"],
                [f"v_cvt_pk_bf16_f32 v{p+2}, v{s+4}, v{s+5}"],
                [f"v_exp_f32 v{s+7}, v{s+7}"],
                [f"v_cvt_pk_bf16_f32 v{p+3}, v{s+6}, v{s+7}"]]
    def kv_reads(self, fs, which):
        G = []
        if which == 'K':
            for kt in range(2):
                for jp in range(4):
                    G.append([f"ds_read_b128 {rng('v', V_KF[fs] + (kt*4+jp)*4)}, v{V_KA+jp} offset:{kt*4096}"])
        else:
            for jl in range(8):
                a = V_VF[fs] + jl * 4
                ml, h = jl >> 1, jl & 1
                va = V_VA if fs == 'A' else V_VA2
                G.append([f"ds_read_b64_tr_b16 v[{a}:{a+1}], v{va+ml} offset:{8*h}"])
                G.append([f"ds_read_b64_tr_b16 v[{a+2}:{a+3}], v{va+ml} offset:{8*h+4096}"])
        return G
    def kv_addr(self, fs):
        va = V_VA if fs == 'A' else V_VA2
        G = [[f"v_add_u32 v{V_KA+j}, s{S_RSLOT}, v{V_KPAT+j}"] for j in range(4)]
        G += [[f"v_add_u32 v{va+j}, s{S_RSLOT}, v{V_VPAT+j}"] for j in range(4)]
        G.append([f"s_add_u32 s{S_RSLOT}, s{S_RSLOT}, {SLOT}", f"s_cmp_eq_u32 s{S_RSLOT}, {3*SLOT}", f"s_cselect_b32 s{S_RSLOT}, 0, s{S_RSLOT}"])
        return G

    def units(self, qh):
        if qh == 0: return [(0,'A'),(1,'A'),(2,'A'),(3,'A'),(4,'A'),(0,'B'),(1,'B'),(2,'B'),(3,'B')]
        return [(0,'A'),(1,'A'),(2,'A'),(3,'A'),(0,'B'),(1,'B'),(2,'B'),(3,'B'),(4,'B')]

    def attn_body(self, qh, last):
        U = self.units(qh)
        B = Prog()
        RG = self.ring_groups()
        for g in range(9):
            if g in (0, 4):
                B("s_waitcnt vmcnt(8) lgkmcnt(0)")
                if not self.x_nobar: B("s_barrier")
            M = []
            if not (last and g + 3 >= 9):
                M += self.s_mfmas(U[(g + 3) % 9], g % 3)
            M += self.pv_mfmas(U[g], g % 3)
            V = []
            head = []
            if not (last and g + 1 >= 9):
                head = self.check_ops(U[(g + 1) % 9], (g + 1) % 3)
                ex = self.exp_ops(U[(g + 1) % 9], (g + 1) % 3, (g + 1) % 3)
            else: ex = []
            mx = self.max_ops(U[(g + 2) % 9], (g + 2) % 3) if not (last and g + 2 >= 9) else []
            V = []
            ei = mi = 0
            pat = "eeemcemecemecemcm" if False else "eemeemeemeemm"
            order = []
            if self.x_nomax and ex:
                e_ = [g_ for g_ in ex if g_[0].startswith('v_exp')]
                c_ = [g_ for g_ in ex if g_[0].startswith('v_cvt')]
                pat = "e-ee-eC-ee-e-eC--"
                ei = ci = 0
                for ch in pat:
                    if ch == 'e': order.append(e_[ei]); ei += 1
                    elif ch == 'C': order.append(c_[ci] + c_[ci + 1]); ci += 2
                    else: order.append([])
            else:
                for i in range(17):
                    if i in (1, 3, 5, 7, 9) and mi < len(mx): order.append(mx[mi]); mi += 1
                    elif ei < len(ex): order.append(ex[ei]); ei += 1
                    elif mi < len(mx): order.append(mx[mi]); mi += 1
            V = order
            PF = []
            if last and self.pf_wo and self.x_nomax == self.fast and g in (0, 4):
                self.uid += 1
                lab = f"{self.name}_npf{self.uid}"
                pf = [f"s_cmp_eq_u32 s{S_ITEM}, 0", f"s_cbranch_scc1 {lab}"]
                pf += [f"s_lshl_b32 s39, s{S_W}, 14", f"s_add_u32 s39, s39, {8192 if g == 4 else 0}",
                       f"buffer_load_dword v{V_PFD}, v19, s[76:79], s39 offen"]
                if self.op_label and g == 0:
                    pf += [f"s_cmp_gt_u32 s{S_W}, 1", f"s_cbranch_scc1 {lab}",
                           f"s_getpc_b64 s[60:61]", f"{lab}_pc:",
                           f"s_add_u32 s60, s60, {self.op_label}-{lab}_pc", f"s_addc_u32 s61, s61, 0",
                           f"s_lshl_b32 s39, s{S_W}, 13", f"s_add_u32 s60, s60, s39", f"s_addc_u32 s61, s61, 0",
                           f"global_load_dword v{V_PFD}, v19, s[60:61]"]
                pf.append(f"{lab}:")
                PF = [pf]
            if last and self.pf_code2 and self.x_nomax == self.fast and g == 0:
                self.uid += 1
                lab = f"{self.name}_npc{self.uid}"
                pf = [f"s_or_b32 s39, s{S_ITEM}, s{S_W}", f"s_cmp_lg_u32 s39, 0", f"s_cbranch_scc1 {lab}",
                      f"s_getpc_b64 s[60:61]", f"{lab}_pc:",
                      f"s_add_u32 s60, s60, {self.name}_cmb-{lab}_pc", f"s_addc_u32 s61, s61, 0",
                      f"global_load_dword v{V_PFD}, v19, s[60:61]", f"{lab}:"]
                PF = PF + [pf]
            if last and self.pf1 and self.x_nomax == self.fast and g in (0, 4):
                self.uid += 1
                lab = f"{self.name}_np1{self.uid}"
                pf = [f"s_or_b32 s39, s{S_LATE}, s{S_ITEM}", f"s_cmp_lg_u32 s39, 0", f"s_cbranch_scc1 {lab}"]
                if g == 0:
                    pf += self.pf_w(f"s{S_W}", "1") + self.pf_x(f"s{S_W}")
                else:
                    pf += [f"s_add_u32 s39, s{S_W}, 4"] + self.pf_x("s39") + [f"s_add_u32 s39, s{S_W}, 8", "s_min_u32 s39, s39, 8"] + self.pf_x("s39")
                pf.append(f"{lab}:")
                PF = PF + [pf]
            KA, VA_ = (self.kv_reads('A', 'K'), self.kv_reads('A', 'V')) if not last else ([], [])
            KB, VB_ = self.kv_reads('B', 'K'), self.kv_reads('B', 'V')
            ADA = self.kv_addr('A') if not last else []
            ADB = self.kv_addr('B') if not last else []
            D, adv = self.ring_instrs()
            H = []
            Lt = []
            if g == 0: H = KB + PF + D[0:1]
            if g == 1: H = VB_[:6] + D[1:4];
            if g == 2: H = VB_[6:11] + D[4:6]; Lt = ADA[:4]
            if g == 3: H = D[6:8] + VB_[11:]; Lt = ADA[4:] + [adv]
            if g == 4: H = KA + PF + D[0:1]
            if g == 5: H = VA_[:5] + D[1:4]
            if g == 6: H = VA_[5:10] + D[4:6]; Lt = ADB[:4]
            if g == 7: H = D[6:8] + VA_[10:]; Lt = ADB[4:8]
            if g == 8: Lt = ADB[8:] + [adv]
            if self.x_nomax:
                if g == 0: H = KB + PF
                if g == 1: H = VB_[:5] + D[0:3]
                if g == 2: H = VB_[5:11] + D[3:5]
                if g == 3: H = D[5:8] + VB_[11:]
                if g == 4: H = KA[:7] + PF
                if g == 5: H = KA[7:] + D[0:2] + VA_[:4]
                if g == 6: H = D[2:4] + VA_[4:9]
                if g == 7: H = D[4:6] + VA_[9:14]
                if g == 8: H = VA_[14:] + D[6:8];
            if self.x_nodma: H = [x for x in H if not any('lds' in y and 'buffer_load' in y for y in x)]
            if self.x_nord: H = [x for x in H if not any('ds_read' in y for y in x)]
            if self.x_nosm: V = []; head = []
            if self.x_nobr: head = []
            if self.x_noX: H = []; Lt = []
            if self.x_nomax: V = [[] if (x and (x[0].startswith('v_max') or x[0].startswith('v_cmp'))) else x for x in V]; head = []
            n = len(M)
            fill = [list(V[i]) if i < len(V) else [] for i in range(n)]
            light = [i for i in range(n) if not (fill[i] and fill[i][0].startswith('v_exp'))]
            empty = [i for i in range(n) if not fill[i]]
            pos = light[:]
            if self.x_nomax and empty:
                pos = empty[:]
                more = [i for i in light if i not in pos] + [i for i in range(n) if i not in light]
                if len(H) > len(pos): pos = sorted(pos + more[:len(H) - len(pos)])
            if len(H) > len(pos):
                extra_pos = [i for i in range(n) if i not in pos][:len(H) - len(pos)]
                pos = sorted(pos + extra_pos)
            if H:
                k = len(pos)
                chosen = [pos[(j * k) // len(H)] for j in range(len(H))]
                for j, h in enumerate(H):
                    h = list(h)
                    if ' m0,' in h[0] and chosen[j] > 0 and not any('lds' in y and 'buffer_load' in y for y in fill[chosen[j] - 1]):
                        fill[chosen[j] - 1].append(h[0]); h = h[1:]
                    fill[chosen[j]] += h
            if Lt:
                has_heavy = lambda i: any(('ds_read' in y or 'buffer_load' in y) for y in fill[i])
                last_dma = max([i for i in range(n) if any('buffer_load' in y for y in fill[i])] + [-1])
                free = [i for i in light if not has_heavy(i)] + [i for i in range(n) if i not in light]
                used = set()
                for l_ in Lt:
                    need_after = last_dma if any(f"s{S_GOFF}," in y for y in l_) else -1
                    cand = [i for i in free if i not in used and i > need_after] or [n - 1]
                    if any(f"s{S_RSLOT}, s{S_RSLOT}" in y for y in l_):
                        la = max([i for i in range(n) if any(f"s{S_RSLOT}, v" in y for y in fill[i])] + [-1])
                        cand = [i for i in range(n) if i >= la]
                        cand = [max(cand[0], 0)]
                    i = cand[0]; used.add(i)
                    fill[i] += l_
            extra = V[n:]
            for x in head: B(x)
            for x in interleave(M, fill + extra): B(x)
        return B

    def attention(self, qh, tag):
        n = self.name
        U = self.units(qh)
        P = Prog()
        for r in range(20): P(f"v_mov_b32 v{V_L + r}, 0\nv_mov_b32 v{V_NEGM + r}, 0")
        P("s_nop 1")
        for r in range(0, 160, 4): P(f"v_mfma_f32_16x16x32_bf16 a[{A_O + r}:{A_O + r + 3}], v[{V_L}:{V_L+3}], v[{V_L}:{V_L+3}], 0")
        for s in range(5): P(f"s_mov_b32 s{S_T+s}, 0xff800000")
        P("s_waitcnt vmcnt(16)\ns_barrier")
        for g in self.kv_addr('A') + self.kv_reads('A', 'K') + self.kv_reads('A', 'V') + self.kv_addr('B'):
            for x in g: P(x)
        for x in self.s_mfmas(U[0], 0) + self.s_mfmas(U[1], 1) + self.s_mfmas(U[2], 2): P(x)
        if not self.x_nomax:
            for g in self.max_ops(U[0], 0):
                for x in g: P(x)
            P("s_nop 3")
            for x in self.check_ops(U[0], 0): P(x)
        for g in self.exp_ops(U[0], 0, 0) + (self.max_ops(U[1], 1) if not self.x_nomax else []):
            for x in g: P(x)
        P(f"s_waitcnt lgkmcnt(0)\ns_mov_b32 s{S_CNT}, 7")
        pre, _ = finalize_linear(P.items)
        out = Prog(); out.extend(pre)
        body, _ = finalize_loop(self.attn_body(qh, False).items)
        if self.stamps:
            self.stamp(out, 5)
        out.label(f"{n}_at{tag}")
        out.extend(body)
        out(f"s_sub_u32 s{S_CNT}, s{S_CNT}, 1\ns_cmp_lg_u32 s{S_CNT}, 0\ns_cbranch_scc1 {n}_at{tag}")
        if self.stamps:
            self.stamp(out, 6)
        lastb = self.attn_body(qh, True)
        l1, f = auto_lgkm(body, None)
        l2, _ = auto_lgkm(lastb.items, f)
        l3 = fix_hazards(l2, wrap=body)
        out.extend(l3)
        return out

    def combine(self, qh):
        L = V_LANE
        E = Prog()
        MLO = 32768
        if self.cstamp: E(f"s_waitcnt lgkmcnt(0)\ns_memtime s[48:49]\ns_waitcnt lgkmcnt(0)\ns_cmp_eq_u32 s{S_ITEM}, 0\ns_cselect_b32 s82, s48, s82")
        E("s_nop 7\ns_waitcnt lgkmcnt(0)\ns_barrier")
        if self.cstamp: E(f"s_waitcnt lgkmcnt(0)\ns_memtime s[48:49]\ns_waitcnt lgkmcnt(0)\ns_cmp_eq_u32 s{S_ITEM}, 0\ns_cselect_b32 s83, s48, s83")
        E(f"""
        v_lshlrev_b32 v2, 2, v{L}
        v_add_u32 v2, {STG + MLO}, v2
        s_mul_i32 s39, s{S_W}, 2560
        v_add_u32 v3, s39, v2
        v_lshlrev_b32 v8, 4, v{L}
        v_add_u32 v8, {STG}, v8
        s_lshl_b32 s39, s{S_W}, 13
        s_lshl_b32 s40, s{S_HH}, 12
        s_add_u32 s{S_TMP2}, s39, s40
        v_add_u32 v5, s{S_TMP2}, v8
        s_xor_b32 s{S_TMP2}, s{S_TMP2}, 4096
        v_add_u32 v6, s{S_TMP2}, v8
        """)
        for s_ in range(5):
            E(f"ds_write_b32 v3, v{V_NEGM + s_*4} offset:{s_*512}")
            E(f"ds_write_b32 v3, v{V_L + s_*4} offset:{s_*512 + 256}")
        for jl in range(8):
            E(f"ds_write_b128 v{5 + (jl >> 2)}, {rng('a', acc_o(4, jl))} offset:{(jl & 3)*1024}")
        E(f"""s_mov_b64 s[72:73], 0
        s_mov_b32 s{S_XRB}, 0x21800000
        v_mov_b32 v{V_T3}, 0x5d800000
        v_mov_b32 v{V_P}, 0
        v_mov_b32 v{V_P+1}, 0
        v_mov_b32 v{V_P+2}, 0
        v_mov_b32 v{V_P+3}, 0
        s_xor_b32 s39, s{S_W}, 2
        s_mul_i32 s39, s39, 2560
        v_add_u32 v4, s39, v2
        s_lshl_b32 s39, s{S_W}, 11
        v_add_u32 v5, s39, v8
        v_and_b32 v6, 15, v{L}
        v_lshlrev_b32 v6, 8, v6
        v_lshrrev_b32 v7, 4, v{L}
        v_lshlrev_b32 v7, 4, v7
        v_add_u32 v7, v6, v7
        s_mul_i32 s{S_XOFF}, s{S_ITEM}, 36864
        s_lshl_b32 s{S_WOFF}, s{S_W}, 6
        s_add_u32 s{S_WOFF}, s{S_WOFF}, {128*256}
        s_add_u32 s{S_WOFF}, s{S_WOFF}, s{S_XOFF}
        s_lshl_b32 s39, s{S_QH}, 14
        s_lshl_b32 s40, s{S_HH}, 7
        s_add_u32 s39, s39, s40
        s_add_u32 s{S_XOFF}, s{S_XOFF}, s39
        """)
        E("s_waitcnt lgkmcnt(0)\ns_barrier")
        if self.cstamp: E(f"s_waitcnt lgkmcnt(0)\ns_memtime s[48:49]\ns_waitcnt lgkmcnt(0)\ns_cmp_eq_u32 s{S_ITEM}, 0\ns_cselect_b32 s84, s48, s84")
        for s_ in range(4):
            E(f"ds_read_b32 v{120 + 2*s_}, v4 offset:{s_*512}")
            E(f"ds_read_b32 v{121 + 2*s_}, v4 offset:{s_*512 + 256}")
        for ww in range(4):
            E(f"ds_read_b32 v{128 + 2*ww}, v2 offset:{ww*2560 + 4*512}")
            E(f"ds_read_b32 v{129 + 2*ww}, v2 offset:{ww*2560 + 4*512 + 256}")
        for ww in range(4):
            for x in range(2):
                E(f"ds_read_b128 {rng('v', 160 + (ww*2+x)*4)}, v5 offset:{ww*8192 + x*1024}")
        E(f"""
        s_lshl_b32 s39, s{S_W}, 14
        v_add_u32 v3, s39, v8
        s_xor_b32 s39, s39, {2 << 14}
        v_add_u32 v4, s39, v8
        """)
        for s_ in range(4):
            for r in range(16):
                E(f"v_accvgpr_read_b32 v{192 + 16*(s_ % 3) + r if s_ < 3 else 96 + r}, a{acc_o(s_, 0) + r}")
        E("s_waitcnt lgkmcnt(0)\ns_barrier")
        if self.cstamp: E(f"s_waitcnt lgkmcnt(0)\ns_memtime s[48:49]\ns_waitcnt lgkmcnt(0)\ns_cmp_eq_u32 s{S_ITEM}, 0\ns_cselect_b32 s85, s48, s85")
        for s_ in range(4):
            for x in range(4):
                E(f"ds_write_b128 v3, {rng('a', acc_o(s_, 4 + x))} offset:{(s_*4+x)*1024}")
        for s_ in range(4):
            nm, l_ = V_NEGM + 4 * s_, V_L + 4 * s_
            no, lo = 120 + 2 * s_, 121 + 2 * s_
            E(f"""
            v_min_f32 v2, v{nm}, v{no}
            v_sub_f32 v6, v2, v{nm}
            v_sub_f32 v5, v2, v{no}
            v_exp_f32 v6, v6
            v_exp_f32 v5, v5
            s_nop 0
            v_mul_f32 v9, v6, v{l_}
            v_fma_f32 v9, v5, v{lo}, v9
            v_cmp_nge_f32 s[60:61], v9, s{S_XRB}
            v_cmp_nle_f32 vcc, v9, v{V_T3}
            v_rcp_f32 v9, v9
            s_or_b64 s[72:73], s[72:73], s[60:61]
            s_or_b64 s[72:73], s[72:73], vcc
            v_mul_f32 v{136+4*s_}, v6, v9
            v_mul_f32 v{137+4*s_}, v6, v9
            v_mul_f32 v{138+4*s_}, v5, v9
            v_mul_f32 v{139+4*s_}, v5, v9
            """)
        E(f"""
        v_min_f32 v2, v128, v130
        v_min_f32 v6, v132, v134
        v_min_f32 v2, v2, v6
        """)
        for ww in range(4):
            E(f"v_sub_f32 v{152+2*ww}, v2, v{128+2*ww}\nv_exp_f32 v{152+2*ww}, v{152+2*ww}")
        E(f"""
        s_nop 0
        v_mul_f32 v9, v152, v129
        v_fma_f32 v9, v154, v131, v9
        v_fma_f32 v9, v156, v133, v9
        v_fma_f32 v9, v158, v135, v9
        v_cmp_nge_f32 s[60:61], v9, s{S_XRB}
        v_cmp_nle_f32 vcc, v9, v{V_T3}
        v_rcp_f32 v9, v9
        s_or_b64 s[72:73], s[72:73], s[60:61]
        s_or_b64 s[72:73], s[72:73], vcc
        """)
        for ww in range(4): E(f"v_mul_f32 v{152+2*ww}, v{152+2*ww}, v9\nv_mov_b32 v{153+2*ww}, v{152+2*ww}")
        for r in range(8):
            E(f"v_mul_f32 v{112+r}, v{160+r}, v152")
        for ww in range(1, 4):
            for r in range(8):
                E(f"v_fma_f32 v{112+r}, v{160+ww*8+r}, v{152+2*ww}, v{112+r}")
        for r in range(4):
            E(f"v_fma_f32 v{V_P+2}, v{112+2*r}, v{V_P}, v{V_P+2}")
            E(f"v_fma_f32 v{V_P+3}, v{113+2*r}, v{V_P}, v{V_P+3}")
            E(f"v_cvt_pk_bf16_f32 v{V_P+4+r}, v{112+2*r}, v{113+2*r}")
        E(f"buffer_store_dwordx4 {rng('v', V_P+4)}, v7, s[20:23], s{S_WOFF} offen{self.st_flags}")
        mine = lambda s_: (192 + 16 * s_) if s_ < 3 else 96
        for s_ in range(4):
            for r in range(16):
                E(f"v_mul_f32 v{mine(s_)+r}, v{mine(s_)+r}, v{136+4*s_}")
        if self.cstamp: E(f"s_waitcnt lgkmcnt(0)\ns_memtime s[48:49]\ns_waitcnt lgkmcnt(0)\ns_cmp_eq_u32 s{S_ITEM}, 0\ns_cselect_b32 s86, s48, s86")
        E("s_waitcnt lgkmcnt(0)\ns_barrier")
        if self.cstamp: E(f"s_waitcnt lgkmcnt(0)\ns_memtime s[48:49]\ns_waitcnt lgkmcnt(0)\ns_cmp_eq_u32 s{S_ITEM}, 0\ns_cselect_b32 s87, s48, s87")
        recv = lambda s_: 160 + 16 * (s_ % 2)
        def rd(s_):
            for x in range(4):
                E(f"ds_read_b128 {rng('v', recv(s_) + 4*x)}, v4 offset:{(s_*4+x)*1024}")
        rd(0); rd(1)
        for s_ in range(4):
            m_, rc = mine(s_), recv(s_)
            for r in range(16):
                E(f"v_fma_f32 v{m_+r}, v{rc+r}, v{138+4*s_}, v{m_+r}")
            if s_ + 2 < 4: rd(s_ + 2)
            pk = 56 + 8 * s_
            for r in range(8):
                E(f"v_fma_f32 v{V_P+2}, v{m_+2*r}, v{V_P}, v{V_P+2}")
                E(f"v_fma_f32 v{V_P+3}, v{m_+2*r+1}, v{V_P}, v{V_P+3}")
                E(f"v_cvt_pk_bf16_f32 v{pk+r}, v{m_+2*r}, v{m_+2*r+1}")
            E(f"s_add_u32 s39, s{S_XOFF}, {s_*4096}")
            for p in range(2):
                E(f"buffer_store_dwordx4 {rng('v', pk+4*p)}, v7, s[20:23], s39 offen offset:{64*p}{self.st_flags}")
        E(f"""
        v_cmp_u_f32 vcc, v{V_P+2}, v{V_P+3}
        s_nop 1
        s_or_b64 s[72:73], s[72:73], vcc
        s_cmp_lg_u64 s[72:73], 0
        s_cselect_b32 s39, 1, {1 if self.force_bad else 0}
        s_xor_b32 s40, s{S_SAFE}, 1
        s_and_b32 s39, s39, s40
        s_lshl_b32 s39, s39, s{S_ITEM}
        s_or_b32 s{S_BAD}, s{S_BAD}, s39
        s_waitcnt lgkmcnt(0)
        """)
        if self.cstamp: E(f"s_waitcnt lgkmcnt(0)\ns_memtime s[48:49]\ns_waitcnt lgkmcnt(0)\ns_cmp_eq_u32 s{S_ITEM}, 0\ns_cselect_b32 s88, s48, s88")
        it, _ = finalize_linear(E.items)
        o = Prog(); o.extend(it)
        return o

    def agree_bad(self):
        E = Prog()
        E(f"""
        s_barrier
        v_mov_b32 v5, {STG}
        s_lshl_b32 s40, s{S_W}, 2
        v_add_u32 v6, s40, v5
        v_mov_b32 v3, s{S_BAD}
        ds_write_b32 v6, v3
        s_waitcnt lgkmcnt(0)
        s_barrier
        ds_read_b128 v[120:123], v5
        s_waitcnt lgkmcnt(0)
        v_or_b32 v120, v120, v121
        v_or_b32 v122, v122, v123
        v_or_b32 v120, v120, v122
        s_nop 0
        v_readfirstlane_b32 s{S_BAD}, v120
        s_nop 3
        """)
        it, _ = finalize_linear(E.items)
        o = Prog(); o.extend(it)
        return o

    def stamp(self, out, idx_expr, sel=None):
        if not self.stamps: return
        if (self.qstamp or self.cstamp) and idx_expr not in (0, 1): return
        base = idx_expr
        u = self.nst; self.nst += 1
        out(f"""s_waitcnt lgkmcnt(0)
        {'s_memrealtime' if (self.dbg_stamps is not None or self.dbg_rt) else 's_memtime'} s[72:73]
        s_waitcnt lgkmcnt(0)
        s_cmp_eq_u32 s{sel if sel is not None else S_ITEM}, 0
        s_cselect_b32 s{80+base}, s72, s{80+base}
        s_cselect_b32 s{88+base}, s{88+base}, s72""")

    def build(self):
        n = self.name
        out = Prog()
        st, _ = finalize_linear(self.setup().items)
        out.extend(st)
        cold = Prog()
        out.label(f"{n}_qpL")
        self.stamp(out, 0)
        out.extend(self.qp2('x'))
        out(f"s_cmp_lg_u32 s{S_SAFE}, 0\ns_cbranch_scc1 {n}_qredo")
        out.extend(self.qconv(0, not self.kvreg, 1))
        out.extend(self.lq())
        out("s_barrier")
        out.extend(self.qconv(1, not self.kvreg, 2))
        out.label(f"{n}_qdone")
        cold.label(f"{n}_qredo")
        cold(f"s_cmp_lg_u32 s{S_ITEM}, 0\ns_cbranch_scc1 {n}_qredo1")
        cold.extend(self.qconv(0, not self.kvreg))
        cold(f"s_branch {n}_qredo2")
        cold.label(f"{n}_qredo1")
        cold.extend(self.qconv(1, not self.kvreg))
        cold.label(f"{n}_qredo2")
        cold.extend(self.lq())
        cold(f"s_branch {n}_safe")
        self.stamp(out, 1)
        out.label(f"{n}_att")
        self.stamp(out, 2)
        out(f"s_cmp_lg_u32 s{S_QH}, 0\ns_cbranch_scc1 {n}_q1")
        self.x_nomax = self.fast
        out.extend(self.attention(0, 'a'))
        out(f"s_branch {n}_cmb")
        out.label(f"{n}_q1")
        out.extend(self.attention(1, 'b'))
        cold.label(f"{n}_safe")
        self.x_nomax = False
        st, self.stamps = self.stamps, False
        cold(f"s_cmp_lg_u32 s{S_QH}, 0\ns_cbranch_scc1 {n}_sq1")
        cold.extend(self.attention(0, 'c'))
        cold(f"s_branch {n}_cmb")
        cold.label(f"{n}_sq1")
        cold.extend(self.attention(1, 'd'))
        cold(f"s_branch {n}_cmb")
        self.stamps = st
        out.label(f"{n}_cmb")
        self.stamp(out, 3)
        out(f"s_or_b32 s39, s{S_ITEM}, s{S_SAFE}\ns_cmp_lg_u32 s39, 0\ns_cbranch_scc1 {n}_nolq")
        out.extend(self.lq())
        out.label(f"{n}_nolq")
        out.extend(self.combine(0))
        self.stamp(out, 4)
        out(f"s_cmp_lg_u32 s{S_SAFE}, 0\ns_cbranch_scc1 {n}_redo")
        out(f"s_add_u32 s{S_ITEM}, s{S_ITEM}, 1\ns_cmp_ge_u32 s{S_ITEM}, 2\ns_cbranch_scc1 {n}_agree")
        out(f"s_branch {n}_att")
        out.label(f"{n}_agree")
        out.extend(self.agree_bad())
        out.label(f"{n}_redo")
        out(f"s_cmp_eq_u32 s{S_BAD}, 0\ns_cbranch_scc1 {n}_fin")
        out(f"""s_and_b32 s39, s{S_BAD}, 1
        s_xor_b32 s{S_ITEM}, s39, 1
        s_lshl_b32 s39, 1, s{S_ITEM}
        s_andn2_b32 s{S_BAD}, s{S_BAD}, s39
        s_mov_b32 s{S_SAFE}, 1
        s_lshl_b32 s{S_GOFF}, s{S_ITEM}, 18
        s_mov_b32 s{S_DSLOT}, s{S_DBASE}
        s_mov_b32 s{S_RSLOT}, 0
        s_branch {n}_qpL""")
        out.label(f"{n}_fin")
        self.cold = cold
        if self.stamps and self.dbg_stamps is not None:
            out(f"""s_cmp_lg_u32 s2, {self.dbg_stamps}
            s_cbranch_scc1 {n}_done
            s_cmp_lg_u32 s{S_W}, 0
            s_cbranch_scc1 {n}_done
            s_memrealtime s[72:73]
            s_waitcnt lgkmcnt(0)
            s_mov_b32 s95, s72
            s_add_u32 s68, s68, {64 << 20}
            s_addc_u32 s69, s69, 0
            v_mov_b32 v2, 0""")
            for i in range(16):
                out(f"v_mov_b32 v3, s{80+i}\nglobal_store_dword v2, v3, s[68:69] offset:{4*i}")
        elif self.stamps:
            out(f"""s_lshl_b32 s39, s2, 2
            s_add_u32 s39, s39, s{S_W}
            s_lshl_b32 s39, s39, 6
            s_add_u32 s39, s39, {64 << 20}
            s_add_u32 s68, s68, s39
            s_addc_u32 s69, s69, 0
            v_mov_b32 v2, 0""")
            for i in range(16):
                out(f"v_mov_b32 v3, s{80+i}\nglobal_store_dword v2, v3, s[68:69] offset:{4*i}")
        out.label(f"{n}_done")
        out("s_endpgm")
        out.extend(self.cold)
        labs = {it.text for it in out.items if it.kind == 'label'}
        for r in self.rare:
            back = r.items[-1].ops[0] + ':'
            if back in labs: out.extend(r)
        return kernel_text(n, out.text(), vgpr=512, sgpr=102, acc=256), LDS_TOTAL

if __name__ == '__main__':
    import sys
    b = dict(nt_w=True, dbg_rt=True)
    variants = [('fa_a_kernel', dict(b))]
    hdr = ''; body = ''
    for nm, kw in variants:
        txt, lds = FA(name=nm, stamps=True, **kw).build()
        hdr += f"; @launch kernel={nm} grid=(256,1,1) block=(256,1,1) lds={lds}\n"
        body += txt
    open('fa.s', 'w').write(hdr + '.amdgcn_target "amdgcn-amd-amdhsa--gfx950"\n.text\n' + body)
```

```python
from asmlib import *

O_WS_OFF = 0
XCH_OFF = 32 << 20
FLAG_OFF = 48 << 20
STG = 34816
WOFF = 18432
NB = 4

def rng(f, b, n=4): return f"{f}[{b}:{b+n-1}]"

def gen_oproj(name='oproj_kernel', stamps=False, rt=False, dbg=False, nt_w=False, xfl=' sc1'):
    RT = 's_memrealtime' if (dbg or rt) else 's_memtime'
    ntw = ' nt' if nt_w else ''
    P = Prog()
    def stamp(X, i):
        if stamps: X(f"s_waitcnt lgkmcnt(0)\n{RT} s[50:51]\ns_waitcnt lgkmcnt(0)\ns_mov_b32 s{60+i}, s50")
    P(f"""
    s_cmp_ge_u32 s2, 256
    s_cbranch_scc1 {name}_done
    s_load_dwordx2 s[4:5], s[0:1], 96
    s_load_dwordx2 s[6:7], s[0:1], 80
    s_load_dwordx2 s[8:9], s[0:1], 32
    s_load_dwordx2 s[10:11], s[0:1], 72
    v_lshrrev_b32 v1, 6, v0
    v_and_b32 v2, 63, v0
    v_readfirstlane_b32 s24, v1
    s_and_b32 s32, s2, 7
    s_lshr_b32 s33, s2, 3
    s_lshr_b32 s25, s32, 2
    s_and_b32 s28, s33, 1
    s_and_b32 s34, s32, 1
    s_lshl_b32 s34, s34, 2
    s_lshr_b32 s35, s33, 1
    s_and_b32 s35, s35, 3
    s_add_u32 s26, s34, s35
    s_lshr_b32 s34, s32, 1
    s_and_b32 s34, s34, 1
    s_lshl_b32 s34, s34, 2
    s_lshr_b32 s35, s33, 3
    s_add_u32 s27, s34, s35
    s_and_b32 s29, s24, 1
    s_lshr_b32 s30, s24, 1
    """)
    P("v_lshlrev_b32 v10, 4, v2")
    for x in range(5):
        P(f"""
        s_mul_i32 s32, s24, 5
        s_add_u32 s32, s32, {x}
        s_cmp_gt_u32 s32, 17
        s_cselect_b32 s33, 2, 0
        s_sub_u32 s32, s32, s33
        s_lshl_b32 s{70+x}, s32, 10
        s_and_b32 s33, s32, 1
        s_lshr_b32 s32, s32, 1
        s_lshl_b32 s32, s32, 2
        s_add_u32 s32, s32, s33
        s_lshl_b32 s32, s32, 10
        v_add_u32 v{146+x}, s32, v10
        """)
    P("""
    v_lshrrev_b32 v3, 4, v2
    v_and_b32 v4, 15, v2
    v_lshlrev_b32 v5, 2, v3
    v_xor_b32 v4, v4, v5
    v_lshlrev_b32 v4, 4, v4
    v_lshlrev_b32 v3, 11, v3
    v_add_u32 v10, v3, v4
    """)
    for x in range(4):
        P(f"""
        s_lshl_b32 s32, s24, 2
        s_add_u32 s32, s32, {x}
        s_and_b32 s33, s32, 7
        s_lshr_b32 s33, s33, 1
        s_lshl_b32 s33, s33, 4
        v_xor_b32 v11, s33, v10
        s_lshl_b32 s32, s32, 13
        v_add_u32 v{151+x}, s32, v11
        """)
    P(f"s_lshl_b32 s75, s24, 12\ns_add_u32 s75, s75, {WOFF}")
    P("s_waitcnt lgkmcnt(0)")
    stamp(P, 0)
    P(f"""
    s_add_u32 s52, s4, {FLAG_OFF}
    s_addc_u32 s53, s5, 0
    s_lshl_b32 s32, s25, 3
    s_add_u32 s32, s32, s26
    s_mul_i32 s32, s32, {32*36864}
    s_add_u32 s12, s4, s32
    s_addc_u32 s13, s5, 0
    s_and_b32 s13, s13, 0xffff
    s_mov_b32 s14, {32*36864}
    s_mov_b32 s15, 0x20000
    s_cmp_eq_u32 s25, 0
    s_cselect_b32 s16, s8, s10
    s_cselect_b32 s17, s9, s11
    s_lshl_b32 s32, s27, 8
    s_add_u32 s16, s16, s32
    s_addc_u32 s17, s17, 0
    s_and_b32 s17, s17, 0xffff
    s_sub_u32 s18, {4096*2048}, s32
    s_mov_b32 s19, 0x20000
    s_mul_i32 s36, s28, {16*36864}
    s_add_u32 s38, s36, {16*36864}
    s_lshl_b32 s37, s28, 22
    s_add_u32 s39, s37, {1 << 22}
    s_mov_b32 s40, 0
    """)
    def dma_groups(buf):
        L = [[f"s_cmp_lt_u32 s36, s38", f"s_cselect_b32 s41, s36, {32*36864}", f"s_cselect_b32 s42, s37, {4096*2048}"]]
        for x in range(5):
            L.append([f"s_add_u32 m0, s{70+x}, {buf*STG}", f"buffer_load_dwordx4 v{146+x}, s[12:15], s41 offen lds"])
        for x in range(4):
            L.append([f"s_add_u32 m0, s75, {buf*STG + x*1024}", f"buffer_load_dwordx4 v{151+x}, s[16:19], s42 offen{ntw} lds"])
        step = 2048 if (buf & 1) == 0 else 36864 - 2048
        L.append([f"s_add_u32 s36, s36, {step}", f"s_add_u32 s37, s37, {64*2048}"])
        return L
    for g in dma_groups(0):
        for x in g: P(x)
    P(f"""
    v_lshrrev_b32 v4, 4, v2
    v_lshlrev_b32 v5, 4, v2
    s_lshl_b32 s32, s29, 10
    v_add_u32 v140, s32, v5
    v_add_u32 v141, {2*STG}, v140
    v_lshrrev_b32 v3, 2, v2
    v_and_b32 v3, 3, v3
    v_and_b32 v5, 3, v2
    v_xor_b32 v5, v5, v4
    v_lshlrev_b32 v5, 4, v5
    v_lshlrev_b32 v6, 6, v3
    v_add_u32 v5, v5, v6
    v_lshlrev_b32 v6, 3, v4
    v_add_u32 v6, v6, v3
    v_lshlrev_b32 v6, 8, v6
    s_lshl_b32 s32, s29, 13
    s_add_u32 s32, s32, {WOFF}
    v_add_u32 v6, s32, v6
    """)
    for p in range(2):
        P(f"""
        s_xor_b32 s32, s29, {p}
        s_lshl_b32 s33, s30, 1
        s_add_u32 s32, s32, s33
        s_lshl_b32 s32, s32, 6
        v_xor_b32 v7, s32, v5
        v_add_u32 v{142+p}, v6, v7
        v_add_u32 v{144+p}, {2*STG}, v{142+p}
        """)
    for b in range(1, NB):
        for g in dma_groups(b):
            for x in g: P(x)
    for r in range(144):
        P(f"v_accvgpr_write_b32 a{r}, 0")
    FB = [32, 32 + 52]
    def reads(setk, buf):
        b = FB[setk]
        hi = buf >> 1
        off = (buf & 1) * STG
        L = []
        for jl in range(4):
            a = b + 36 + 4 * jl
            p, h = jl >> 1, jl & 1
            L.append([f"ds_read_b64_tr_b16 v[{a}:{a+1}], v{142+2*hi+p} offset:{off + 8*h}"])
            L.append([f"ds_read_b64_tr_b16 v[{a+2}:{a+3}], v{142+2*hi+p} offset:{off + 8*h + 1024}"])
        for t in range(9):
            L.append([f"ds_read_b128 v[{b+4*t}:{b+4*t+3}], v{140+hi} offset:{off + t*2048}"])
        return L
    def mfmas(setk):
        b = FB[setk]
        L = []
        for t in range(9):
            for j in range(4):
                a = b + 36 + 4 * j
                acc = 16 * t + 4 * j
                L.append(f"v_mfma_f32_16x16x32_bf16 a[{acc}:{acc+3}], v[{a}:{a+3}], v[{b+4*t}:{b+4*t+3}], a[{acc}:{acc+3}]")
        return L
    P(f"s_waitcnt vmcnt({9*(NB-1)})\ns_barrier")
    for g in reads(0, 0):
        for x in g: P(x)
    P("s_waitcnt lgkmcnt(0)")
    stamp(P, 1)
    P("s_mov_b32 s31, 8")
    pre, _ = finalize_linear(P.items)
    out = Prog(); out.extend(pre)
    body = Prog()
    for r in range(NB):
        cur, nxt = r & 1, 1 - (r & 1)
        body(f"s_waitcnt vmcnt({9*(NB-2)}) lgkmcnt(0)")
        body("s_barrier")
        M = mfmas(cur)
        R = reads(nxt, (r + 1) % NB)
        D = dma_groups(r)
        fill = [[] for _ in M]
        hv = []
        ri = di = 0
        while ri < len(R) or di < len(D):
            if di < len(D): hv.append(D[di]); di += 1
            for _ in range(2):
                if ri < len(R): hv.append(R[ri]); ri += 1
        k = 0
        for g in hv:
            pos = min(k, len(M) - 1)
            if 'm0' in g[0] and pos > 0 and not any('buffer_load' in y for y in fill[pos - 1]):
                fill[pos - 1].append(g[0]); fill[pos] += g[1:]
            else: fill[pos] += g
            if any(('ds_read' in y or 'buffer_load' in y) for y in g): k += 1
        for m, f in zip(M, fill):
            body(m)
            for x in f: body(x)
    body("s_sub_u32 s31, s31, 1")
    body("s_cmp_lg_u32 s31, 0")
    b_items, fifo = finalize_loop(body.items)
    out.label(f"{name}_loop")
    out.extend(b_items)
    out(f"s_cbranch_scc1 {name}_loop")
    E = Prog()
    stamp(E, 2)
    E("s_waitcnt vmcnt(0) lgkmcnt(0)\ns_nop 7\ns_barrier")
    E(f"""
    v_lshlrev_b32 v3, 4, v2
    s_mul_i32 s32, s24, 18432
    v_add_u32 v4, s32, v3
    s_xor_b32 s33, s24, 1
    s_mul_i32 s33, s33, 18432
    v_add_u32 v5, s33, v3
    """)
    for t in range(9):
        for x in range(2):
            acc = 16 * t + 8 + 4 * x
            E(f"ds_write_b128 v4, a[{acc}:{acc+3}] offset:{(t*2+x)*1024}")
    for t in range(9):
        for r in range(8): E(f"v_accvgpr_read_b32 v{32+8*t+r}, a{16*t+r}")
    E(f"""
    s_lshl_b32 s32, s2, 1
    s_add_u32 s32, s32, s29
    s_mul_i32 s32, s32, 18432
    s_add_u32 s44, s4, s32
    s_addc_u32 s45, s5, 0
    s_add_u32 s44, s44, {XCH_OFF}
    s_addc_u32 s45, s45, 0
    s_and_b32 s45, s45, 0xffff
    s_mov_b32 s46, 18432
    s_mov_b32 s47, 0x20000
    s_xor_b32 s33, s2, 8
    s_lshl_b32 s32, s33, 1
    s_add_u32 s32, s32, s29
    s_mul_i32 s32, s32, 18432
    s_add_u32 s56, s4, s32
    s_addc_u32 s57, s5, 0
    s_add_u32 s56, s56, {XCH_OFF}
    s_addc_u32 s57, s57, 0
    s_and_b32 s57, s57, 0xffff
    s_mov_b32 s58, 18432
    s_mov_b32 s59, 0x20000
    """)
    E("s_waitcnt lgkmcnt(0)\ns_barrier")
    for half in range(2):
        ts = range(0, 5) if half == 0 else range(5, 9)
        for t in ts:
            for x in range(2):
                E(f"ds_read_b128 {rng('v', 104 + 8*(t % 5) + 4*x)}, v5 offset:{(t*2+x)*1024}")
        for t in ts:
            for r in range(8): E(f"v_add_f32 v{32+8*t+r}, v{32+8*t+r}, v{104+8*(t % 5)+r}")
    E(f"s_cmp_eq_u32 s30, s28\ns_cbranch_scc1 {name}_keep")
    for t in range(9):
        for x in range(2):
            E(f"buffer_store_dwordx4 {rng('v', 32+8*t+4*x)}, v3, s[44:47], 0 offen offset:{0}{xfl}" .replace("0 offen offset:0", f"s{76} offen") if False else f"s_mov_b32 s76, {(t*2+x)*1024}\nbuffer_store_dwordx4 {rng('v', 32+8*t+4*x)}, v3, s[44:47], s76 offen{xfl}")
    E(f"""
    s_waitcnt vmcnt(0)
    s_xor_b32 s33, s2, 8
    s_lshl_b32 s33, s33, 7
    s_lshl_b32 s34, s29, 2
    s_add_u32 s33, s33, s34
    v_mov_b32 v6, s33
    v_mov_b32 v7, 1
    s_mov_b64 exec, 1
    global_store_dword v6, v7, s[52:53] sc1
    s_mov_b64 exec, -1
    s_branch {name}_sync
    """)
    E.label(f"{name}_keep")
    E(f"""
    s_lshl_b32 s33, s2, 7
    s_lshl_b32 s34, s29, 2
    s_add_u32 s33, s33, s34
    v_mov_b32 v6, s33
    s_mov_b32 s35, 0x100000
    """)
    E.label(f"{name}_poll")
    E(f"""
    global_load_dword v7, v6, s[52:53] sc1
    s_waitcnt vmcnt(0)
    v_readfirstlane_b32 s33, v7
    s_sub_u32 s35, s35, 1
    s_cmp_eq_u32 s33, 1
    s_cbranch_scc1 {name}_sync
    s_sleep 1
    s_cmp_lg_u32 s35, 0
    s_cbranch_scc1 {name}_poll
    """)
    E.label(f"{name}_sync")
    stamp(E, 4)
    E("s_barrier")
    E(f"s_cmp_lg_u32 s30, s28\ns_cbranch_scc1 {name}_fin")
    for t in range(9):
        for x in range(2):
            E(f"s_mov_b32 s76, {(t*2+x)*1024}\nbuffer_load_dwordx4 {rng('v', 104 + 8*t + 4*x if t < 4 else 160 + 8*(t-4) + 4*x)}, v3, s[56:59], s76 offen{' sc1' if xfl else ''}")
    E(f"""
    s_mul_i32 s32, s26, {144*4096}
    s_lshl_b32 s33, s25, 11
    s_add_u32 s32, s32, s33
    s_lshl_b32 s33, s27, 8
    s_add_u32 s32, s32, s33
    s_lshl_b32 s33, s30, 7
    s_add_u32 s32, s32, s33
    s_lshl_b32 s33, s29, 6
    s_add_u32 s32, s32, s33
    s_add_u32 s20, s6, s32
    s_addc_u32 s21, s7, 0
    s_and_b32 s21, s21, 0xffff
    s_sub_u32 s22, {8*144*4096}, s32
    s_mov_b32 s23, 0x20000
    v_and_b32 v9, 15, v2
    v_lshlrev_b32 v9, 12, v9
    v_lshrrev_b32 v21, 4, v2
    v_lshlrev_b32 v21, 4, v21
    v_add_u32 v9, v9, v21
    """)
    for t in range(9):
        src = 104 + 8 * t if t < 4 else 160 + 8 * (t - 4)
        E(f"s_waitcnt vmcnt({2*(8-t) + t})")
        for r in range(8): E(f"v_add_f32 v{32+8*t+r}, v{32+8*t+r}, v{src+r}")
        for r in range(4): E(f"v_cvt_pk_bf16_f32 v{208+4*(t % 3)+r}, v{32+8*t+2*r}, v{33+8*t+2*r}")
        E(f"s_mov_b32 s33, {t*16*4096}")
        E(f"buffer_store_dwordx4 {rng('v', 208+4*(t % 3))}, v9, s[20:23], s33 offen")
    E.label(f"{name}_fin")
    stamp(E, 3)
    if stamps and not dbg:
        E(f"""s_lshl_b32 s32, s2, 2
        s_add_u32 s32, s32, s24
        s_lshl_b32 s32, s32, 6
        s_add_u32 s32, s32, {(64 << 20) + (1 << 17)}
        s_add_u32 s4, s4, s32
        s_addc_u32 s5, s5, 0
        v_mov_b32 v2, 0""")
        for i in range(5):
            E(f"v_mov_b32 v3, s{60+i}\nglobal_store_dword v2, v3, s[4:5] offset:{4*i}")
    e_items, _ = finalize_linear(E.items)
    out.extend(e_items)
    out.label(f"{name}_done")
    out("s_endpgm")
    return kernel_text(name, out.text(), vgpr=400, sgpr=96, acc=256), NB * STG
```

```python
import sys, importlib
sys.path.insert(0, 'gen')
import fa as fa_mod, fa_v2, fa_v3, oproj3, oproj4
def make(path, fa_kw=None, op_kw=None, order='fo', mod=fa_mod, opmod=oproj3):
    f = mod.FA(name='fa_kernel', **(fa_kw or {}))
    t1, l1 = f.build()
    t2, l2 = opmod.gen_oproj('oproj_kernel', **(op_kw or {}))
    hdr = open('concat_heads__mha_block_cached__gqa_block_cached__near_ridge.s.ref').read().split('; Override')[0]
    for k in order:
        if k == 'f': hdr += f"; @launch kernel=fa_kernel grid=(256,1,1) block=(256,1,1) lds={l1}\n"
        else: hdr += f"; @launch kernel=oproj_kernel grid=(256,1,1) block=(256,1,1) lds={l2}\n"
    open(path, 'w').write(hdr + '.amdgcn_target "amdgcn-amd-amdhsa--gfx950"\n.text\n' + t1 + t2)
if __name__ == '__main__':
    M = 'cdna_kernels/'
    base = dict(pf_wo=True, op_label='oproj_kernel', nt_w=True, pf_code2=True)
    make(M + 'concat_heads__mha_block_cached__gqa_block_cached__near_ridge.s', fa_kw=dict(base), opmod=oproj4)
    make(M + 'e_a.s', fa_kw=dict(base, st_flags=' sc1'), opmod=oproj4)
    make(M + 'e_b.s', fa_kw=dict(base, pf_wo=False), op_kw=dict(nt_w=True), opmod=oproj4)
    make(M + 'e_c.s', fa_kw=dict(base, pf_code2=False), opmod=oproj4)
```

```python
from asmlib import *
import math

RING = 0
SLOT = 32768
STG = 98304
XB = [STG, STG + 18432]
WB = [STG + 36864 + 8192 * i for i in range(3)]
QX = STG
LDS_TOTAL = 163840
O_WS_OFF = 0
CSCALE = math.log2(math.e) / math.sqrt(128.0)

import struct
def f2u(x): return struct.unpack('<I', struct.pack('<f', x))[0]

V_LANE = 1
V_RING = 10
V_KPAT, V_VPAT, V_KA, V_VA = 20, 24, 28, 32
V_P = 36
V_MX, V_T1, V_T2, V_T3 = 48, 49, 50, 51
V_ONES = 52
V_NEGM = 56
V_L = 76
V_S = 96
V_KF = {'A': 120, 'B': 184}
V_VF = {'A': 152, 'B': 216}
A_O = 0
A_Q = 160
V_XD, V_WD = 106, 98
V_WD2 = 96
V_WPH = 112
V_ZERO = 116
QXBASE = 98304
V_PFW, V_PFX, V_PFD = 14, 15, 16
V_RINGK, V_RINGV = 17, 18
V_RINGH = 248
V_VA2 = 252
V_XPAT = 100
V_WPAT = 104
V_XA = 106
V_WA = 110
QF_W = [120, 156]
QF_X = [136, 172]

S_W, S_QH, S_HH, S_BLK, S_B, S_H0 = 24, 25, 26, 27, 28, 29
S_CH, S_DSLOT, S_RSLOT, S_CNT = 30, 31, 32, 33
S_T = 34
S_GOFF, S_LB, S_TMP, S_TMP2 = 41, 42, 40, 43
S_DWRAP, S_DBASE = 30, 42
S_XI, S_WI, S_XOFF, S_WOFF, S_XBUF, S_WBUF, S_XRB, S_WRB = 44, 45, 46, 47, 48, 49, 50, 51
S_XW_G, S_XW_L = 54, 55
S_XC = 96
S_WW_L, S_WLIM = 101, 56
S_BAD, S_SAFE, S_NREC2 = 44, 45, 53
S_KOOB = 51
S_FREE = 49
S_ITEM = 58
S_FL = 59
S_QI = 70
S_FLAG = 72
S_LATE, S_PR, S_FI, S_FMAX, S_FG, S_FL2 = 71, 74, 75, 52, 53, 56
S_KVO = 66

QP_PAT = [98, 99, 100, 101, 102, 103, 104, 105, 106, 107, 108, 109, 110]
def qacc(k): return (56 + 4 * k) if k < 10 else (192 + 4 * (k - 10))
def acc_o(slot, jl): return A_O + slot * 32 + jl * 4
def q_frag(slot, jp): return A_Q + slot * 16 + jp * 4
def rng(f, b, n=4): return f"{f}[{b}:{b+n-1}]"

def interleave(M, fillers, start=0):
    out = []
    k = 0
    for i, m in enumerate(M):
        out.append(m)
        if i >= start and k < len(fillers):
            out += fillers[k]; k += 1
    while k < len(fillers):
        out += fillers[k]; k += 1
    return out

def spread(M, groups, start=0):
    m = len(M) - start
    n = len(groups)
    out = []
    for i, x in enumerate(M):
        out.append(x)
        if i >= start:
            k = i - start
            for g in groups[(k * n) // m:((k + 1) * n) // m]:
                out += g
    return out

class FA:
    def __init__(self, name='fa_kernel', nt_kv=True, nt_w=False, nt_x=False, dbg=None, order='early', stamps=False, pf_qp=True, pf_att=True, late_bit=1, x_nodma=False, x_nosm=False, x_nobr=False, x_nord=False, x_nobar=False, x_qv=False, q_nodma=False, q_nord=False, q_nobar=False, q_nowait=False, same_kv=False, x_nohead=False, x_noX=False, x_nomax=False, fill_qp=True, fast=True, force_bad=False, pf_wo=False, pf_code=False, op_label=None, dbg_stamps=None, pf0=False, pf1=False, pf_nt=False, qstamp=False, cstamp=False, st_flags='', qp0_nt=False, pf0x=False, rot=False, pf_tlb=False, dbg_rt=False, pf_code2=False, kvreg=False, kvdma=True, qn1=4, cfast=True, c_nost=False, c_nonan=False, c_now=False, fuse=None):
        self.fuse = fuse
        self.c_nost, self.c_nonan, self.c_now = c_nost, c_nonan, c_now
        self.cfast = cfast
        self.qn1 = qn1
        self.kvdma = kvdma
        self.kvreg = kvreg
        self.pf_code2 = pf_code2
        self.dbg_rt = dbg_rt
        self.pf_tlb = pf_tlb
        self.rot = rot
        self.st_flags, self.qp0_nt, self.pf0x = st_flags, qp0_nt, pf0x
        self.cstamp = cstamp
        self.qstamp = qstamp
        self.pf0, self.pf1 = pf0, pf1
        self.pf_nt = ' nt' if pf_nt else ''
        self.dbg_stamps = dbg_stamps
        self.pf_wo, self.pf_code, self.op_label = pf_wo, pf_code, op_label
        self.fast = fast
        self.force_bad = force_bad
        self.fill_qp = fill_qp
        self.x_nomax = x_nomax
        self.x_nohead, self.x_noX = x_nohead, x_noX
        self.same_kv = same_kv
        self.q_nowait = q_nowait
        self.q_nodma, self.q_nord, self.q_nobar = q_nodma, q_nord, q_nobar
        self.x_nodma, self.x_nosm, self.x_nobr, self.x_nord, self.x_nobar, self.x_qv = x_nodma, x_nosm, x_nobr, x_nord, x_nobar, x_qv
        self.pf_qp = pf_qp
        self.pf_att = pf_att
        self.late_bit = late_bit
        self.stamps = stamps
        self.nst = 0
        self.name = name
        self.nt_kv = ' nt' if nt_kv else ''
        self.nt_w = ' nt' if nt_w else ''
        self.nt_x = ' nt' if nt_x else ''
        self.dbg = dbg
        self.order = order
        self.rare = []
        self.uid = 0

    def setup(self):
        P = Prog()
        n = self.name
        P(f"""
        s_cmp_ge_u32 s2, 256
        s_cbranch_scc1 {n}_done
        s_and_b32 s39, s2, 7
        s_lshr_b32 s40, s2, 3
        s_lshr_b32 s{S_BLK}, s39, 2
        s_and_b32 s39, s39, 3
        s_and_b32 s{S_B}, s40, 7
        s_lshr_b32 s40, s40, 3
        s_mov_b32 s{S_PR}, s40
        s_lshl_b32 s39, s39, 3
        s_lshl_b32 s40, s40, 1
        s_add_u32 s{S_H0}, s39, s40
        s_mul_i32 s39, s{S_BLK}, 40
        s_add_u32 s60, s0, s39
        s_addc_u32 s61, s1, 0
        s_load_dwordx2 s[4:5], s[60:61], 0
        s_load_dwordx2 s[62:63], s[60:61], 8
        s_load_dwordx2 s[64:65], s[60:61], 16
        s_load_dwordx2 s[66:67], s[60:61], 24
        s_load_dwordx2 s[68:69], s[0:1], 96
        s_load_dwordx2 s[76:77], s[60:61], 32
        v_lshrrev_b32 v2, 6, v0
        v_and_b32 v{V_LANE}, 63, v0
        v_readfirstlane_b32 s{S_W}, v2
        s_and_b32 s{S_QH}, s{S_W}, 1
        s_lshr_b32 s{S_HH}, s{S_W}, 1
        """)
        L = V_LANE
        P(f"""
        v_lshrrev_b32 v2, 4, v{L}
        v_and_b32 v3, 15, v{L}
        v_xor_b32 v4, v3, v2
        v_lshlrev_b32 v5, 2, v2
        v_xor_b32 v5, v3, v5
        v_lshlrev_b32 v4, 4, v4
        v_lshlrev_b32 v5, 4, v5
        v_lshlrev_b32 v2, 8, v2
        v_add_u32 v{V_RINGK}, v4, v2
        v_add_u32 v{V_RINGV}, v5, v2
        s_cmp_eq_u32 s{S_QH}, 0
        s_cselect_b32 s39, 64, 16
        s_cselect_b64 vcc, -1, 0
        v_cndmask_b32 v{V_RING}, v{V_RINGV}, v{V_RINGK}, vcc
        v_xor_b32 v{V_RING+1}, s39, v{V_RING}
        s_lshl_b32 s40, s39, 1
        v_xor_b32 v{V_RING+2}, s40, v{V_RING}
        s_add_u32 s40, s40, s39
        v_xor_b32 v{V_RING+3}, s40, v{V_RING}
        v_add_u32 v{V_RINGH}, 4096, v{V_RING}
        v_add_u32 v{V_RINGH+1}, 4096, v{V_RING+1}
        v_add_u32 v{V_RINGH+2}, 4096, v{V_RING+2}
        v_add_u32 v{V_RINGH+3}, 4096, v{V_RING+3}
        """)
        P(self.pf_setup())
        P(f"""
        v_and_b32 v3, 15, v{L}
        v_lshrrev_b32 v2, 4, v{L}
        v_xor_b32 v4, v2, v3
        v_lshlrev_b32 v4, 4, v4
        v_lshlrev_b32 v5, 8, v3
        s_lshl_b32 s39, s{S_HH}, 14
        v_add_u32 v5, s39, v5
        """)
        for jp in range(4):
            P(f"v_xor_b32 v6, {64*jp}, v4\nv_add_u32 v{V_KPAT+jp}, v5, v6")
        P(f"""
        v_lshrrev_b32 v3, 2, v{L}
        v_and_b32 v3, 3, v3
        v_and_b32 v4, 3, v{L}
        v_xor_b32 v4, v4, v2
        v_lshlrev_b32 v4, 4, v4
        v_lshlrev_b32 v5, 6, v3
        v_add_u32 v4, v4, v5
        v_lshlrev_b32 v5, 2, v2
        v_add_u32 v5, v5, v3
        v_lshlrev_b32 v5, 8, v5
        s_lshl_b32 s39, s{S_HH}, 14
        s_add_u32 s39, s39, 8192
        v_add_u32 v5, s39, v5
        """)
        for ml in range(4):
            P(f"""
            s_lshl_b32 s39, s{S_HH}, 1
            s_add_u32 s39, s39, {ml}
            s_and_b32 s39, s39, 3
            s_lshl_b32 s39, s39, 6
            v_xor_b32 v6, s39, v4
            v_add_u32 v{V_VPAT+ml}, v5, v6
            """)
        if self.pf_code:
            P(f"""
            s_lshr_b32 s39, s2, 3
            s_cmp_ge_u32 s39, 16
            s_cbranch_scc1 {n}_npc
            s_cmp_lg_u32 s{S_W}, 0
            s_cbranch_scc1 {n}_npc
            s_getpc_b64 s[72:73]
            {n}_pc0:
            s_lshl_b32 s39, s39, 13
            s_add_u32 s72, s72, s39
            s_addc_u32 s73, s73, 0
            v_lshlrev_b32 v3, 7, v{L}
            global_load_dword v{V_PFD}, v3, s[72:73]
            {n}_npc:
            """)
        for r in range(4):
            P(f"v_mov_b32 v{V_ONES+r}, 0x3f803f80")
        P.extend(self.qp_patterns())
        P("s_waitcnt lgkmcnt(0)")
        P(f"""
        s_cmp_eq_u32 s{S_QH}, 0
        s_cselect_b32 s8, s62, s64
        s_cselect_b32 s9, s63, s65
        s_lshl_b32 s39, s{S_B}, 5
        s_add_u32 s39, s39, s{S_H0}
        s_lshr_b32 s40, s39, 14
        s_lshl_b32 s39, s39, {18 if not self.same_kv else 31}
        s_and_b32 s39, s39, {'-1' if not self.same_kv else '0'}
        s_add_u32 s8, s8, s39
        s_addc_u32 s9, s9, s40
        s_lshl_b32 s39, s{S_HH}, 13
        s_add_u32 s8, s8, s39
        s_addc_u32 s9, s9, 0
        s_and_b32 s9, s9, 0xffff
        s_sub_u32 s10, {2*262144}, s39
        s_mov_b32 s11, 0x20000
        s_mul_i32 s39, s{S_B}, {144*2048}
        s_add_u32 s12, s4, s39
        s_addc_u32 s13, s5, 0
        s_and_b32 s13, s13, 0xffff
        s_mov_b32 s14, {144*2048}
        s_mov_b32 s15, 0x20000
        s_lshl_b32 s39, s{S_H0}, 8
        s_add_u32 s16, s66, s39
        s_addc_u32 s17, s67, 0
        s_and_b32 s17, s17, 0xffff
        s_sub_u32 s18, {1024*8192}, s39
        s_mov_b32 s19, 0x20000
        s_lshl_b32 s39, s{S_BLK}, 3
        s_add_u32 s39, s39, s{S_B}
        s_lshl_b32 s39, s39, 5
        s_add_u32 s39, s39, s{S_H0}
        s_mul_i32 s39, s39, 36864
        s_add_u32 s20, s68, s39
        s_addc_u32 s21, s69, 0
        s_add_u32 s20, s20, {O_WS_OFF}
        s_addc_u32 s21, s21, 0
        s_and_b32 s21, s21, 0xffff
        s_mov_b32 s22, {2*36864}
        s_mov_b32 s23, 0x20000
        s_lshl_b32 s{S_DBASE}, s{S_W}, 13
        s_add_u32 s{S_DSLOT}, s{S_DBASE}, {SLOT if self.kvdma else 0}
        s_add_u32 s{S_DWRAP}, s{S_DBASE}, {3*SLOT}
        s_mov_b32 s{S_GOFF}, 0
        s_mov_b32 s{S_RSLOT}, {SLOT if self.kvdma else 0}
        s_mov_b32 s{S_ITEM}, 0
        s_mov_b32 s{S_QI}, 0
        s_mov_b32 s{S_FMAX}, 1
        s_lshl_b32 s39, s{S_B}, 5
        s_add_u32 s39, s39, s{S_H0}
        s_lshl_b32 s{S_KVO}, s39, 18
        s_mov_b32 s{S_KVO+1}, 0
        s_and_b32 s39, s2, 3
        s_lshl_b32 s39, s39, 5
        s_lshr_b32 s40, s2, 3
        s_add_u32 s39, s39, s40
        s_lshl_b32 s39, s39, 16
        s_add_u32 s76, s76, s39
        s_addc_u32 s77, s77, 0
        s_and_b32 s77, s77, 0xffff
        s_mov_b32 s78, 65536
        s_mov_b32 s79, 0x20000
        v_lshlrev_b32 v19, 7, v{L}
        """)
        if self.order == 'early': P(f"s_mov_b32 s{S_LATE}, 0")
        elif self.order == 'late': P(f"s_mov_b32 s{S_LATE}, 1")
        else: P(f"s_lshr_b32 s{S_LATE}, s2, {self.late_bit}\ns_and_b32 s{S_LATE}, s{S_LATE}, 1")
        P(f"""s_xor_b32 s{S_FMAX}, s{S_LATE}, 1
        s_mov_b32 s{S_BAD}, 0
        s_mov_b32 s{S_SAFE}, 0
        s_mov_b32 s{S_NREC2}, s10
        s_mov_b32 s{S_QI}, 0""")
        if self.pf0:
            for x in self.pf_w(f"s{S_W}", "0"): P(x)
            for x in self.pf_x(f"s{S_W}"): P(x)
            P(f"s_add_u32 s39, s{S_W}, 4")
            for x in self.pf_x("s39"): P(x)
            P(f"s_add_u32 s39, s{S_W}, 8\ns_min_u32 s39, s39, 8")
            for x in self.pf_x("s39"): P(x)
            P(f"s_cmp_eq_u32 s{S_LATE}, 0\ns_cbranch_scc1 {n}_npf0")
            for x in self.pf_w(f"s{S_W}", "1"): P(x)
            P.label(f"{n}_npf0")
        if self.pf0x:
            for x in self.pf_x(f"s{S_W}"): P(x)
            P(f"s_add_u32 s39, s{S_W}, 4")
            for x in self.pf_x("s39"): P(x)
            P(f"s_add_u32 s39, s{S_W}, 8\ns_min_u32 s39, s39, 8")
            for x in self.pf_x("s39"): P(x)
            P(f"s_cmp_eq_u32 s{S_LATE}, 0\ns_cbranch_scc1 {n}_npf0x")
            for x in self.pf_w(f"s{S_W}", "1"): P(x)
            P.label(f"{n}_npf0x")
        if self.pf_tlb:
            P(f"""
            s_cmp_lg_u32 s{S_W}, 0
            s_cbranch_scc1 {n}_ntlb
            s_lshr_b32 s39, s2, 3
            s_lshl_b32 s39, s39, 18
            v_lshlrev_b32 v2, 13, v{V_LANE}
            s_mov_b32 exec_hi, 0
            buffer_load_dword v{V_PFD}, v2, s[16:19], s39 offen
            s_mul_i32 s39, s{S_PR}, {18*4096}
            v_lshlrev_b32 v2, 12, v{V_LANE}
            s_mov_b32 exec_lo, 0x3ffff
            buffer_load_dword v{V_PFD}, v2, s[12:15], s39 offen
            s_mov_b64 exec, -1
            {n}_ntlb:
            """)
        return P

    def ring_instrs(self):
        nt = self.nt_kv
        D = []
        for m in range(8):
            g = []
            if m == 0: g.append(f"s_mov_b32 m0, s{S_DSLOT}")
            if m == 4: g.append(f"s_add_u32 m0, s{S_DSLOT}, 4096")
            v = V_RING + m if m < 4 else V_RINGH + m - 4
            g.append(f"buffer_load_dwordx4 v{v}, s[8:11], s{S_GOFF} offen offset:{(m & 3) * 1024}{nt} lds")
            D.append(g)
        adv = [f"s_add_u32 s{S_GOFF}, s{S_GOFF}, 16384",
               f"s_add_u32 s{S_DSLOT}, s{S_DSLOT}, {SLOT}",
               f"s_cmp_eq_u32 s{S_DSLOT}, s{S_DWRAP}",
               f"s_cselect_b32 s{S_DSLOT}, s{S_DBASE}, s{S_DSLOT}"]
        return D, adv
    def ring_groups(self):
        D, adv = self.ring_instrs()
        return D + [adv]

    def ring_fill(self):
        P = Prog()
        for _ in range(3):
            for g in self.ring_groups():
                for x in g: P(x)
        return P

    def pf_setup(self):
        L = V_LANE
        return f"""
        v_lshrrev_b32 v2, 1, v{L}
        v_lshlrev_b32 v2, 13, v2
        v_and_b32 v3, 1, v{L}
        v_lshlrev_b32 v3, 7, v3
        v_add_u32 v{V_PFW}, v2, v3
        v_lshrrev_b32 v2, 4, v{L}
        v_lshlrev_b32 v2, 11, v2
        v_and_b32 v3, 15, v{L}
        v_lshlrev_b32 v3, 7, v3
        v_add_u32 v{V_PFX}, v2, v3
        """
    def pf_w(self, i_expr_sgpr, head_sgpr):
        return [f"s_lshl_b32 s{S_TMP}, s{S_B}, 20",
                f"s_lshl_b32 s{S_TMP2}, {i_expr_sgpr}, 18",
                f"s_add_u32 s{S_TMP}, s{S_TMP}, s{S_TMP2}",
                f"s_lshl_b32 s{S_TMP2}, {head_sgpr}, 8",
                f"s_add_u32 s{S_TMP}, s{S_TMP}, s{S_TMP2}",
                f"buffer_load_dword v{V_PFD}, v{V_PFW}, s[16:19], s{S_TMP} offen{self.pf_nt}"]
    def pf_x(self, i_expr):
        return [f"s_mul_i32 s{S_TMP}, s{S_PR}, {36*2048}",
                f"s_lshl_b32 s{S_TMP2}, {i_expr}, 13",
                f"s_add_u32 s{S_TMP}, s{S_TMP}, s{S_TMP2}",
                f"buffer_load_dword v{V_PFD}, v{V_PFX}, s[12:15], s{S_TMP} offen{self.pf_nt}"]

    def code_pf(self, label, uid, waves_chunks):
        n = self.name
        return [f"s_cmp_ge_u32 s{S_W}, {waves_chunks}", f"s_cbranch_scc1 {n}_ncp{uid}",
                f"s_getpc_b64 s[60:61]", f"{n}_cp{uid}:",
                f"s_add_u32 s60, s60, {label}-{n}_cp{uid}", f"s_addc_u32 s61, s61, 0",
                f"s_lshl_b32 s39, s{S_W}, 13", f"s_add_u32 s60, s60, s39", f"s_addc_u32 s61, s61, 0",
                f"global_load_dword v{V_PFD}, v19, s[60:61]", f"{n}_ncp{uid}:"]

    def qp_patterns(self):
        L = V_LANE
        P = Prog()
        P(f"""
        v_lshrrev_b32 v2, 3, v{L}
        v_and_b32 v3, 7, v{L}
        v_lshrrev_b32 v4, 4, v{L}
        v_xor_b32 v3, v3, v4
        v_lshlrev_b32 v3, 4, v3
        v_lshlrev_b32 v2, 11, v2
        v_add_u32 v2, v2, v3
        """)
        for x in range(5):
            P(f"""
            s_mul_i32 s39, s{S_W}, 5
            s_add_u32 s39, s39, {x}
            s_cmp_gt_u32 s39, 17
            s_cselect_b32 s40, 2, 0
            s_sub_u32 s39, s39, s40
            s_lshl_b32 s{S_XC+x}, s39, 10
            s_and_b32 s40, s39, 1
            s_lshl_b32 s40, s40, 6
            v_xor_b32 v3, s40, v2
            s_lshl_b32 s39, s39, 14
            v_add_u32 v{V_XD+x}, s39, v3
            """)
        P(f"""
        v_lshrrev_b32 v2, 4, v{L}
        v_and_b32 v3, 15, v{L}
        v_lshlrev_b32 v4, 2, v2
        v_xor_b32 v3, v3, v4
        v_xor_b32 v3, s{S_W}, v3
        v_lshlrev_b32 v3, 4, v3
        v_lshlrev_b32 v4, 13, v2
        v_add_u32 v3, v3, v4
        s_lshl_b32 s39, s{S_W}, 16
        v_add_u32 v{V_WD}, s39, v3
        v_add_u32 v{V_WD+1}, 32768, v{V_WD}
        v_and_b32 v3, 15, v{L}
        v_lshrrev_b32 v4, 1, v3
        v_xor_b32 v4, v4, v2
        v_lshlrev_b32 v4, 4, v4
        v_lshlrev_b32 v5, 7, v3
        v_xor_b32 v6, 64, v4
        v_add_u32 v4, v4, v5
        v_add_u32 v6, v6, v5
        s_lshl_b32 s39, s{S_QH}, 13
        s_add_u32 s39, s39, {QXBASE}
        v_add_u32 v{V_XPAT}, s39, v4
        v_add_u32 v{V_XPAT+1}, s39, v6
        v_add_u32 v{V_XPAT+2}, {8*2048 + QXBASE}, v4
        v_add_u32 v{V_XPAT+3}, {8*2048 + QXBASE}, v6
        v_lshrrev_b32 v3, 2, v{L}
        v_and_b32 v3, 3, v3
        v_and_b32 v4, 3, v{L}
        v_xor_b32 v4, v4, v2
        v_lshlrev_b32 v4, 4, v4
        v_lshlrev_b32 v5, 6, v3
        v_add_u32 v4, v4, v5
        v_lshlrev_b32 v5, 3, v2
        v_add_u32 v5, v5, v3
        v_lshlrev_b32 v5, 8, v5
        """)
        for p in range(2):
            P(f"""
            s_xor_b32 s39, s{S_QH}, {p}
            s_lshl_b32 s40, s{S_HH}, 1
            s_add_u32 s39, s39, s40
            s_lshl_b32 s39, s39, 6
            v_xor_b32 v6, s39, v4
            v_add_u32 v{V_WPAT+p}, v5, v6
            """)
        for k, r in enumerate(QP_PAT): P(f"v_accvgpr_write_b32 a{240+k}, v{r}")
        P(f"s_lshl_b32 s{S_WW_L}, s{S_W}, 11")
        return P

    def qp2(self, tag):
        n = self.name
        L = V_LANE
        NX, NW = 3, 6
        XB0 = 98304
        PER = 6
        NIT = 4
        FW = [120, 172]; FX = [152, 204]
        P = Prog()
        for k, r in enumerate(QP_PAT): P(f"v_accvgpr_read_b32 v{r}, a{240+k}")
        P(f"""
        v_add_u32 v{V_WD2}, 256, v{V_WD}
        v_add_u32 v{V_WD2+1}, 256, v{V_WD+1}
        v_add_u32 v{V_WPH}, 65536, v{V_WPAT}
        v_add_u32 v{V_WPH+1}, 65536, v{V_WPAT+1}
        s_mov_b32 s{S_WOFF}, 0
        s_mov_b32 s{S_XOFF}, 0
        """)
        def x_groups(buf):
            G = []
            for x in range(5):
                G.append([f"s_add_u32 m0, s{S_XC+x}, {XB0 + buf*18432}",
                          f"buffer_load_dwordx4 v{V_XD+x}, s[12:15], s{S_XOFF} offen{self.nt_x} lds"])
            G.append([f"s_add_u32 s{S_XOFF}, s{S_XOFF}, 128"])
            return G
        def w_groups(buf):
            G = []
            for h in range(2):
                for x in range(2):
                    G.append([f"s_add_u32 m0, s{S_WW_L}, {buf*16384 + h*8192 + x*1024}",
                              f"buffer_load_dwordx4 v{(V_WD if h == 0 else V_WD2) + x}, s[16:19], s{S_WOFF} offen{self.nt_w} lds"])
            G.append([f"s_add_u32 s{S_WOFF}, s{S_WOFF}, {1 << 18}"])
            return G
        def read_groups(k, i):
            G = []
            wbuf = i % NW
            wp = V_WPAT if wbuf < 4 else V_WPH
            wb = (wbuf % 4) * 16384
            xb = ((i >> 1) % NX) * 18432
            ss = i & 1
            GX = []
            for t in range(4):
                GX.append([f"ds_read_b128 {rng('v', FX[k]+4*t)}, v{V_XPAT+ss} offset:{xb + t*2048}"])
            GX.append([f"ds_read_b128 {rng('v', FX[k]+16)}, v{V_XPAT+2+ss} offset:{xb}"])
            for h in range(2):
                for jl in range(4):
                    a = FW[k] + 16 * h + 4 * jl
                    p, hh = jl >> 1, jl & 1
                    G.append([f"ds_read_b64_tr_b16 v[{a}:{a+1}], v{wp+p} offset:{wb + h*8192 + 8*hh}"])
                    G.append([f"ds_read_b64_tr_b16 v[{a+2}:{a+3}], v{wp+p} offset:{wb + h*8192 + 8*hh + 1024}"])
            return G[:8] + GX + G[8:]
        def qa(h, k): return 72 * h + 4 * k
        def mf(k):
            M = []
            for h in range(2):
                for t in range(4):
                    for jl in range(4):
                        a = qa(h, 4 * t + jl)
                        M.append(f"v_mfma_f32_16x16x32_bf16 {rng('a', a)}, {rng('v', FW[k]+16*h+4*jl)}, {rng('v', FX[k]+4*t)}, {rng('a', a)}")
                for x in range(2):
                    a = qa(h, 16 + x)
                    M.append(f"v_mfma_f32_16x16x32_bf16 {rng('a', a)}, {rng('v', FW[k]+16*h+4*x)}, {rng('v', FX[k]+16)}, {rng('a', a)}")
            return M
        pro = []
        xi = wi = 0
        while xi < NX or wi < NW:
            if xi < NX and 2 * xi <= wi: pro.append(('X', xi)); xi += 1
            elif wi < NW: pro.append(('W', wi)); wi += 1
            else: pro.append(('X', xi)); xi += 1
        cnt = {'X': 5, 'W': 4, 'K': 8}
        kv_at = {27: 0, 29: 1, 31: 2} if self.kvdma else {}
        seq = list(pro)
        def outstanding_after(need):
            idx = [i for i, it in enumerate(seq) if it in need]
            last = max(idx)
            return sum(cnt[k] for k, _ in seq[last + 1:])
        waits = {}
        for i in range(0, 32):
            need = set()
            if i + 1 < 32: need = {('W', i + 1), ('X', (i + 1) >> 1)}
            waits[i] = outstanding_after(need) if need else 63
            if i + NW < 32: seq.append(('W', i + NW))
            if (i & 1) and (i >> 1) + NX < 16: seq.append(('X', (i >> 1) + NX))
            if i in kv_at: seq.append(('K', kv_at[i]))
        wr = [min(waits[i] for i in range(r, NIT * PER, PER)) for r in range(PER)]
        assert max(wr) <= 63
        P("s_waitcnt vmcnt(0)\ns_barrier")
        def issue(lst):
            for kind, idx in lst:
                for g in (x_groups(idx) if kind == 'X' else w_groups(idx)):
                    for x in g: P(x)
        n1 = self.qn1
        n2 = len(pro)
        issue(pro[:n1])
        for r in range(0, 144, 4): P(f"v_mfma_f32_16x16x32_bf16 a[{r}:{r+3}], v[{V_ZERO}:{V_ZERO+3}], v[{V_ZERO}:{V_ZERO+3}], 0")
        issue(pro[n1:n2])
        w0 = sum(cnt[k] for k, _ in pro[2:n2])
        P(f"s_waitcnt vmcnt({w0})\ns_barrier")
        if self.qstamp:
            P(f"s_memtime s[72:73]\ns_waitcnt lgkmcnt(0)\ns_mov_b32 s82, s72")
        for g in read_groups(0, 0):
            for x in g: P(x)
        issue(pro[n2:])
        if self.pf_code2:
            for x in self.code_pf(f"{n}_hot0", 'a', 3): P(x)
        P(f"s_waitcnt lgkmcnt(0)\ns_mov_b32 s{S_CNT}, {NIT}")
        Z = Prog()
        for r in range(4): Z(f"v_mov_b32 v{V_ZERO+r}, 0")
        P.items = Z.items + P.items
        pre, _ = finalize_linear(P.items)
        out = Prog(); out.extend(pre)
        def substep(body, i, wait):
            ss = i & 1
            body(f"s_waitcnt vmcnt({min(wait, 63)}) lgkmcnt(0)")
            body("s_barrier")
            R = read_groups(1 - ss, i + 1) if i + 1 < 32 else []
            D = []
            if i + NW < 32: D += w_groups(i % NW)
            if (i & 1) and (i >> 1) + NX < 16: D += x_groups((i >> 1) % NX)
            if i in kv_at: D += self.ring_groups()
            if self.q_nodma: D = []
            M = mf(ss)
            fill = [[] for _ in M]
            hv = []
            ri = di = 0
            while ri < len(R) or di < len(D):
                for _ in range(2):
                    if ri < len(R): hv.append(R[ri]); ri += 1
                if di < len(D): hv.append(D[di]); di += 1
            npos = len(M)
            k = 0
            for g in hv:
                pos = min(k, npos - 1)
                if 'm0' in g[0] and pos > 0 and not any('buffer_load' in y for y in fill[pos - 1]):
                    fill[pos - 1].append(g[0]); fill[pos] += g[1:]
                else:
                    fill[pos] += g
                if any(('ds_read' in y or 'buffer_load' in y) for y in g): k += 1
            for x in interleave(M, fill): body(x)
        body = Prog()
        for r in range(PER): substep(body, r, wr[r])
        if self.qstamp:
            body("s_waitcnt lgkmcnt(0)\ns_memtime s[72:73]\ns_waitcnt lgkmcnt(0)")
            for it in range(4):
                body(f"s_cmp_eq_u32 s{S_CNT}, {4 - it}\ns_cselect_b32 s{83+it}, s72, s{83+it}")
        body(f"s_sub_u32 s{S_CNT}, s{S_CNT}, 1\ns_cmp_lg_u32 s{S_CNT}, 0")
        b, _ = finalize_loop(body.items)
        out.label(f"{n}_qp{tag}")
        out.extend(b)
        out(f"s_cbranch_scc1 {n}_qp{tag}")
        tail = Prog()
        for i in range(NIT * PER, 32): substep(tail, i, waits[i])
        l1, f = auto_lgkm(b, None)
        l2, _ = auto_lgkm(tail.items, f)
        l3 = fix_hazards(l2, wrap=b)
        out.extend(l3)
        out.label(f"{n}_hot0")
        E = Prog()
        E("s_waitcnt lgkmcnt(0)\ns_nop 7\ns_barrier")
        e1, _ = finalize_linear(E.items)
        out.extend(e1)
        return out

    def qconv(self, h, with_fill, nfill=3):
        L = V_LANE
        C = Prog()
        C(f"""
        v_mov_b32 v8, {f2u(CSCALE):#x}
        v_lshlrev_b32 v2, 4, v{L}
        v_add_u32 v2, {QX}, v2
        s_lshl_b32 s40, s{S_QH}, 14
        s_lshl_b32 s{S_TMP2}, s{S_HH}, 11
        s_add_u32 s40, s40, s{S_TMP2}
        s_lshl_b32 s{S_TMP2}, s{S_QH}, 10
        s_add_u32 s{S_XOFF}, s40, s{S_TMP2}
        s_xor_b32 s{S_TMP2}, s{S_TMP2}, 1024
        s_add_u32 s{S_WOFF}, s40, s{S_TMP2}
        v_add_u32 v3, s{S_XOFF}, v2
        v_add_u32 v4, s{S_WOFF}, v2
        s_lshl_b32 s40, s{S_HH}, 11
        s_lshl_b32 s{S_TMP2}, s{S_QH}, 10
        s_add_u32 s40, s40, s{S_TMP2}
        v_add_u32 v5, s40, v2
        """)
        def conv(k0, dst):
            t = dst + 4
            for r in range(8): C(f"v_accvgpr_read_b32 v{t+r}, a{72*h + 4*k0 + r}")
            for r in range(8): C(f"v_mul_f32 v{t+r}, v8, v{t+r}")
            for r in range(4): C(f"v_cvt_pk_bf16_f32 v{dst+r}, v{t+2*r}, v{t+2*r+1}")
        k = 0
        for t in range(4):
            for p in range(2):
                d = 120 + 12 * (k % 9); k += 1
                conv(4 * t + 2 * p, d)
                C(f"ds_write_b128 v{3+p}, {rng('v', d)} offset:{t*4096}")
        d = 120 + 12 * (k % 9)
        conv(16, d)
        C(f"ds_write_b128 v5, {rng('v', d)} offset:{8*4096}")
        if with_fill:
            RF = []
            for _ in range(nfill): RF += self.ring_groups()
            CI = Prog()
            ci = C.items
            step = max(1, len(ci) // len(RF))
            k = 0
            for i, it in enumerate(ci):
                if i % step == 0 and k < len(RF):
                    for x in RF[k]: CI(x)
                    k += 1
                CI.items.append(it)
            while k < len(RF):
                for x in RF[k]: CI(x)
                k += 1
            C = CI
        C("s_waitcnt lgkmcnt(0)\ns_barrier")
        it, _ = finalize_linear(C.items)
        o = Prog(); o.extend(it)
        return o

    def lq(self):
        L = V_LANE
        P = Prog()
        P(f"""
        v_lshlrev_b32 v2, 4, v{L}
        v_add_u32 v2, {QX}, v2
        s_lshl_b32 s39, s{S_QH}, 14
        v_add_u32 v3, s39, v2
        """)
        for t in range(4):
            for jp in range(4):
                P(f"ds_read_b128 {rng('a', q_frag(t, jp))}, v3 offset:{t*4096 + jp*1024}")
        for jp in range(4):
            P(f"ds_read_b128 {rng('a', q_frag(4, jp))}, v2 offset:{8*4096 + jp*1024}")
        P("s_waitcnt lgkmcnt(0)")
        it, _ = finalize_linear(P.items)
        o = Prog(); o.extend(it)
        return o

    def s_mfmas(self, unit, sb):
        slot, fs = unit
        M = []
        for kt in range(2):
            for jp in range(4):
                d = V_S + sb * 8 + kt * 4
                c = rng('v', V_NEGM + slot * 4) if jp == 0 else rng('v', d)
                M.append(f"v_mfma_f32_16x16x32_bf16 {rng('v', d)}, {rng('v', V_KF[fs] + (kt*4+jp)*4)}, {rng('a', q_frag(slot, jp))}, {c}")
        return M
    def pv_mfmas(self, unit, pb):
        slot, fs = unit
        M = []
        p = rng('v', V_P + pb * 4)
        for jl in range(8):
            M.append(f"v_mfma_f32_16x16x32_bf16 {rng('a', acc_o(slot, jl))}, {rng('v', V_VF[fs] + jl*4)}, {p}, {rng('a', acc_o(slot, jl))}")
        M.append(f"v_mfma_f32_16x16x32_bf16 {rng('v', V_L + slot*4)}, {rng('v', V_ONES)}, {p}, {rng('v', V_L + slot*4)}")
        return M
    def max_ops(self, unit, sb):
        slot, fs = unit
        s = V_S + sb * 8
        return [[f"v_max3_f32 v{V_MX}, v{s}, v{s+1}, v{s+2}"],
                [f"v_max3_f32 v{V_MX}, v{V_MX}, v{s+3}, v{s+4}"],
                [f"v_max3_f32 v{V_MX}, v{V_MX}, v{s+5}, v{s+6}"],
                [f"v_max_f32 v{V_MX}, v{V_MX}, v{s+7}"],
                [f"v_cmp_lt_f32 vcc, s{S_T+slot}, v{V_MX}"]]
    def check_ops(self, unit, sb):
        slot, fs = unit
        s = V_S + sb * 8
        self.uid += 1
        u = self.uid
        lab_r, lab_b = f"{self.name}_rare{u}", f"{self.name}_back{u}"
        R = Prog()
        R.label(lab_r)
        R(f"""
        s_nop 7
        v_mov_b32 v{V_T1}, v{V_MX}
        s_nop 1
        v_permlane16_swap_b32 v{V_MX}, v{V_T1}
        s_nop 1
        v_max_f32 v{V_MX}, v{V_MX}, v{V_T1}
        v_mov_b32 v{V_T1}, v{V_MX}
        s_nop 1
        v_permlane32_swap_b32 v{V_MX}, v{V_T1}
        s_nop 1
        v_max_f32 v{V_MX}, v{V_MX}, v{V_T1}
        s_ashr_i32 s{S_FL}, s{S_T+slot}, 31
        s_and_b32 s{S_FL}, s{S_FL}, 0xff800000
        s_mov_b32 s{S_T+slot}, 0x41000000
        v_max_f32 v{V_MX}, s{S_FL}, v{V_MX}
        """)
        for r in range(8): R(f"v_sub_f32 v{s+r}, v{s+r}, v{V_MX}")
        for r in range(4): R(f"v_sub_f32 v{V_NEGM+slot*4+r}, v{V_NEGM+slot*4+r}, v{V_MX}")
        R(f"s_cmp_lg_u32 s{S_FL}, 0\ns_cbranch_scc1 {lab_b}")
        R(f"v_sub_f32 v{V_T1}, 0, v{V_MX}")
        R(f"v_exp_f32 v{V_T1}, v{V_T1}")
        R("s_nop 1")
        for r in range(4): R(f"v_mul_f32 v{V_L+slot*4+r}, v{V_L+slot*4+r}, v{V_T1}")
        for r in range(0, 32, 2):
            a = A_O + slot * 32 + r
            R(f"v_accvgpr_read_b32 v{V_T2}, a{a}\nv_accvgpr_read_b32 v{V_T3}, a{a+1}\nv_mul_f32 v{V_T2}, v{V_T2}, v{V_T1}\nv_mul_f32 v{V_T3}, v{V_T3}, v{V_T1}\nv_accvgpr_write_b32 a{a}, v{V_T2}\nv_accvgpr_write_b32 a{a+1}, v{V_T3}")
        R("s_nop 2")
        R(f"s_branch {lab_b}")
        self.rare.append(R)
        return [f"s_cbranch_vccnz {lab_r}", f"{lab_b}:"]
    def exp_ops(self, unit, sb, pb):
        s = V_S + sb * 8
        p = V_P + pb * 4
        return [[f"v_exp_f32 v{s}, v{s}"], [f"v_exp_f32 v{s+1}, v{s+1}"], [f"v_exp_f32 v{s+2}, v{s+2}"],
                [f"v_cvt_pk_bf16_f32 v{p}, v{s}, v{s+1}"],
                [f"v_exp_f32 v{s+3}, v{s+3}"], [f"v_exp_f32 v{s+4}, v{s+4}"],
                [f"v_cvt_pk_bf16_f32 v{p+1}, v{s+2}, v{s+3}"],
                [f"v_exp_f32 v{s+5}, v{s+5}"], [f"v_exp_f32 v{s+6}, v{s+6}"],
                [f"v_cvt_pk_bf16_f32 v{p+2}, v{s+4}, v{s+5}"],
                [f"v_exp_f32 v{s+7}, v{s+7}"],
                [f"v_cvt_pk_bf16_f32 v{p+3}, v{s+6}, v{s+7}"]]
    def kv_reads(self, fs, which):
        G = []
        if which == 'K':
            for kt in range(2):
                for jp in range(4):
                    G.append([f"ds_read_b128 {rng('v', V_KF[fs] + (kt*4+jp)*4)}, v{V_KA+jp} offset:{kt*4096}"])
        else:
            for jl in range(8):
                a = V_VF[fs] + jl * 4
                ml, h = jl >> 1, jl & 1
                va = V_VA if fs == 'A' else V_VA2
                G.append([f"ds_read_b64_tr_b16 v[{a}:{a+1}], v{va+ml} offset:{8*h}"])
                G.append([f"ds_read_b64_tr_b16 v[{a+2}:{a+3}], v{va+ml} offset:{8*h+4096}"])
        return G
    def kv_addr(self, fs):
        va = V_VA if fs == 'A' else V_VA2
        G = [[f"v_add_u32 v{V_KA+j}, s{S_RSLOT}, v{V_KPAT+j}"] for j in range(4)]
        G += [[f"v_add_u32 v{va+j}, s{S_RSLOT}, v{V_VPAT+j}"] for j in range(4)]
        G.append([f"s_add_u32 s{S_RSLOT}, s{S_RSLOT}, {SLOT}", f"s_cmp_eq_u32 s{S_RSLOT}, {3*SLOT}", f"s_cselect_b32 s{S_RSLOT}, 0, s{S_RSLOT}"])
        return G

    def units(self, qh):
        if qh == 0: return [(0,'A'),(1,'A'),(2,'A'),(3,'A'),(4,'A'),(0,'B'),(1,'B'),(2,'B'),(3,'B')]
        return [(0,'A'),(1,'A'),(2,'A'),(3,'A'),(0,'B'),(1,'B'),(2,'B'),(3,'B'),(4,'B')]

    def attn_body(self, qh, last):
        U = self.units(qh)
        B = Prog()
        RG = self.ring_groups()
        for g in range(9):
            if g in (0, 4):
                B("s_waitcnt vmcnt(8) lgkmcnt(0)")
                if not self.x_nobar: B("s_barrier")
            M = []
            if not (last and g + 3 >= 9):
                M += self.s_mfmas(U[(g + 3) % 9], g % 3)
            M += self.pv_mfmas(U[g], g % 3)
            V = []
            head = []
            if not (last and g + 1 >= 9):
                head = self.check_ops(U[(g + 1) % 9], (g + 1) % 3)
                ex = self.exp_ops(U[(g + 1) % 9], (g + 1) % 3, (g + 1) % 3)
            else: ex = []
            mx = self.max_ops(U[(g + 2) % 9], (g + 2) % 3) if not (last and g + 2 >= 9) else []
            V = []
            ei = mi = 0
            pat = "eeemcemecemecemcm" if False else "eemeemeemeemm"
            order = []
            if self.x_nomax and ex:
                e_ = [g_ for g_ in ex if g_[0].startswith('v_exp')]
                c_ = [g_ for g_ in ex if g_[0].startswith('v_cvt')]
                pat = "e-ee-eC-ee-e-eC--"
                ei = ci = 0
                for ch in pat:
                    if ch == 'e': order.append(e_[ei]); ei += 1
                    elif ch == 'C': order.append(c_[ci] + c_[ci + 1]); ci += 2
                    else: order.append([])
            else:
                for i in range(17):
                    if i in (1, 3, 5, 7, 9) and mi < len(mx): order.append(mx[mi]); mi += 1
                    elif ei < len(ex): order.append(ex[ei]); ei += 1
                    elif mi < len(mx): order.append(mx[mi]); mi += 1
            V = order
            PF = []
            if last and self.pf_wo and self.x_nomax == self.fast and g in (0, 4):
                self.uid += 1
                lab = f"{self.name}_npf{self.uid}"
                pf = [f"s_cmp_eq_u32 s{S_ITEM}, 0", f"s_cbranch_scc1 {lab}"]
                pf += [f"s_lshl_b32 s39, s{S_W}, 14", f"s_add_u32 s39, s39, {8192 if g == 4 else 0}",
                       f"buffer_load_dword v{V_PFD}, v19, s[76:79], s39 offen"]
                if self.op_label and g == 0:
                    pf += [f"s_cmp_gt_u32 s{S_W}, 1", f"s_cbranch_scc1 {lab}",
                           f"s_getpc_b64 s[60:61]", f"{lab}_pc:",
                           f"s_add_u32 s60, s60, {self.op_label}-{lab}_pc", f"s_addc_u32 s61, s61, 0",
                           f"s_lshl_b32 s39, s{S_W}, 13", f"s_add_u32 s60, s60, s39", f"s_addc_u32 s61, s61, 0",
                           f"global_load_dword v{V_PFD}, v19, s[60:61]"]
                pf.append(f"{lab}:")
                PF = [pf]
            if last and self.pf_code2 and self.x_nomax == self.fast and g == 0:
                self.uid += 1
                lab = f"{self.name}_npc{self.uid}"
                pf = [f"s_or_b32 s39, s{S_ITEM}, s{S_W}", f"s_cmp_lg_u32 s39, 0", f"s_cbranch_scc1 {lab}",
                      f"s_getpc_b64 s[60:61]", f"{lab}_pc:",
                      f"s_add_u32 s60, s60, {self.name}_cmb-{lab}_pc", f"s_addc_u32 s61, s61, 0",
                      f"global_load_dword v{V_PFD}, v19, s[60:61]", f"{lab}:"]
                PF = PF + [pf]
            if last and self.pf1 and self.x_nomax == self.fast and g in (0, 4):
                self.uid += 1
                lab = f"{self.name}_np1{self.uid}"
                pf = [f"s_or_b32 s39, s{S_LATE}, s{S_ITEM}", f"s_cmp_lg_u32 s39, 0", f"s_cbranch_scc1 {lab}"]
                if g == 0:
                    pf += self.pf_w(f"s{S_W}", "1") + self.pf_x(f"s{S_W}")
                else:
                    pf += [f"s_add_u32 s39, s{S_W}, 4"] + self.pf_x("s39") + [f"s_add_u32 s39, s{S_W}, 8", "s_min_u32 s39, s39, 8"] + self.pf_x("s39")
                pf.append(f"{lab}:")
                PF = PF + [pf]
            KA, VA_ = (self.kv_reads('A', 'K'), self.kv_reads('A', 'V')) if not last else ([], [])
            KB, VB_ = self.kv_reads('B', 'K'), self.kv_reads('B', 'V')
            ADA = self.kv_addr('A') if not last else []
            ADB = self.kv_addr('B') if not last else []
            D, adv = self.ring_instrs()
            H = []
            Lt = []
            if g == 0: H = KB + PF + D[0:1]
            if g == 1: H = VB_[:6] + D[1:4];
            if g == 2: H = VB_[6:11] + D[4:6]; Lt = ADA[:4]
            if g == 3: H = D[6:8] + VB_[11:]; Lt = ADA[4:] + [adv]
            if g == 4: H = KA + PF + D[0:1]
            if g == 5: H = VA_[:5] + D[1:4]
            if g == 6: H = VA_[5:10] + D[4:6]; Lt = ADB[:4]
            if g == 7: H = D[6:8] + VA_[10:]; Lt = ADB[4:8]
            if g == 8: Lt = ADB[8:] + [adv]
            if self.x_nomax:
                if g == 0: H = KB + PF
                if g == 1: H = VB_[:5] + D[0:3]
                if g == 2: H = VB_[5:11] + D[3:5]
                if g == 3: H = D[5:8] + VB_[11:]
                if g == 4: H = KA[:7] + PF
                if g == 5: H = KA[7:] + D[0:2] + VA_[:4]
                if g == 6: H = D[2:4] + VA_[4:9]
                if g == 7: H = D[4:6] + VA_[9:14]
                if g == 8: H = VA_[14:] + D[6:8];
            if last and self.x_nomax and self.cfast and g >= 4:
                H = [x for x in H if not any('lds' in y and 'buffer_load' in y for y in x)]
                Lt = [x for x in Lt if not any(f"s{S_GOFF}," in y for y in x)]
                if g == 4: Lt = Lt + [[f"s_sub_u32 s{S_FREE}, s{S_DSLOT}, s{S_DBASE}"]]
            if self.x_nodma: H = [x for x in H if not any('lds' in y and 'buffer_load' in y for y in x)]
            if self.x_nord: H = [x for x in H if not any('ds_read' in y for y in x)]
            if self.x_nosm: V = []; head = []
            if self.x_nobr: head = []
            if self.x_noX: H = []; Lt = []
            if self.x_nomax: V = [[] if (x and (x[0].startswith('v_max') or x[0].startswith('v_cmp'))) else x for x in V]; head = []
            n = len(M)
            fill = [list(V[i]) if i < len(V) else [] for i in range(n)]
            light = [i for i in range(n) if not (fill[i] and fill[i][0].startswith('v_exp'))]
            empty = [i for i in range(n) if not fill[i]]
            pos = light[:]
            if self.x_nomax and empty:
                pos = empty[:]
                more = [i for i in light if i not in pos] + [i for i in range(n) if i not in light]
                if len(H) > len(pos): pos = sorted(pos + more[:len(H) - len(pos)])
            if len(H) > len(pos):
                extra_pos = [i for i in range(n) if i not in pos][:len(H) - len(pos)]
                pos = sorted(pos + extra_pos)
            if H:
                k = len(pos)
                chosen = [pos[(j * k) // len(H)] for j in range(len(H))]
                for j, h in enumerate(H):
                    h = list(h)
                    if ' m0,' in h[0] and chosen[j] > 0 and not any('lds' in y and 'buffer_load' in y for y in fill[chosen[j] - 1]):
                        fill[chosen[j] - 1].append(h[0]); h = h[1:]
                    fill[chosen[j]] += h
            if Lt:
                has_heavy = lambda i: any(('ds_read' in y or 'buffer_load' in y) for y in fill[i])
                last_dma = max([i for i in range(n) if any('buffer_load' in y for y in fill[i])] + [-1])
                free = [i for i in light if not has_heavy(i)] + [i for i in range(n) if i not in light]
                used = set()
                for l_ in Lt:
                    need_after = last_dma if any(f"s{S_GOFF}," in y for y in l_) else -1
                    cand = [i for i in free if i not in used and i > need_after] or [n - 1]
                    if any(f"s{S_RSLOT}, s{S_RSLOT}" in y for y in l_):
                        la = max([i for i in range(n) if any(f"s{S_RSLOT}, v" in y for y in fill[i])] + [-1])
                        cand = [i for i in range(n) if i >= la]
                        cand = [max(cand[0], 0)]
                    i = cand[0]; used.add(i)
                    fill[i] += l_
            extra = V[n:]
            for x in head: B(x)
            for x in interleave(M, fill + extra): B(x)
        return B

    def attention(self, qh, tag):
        n = self.name
        U = self.units(qh)
        P = Prog()
        for r in range(20): P(f"v_mov_b32 v{V_L + r}, 0\nv_mov_b32 v{V_NEGM + r}, 0")
        P("s_nop 1")
        for r in range(0, 160, 4): P(f"v_mfma_f32_16x16x32_bf16 a[{A_O + r}:{A_O + r + 3}], v[{V_L}:{V_L+3}], v[{V_L}:{V_L+3}], 0")
        for s in range(5): P(f"s_mov_b32 s{S_T+s}, 0xff800000")
        P("s_waitcnt vmcnt(16)\ns_barrier")
        for g in self.kv_addr('A') + self.kv_reads('A', 'K') + self.kv_reads('A', 'V') + self.kv_addr('B'):
            for x in g: P(x)
        for x in self.s_mfmas(U[0], 0) + self.s_mfmas(U[1], 1) + self.s_mfmas(U[2], 2): P(x)
        if not self.x_nomax:
            for g in self.max_ops(U[0], 0):
                for x in g: P(x)
            P("s_nop 3")
            for x in self.check_ops(U[0], 0): P(x)
        for g in self.exp_ops(U[0], 0, 0) + (self.max_ops(U[1], 1) if not self.x_nomax else []):
            for x in g: P(x)
        P(f"s_waitcnt lgkmcnt(0)\ns_mov_b32 s{S_CNT}, 7")
        pre, _ = finalize_linear(P.items)
        out = Prog(); out.extend(pre)
        body, _ = finalize_loop(self.attn_body(qh, False).items)
        if self.stamps:
            self.stamp(out, 5)
        out.label(f"{n}_at{tag}")
        out.extend(body)
        out(f"s_sub_u32 s{S_CNT}, s{S_CNT}, 1\ns_cmp_lg_u32 s{S_CNT}, 0\ns_cbranch_scc1 {n}_at{tag}")
        if self.stamps:
            self.stamp(out, 6)
        lastb = self.attn_body(qh, True)
        l1, f = auto_lgkm(body, None)
        l2, _ = auto_lgkm(lastb.items, f)
        l3 = fix_hazards(l2, wrap=body)
        out.extend(l3)
        return out

    def combine(self, qh):
        L = V_LANE
        E = Prog()
        MLO = 32768
        if self.cstamp: E(f"s_waitcnt lgkmcnt(0)\ns_memtime s[48:49]\ns_waitcnt lgkmcnt(0)\ns_cmp_eq_u32 s{S_ITEM}, 0\ns_cselect_b32 s82, s48, s82")
        E("s_nop 7\ns_waitcnt lgkmcnt(0)\ns_barrier")
        if self.cstamp: E(f"s_waitcnt lgkmcnt(0)\ns_memtime s[48:49]\ns_waitcnt lgkmcnt(0)\ns_cmp_eq_u32 s{S_ITEM}, 0\ns_cselect_b32 s83, s48, s83")
        E(f"""
        v_lshlrev_b32 v2, 2, v{L}
        v_add_u32 v2, {STG + MLO}, v2
        s_mul_i32 s39, s{S_W}, 2560
        v_add_u32 v3, s39, v2
        v_lshlrev_b32 v8, 4, v{L}
        v_add_u32 v8, {STG}, v8
        s_lshl_b32 s39, s{S_W}, 13
        s_lshl_b32 s40, s{S_HH}, 12
        s_add_u32 s{S_TMP2}, s39, s40
        v_add_u32 v5, s{S_TMP2}, v8
        s_xor_b32 s{S_TMP2}, s{S_TMP2}, 4096
        v_add_u32 v6, s{S_TMP2}, v8
        """)
        for s_ in range(5):
            E(f"ds_write_b32 v3, v{V_NEGM + s_*4} offset:{s_*512}")
            E(f"ds_write_b32 v3, v{V_L + s_*4} offset:{s_*512 + 256}")
        for jl in range(8):
            E(f"ds_write_b128 v{5 + (jl >> 2)}, {rng('a', acc_o(4, jl))} offset:{(jl & 3)*1024}")
        E(f"""s_mov_b64 s[72:73], 0
        s_mov_b32 s{S_XRB}, 0x21800000
        v_mov_b32 v{V_T3}, 0x5d800000
        v_mov_b32 v{V_P}, 0
        v_mov_b32 v{V_P+1}, 0
        v_mov_b32 v{V_P+2}, 0
        v_mov_b32 v{V_P+3}, 0
        s_xor_b32 s39, s{S_W}, 2
        s_mul_i32 s39, s39, 2560
        v_add_u32 v4, s39, v2
        s_lshl_b32 s39, s{S_W}, 11
        v_add_u32 v5, s39, v8
        v_lshlrev_b32 v7, 4, v{L}
        s_mul_i32 s{S_XOFF}, s{S_ITEM}, 36864
        s_lshl_b32 s{S_WOFF}, s{S_W}, 10
        s_add_u32 s{S_WOFF}, s{S_WOFF}, {32*1024}
        s_add_u32 s{S_WOFF}, s{S_WOFF}, s{S_XOFF}
        s_lshl_b32 s39, s{S_QH}, 14
        s_lshl_b32 s40, s{S_HH}, 11
        s_add_u32 s39, s39, s40
        s_add_u32 s{S_XOFF}, s{S_XOFF}, s39
        """)
        E("s_waitcnt lgkmcnt(0)\ns_barrier")
        if self.cstamp: E(f"s_waitcnt lgkmcnt(0)\ns_memtime s[48:49]\ns_waitcnt lgkmcnt(0)\ns_cmp_eq_u32 s{S_ITEM}, 0\ns_cselect_b32 s84, s48, s84")
        for s_ in range(4):
            E(f"ds_read_b32 v{120 + 2*s_}, v4 offset:{s_*512}")
            E(f"ds_read_b32 v{121 + 2*s_}, v4 offset:{s_*512 + 256}")
        for ww in range(4):
            E(f"ds_read_b32 v{128 + 2*ww}, v2 offset:{ww*2560 + 4*512}")
            E(f"ds_read_b32 v{129 + 2*ww}, v2 offset:{ww*2560 + 4*512 + 256}")
        for ww in range(4):
            for x in range(2):
                E(f"ds_read_b128 {rng('v', 160 + (ww*2+x)*4)}, v5 offset:{ww*8192 + x*1024}")
        E(f"""
        s_lshl_b32 s39, s{S_W}, 14
        v_add_u32 v3, s39, v8
        s_xor_b32 s39, s39, {2 << 14}
        v_add_u32 v4, s39, v8
        """)
        for s_ in range(4):
            for r in range(16):
                E(f"v_accvgpr_read_b32 v{192 + 16*(s_ % 3) + r if s_ < 3 else 96 + r}, a{acc_o(s_, 0) + r}")
        E("s_waitcnt lgkmcnt(0)\ns_barrier")
        if self.cstamp: E(f"s_waitcnt lgkmcnt(0)\ns_memtime s[48:49]\ns_waitcnt lgkmcnt(0)\ns_cmp_eq_u32 s{S_ITEM}, 0\ns_cselect_b32 s85, s48, s85")
        for s_ in range(4):
            for x in range(4):
                E(f"ds_write_b128 v3, {rng('a', acc_o(s_, 4 + x))} offset:{(s_*4+x)*1024}")
        for s_ in range(4):
            nm, l_ = V_NEGM + 4 * s_, V_L + 4 * s_
            no, lo = 120 + 2 * s_, 121 + 2 * s_
            E(f"""
            v_min_f32 v2, v{nm}, v{no}
            v_sub_f32 v6, v2, v{nm}
            v_sub_f32 v5, v2, v{no}
            v_exp_f32 v6, v6
            v_exp_f32 v5, v5
            s_nop 0
            v_mul_f32 v9, v6, v{l_}
            v_fma_f32 v9, v5, v{lo}, v9
            v_cmp_nge_f32 s[60:61], v9, s{S_XRB}
            v_cmp_nle_f32 vcc, v9, v{V_T3}
            v_rcp_f32 v9, v9
            s_or_b64 s[72:73], s[72:73], s[60:61]
            s_or_b64 s[72:73], s[72:73], vcc
            v_mul_f32 v{136+4*s_}, v6, v9
            v_mul_f32 v{137+4*s_}, v6, v9
            v_mul_f32 v{138+4*s_}, v5, v9
            v_mul_f32 v{139+4*s_}, v5, v9
            """)
        E(f"""
        v_min_f32 v2, v128, v130
        v_min_f32 v6, v132, v134
        v_min_f32 v2, v2, v6
        """)
        for ww in range(4):
            E(f"v_sub_f32 v{152+2*ww}, v2, v{128+2*ww}\nv_exp_f32 v{152+2*ww}, v{152+2*ww}")
        E(f"""
        s_nop 0
        v_mul_f32 v9, v152, v129
        v_fma_f32 v9, v154, v131, v9
        v_fma_f32 v9, v156, v133, v9
        v_fma_f32 v9, v158, v135, v9
        v_cmp_nge_f32 s[60:61], v9, s{S_XRB}
        v_cmp_nle_f32 vcc, v9, v{V_T3}
        v_rcp_f32 v9, v9
        s_or_b64 s[72:73], s[72:73], s[60:61]
        s_or_b64 s[72:73], s[72:73], vcc
        """)
        for ww in range(4): E(f"v_mul_f32 v{152+2*ww}, v{152+2*ww}, v9\nv_mov_b32 v{153+2*ww}, v{152+2*ww}")
        for r in range(8):
            E(f"v_mul_f32 v{112+r}, v{160+r}, v152")
        for ww in range(1, 4):
            for r in range(8):
                E(f"v_fma_f32 v{112+r}, v{160+ww*8+r}, v{152+2*ww}, v{112+r}")
        for r in range(4):
            E(f"v_fma_f32 v{V_P+2}, v{112+2*r}, v{V_P}, v{V_P+2}")
            E(f"v_fma_f32 v{V_P+3}, v{113+2*r}, v{V_P}, v{V_P+3}")
            E(f"v_cvt_pk_bf16_f32 v{V_P+4+r}, v{112+2*r}, v{113+2*r}")
        E(f"buffer_store_dwordx4 {rng('v', V_P+4)}, v7, s[20:23], s{S_WOFF} offen{self.st_flags}")
        mine = lambda s_: (192 + 16 * s_) if s_ < 3 else 96
        for s_ in range(4):
            for r in range(16):
                E(f"v_mul_f32 v{mine(s_)+r}, v{mine(s_)+r}, v{136+4*s_}")
        if self.cstamp: E(f"s_waitcnt lgkmcnt(0)\ns_memtime s[48:49]\ns_waitcnt lgkmcnt(0)\ns_cmp_eq_u32 s{S_ITEM}, 0\ns_cselect_b32 s86, s48, s86")
        E("s_waitcnt lgkmcnt(0)\ns_barrier")
        if self.cstamp: E(f"s_waitcnt lgkmcnt(0)\ns_memtime s[48:49]\ns_waitcnt lgkmcnt(0)\ns_cmp_eq_u32 s{S_ITEM}, 0\ns_cselect_b32 s87, s48, s87")
        recv = lambda s_: 160 + 16 * (s_ % 2)
        def rd(s_):
            for x in range(4):
                E(f"ds_read_b128 {rng('v', recv(s_) + 4*x)}, v4 offset:{(s_*4+x)*1024}")
        rd(0); rd(1)
        for s_ in range(4):
            m_, rc = mine(s_), recv(s_)
            for r in range(16):
                E(f"v_fma_f32 v{m_+r}, v{rc+r}, v{138+4*s_}, v{m_+r}")
            if s_ + 2 < 4: rd(s_ + 2)
            pk = 56 + 8 * s_
            for r in range(8):
                E(f"v_fma_f32 v{V_P+2}, v{m_+2*r}, v{V_P}, v{V_P+2}")
                E(f"v_fma_f32 v{V_P+3}, v{m_+2*r+1}, v{V_P}, v{V_P+3}")
                E(f"v_cvt_pk_bf16_f32 v{pk+r}, v{m_+2*r}, v{m_+2*r+1}")
            E(f"s_add_u32 s39, s{S_XOFF}, {s_*4096}")
            for p in range(2):
                E(f"buffer_store_dwordx4 {rng('v', pk+4*p)}, v7, s[20:23], s39 offen offset:{1024*p}{self.st_flags}")
        E(f"""
        v_cmp_u_f32 vcc, v{V_P+2}, v{V_P+3}
        s_nop 1
        s_or_b64 s[72:73], s[72:73], vcc
        s_cmp_lg_u64 s[72:73], 0
        s_cselect_b32 s39, 1, {1 if self.force_bad else 0}
        s_xor_b32 s40, s{S_SAFE}, 1
        s_and_b32 s39, s39, s40
        s_lshl_b32 s39, s39, s{S_ITEM}
        s_or_b32 s{S_BAD}, s{S_BAD}, s39
        s_waitcnt lgkmcnt(0)
        """)
        if self.cstamp: E(f"s_waitcnt lgkmcnt(0)\ns_memtime s[48:49]\ns_waitcnt lgkmcnt(0)\ns_cmp_eq_u32 s{S_ITEM}, 0\ns_cselect_b32 s88, s48, s88")
        it, _ = finalize_linear(E.items)
        o = Prog(); o.extend(it)
        return o

    def combine_fast(self):
        n = self.name
        L = V_LANE
        E = Prog()
        if self.cstamp: E(f"s_waitcnt lgkmcnt(0)\ns_memtime s[64:65]\ns_waitcnt lgkmcnt(0)\ns_cmp_eq_u32 s{S_ITEM}, 1\ns_cselect_b32 s82, s64, s82")
        E("s_nop 7\ns_waitcnt lgkmcnt(0)\ns_barrier")
        if self.cstamp: E(f"s_waitcnt lgkmcnt(0)\ns_memtime s[64:65]\ns_waitcnt lgkmcnt(0)\ns_cmp_eq_u32 s{S_ITEM}, 1\ns_cselect_b32 s83, s64, s83")
        E(f"""
        v_lshlrev_b32 v8, 4, v{L}
        s_lshl_b32 s39, s{S_W}, 14
        s_add_u32 s39, s39, {STG}
        v_add_u32 v3, s39, v8
        s_xor_b32 s40, s{S_W}, 2
        s_lshl_b32 s40, s40, 14
        s_add_u32 s40, s40, {STG}
        v_add_u32 v4, s40, v8
        """)
        mine = lambda s_: (192 + 16 * s_) if s_ < 3 else 96
        for s_ in range(4):
            for x in range(4):
                E(f"ds_write_b128 v3, {rng('a', acc_o(s_, 4 + x))} offset:{(s_*4+x)*1024}")
                for r in range(4):
                    E(f"v_accvgpr_read_b32 v{mine(s_) + 4*x + r}, a{acc_o(s_, 0) + 4*x + r}")
        for lp in range(4):
            E(f"""
            s_lshl_b32 s39, s{S_HH}, 1
            s_xor_b32 s39, s39, {lp}
            s_sub_u32 s40, s{S_W}, s39
            s_sub_u32 s40, s40, 1
            s_and_b32 s40, s40, 3
            s_mul_i32 s39, s39, 3
            s_add_u32 s39, s39, s40
            s_lshl_b32 s39, s39, 11
            s_cmp_eq_u32 s40, 3
            s_cselect_b32 s39, 24576, s39
            s_add_u32 s39, s39, s{S_FREE}
            v_add_u32 v{120+lp}, s39, v8
            """)
            for x in range(2):
                E(f"ds_write_b128 v{120+lp}, {rng('a', acc_o(4, 2*lp + x))} offset:{x*1024}")
        E(f"""
        v_lshlrev_b32 v2, 2, v{L}
        s_add_u32 s39, s{S_FREE}, 26624
        v_add_u32 v2, s39, v2
        s_mul_i32 s39, s{S_W}, 1280
        v_add_u32 v5, s39, v2
        """)
        for s_ in range(5):
            E(f"ds_write_b32 v5, v{V_L + s_*4} offset:{s_*256}")
        if self.cstamp: E(f"s_waitcnt lgkmcnt(0)\ns_memtime s[64:65]\ns_waitcnt lgkmcnt(0)\ns_cmp_eq_u32 s{S_ITEM}, 1\ns_cselect_b32 s84, s64, s84")
        E(f"s_cmp_lg_u32 s{S_QH}, 0\ns_cbranch_scc1 {n}_cf1")
        for r in range(8): E(f"v_accvgpr_read_b32 v{112+r}, a{acc_o(4, 0) + r}")
        E(f"s_branch {n}_cf2")
        E.label(f"{n}_cf1")
        for r in range(8): E(f"v_accvgpr_read_b32 v{112+r}, a{acc_o(4, 2) + r}")
        E.label(f"{n}_cf2")
        E(f"""
        s_mov_b64 s[72:73], 0
        s_mov_b32 s{S_XRB}, 0x21800000
        v_mov_b32 v{V_T3}, 0x5d800000
        v_mov_b32 v{V_P}, 0
        v_mov_b32 v{V_P+2}, 0
        v_mov_b32 v{V_P+3}, 0
        s_xor_b32 s39, s{S_W}, 2
        s_mul_i32 s39, s39, 1280
        v_add_u32 v5, s39, v2
        s_mul_i32 s39, s{S_W}, 6144
        s_add_u32 s39, s39, s{S_FREE}
        v_add_u32 v6, s39, v8
        v_lshlrev_b32 v7, 4, v{L}
        s_mul_i32 s{S_XOFF}, s{S_ITEM}, 36864
        s_lshl_b32 s{S_WOFF}, s{S_W}, 10
        s_add_u32 s{S_WOFF}, s{S_WOFF}, {32*1024}
        s_add_u32 s{S_WOFF}, s{S_WOFF}, s{S_XOFF}
        s_lshl_b32 s39, s{S_QH}, 14
        s_lshl_b32 s40, s{S_HH}, 11
        s_add_u32 s39, s39, s40
        s_add_u32 s{S_XOFF}, s{S_XOFF}, s39
        """)
        if self.cstamp: E(f"s_waitcnt lgkmcnt(0)\ns_memtime s[64:65]\ns_waitcnt lgkmcnt(0)\ns_cmp_eq_u32 s{S_ITEM}, 1\ns_cselect_b32 s85, s64, s85")
        E("s_waitcnt lgkmcnt(0)\ns_barrier")
        for s_ in range(4): E(f"ds_read_b32 v{124+s_}, v5 offset:{s_*256}")
        for ww in range(4): E(f"ds_read_b32 v{128+ww}, v2 offset:{ww*1280 + 4*256}")
        for rk in range(3):
            for x in range(2):
                E(f"ds_read_b128 {rng('v', 136 + (rk*2+x)*4)}, v6 offset:{rk*2048 + x*1024}")
        recv = lambda s_: 160 + 16 * (s_ % 2)
        def rd(s_):
            for x in range(4):
                E(f"ds_read_b128 {rng('v', recv(s_) + 4*x)}, v4 offset:{(s_*4+x)*1024}")
        rd(0)
        for s_ in range(4):
            E(f"""
            v_add_f32 v{124+s_}, v{124+s_}, v{V_L + 4*s_}
            v_cmp_nge_f32 s[60:61], v{124+s_}, s{S_XRB}
            v_cmp_nle_f32 vcc, v{124+s_}, v{V_T3}
            v_rcp_f32 v{124+s_}, v{124+s_}
            s_or_b64 s[72:73], s[72:73], s[60:61]
            s_or_b64 s[72:73], s[72:73], vcc
            """)
        E(f"""
        v_add_f32 v128, v128, v129
        v_add_f32 v130, v130, v131
        v_add_f32 v128, v128, v130
        v_cmp_nge_f32 s[60:61], v128, s{S_XRB}
        v_cmp_nle_f32 vcc, v128, v{V_T3}
        v_rcp_f32 v128, v128
        s_or_b64 s[72:73], s[72:73], s[60:61]
        s_or_b64 s[72:73], s[72:73], vcc
        """)
        rd(1)
        for rk in range(3):
            for r in range(8): E(f"v_add_f32 v{112+r}, v{112+r}, v{136+rk*8+r}")
        for r in range(8): E(f"v_mul_f32 v{112+r}, v{112+r}, v128")
        for r in range(4):
            E(f"v_fma_f32 v{V_P+2}, v{112+2*r}, v{V_P}, v{V_P+2}")
            E(f"v_fma_f32 v{V_P+3}, v{113+2*r}, v{V_P}, v{V_P+3}")
            E(f"v_cvt_pk_bf16_f32 v{V_P+4+r}, v{112+2*r}, v{113+2*r}")
        E(f"buffer_store_dwordx4 {rng('v', V_P+4)}, v7, s[20:23], s{S_WOFF} offen{self.st_flags}")
        if self.cstamp: E(f"s_waitcnt lgkmcnt(0)\ns_memtime s[64:65]\ns_waitcnt lgkmcnt(0)\ns_cmp_eq_u32 s{S_ITEM}, 1\ns_cselect_b32 s86, s64, s86")
        for s_ in range(4):
            m_, rc = mine(s_), recv(s_)
            for r in range(16): E(f"v_add_f32 v{m_+r}, v{m_+r}, v{rc+r}")
            if s_ + 2 < 4: rd(s_ + 2)
            for r in range(16): E(f"v_mul_f32 v{m_+r}, v{m_+r}, v{124+s_}")
            pk = 56 + 8 * s_
            for r in range(8):
                E(f"v_fma_f32 v{V_P+2}, v{m_+2*r}, v{V_P}, v{V_P+2}")
                E(f"v_fma_f32 v{V_P+3}, v{m_+2*r+1}, v{V_P}, v{V_P+3}")
                E(f"v_cvt_pk_bf16_f32 v{pk+r}, v{m_+2*r}, v{m_+2*r+1}")
            E(f"s_add_u32 s39, s{S_XOFF}, {s_*4096}")
            for p in range(2):
                E(f"buffer_store_dwordx4 {rng('v', pk+4*p)}, v7, s[20:23], s39 offen offset:{1024*p}{self.st_flags}")
        if self.cstamp: E(f"s_waitcnt lgkmcnt(0)\ns_memtime s[64:65]\ns_waitcnt lgkmcnt(0)\ns_cmp_eq_u32 s{S_ITEM}, 1\ns_cselect_b32 s87, s64, s87")
        E(f"""
        v_cmp_u_f32 vcc, v{V_P+2}, v{V_P+3}
        s_nop 1
        s_or_b64 s[72:73], s[72:73], vcc
        s_cmp_lg_u64 s[72:73], 0
        s_cselect_b32 s39, 1, {1 if self.force_bad else 0}
        s_lshl_b32 s39, s39, s{S_ITEM}
        s_or_b32 s{S_BAD}, s{S_BAD}, s39
        s_waitcnt lgkmcnt(0)
        s_cmp_lg_u32 s{S_ITEM}, 0
        s_cbranch_scc1 {n}_cf3
        s_barrier
        """)
        for g in self.ring_groups():
            for x in g: E(x)
        E.label(f"{n}_cf3")
        if self.cstamp: E(f"s_waitcnt lgkmcnt(0)\ns_memtime s[64:65]\ns_waitcnt lgkmcnt(0)\ns_cmp_eq_u32 s{S_ITEM}, 1\ns_cselect_b32 s88, s64, s88")
        if self.c_nost: E.items = [x for x in E.items if not x.op.startswith('buffer_store')]
        if self.c_nonan: E.items = [x for x in E.items if not (x.op == 'v_fma_f32' and f"v{V_P+2}," in x.text or x.op == 'v_fma_f32' and f"v{V_P+3}," in x.text)]
        if self.c_now: E.items = [x for x in E.items if not x.op.startswith('ds_write_b128')]
        it, _ = finalize_linear(E.items)
        o = Prog(); o.extend(it)
        return o

    def agree_bad(self):
        E = Prog()
        E(f"""
        s_barrier
        v_mov_b32 v5, {STG}
        s_lshl_b32 s40, s{S_W}, 2
        v_add_u32 v6, s40, v5
        v_mov_b32 v3, s{S_BAD}
        ds_write_b32 v6, v3
        s_waitcnt lgkmcnt(0)
        s_barrier
        ds_read_b128 v[120:123], v5
        s_waitcnt lgkmcnt(0)
        v_or_b32 v120, v120, v121
        v_or_b32 v122, v122, v123
        v_or_b32 v120, v120, v122
        s_nop 0
        v_readfirstlane_b32 s{S_BAD}, v120
        s_nop 3
        """)
        it, _ = finalize_linear(E.items)
        o = Prog(); o.extend(it)
        return o

    def stamp(self, out, idx_expr, sel=None):
        if not self.stamps: return
        if (self.qstamp or self.cstamp) and idx_expr not in (0, 1): return
        base = idx_expr
        u = self.nst; self.nst += 1
        out(f"""s_waitcnt lgkmcnt(0)
        {'s_memrealtime' if (self.dbg_stamps is not None or self.dbg_rt) else 's_memtime'} s[72:73]
        s_waitcnt lgkmcnt(0)
        s_cmp_eq_u32 s{sel if sel is not None else S_ITEM}, 0
        s_cselect_b32 s{80+base}, s72, s{80+base}
        s_cselect_b32 s{88+base}, s{88+base}, s72""")

    def build(self):
        n = self.name
        out = Prog()
        st, _ = finalize_linear(self.setup().items)
        out.extend(st)
        cold = Prog()
        out.label(f"{n}_qpL")
        self.stamp(out, 0)
        out.extend(self.qp2('x'))
        out(f"s_cmp_lg_u32 s{S_SAFE}, 0\ns_cbranch_scc1 {n}_qredo")
        out.extend(self.qconv(0, not self.kvdma, 1))
        out.extend(self.lq())
        out("s_barrier")
        out.extend(self.qconv(1, not self.kvdma, 2))
        out.label(f"{n}_qdone")
        cold.label(f"{n}_qredo")
        cold(f"s_cmp_lg_u32 s{S_ITEM}, 0\ns_cbranch_scc1 {n}_qredo1")
        cold.extend(self.qconv(0, not self.kvdma))
        cold(f"s_branch {n}_qredo2")
        cold.label(f"{n}_qredo1")
        cold.extend(self.qconv(1, not self.kvdma))
        cold.label(f"{n}_qredo2")
        cold.extend(self.lq())
        cold(f"s_branch {n}_safe")
        self.stamp(out, 1)
        out.label(f"{n}_att")
        self.stamp(out, 2)
        out(f"s_cmp_lg_u32 s{S_QH}, 0\ns_cbranch_scc1 {n}_q1")
        self.x_nomax = self.fast
        out.extend(self.attention(0, 'a'))
        out(f"s_branch {n}_cmb")
        out.label(f"{n}_q1")
        out.extend(self.attention(1, 'b'))
        cold.label(f"{n}_safe")
        self.x_nomax = False
        st, self.stamps = self.stamps, False
        cold(f"s_cmp_lg_u32 s{S_QH}, 0\ns_cbranch_scc1 {n}_sq1")
        cold.extend(self.attention(0, 'c'))
        cold(f"s_branch {n}_scmb")
        cold.label(f"{n}_sq1")
        cold.extend(self.attention(1, 'd'))
        cold(f"s_branch {n}_scmb")
        self.stamps = st
        out.label(f"{n}_cmb")
        self.stamp(out, 3)
        out(f"s_cmp_lg_u32 s{S_ITEM}, 0\ns_cbranch_scc1 {n}_nolq")
        out.extend(self.lq())
        out.label(f"{n}_nolq")
        if self.cfast and self.fast:
            out.extend(self.combine_fast())
        else:
            out.extend(self.combine(0))
        self.stamp(out, 4)
        out(f"s_add_u32 s{S_ITEM}, s{S_ITEM}, 1\ns_cmp_ge_u32 s{S_ITEM}, 2\ns_cbranch_scc1 {n}_agree")
        out(f"s_branch {n}_att")
        cold.label(f"{n}_scmb")
        st2, self.stamps, cs = self.stamps, False, self.cstamp
        self.cstamp = False
        cold.extend(self.combine(0))
        self.stamps, self.cstamp = st2, cs
        cold(f"s_branch {n}_redo")
        out.label(f"{n}_agree")
        out.extend(self.agree_bad())
        out.label(f"{n}_redo")
        out(f"s_cmp_eq_u32 s{S_BAD}, 0\ns_cbranch_scc1 {n}_fin")
        out(f"""s_and_b32 s39, s{S_BAD}, 1
        s_xor_b32 s{S_ITEM}, s39, 1
        s_lshl_b32 s39, 1, s{S_ITEM}
        s_andn2_b32 s{S_BAD}, s{S_BAD}, s39
        s_mov_b32 s{S_SAFE}, 1
        s_lshl_b32 s{S_GOFF}, s{S_ITEM}, 18
        s_add_u32 s{S_DSLOT}, s{S_DBASE}, {SLOT if self.kvdma else 0}
        s_mov_b32 s{S_RSLOT}, {SLOT if self.kvdma else 0}
        s_branch {n}_qpL""")
        out.label(f"{n}_fin")
        out(f"""s_lshl_b32 s39, s2, 7
        s_add_u32 s39, s39, {48 << 20}
        s_add_u32 s72, s68, s39
        s_addc_u32 s73, s69, 0
        v_mov_b32 v2, 0
        v_lshlrev_b32 v3, 2, v{V_LANE}
        s_mov_b32 exec_hi, 0
        global_store_dword v3, v2, s[72:73]
        s_mov_b32 exec_hi, -1""")
        self.cold = cold
        if self.stamps and self.dbg_stamps is not None:
            out(f"""s_cmp_lg_u32 s2, {self.dbg_stamps}
            s_cbranch_scc1 {n}_done
            s_cmp_lg_u32 s{S_W}, 0
            s_cbranch_scc1 {n}_done
            s_memrealtime s[72:73]
            s_waitcnt lgkmcnt(0)
            s_mov_b32 s95, s72
            s_add_u32 s68, s68, {64 << 20}
            s_addc_u32 s69, s69, 0
            v_mov_b32 v2, 0""")
            for i in range(16):
                out(f"v_mov_b32 v3, s{80+i}\nglobal_store_dword v2, v3, s[68:69] offset:{4*i}")
        elif self.stamps:
            out(f"""s_lshl_b32 s39, s2, 2
            s_add_u32 s39, s39, s{S_W}
            s_lshl_b32 s39, s39, 6
            s_add_u32 s39, s39, {64 << 20}
            s_add_u32 s68, s68, s39
            s_addc_u32 s69, s69, 0
            v_mov_b32 v2, 0""")
            for i in range(16):
                out(f"v_mov_b32 v3, s{80+i}\nglobal_store_dword v2, v3, s[68:69] offset:{4*i}")
        if self.fuse is not None:
            out.label(f"{n}_pub")
            out(f"""s_load_dwordx2 s[78:79], s[0:1], 88
            s_waitcnt vmcnt(0) lgkmcnt(0)
            s_barrier
            s_cmp_lg_u32 s{S_W}, 0
            s_cbranch_scc1 {n}_pub2
            s_lshl_b32 s39, s{S_BLK}, 3
            s_add_u32 s39, s39, s{S_B}
            s_lshl_b32 s39, s39, 2
            v_mov_b32 v2, s39
            s_lshl_b32 s40, 3, s{S_H0}
            v_mov_b32 v3, s40
            s_mov_b64 exec, 1
            global_atomic_or v2, v3, s[78:79]
            s_mov_b64 exec, -1
            {n}_pub2:
            {n}_op:""")
            out.extend(self.fuse)
        out.label(f"{n}_done")
        out("s_endpgm")
        out.extend(self.cold)
        labs = {it.text for it in out.items if it.kind == 'label'}
        for r in self.rare:
            back = r.items[-1].ops[0] + ':'
            if back in labs: out.extend(r)
        return kernel_text(n, out.text(), vgpr=512, sgpr=102, acc=256), LDS_TOTAL

if __name__ == '__main__':
    import sys
    b = dict(nt_w=True)
    variants = [('fa_a_kernel', dict(b)), ('fa_c_kernel', dict(b, cstamp=True)), ('fa_forcebad_kernel', dict(b, force_bad=True))]
    hdr = ''; body = ''
    for nm, kw in variants:
        txt, lds = FA(name=nm, stamps=True, **kw).build()
        hdr += f"; @launch kernel={nm} grid=(256,1,1) block=(256,1,1) lds={lds}\n"
        body += txt
    open('fa.s', 'w').write(hdr + '.amdgcn_target "amdgcn-amd-amdhsa--gfx950"\n.text\n' + body)
```

```python
from asmlib import *

O_WS_OFF = 0
XCH_OFF = 32 << 20
FLAG_OFF = 48 << 20
STG = 34816
WOFF = 18432
NB = 4

def rng(f, b, n=4): return f"{f}[{b}:{b+n-1}]"

def gen_oproj(name='oproj_kernel', stamps=False, rt=False, dbg=False, nt_w=False, xfl=' sc1', fused=False):
    RT = 's_memrealtime' if (dbg or rt) else 's_memtime'
    ntw = ' nt' if nt_w else ''
    P = Prog()
    def stamp(X, i):
        if stamps: X(f"s_waitcnt lgkmcnt(0)\n{RT} s[50:51]\ns_waitcnt lgkmcnt(0)\ns_mov_b32 s{60+i}, s50")
    if not fused: P(f"s_cmp_ge_u32 s2, 256\ns_cbranch_scc1 {name}_done")
    else: P("s_load_dwordx2 s[78:79], s[0:1], 88")
    P(f"""
    s_load_dwordx2 s[4:5], s[0:1], 96
    s_load_dwordx2 s[6:7], s[0:1], 80
    s_load_dwordx2 s[8:9], s[0:1], 32
    s_load_dwordx2 s[10:11], s[0:1], 72
    v_lshrrev_b32 v1, 6, v0
    v_and_b32 v2, 63, v0
    v_readfirstlane_b32 s24, v1
    s_and_b32 s32, s2, 7
    s_lshr_b32 s33, s2, 3
    s_lshr_b32 s25, s32, 2
    s_and_b32 s28, s33, 1
    s_and_b32 s34, s32, 1
    s_lshl_b32 s34, s34, 2
    s_lshr_b32 s35, s33, 1
    s_and_b32 s35, s35, 3
    s_add_u32 s26, s34, s35
    s_lshr_b32 s34, s32, 1
    s_and_b32 s34, s34, 1
    s_lshl_b32 s34, s34, 2
    s_lshr_b32 s35, s33, 3
    s_add_u32 s27, s34, s35
    s_and_b32 s29, s24, 1
    s_lshr_b32 s30, s24, 1
    """)
    P("v_lshlrev_b32 v10, 4, v2")
    for x in range(5):
        P(f"""
        s_mul_i32 s32, s24, 5
        s_add_u32 s32, s32, {x}
        s_cmp_gt_u32 s32, 17
        s_cselect_b32 s33, 2, 0
        s_sub_u32 s32, s32, s33
        s_lshl_b32 s{70+x}, s32, 10
        s_and_b32 s33, s32, 1
        s_lshr_b32 s32, s32, 1
        s_lshl_b32 s32, s32, 2
        s_add_u32 s32, s32, s33
        s_lshl_b32 s32, s32, 10
        v_add_u32 v{146+x}, s32, v10
        """)
    P("""
    v_lshrrev_b32 v3, 4, v2
    v_and_b32 v4, 15, v2
    v_lshlrev_b32 v5, 2, v3
    v_xor_b32 v4, v4, v5
    v_lshlrev_b32 v4, 4, v4
    v_lshlrev_b32 v3, 11, v3
    v_add_u32 v10, v3, v4
    """)
    for x in range(4):
        P(f"""
        s_lshl_b32 s32, s24, 2
        s_add_u32 s32, s32, {x}
        s_and_b32 s33, s32, 7
        s_lshr_b32 s33, s33, 1
        s_lshl_b32 s33, s33, 4
        v_xor_b32 v11, s33, v10
        s_lshl_b32 s32, s32, 13
        v_add_u32 v{151+x}, s32, v11
        """)
    P(f"s_lshl_b32 s75, s24, 12\ns_add_u32 s75, s75, {WOFF}")
    P("s_waitcnt lgkmcnt(0)")
    stamp(P, 0)
    P(f"""
    s_add_u32 s52, s4, {FLAG_OFF}
    s_addc_u32 s53, s5, 0
    s_lshl_b32 s32, s25, 3
    s_add_u32 s32, s32, s26
    s_mul_i32 s32, s32, {32*36864}
    s_add_u32 s12, s4, s32
    s_addc_u32 s13, s5, 0
    s_and_b32 s13, s13, 0xffff
    s_mov_b32 s14, {32*36864}
    s_mov_b32 s15, 0x20000
    s_cmp_eq_u32 s25, 0
    s_cselect_b32 s16, s8, s10
    s_cselect_b32 s17, s9, s11
    s_lshl_b32 s32, s27, 8
    s_add_u32 s16, s16, s32
    s_addc_u32 s17, s17, 0
    s_and_b32 s17, s17, 0xffff
    s_sub_u32 s18, {4096*2048}, s32
    s_mov_b32 s19, 0x20000
    s_mul_i32 s36, s28, {16*36864}
    s_add_u32 s38, s36, {16*36864}
    s_lshl_b32 s37, s28, 22
    s_add_u32 s39, s37, {1 << 22}
    s_mov_b32 s40, 0
    """)
    def dma_groups(buf, part='OW'):
        L = [[f"s_cmp_lt_u32 s36, s38", f"s_cselect_b32 s41, s36, {32*36864}", f"s_cselect_b32 s42, s37, {4096*2048}"]]
        if 'O' in part:
            for x in range(5):
                L.append([f"s_add_u32 m0, s{70+x}, {buf*STG}", f"buffer_load_dwordx4 v{146+x}, s[12:15], s41 offen lds"])
        if 'W' in part:
            for x in range(4):
                L.append([f"s_add_u32 m0, s75, {buf*STG + x*1024}", f"buffer_load_dwordx4 v{151+x}, s[16:19], s42 offen{ntw} lds"])
        step = 2048 if (buf & 1) == 0 else 36864 - 2048
        adv = []
        if 'O' in part: adv.append(f"s_add_u32 s36, s36, {step}")
        if 'W' in part: adv.append(f"s_add_u32 s37, s37, {64*2048}")
        L.append(adv)
        return L
    if not fused:
        for g in dma_groups(0):
            for x in g: P(x)
    else:
        for b in range(NB):
            for g in dma_groups(b, 'W'):
                for x in g: P(x)
    P(f"""
    v_lshrrev_b32 v4, 4, v2
    v_lshlrev_b32 v5, 4, v2
    s_lshl_b32 s32, s29, 10
    v_add_u32 v140, s32, v5
    v_add_u32 v141, {2*STG}, v140
    v_lshrrev_b32 v3, 2, v2
    v_and_b32 v3, 3, v3
    v_and_b32 v5, 3, v2
    v_xor_b32 v5, v5, v4
    v_lshlrev_b32 v5, 4, v5
    v_lshlrev_b32 v6, 6, v3
    v_add_u32 v5, v5, v6
    v_lshlrev_b32 v6, 3, v4
    v_add_u32 v6, v6, v3
    v_lshlrev_b32 v6, 8, v6
    s_lshl_b32 s32, s29, 13
    s_add_u32 s32, s32, {WOFF}
    v_add_u32 v6, s32, v6
    """)
    for p in range(2):
        P(f"""
        s_xor_b32 s32, s29, {p}
        s_lshl_b32 s33, s30, 1
        s_add_u32 s32, s32, s33
        s_lshl_b32 s32, s32, 6
        v_xor_b32 v7, s32, v5
        v_add_u32 v{142+p}, v6, v7
        v_add_u32 v{144+p}, {2*STG}, v{142+p}
        """)
    if not fused:
        for b in range(1, NB):
            for g in dma_groups(b):
                for x in g: P(x)
    for r in range(144):
        P(f"v_accvgpr_write_b32 a{r}, 0")
    if fused:
        P(f"""
        s_cmp_lg_u32 s24, 0
        s_cbranch_scc1 {name}_rdy
        s_lshl_b32 s32, s25, 3
        s_add_u32 s32, s32, s26
        s_lshl_b32 s32, s32, 2
        v_mov_b32 v6, s32
        s_lshl_b32 s33, s28, 4
        s_lshl_b32 s33, 0xffff, s33
        s_mov_b32 s35, 0x100000
        {name}_wpoll:
        global_load_dword v7, v6, s[78:79] sc1
        s_waitcnt vmcnt(0)
        v_readfirstlane_b32 s32, v7
        s_sub_u32 s35, s35, 1
        s_and_b32 s32, s32, s33
        s_cmp_eq_u32 s32, s33
        s_cbranch_scc1 {name}_rdy
        s_sleep 2
        s_cmp_lg_u32 s35, 0
        s_cbranch_scc1 {name}_wpoll
        {name}_rdy:
        s_barrier
        """)
        for b in range(NB):
            for g in dma_groups(b, 'O'):
                for x in g: P(x)
    FB = [32, 32 + 52]
    def reads(setk, buf):
        b = FB[setk]
        hi = buf >> 1
        off = (buf & 1) * STG
        L = []
        for jl in range(4):
            a = b + 36 + 4 * jl
            p, h = jl >> 1, jl & 1
            L.append([f"ds_read_b64_tr_b16 v[{a}:{a+1}], v{142+2*hi+p} offset:{off + 8*h}"])
            L.append([f"ds_read_b64_tr_b16 v[{a+2}:{a+3}], v{142+2*hi+p} offset:{off + 8*h + 1024}"])
        for t in range(9):
            L.append([f"ds_read_b128 v[{b+4*t}:{b+4*t+3}], v{140+hi} offset:{off + t*2048}"])
        return L
    def mfmas(setk):
        b = FB[setk]
        L = []
        for t in range(9):
            for j in range(4):
                a = b + 36 + 4 * j
                acc = 16 * t + 4 * j
                L.append(f"v_mfma_f32_16x16x32_bf16 a[{acc}:{acc+3}], v[{a}:{a+3}], v[{b+4*t}:{b+4*t+3}], a[{acc}:{acc+3}]")
        return L
    P(f"s_waitcnt vmcnt({9*(NB-1) if not fused else 0})\ns_barrier")
    for g in reads(0, 0):
        for x in g: P(x)
    P("s_waitcnt lgkmcnt(0)")
    stamp(P, 1)
    P("s_mov_b32 s31, 8")
    pre, _ = finalize_linear(P.items)
    out = Prog(); out.extend(pre)
    body = Prog()
    for r in range(NB):
        cur, nxt = r & 1, 1 - (r & 1)
        body(f"s_waitcnt vmcnt({9*(NB-2)}) lgkmcnt(0)")
        body("s_barrier")
        M = mfmas(cur)
        R = reads(nxt, (r + 1) % NB)
        D = dma_groups(r)
        fill = [[] for _ in M]
        hv = []
        ri = di = 0
        while ri < len(R) or di < len(D):
            if di < len(D): hv.append(D[di]); di += 1
            for _ in range(2):
                if ri < len(R): hv.append(R[ri]); ri += 1
        k = 0
        for g in hv:
            pos = min(k, len(M) - 1)
            if 'm0' in g[0] and pos > 0 and not any('buffer_load' in y for y in fill[pos - 1]):
                fill[pos - 1].append(g[0]); fill[pos] += g[1:]
            else: fill[pos] += g
            if any(('ds_read' in y or 'buffer_load' in y) for y in g): k += 1
        for m, f in zip(M, fill):
            body(m)
            for x in f: body(x)
    body("s_sub_u32 s31, s31, 1")
    body("s_cmp_lg_u32 s31, 0")
    b_items, fifo = finalize_loop(body.items)
    out.label(f"{name}_loop")
    out.extend(b_items)
    out(f"s_cbranch_scc1 {name}_loop")
    E = Prog()
    stamp(E, 2)
    E("s_waitcnt vmcnt(0) lgkmcnt(0)\ns_nop 7\ns_barrier")
    E(f"""
    v_lshlrev_b32 v3, 4, v2
    s_mul_i32 s32, s24, 18432
    v_add_u32 v4, s32, v3
    s_xor_b32 s33, s24, 1
    s_mul_i32 s33, s33, 18432
    v_add_u32 v5, s33, v3
    """)
    for t in range(9):
        for x in range(2):
            acc = 16 * t + 8 + 4 * x
            E(f"ds_write_b128 v4, a[{acc}:{acc+3}] offset:{(t*2+x)*1024}")
    for t in range(9):
        for r in range(8): E(f"v_accvgpr_read_b32 v{32+8*t+r}, a{16*t+r}")
    E(f"""
    s_lshl_b32 s32, s2, 1
    s_add_u32 s32, s32, s29
    s_mul_i32 s32, s32, 18432
    s_add_u32 s44, s4, s32
    s_addc_u32 s45, s5, 0
    s_add_u32 s44, s44, {XCH_OFF}
    s_addc_u32 s45, s45, 0
    s_and_b32 s45, s45, 0xffff
    s_mov_b32 s46, 18432
    s_mov_b32 s47, 0x20000
    s_xor_b32 s33, s2, 8
    s_lshl_b32 s32, s33, 1
    s_add_u32 s32, s32, s29
    s_mul_i32 s32, s32, 18432
    s_add_u32 s56, s4, s32
    s_addc_u32 s57, s5, 0
    s_add_u32 s56, s56, {XCH_OFF}
    s_addc_u32 s57, s57, 0
    s_and_b32 s57, s57, 0xffff
    s_mov_b32 s58, 18432
    s_mov_b32 s59, 0x20000
    """)
    E("s_waitcnt lgkmcnt(0)\ns_barrier")
    for half in range(2):
        ts = range(0, 5) if half == 0 else range(5, 9)
        for t in ts:
            for x in range(2):
                E(f"ds_read_b128 {rng('v', 104 + 8*(t % 5) + 4*x)}, v5 offset:{(t*2+x)*1024}")
        for t in ts:
            for r in range(8): E(f"v_add_f32 v{32+8*t+r}, v{32+8*t+r}, v{104+8*(t % 5)+r}")
    E(f"s_cmp_eq_u32 s30, s28\ns_cbranch_scc1 {name}_keep")
    for t in range(9):
        for x in range(2):
            E(f"buffer_store_dwordx4 {rng('v', 32+8*t+4*x)}, v3, s[44:47], 0 offen offset:{0}{xfl}" .replace("0 offen offset:0", f"s{76} offen") if False else f"s_mov_b32 s76, {(t*2+x)*1024}\nbuffer_store_dwordx4 {rng('v', 32+8*t+4*x)}, v3, s[44:47], s76 offen{xfl}")
    E(f"""
    s_waitcnt vmcnt(0)
    s_xor_b32 s33, s2, 8
    s_lshl_b32 s33, s33, 7
    s_lshl_b32 s34, s29, 2
    s_add_u32 s33, s33, s34
    v_mov_b32 v6, s33
    v_mov_b32 v7, 1
    s_mov_b64 exec, 1
    global_store_dword v6, v7, s[52:53] sc1
    s_mov_b64 exec, -1
    s_branch {name}_sync
    """)
    E.label(f"{name}_keep")
    E(f"""
    s_lshl_b32 s33, s2, 7
    s_lshl_b32 s34, s29, 2
    s_add_u32 s33, s33, s34
    v_mov_b32 v6, s33
    s_mov_b32 s35, 0x100000
    """)
    E.label(f"{name}_poll")
    E(f"""
    global_load_dword v7, v6, s[52:53] sc1
    s_waitcnt vmcnt(0)
    v_readfirstlane_b32 s33, v7
    s_sub_u32 s35, s35, 1
    s_cmp_eq_u32 s33, 1
    s_cbranch_scc1 {name}_sync
    s_sleep 1
    s_cmp_lg_u32 s35, 0
    s_cbranch_scc1 {name}_poll
    """)
    E.label(f"{name}_sync")
    stamp(E, 4)
    E("s_barrier")
    E(f"s_cmp_lg_u32 s30, s28\ns_cbranch_scc1 {name}_fin")
    for t in range(9):
        for x in range(2):
            E(f"s_mov_b32 s76, {(t*2+x)*1024}\nbuffer_load_dwordx4 {rng('v', 104 + 8*t + 4*x if t < 4 else 160 + 8*(t-4) + 4*x)}, v3, s[56:59], s76 offen{' sc1' if xfl else ''}")
    E(f"""
    s_mul_i32 s32, s26, {144*4096}
    s_lshl_b32 s33, s25, 11
    s_add_u32 s32, s32, s33
    s_lshl_b32 s33, s27, 8
    s_add_u32 s32, s32, s33
    s_lshl_b32 s33, s30, 7
    s_add_u32 s32, s32, s33
    s_lshl_b32 s33, s29, 6
    s_add_u32 s32, s32, s33
    s_add_u32 s20, s6, s32
    s_addc_u32 s21, s7, 0
    s_and_b32 s21, s21, 0xffff
    s_sub_u32 s22, {8*144*4096}, s32
    s_mov_b32 s23, 0x20000
    v_and_b32 v9, 15, v2
    v_lshlrev_b32 v9, 12, v9
    v_lshrrev_b32 v21, 4, v2
    v_lshlrev_b32 v21, 4, v21
    v_add_u32 v9, v9, v21
    """)
    for t in range(9):
        src = 104 + 8 * t if t < 4 else 160 + 8 * (t - 4)
        E(f"s_waitcnt vmcnt({2*(8-t) + t})")
        for r in range(8): E(f"v_add_f32 v{32+8*t+r}, v{32+8*t+r}, v{src+r}")
        for r in range(4): E(f"v_cvt_pk_bf16_f32 v{208+4*(t % 3)+r}, v{32+8*t+2*r}, v{33+8*t+2*r}")
        E(f"s_mov_b32 s33, {t*16*4096}")
        E(f"buffer_store_dwordx4 {rng('v', 208+4*(t % 3))}, v9, s[20:23], s33 offen")
    E.label(f"{name}_fin")
    stamp(E, 3)
    if stamps and not dbg:
        E(f"""s_lshl_b32 s32, s2, 2
        s_add_u32 s32, s32, s24
        s_lshl_b32 s32, s32, 6
        s_add_u32 s32, s32, {(64 << 20) + (1 << 17)}
        s_add_u32 s4, s4, s32
        s_addc_u32 s5, s5, 0
        v_mov_b32 v2, 0""")
        for i in range(5):
            E(f"v_mov_b32 v3, s{60+i}\nglobal_store_dword v2, v3, s[4:5] offset:{4*i}")
    e_items, _ = finalize_linear(E.items)
    out.extend(e_items)
    if fused: return out
    out.label(f"{name}_done")
    out("s_endpgm")
    return kernel_text(name, out.text(), vgpr=400, sgpr=96, acc=256), NB * STG
```

```python
import sys, importlib
sys.path.insert(0, 'gen')
import fa as fa_mod, fa_v2, fa_v3, oproj3, oproj4
def make(path, fa_kw=None, op_kw=None, order='fo', mod=fa_mod, opmod=oproj3):
    f = mod.FA(name='fa_kernel', **(fa_kw or {}))
    t1, l1 = f.build()
    t2, l2 = opmod.gen_oproj('oproj_kernel', **(op_kw or {}))
    hdr = open('concat_heads__mha_block_cached__gqa_block_cached__near_ridge.s.ref').read().split('; Override')[0]
    for k in order:
        if k == 'f': hdr += f"; @launch kernel=fa_kernel grid=(256,1,1) block=(256,1,1) lds={l1}\n"
        else: hdr += f"; @launch kernel=oproj_kernel grid=(256,1,1) block=(256,1,1) lds={l2}\n"
    open(path, 'w').write(hdr + '.amdgcn_target "amdgcn-amd-amdhsa--gfx950"\n.text\n' + t1 + t2)
def make_fused(path, fa_kw=None, op_kw=None, kname='fa_kernel', listfmt=True):
    op = oproj4.gen_oproj(kname + '_o', fused=True, **(op_kw or {}))
    kw = dict(fa_kw or {})
    kw['op_label'] = kname + '_op'
    f = fa_mod.FA(name=kname, fuse=op, **kw)
    t1, l1 = f.build()
    hdr = open('concat_heads__mha_block_cached__gqa_block_cached__near_ridge.s.ref').read().split('; Override')[0]
    if listfmt: hdr += f"; @launch kernel={kname} grid=(256,1,1) block=(256,1,1) lds={l1}\n"
    else: hdr += f"; @launch grid=(256,1,1) block=(256,1,1) lds={l1}\n"
    open(path, 'w').write(hdr + '.amdgcn_target "amdgcn-amd-amdhsa--gfx950"\n.text\n' + t1)
if __name__ == '__main__':
    M = 'cdna_kernels/'
    D = 'dev/'
    base = dict(pf_wo=True, op_label='oproj_kernel', nt_w=True, pf_code2=True, st_flags=' sc1')
    make(M + 'concat_heads__mha_block_cached__gqa_block_cached__near_ridge.s', fa_kw=dict(base), opmod=oproj4)
    make(D + 'p_a.s', fa_kw=dict(base, stamps=True, dbg_rt=True), op_kw=dict(stamps=True, rt=True), opmod=oproj4)
    make(D + 'p_c.s', fa_kw=dict(base, stamps=True, dbg_rt=True, force_bad=True), op_kw=dict(stamps=True, rt=True), opmod=oproj4)
```

```python
from asmlib import *
import math

RING = 0
SLOT = 32768
STG = 98304
XB = [STG, STG + 18432]
WB = [STG + 36864 + 8192 * i for i in range(3)]
QX = STG
LDS_TOTAL = 163840
O_WS_OFF = 0
CSCALE = math.log2(math.e) / math.sqrt(128.0)

import struct
def f2u(x): return struct.unpack('<I', struct.pack('<f', x))[0]

V_LANE = 1
V_RING = 10
V_KPAT, V_VPAT, V_KA, V_VA = 20, 24, 28, 32
V_P = 36
V_MX, V_T1, V_T2, V_T3 = 48, 49, 50, 51
V_ONES = 52
V_NEGM = 56
V_L = 76
V_S = 96
V_KF = {'A': 120, 'B': 184}
V_VF = {'A': 152, 'B': 216}
A_O = 0
A_Q = 160
V_XD, V_WD = 106, 98
V_WD2 = 96
V_WPH = 112
V_ZERO = 116
QXBASE = 98304
V_PFW, V_PFX, V_PFD = 14, 15, 16
V_RINGK, V_RINGV = 17, 18
V_RINGH = 248
V_VA2 = 252
V_XPAT = 100
V_WPAT = 104
V_XA = 106
V_WA = 110
QF_W = [120, 156]
QF_X = [136, 172]

S_W, S_QH, S_HH, S_BLK, S_B, S_H0 = 24, 25, 26, 27, 28, 29
S_CH, S_DSLOT, S_RSLOT, S_CNT = 30, 31, 32, 33
S_T = 34
S_GOFF, S_LB, S_TMP, S_TMP2 = 41, 42, 40, 43
S_DWRAP, S_DBASE = 30, 42
S_XI, S_WI, S_XOFF, S_WOFF, S_XBUF, S_WBUF, S_XRB, S_WRB = 44, 45, 46, 47, 48, 49, 50, 51
S_XW_G, S_XW_L = 54, 55
S_XC = 96
S_WW_L, S_WLIM = 101, 56
S_BAD, S_SAFE, S_NREC2 = 44, 45, 53
S_KOOB = 51
S_FREE = 49
S_ITEM = 58
S_FL = 59
S_QI = 70
S_FLAG = 72
S_LATE, S_PR, S_FI, S_FMAX, S_FG, S_FL2 = 71, 74, 75, 52, 53, 56
S_KVO = 66

QP_PAT = [98, 99, 100, 101, 102, 103, 104, 105, 106, 107, 108, 109, 110]
def qacc(k): return (56 + 4 * k) if k < 10 else (192 + 4 * (k - 10))
def acc_o(slot, jl): return A_O + slot * 32 + jl * 4
def q_frag(slot, jp): return A_Q + slot * 16 + jp * 4
def rng(f, b, n=4): return f"{f}[{b}:{b+n-1}]"

def interleave(M, fillers, start=0):
    out = []
    k = 0
    for i, m in enumerate(M):
        out.append(m)
        if i >= start and k < len(fillers):
            out += fillers[k]; k += 1
    while k < len(fillers):
        out += fillers[k]; k += 1
    return out

def spread(M, groups, start=0):
    m = len(M) - start
    n = len(groups)
    out = []
    for i, x in enumerate(M):
        out.append(x)
        if i >= start:
            k = i - start
            for g in groups[(k * n) // m:((k + 1) * n) // m]:
                out += g
    return out

class FA:
    def __init__(self, name='fa_kernel', nt_kv=True, nt_w=False, nt_x=False, dbg=None, order='early', stamps=False, pf_qp=True, pf_att=True, late_bit=1, x_nodma=False, x_nosm=False, x_nobr=False, x_nord=False, x_nobar=False, x_qv=False, q_nodma=False, q_nord=False, q_nobar=False, q_nowait=False, same_kv=False, x_nohead=False, x_noX=False, x_nomax=False, fill_qp=True, fast=True, force_bad=False, pf_wo=False, pf_code=False, op_label=None, dbg_stamps=None, pf0=False, pf1=False, pf_nt=False, qstamp=False, cstamp=False, st_flags='', qp0_nt=False, pf0x=False, rot=False, pf_tlb=False, dbg_rt=False, pf_code2=False, kvreg=False, kvdma=True, qn1=4, cfast=True, c_nost=False, c_nonan=False, c_now=False, fuse=None, omt=False):
        self.omt = omt
        self.fuse = fuse
        self.c_nost, self.c_nonan, self.c_now = c_nost, c_nonan, c_now
        self.cfast = cfast
        self.qn1 = qn1
        self.kvdma = kvdma
        self.kvreg = kvreg
        self.pf_code2 = pf_code2
        self.dbg_rt = dbg_rt
        self.pf_tlb = pf_tlb
        self.rot = rot
        self.st_flags, self.qp0_nt, self.pf0x = st_flags, qp0_nt, pf0x
        self.cstamp = cstamp
        self.qstamp = qstamp
        self.pf0, self.pf1 = pf0, pf1
        self.pf_nt = ' nt' if pf_nt else ''
        self.dbg_stamps = dbg_stamps
        self.pf_wo, self.pf_code, self.op_label = pf_wo, pf_code, op_label
        self.fast = fast
        self.force_bad = force_bad
        self.fill_qp = fill_qp
        self.x_nomax = x_nomax
        self.x_nohead, self.x_noX = x_nohead, x_noX
        self.same_kv = same_kv
        self.q_nowait = q_nowait
        self.q_nodma, self.q_nord, self.q_nobar = q_nodma, q_nord, q_nobar
        self.x_nodma, self.x_nosm, self.x_nobr, self.x_nord, self.x_nobar, self.x_qv = x_nodma, x_nosm, x_nobr, x_nord, x_nobar, x_qv
        self.pf_qp = pf_qp
        self.pf_att = pf_att
        self.late_bit = late_bit
        self.stamps = stamps
        self.nst = 0
        self.name = name
        self.nt_kv = ' nt' if nt_kv else ''
        self.nt_w = ' nt' if nt_w else ''
        self.nt_x = ' nt' if nt_x else ''
        self.dbg = dbg
        self.order = order
        self.rare = []
        self.uid = 0

    def setup(self):
        P = Prog()
        n = self.name
        P(f"""
        s_cmp_ge_u32 s2, 256
        s_cbranch_scc1 {n}_done
        s_and_b32 s39, s2, 7
        s_lshr_b32 s40, s2, 3
        s_lshr_b32 s{S_BLK}, s39, 2
        s_and_b32 s39, s39, 3
        s_and_b32 s{S_B}, s40, 7
        s_lshr_b32 s40, s40, 3
        s_mov_b32 s{S_PR}, s40
        s_lshl_b32 s39, s39, 3
        s_lshl_b32 s40, s40, 1
        s_add_u32 s{S_H0}, s39, s40
        s_mul_i32 s39, s{S_BLK}, 40
        s_add_u32 s60, s0, s39
        s_addc_u32 s61, s1, 0
        s_load_dwordx2 s[4:5], s[60:61], 0
        s_load_dwordx2 s[62:63], s[60:61], 8
        s_load_dwordx2 s[64:65], s[60:61], 16
        s_load_dwordx2 s[66:67], s[60:61], 24
        s_load_dwordx2 s[68:69], s[0:1], 96
        s_load_dwordx2 s[76:77], s[60:61], 32
        v_lshrrev_b32 v2, 6, v0
        v_and_b32 v{V_LANE}, 63, v0
        v_readfirstlane_b32 s{S_W}, v2
        s_and_b32 s{S_QH}, s{S_W}, 1
        s_lshr_b32 s{S_HH}, s{S_W}, 1
        """)
        L = V_LANE
        P(f"""
        v_lshrrev_b32 v2, 4, v{L}
        v_and_b32 v3, 15, v{L}
        v_xor_b32 v4, v3, v2
        v_lshlrev_b32 v5, 2, v2
        v_xor_b32 v5, v3, v5
        v_lshlrev_b32 v4, 4, v4
        v_lshlrev_b32 v5, 4, v5
        v_lshlrev_b32 v2, 8, v2
        v_add_u32 v{V_RINGK}, v4, v2
        v_add_u32 v{V_RINGV}, v5, v2
        s_cmp_eq_u32 s{S_QH}, 0
        s_cselect_b32 s39, 64, 16
        s_cselect_b64 vcc, -1, 0
        v_cndmask_b32 v{V_RING}, v{V_RINGV}, v{V_RINGK}, vcc
        v_xor_b32 v{V_RING+1}, s39, v{V_RING}
        s_lshl_b32 s40, s39, 1
        v_xor_b32 v{V_RING+2}, s40, v{V_RING}
        s_add_u32 s40, s40, s39
        v_xor_b32 v{V_RING+3}, s40, v{V_RING}
        v_add_u32 v{V_RINGH}, 4096, v{V_RING}
        v_add_u32 v{V_RINGH+1}, 4096, v{V_RING+1}
        v_add_u32 v{V_RINGH+2}, 4096, v{V_RING+2}
        v_add_u32 v{V_RINGH+3}, 4096, v{V_RING+3}
        """)
        P(self.pf_setup())
        P(f"""
        v_and_b32 v3, 15, v{L}
        v_lshrrev_b32 v2, 4, v{L}
        v_xor_b32 v4, v2, v3
        v_lshlrev_b32 v4, 4, v4
        v_lshlrev_b32 v5, 8, v3
        s_lshl_b32 s39, s{S_HH}, 14
        v_add_u32 v5, s39, v5
        """)
        for jp in range(4):
            P(f"v_xor_b32 v6, {64*jp}, v4\nv_add_u32 v{V_KPAT+jp}, v5, v6")
        P(f"""
        v_lshrrev_b32 v3, 2, v{L}
        v_and_b32 v3, 3, v3
        v_and_b32 v4, 3, v{L}
        v_xor_b32 v4, v4, v2
        v_lshlrev_b32 v4, 4, v4
        v_lshlrev_b32 v5, 6, v3
        v_add_u32 v4, v4, v5
        v_lshlrev_b32 v5, 2, v2
        v_add_u32 v5, v5, v3
        v_lshlrev_b32 v5, 8, v5
        s_lshl_b32 s39, s{S_HH}, 14
        s_add_u32 s39, s39, 8192
        v_add_u32 v5, s39, v5
        """)
        for ml in range(4):
            P(f"""
            s_lshl_b32 s39, s{S_HH}, 1
            s_add_u32 s39, s39, {ml}
            s_and_b32 s39, s39, 3
            s_lshl_b32 s39, s39, 6
            v_xor_b32 v6, s39, v4
            v_add_u32 v{V_VPAT+ml}, v5, v6
            """)
        if self.pf_code:
            P(f"""
            s_lshr_b32 s39, s2, 3
            s_cmp_ge_u32 s39, 16
            s_cbranch_scc1 {n}_npc
            s_cmp_lg_u32 s{S_W}, 0
            s_cbranch_scc1 {n}_npc
            s_getpc_b64 s[72:73]
            {n}_pc0:
            s_lshl_b32 s39, s39, 13
            s_add_u32 s72, s72, s39
            s_addc_u32 s73, s73, 0
            v_lshlrev_b32 v3, 7, v{L}
            global_load_dword v{V_PFD}, v3, s[72:73]
            {n}_npc:
            """)
        for r in range(4):
            P(f"v_mov_b32 v{V_ONES+r}, 0x3f803f80")
        P.extend(self.qp_patterns())
        P("s_waitcnt lgkmcnt(0)")
        P(f"""
        s_cmp_eq_u32 s{S_QH}, 0
        s_cselect_b32 s8, s62, s64
        s_cselect_b32 s9, s63, s65
        s_lshl_b32 s39, s{S_B}, 5
        s_add_u32 s39, s39, s{S_H0}
        s_lshr_b32 s40, s39, 14
        s_lshl_b32 s39, s39, {18 if not self.same_kv else 31}
        s_and_b32 s39, s39, {'-1' if not self.same_kv else '0'}
        s_add_u32 s8, s8, s39
        s_addc_u32 s9, s9, s40
        s_lshl_b32 s39, s{S_HH}, 13
        s_add_u32 s8, s8, s39
        s_addc_u32 s9, s9, 0
        s_and_b32 s9, s9, 0xffff
        s_sub_u32 s10, {2*262144}, s39
        s_mov_b32 s11, 0x20000
        s_mul_i32 s39, s{S_B}, {144*2048}
        s_add_u32 s12, s4, s39
        s_addc_u32 s13, s5, 0
        s_and_b32 s13, s13, 0xffff
        s_mov_b32 s14, {144*2048}
        s_mov_b32 s15, 0x20000
        s_lshl_b32 s39, s{S_H0}, 8
        s_add_u32 s16, s66, s39
        s_addc_u32 s17, s67, 0
        s_and_b32 s17, s17, 0xffff
        s_sub_u32 s18, {1024*8192}, s39
        s_mov_b32 s19, 0x20000
        s_lshl_b32 s39, s{S_BLK}, 3
        s_add_u32 s39, s39, s{S_B}
        s_lshl_b32 s39, s39, 5
        s_add_u32 s39, s39, s{S_H0}
        s_mul_i32 s39, s39, 36864
        s_add_u32 s20, s68, s39
        s_addc_u32 s21, s69, 0
        s_add_u32 s20, s20, {O_WS_OFF}
        s_addc_u32 s21, s21, 0
        s_and_b32 s21, s21, 0xffff
        s_mov_b32 s22, {2*36864}
        s_mov_b32 s23, 0x20000
        s_lshl_b32 s{S_DBASE}, s{S_W}, 13
        s_add_u32 s{S_DSLOT}, s{S_DBASE}, {SLOT if self.kvdma else 0}
        s_add_u32 s{S_DWRAP}, s{S_DBASE}, {3*SLOT}
        s_mov_b32 s{S_GOFF}, 0
        s_mov_b32 s{S_RSLOT}, {SLOT if self.kvdma else 0}
        s_mov_b32 s{S_ITEM}, 0
        s_mov_b32 s{S_QI}, 0
        s_mov_b32 s{S_FMAX}, 1
        s_lshl_b32 s39, s{S_B}, 5
        s_add_u32 s39, s39, s{S_H0}
        s_lshl_b32 s{S_KVO}, s39, 18
        s_mov_b32 s{S_KVO+1}, 0
        s_and_b32 s39, s2, 3
        s_lshl_b32 s39, s39, 5
        s_lshr_b32 s40, s2, 3
        s_add_u32 s39, s39, s40
        s_lshl_b32 s39, s39, 16
        s_add_u32 s76, s76, s39
        s_addc_u32 s77, s77, 0
        s_and_b32 s77, s77, 0xffff
        s_mov_b32 s78, 65536
        s_mov_b32 s79, 0x20000
        v_lshlrev_b32 v19, 7, v{L}
        """)
        if self.order == 'early': P(f"s_mov_b32 s{S_LATE}, 0")
        elif self.order == 'late': P(f"s_mov_b32 s{S_LATE}, 1")
        else: P(f"s_lshr_b32 s{S_LATE}, s2, {self.late_bit}\ns_and_b32 s{S_LATE}, s{S_LATE}, 1")
        P(f"""s_xor_b32 s{S_FMAX}, s{S_LATE}, 1
        s_mov_b32 s{S_BAD}, 0
        s_mov_b32 s{S_SAFE}, 0
        s_mov_b32 s{S_NREC2}, s10
        s_mov_b32 s{S_QI}, 0""")
        if self.pf0:
            for x in self.pf_w(f"s{S_W}", "0"): P(x)
            for x in self.pf_x(f"s{S_W}"): P(x)
            P(f"s_add_u32 s39, s{S_W}, 4")
            for x in self.pf_x("s39"): P(x)
            P(f"s_add_u32 s39, s{S_W}, 8\ns_min_u32 s39, s39, 8")
            for x in self.pf_x("s39"): P(x)
            P(f"s_cmp_eq_u32 s{S_LATE}, 0\ns_cbranch_scc1 {n}_npf0")
            for x in self.pf_w(f"s{S_W}", "1"): P(x)
            P.label(f"{n}_npf0")
        if self.pf0x:
            for x in self.pf_x(f"s{S_W}"): P(x)
            P(f"s_add_u32 s39, s{S_W}, 4")
            for x in self.pf_x("s39"): P(x)
            P(f"s_add_u32 s39, s{S_W}, 8\ns_min_u32 s39, s39, 8")
            for x in self.pf_x("s39"): P(x)
            P(f"s_cmp_eq_u32 s{S_LATE}, 0\ns_cbranch_scc1 {n}_npf0x")
            for x in self.pf_w(f"s{S_W}", "1"): P(x)
            P.label(f"{n}_npf0x")
        if self.pf_tlb:
            P(f"""
            s_cmp_lg_u32 s{S_W}, 0
            s_cbranch_scc1 {n}_ntlb
            s_lshr_b32 s39, s2, 3
            s_lshl_b32 s39, s39, 18
            v_lshlrev_b32 v2, 13, v{V_LANE}
            s_mov_b32 exec_hi, 0
            buffer_load_dword v{V_PFD}, v2, s[16:19], s39 offen
            s_mul_i32 s39, s{S_PR}, {18*4096}
            v_lshlrev_b32 v2, 12, v{V_LANE}
            s_mov_b32 exec_lo, 0x3ffff
            buffer_load_dword v{V_PFD}, v2, s[12:15], s39 offen
            s_mov_b64 exec, -1
            {n}_ntlb:
            """)
        return P

    def ring_instrs(self):
        nt = self.nt_kv
        D = []
        for m in range(8):
            g = []
            if m == 0: g.append(f"s_mov_b32 m0, s{S_DSLOT}")
            if m == 4: g.append(f"s_add_u32 m0, s{S_DSLOT}, 4096")
            v = V_RING + m if m < 4 else V_RINGH + m - 4
            g.append(f"buffer_load_dwordx4 v{v}, s[8:11], s{S_GOFF} offen offset:{(m & 3) * 1024}{nt} lds")
            D.append(g)
        adv = [f"s_add_u32 s{S_GOFF}, s{S_GOFF}, 16384",
               f"s_add_u32 s{S_DSLOT}, s{S_DSLOT}, {SLOT}",
               f"s_cmp_eq_u32 s{S_DSLOT}, s{S_DWRAP}",
               f"s_cselect_b32 s{S_DSLOT}, s{S_DBASE}, s{S_DSLOT}"]
        return D, adv
    def ring_groups(self):
        D, adv = self.ring_instrs()
        return D + [adv]

    def ring_fill(self):
        P = Prog()
        for _ in range(3):
            for g in self.ring_groups():
                for x in g: P(x)
        return P

    def pf_setup(self):
        L = V_LANE
        return f"""
        v_lshrrev_b32 v2, 1, v{L}
        v_lshlrev_b32 v2, 13, v2
        v_and_b32 v3, 1, v{L}
        v_lshlrev_b32 v3, 7, v3
        v_add_u32 v{V_PFW}, v2, v3
        v_lshrrev_b32 v2, 4, v{L}
        v_lshlrev_b32 v2, 11, v2
        v_and_b32 v3, 15, v{L}
        v_lshlrev_b32 v3, 7, v3
        v_add_u32 v{V_PFX}, v2, v3
        """
    def pf_w(self, i_expr_sgpr, head_sgpr):
        return [f"s_lshl_b32 s{S_TMP}, s{S_B}, 20",
                f"s_lshl_b32 s{S_TMP2}, {i_expr_sgpr}, 18",
                f"s_add_u32 s{S_TMP}, s{S_TMP}, s{S_TMP2}",
                f"s_lshl_b32 s{S_TMP2}, {head_sgpr}, 8",
                f"s_add_u32 s{S_TMP}, s{S_TMP}, s{S_TMP2}",
                f"buffer_load_dword v{V_PFD}, v{V_PFW}, s[16:19], s{S_TMP} offen{self.pf_nt}"]
    def pf_x(self, i_expr):
        return [f"s_mul_i32 s{S_TMP}, s{S_PR}, {36*2048}",
                f"s_lshl_b32 s{S_TMP2}, {i_expr}, 13",
                f"s_add_u32 s{S_TMP}, s{S_TMP}, s{S_TMP2}",
                f"buffer_load_dword v{V_PFD}, v{V_PFX}, s[12:15], s{S_TMP} offen{self.pf_nt}"]

    def code_pf(self, label, uid, waves_chunks):
        n = self.name
        return [f"s_cmp_ge_u32 s{S_W}, {waves_chunks}", f"s_cbranch_scc1 {n}_ncp{uid}",
                f"s_getpc_b64 s[60:61]", f"{n}_cp{uid}:",
                f"s_add_u32 s60, s60, {label}-{n}_cp{uid}", f"s_addc_u32 s61, s61, 0",
                f"s_lshl_b32 s39, s{S_W}, 13", f"s_add_u32 s60, s60, s39", f"s_addc_u32 s61, s61, 0",
                f"global_load_dword v{V_PFD}, v19, s[60:61]", f"{n}_ncp{uid}:"]

    def qp_patterns(self):
        L = V_LANE
        P = Prog()
        P(f"""
        v_lshrrev_b32 v2, 3, v{L}
        v_and_b32 v3, 7, v{L}
        v_lshrrev_b32 v4, 4, v{L}
        v_xor_b32 v3, v3, v4
        v_lshlrev_b32 v3, 4, v3
        v_lshlrev_b32 v2, 11, v2
        v_add_u32 v2, v2, v3
        """)
        for x in range(5):
            P(f"""
            s_mul_i32 s39, s{S_W}, 5
            s_add_u32 s39, s39, {x}
            s_cmp_gt_u32 s39, 17
            s_cselect_b32 s40, 2, 0
            s_sub_u32 s39, s39, s40
            s_lshl_b32 s{S_XC+x}, s39, 10
            s_and_b32 s40, s39, 1
            s_lshl_b32 s40, s40, 6
            v_xor_b32 v3, s40, v2
            s_lshl_b32 s39, s39, 14
            v_add_u32 v{V_XD+x}, s39, v3
            """)
        P(f"""
        v_lshrrev_b32 v2, 4, v{L}
        v_and_b32 v3, 15, v{L}
        v_lshlrev_b32 v4, 2, v2
        v_xor_b32 v3, v3, v4
        v_xor_b32 v3, s{S_W}, v3
        v_lshlrev_b32 v3, 4, v3
        v_lshlrev_b32 v4, 13, v2
        v_add_u32 v3, v3, v4
        s_lshl_b32 s39, s{S_W}, 16
        v_add_u32 v{V_WD}, s39, v3
        v_add_u32 v{V_WD+1}, 32768, v{V_WD}
        v_and_b32 v3, 15, v{L}
        v_lshrrev_b32 v4, 1, v3
        v_xor_b32 v4, v4, v2
        v_lshlrev_b32 v4, 4, v4
        v_lshlrev_b32 v5, 7, v3
        v_xor_b32 v6, 64, v4
        v_add_u32 v4, v4, v5
        v_add_u32 v6, v6, v5
        s_lshl_b32 s39, s{S_QH}, 13
        s_add_u32 s39, s39, {QXBASE}
        v_add_u32 v{V_XPAT}, s39, v4
        v_add_u32 v{V_XPAT+1}, s39, v6
        v_add_u32 v{V_XPAT+2}, {8*2048 + QXBASE}, v4
        v_add_u32 v{V_XPAT+3}, {8*2048 + QXBASE}, v6
        v_lshrrev_b32 v3, 2, v{L}
        v_and_b32 v3, 3, v3
        v_and_b32 v4, 3, v{L}
        v_xor_b32 v4, v4, v2
        v_lshlrev_b32 v4, 4, v4
        v_lshlrev_b32 v5, 6, v3
        v_add_u32 v4, v4, v5
        v_lshlrev_b32 v5, 3, v2
        v_add_u32 v5, v5, v3
        v_lshlrev_b32 v5, 8, v5
        """)
        for p in range(2):
            P(f"""
            s_xor_b32 s39, s{S_QH}, {p}
            s_lshl_b32 s40, s{S_HH}, 1
            s_add_u32 s39, s39, s40
            s_lshl_b32 s39, s39, 6
            v_xor_b32 v6, s39, v4
            v_add_u32 v{V_WPAT+p}, v5, v6
            """)
        for k, r in enumerate(QP_PAT): P(f"v_accvgpr_write_b32 a{240+k}, v{r}")
        P(f"s_lshl_b32 s{S_WW_L}, s{S_W}, 11")
        return P

    def qp2(self, tag):
        n = self.name
        L = V_LANE
        NX, NW = 3, 6
        XB0 = 98304
        PER = 6
        NIT = 4
        FW = [120, 172]; FX = [152, 204]
        P = Prog()
        for k, r in enumerate(QP_PAT): P(f"v_accvgpr_read_b32 v{r}, a{240+k}")
        P(f"""
        v_add_u32 v{V_WD2}, 256, v{V_WD}
        v_add_u32 v{V_WD2+1}, 256, v{V_WD+1}
        v_add_u32 v{V_WPH}, 65536, v{V_WPAT}
        v_add_u32 v{V_WPH+1}, 65536, v{V_WPAT+1}
        s_mov_b32 s{S_WOFF}, 0
        s_mov_b32 s{S_XOFF}, 0
        """)
        def x_groups(buf):
            G = []
            for x in range(5):
                G.append([f"s_add_u32 m0, s{S_XC+x}, {XB0 + buf*18432}",
                          f"buffer_load_dwordx4 v{V_XD+x}, s[12:15], s{S_XOFF} offen{self.nt_x} lds"])
            G.append([f"s_add_u32 s{S_XOFF}, s{S_XOFF}, 128"])
            return G
        def w_groups(buf):
            G = []
            for h in range(2):
                for x in range(2):
                    G.append([f"s_add_u32 m0, s{S_WW_L}, {buf*16384 + h*8192 + x*1024}",
                              f"buffer_load_dwordx4 v{(V_WD if h == 0 else V_WD2) + x}, s[16:19], s{S_WOFF} offen{self.nt_w} lds"])
            G.append([f"s_add_u32 s{S_WOFF}, s{S_WOFF}, {1 << 18}"])
            return G
        def read_groups(k, i):
            G = []
            wbuf = i % NW
            wp = V_WPAT if wbuf < 4 else V_WPH
            wb = (wbuf % 4) * 16384
            xb = ((i >> 1) % NX) * 18432
            ss = i & 1
            GX = []
            for t in range(4):
                GX.append([f"ds_read_b128 {rng('v', FX[k]+4*t)}, v{V_XPAT+ss} offset:{xb + t*2048}"])
            GX.append([f"ds_read_b128 {rng('v', FX[k]+16)}, v{V_XPAT+2+ss} offset:{xb}"])
            for h in range(2):
                for jl in range(4):
                    a = FW[k] + 16 * h + 4 * jl
                    p, hh = jl >> 1, jl & 1
                    G.append([f"ds_read_b64_tr_b16 v[{a}:{a+1}], v{wp+p} offset:{wb + h*8192 + 8*hh}"])
                    G.append([f"ds_read_b64_tr_b16 v[{a+2}:{a+3}], v{wp+p} offset:{wb + h*8192 + 8*hh + 1024}"])
            return G[:8] + GX + G[8:]
        def qa(h, k): return 72 * h + 4 * k
        def mf(k):
            M = []
            for h in range(2):
                for t in range(4):
                    for jl in range(4):
                        a = qa(h, 4 * t + jl)
                        M.append(f"v_mfma_f32_16x16x32_bf16 {rng('a', a)}, {rng('v', FW[k]+16*h+4*jl)}, {rng('v', FX[k]+4*t)}, {rng('a', a)}")
                for x in range(2):
                    a = qa(h, 16 + x)
                    M.append(f"v_mfma_f32_16x16x32_bf16 {rng('a', a)}, {rng('v', FW[k]+16*h+4*x)}, {rng('v', FX[k]+16)}, {rng('a', a)}")
            return M
        pro = []
        xi = wi = 0
        while xi < NX or wi < NW:
            if xi < NX and 2 * xi <= wi: pro.append(('X', xi)); xi += 1
            elif wi < NW: pro.append(('W', wi)); wi += 1
            else: pro.append(('X', xi)); xi += 1
        cnt = {'X': 5, 'W': 4, 'K': 8}
        kv_at = {27: 0, 29: 1, 31: 2} if self.kvdma else {}
        seq = list(pro)
        def outstanding_after(need):
            idx = [i for i, it in enumerate(seq) if it in need]
            last = max(idx)
            return sum(cnt[k] for k, _ in seq[last + 1:])
        waits = {}
        for i in range(0, 32):
            need = set()
            if i + 1 < 32: need = {('W', i + 1), ('X', (i + 1) >> 1)}
            waits[i] = outstanding_after(need) if need else 63
            if i + NW < 32: seq.append(('W', i + NW))
            if (i & 1) and (i >> 1) + NX < 16: seq.append(('X', (i >> 1) + NX))
            if i in kv_at: seq.append(('K', kv_at[i]))
        wr = [min(waits[i] for i in range(r, NIT * PER, PER)) for r in range(PER)]
        assert max(wr) <= 63
        P("s_waitcnt vmcnt(0)\ns_barrier")
        def issue(lst):
            for kind, idx in lst:
                for g in (x_groups(idx) if kind == 'X' else w_groups(idx)):
                    for x in g: P(x)
        n1 = self.qn1
        n2 = len(pro)
        issue(pro[:n1])
        for r in range(0, 144, 4): P(f"v_mfma_f32_16x16x32_bf16 a[{r}:{r+3}], v[{V_ZERO}:{V_ZERO+3}], v[{V_ZERO}:{V_ZERO+3}], 0")
        issue(pro[n1:n2])
        w0 = sum(cnt[k] for k, _ in pro[2:n2])
        P(f"s_waitcnt vmcnt({w0})\ns_barrier")
        if self.qstamp:
            P(f"s_memtime s[72:73]\ns_waitcnt lgkmcnt(0)\ns_mov_b32 s82, s72")
        for g in read_groups(0, 0):
            for x in g: P(x)
        issue(pro[n2:])
        if self.pf_code2:
            for x in self.code_pf(f"{n}_hot0", 'a', 3): P(x)
        P(f"s_waitcnt lgkmcnt(0)\ns_mov_b32 s{S_CNT}, {NIT}")
        Z = Prog()
        for r in range(4): Z(f"v_mov_b32 v{V_ZERO+r}, 0")
        P.items = Z.items + P.items
        pre, _ = finalize_linear(P.items)
        out = Prog(); out.extend(pre)
        def substep(body, i, wait):
            ss = i & 1
            body(f"s_waitcnt vmcnt({min(wait, 63)}) lgkmcnt(0)")
            body("s_barrier")
            R = read_groups(1 - ss, i + 1) if i + 1 < 32 else []
            D = []
            if i + NW < 32: D += w_groups(i % NW)
            if (i & 1) and (i >> 1) + NX < 16: D += x_groups((i >> 1) % NX)
            if i in kv_at: D += self.ring_groups()
            if self.q_nodma: D = []
            M = mf(ss)
            fill = [[] for _ in M]
            hv = []
            ri = di = 0
            while ri < len(R) or di < len(D):
                for _ in range(2):
                    if ri < len(R): hv.append(R[ri]); ri += 1
                if di < len(D): hv.append(D[di]); di += 1
            npos = len(M)
            k = 0
            for g in hv:
                pos = min(k, npos - 1)
                if 'm0' in g[0] and pos > 0 and not any('buffer_load' in y for y in fill[pos - 1]):
                    fill[pos - 1].append(g[0]); fill[pos] += g[1:]
                else:
                    fill[pos] += g
                if any(('ds_read' in y or 'buffer_load' in y) for y in g): k += 1
            for x in interleave(M, fill): body(x)
        body = Prog()
        for r in range(PER): substep(body, r, wr[r])
        if self.qstamp:
            body("s_waitcnt lgkmcnt(0)\ns_memtime s[72:73]\ns_waitcnt lgkmcnt(0)")
            for it in range(4):
                body(f"s_cmp_eq_u32 s{S_CNT}, {4 - it}\ns_cselect_b32 s{83+it}, s72, s{83+it}")
        body(f"s_sub_u32 s{S_CNT}, s{S_CNT}, 1\ns_cmp_lg_u32 s{S_CNT}, 0")
        b, _ = finalize_loop(body.items)
        out.label(f"{n}_qp{tag}")
        out.extend(b)
        out(f"s_cbranch_scc1 {n}_qp{tag}")
        tail = Prog()
        for i in range(NIT * PER, 32): substep(tail, i, waits[i])
        l1, f = auto_lgkm(b, None)
        l2, _ = auto_lgkm(tail.items, f)
        l3 = fix_hazards(l2, wrap=b)
        out.extend(l3)
        out.label(f"{n}_hot0")
        E = Prog()
        E("s_waitcnt lgkmcnt(0)\ns_nop 7\ns_barrier")
        e1, _ = finalize_linear(E.items)
        out.extend(e1)
        return out

    def qconv(self, h, with_fill, nfill=3):
        L = V_LANE
        C = Prog()
        C(f"""
        v_mov_b32 v8, {f2u(CSCALE):#x}
        v_lshlrev_b32 v2, 4, v{L}
        v_add_u32 v2, {QX}, v2
        s_lshl_b32 s40, s{S_QH}, 14
        s_lshl_b32 s{S_TMP2}, s{S_HH}, 11
        s_add_u32 s40, s40, s{S_TMP2}
        s_lshl_b32 s{S_TMP2}, s{S_QH}, 10
        s_add_u32 s{S_XOFF}, s40, s{S_TMP2}
        s_xor_b32 s{S_TMP2}, s{S_TMP2}, 1024
        s_add_u32 s{S_WOFF}, s40, s{S_TMP2}
        v_add_u32 v3, s{S_XOFF}, v2
        v_add_u32 v4, s{S_WOFF}, v2
        s_lshl_b32 s40, s{S_HH}, 11
        s_lshl_b32 s{S_TMP2}, s{S_QH}, 10
        s_add_u32 s40, s40, s{S_TMP2}
        v_add_u32 v5, s40, v2
        """)
        def conv(k0, dst):
            t = dst + 4
            for r in range(8): C(f"v_accvgpr_read_b32 v{t+r}, a{72*h + 4*k0 + r}")
            for r in range(8): C(f"v_mul_f32 v{t+r}, v8, v{t+r}")
            for r in range(4): C(f"v_cvt_pk_bf16_f32 v{dst+r}, v{t+2*r}, v{t+2*r+1}")
        k = 0
        for t in range(4):
            for p in range(2):
                d = 120 + 12 * (k % 9); k += 1
                conv(4 * t + 2 * p, d)
                C(f"ds_write_b128 v{3+p}, {rng('v', d)} offset:{t*4096}")
        d = 120 + 12 * (k % 9)
        conv(16, d)
        C(f"ds_write_b128 v5, {rng('v', d)} offset:{8*4096}")
        if with_fill:
            RF = []
            for _ in range(nfill): RF += self.ring_groups()
            CI = Prog()
            ci = C.items
            step = max(1, len(ci) // len(RF))
            k = 0
            for i, it in enumerate(ci):
                if i % step == 0 and k < len(RF):
                    for x in RF[k]: CI(x)
                    k += 1
                CI.items.append(it)
            while k < len(RF):
                for x in RF[k]: CI(x)
                k += 1
            C = CI
        C("s_waitcnt lgkmcnt(0)\ns_barrier")
        it, _ = finalize_linear(C.items)
        o = Prog(); o.extend(it)
        return o

    def lq(self):
        L = V_LANE
        P = Prog()
        P(f"""
        v_lshlrev_b32 v2, 4, v{L}
        v_add_u32 v2, {QX}, v2
        s_lshl_b32 s39, s{S_QH}, 14
        v_add_u32 v3, s39, v2
        """)
        for t in range(4):
            for jp in range(4):
                P(f"ds_read_b128 {rng('a', q_frag(t, jp))}, v3 offset:{t*4096 + jp*1024}")
        for jp in range(4):
            P(f"ds_read_b128 {rng('a', q_frag(4, jp))}, v2 offset:{8*4096 + jp*1024}")
        P("s_waitcnt lgkmcnt(0)")
        it, _ = finalize_linear(P.items)
        o = Prog(); o.extend(it)
        return o

    def s_mfmas(self, unit, sb):
        slot, fs = unit
        M = []
        for kt in range(2):
            for jp in range(4):
                d = V_S + sb * 8 + kt * 4
                c = rng('v', V_NEGM + slot * 4) if jp == 0 else rng('v', d)
                M.append(f"v_mfma_f32_16x16x32_bf16 {rng('v', d)}, {rng('v', V_KF[fs] + (kt*4+jp)*4)}, {rng('a', q_frag(slot, jp))}, {c}")
        return M
    def pv_mfmas(self, unit, pb):
        slot, fs = unit
        M = []
        p = rng('v', V_P + pb * 4)
        for jl in range(8):
            M.append(f"v_mfma_f32_16x16x32_bf16 {rng('a', acc_o(slot, jl))}, {rng('v', V_VF[fs] + jl*4)}, {p}, {rng('a', acc_o(slot, jl))}")
        M.append(f"v_mfma_f32_16x16x32_bf16 {rng('v', V_L + slot*4)}, {rng('v', V_ONES)}, {p}, {rng('v', V_L + slot*4)}")
        return M
    def max_ops(self, unit, sb):
        slot, fs = unit
        s = V_S + sb * 8
        return [[f"v_max3_f32 v{V_MX}, v{s}, v{s+1}, v{s+2}"],
                [f"v_max3_f32 v{V_MX}, v{V_MX}, v{s+3}, v{s+4}"],
                [f"v_max3_f32 v{V_MX}, v{V_MX}, v{s+5}, v{s+6}"],
                [f"v_max_f32 v{V_MX}, v{V_MX}, v{s+7}"],
                [f"v_cmp_lt_f32 vcc, s{S_T+slot}, v{V_MX}"]]
    def check_ops(self, unit, sb):
        slot, fs = unit
        s = V_S + sb * 8
        self.uid += 1
        u = self.uid
        lab_r, lab_b = f"{self.name}_rare{u}", f"{self.name}_back{u}"
        R = Prog()
        R.label(lab_r)
        R(f"""
        s_nop 7
        v_mov_b32 v{V_T1}, v{V_MX}
        s_nop 1
        v_permlane16_swap_b32 v{V_MX}, v{V_T1}
        s_nop 1
        v_max_f32 v{V_MX}, v{V_MX}, v{V_T1}
        v_mov_b32 v{V_T1}, v{V_MX}
        s_nop 1
        v_permlane32_swap_b32 v{V_MX}, v{V_T1}
        s_nop 1
        v_max_f32 v{V_MX}, v{V_MX}, v{V_T1}
        s_ashr_i32 s{S_FL}, s{S_T+slot}, 31
        s_and_b32 s{S_FL}, s{S_FL}, 0xff800000
        s_mov_b32 s{S_T+slot}, 0x41000000
        v_max_f32 v{V_MX}, s{S_FL}, v{V_MX}
        """)
        for r in range(8): R(f"v_sub_f32 v{s+r}, v{s+r}, v{V_MX}")
        for r in range(4): R(f"v_sub_f32 v{V_NEGM+slot*4+r}, v{V_NEGM+slot*4+r}, v{V_MX}")
        R(f"s_cmp_lg_u32 s{S_FL}, 0\ns_cbranch_scc1 {lab_b}")
        R(f"v_sub_f32 v{V_T1}, 0, v{V_MX}")
        R(f"v_exp_f32 v{V_T1}, v{V_T1}")
        R("s_nop 1")
        for r in range(4): R(f"v_mul_f32 v{V_L+slot*4+r}, v{V_L+slot*4+r}, v{V_T1}")
        for r in range(0, 32, 2):
            a = A_O + slot * 32 + r
            R(f"v_accvgpr_read_b32 v{V_T2}, a{a}\nv_accvgpr_read_b32 v{V_T3}, a{a+1}\nv_mul_f32 v{V_T2}, v{V_T2}, v{V_T1}\nv_mul_f32 v{V_T3}, v{V_T3}, v{V_T1}\nv_accvgpr_write_b32 a{a}, v{V_T2}\nv_accvgpr_write_b32 a{a+1}, v{V_T3}")
        R("s_nop 2")
        R(f"s_branch {lab_b}")
        self.rare.append(R)
        return [f"s_cbranch_vccnz {lab_r}", f"{lab_b}:"]
    def exp_ops(self, unit, sb, pb):
        s = V_S + sb * 8
        p = V_P + pb * 4
        return [[f"v_exp_f32 v{s}, v{s}"], [f"v_exp_f32 v{s+1}, v{s+1}"], [f"v_exp_f32 v{s+2}, v{s+2}"],
                [f"v_cvt_pk_bf16_f32 v{p}, v{s}, v{s+1}"],
                [f"v_exp_f32 v{s+3}, v{s+3}"], [f"v_exp_f32 v{s+4}, v{s+4}"],
                [f"v_cvt_pk_bf16_f32 v{p+1}, v{s+2}, v{s+3}"],
                [f"v_exp_f32 v{s+5}, v{s+5}"], [f"v_exp_f32 v{s+6}, v{s+6}"],
                [f"v_cvt_pk_bf16_f32 v{p+2}, v{s+4}, v{s+5}"],
                [f"v_exp_f32 v{s+7}, v{s+7}"],
                [f"v_cvt_pk_bf16_f32 v{p+3}, v{s+6}, v{s+7}"]]
    def kv_reads(self, fs, which):
        G = []
        if which == 'K':
            for kt in range(2):
                for jp in range(4):
                    G.append([f"ds_read_b128 {rng('v', V_KF[fs] + (kt*4+jp)*4)}, v{V_KA+jp} offset:{kt*4096}"])
        else:
            for jl in range(8):
                a = V_VF[fs] + jl * 4
                ml, h = jl >> 1, jl & 1
                va = V_VA if fs == 'A' else V_VA2
                G.append([f"ds_read_b64_tr_b16 v[{a}:{a+1}], v{va+ml} offset:{8*h}"])
                G.append([f"ds_read_b64_tr_b16 v[{a+2}:{a+3}], v{va+ml} offset:{8*h+4096}"])
        return G
    def kv_addr(self, fs):
        va = V_VA if fs == 'A' else V_VA2
        G = [[f"v_add_u32 v{V_KA+j}, s{S_RSLOT}, v{V_KPAT+j}"] for j in range(4)]
        G += [[f"v_add_u32 v{va+j}, s{S_RSLOT}, v{V_VPAT+j}"] for j in range(4)]
        G.append([f"s_add_u32 s{S_RSLOT}, s{S_RSLOT}, {SLOT}", f"s_cmp_eq_u32 s{S_RSLOT}, {3*SLOT}", f"s_cselect_b32 s{S_RSLOT}, 0, s{S_RSLOT}"])
        return G

    def units(self, qh):
        if qh == 0: return [(0,'A'),(1,'A'),(2,'A'),(3,'A'),(4,'A'),(0,'B'),(1,'B'),(2,'B'),(3,'B')]
        return [(0,'A'),(1,'A'),(2,'A'),(3,'A'),(0,'B'),(1,'B'),(2,'B'),(3,'B'),(4,'B')]

    def attn_body(self, qh, last):
        U = self.units(qh)
        B = Prog()
        RG = self.ring_groups()
        for g in range(9):
            if g in (0, 4):
                B("s_waitcnt vmcnt(8) lgkmcnt(0)")
                if not self.x_nobar: B("s_barrier")
            M = []
            if not (last and g + 3 >= 9):
                M += self.s_mfmas(U[(g + 3) % 9], g % 3)
            M += self.pv_mfmas(U[g], g % 3)
            V = []
            head = []
            if not (last and g + 1 >= 9):
                head = self.check_ops(U[(g + 1) % 9], (g + 1) % 3)
                ex = self.exp_ops(U[(g + 1) % 9], (g + 1) % 3, (g + 1) % 3)
            else: ex = []
            mx = self.max_ops(U[(g + 2) % 9], (g + 2) % 3) if not (last and g + 2 >= 9) else []
            V = []
            ei = mi = 0
            pat = "eeemcemecemecemcm" if False else "eemeemeemeemm"
            order = []
            if self.x_nomax and ex:
                e_ = [g_ for g_ in ex if g_[0].startswith('v_exp')]
                c_ = [g_ for g_ in ex if g_[0].startswith('v_cvt')]
                pat = "e-ee-eC-ee-e-eC--"
                ei = ci = 0
                for ch in pat:
                    if ch == 'e': order.append(e_[ei]); ei += 1
                    elif ch == 'C': order.append(c_[ci] + c_[ci + 1]); ci += 2
                    else: order.append([])
            else:
                for i in range(17):
                    if i in (1, 3, 5, 7, 9) and mi < len(mx): order.append(mx[mi]); mi += 1
                    elif ei < len(ex): order.append(ex[ei]); ei += 1
                    elif mi < len(mx): order.append(mx[mi]); mi += 1
            V = order
            PF = []
            if last and self.pf_wo and self.x_nomax == self.fast and g in (0, 4):
                self.uid += 1
                lab = f"{self.name}_npf{self.uid}"
                pf = [f"s_cmp_eq_u32 s{S_ITEM}, 0", f"s_cbranch_scc1 {lab}"]
                pf += [f"s_lshl_b32 s39, s{S_W}, 14", f"s_add_u32 s39, s39, {8192 if g == 4 else 0}",
                       f"buffer_load_dword v{V_PFD}, v19, s[76:79], s39 offen"]
                if self.op_label and g == 0:
                    pf += [f"s_cmp_gt_u32 s{S_W}, 1", f"s_cbranch_scc1 {lab}",
                           f"s_getpc_b64 s[60:61]", f"{lab}_pc:",
                           f"s_add_u32 s60, s60, {self.op_label}-{lab}_pc", f"s_addc_u32 s61, s61, 0",
                           f"s_lshl_b32 s39, s{S_W}, 13", f"s_add_u32 s60, s60, s39", f"s_addc_u32 s61, s61, 0",
                           f"global_load_dword v{V_PFD}, v19, s[60:61]"]
                pf.append(f"{lab}:")
                PF = [pf]
            if last and self.pf_code2 and self.x_nomax == self.fast and g == 0:
                self.uid += 1
                lab = f"{self.name}_npc{self.uid}"
                pf = [f"s_or_b32 s39, s{S_ITEM}, s{S_W}", f"s_cmp_lg_u32 s39, 0", f"s_cbranch_scc1 {lab}",
                      f"s_getpc_b64 s[60:61]", f"{lab}_pc:",
                      f"s_add_u32 s60, s60, {self.name}_cmb-{lab}_pc", f"s_addc_u32 s61, s61, 0",
                      f"global_load_dword v{V_PFD}, v19, s[60:61]", f"{lab}:"]
                PF = PF + [pf]
            if last and self.pf1 and self.x_nomax == self.fast and g in (0, 4):
                self.uid += 1
                lab = f"{self.name}_np1{self.uid}"
                pf = [f"s_or_b32 s39, s{S_LATE}, s{S_ITEM}", f"s_cmp_lg_u32 s39, 0", f"s_cbranch_scc1 {lab}"]
                if g == 0:
                    pf += self.pf_w(f"s{S_W}", "1") + self.pf_x(f"s{S_W}")
                else:
                    pf += [f"s_add_u32 s39, s{S_W}, 4"] + self.pf_x("s39") + [f"s_add_u32 s39, s{S_W}, 8", "s_min_u32 s39, s39, 8"] + self.pf_x("s39")
                pf.append(f"{lab}:")
                PF = PF + [pf]
            KA, VA_ = (self.kv_reads('A', 'K'), self.kv_reads('A', 'V')) if not last else ([], [])
            KB, VB_ = self.kv_reads('B', 'K'), self.kv_reads('B', 'V')
            ADA = self.kv_addr('A') if not last else []
            ADB = self.kv_addr('B') if not last else []
            D, adv = self.ring_instrs()
            H = []
            Lt = []
            if g == 0: H = KB + PF + D[0:1]
            if g == 1: H = VB_[:6] + D[1:4];
            if g == 2: H = VB_[6:11] + D[4:6]; Lt = ADA[:4]
            if g == 3: H = D[6:8] + VB_[11:]; Lt = ADA[4:] + [adv]
            if g == 4: H = KA + PF + D[0:1]
            if g == 5: H = VA_[:5] + D[1:4]
            if g == 6: H = VA_[5:10] + D[4:6]; Lt = ADB[:4]
            if g == 7: H = D[6:8] + VA_[10:]; Lt = ADB[4:8]
            if g == 8: Lt = ADB[8:] + [adv]
            if self.x_nomax:
                if g == 0: H = KB + PF
                if g == 1: H = VB_[:5] + D[0:3]
                if g == 2: H = VB_[5:11] + D[3:5]
                if g == 3: H = D[5:8] + VB_[11:]
                if g == 4: H = KA[:7] + PF
                if g == 5: H = KA[7:] + D[0:2] + VA_[:4]
                if g == 6: H = D[2:4] + VA_[4:9]
                if g == 7: H = D[4:6] + VA_[9:14]
                if g == 8: H = VA_[14:] + D[6:8];
            if last and self.x_nomax and self.cfast and g >= 4:
                H = [x for x in H if not any('lds' in y and 'buffer_load' in y for y in x)]
                Lt = [x for x in Lt if not any(f"s{S_GOFF}," in y for y in x)]
                if g == 4: Lt = Lt + [[f"s_sub_u32 s{S_FREE}, s{S_DSLOT}, s{S_DBASE}"]]
            if self.x_nodma: H = [x for x in H if not any('lds' in y and 'buffer_load' in y for y in x)]
            if self.x_nord: H = [x for x in H if not any('ds_read' in y for y in x)]
            if self.x_nosm: V = []; head = []
            if self.x_nobr: head = []
            if self.x_noX: H = []; Lt = []
            if self.x_nomax: V = [[] if (x and (x[0].startswith('v_max') or x[0].startswith('v_cmp'))) else x for x in V]; head = []
            n = len(M)
            fill = [list(V[i]) if i < len(V) else [] for i in range(n)]
            light = [i for i in range(n) if not (fill[i] and fill[i][0].startswith('v_exp'))]
            empty = [i for i in range(n) if not fill[i]]
            pos = light[:]
            if self.x_nomax and empty:
                pos = empty[:]
                more = [i for i in light if i not in pos] + [i for i in range(n) if i not in light]
                if len(H) > len(pos): pos = sorted(pos + more[:len(H) - len(pos)])
            if len(H) > len(pos):
                extra_pos = [i for i in range(n) if i not in pos][:len(H) - len(pos)]
                pos = sorted(pos + extra_pos)
            if H:
                k = len(pos)
                chosen = [pos[(j * k) // len(H)] for j in range(len(H))]
                for j, h in enumerate(H):
                    h = list(h)
                    if ' m0,' in h[0] and chosen[j] > 0 and not any('lds' in y and 'buffer_load' in y for y in fill[chosen[j] - 1]):
                        fill[chosen[j] - 1].append(h[0]); h = h[1:]
                    fill[chosen[j]] += h
            if Lt:
                has_heavy = lambda i: any(('ds_read' in y or 'buffer_load' in y) for y in fill[i])
                last_dma = max([i for i in range(n) if any('buffer_load' in y for y in fill[i])] + [-1])
                free = [i for i in light if not has_heavy(i)] + [i for i in range(n) if i not in light]
                used = set()
                for l_ in Lt:
                    need_after = last_dma if any(f"s{S_GOFF}," in y for y in l_) else -1
                    cand = [i for i in free if i not in used and i > need_after] or [n - 1]
                    if any(f"s{S_RSLOT}, s{S_RSLOT}" in y for y in l_):
                        la = max([i for i in range(n) if any(f"s{S_RSLOT}, v" in y for y in fill[i])] + [-1])
                        cand = [i for i in range(n) if i >= la]
                        cand = [max(cand[0], 0)]
                    i = cand[0]; used.add(i)
                    fill[i] += l_
            extra = V[n:]
            for x in head: B(x)
            for x in interleave(M, fill + extra): B(x)
        return B

    def attention(self, qh, tag):
        n = self.name
        U = self.units(qh)
        P = Prog()
        for r in range(20): P(f"v_mov_b32 v{V_L + r}, 0\nv_mov_b32 v{V_NEGM + r}, 0")
        P("s_nop 1")
        for r in range(0, 160, 4): P(f"v_mfma_f32_16x16x32_bf16 a[{A_O + r}:{A_O + r + 3}], v[{V_L}:{V_L+3}], v[{V_L}:{V_L+3}], 0")
        for s in range(5): P(f"s_mov_b32 s{S_T+s}, 0xff800000")
        P("s_waitcnt vmcnt(16)\ns_barrier")
        for g in self.kv_addr('A') + self.kv_reads('A', 'K') + self.kv_reads('A', 'V') + self.kv_addr('B'):
            for x in g: P(x)
        for x in self.s_mfmas(U[0], 0) + self.s_mfmas(U[1], 1) + self.s_mfmas(U[2], 2): P(x)
        if not self.x_nomax:
            for g in self.max_ops(U[0], 0):
                for x in g: P(x)
            P("s_nop 3")
            for x in self.check_ops(U[0], 0): P(x)
        for g in self.exp_ops(U[0], 0, 0) + (self.max_ops(U[1], 1) if not self.x_nomax else []):
            for x in g: P(x)
        P(f"s_waitcnt lgkmcnt(0)\ns_mov_b32 s{S_CNT}, 7")
        pre, _ = finalize_linear(P.items)
        out = Prog(); out.extend(pre)
        body, _ = finalize_loop(self.attn_body(qh, False).items)
        if self.stamps:
            self.stamp(out, 5)
        out.label(f"{n}_at{tag}")
        out.extend(body)
        out(f"s_sub_u32 s{S_CNT}, s{S_CNT}, 1\ns_cmp_lg_u32 s{S_CNT}, 0\ns_cbranch_scc1 {n}_at{tag}")
        if self.stamps:
            self.stamp(out, 6)
        lastb = self.attn_body(qh, True)
        l1, f = auto_lgkm(body, None)
        l2, _ = auto_lgkm(lastb.items, f)
        l3 = fix_hazards(l2, wrap=body)
        out.extend(l3)
        return out

    def combine(self, qh):
        L = V_LANE
        E = Prog()
        MLO = 32768
        if self.cstamp: E(f"s_waitcnt lgkmcnt(0)\ns_memtime s[48:49]\ns_waitcnt lgkmcnt(0)\ns_cmp_eq_u32 s{S_ITEM}, 0\ns_cselect_b32 s82, s48, s82")
        E("s_nop 7\ns_waitcnt lgkmcnt(0)\ns_barrier")
        if self.cstamp: E(f"s_waitcnt lgkmcnt(0)\ns_memtime s[48:49]\ns_waitcnt lgkmcnt(0)\ns_cmp_eq_u32 s{S_ITEM}, 0\ns_cselect_b32 s83, s48, s83")
        E(f"""
        v_lshlrev_b32 v2, 2, v{L}
        v_add_u32 v2, {STG + MLO}, v2
        s_mul_i32 s39, s{S_W}, 2560
        v_add_u32 v3, s39, v2
        v_lshlrev_b32 v8, 4, v{L}
        v_add_u32 v8, {STG}, v8
        s_lshl_b32 s39, s{S_W}, 13
        s_lshl_b32 s40, s{S_HH}, 12
        s_add_u32 s{S_TMP2}, s39, s40
        v_add_u32 v5, s{S_TMP2}, v8
        s_xor_b32 s{S_TMP2}, s{S_TMP2}, 4096
        v_add_u32 v6, s{S_TMP2}, v8
        """)
        for s_ in range(5):
            E(f"ds_write_b32 v3, v{V_NEGM + s_*4} offset:{s_*512}")
            E(f"ds_write_b32 v3, v{V_L + s_*4} offset:{s_*512 + 256}")
        for jl in range(8):
            E(f"ds_write_b128 v{5 + (jl >> 2)}, {rng('a', acc_o(4, jl))} offset:{(jl & 3)*1024}")
        E(f"""s_mov_b64 s[72:73], 0
        s_mov_b32 s{S_XRB}, 0x21800000
        v_mov_b32 v{V_T3}, 0x5d800000
        v_mov_b32 v{V_P}, 0
        v_mov_b32 v{V_P+1}, 0
        v_mov_b32 v{V_P+2}, 0
        v_mov_b32 v{V_P+3}, 0
        s_xor_b32 s39, s{S_W}, 2
        s_mul_i32 s39, s39, 2560
        v_add_u32 v4, s39, v2
        s_lshl_b32 s39, s{S_W}, 11
        v_add_u32 v5, s39, v8
        v_lshlrev_b32 v7, 4, v{L}
        s_mul_i32 s{S_XOFF}, s{S_ITEM}, 36864
        s_mul_i32 s{S_WOFF}, s{S_W}, {9216 if self.omt else 1024}
        s_add_u32 s{S_WOFF}, s{S_WOFF}, {8*1024 if self.omt else 32*1024}
        s_add_u32 s{S_WOFF}, s{S_WOFF}, s{S_XOFF}
        s_lshl_b32 s39, s{S_QH}, {12 if self.omt else 14}
        s_mul_i32 s40, s{S_HH}, {2*9216 if self.omt else 2048}
        s_add_u32 s39, s39, s40
        s_add_u32 s{S_XOFF}, s{S_XOFF}, s39
        """)
        E("s_waitcnt lgkmcnt(0)\ns_barrier")
        if self.cstamp: E(f"s_waitcnt lgkmcnt(0)\ns_memtime s[48:49]\ns_waitcnt lgkmcnt(0)\ns_cmp_eq_u32 s{S_ITEM}, 0\ns_cselect_b32 s84, s48, s84")
        for s_ in range(4):
            E(f"ds_read_b32 v{120 + 2*s_}, v4 offset:{s_*512}")
            E(f"ds_read_b32 v{121 + 2*s_}, v4 offset:{s_*512 + 256}")
        for ww in range(4):
            E(f"ds_read_b32 v{128 + 2*ww}, v2 offset:{ww*2560 + 4*512}")
            E(f"ds_read_b32 v{129 + 2*ww}, v2 offset:{ww*2560 + 4*512 + 256}")
        for ww in range(4):
            for x in range(2):
                E(f"ds_read_b128 {rng('v', 160 + (ww*2+x)*4)}, v5 offset:{ww*8192 + x*1024}")
        E(f"""
        s_lshl_b32 s39, s{S_W}, 14
        v_add_u32 v3, s39, v8
        s_xor_b32 s39, s39, {2 << 14}
        v_add_u32 v4, s39, v8
        """)
        for s_ in range(4):
            for r in range(16):
                E(f"v_accvgpr_read_b32 v{192 + 16*(s_ % 3) + r if s_ < 3 else 96 + r}, a{acc_o(s_, 0) + r}")
        E("s_waitcnt lgkmcnt(0)\ns_barrier")
        if self.cstamp: E(f"s_waitcnt lgkmcnt(0)\ns_memtime s[48:49]\ns_waitcnt lgkmcnt(0)\ns_cmp_eq_u32 s{S_ITEM}, 0\ns_cselect_b32 s85, s48, s85")
        for s_ in range(4):
            for x in range(4):
                E(f"ds_write_b128 v3, {rng('a', acc_o(s_, 4 + x))} offset:{(s_*4+x)*1024}")
        for s_ in range(4):
            nm, l_ = V_NEGM + 4 * s_, V_L + 4 * s_
            no, lo = 120 + 2 * s_, 121 + 2 * s_
            E(f"""
            v_min_f32 v2, v{nm}, v{no}
            v_sub_f32 v6, v2, v{nm}
            v_sub_f32 v5, v2, v{no}
            v_exp_f32 v6, v6
            v_exp_f32 v5, v5
            s_nop 0
            v_mul_f32 v9, v6, v{l_}
            v_fma_f32 v9, v5, v{lo}, v9
            v_cmp_nge_f32 s[60:61], v9, s{S_XRB}
            v_cmp_nle_f32 vcc, v9, v{V_T3}
            v_rcp_f32 v9, v9
            s_or_b64 s[72:73], s[72:73], s[60:61]
            s_or_b64 s[72:73], s[72:73], vcc
            v_mul_f32 v{136+4*s_}, v6, v9
            v_mul_f32 v{137+4*s_}, v6, v9
            v_mul_f32 v{138+4*s_}, v5, v9
            v_mul_f32 v{139+4*s_}, v5, v9
            """)
        E(f"""
        v_min_f32 v2, v128, v130
        v_min_f32 v6, v132, v134
        v_min_f32 v2, v2, v6
        """)
        for ww in range(4):
            E(f"v_sub_f32 v{152+2*ww}, v2, v{128+2*ww}\nv_exp_f32 v{152+2*ww}, v{152+2*ww}")
        E(f"""
        s_nop 0
        v_mul_f32 v9, v152, v129
        v_fma_f32 v9, v154, v131, v9
        v_fma_f32 v9, v156, v133, v9
        v_fma_f32 v9, v158, v135, v9
        v_cmp_nge_f32 s[60:61], v9, s{S_XRB}
        v_cmp_nle_f32 vcc, v9, v{V_T3}
        v_rcp_f32 v9, v9
        s_or_b64 s[72:73], s[72:73], s[60:61]
        s_or_b64 s[72:73], s[72:73], vcc
        """)
        for ww in range(4): E(f"v_mul_f32 v{152+2*ww}, v{152+2*ww}, v9\nv_mov_b32 v{153+2*ww}, v{152+2*ww}")
        for r in range(8):
            E(f"v_mul_f32 v{112+r}, v{160+r}, v152")
        for ww in range(1, 4):
            for r in range(8):
                E(f"v_fma_f32 v{112+r}, v{160+ww*8+r}, v{152+2*ww}, v{112+r}")
        for r in range(4):
            E(f"v_fma_f32 v{V_P+2}, v{112+2*r}, v{V_P}, v{V_P+2}")
            E(f"v_fma_f32 v{V_P+3}, v{113+2*r}, v{V_P}, v{V_P+3}")
            E(f"v_cvt_pk_bf16_f32 v{V_P+4+r}, v{112+2*r}, v{113+2*r}")
        E(f"buffer_store_dwordx4 {rng('v', V_P+4)}, v7, s[20:23], s{S_WOFF} offen{self.st_flags}")
        mine = lambda s_: (192 + 16 * s_) if s_ < 3 else 96
        for s_ in range(4):
            for r in range(16):
                E(f"v_mul_f32 v{mine(s_)+r}, v{mine(s_)+r}, v{136+4*s_}")
        if self.cstamp: E(f"s_waitcnt lgkmcnt(0)\ns_memtime s[48:49]\ns_waitcnt lgkmcnt(0)\ns_cmp_eq_u32 s{S_ITEM}, 0\ns_cselect_b32 s86, s48, s86")
        E("s_waitcnt lgkmcnt(0)\ns_barrier")
        if self.cstamp: E(f"s_waitcnt lgkmcnt(0)\ns_memtime s[48:49]\ns_waitcnt lgkmcnt(0)\ns_cmp_eq_u32 s{S_ITEM}, 0\ns_cselect_b32 s87, s48, s87")
        recv = lambda s_: 160 + 16 * (s_ % 2)
        def rd(s_):
            for x in range(4):
                E(f"ds_read_b128 {rng('v', recv(s_) + 4*x)}, v4 offset:{(s_*4+x)*1024}")
        rd(0); rd(1)
        for s_ in range(4):
            m_, rc = mine(s_), recv(s_)
            for r in range(16):
                E(f"v_fma_f32 v{m_+r}, v{rc+r}, v{138+4*s_}, v{m_+r}")
            if s_ + 2 < 4: rd(s_ + 2)
            pk = 56 + 8 * s_
            for r in range(8):
                E(f"v_fma_f32 v{V_P+2}, v{m_+2*r}, v{V_P}, v{V_P+2}")
                E(f"v_fma_f32 v{V_P+3}, v{m_+2*r+1}, v{V_P}, v{V_P+3}")
                E(f"v_cvt_pk_bf16_f32 v{pk+r}, v{m_+2*r}, v{m_+2*r+1}")
            E(f"s_add_u32 s39, s{S_XOFF}, {s_*1024 if self.omt else s_*4096}\ns_add_u32 s40, s39, 9216")
            for p in range(2):
                E(f"buffer_store_dwordx4 {rng('v', pk+4*p)}, v7, s[20:23], {('s39' if p == 0 else 's40') if self.omt else 's39'} offen offset:{0 if self.omt else 1024*p}{self.st_flags}")
        E(f"""
        v_cmp_u_f32 vcc, v{V_P+2}, v{V_P+3}
        s_nop 1
        s_or_b64 s[72:73], s[72:73], vcc
        s_cmp_lg_u64 s[72:73], 0
        s_cselect_b32 s39, 1, {1 if self.force_bad else 0}
        s_xor_b32 s40, s{S_SAFE}, 1
        s_and_b32 s39, s39, s40
        s_lshl_b32 s39, s39, s{S_ITEM}
        s_or_b32 s{S_BAD}, s{S_BAD}, s39
        s_waitcnt lgkmcnt(0)
        """)
        if self.cstamp: E(f"s_waitcnt lgkmcnt(0)\ns_memtime s[48:49]\ns_waitcnt lgkmcnt(0)\ns_cmp_eq_u32 s{S_ITEM}, 0\ns_cselect_b32 s88, s48, s88")
        it, _ = finalize_linear(E.items)
        o = Prog(); o.extend(it)
        return o

    def combine_fast(self):
        n = self.name
        L = V_LANE
        E = Prog()
        if self.cstamp: E(f"s_waitcnt lgkmcnt(0)\ns_memtime s[64:65]\ns_waitcnt lgkmcnt(0)\ns_cmp_eq_u32 s{S_ITEM}, 1\ns_cselect_b32 s82, s64, s82")
        E("s_nop 7\ns_waitcnt lgkmcnt(0)\ns_barrier")
        if self.cstamp: E(f"s_waitcnt lgkmcnt(0)\ns_memtime s[64:65]\ns_waitcnt lgkmcnt(0)\ns_cmp_eq_u32 s{S_ITEM}, 1\ns_cselect_b32 s83, s64, s83")
        E(f"""
        v_lshlrev_b32 v8, 4, v{L}
        s_lshl_b32 s39, s{S_W}, 14
        s_add_u32 s39, s39, {STG}
        v_add_u32 v3, s39, v8
        s_xor_b32 s40, s{S_W}, 2
        s_lshl_b32 s40, s40, 14
        s_add_u32 s40, s40, {STG}
        v_add_u32 v4, s40, v8
        """)
        mine = lambda s_: (192 + 16 * s_) if s_ < 3 else 96
        for s_ in range(4):
            for x in range(4):
                E(f"ds_write_b128 v3, {rng('a', acc_o(s_, 4 + x))} offset:{(s_*4+x)*1024}")
                for r in range(4):
                    E(f"v_accvgpr_read_b32 v{mine(s_) + 4*x + r}, a{acc_o(s_, 0) + 4*x + r}")
        for lp in range(4):
            E(f"""
            s_lshl_b32 s39, s{S_HH}, 1
            s_xor_b32 s39, s39, {lp}
            s_sub_u32 s40, s{S_W}, s39
            s_sub_u32 s40, s40, 1
            s_and_b32 s40, s40, 3
            s_mul_i32 s39, s39, 3
            s_add_u32 s39, s39, s40
            s_lshl_b32 s39, s39, 11
            s_cmp_eq_u32 s40, 3
            s_cselect_b32 s39, 24576, s39
            s_add_u32 s39, s39, s{S_FREE}
            v_add_u32 v{120+lp}, s39, v8
            """)
            for x in range(2):
                E(f"ds_write_b128 v{120+lp}, {rng('a', acc_o(4, 2*lp + x))} offset:{x*1024}")
        E(f"""
        v_lshlrev_b32 v2, 2, v{L}
        s_add_u32 s39, s{S_FREE}, 26624
        v_add_u32 v2, s39, v2
        s_mul_i32 s39, s{S_W}, 1280
        v_add_u32 v5, s39, v2
        """)
        for s_ in range(5):
            E(f"ds_write_b32 v5, v{V_L + s_*4} offset:{s_*256}")
        if self.cstamp: E(f"s_waitcnt lgkmcnt(0)\ns_memtime s[64:65]\ns_waitcnt lgkmcnt(0)\ns_cmp_eq_u32 s{S_ITEM}, 1\ns_cselect_b32 s84, s64, s84")
        E(f"s_cmp_lg_u32 s{S_QH}, 0\ns_cbranch_scc1 {n}_cf1")
        for r in range(8): E(f"v_accvgpr_read_b32 v{112+r}, a{acc_o(4, 0) + r}")
        E(f"s_branch {n}_cf2")
        E.label(f"{n}_cf1")
        for r in range(8): E(f"v_accvgpr_read_b32 v{112+r}, a{acc_o(4, 2) + r}")
        E.label(f"{n}_cf2")
        E(f"""
        s_mov_b64 s[72:73], 0
        s_mov_b32 s{S_XRB}, 0x21800000
        v_mov_b32 v{V_T3}, 0x5d800000
        v_mov_b32 v{V_P}, 0
        v_mov_b32 v{V_P+2}, 0
        v_mov_b32 v{V_P+3}, 0
        s_xor_b32 s39, s{S_W}, 2
        s_mul_i32 s39, s39, 1280
        v_add_u32 v5, s39, v2
        s_mul_i32 s39, s{S_W}, 6144
        s_add_u32 s39, s39, s{S_FREE}
        v_add_u32 v6, s39, v8
        v_lshlrev_b32 v7, 4, v{L}
        s_mul_i32 s{S_XOFF}, s{S_ITEM}, 36864
        s_mul_i32 s{S_WOFF}, s{S_W}, {9216 if self.omt else 1024}
        s_add_u32 s{S_WOFF}, s{S_WOFF}, {8*1024 if self.omt else 32*1024}
        s_add_u32 s{S_WOFF}, s{S_WOFF}, s{S_XOFF}
        s_lshl_b32 s39, s{S_QH}, {12 if self.omt else 14}
        s_mul_i32 s40, s{S_HH}, {2*9216 if self.omt else 2048}
        s_add_u32 s39, s39, s40
        s_add_u32 s{S_XOFF}, s{S_XOFF}, s39
        """)
        if self.cstamp: E(f"s_waitcnt lgkmcnt(0)\ns_memtime s[64:65]\ns_waitcnt lgkmcnt(0)\ns_cmp_eq_u32 s{S_ITEM}, 1\ns_cselect_b32 s85, s64, s85")
        E("s_waitcnt lgkmcnt(0)\ns_barrier")
        for s_ in range(4): E(f"ds_read_b32 v{124+s_}, v5 offset:{s_*256}")
        for ww in range(4): E(f"ds_read_b32 v{128+ww}, v2 offset:{ww*1280 + 4*256}")
        for rk in range(3):
            for x in range(2):
                E(f"ds_read_b128 {rng('v', 136 + (rk*2+x)*4)}, v6 offset:{rk*2048 + x*1024}")
        recv = lambda s_: 160 + 16 * (s_ % 2)
        def rd(s_):
            for x in range(4):
                E(f"ds_read_b128 {rng('v', recv(s_) + 4*x)}, v4 offset:{(s_*4+x)*1024}")
        rd(0)
        for s_ in range(4):
            E(f"""
            v_add_f32 v{124+s_}, v{124+s_}, v{V_L + 4*s_}
            v_cmp_nge_f32 s[60:61], v{124+s_}, s{S_XRB}
            v_cmp_nle_f32 vcc, v{124+s_}, v{V_T3}
            v_rcp_f32 v{124+s_}, v{124+s_}
            s_or_b64 s[72:73], s[72:73], s[60:61]
            s_or_b64 s[72:73], s[72:73], vcc
            """)
        E(f"""
        v_add_f32 v128, v128, v129
        v_add_f32 v130, v130, v131
        v_add_f32 v128, v128, v130
        v_cmp_nge_f32 s[60:61], v128, s{S_XRB}
        v_cmp_nle_f32 vcc, v128, v{V_T3}
        v_rcp_f32 v128, v128
        s_or_b64 s[72:73], s[72:73], s[60:61]
        s_or_b64 s[72:73], s[72:73], vcc
        """)
        rd(1)
        for rk in range(3):
            for r in range(8): E(f"v_add_f32 v{112+r}, v{112+r}, v{136+rk*8+r}")
        for r in range(8): E(f"v_mul_f32 v{112+r}, v{112+r}, v128")
        for r in range(4):
            E(f"v_fma_f32 v{V_P+2}, v{112+2*r}, v{V_P}, v{V_P+2}")
            E(f"v_fma_f32 v{V_P+3}, v{113+2*r}, v{V_P}, v{V_P+3}")
            E(f"v_cvt_pk_bf16_f32 v{V_P+4+r}, v{112+2*r}, v{113+2*r}")
        E(f"buffer_store_dwordx4 {rng('v', V_P+4)}, v7, s[20:23], s{S_WOFF} offen{self.st_flags}")
        if self.cstamp: E(f"s_waitcnt lgkmcnt(0)\ns_memtime s[64:65]\ns_waitcnt lgkmcnt(0)\ns_cmp_eq_u32 s{S_ITEM}, 1\ns_cselect_b32 s86, s64, s86")
        for s_ in range(4):
            m_, rc = mine(s_), recv(s_)
            for r in range(16): E(f"v_add_f32 v{m_+r}, v{m_+r}, v{rc+r}")
            if s_ + 2 < 4: rd(s_ + 2)
            for r in range(16): E(f"v_mul_f32 v{m_+r}, v{m_+r}, v{124+s_}")
            pk = 56 + 8 * s_
            for r in range(8):
                E(f"v_fma_f32 v{V_P+2}, v{m_+2*r}, v{V_P}, v{V_P+2}")
                E(f"v_fma_f32 v{V_P+3}, v{m_+2*r+1}, v{V_P}, v{V_P+3}")
                E(f"v_cvt_pk_bf16_f32 v{pk+r}, v{m_+2*r}, v{m_+2*r+1}")
            E(f"s_add_u32 s39, s{S_XOFF}, {s_*1024 if self.omt else s_*4096}\ns_add_u32 s40, s39, 9216")
            for p in range(2):
                E(f"buffer_store_dwordx4 {rng('v', pk+4*p)}, v7, s[20:23], {('s39' if p == 0 else 's40') if self.omt else 's39'} offen offset:{0 if self.omt else 1024*p}{self.st_flags}")
        if self.cstamp: E(f"s_waitcnt lgkmcnt(0)\ns_memtime s[64:65]\ns_waitcnt lgkmcnt(0)\ns_cmp_eq_u32 s{S_ITEM}, 1\ns_cselect_b32 s87, s64, s87")
        E(f"""
        v_cmp_u_f32 vcc, v{V_P+2}, v{V_P+3}
        s_nop 1
        s_or_b64 s[72:73], s[72:73], vcc
        s_cmp_lg_u64 s[72:73], 0
        s_cselect_b32 s39, 1, {1 if self.force_bad else 0}
        s_lshl_b32 s39, s39, s{S_ITEM}
        s_or_b32 s{S_BAD}, s{S_BAD}, s39
        s_waitcnt lgkmcnt(0)
        s_cmp_lg_u32 s{S_ITEM}, 0
        s_cbranch_scc1 {n}_cf3
        s_barrier
        """)
        for g in self.ring_groups():
            for x in g: E(x)
        E.label(f"{n}_cf3")
        if self.cstamp: E(f"s_waitcnt lgkmcnt(0)\ns_memtime s[64:65]\ns_waitcnt lgkmcnt(0)\ns_cmp_eq_u32 s{S_ITEM}, 1\ns_cselect_b32 s88, s64, s88")
        if self.c_nost: E.items = [x for x in E.items if not x.op.startswith('buffer_store')]
        if self.c_nonan: E.items = [x for x in E.items if not (x.op == 'v_fma_f32' and f"v{V_P+2}," in x.text or x.op == 'v_fma_f32' and f"v{V_P+3}," in x.text)]
        if self.c_now: E.items = [x for x in E.items if not x.op.startswith('ds_write_b128')]
        it, _ = finalize_linear(E.items)
        o = Prog(); o.extend(it)
        return o

    def agree_bad(self):
        E = Prog()
        E(f"""
        s_barrier
        v_mov_b32 v5, {STG}
        s_lshl_b32 s40, s{S_W}, 2
        v_add_u32 v6, s40, v5
        v_mov_b32 v3, s{S_BAD}
        ds_write_b32 v6, v3
        s_waitcnt lgkmcnt(0)
        s_barrier
        ds_read_b128 v[120:123], v5
        s_waitcnt lgkmcnt(0)
        v_or_b32 v120, v120, v121
        v_or_b32 v122, v122, v123
        v_or_b32 v120, v120, v122
        s_nop 0
        v_readfirstlane_b32 s{S_BAD}, v120
        s_nop 3
        """)
        it, _ = finalize_linear(E.items)
        o = Prog(); o.extend(it)
        return o

    def stamp(self, out, idx_expr, sel=None):
        if not self.stamps: return
        if (self.qstamp or self.cstamp) and idx_expr not in (0, 1): return
        base = idx_expr
        u = self.nst; self.nst += 1
        out(f"""s_waitcnt lgkmcnt(0)
        {'s_memrealtime' if (self.dbg_stamps is not None or self.dbg_rt) else 's_memtime'} s[72:73]
        s_waitcnt lgkmcnt(0)
        s_cmp_eq_u32 s{sel if sel is not None else S_ITEM}, 0
        s_cselect_b32 s{80+base}, s72, s{80+base}
        s_cselect_b32 s{88+base}, s{88+base}, s72""")

    def build(self):
        n = self.name
        out = Prog()
        st, _ = finalize_linear(self.setup().items)
        out.extend(st)
        cold = Prog()
        out.label(f"{n}_qpL")
        self.stamp(out, 0)
        out.extend(self.qp2('x'))
        out(f"s_cmp_lg_u32 s{S_SAFE}, 0\ns_cbranch_scc1 {n}_qredo")
        out.extend(self.qconv(0, not self.kvdma, 1))
        out.extend(self.lq())
        out("s_barrier")
        out.extend(self.qconv(1, not self.kvdma, 2))
        out.label(f"{n}_qdone")
        cold.label(f"{n}_qredo")
        cold(f"s_cmp_lg_u32 s{S_ITEM}, 0\ns_cbranch_scc1 {n}_qredo1")
        cold.extend(self.qconv(0, not self.kvdma))
        cold(f"s_branch {n}_qredo2")
        cold.label(f"{n}_qredo1")
        cold.extend(self.qconv(1, not self.kvdma))
        cold.label(f"{n}_qredo2")
        cold.extend(self.lq())
        cold(f"s_branch {n}_safe")
        self.stamp(out, 1)
        out.label(f"{n}_att")
        self.stamp(out, 2)
        out(f"s_cmp_lg_u32 s{S_QH}, 0\ns_cbranch_scc1 {n}_q1")
        self.x_nomax = self.fast
        out.extend(self.attention(0, 'a'))
        out(f"s_branch {n}_cmb")
        out.label(f"{n}_q1")
        out.extend(self.attention(1, 'b'))
        cold.label(f"{n}_safe")
        self.x_nomax = False
        st, self.stamps = self.stamps, False
        cold(f"s_cmp_lg_u32 s{S_QH}, 0\ns_cbranch_scc1 {n}_sq1")
        cold.extend(self.attention(0, 'c'))
        cold(f"s_branch {n}_scmb")
        cold.label(f"{n}_sq1")
        cold.extend(self.attention(1, 'd'))
        cold(f"s_branch {n}_scmb")
        self.stamps = st
        out.label(f"{n}_cmb")
        self.stamp(out, 3)
        out(f"s_cmp_lg_u32 s{S_ITEM}, 0\ns_cbranch_scc1 {n}_nolq")
        out.extend(self.lq())
        out.label(f"{n}_nolq")
        if self.cfast and self.fast:
            out.extend(self.combine_fast())
        else:
            out.extend(self.combine(0))
        self.stamp(out, 4)
        out(f"s_add_u32 s{S_ITEM}, s{S_ITEM}, 1\ns_cmp_ge_u32 s{S_ITEM}, 2\ns_cbranch_scc1 {n}_agree")
        out(f"s_branch {n}_att")
        cold.label(f"{n}_scmb")
        st2, self.stamps, cs = self.stamps, False, self.cstamp
        self.cstamp = False
        cold.extend(self.combine(0))
        self.stamps, self.cstamp = st2, cs
        cold(f"s_branch {n}_redo")
        out.label(f"{n}_agree")
        out.extend(self.agree_bad())
        out.label(f"{n}_redo")
        out(f"s_cmp_eq_u32 s{S_BAD}, 0\ns_cbranch_scc1 {n}_fin")
        out(f"""s_and_b32 s39, s{S_BAD}, 1
        s_xor_b32 s{S_ITEM}, s39, 1
        s_lshl_b32 s39, 1, s{S_ITEM}
        s_andn2_b32 s{S_BAD}, s{S_BAD}, s39
        s_mov_b32 s{S_SAFE}, 1
        s_lshl_b32 s{S_GOFF}, s{S_ITEM}, 18
        s_add_u32 s{S_DSLOT}, s{S_DBASE}, {SLOT if self.kvdma else 0}
        s_mov_b32 s{S_RSLOT}, {SLOT if self.kvdma else 0}
        s_branch {n}_qpL""")
        out.label(f"{n}_fin")
        out(f"""s_lshl_b32 s39, s2, 7
        s_add_u32 s39, s39, {48 << 20}
        s_add_u32 s72, s68, s39
        s_addc_u32 s73, s69, 0
        v_mov_b32 v2, 0
        v_lshlrev_b32 v3, 2, v{V_LANE}
        s_mov_b32 exec_hi, 0
        global_store_dword v3, v2, s[72:73]
        s_mov_b32 exec_hi, -1""")
        self.cold = cold
        if self.stamps and self.dbg_stamps is not None:
            out(f"""s_cmp_lg_u32 s2, {self.dbg_stamps}
            s_cbranch_scc1 {n}_done
            s_cmp_lg_u32 s{S_W}, 0
            s_cbranch_scc1 {n}_done
            s_memrealtime s[72:73]
            s_waitcnt lgkmcnt(0)
            s_mov_b32 s95, s72
            s_add_u32 s68, s68, {64 << 20}
            s_addc_u32 s69, s69, 0
            v_mov_b32 v2, 0""")
            for i in range(16):
                out(f"v_mov_b32 v3, s{80+i}\nglobal_store_dword v2, v3, s[68:69] offset:{4*i}")
        elif self.stamps:
            out(f"""s_lshl_b32 s39, s2, 2
            s_add_u32 s39, s39, s{S_W}
            s_lshl_b32 s39, s39, 6
            s_add_u32 s39, s39, {64 << 20}
            s_add_u32 s68, s68, s39
            s_addc_u32 s69, s69, 0
            v_mov_b32 v2, 0""")
            for i in range(16):
                out(f"v_mov_b32 v3, s{80+i}\nglobal_store_dword v2, v3, s[68:69] offset:{4*i}")
        if self.fuse is not None:
            out.label(f"{n}_pub")
            out(f"""s_load_dwordx2 s[78:79], s[0:1], 88
            s_waitcnt vmcnt(0) lgkmcnt(0)
            s_barrier
            s_cmp_lg_u32 s{S_W}, 0
            s_cbranch_scc1 {n}_pub2
            s_lshl_b32 s39, s{S_BLK}, 3
            s_add_u32 s39, s39, s{S_B}
            s_lshl_b32 s39, s39, 2
            v_mov_b32 v2, s39
            s_lshl_b32 s40, 3, s{S_H0}
            v_mov_b32 v3, s40
            s_mov_b64 exec, 1
            global_atomic_or v2, v3, s[78:79]
            s_mov_b64 exec, -1
            {n}_pub2:
            {n}_op:""")
            out.extend(self.fuse)
        out.label(f"{n}_done")
        out("s_endpgm")
        out.extend(self.cold)
        labs = {it.text for it in out.items if it.kind == 'label'}
        for r in self.rare:
            back = r.items[-1].ops[0] + ':'
            if back in labs: out.extend(r)
        return kernel_text(n, out.text(), vgpr=512, sgpr=102, acc=256), LDS_TOTAL

if __name__ == '__main__':
    import sys
    b = dict(nt_w=True)
    variants = [('fa_a_kernel', dict(b)), ('fa_c_kernel', dict(b, cstamp=True)), ('fa_forcebad_kernel', dict(b, force_bad=True))]
    hdr = ''; body = ''
    for nm, kw in variants:
        txt, lds = FA(name=nm, stamps=True, **kw).build()
        hdr += f"; @launch kernel={nm} grid=(256,1,1) block=(256,1,1) lds={lds}\n"
        body += txt
    open('fa.s', 'w').write(hdr + '.amdgcn_target "amdgcn-amd-amdhsa--gfx950"\n.text\n' + body)
```

```python
from asmlib import *

XCH_OFF = 32 << 20
FLAG_OFF = 48 << 20
WSL = 8192
NS = 4
LDS = 131072

def rng(f, b, n=4): return f"{f}[{b}:{b+n-1}]"
def acc(t, jl):
    k = t * 8 + jl
    return ('a', 4 * k) if k < 64 else ('v', 200 + 4 * (k - 64))
V_B = [32, 68, 104, 140]
V_A = 176 - 0
A_REG = [176, 180, 184, 188, 192, 196, 232, 236]

def gen_oproj(name='oproj_kernel', stamps=False, rt=False, dbg=False, nt_w=False, xfl=' sc1', x_noO=False, x_noW=False, x_noA=False, spacing=3, out_fl='', wsb=0):
    RT = 's_memrealtime' if (dbg or rt) else 's_memtime'
    ntw = ' nt' if nt_w else ''
    P = Prog()
    def stamp(X, i):
        if stamps: X(f"s_waitcnt lgkmcnt(0)\n{RT} s[50:51]\ns_waitcnt lgkmcnt(0)\ns_mov_b32 s{60+i}, s50")
    P(f"""
    s_cmp_ge_u32 s2, 256
    s_cbranch_scc1 {name}_done
    s_load_dwordx2 s[4:5], s[0:1], 96
    s_load_dwordx2 s[6:7], s[0:1], 80
    s_load_dwordx2 s[8:9], s[0:1], 32
    s_load_dwordx2 s[10:11], s[0:1], 72
    v_lshrrev_b32 v1, 6, v0
    v_and_b32 v2, 63, v0
    v_readfirstlane_b32 s24, v1
    s_and_b32 s32, s2, 7
    s_lshr_b32 s33, s2, 3
    s_lshr_b32 s25, s32, 2
    s_and_b32 s28, s33, 1
    s_and_b32 s34, s32, 1
    s_lshl_b32 s34, s34, 2
    s_lshr_b32 s35, s33, 1
    s_and_b32 s35, s35, 3
    s_add_u32 s26, s34, s35
    s_lshr_b32 s34, s32, 1
    s_and_b32 s34, s34, 1
    s_lshl_b32 s34, s34, 2
    s_lshr_b32 s35, s33, 3
    s_add_u32 s27, s34, s35
    s_and_b32 s29, s24, 1
    s_lshr_b32 s30, s24, 1
    """)
    P("""
    v_lshlrev_b32 v10, 4, v2
    v_add_u32 v11, 4096, v10
    v_add_u32 v12, 8192, v10
    v_lshrrev_b32 v3, 4, v2
    v_and_b32 v4, 15, v2
    v_lshlrev_b32 v5, 2, v3
    v_xor_b32 v4, v4, v5
    v_lshlrev_b32 v4, 4, v4
    v_lshlrev_b32 v5, 11, v3
    v_add_u32 v13, v5, v4
    """)
    for m in range(8):
        P(f"v_xor_b32 v{14+m}, {16*(m >> 1)}, v13\nv_add_u32 v{14+m}, {m*8192}, v{14+m}")
    P(f"""
    v_lshrrev_b32 v3, 2, v2
    v_and_b32 v3, 3, v3
    v_lshrrev_b32 v4, 4, v2
    v_and_b32 v5, 3, v2
    v_xor_b32 v5, v5, v4
    v_lshlrev_b32 v5, 4, v5
    v_lshlrev_b32 v6, 6, v3
    v_add_u32 v5, v5, v6
    v_lshlrev_b32 v6, 3, v4
    v_add_u32 v6, v6, v3
    v_lshlrev_b32 v6, 8, v6
    s_lshl_b32 s75, s24, 15
    v_add_u32 v6, s75, v6
    """)
    for lp in range(4):
        P(f"s_xor_b32 s32, s24, {lp}\ns_lshl_b32 s32, s32, 6\nv_xor_b32 v7, s32, v5\nv_add_u32 v{22+lp}, v6, v7")
    P("s_waitcnt lgkmcnt(0)")
    if wsb: P(f"s_add_u32 s4, s4, {wsb}\ns_addc_u32 s5, s5, 0")
    stamp(P, 0)
    P(f"""
    s_add_u32 s52, s4, {FLAG_OFF}
    s_addc_u32 s53, s5, 0
    s_lshl_b32 s32, s25, 3
    s_add_u32 s32, s32, s26
    s_mul_i32 s32, s32, {32*36864}
    s_add_u32 s12, s4, s32
    s_addc_u32 s13, s5, 0
    s_and_b32 s13, s13, 0xffff
    s_mov_b32 s14, {32*36864}
    s_mov_b32 s15, 0x20000
    s_cmp_eq_u32 s25, 0
    s_cselect_b32 s16, s8, s10
    s_cselect_b32 s17, s9, s11
    s_lshl_b32 s32, s27, 8
    s_add_u32 s16, s16, s32
    s_addc_u32 s17, s17, 0
    s_and_b32 s17, s17, 0xffff
    s_sub_u32 s18, {4096*2048}, s32
    s_mov_b32 s19, 0x20000
    s_lshl_b32 s32, s28, 4
    s_lshl_b32 s33, s24, 2
    s_add_u32 s32, s32, s33
    s_mul_i32 s36, s32, 36864
    s_add_u32 s38, s36, {4*36864}
    s_lshl_b32 s37, s32, 18
    s_add_u32 s39, s37, {16 << 16}
    """)
    def o_groups(bset):
        L = [[f"s_cmp_lt_u32 s36, s38", f"s_cselect_b32 s41, s36, {32*36864}"]]
        for t in range(9):
            b = V_B[bset] + 4 * t
            L.append([f"buffer_load_dwordx4 {rng('v', b)}, v{10 + (t >> 2)}, s[12:15], s41 offen offset:{(t & 3)*1024}"])
        L.append([f"s_add_u32 s36, s36, 9216"])
        return L
    def w_groups(slot):
        L = [[f"s_cmp_lt_u32 s37, s39", f"s_cselect_b32 s42, s37, {4096*2048}"]]
        for m in range(8):
            L.append([f"s_add_u32 m0, s75, {slot*WSL + m*1024}", f"buffer_load_dwordx4 v{14+m}, s[16:19], s42 offen{ntw} lds"])
        L.append([f"s_add_u32 s37, s37, 65536"])
        return L
    def a_reads(slot, jl):
        a = A_REG[jl]
        lp, h = jl >> 1, jl & 1
        return [[f"ds_read_b64_tr_b16 v[{a}:{a+1}], v{22+lp} offset:{slot*WSL + 8*h}"],
                [f"ds_read_b64_tr_b16 v[{a+2}:{a+3}], v{22+lp} offset:{slot*WSL + 8*h + 1024}"]]
    order = [('W', 0), ('O', 0), ('W', 1), ('O', 1), ('W', 2), ('O', 2), ('W', 3)]
    for kind, i in order[:3]:
        for g in (w_groups(i) if kind == 'W' else o_groups(i)):
            for x in g: P(x)
    for r in range(4): P(f"v_mov_b32 v{4+r}, 0")
    Z = []
    for t in range(9):
        for jl in range(8):
            f, b = acc(t, jl)
            Z.append(f"v_mfma_f32_16x16x32_bf16 {rng(f, b)}, v[4:7], v[4:7], 0")
    G = []
    for kind, i in order[3:]:
        G += (w_groups(i) if kind == 'W' else o_groups(i))
    zi = 0
    for g in G:
        for x in g: P(x)
        for _ in range(2):
            if zi < len(Z): P(Z[zi]); zi += 1
    for z in Z[zi:]: P(z)
    P("s_waitcnt vmcnt(51)")
    for jl in range(8):
        for g in a_reads(0, jl):
            for x in g: P(x)
    P("s_waitcnt lgkmcnt(0)")
    stamp(P, 1)
    P("s_mov_b32 s31, 4")
    pre, _ = finalize_linear(P.items)
    out = Prog(); out.extend(pre)
    body = Prog()
    for r in range(4):
        body("s_waitcnt vmcnt(34)")
        M = []
        for jl in range(8):
            for t in range(9):
                f, b = acc(t, jl)
                M.append(f"v_mfma_f32_16x16x32_bf16 {rng(f, b)}, {rng('v', A_REG[jl])}, {rng('v', V_B[r] + 4*t)}, {rng(f, b)}")
        fill = [[] for _ in M]
        for jl in range(8):
            R = a_reads((r + 1) % NS, jl)
            p = 9 * jl + 8
            fill[p] += R[0]
            fill[min(p + 1, len(M) - 1)] += R[1]
        fill[6].append("s_waitcnt lgkmcnt(0)")
        DO, DW = o_groups((r + 3) % 4), w_groups(r)
        if x_noO: DO = []
        if x_noW: DW = []
        if x_noA: fill = [[] for _ in M]
        free = [i for i in range(len(M)) if not fill[i]]
        k = 0
        for g in DO:
            fill[free[k]] += g
            if any('buffer_load' in y for y in g): k += spacing
        k = max(k, next(i for i, v in enumerate(free) if v > 8))
        for g in DW:
            pos = free[min(k, len(free) - 1)]
            if 'm0' in g[0] and pos > 0 and not any('buffer_load' in y and 'lds' in y for y in fill[pos - 1]):
                fill[pos - 1].append(g[0]); fill[pos] += g[1:]
            else: fill[pos] += g
            if any('buffer_load' in y for y in g): k += spacing
        for m, f in zip(M, fill):
            body(m)
            for x in f: body(x)
    body("s_sub_u32 s31, s31, 1")
    body("s_cmp_lg_u32 s31, 0")
    b_items, fifo = finalize_loop(body.items)
    out.label(f"{name}_loop")
    out.extend(b_items)
    out(f"s_cbranch_scc1 {name}_loop")
    E = Prog()
    stamp(E, 2)
    E("s_waitcnt vmcnt(0) lgkmcnt(0)\ns_nop 7\ns_barrier")
    E("v_lshlrev_b32 v3, 4, v2")
    def q_src(t, jl):
        f, b = acc(t, jl)
        return rng(f, b)
    for rnd, ts in enumerate((range(0, 5), range(5, 9))):
        nq = 2 * len(ts)
        reg = nq * 1024
        if rnd: E("s_waitcnt lgkmcnt(0)\ns_barrier")
        for lp in range(1, 4):
            E(f"""
            s_xor_b32 s32, s24, {lp}
            s_mul_i32 s32, s32, {3*reg}
            s_add_u32 s32, s32, {(lp-1)*reg}
            v_add_u32 v{3+lp}, s32, v3
            """)
        for lp in range(1, 4):
            for i, t in enumerate(ts):
                for x in range(2):
                    E(f"ds_write_b128 v{3+lp}, {q_src(t, 2*lp + x)} offset:{(i*2+x)*1024}")
        if rnd == 0:
            for t in range(9):
                for x in range(2):
                    f, b = acc(t, x)
                    for r in range(4):
                        if f == 'a': E(f"v_accvgpr_read_b32 v{32+8*t+4*x+r}, a{b+r}")
                        else: E(f"v_mov_b32 v{32+8*t+4*x+r}, v{b+r}")
        E(f"s_mul_i32 s32, s24, {3*reg}\nv_add_u32 v7, s32, v3")
        E("s_waitcnt lgkmcnt(0)\ns_barrier")
        for i, t in enumerate(ts):
            for rk in range(3):
                for x in range(2):
                    E(f"ds_read_b128 {rng('v', 104 + (rk*2+x)*4 + 24*(i % 3))}, v7 offset:{rk*reg + (i*2+x)*1024}")
            for rk in range(3):
                for r in range(8):
                    E(f"v_add_f32 v{32+8*t+r}, v{32+8*t+r}, v{104 + rk*8 + 24*(i % 3) + r}")
    E("v_lshlrev_b32 v3, 4, v2")
    E(f"""
    s_lshl_b32 s32, s2, 1
    s_add_u32 s32, s32, s29
    s_mul_i32 s32, s32, 18432
    s_add_u32 s44, s4, s32
    s_addc_u32 s45, s5, 0
    s_add_u32 s44, s44, {XCH_OFF}
    s_addc_u32 s45, s45, 0
    s_and_b32 s45, s45, 0xffff
    s_mov_b32 s46, 18432
    s_mov_b32 s47, 0x20000
    s_xor_b32 s33, s2, 8
    s_lshl_b32 s32, s33, 1
    s_add_u32 s32, s32, s29
    s_mul_i32 s32, s32, 18432
    s_add_u32 s56, s4, s32
    s_addc_u32 s57, s5, 0
    s_add_u32 s56, s56, {XCH_OFF}
    s_addc_u32 s57, s57, 0
    s_and_b32 s57, s57, 0xffff
    s_mov_b32 s58, 18432
    s_mov_b32 s59, 0x20000
    """)
    E(f"s_cmp_eq_u32 s30, s28\ns_cbranch_scc1 {name}_keep")
    for t in range(9):
        for x in range(2):
            E(f"s_mov_b32 s76, {(t*2+x)*1024}\nbuffer_store_dwordx4 {rng('v', 32+8*t+4*x)}, v3, s[44:47], s76 offen{xfl}")
    E(f"""
    s_waitcnt vmcnt(0)
    s_xor_b32 s33, s2, 8
    s_lshl_b32 s33, s33, 7
    s_lshl_b32 s34, s29, 2
    s_add_u32 s33, s33, s34
    v_mov_b32 v6, s33
    v_mov_b32 v7, 1
    s_mov_b64 exec, 1
    global_store_dword v6, v7, s[52:53] sc1
    s_mov_b64 exec, -1
    s_branch {name}_sync
    """)
    E.label(f"{name}_keep")
    E(f"""
    s_lshl_b32 s33, s2, 7
    s_lshl_b32 s34, s29, 2
    s_add_u32 s33, s33, s34
    v_mov_b32 v6, s33
    s_mov_b32 s35, 0x100000
    """)
    E.label(f"{name}_poll")
    E(f"""
    global_load_dword v7, v6, s[52:53] sc1
    s_waitcnt vmcnt(0)
    v_readfirstlane_b32 s33, v7
    s_sub_u32 s35, s35, 1
    s_cmp_eq_u32 s33, 1
    s_cbranch_scc1 {name}_sync
    s_sleep 1
    s_cmp_lg_u32 s35, 0
    s_cbranch_scc1 {name}_poll
    """)
    E.label(f"{name}_sync")
    stamp(E, 4)
    E("s_barrier")
    E(f"s_cmp_lg_u32 s30, s28\ns_cbranch_scc1 {name}_fin")
    for t in range(9):
        for x in range(2):
            E(f"s_mov_b32 s76, {(t*2+x)*1024}\nbuffer_load_dwordx4 {rng('v', 104 + 8*t + 4*x)}, v3, s[56:59], s76 offen{' sc1' if xfl else ''}")
    E(f"""
    s_mul_i32 s32, s26, {144*4096}
    s_lshl_b32 s33, s25, 11
    s_add_u32 s32, s32, s33
    s_lshl_b32 s33, s27, 8
    s_add_u32 s32, s32, s33
    s_lshl_b32 s33, s24, 6
    s_add_u32 s32, s32, s33
    s_add_u32 s20, s6, s32
    s_addc_u32 s21, s7, 0
    s_and_b32 s21, s21, 0xffff
    s_sub_u32 s22, {8*144*4096}, s32
    s_mov_b32 s23, 0x20000
    v_and_b32 v9, 15, v2
    v_lshlrev_b32 v9, 12, v9
    v_lshrrev_b32 v21, 4, v2
    v_lshlrev_b32 v21, 4, v21
    v_add_u32 v9, v9, v21
    """)
    for t in range(9):
        src = 104 + 8 * t
        E(f"s_waitcnt vmcnt({2*(8-t) + t})")
        for r in range(8): E(f"v_add_f32 v{32+8*t+r}, v{32+8*t+r}, v{src+r}")
        for r in range(4): E(f"v_cvt_pk_bf16_f32 v{208+4*(t % 3)+r}, v{32+8*t+2*r}, v{33+8*t+2*r}")
        E(f"s_mov_b32 s33, {t*16*4096}")
        E(f"buffer_store_dwordx4 {rng('v', 208+4*(t % 3))}, v9, s[20:23], s33 offen{out_fl}")
    E.label(f"{name}_fin")
    stamp(E, 3)
    if stamps and not dbg:
        E(f"""s_lshl_b32 s32, s2, 2
        s_add_u32 s32, s32, s24
        s_lshl_b32 s32, s32, 6
        s_add_u32 s32, s32, {(64 << 20) + (1 << 17)}
        s_add_u32 s4, s4, s32
        s_addc_u32 s5, s5, 0
        v_mov_b32 v2, 0""")
        for i in range(5):
            E(f"v_mov_b32 v3, s{60+i}\nglobal_store_dword v2, v3, s[4:5] offset:{4*i}")
    e_items, _ = finalize_linear(E.items)
    out.extend(e_items)
    out.label(f"{name}_done")
    out("s_endpgm")
    return kernel_text(name, out.text(), vgpr=512, sgpr=96, acc=256), LDS
```

```python
import sys, importlib
sys.path.insert(0, 'gen')
import fa as fa_mod, fa_v2, fa_v3, oproj3, oproj4, oproj5
def make(path, fa_kw=None, op_kw=None, order='fo', mod=fa_mod, opmod=oproj3):
    f = mod.FA(name='fa_kernel', **(fa_kw or {}))
    t1, l1 = f.build()
    t2, l2 = opmod.gen_oproj('oproj_kernel', **(op_kw or {}))
    hdr = open('concat_heads__mha_block_cached__gqa_block_cached__near_ridge.s.ref').read().split('; Override')[0]
    for k in order:
        if k == 'f': hdr += f"; @launch kernel=fa_kernel grid=(256,1,1) block=(256,1,1) lds={l1}\n"
        else: hdr += f"; @launch kernel=oproj_kernel grid=(256,1,1) block=(256,1,1) lds={l2}\n"
    open(path, 'w').write(hdr + '.amdgcn_target "amdgcn-amd-amdhsa--gfx950"\n.text\n' + t1 + t2)
def make_fused(path, fa_kw=None, op_kw=None, kname='fa_kernel', listfmt=True):
    op = oproj4.gen_oproj(kname + '_o', fused=True, **(op_kw or {}))
    kw = dict(fa_kw or {})
    kw['op_label'] = kname + '_op'
    f = fa_mod.FA(name=kname, fuse=op, **kw)
    t1, l1 = f.build()
    hdr = open('concat_heads__mha_block_cached__gqa_block_cached__near_ridge.s.ref').read().split('; Override')[0]
    if listfmt: hdr += f"; @launch kernel={kname} grid=(256,1,1) block=(256,1,1) lds={l1}\n"
    else: hdr += f"; @launch grid=(256,1,1) block=(256,1,1) lds={l1}\n"
    open(path, 'w').write(hdr + '.amdgcn_target "amdgcn-amd-amdhsa--gfx950"\n.text\n' + t1)
if __name__ == '__main__':
    M = 'cdna_kernels/'
    D = 'dev/'
    base = dict(pf_wo=True, op_label='oproj_kernel', nt_w=True, pf_code2=True, st_flags=' sc1', omt=True)
    make(D + 'p_a.s', fa_kw=dict(base, stamps=True, dbg_rt=True), op_kw=dict(stamps=True, rt=True), opmod=oproj5)
    make(M + 'concat_heads__mha_block_cached__gqa_block_cached__near_ridge.s', fa_kw=dict(base), opmod=oproj5)
    make(M + 'o1.s', fa_kw=dict(base, omt=False), opmod=oproj4)
```

```python
from asmlib import *
import math

RING = 0
SLOT = 32768
STG = 98304
XB = [STG, STG + 18432]
WB = [STG + 36864 + 8192 * i for i in range(3)]
QX = STG
LDS_TOTAL = 163840
O_WS_OFF = 0
CSCALE = math.log2(math.e) / math.sqrt(128.0)

import struct
def f2u(x): return struct.unpack('<I', struct.pack('<f', x))[0]

V_LANE = 1
V_RING = 10
V_KPAT, V_VPAT, V_KA, V_VA = 20, 24, 28, 32
V_P = 36
V_MX, V_T1, V_T2, V_T3 = 48, 49, 50, 51
V_ONES = 52
V_NEGM = 56
V_L = 76
V_S = 96
V_KF = {'A': 120, 'B': 184}
V_VF = {'A': 152, 'B': 216}
A_O = 0
A_Q = 160
V_XD, V_WD = 106, 98
V_WD2 = 96
V_WPH = 112
V_ZERO = 116
QXBASE = 98304
V_PFW, V_PFX, V_PFD = 14, 15, 16
V_RINGK, V_RINGV = 17, 18
V_RINGH = 248
V_VA2 = 252
V_XPAT = 100
V_WPAT = 104
V_XA = 106
V_WA = 110
QF_W = [120, 156]
QF_X = [136, 172]

S_W, S_QH, S_HH, S_BLK, S_B, S_H0 = 24, 25, 26, 27, 28, 29
S_CH, S_DSLOT, S_RSLOT, S_CNT = 30, 31, 32, 33
S_T = 34
S_GOFF, S_LB, S_TMP, S_TMP2 = 41, 42, 40, 43
S_DWRAP, S_DBASE = 30, 42
S_XI, S_WI, S_XOFF, S_WOFF, S_XBUF, S_WBUF, S_XRB, S_WRB = 44, 45, 46, 47, 48, 49, 50, 51
S_XW_G, S_XW_L = 54, 55
S_XC = 96
S_WW_L, S_WLIM = 101, 56
S_BAD, S_SAFE, S_NREC2 = 44, 45, 53
S_KOOB = 51
S_FREE = 49
S_ITEM = 58
S_FL = 59
S_QI = 70
S_FLAG = 72
S_LATE, S_PR, S_FI, S_FMAX, S_FG, S_FL2 = 71, 74, 75, 52, 53, 56
S_KVO = 66

QP_PAT = [98, 99, 100, 101, 102, 103, 104, 105, 106, 107, 108, 109, 110]
def qacc(k): return (56 + 4 * k) if k < 10 else (192 + 4 * (k - 10))
def acc_o(slot, jl): return A_O + slot * 32 + jl * 4
def q_frag(slot, jp): return A_Q + slot * 16 + jp * 4
def rng(f, b, n=4): return f"{f}[{b}:{b+n-1}]"

def interleave(M, fillers, start=0):
    out = []
    k = 0
    for i, m in enumerate(M):
        out.append(m)
        if i >= start and k < len(fillers):
            out += fillers[k]; k += 1
    while k < len(fillers):
        out += fillers[k]; k += 1
    return out

def spread(M, groups, start=0):
    m = len(M) - start
    n = len(groups)
    out = []
    for i, x in enumerate(M):
        out.append(x)
        if i >= start:
            k = i - start
            for g in groups[(k * n) // m:((k + 1) * n) // m]:
                out += g
    return out

class FA:
    def __init__(self, name='fa_kernel', nt_kv=True, nt_w=False, nt_x=False, dbg=None, order='early', stamps=False, pf_qp=True, pf_att=True, late_bit=1, x_nodma=False, x_nosm=False, x_nobr=False, x_nord=False, x_nobar=False, x_qv=False, q_nodma=False, q_nord=False, q_nobar=False, q_nowait=False, same_kv=False, x_nohead=False, x_noX=False, x_nomax=False, fill_qp=True, fast=True, force_bad=False, pf_wo=False, pf_code=False, op_label=None, dbg_stamps=None, pf0=False, pf1=False, pf_nt=False, qstamp=False, cstamp=False, st_flags='', qp0_nt=False, pf0x=False, rot=False, pf_tlb=False, dbg_rt=False, pf_code2=False, kvreg=False, kvdma=True, qn1=4, cfast=True, c_nost=False, c_nonan=False, c_now=False, fuse=None, omt=False, op_end='oproj_kernel_done'):
        self.op_end = op_end
        self.omt = omt
        self.fuse = fuse
        self.c_nost, self.c_nonan, self.c_now = c_nost, c_nonan, c_now
        self.cfast = cfast
        self.qn1 = qn1
        self.kvdma = kvdma
        self.kvreg = kvreg
        self.pf_code2 = pf_code2
        self.dbg_rt = dbg_rt
        self.pf_tlb = pf_tlb
        self.rot = rot
        self.st_flags, self.qp0_nt, self.pf0x = st_flags, qp0_nt, pf0x
        self.cstamp = cstamp
        self.qstamp = qstamp
        self.pf0, self.pf1 = pf0, pf1
        self.pf_nt = ' nt' if pf_nt else ''
        self.dbg_stamps = dbg_stamps
        self.pf_wo, self.pf_code, self.op_label = pf_wo, pf_code, op_label
        self.fast = fast
        self.force_bad = force_bad
        self.fill_qp = fill_qp
        self.x_nomax = x_nomax
        self.x_nohead, self.x_noX = x_nohead, x_noX
        self.same_kv = same_kv
        self.q_nowait = q_nowait
        self.q_nodma, self.q_nord, self.q_nobar = q_nodma, q_nord, q_nobar
        self.x_nodma, self.x_nosm, self.x_nobr, self.x_nord, self.x_nobar, self.x_qv = x_nodma, x_nosm, x_nobr, x_nord, x_nobar, x_qv
        self.pf_qp = pf_qp
        self.pf_att = pf_att
        self.late_bit = late_bit
        self.stamps = stamps
        self.nst = 0
        self.name = name
        self.nt_kv = ' nt' if nt_kv else ''
        self.nt_w = ' nt' if nt_w else ''
        self.nt_x = ' nt' if nt_x else ''
        self.dbg = dbg
        self.order = order
        self.rare = []
        self.uid = 0

    def setup(self):
        P = Prog()
        n = self.name
        P(f"""
        s_cmp_ge_u32 s2, 256
        s_cbranch_scc1 {n}_done
        s_and_b32 s39, s2, 7
        s_lshr_b32 s40, s2, 3
        s_lshr_b32 s{S_BLK}, s39, 2
        s_and_b32 s39, s39, 3
        s_and_b32 s{S_B}, s40, 7
        s_lshr_b32 s40, s40, 3
        s_mov_b32 s{S_PR}, s40
        s_lshl_b32 s39, s39, 3
        s_lshl_b32 s40, s40, 1
        s_add_u32 s{S_H0}, s39, s40
        s_mul_i32 s39, s{S_BLK}, 40
        s_add_u32 s60, s0, s39
        s_addc_u32 s61, s1, 0
        s_load_dwordx2 s[4:5], s[60:61], 0
        s_load_dwordx2 s[62:63], s[60:61], 8
        s_load_dwordx2 s[64:65], s[60:61], 16
        s_load_dwordx2 s[66:67], s[60:61], 24
        s_load_dwordx2 s[68:69], s[0:1], 96
        s_load_dwordx2 s[76:77], s[60:61], 32
        v_lshrrev_b32 v2, 6, v0
        v_and_b32 v{V_LANE}, 63, v0
        v_readfirstlane_b32 s{S_W}, v2
        s_and_b32 s{S_QH}, s{S_W}, 1
        s_lshr_b32 s{S_HH}, s{S_W}, 1
        """)
        L = V_LANE
        P(f"""
        v_lshrrev_b32 v2, 4, v{L}
        v_and_b32 v3, 15, v{L}
        v_xor_b32 v4, v3, v2
        v_lshlrev_b32 v5, 2, v2
        v_xor_b32 v5, v3, v5
        v_lshlrev_b32 v4, 4, v4
        v_lshlrev_b32 v5, 4, v5
        v_lshlrev_b32 v2, 8, v2
        v_add_u32 v{V_RINGK}, v4, v2
        v_add_u32 v{V_RINGV}, v5, v2
        s_cmp_eq_u32 s{S_QH}, 0
        s_cselect_b32 s39, 64, 16
        s_cselect_b64 vcc, -1, 0
        v_cndmask_b32 v{V_RING}, v{V_RINGV}, v{V_RINGK}, vcc
        v_xor_b32 v{V_RING+1}, s39, v{V_RING}
        s_lshl_b32 s40, s39, 1
        v_xor_b32 v{V_RING+2}, s40, v{V_RING}
        s_add_u32 s40, s40, s39
        v_xor_b32 v{V_RING+3}, s40, v{V_RING}
        v_add_u32 v{V_RINGH}, 4096, v{V_RING}
        v_add_u32 v{V_RINGH+1}, 4096, v{V_RING+1}
        v_add_u32 v{V_RINGH+2}, 4096, v{V_RING+2}
        v_add_u32 v{V_RINGH+3}, 4096, v{V_RING+3}
        """)
        P(self.pf_setup())
        P(f"""
        v_and_b32 v3, 15, v{L}
        v_lshrrev_b32 v2, 4, v{L}
        v_xor_b32 v4, v2, v3
        v_lshlrev_b32 v4, 4, v4
        v_lshlrev_b32 v5, 8, v3
        s_lshl_b32 s39, s{S_HH}, 14
        v_add_u32 v5, s39, v5
        """)
        for jp in range(4):
            P(f"v_xor_b32 v6, {64*jp}, v4\nv_add_u32 v{V_KPAT+jp}, v5, v6")
        P(f"""
        v_lshrrev_b32 v3, 2, v{L}
        v_and_b32 v3, 3, v3
        v_and_b32 v4, 3, v{L}
        v_xor_b32 v4, v4, v2
        v_lshlrev_b32 v4, 4, v4
        v_lshlrev_b32 v5, 6, v3
        v_add_u32 v4, v4, v5
        v_lshlrev_b32 v5, 2, v2
        v_add_u32 v5, v5, v3
        v_lshlrev_b32 v5, 8, v5
        s_lshl_b32 s39, s{S_HH}, 14
        s_add_u32 s39, s39, 8192
        v_add_u32 v5, s39, v5
        """)
        for ml in range(4):
            P(f"""
            s_lshl_b32 s39, s{S_HH}, 1
            s_add_u32 s39, s39, {ml}
            s_and_b32 s39, s39, 3
            s_lshl_b32 s39, s39, 6
            v_xor_b32 v6, s39, v4
            v_add_u32 v{V_VPAT+ml}, v5, v6
            """)
        if self.pf_code:
            P(f"""
            s_lshr_b32 s39, s2, 3
            s_cmp_ge_u32 s39, 16
            s_cbranch_scc1 {n}_npc
            s_cmp_lg_u32 s{S_W}, 0
            s_cbranch_scc1 {n}_npc
            s_getpc_b64 s[72:73]
            {n}_pc0:
            s_lshl_b32 s39, s39, 13
            s_add_u32 s72, s72, s39
            s_addc_u32 s73, s73, 0
            v_lshlrev_b32 v3, 7, v{L}
            global_load_dword v{V_PFD}, v3, s[72:73]
            {n}_npc:
            """)
        for r in range(4):
            P(f"v_mov_b32 v{V_ONES+r}, 0x3f803f80")
        P.extend(self.qp_patterns())
        P("s_waitcnt lgkmcnt(0)")
        P(f"""
        s_cmp_eq_u32 s{S_QH}, 0
        s_cselect_b32 s8, s62, s64
        s_cselect_b32 s9, s63, s65
        s_lshl_b32 s39, s{S_B}, 5
        s_add_u32 s39, s39, s{S_H0}
        s_lshr_b32 s40, s39, 14
        s_lshl_b32 s39, s39, {18 if not self.same_kv else 31}
        s_and_b32 s39, s39, {'-1' if not self.same_kv else '0'}
        s_add_u32 s8, s8, s39
        s_addc_u32 s9, s9, s40
        s_lshl_b32 s39, s{S_HH}, 13
        s_add_u32 s8, s8, s39
        s_addc_u32 s9, s9, 0
        s_and_b32 s9, s9, 0xffff
        s_sub_u32 s10, {2*262144}, s39
        s_mov_b32 s11, 0x20000
        s_mul_i32 s39, s{S_B}, {144*2048}
        s_add_u32 s12, s4, s39
        s_addc_u32 s13, s5, 0
        s_and_b32 s13, s13, 0xffff
        s_mov_b32 s14, {144*2048}
        s_mov_b32 s15, 0x20000
        s_lshl_b32 s39, s{S_H0}, 8
        s_add_u32 s16, s66, s39
        s_addc_u32 s17, s67, 0
        s_and_b32 s17, s17, 0xffff
        s_sub_u32 s18, {1024*8192}, s39
        s_mov_b32 s19, 0x20000
        s_lshl_b32 s39, s{S_BLK}, 3
        s_add_u32 s39, s39, s{S_B}
        s_lshl_b32 s39, s39, 5
        s_add_u32 s39, s39, s{S_H0}
        s_mul_i32 s39, s39, 36864
        s_add_u32 s20, s68, s39
        s_addc_u32 s21, s69, 0
        s_add_u32 s20, s20, {O_WS_OFF}
        s_addc_u32 s21, s21, 0
        s_and_b32 s21, s21, 0xffff
        s_mov_b32 s22, {2*36864}
        s_mov_b32 s23, 0x20000
        s_lshl_b32 s{S_DBASE}, s{S_W}, 13
        s_add_u32 s{S_DSLOT}, s{S_DBASE}, {SLOT if self.kvdma else 0}
        s_add_u32 s{S_DWRAP}, s{S_DBASE}, {3*SLOT}
        s_mov_b32 s{S_GOFF}, 0
        s_mov_b32 s{S_RSLOT}, {SLOT if self.kvdma else 0}
        s_mov_b32 s{S_ITEM}, 0
        s_mov_b32 s{S_QI}, 0
        s_mov_b32 s{S_FMAX}, 1
        s_lshl_b32 s39, s{S_B}, 5
        s_add_u32 s39, s39, s{S_H0}
        s_lshl_b32 s{S_KVO}, s39, 18
        s_mov_b32 s{S_KVO+1}, 0
        s_and_b32 s39, s2, 3
        s_lshl_b32 s39, s39, 5
        s_lshr_b32 s40, s2, 3
        s_add_u32 s39, s39, s40
        s_lshl_b32 s39, s39, 16
        s_add_u32 s76, s76, s39
        s_addc_u32 s77, s77, 0
        s_and_b32 s77, s77, 0xffff
        s_mov_b32 s78, 65536
        s_mov_b32 s79, 0x20000
        v_lshlrev_b32 v19, 7, v{L}
        """)
        if self.order == 'early': P(f"s_mov_b32 s{S_LATE}, 0")
        elif self.order == 'late': P(f"s_mov_b32 s{S_LATE}, 1")
        else: P(f"s_lshr_b32 s{S_LATE}, s2, {self.late_bit}\ns_and_b32 s{S_LATE}, s{S_LATE}, 1")
        P(f"""s_xor_b32 s{S_FMAX}, s{S_LATE}, 1
        s_mov_b32 s{S_BAD}, 0
        s_mov_b32 s{S_SAFE}, 0
        s_mov_b32 s{S_NREC2}, s10
        s_mov_b32 s{S_QI}, 0""")
        if self.pf0:
            for x in self.pf_w(f"s{S_W}", "0"): P(x)
            for x in self.pf_x(f"s{S_W}"): P(x)
            P(f"s_add_u32 s39, s{S_W}, 4")
            for x in self.pf_x("s39"): P(x)
            P(f"s_add_u32 s39, s{S_W}, 8\ns_min_u32 s39, s39, 8")
            for x in self.pf_x("s39"): P(x)
            P(f"s_cmp_eq_u32 s{S_LATE}, 0\ns_cbranch_scc1 {n}_npf0")
            for x in self.pf_w(f"s{S_W}", "1"): P(x)
            P.label(f"{n}_npf0")
        if self.pf0x:
            for x in self.pf_x(f"s{S_W}"): P(x)
            P(f"s_add_u32 s39, s{S_W}, 4")
            for x in self.pf_x("s39"): P(x)
            P(f"s_add_u32 s39, s{S_W}, 8\ns_min_u32 s39, s39, 8")
            for x in self.pf_x("s39"): P(x)
            P(f"s_cmp_eq_u32 s{S_LATE}, 0\ns_cbranch_scc1 {n}_npf0x")
            for x in self.pf_w(f"s{S_W}", "1"): P(x)
            P.label(f"{n}_npf0x")
        if self.pf_tlb:
            P(f"""
            s_cmp_lg_u32 s{S_W}, 0
            s_cbranch_scc1 {n}_ntlb
            s_lshr_b32 s39, s2, 3
            s_lshl_b32 s39, s39, 18
            v_lshlrev_b32 v2, 13, v{V_LANE}
            s_mov_b32 exec_hi, 0
            buffer_load_dword v{V_PFD}, v2, s[16:19], s39 offen
            s_mul_i32 s39, s{S_PR}, {18*4096}
            v_lshlrev_b32 v2, 12, v{V_LANE}
            s_mov_b32 exec_lo, 0x3ffff
            buffer_load_dword v{V_PFD}, v2, s[12:15], s39 offen
            s_mov_b64 exec, -1
            {n}_ntlb:
            """)
        return P

    def ring_instrs(self):
        nt = self.nt_kv
        D = []
        for m in range(8):
            g = []
            if m == 0: g.append(f"s_mov_b32 m0, s{S_DSLOT}")
            if m == 4: g.append(f"s_add_u32 m0, s{S_DSLOT}, 4096")
            v = V_RING + m if m < 4 else V_RINGH + m - 4
            g.append(f"buffer_load_dwordx4 v{v}, s[8:11], s{S_GOFF} offen offset:{(m & 3) * 1024}{nt} lds")
            D.append(g)
        adv = [f"s_add_u32 s{S_GOFF}, s{S_GOFF}, 16384",
               f"s_add_u32 s{S_DSLOT}, s{S_DSLOT}, {SLOT}",
               f"s_cmp_eq_u32 s{S_DSLOT}, s{S_DWRAP}",
               f"s_cselect_b32 s{S_DSLOT}, s{S_DBASE}, s{S_DSLOT}"]
        return D, adv
    def ring_groups(self):
        D, adv = self.ring_instrs()
        return D + [adv]

    def ring_fill(self):
        P = Prog()
        for _ in range(3):
            for g in self.ring_groups():
                for x in g: P(x)
        return P

    def pf_setup(self):
        L = V_LANE
        return f"""
        v_lshrrev_b32 v2, 1, v{L}
        v_lshlrev_b32 v2, 13, v2
        v_and_b32 v3, 1, v{L}
        v_lshlrev_b32 v3, 7, v3
        v_add_u32 v{V_PFW}, v2, v3
        v_lshrrev_b32 v2, 4, v{L}
        v_lshlrev_b32 v2, 11, v2
        v_and_b32 v3, 15, v{L}
        v_lshlrev_b32 v3, 7, v3
        v_add_u32 v{V_PFX}, v2, v3
        """
    def pf_w(self, i_expr_sgpr, head_sgpr):
        return [f"s_lshl_b32 s{S_TMP}, s{S_B}, 20",
                f"s_lshl_b32 s{S_TMP2}, {i_expr_sgpr}, 18",
                f"s_add_u32 s{S_TMP}, s{S_TMP}, s{S_TMP2}",
                f"s_lshl_b32 s{S_TMP2}, {head_sgpr}, 8",
                f"s_add_u32 s{S_TMP}, s{S_TMP}, s{S_TMP2}",
                f"buffer_load_dword v{V_PFD}, v{V_PFW}, s[16:19], s{S_TMP} offen{self.pf_nt}"]
    def pf_x(self, i_expr):
        return [f"s_mul_i32 s{S_TMP}, s{S_PR}, {36*2048}",
                f"s_lshl_b32 s{S_TMP2}, {i_expr}, 13",
                f"s_add_u32 s{S_TMP}, s{S_TMP}, s{S_TMP2}",
                f"buffer_load_dword v{V_PFD}, v{V_PFX}, s[12:15], s{S_TMP} offen{self.pf_nt}"]

    def code_pf(self, label, uid, waves_chunks, end_label=None, pre=()):
        n = self.name
        end_label = end_label or f"{n}_done"
        return list(pre) + [f"s_cmp_ge_u32 s{S_W}, {waves_chunks}", f"s_cbranch_scc1 {n}_ncp{uid}",
                f"s_getpc_b64 s[60:61]", f"{n}_cp{uid}:",
                f"s_add_u32 s60, s60, {label}-{n}_cp{uid}", f"s_addc_u32 s61, s61, 0",
                f"s_lshl_b32 s39, s{S_W}, 13",
                f"v_add_u32 v2, s39, v19",
                f"s_mov_b32 s39, {end_label}-{label}",
                f"v_cmp_gt_u32 vcc, s39, v2",
                f"s_and_saveexec_b64 s[72:73], vcc",
                f"s_cbranch_execz {n}_rcp{uid}",
                f"global_load_dword v{V_PFD}, v2, s[60:61]",
                f"{n}_rcp{uid}:",
                f"s_mov_b64 exec, s[72:73]",
                f"{n}_ncp{uid}:"]

    def qp_patterns(self):
        L = V_LANE
        P = Prog()
        P(f"""
        v_lshrrev_b32 v2, 3, v{L}
        v_and_b32 v3, 7, v{L}
        v_lshrrev_b32 v4, 4, v{L}
        v_xor_b32 v3, v3, v4
        v_lshlrev_b32 v3, 4, v3
        v_lshlrev_b32 v2, 11, v2
        v_add_u32 v2, v2, v3
        """)
        for x in range(5):
            P(f"""
            s_mul_i32 s39, s{S_W}, 5
            s_add_u32 s39, s39, {x}
            s_cmp_gt_u32 s39, 17
            s_cselect_b32 s40, 2, 0
            s_sub_u32 s39, s39, s40
            s_lshl_b32 s{S_XC+x}, s39, 10
            s_and_b32 s40, s39, 1
            s_lshl_b32 s40, s40, 6
            v_xor_b32 v3, s40, v2
            s_lshl_b32 s39, s39, 14
            v_add_u32 v{V_XD+x}, s39, v3
            """)
        P(f"""
        v_lshrrev_b32 v2, 4, v{L}
        v_and_b32 v3, 15, v{L}
        v_lshlrev_b32 v4, 2, v2
        v_xor_b32 v3, v3, v4
        v_xor_b32 v3, s{S_W}, v3
        v_lshlrev_b32 v3, 4, v3
        v_lshlrev_b32 v4, 13, v2
        v_add_u32 v3, v3, v4
        s_lshl_b32 s39, s{S_W}, 16
        v_add_u32 v{V_WD}, s39, v3
        v_add_u32 v{V_WD+1}, 32768, v{V_WD}
        v_and_b32 v3, 15, v{L}
        v_lshrrev_b32 v4, 1, v3
        v_xor_b32 v4, v4, v2
        v_lshlrev_b32 v4, 4, v4
        v_lshlrev_b32 v5, 7, v3
        v_xor_b32 v6, 64, v4
        v_add_u32 v4, v4, v5
        v_add_u32 v6, v6, v5
        s_lshl_b32 s39, s{S_QH}, 13
        s_add_u32 s39, s39, {QXBASE}
        v_add_u32 v{V_XPAT}, s39, v4
        v_add_u32 v{V_XPAT+1}, s39, v6
        v_add_u32 v{V_XPAT+2}, {8*2048 + QXBASE}, v4
        v_add_u32 v{V_XPAT+3}, {8*2048 + QXBASE}, v6
        v_lshrrev_b32 v3, 2, v{L}
        v_and_b32 v3, 3, v3
        v_and_b32 v4, 3, v{L}
        v_xor_b32 v4, v4, v2
        v_lshlrev_b32 v4, 4, v4
        v_lshlrev_b32 v5, 6, v3
        v_add_u32 v4, v4, v5
        v_lshlrev_b32 v5, 3, v2
        v_add_u32 v5, v5, v3
        v_lshlrev_b32 v5, 8, v5
        """)
        for p in range(2):
            P(f"""
            s_xor_b32 s39, s{S_QH}, {p}
            s_lshl_b32 s40, s{S_HH}, 1
            s_add_u32 s39, s39, s40
            s_lshl_b32 s39, s39, 6
            v_xor_b32 v6, s39, v4
            v_add_u32 v{V_WPAT+p}, v5, v6
            """)
        for k, r in enumerate(QP_PAT): P(f"v_accvgpr_write_b32 a{240+k}, v{r}")
        P(f"s_lshl_b32 s{S_WW_L}, s{S_W}, 11")
        return P

    def qp2(self, tag):
        n = self.name
        L = V_LANE
        NX, NW = 3, 6
        XB0 = 98304
        PER = 6
        NIT = 4
        FW = [120, 172]; FX = [152, 204]
        P = Prog()
        for k, r in enumerate(QP_PAT): P(f"v_accvgpr_read_b32 v{r}, a{240+k}")
        P(f"""
        v_add_u32 v{V_WD2}, 256, v{V_WD}
        v_add_u32 v{V_WD2+1}, 256, v{V_WD+1}
        v_add_u32 v{V_WPH}, 65536, v{V_WPAT}
        v_add_u32 v{V_WPH+1}, 65536, v{V_WPAT+1}
        s_mov_b32 s{S_WOFF}, 0
        s_mov_b32 s{S_XOFF}, 0
        """)
        def x_groups(buf):
            G = []
            for x in range(5):
                G.append([f"s_add_u32 m0, s{S_XC+x}, {XB0 + buf*18432}",
                          f"buffer_load_dwordx4 v{V_XD+x}, s[12:15], s{S_XOFF} offen{self.nt_x} lds"])
            G.append([f"s_add_u32 s{S_XOFF}, s{S_XOFF}, 128"])
            return G
        def w_groups(buf):
            G = []
            for h in range(2):
                for x in range(2):
                    G.append([f"s_add_u32 m0, s{S_WW_L}, {buf*16384 + h*8192 + x*1024}",
                              f"buffer_load_dwordx4 v{(V_WD if h == 0 else V_WD2) + x}, s[16:19], s{S_WOFF} offen{self.nt_w} lds"])
            G.append([f"s_add_u32 s{S_WOFF}, s{S_WOFF}, {1 << 18}"])
            return G
        def read_groups(k, i):
            G = []
            wbuf = i % NW
            wp = V_WPAT if wbuf < 4 else V_WPH
            wb = (wbuf % 4) * 16384
            xb = ((i >> 1) % NX) * 18432
            ss = i & 1
            GX = []
            for t in range(4):
                GX.append([f"ds_read_b128 {rng('v', FX[k]+4*t)}, v{V_XPAT+ss} offset:{xb + t*2048}"])
            GX.append([f"ds_read_b128 {rng('v', FX[k]+16)}, v{V_XPAT+2+ss} offset:{xb}"])
            for h in range(2):
                for jl in range(4):
                    a = FW[k] + 16 * h + 4 * jl
                    p, hh = jl >> 1, jl & 1
                    G.append([f"ds_read_b64_tr_b16 v[{a}:{a+1}], v{wp+p} offset:{wb + h*8192 + 8*hh}"])
                    G.append([f"ds_read_b64_tr_b16 v[{a+2}:{a+3}], v{wp+p} offset:{wb + h*8192 + 8*hh + 1024}"])
            return G[:8] + GX + G[8:]
        def qa(h, k): return 72 * h + 4 * k
        def mf(k):
            M = []
            for h in range(2):
                for t in range(4):
                    for jl in range(4):
                        a = qa(h, 4 * t + jl)
                        M.append(f"v_mfma_f32_16x16x32_bf16 {rng('a', a)}, {rng('v', FW[k]+16*h+4*jl)}, {rng('v', FX[k]+4*t)}, {rng('a', a)}")
                for x in range(2):
                    a = qa(h, 16 + x)
                    M.append(f"v_mfma_f32_16x16x32_bf16 {rng('a', a)}, {rng('v', FW[k]+16*h+4*x)}, {rng('v', FX[k]+16)}, {rng('a', a)}")
            return M
        pro = []
        xi = wi = 0
        while xi < NX or wi < NW:
            if xi < NX and 2 * xi <= wi: pro.append(('X', xi)); xi += 1
            elif wi < NW: pro.append(('W', wi)); wi += 1
            else: pro.append(('X', xi)); xi += 1
        cnt = {'X': 5, 'W': 4, 'K': 8}
        kv_at = {27: 0, 29: 1, 31: 2} if self.kvdma else {}
        seq = list(pro)
        def outstanding_after(need):
            idx = [i for i, it in enumerate(seq) if it in need]
            last = max(idx)
            return sum(cnt[k] for k, _ in seq[last + 1:])
        waits = {}
        for i in range(0, 32):
            need = set()
            if i + 1 < 32: need = {('W', i + 1), ('X', (i + 1) >> 1)}
            waits[i] = outstanding_after(need) if need else 63
            if i + NW < 32: seq.append(('W', i + NW))
            if (i & 1) and (i >> 1) + NX < 16: seq.append(('X', (i >> 1) + NX))
            if i in kv_at: seq.append(('K', kv_at[i]))
        wr = [min(waits[i] for i in range(r, NIT * PER, PER)) for r in range(PER)]
        assert max(wr) <= 63
        P("s_waitcnt vmcnt(0)\ns_barrier")
        def issue(lst):
            for kind, idx in lst:
                for g in (x_groups(idx) if kind == 'X' else w_groups(idx)):
                    for x in g: P(x)
        n1 = self.qn1
        n2 = len(pro)
        issue(pro[:n1])
        for r in range(0, 144, 4): P(f"v_mfma_f32_16x16x32_bf16 a[{r}:{r+3}], v[{V_ZERO}:{V_ZERO+3}], v[{V_ZERO}:{V_ZERO+3}], 0")
        issue(pro[n1:n2])
        w0 = sum(cnt[k] for k, _ in pro[2:n2])
        P(f"s_waitcnt vmcnt({w0})\ns_barrier")
        if self.qstamp:
            P(f"s_memtime s[72:73]\ns_waitcnt lgkmcnt(0)\ns_mov_b32 s82, s72")
        for g in read_groups(0, 0):
            for x in g: P(x)
        issue(pro[n2:])
        if self.pf_code2:
            for x in self.code_pf(f"{n}_hot0", 'a', 3): P(x)
        P(f"s_waitcnt lgkmcnt(0)\ns_mov_b32 s{S_CNT}, {NIT}")
        Z = Prog()
        for r in range(4): Z(f"v_mov_b32 v{V_ZERO+r}, 0")
        P.items = Z.items + P.items
        pre, _ = finalize_linear(P.items)
        out = Prog(); out.extend(pre)
        def substep(body, i, wait):
            ss = i & 1
            body(f"s_waitcnt vmcnt({min(wait, 63)}) lgkmcnt(0)")
            body("s_barrier")
            R = read_groups(1 - ss, i + 1) if i + 1 < 32 else []
            D = []
            if i + NW < 32: D += w_groups(i % NW)
            if (i & 1) and (i >> 1) + NX < 16: D += x_groups((i >> 1) % NX)
            if i in kv_at: D += self.ring_groups()
            if self.q_nodma: D = []
            M = mf(ss)
            fill = [[] for _ in M]
            hv = []
            ri = di = 0
            while ri < len(R) or di < len(D):
                for _ in range(2):
                    if ri < len(R): hv.append(R[ri]); ri += 1
                if di < len(D): hv.append(D[di]); di += 1
            npos = len(M)
            k = 0
            for g in hv:
                pos = min(k, npos - 1)
                if 'm0' in g[0] and pos > 0 and not any('buffer_load' in y for y in fill[pos - 1]):
                    fill[pos - 1].append(g[0]); fill[pos] += g[1:]
                else:
                    fill[pos] += g
                if any(('ds_read' in y or 'buffer_load' in y) for y in g): k += 1
            for x in interleave(M, fill): body(x)
        body = Prog()
        for r in range(PER): substep(body, r, wr[r])
        if self.qstamp:
            body("s_waitcnt lgkmcnt(0)\ns_memtime s[72:73]\ns_waitcnt lgkmcnt(0)")
            for it in range(4):
                body(f"s_cmp_eq_u32 s{S_CNT}, {4 - it}\ns_cselect_b32 s{83+it}, s72, s{83+it}")
        body(f"s_sub_u32 s{S_CNT}, s{S_CNT}, 1\ns_cmp_lg_u32 s{S_CNT}, 0")
        b, _ = finalize_loop(body.items)
        out.label(f"{n}_qp{tag}")
        out.extend(b)
        out(f"s_cbranch_scc1 {n}_qp{tag}")
        tail = Prog()
        for i in range(NIT * PER, 32): substep(tail, i, waits[i])
        l1, f = auto_lgkm(b, None)
        l2, _ = auto_lgkm(tail.items, f)
        l3 = fix_hazards(l2, wrap=b)
        out.extend(l3)
        out.label(f"{n}_hot0")
        E = Prog()
        E("s_waitcnt lgkmcnt(0)\ns_nop 7\ns_barrier")
        e1, _ = finalize_linear(E.items)
        out.extend(e1)
        return out

    def qconv(self, h, with_fill, nfill=3):
        L = V_LANE
        C = Prog()
        C(f"""
        v_mov_b32 v8, {f2u(CSCALE):#x}
        v_lshlrev_b32 v2, 4, v{L}
        v_add_u32 v2, {QX}, v2
        s_lshl_b32 s40, s{S_QH}, 14
        s_lshl_b32 s{S_TMP2}, s{S_HH}, 11
        s_add_u32 s40, s40, s{S_TMP2}
        s_lshl_b32 s{S_TMP2}, s{S_QH}, 10
        s_add_u32 s{S_XOFF}, s40, s{S_TMP2}
        s_xor_b32 s{S_TMP2}, s{S_TMP2}, 1024
        s_add_u32 s{S_WOFF}, s40, s{S_TMP2}
        v_add_u32 v3, s{S_XOFF}, v2
        v_add_u32 v4, s{S_WOFF}, v2
        s_lshl_b32 s40, s{S_HH}, 11
        s_lshl_b32 s{S_TMP2}, s{S_QH}, 10
        s_add_u32 s40, s40, s{S_TMP2}
        v_add_u32 v5, s40, v2
        """)
        def conv(k0, dst):
            t = dst + 4
            for r in range(8): C(f"v_accvgpr_read_b32 v{t+r}, a{72*h + 4*k0 + r}")
            for r in range(8): C(f"v_mul_f32 v{t+r}, v8, v{t+r}")
            for r in range(4): C(f"v_cvt_pk_bf16_f32 v{dst+r}, v{t+2*r}, v{t+2*r+1}")
        k = 0
        for t in range(4):
            for p in range(2):
                d = 120 + 12 * (k % 9); k += 1
                conv(4 * t + 2 * p, d)
                C(f"ds_write_b128 v{3+p}, {rng('v', d)} offset:{t*4096}")
        d = 120 + 12 * (k % 9)
        conv(16, d)
        C(f"ds_write_b128 v5, {rng('v', d)} offset:{8*4096}")
        if with_fill:
            RF = []
            for _ in range(nfill): RF += self.ring_groups()
            CI = Prog()
            ci = C.items
            step = max(1, len(ci) // len(RF))
            k = 0
            for i, it in enumerate(ci):
                if i % step == 0 and k < len(RF):
                    for x in RF[k]: CI(x)
                    k += 1
                CI.items.append(it)
            while k < len(RF):
                for x in RF[k]: CI(x)
                k += 1
            C = CI
        C("s_waitcnt lgkmcnt(0)\ns_barrier")
        it, _ = finalize_linear(C.items)
        o = Prog(); o.extend(it)
        return o

    def lq(self):
        L = V_LANE
        P = Prog()
        P(f"""
        v_lshlrev_b32 v2, 4, v{L}
        v_add_u32 v2, {QX}, v2
        s_lshl_b32 s39, s{S_QH}, 14
        v_add_u32 v3, s39, v2
        """)
        for t in range(4):
            for jp in range(4):
                P(f"ds_read_b128 {rng('a', q_frag(t, jp))}, v3 offset:{t*4096 + jp*1024}")
        for jp in range(4):
            P(f"ds_read_b128 {rng('a', q_frag(4, jp))}, v2 offset:{8*4096 + jp*1024}")
        P("s_waitcnt lgkmcnt(0)")
        it, _ = finalize_linear(P.items)
        o = Prog(); o.extend(it)
        return o

    def s_mfmas(self, unit, sb):
        slot, fs = unit
        M = []
        for kt in range(2):
            for jp in range(4):
                d = V_S + sb * 8 + kt * 4
                c = rng('v', V_NEGM + slot * 4) if jp == 0 else rng('v', d)
                M.append(f"v_mfma_f32_16x16x32_bf16 {rng('v', d)}, {rng('v', V_KF[fs] + (kt*4+jp)*4)}, {rng('a', q_frag(slot, jp))}, {c}")
        return M
    def pv_mfmas(self, unit, pb):
        slot, fs = unit
        M = []
        p = rng('v', V_P + pb * 4)
        for jl in range(8):
            M.append(f"v_mfma_f32_16x16x32_bf16 {rng('a', acc_o(slot, jl))}, {rng('v', V_VF[fs] + jl*4)}, {p}, {rng('a', acc_o(slot, jl))}")
        M.append(f"v_mfma_f32_16x16x32_bf16 {rng('v', V_L + slot*4)}, {rng('v', V_ONES)}, {p}, {rng('v', V_L + slot*4)}")
        return M
    def max_ops(self, unit, sb):
        slot, fs = unit
        s = V_S + sb * 8
        return [[f"v_max3_f32 v{V_MX}, v{s}, v{s+1}, v{s+2}"],
                [f"v_max3_f32 v{V_MX}, v{V_MX}, v{s+3}, v{s+4}"],
                [f"v_max3_f32 v{V_MX}, v{V_MX}, v{s+5}, v{s+6}"],
                [f"v_max_f32 v{V_MX}, v{V_MX}, v{s+7}"],
                [f"v_cmp_lt_f32 vcc, s{S_T+slot}, v{V_MX}"]]
    def check_ops(self, unit, sb):
        slot, fs = unit
        s = V_S + sb * 8
        self.uid += 1
        u = self.uid
        lab_r, lab_b = f"{self.name}_rare{u}", f"{self.name}_back{u}"
        R = Prog()
        R.label(lab_r)
        R(f"""
        s_nop 7
        v_mov_b32 v{V_T1}, v{V_MX}
        s_nop 1
        v_permlane16_swap_b32 v{V_MX}, v{V_T1}
        s_nop 1
        v_max_f32 v{V_MX}, v{V_MX}, v{V_T1}
        v_mov_b32 v{V_T1}, v{V_MX}
        s_nop 1
        v_permlane32_swap_b32 v{V_MX}, v{V_T1}
        s_nop 1
        v_max_f32 v{V_MX}, v{V_MX}, v{V_T1}
        s_ashr_i32 s{S_FL}, s{S_T+slot}, 31
        s_and_b32 s{S_FL}, s{S_FL}, 0xff800000
        s_mov_b32 s{S_T+slot}, 0x41000000
        v_max_f32 v{V_MX}, s{S_FL}, v{V_MX}
        """)
        for r in range(8): R(f"v_sub_f32 v{s+r}, v{s+r}, v{V_MX}")
        for r in range(4): R(f"v_sub_f32 v{V_NEGM+slot*4+r}, v{V_NEGM+slot*4+r}, v{V_MX}")
        R(f"s_cmp_lg_u32 s{S_FL}, 0\ns_cbranch_scc1 {lab_b}")
        R(f"v_sub_f32 v{V_T1}, 0, v{V_MX}")
        R(f"v_exp_f32 v{V_T1}, v{V_T1}")
        R("s_nop 1")
        for r in range(4): R(f"v_mul_f32 v{V_L+slot*4+r}, v{V_L+slot*4+r}, v{V_T1}")
        for r in range(0, 32, 2):
            a = A_O + slot * 32 + r
            R(f"v_accvgpr_read_b32 v{V_T2}, a{a}\nv_accvgpr_read_b32 v{V_T3}, a{a+1}\nv_mul_f32 v{V_T2}, v{V_T2}, v{V_T1}\nv_mul_f32 v{V_T3}, v{V_T3}, v{V_T1}\nv_accvgpr_write_b32 a{a}, v{V_T2}\nv_accvgpr_write_b32 a{a+1}, v{V_T3}")
        R("s_nop 2")
        R(f"s_branch {lab_b}")
        self.rare.append(R)
        return [f"s_cbranch_vccnz {lab_r}", f"{lab_b}:"]
    def exp_ops(self, unit, sb, pb):
        s = V_S + sb * 8
        p = V_P + pb * 4
        return [[f"v_exp_f32 v{s}, v{s}"], [f"v_exp_f32 v{s+1}, v{s+1}"], [f"v_exp_f32 v{s+2}, v{s+2}"],
                [f"v_cvt_pk_bf16_f32 v{p}, v{s}, v{s+1}"],
                [f"v_exp_f32 v{s+3}, v{s+3}"], [f"v_exp_f32 v{s+4}, v{s+4}"],
                [f"v_cvt_pk_bf16_f32 v{p+1}, v{s+2}, v{s+3}"],
                [f"v_exp_f32 v{s+5}, v{s+5}"], [f"v_exp_f32 v{s+6}, v{s+6}"],
                [f"v_cvt_pk_bf16_f32 v{p+2}, v{s+4}, v{s+5}"],
                [f"v_exp_f32 v{s+7}, v{s+7}"],
                [f"v_cvt_pk_bf16_f32 v{p+3}, v{s+6}, v{s+7}"]]
    def kv_reads(self, fs, which):
        G = []
        if which == 'K':
            for kt in range(2):
                for jp in range(4):
                    G.append([f"ds_read_b128 {rng('v', V_KF[fs] + (kt*4+jp)*4)}, v{V_KA+jp} offset:{kt*4096}"])
        else:
            for jl in range(8):
                a = V_VF[fs] + jl * 4
                ml, h = jl >> 1, jl & 1
                va = V_VA if fs == 'A' else V_VA2
                G.append([f"ds_read_b64_tr_b16 v[{a}:{a+1}], v{va+ml} offset:{8*h}"])
                G.append([f"ds_read_b64_tr_b16 v[{a+2}:{a+3}], v{va+ml} offset:{8*h+4096}"])
        return G
    def kv_addr(self, fs):
        va = V_VA if fs == 'A' else V_VA2
        G = [[f"v_add_u32 v{V_KA+j}, s{S_RSLOT}, v{V_KPAT+j}"] for j in range(4)]
        G += [[f"v_add_u32 v{va+j}, s{S_RSLOT}, v{V_VPAT+j}"] for j in range(4)]
        G.append([f"s_add_u32 s{S_RSLOT}, s{S_RSLOT}, {SLOT}", f"s_cmp_eq_u32 s{S_RSLOT}, {3*SLOT}", f"s_cselect_b32 s{S_RSLOT}, 0, s{S_RSLOT}"])
        return G

    def units(self, qh):
        if qh == 0: return [(0,'A'),(1,'A'),(2,'A'),(3,'A'),(4,'A'),(0,'B'),(1,'B'),(2,'B'),(3,'B')]
        return [(0,'A'),(1,'A'),(2,'A'),(3,'A'),(0,'B'),(1,'B'),(2,'B'),(3,'B'),(4,'B')]

    def attn_body(self, qh, last):
        U = self.units(qh)
        B = Prog()
        RG = self.ring_groups()
        for g in range(9):
            if g in (0, 4):
                B("s_waitcnt vmcnt(8) lgkmcnt(0)")
                if not self.x_nobar: B("s_barrier")
            M = []
            if not (last and g + 3 >= 9):
                M += self.s_mfmas(U[(g + 3) % 9], g % 3)
            M += self.pv_mfmas(U[g], g % 3)
            V = []
            head = []
            if not (last and g + 1 >= 9):
                head = self.check_ops(U[(g + 1) % 9], (g + 1) % 3)
                ex = self.exp_ops(U[(g + 1) % 9], (g + 1) % 3, (g + 1) % 3)
            else: ex = []
            mx = self.max_ops(U[(g + 2) % 9], (g + 2) % 3) if not (last and g + 2 >= 9) else []
            V = []
            ei = mi = 0
            pat = "eeemcemecemecemcm" if False else "eemeemeemeemm"
            order = []
            if self.x_nomax and ex:
                e_ = [g_ for g_ in ex if g_[0].startswith('v_exp')]
                c_ = [g_ for g_ in ex if g_[0].startswith('v_cvt')]
                pat = "e-ee-eC-ee-e-eC--"
                ei = ci = 0
                for ch in pat:
                    if ch == 'e': order.append(e_[ei]); ei += 1
                    elif ch == 'C': order.append(c_[ci] + c_[ci + 1]); ci += 2
                    else: order.append([])
            else:
                for i in range(17):
                    if i in (1, 3, 5, 7, 9) and mi < len(mx): order.append(mx[mi]); mi += 1
                    elif ei < len(ex): order.append(ex[ei]); ei += 1
                    elif mi < len(mx): order.append(mx[mi]); mi += 1
            V = order
            PF = []
            if last and self.pf_wo and self.x_nomax == self.fast and g in (0, 4):
                self.uid += 1
                lab = f"{self.name}_npf{self.uid}"
                pf = [f"s_cmp_eq_u32 s{S_ITEM}, 0", f"s_cbranch_scc1 {lab}"]
                pf += [f"s_lshl_b32 s39, s{S_W}, 14", f"s_add_u32 s39, s39, {8192 if g == 4 else 0}",
                       f"buffer_load_dword v{V_PFD}, v19, s[76:79], s39 offen"]
                if self.op_label and g == 0:
                    pf += self.code_pf(self.op_label, f"o{self.uid}", 2, end_label=self.op_end)
                pf.append(f"{lab}:")
                PF = [pf]
            if last and self.pf_code2 and self.x_nomax == self.fast and g == 0:
                self.uid += 1
                lab = f"{self.name}_npc{self.uid}"
                pf = [f"s_cmp_lg_u32 s{S_ITEM}, 0", f"s_cbranch_scc1 {lab}"] + self.code_pf(f"{self.name}_cmb", f"c{self.uid}", 1) + [f"{lab}:"]
                PF = PF + [pf]
            if last and self.pf1 and self.x_nomax == self.fast and g in (0, 4):
                self.uid += 1
                lab = f"{self.name}_np1{self.uid}"
                pf = [f"s_or_b32 s39, s{S_LATE}, s{S_ITEM}", f"s_cmp_lg_u32 s39, 0", f"s_cbranch_scc1 {lab}"]
                if g == 0:
                    pf += self.pf_w(f"s{S_W}", "1") + self.pf_x(f"s{S_W}")
                else:
                    pf += [f"s_add_u32 s39, s{S_W}, 4"] + self.pf_x("s39") + [f"s_add_u32 s39, s{S_W}, 8", "s_min_u32 s39, s39, 8"] + self.pf_x("s39")
                pf.append(f"{lab}:")
                PF = PF + [pf]
            KA, VA_ = (self.kv_reads('A', 'K'), self.kv_reads('A', 'V')) if not last else ([], [])
            KB, VB_ = self.kv_reads('B', 'K'), self.kv_reads('B', 'V')
            ADA = self.kv_addr('A') if not last else []
            ADB = self.kv_addr('B') if not last else []
            D, adv = self.ring_instrs()
            H = []
            Lt = []
            if g == 0: H = KB + PF + D[0:1]
            if g == 1: H = VB_[:6] + D[1:4];
            if g == 2: H = VB_[6:11] + D[4:6]; Lt = ADA[:4]
            if g == 3: H = D[6:8] + VB_[11:]; Lt = ADA[4:] + [adv]
            if g == 4: H = KA + PF + D[0:1]
            if g == 5: H = VA_[:5] + D[1:4]
            if g == 6: H = VA_[5:10] + D[4:6]; Lt = ADB[:4]
            if g == 7: H = D[6:8] + VA_[10:]; Lt = ADB[4:8]
            if g == 8: Lt = ADB[8:] + [adv]
            if self.x_nomax:
                if g == 0: H = KB + PF
                if g == 1: H = VB_[:5] + D[0:3]
                if g == 2: H = VB_[5:11] + D[3:5]
                if g == 3: H = D[5:8] + VB_[11:]
                if g == 4: H = KA[:7] + PF
                if g == 5: H = KA[7:] + D[0:2] + VA_[:4]
                if g == 6: H = D[2:4] + VA_[4:9]
                if g == 7: H = D[4:6] + VA_[9:14]
                if g == 8: H = VA_[14:] + D[6:8];
            if last and self.x_nomax and self.cfast and g >= 4:
                H = [x for x in H if not any('lds' in y and 'buffer_load' in y for y in x)]
                Lt = [x for x in Lt if not any(f"s{S_GOFF}," in y for y in x)]
                if g == 4: Lt = Lt + [[f"s_sub_u32 s{S_FREE}, s{S_DSLOT}, s{S_DBASE}"]]
            if self.x_nodma: H = [x for x in H if not any('lds' in y and 'buffer_load' in y for y in x)]
            if self.x_nord: H = [x for x in H if not any('ds_read' in y for y in x)]
            if self.x_nosm: V = []; head = []
            if self.x_nobr: head = []
            if self.x_noX: H = []; Lt = []
            if self.x_nomax: V = [[] if (x and (x[0].startswith('v_max') or x[0].startswith('v_cmp'))) else x for x in V]; head = []
            n = len(M)
            fill = [list(V[i]) if i < len(V) else [] for i in range(n)]
            light = [i for i in range(n) if not (fill[i] and fill[i][0].startswith('v_exp'))]
            empty = [i for i in range(n) if not fill[i]]
            pos = light[:]
            if self.x_nomax and empty:
                pos = empty[:]
                more = [i for i in light if i not in pos] + [i for i in range(n) if i not in light]
                if len(H) > len(pos): pos = sorted(pos + more[:len(H) - len(pos)])
            if len(H) > len(pos):
                extra_pos = [i for i in range(n) if i not in pos][:len(H) - len(pos)]
                pos = sorted(pos + extra_pos)
            if H:
                k = len(pos)
                chosen = [pos[(j * k) // len(H)] for j in range(len(H))]
                for j, h in enumerate(H):
                    h = list(h)
                    if ' m0,' in h[0] and chosen[j] > 0 and not any('lds' in y and 'buffer_load' in y for y in fill[chosen[j] - 1]):
                        fill[chosen[j] - 1].append(h[0]); h = h[1:]
                    fill[chosen[j]] += h
            if Lt:
                has_heavy = lambda i: any(('ds_read' in y or 'buffer_load' in y) for y in fill[i])
                last_dma = max([i for i in range(n) if any('buffer_load' in y for y in fill[i])] + [-1])
                free = [i for i in light if not has_heavy(i)] + [i for i in range(n) if i not in light]
                used = set()
                for l_ in Lt:
                    need_after = last_dma if any(f"s{S_GOFF}," in y for y in l_) else -1
                    cand = [i for i in free if i not in used and i > need_after] or [n - 1]
                    if any(f"s{S_RSLOT}, s{S_RSLOT}" in y for y in l_):
                        la = max([i for i in range(n) if any(f"s{S_RSLOT}, v" in y for y in fill[i])] + [-1])
                        cand = [i for i in range(n) if i >= la]
                        cand = [max(cand[0], 0)]
                    i = cand[0]; used.add(i)
                    fill[i] += l_
            extra = V[n:]
            for x in head: B(x)
            for x in interleave(M, fill + extra): B(x)
        return B

    def attention(self, qh, tag):
        n = self.name
        U = self.units(qh)
        P = Prog()
        for r in range(20): P(f"v_mov_b32 v{V_L + r}, 0\nv_mov_b32 v{V_NEGM + r}, 0")
        P("s_nop 1")
        for r in range(0, 160, 4): P(f"v_mfma_f32_16x16x32_bf16 a[{A_O + r}:{A_O + r + 3}], v[{V_L}:{V_L+3}], v[{V_L}:{V_L+3}], 0")
        for s in range(5): P(f"s_mov_b32 s{S_T+s}, 0xff800000")
        P("s_waitcnt vmcnt(16)\ns_barrier")
        for g in self.kv_addr('A') + self.kv_reads('A', 'K') + self.kv_reads('A', 'V') + self.kv_addr('B'):
            for x in g: P(x)
        for x in self.s_mfmas(U[0], 0) + self.s_mfmas(U[1], 1) + self.s_mfmas(U[2], 2): P(x)
        if not self.x_nomax:
            for g in self.max_ops(U[0], 0):
                for x in g: P(x)
            P("s_nop 3")
            for x in self.check_ops(U[0], 0): P(x)
        for g in self.exp_ops(U[0], 0, 0) + (self.max_ops(U[1], 1) if not self.x_nomax else []):
            for x in g: P(x)
        P(f"s_waitcnt lgkmcnt(0)\ns_mov_b32 s{S_CNT}, 7")
        pre, _ = finalize_linear(P.items)
        out = Prog(); out.extend(pre)
        body, _ = finalize_loop(self.attn_body(qh, False).items)
        if self.stamps:
            self.stamp(out, 5)
        out.label(f"{n}_at{tag}")
        out.extend(body)
        out(f"s_sub_u32 s{S_CNT}, s{S_CNT}, 1\ns_cmp_lg_u32 s{S_CNT}, 0\ns_cbranch_scc1 {n}_at{tag}")
        if self.stamps:
            self.stamp(out, 6)
        lastb = self.attn_body(qh, True)
        l1, f = auto_lgkm(body, None)
        l2, _ = auto_lgkm(lastb.items, f)
        l3 = fix_hazards(l2, wrap=body)
        out.extend(l3)
        return out

    def combine(self, qh):
        L = V_LANE
        E = Prog()
        MLO = 32768
        if self.cstamp: E(f"s_waitcnt lgkmcnt(0)\ns_memtime s[48:49]\ns_waitcnt lgkmcnt(0)\ns_cmp_eq_u32 s{S_ITEM}, 0\ns_cselect_b32 s82, s48, s82")
        E("s_nop 7\ns_waitcnt lgkmcnt(0)\ns_barrier")
        if self.cstamp: E(f"s_waitcnt lgkmcnt(0)\ns_memtime s[48:49]\ns_waitcnt lgkmcnt(0)\ns_cmp_eq_u32 s{S_ITEM}, 0\ns_cselect_b32 s83, s48, s83")
        E(f"""
        v_lshlrev_b32 v2, 2, v{L}
        v_add_u32 v2, {STG + MLO}, v2
        s_mul_i32 s39, s{S_W}, 2560
        v_add_u32 v3, s39, v2
        v_lshlrev_b32 v8, 4, v{L}
        v_add_u32 v8, {STG}, v8
        s_lshl_b32 s39, s{S_W}, 13
        s_lshl_b32 s40, s{S_HH}, 12
        s_add_u32 s{S_TMP2}, s39, s40
        v_add_u32 v5, s{S_TMP2}, v8
        s_xor_b32 s{S_TMP2}, s{S_TMP2}, 4096
        v_add_u32 v6, s{S_TMP2}, v8
        """)
        for s_ in range(5):
            E(f"ds_write_b32 v3, v{V_NEGM + s_*4} offset:{s_*512}")
            E(f"ds_write_b32 v3, v{V_L + s_*4} offset:{s_*512 + 256}")
        for jl in range(8):
            E(f"ds_write_b128 v{5 + (jl >> 2)}, {rng('a', acc_o(4, jl))} offset:{(jl & 3)*1024}")
        E(f"""s_mov_b64 s[72:73], 0
        s_mov_b32 s{S_XRB}, 0x21800000
        v_mov_b32 v{V_T3}, 0x5d800000
        v_mov_b32 v{V_P}, 0
        v_mov_b32 v{V_P+1}, 0
        v_mov_b32 v{V_P+2}, 0
        v_mov_b32 v{V_P+3}, 0
        s_xor_b32 s39, s{S_W}, 2
        s_mul_i32 s39, s39, 2560
        v_add_u32 v4, s39, v2
        s_lshl_b32 s39, s{S_W}, 11
        v_add_u32 v5, s39, v8
        v_lshlrev_b32 v7, 4, v{L}
        s_mul_i32 s{S_XOFF}, s{S_ITEM}, 36864
        s_mul_i32 s{S_WOFF}, s{S_W}, {9216 if self.omt else 1024}
        s_add_u32 s{S_WOFF}, s{S_WOFF}, {8*1024 if self.omt else 32*1024}
        s_add_u32 s{S_WOFF}, s{S_WOFF}, s{S_XOFF}
        s_lshl_b32 s39, s{S_QH}, {12 if self.omt else 14}
        s_mul_i32 s40, s{S_HH}, {2*9216 if self.omt else 2048}
        s_add_u32 s39, s39, s40
        s_add_u32 s{S_XOFF}, s{S_XOFF}, s39
        """)
        E("s_waitcnt lgkmcnt(0)\ns_barrier")
        if self.cstamp: E(f"s_waitcnt lgkmcnt(0)\ns_memtime s[48:49]\ns_waitcnt lgkmcnt(0)\ns_cmp_eq_u32 s{S_ITEM}, 0\ns_cselect_b32 s84, s48, s84")
        for s_ in range(4):
            E(f"ds_read_b32 v{120 + 2*s_}, v4 offset:{s_*512}")
            E(f"ds_read_b32 v{121 + 2*s_}, v4 offset:{s_*512 + 256}")
        for ww in range(4):
            E(f"ds_read_b32 v{128 + 2*ww}, v2 offset:{ww*2560 + 4*512}")
            E(f"ds_read_b32 v{129 + 2*ww}, v2 offset:{ww*2560 + 4*512 + 256}")
        for ww in range(4):
            for x in range(2):
                E(f"ds_read_b128 {rng('v', 160 + (ww*2+x)*4)}, v5 offset:{ww*8192 + x*1024}")
        E(f"""
        s_lshl_b32 s39, s{S_W}, 14
        v_add_u32 v3, s39, v8
        s_xor_b32 s39, s39, {2 << 14}
        v_add_u32 v4, s39, v8
        """)
        for s_ in range(4):
            for r in range(16):
                E(f"v_accvgpr_read_b32 v{192 + 16*(s_ % 3) + r if s_ < 3 else 96 + r}, a{acc_o(s_, 0) + r}")
        E("s_waitcnt lgkmcnt(0)\ns_barrier")
        if self.cstamp: E(f"s_waitcnt lgkmcnt(0)\ns_memtime s[48:49]\ns_waitcnt lgkmcnt(0)\ns_cmp_eq_u32 s{S_ITEM}, 0\ns_cselect_b32 s85, s48, s85")
        for s_ in range(4):
            for x in range(4):
                E(f"ds_write_b128 v3, {rng('a', acc_o(s_, 4 + x))} offset:{(s_*4+x)*1024}")
        for s_ in range(4):
            nm, l_ = V_NEGM + 4 * s_, V_L + 4 * s_
            no, lo = 120 + 2 * s_, 121 + 2 * s_
            E(f"""
            v_min_f32 v2, v{nm}, v{no}
            v_sub_f32 v6, v2, v{nm}
            v_sub_f32 v5, v2, v{no}
            v_exp_f32 v6, v6
            v_exp_f32 v5, v5
            s_nop 0
            v_mul_f32 v9, v6, v{l_}
            v_fma_f32 v9, v5, v{lo}, v9
            v_cmp_nge_f32 s[60:61], v9, s{S_XRB}
            v_cmp_nle_f32 vcc, v9, v{V_T3}
            v_rcp_f32 v9, v9
            s_or_b64 s[72:73], s[72:73], s[60:61]
            s_or_b64 s[72:73], s[72:73], vcc
            v_mul_f32 v{136+4*s_}, v6, v9
            v_mul_f32 v{137+4*s_}, v6, v9
            v_mul_f32 v{138+4*s_}, v5, v9
            v_mul_f32 v{139+4*s_}, v5, v9
            """)
        E(f"""
        v_min_f32 v2, v128, v130
        v_min_f32 v6, v132, v134
        v_min_f32 v2, v2, v6
        """)
        for ww in range(4):
            E(f"v_sub_f32 v{152+2*ww}, v2, v{128+2*ww}\nv_exp_f32 v{152+2*ww}, v{152+2*ww}")
        E(f"""
        s_nop 0
        v_mul_f32 v9, v152, v129
        v_fma_f32 v9, v154, v131, v9
        v_fma_f32 v9, v156, v133, v9
        v_fma_f32 v9, v158, v135, v9
        v_cmp_nge_f32 s[60:61], v9, s{S_XRB}
        v_cmp_nle_f32 vcc, v9, v{V_T3}
        v_rcp_f32 v9, v9
        s_or_b64 s[72:73], s[72:73], s[60:61]
        s_or_b64 s[72:73], s[72:73], vcc
        """)
        for ww in range(4): E(f"v_mul_f32 v{152+2*ww}, v{152+2*ww}, v9\nv_mov_b32 v{153+2*ww}, v{152+2*ww}")
        for r in range(8):
            E(f"v_mul_f32 v{112+r}, v{160+r}, v152")
        for ww in range(1, 4):
            for r in range(8):
                E(f"v_fma_f32 v{112+r}, v{160+ww*8+r}, v{152+2*ww}, v{112+r}")
        for r in range(4):
            E(f"v_fma_f32 v{V_P+2}, v{112+2*r}, v{V_P}, v{V_P+2}")
            E(f"v_fma_f32 v{V_P+3}, v{113+2*r}, v{V_P}, v{V_P+3}")
            E(f"v_cvt_pk_bf16_f32 v{V_P+4+r}, v{112+2*r}, v{113+2*r}")
        E(f"buffer_store_dwordx4 {rng('v', V_P+4)}, v7, s[20:23], s{S_WOFF} offen{self.st_flags}")
        mine = lambda s_: (192 + 16 * s_) if s_ < 3 else 96
        for s_ in range(4):
            for r in range(16):
                E(f"v_mul_f32 v{mine(s_)+r}, v{mine(s_)+r}, v{136+4*s_}")
        if self.cstamp: E(f"s_waitcnt lgkmcnt(0)\ns_memtime s[48:49]\ns_waitcnt lgkmcnt(0)\ns_cmp_eq_u32 s{S_ITEM}, 0\ns_cselect_b32 s86, s48, s86")
        E("s_waitcnt lgkmcnt(0)\ns_barrier")
        if self.cstamp: E(f"s_waitcnt lgkmcnt(0)\ns_memtime s[48:49]\ns_waitcnt lgkmcnt(0)\ns_cmp_eq_u32 s{S_ITEM}, 0\ns_cselect_b32 s87, s48, s87")
        recv = lambda s_: 160 + 16 * (s_ % 2)
        def rd(s_):
            for x in range(4):
                E(f"ds_read_b128 {rng('v', recv(s_) + 4*x)}, v4 offset:{(s_*4+x)*1024}")
        rd(0); rd(1)
        for s_ in range(4):
            m_, rc = mine(s_), recv(s_)
            for r in range(16):
                E(f"v_fma_f32 v{m_+r}, v{rc+r}, v{138+4*s_}, v{m_+r}")
            if s_ + 2 < 4: rd(s_ + 2)
            pk = 56 + 8 * s_
            for r in range(8):
                E(f"v_fma_f32 v{V_P+2}, v{m_+2*r}, v{V_P}, v{V_P+2}")
                E(f"v_fma_f32 v{V_P+3}, v{m_+2*r+1}, v{V_P}, v{V_P+3}")
                E(f"v_cvt_pk_bf16_f32 v{pk+r}, v{m_+2*r}, v{m_+2*r+1}")
            E(f"s_add_u32 s39, s{S_XOFF}, {s_*1024 if self.omt else s_*4096}\ns_add_u32 s40, s39, 9216")
            for p in range(2):
                E(f"buffer_store_dwordx4 {rng('v', pk+4*p)}, v7, s[20:23], {('s39' if p == 0 else 's40') if self.omt else 's39'} offen offset:{0 if self.omt else 1024*p}{self.st_flags}")
        E(f"""
        v_cmp_u_f32 vcc, v{V_P+2}, v{V_P+3}
        s_nop 1
        s_or_b64 s[72:73], s[72:73], vcc
        s_cmp_lg_u64 s[72:73], 0
        s_cselect_b32 s39, 1, {1 if self.force_bad else 0}
        s_xor_b32 s40, s{S_SAFE}, 1
        s_and_b32 s39, s39, s40
        s_lshl_b32 s39, s39, s{S_ITEM}
        s_or_b32 s{S_BAD}, s{S_BAD}, s39
        s_waitcnt lgkmcnt(0)
        """)
        if self.cstamp: E(f"s_waitcnt lgkmcnt(0)\ns_memtime s[48:49]\ns_waitcnt lgkmcnt(0)\ns_cmp_eq_u32 s{S_ITEM}, 0\ns_cselect_b32 s88, s48, s88")
        it, _ = finalize_linear(E.items)
        o = Prog(); o.extend(it)
        return o

    def combine_fast(self):
        n = self.name
        L = V_LANE
        E = Prog()
        if self.cstamp: E(f"s_waitcnt lgkmcnt(0)\ns_memtime s[64:65]\ns_waitcnt lgkmcnt(0)\ns_cmp_eq_u32 s{S_ITEM}, 1\ns_cselect_b32 s82, s64, s82")
        E("s_nop 7\ns_waitcnt lgkmcnt(0)\ns_barrier")
        if self.cstamp: E(f"s_waitcnt lgkmcnt(0)\ns_memtime s[64:65]\ns_waitcnt lgkmcnt(0)\ns_cmp_eq_u32 s{S_ITEM}, 1\ns_cselect_b32 s83, s64, s83")
        E(f"""
        v_lshlrev_b32 v8, 4, v{L}
        s_lshl_b32 s39, s{S_W}, 14
        s_add_u32 s39, s39, {STG}
        v_add_u32 v3, s39, v8
        s_xor_b32 s40, s{S_W}, 2
        s_lshl_b32 s40, s40, 14
        s_add_u32 s40, s40, {STG}
        v_add_u32 v4, s40, v8
        """)
        mine = lambda s_: (192 + 16 * s_) if s_ < 3 else 96
        for s_ in range(4):
            for x in range(4):
                E(f"ds_write_b128 v3, {rng('a', acc_o(s_, 4 + x))} offset:{(s_*4+x)*1024}")
                for r in range(4):
                    E(f"v_accvgpr_read_b32 v{mine(s_) + 4*x + r}, a{acc_o(s_, 0) + 4*x + r}")
        for lp in range(4):
            E(f"""
            s_lshl_b32 s39, s{S_HH}, 1
            s_xor_b32 s39, s39, {lp}
            s_sub_u32 s40, s{S_W}, s39
            s_sub_u32 s40, s40, 1
            s_and_b32 s40, s40, 3
            s_mul_i32 s39, s39, 3
            s_add_u32 s39, s39, s40
            s_lshl_b32 s39, s39, 11
            s_cmp_eq_u32 s40, 3
            s_cselect_b32 s39, 24576, s39
            s_add_u32 s39, s39, s{S_FREE}
            v_add_u32 v{120+lp}, s39, v8
            """)
            for x in range(2):
                E(f"ds_write_b128 v{120+lp}, {rng('a', acc_o(4, 2*lp + x))} offset:{x*1024}")
        E(f"""
        v_lshlrev_b32 v2, 2, v{L}
        s_add_u32 s39, s{S_FREE}, 26624
        v_add_u32 v2, s39, v2
        s_mul_i32 s39, s{S_W}, 1280
        v_add_u32 v5, s39, v2
        """)
        for s_ in range(5):
            E(f"ds_write_b32 v5, v{V_L + s_*4} offset:{s_*256}")
        if self.cstamp: E(f"s_waitcnt lgkmcnt(0)\ns_memtime s[64:65]\ns_waitcnt lgkmcnt(0)\ns_cmp_eq_u32 s{S_ITEM}, 1\ns_cselect_b32 s84, s64, s84")
        E(f"s_cmp_lg_u32 s{S_QH}, 0\ns_cbranch_scc1 {n}_cf1")
        for r in range(8): E(f"v_accvgpr_read_b32 v{112+r}, a{acc_o(4, 0) + r}")
        E(f"s_branch {n}_cf2")
        E.label(f"{n}_cf1")
        for r in range(8): E(f"v_accvgpr_read_b32 v{112+r}, a{acc_o(4, 2) + r}")
        E.label(f"{n}_cf2")
        E(f"""
        s_mov_b64 s[72:73], 0
        s_mov_b32 s{S_XRB}, 0x21800000
        v_mov_b32 v{V_T3}, 0x5d800000
        v_mov_b32 v{V_P}, 0
        v_mov_b32 v{V_P+2}, 0
        v_mov_b32 v{V_P+3}, 0
        s_xor_b32 s39, s{S_W}, 2
        s_mul_i32 s39, s39, 1280
        v_add_u32 v5, s39, v2
        s_mul_i32 s39, s{S_W}, 6144
        s_add_u32 s39, s39, s{S_FREE}
        v_add_u32 v6, s39, v8
        v_lshlrev_b32 v7, 4, v{L}
        s_mul_i32 s{S_XOFF}, s{S_ITEM}, 36864
        s_mul_i32 s{S_WOFF}, s{S_W}, {9216 if self.omt else 1024}
        s_add_u32 s{S_WOFF}, s{S_WOFF}, {8*1024 if self.omt else 32*1024}
        s_add_u32 s{S_WOFF}, s{S_WOFF}, s{S_XOFF}
        s_lshl_b32 s39, s{S_QH}, {12 if self.omt else 14}
        s_mul_i32 s40, s{S_HH}, {2*9216 if self.omt else 2048}
        s_add_u32 s39, s39, s40
        s_add_u32 s{S_XOFF}, s{S_XOFF}, s39
        """)
        if self.cstamp: E(f"s_waitcnt lgkmcnt(0)\ns_memtime s[64:65]\ns_waitcnt lgkmcnt(0)\ns_cmp_eq_u32 s{S_ITEM}, 1\ns_cselect_b32 s85, s64, s85")
        E("s_waitcnt lgkmcnt(0)\ns_barrier")
        for s_ in range(4): E(f"ds_read_b32 v{124+s_}, v5 offset:{s_*256}")
        for ww in range(4): E(f"ds_read_b32 v{128+ww}, v2 offset:{ww*1280 + 4*256}")
        for rk in range(3):
            for x in range(2):
                E(f"ds_read_b128 {rng('v', 136 + (rk*2+x)*4)}, v6 offset:{rk*2048 + x*1024}")
        recv = lambda s_: 160 + 16 * (s_ % 2)
        def rd(s_):
            for x in range(4):
                E(f"ds_read_b128 {rng('v', recv(s_) + 4*x)}, v4 offset:{(s_*4+x)*1024}")
        rd(0)
        for s_ in range(4):
            E(f"""
            v_add_f32 v{124+s_}, v{124+s_}, v{V_L + 4*s_}
            v_cmp_nge_f32 s[60:61], v{124+s_}, s{S_XRB}
            v_cmp_nle_f32 vcc, v{124+s_}, v{V_T3}
            v_rcp_f32 v{124+s_}, v{124+s_}
            s_or_b64 s[72:73], s[72:73], s[60:61]
            s_or_b64 s[72:73], s[72:73], vcc
            """)
        E(f"""
        v_add_f32 v128, v128, v129
        v_add_f32 v130, v130, v131
        v_add_f32 v128, v128, v130
        v_cmp_nge_f32 s[60:61], v128, s{S_XRB}
        v_cmp_nle_f32 vcc, v128, v{V_T3}
        v_rcp_f32 v128, v128
        s_or_b64 s[72:73], s[72:73], s[60:61]
        s_or_b64 s[72:73], s[72:73], vcc
        """)
        rd(1)
        for rk in range(3):
            for r in range(8): E(f"v_add_f32 v{112+r}, v{112+r}, v{136+rk*8+r}")
        for r in range(8): E(f"v_mul_f32 v{112+r}, v{112+r}, v128")
        for r in range(4):
            E(f"v_fma_f32 v{V_P+2}, v{112+2*r}, v{V_P}, v{V_P+2}")
            E(f"v_fma_f32 v{V_P+3}, v{113+2*r}, v{V_P}, v{V_P+3}")
            E(f"v_cvt_pk_bf16_f32 v{V_P+4+r}, v{112+2*r}, v{113+2*r}")
        E(f"buffer_store_dwordx4 {rng('v', V_P+4)}, v7, s[20:23], s{S_WOFF} offen{self.st_flags}")
        if self.cstamp: E(f"s_waitcnt lgkmcnt(0)\ns_memtime s[64:65]\ns_waitcnt lgkmcnt(0)\ns_cmp_eq_u32 s{S_ITEM}, 1\ns_cselect_b32 s86, s64, s86")
        for s_ in range(4):
            m_, rc = mine(s_), recv(s_)
            for r in range(16): E(f"v_add_f32 v{m_+r}, v{m_+r}, v{rc+r}")
            if s_ + 2 < 4: rd(s_ + 2)
            for r in range(16): E(f"v_mul_f32 v{m_+r}, v{m_+r}, v{124+s_}")
            pk = 56 + 8 * s_
            for r in range(8):
                E(f"v_fma_f32 v{V_P+2}, v{m_+2*r}, v{V_P}, v{V_P+2}")
                E(f"v_fma_f32 v{V_P+3}, v{m_+2*r+1}, v{V_P}, v{V_P+3}")
                E(f"v_cvt_pk_bf16_f32 v{pk+r}, v{m_+2*r}, v{m_+2*r+1}")
            E(f"s_add_u32 s39, s{S_XOFF}, {s_*1024 if self.omt else s_*4096}\ns_add_u32 s40, s39, 9216")
            for p in range(2):
                E(f"buffer_store_dwordx4 {rng('v', pk+4*p)}, v7, s[20:23], {('s39' if p == 0 else 's40') if self.omt else 's39'} offen offset:{0 if self.omt else 1024*p}{self.st_flags}")
        if self.cstamp: E(f"s_waitcnt lgkmcnt(0)\ns_memtime s[64:65]\ns_waitcnt lgkmcnt(0)\ns_cmp_eq_u32 s{S_ITEM}, 1\ns_cselect_b32 s87, s64, s87")
        E(f"""
        v_cmp_u_f32 vcc, v{V_P+2}, v{V_P+3}
        s_nop 1
        s_or_b64 s[72:73], s[72:73], vcc
        s_cmp_lg_u64 s[72:73], 0
        s_cselect_b32 s39, 1, {1 if self.force_bad else 0}
        s_lshl_b32 s39, s39, s{S_ITEM}
        s_or_b32 s{S_BAD}, s{S_BAD}, s39
        s_waitcnt lgkmcnt(0)
        s_cmp_lg_u32 s{S_ITEM}, 0
        s_cbranch_scc1 {n}_cf3
        s_barrier
        """)
        for g in self.ring_groups():
            for x in g: E(x)
        E.label(f"{n}_cf3")
        if self.cstamp: E(f"s_waitcnt lgkmcnt(0)\ns_memtime s[64:65]\ns_waitcnt lgkmcnt(0)\ns_cmp_eq_u32 s{S_ITEM}, 1\ns_cselect_b32 s88, s64, s88")
        if self.c_nost: E.items = [x for x in E.items if not x.op.startswith('buffer_store')]
        if self.c_nonan: E.items = [x for x in E.items if not (x.op == 'v_fma_f32' and f"v{V_P+2}," in x.text or x.op == 'v_fma_f32' and f"v{V_P+3}," in x.text)]
        if self.c_now: E.items = [x for x in E.items if not x.op.startswith('ds_write_b128')]
        it, _ = finalize_linear(E.items)
        o = Prog(); o.extend(it)
        return o

    def agree_bad(self):
        E = Prog()
        E(f"""
        s_barrier
        v_mov_b32 v5, {STG}
        s_lshl_b32 s40, s{S_W}, 2
        v_add_u32 v6, s40, v5
        v_mov_b32 v3, s{S_BAD}
        ds_write_b32 v6, v3
        s_waitcnt lgkmcnt(0)
        s_barrier
        ds_read_b128 v[120:123], v5
        s_waitcnt lgkmcnt(0)
        v_or_b32 v120, v120, v121
        v_or_b32 v122, v122, v123
        v_or_b32 v120, v120, v122
        s_nop 0
        v_readfirstlane_b32 s{S_BAD}, v120
        s_nop 3
        """)
        it, _ = finalize_linear(E.items)
        o = Prog(); o.extend(it)
        return o

    def stamp(self, out, idx_expr, sel=None):
        if not self.stamps: return
        if (self.qstamp or self.cstamp) and idx_expr not in (0, 1): return
        base = idx_expr
        u = self.nst; self.nst += 1
        out(f"""s_waitcnt lgkmcnt(0)
        {'s_memrealtime' if (self.dbg_stamps is not None or self.dbg_rt) else 's_memtime'} s[72:73]
        s_waitcnt lgkmcnt(0)
        s_cmp_eq_u32 s{sel if sel is not None else S_ITEM}, 0
        s_cselect_b32 s{80+base}, s72, s{80+base}
        s_cselect_b32 s{88+base}, s{88+base}, s72""")

    def build(self):
        n = self.name
        out = Prog()
        st, _ = finalize_linear(self.setup().items)
        out.extend(st)
        cold = Prog()
        out.label(f"{n}_qpL")
        self.stamp(out, 0)
        out.extend(self.qp2('x'))
        out(f"s_cmp_lg_u32 s{S_SAFE}, 0\ns_cbranch_scc1 {n}_qredo")
        out.extend(self.qconv(0, not self.kvdma, 1))
        out.extend(self.lq())
        out("s_barrier")
        out.extend(self.qconv(1, not self.kvdma, 2))
        out.label(f"{n}_qdone")
        cold.label(f"{n}_qredo")
        cold(f"s_cmp_lg_u32 s{S_ITEM}, 0\ns_cbranch_scc1 {n}_qredo1")
        cold.extend(self.qconv(0, not self.kvdma))
        cold(f"s_branch {n}_qredo2")
        cold.label(f"{n}_qredo1")
        cold.extend(self.qconv(1, not self.kvdma))
        cold.label(f"{n}_qredo2")
        cold.extend(self.lq())
        cold(f"s_branch {n}_safe")
        self.stamp(out, 1)
        out.label(f"{n}_att")
        self.stamp(out, 2)
        out(f"s_cmp_lg_u32 s{S_QH}, 0\ns_cbranch_scc1 {n}_q1")
        self.x_nomax = self.fast
        out.extend(self.attention(0, 'a'))
        out(f"s_branch {n}_cmb")
        out.label(f"{n}_q1")
        out.extend(self.attention(1, 'b'))
        cold.label(f"{n}_safe")
        self.x_nomax = False
        st, self.stamps = self.stamps, False
        cold(f"s_cmp_lg_u32 s{S_QH}, 0\ns_cbranch_scc1 {n}_sq1")
        cold.extend(self.attention(0, 'c'))
        cold(f"s_branch {n}_scmb")
        cold.label(f"{n}_sq1")
        cold.extend(self.attention(1, 'd'))
        cold(f"s_branch {n}_scmb")
        self.stamps = st
        out.label(f"{n}_cmb")
        self.stamp(out, 3)
        out(f"s_cmp_lg_u32 s{S_ITEM}, 0\ns_cbranch_scc1 {n}_nolq")
        out.extend(self.lq())
        out.label(f"{n}_nolq")
        if self.cfast and self.fast:
            out.extend(self.combine_fast())
        else:
            out.extend(self.combine(0))
        self.stamp(out, 4)
        out(f"s_add_u32 s{S_ITEM}, s{S_ITEM}, 1\ns_cmp_ge_u32 s{S_ITEM}, 2\ns_cbranch_scc1 {n}_agree")
        out(f"s_branch {n}_att")
        cold.label(f"{n}_scmb")
        st2, self.stamps, cs = self.stamps, False, self.cstamp
        self.cstamp = False
        cold.extend(self.combine(0))
        self.stamps, self.cstamp = st2, cs
        cold(f"s_branch {n}_redo")
        out.label(f"{n}_agree")
        out.extend(self.agree_bad())
        out.label(f"{n}_redo")
        out(f"s_cmp_eq_u32 s{S_BAD}, 0\ns_cbranch_scc1 {n}_fin")
        out(f"""s_and_b32 s39, s{S_BAD}, 1
        s_xor_b32 s{S_ITEM}, s39, 1
        s_lshl_b32 s39, 1, s{S_ITEM}
        s_andn2_b32 s{S_BAD}, s{S_BAD}, s39
        s_mov_b32 s{S_SAFE}, 1
        s_lshl_b32 s{S_GOFF}, s{S_ITEM}, 18
        s_add_u32 s{S_DSLOT}, s{S_DBASE}, {SLOT if self.kvdma else 0}
        s_mov_b32 s{S_RSLOT}, {SLOT if self.kvdma else 0}
        s_branch {n}_qpL""")
        out.label(f"{n}_fin")
        out(f"""s_lshl_b32 s39, s2, 7
        s_add_u32 s39, s39, {48 << 20}
        s_add_u32 s72, s68, s39
        s_addc_u32 s73, s69, 0
        v_mov_b32 v2, 0
        v_lshlrev_b32 v3, 2, v{V_LANE}
        s_mov_b32 exec_hi, 0
        global_store_dword v3, v2, s[72:73]
        s_mov_b32 exec_hi, -1""")
        self.cold = cold
        if self.stamps and self.dbg_stamps is not None:
            out(f"""s_cmp_lg_u32 s2, {self.dbg_stamps}
            s_cbranch_scc1 {n}_done
            s_cmp_lg_u32 s{S_W}, 0
            s_cbranch_scc1 {n}_done
            s_memrealtime s[72:73]
            s_waitcnt lgkmcnt(0)
            s_mov_b32 s95, s72
            s_add_u32 s68, s68, {64 << 20}
            s_addc_u32 s69, s69, 0
            v_mov_b32 v2, 0""")
            for i in range(16):
                out(f"v_mov_b32 v3, s{80+i}\nglobal_store_dword v2, v3, s[68:69] offset:{4*i}")
        elif self.stamps:
            out(f"""s_lshl_b32 s39, s2, 2
            s_add_u32 s39, s39, s{S_W}
            s_lshl_b32 s39, s39, 6
            s_add_u32 s39, s39, {64 << 20}
            s_add_u32 s68, s68, s39
            s_addc_u32 s69, s69, 0
            v_mov_b32 v2, 0""")
            for i in range(16):
                out(f"v_mov_b32 v3, s{80+i}\nglobal_store_dword v2, v3, s[68:69] offset:{4*i}")
        if self.fuse is not None:
            out.label(f"{n}_pub")
            out(f"""s_load_dwordx2 s[78:79], s[0:1], 88
            s_waitcnt vmcnt(0) lgkmcnt(0)
            s_barrier
            s_cmp_lg_u32 s{S_W}, 0
            s_cbranch_scc1 {n}_pub2
            s_lshl_b32 s39, s{S_BLK}, 3
            s_add_u32 s39, s39, s{S_B}
            s_lshl_b32 s39, s39, 2
            v_mov_b32 v2, s39
            s_lshl_b32 s40, 3, s{S_H0}
            v_mov_b32 v3, s40
            s_mov_b64 exec, 1
            global_atomic_or v2, v3, s[78:79]
            s_mov_b64 exec, -1
            {n}_pub2:
            {n}_op:""")
            out.extend(self.fuse)
        out.label(f"{n}_done")
        out("s_endpgm")
        out.extend(self.cold)
        labs = {it.text for it in out.items if it.kind == 'label'}
        for r in self.rare:
            back = r.items[-1].ops[0] + ':'
            if back in labs: out.extend(r)
        return kernel_text(n, out.text(), vgpr=512, sgpr=102, acc=256), LDS_TOTAL

if __name__ == '__main__':
    import sys
    b = dict(nt_w=True)
    variants = [('fa_a_kernel', dict(b)), ('fa_c_kernel', dict(b, cstamp=True)), ('fa_forcebad_kernel', dict(b, force_bad=True))]
    hdr = ''; body = ''
    for nm, kw in variants:
        txt, lds = FA(name=nm, stamps=True, **kw).build()
        hdr += f"; @launch kernel={nm} grid=(256,1,1) block=(256,1,1) lds={lds}\n"
        body += txt
    open('fa.s', 'w').write(hdr + '.amdgcn_target "amdgcn-amd-amdhsa--gfx950"\n.text\n' + body)
```

```python
from asmlib import *

WSL = 4096
NS = 8
LDS = 147456

def rng(f, b, n=4): return f"{f}[{b}:{b+n-1}]"
def acc(t, j): return 16 * t + 4 * j
V_B = [32, 68, 104, 140]
A_REG = [[176, 180, 184, 188], [192, 196, 200, 204]]

def gen_oproj(name='oproj_kernel', stamps=False, rt=False, dbg=False, nt_w=False, wla=5, st_flags=''):
    RT = 's_memrealtime' if (dbg or rt) else 's_memtime'
    ntw = ' nt' if nt_w else ''
    P = Prog()
    def stamp(X, i):
        if stamps: X(f"s_waitcnt lgkmcnt(0)\n{RT} s[50:51]\ns_waitcnt lgkmcnt(0)\ns_mov_b32 s{60+i}, s50")
    P(f"""
    s_cmp_ge_u32 s2, 256
    s_cbranch_scc1 {name}_done
    s_load_dwordx2 s[4:5], s[0:1], 96
    s_load_dwordx2 s[6:7], s[0:1], 80
    s_load_dwordx2 s[8:9], s[0:1], 32
    s_load_dwordx2 s[10:11], s[0:1], 72
    v_lshrrev_b32 v1, 6, v0
    v_and_b32 v2, 63, v0
    v_readfirstlane_b32 s24, v1
    s_and_b32 s32, s2, 7
    s_lshr_b32 s33, s2, 3
    s_lshr_b32 s25, s32, 2
    s_and_b32 s34, s32, 1
    s_lshl_b32 s34, s34, 2
    s_and_b32 s35, s33, 3
    s_add_u32 s26, s34, s35
    s_lshr_b32 s34, s32, 1
    s_and_b32 s34, s34, 1
    s_lshl_b32 s34, s34, 3
    s_lshr_b32 s35, s33, 2
    s_add_u32 s27, s34, s35
    """)
    P("""
    v_lshlrev_b32 v10, 4, v2
    v_add_u32 v11, 4096, v10
    v_add_u32 v12, 8192, v10
    v_lshrrev_b32 v3, 3, v2
    v_and_b32 v4, 7, v2
    v_lshrrev_b32 v5, 4, v2
    v_and_b32 v5, 1, v5
    v_lshlrev_b32 v5, 2, v5
    v_xor_b32 v4, v4, v5
    v_lshlrev_b32 v4, 4, v4
    v_lshlrev_b32 v3, 11, v3
    v_add_u32 v14, v3, v4
    v_add_u32 v15, 16384, v14
    v_add_u32 v16, 32768, v14
    v_add_u32 v17, 49152, v14
    """)
    P(f"""
    v_lshrrev_b32 v3, 2, v2
    v_and_b32 v3, 3, v3
    v_lshrrev_b32 v4, 4, v2
    v_and_b32 v5, 3, v2
    v_lshrrev_b32 v6, 1, v3
    v_lshlrev_b32 v6, 2, v6
    v_xor_b32 v5, v5, v6
    v_lshlrev_b32 v5, 4, v5
    v_lshlrev_b32 v6, 3, v4
    v_add_u32 v6, v6, v3
    v_lshlrev_b32 v6, 7, v6
    s_lshl_b32 s75, s24, 15
    v_add_u32 v6, s75, v6
    v_add_u32 v22, v6, v5
    v_xor_b32 v5, 64, v5
    v_add_u32 v23, v6, v5
    """)
    P("s_waitcnt lgkmcnt(0)")
    stamp(P, 0)
    P(f"""
    s_lshl_b32 s32, s25, 3
    s_add_u32 s32, s32, s26
    s_mul_i32 s32, s32, {32*36864}
    s_add_u32 s12, s4, s32
    s_addc_u32 s13, s5, 0
    s_and_b32 s13, s13, 0xffff
    s_mov_b32 s14, {32*36864}
    s_mov_b32 s15, 0x20000
    s_cmp_eq_u32 s25, 0
    s_cselect_b32 s16, s8, s10
    s_cselect_b32 s17, s9, s11
    s_lshl_b32 s32, s27, 7
    s_add_u32 s16, s16, s32
    s_addc_u32 s17, s17, 0
    s_and_b32 s17, s17, 0xffff
    s_sub_u32 s18, {4096*2048}, s32
    s_mov_b32 s19, 0x20000
    s_lshl_b32 s32, s24, 3
    s_mul_i32 s36, s32, 36864
    s_add_u32 s38, s36, {8*36864}
    s_lshl_b32 s37, s32, 18
    s_add_u32 s39, s37, {32 << 16}
    """)
    def o_groups(bset):
        L = [[f"s_cmp_lt_u32 s36, s38", f"s_cselect_b32 s41, s36, {32*36864}"]]
        for t in range(9):
            b = V_B[bset] + 4 * t
            L.append([f"buffer_load_dwordx4 {rng('v', b)}, v{10 + (t >> 2)}, s[12:15], s41 offen offset:{(t & 3)*1024}"])
        L.append([f"s_add_u32 s36, s36, 9216"])
        return L
    def w_groups(slot):
        L = [[f"s_cmp_lt_u32 s37, s39", f"s_cselect_b32 s42, s37, {4096*2048}"]]
        for p in range(4):
            L.append([f"s_add_u32 m0, s75, {slot*WSL + p*1024}", f"buffer_load_dwordx4 v{14+p}, s[16:19], s42 offen{ntw} lds"])
        L.append([f"s_add_u32 s37, s37, 65536"])
        return L
    def a_reads(slot, aset):
        L = []
        for j in range(4):
            a = A_REG[aset][j]
            jj, h = j >> 1, j & 1
            L.append([f"ds_read_b64_tr_b16 v[{a}:{a+1}], v{22+jj} offset:{slot*WSL + 8*h}"])
            L.append([f"ds_read_b64_tr_b16 v[{a+2}:{a+3}], v{22+jj} offset:{slot*WSL + 8*h + 512}"])
        return L
    OLA, WLA = 3, wla + 1
    assert WLA < NS
    cnt = {'O': 9, 'W': 4}
    seq = []
    pro = []
    oi = wi = 0
    while oi < OLA or wi < WLA:
        if wi < WLA and wi <= 2 * oi + 1: pro.append(('W', wi)); wi += 1
        elif oi < OLA: pro.append(('O', oi)); oi += 1
        else: pro.append(('W', wi)); wi += 1
    seq = list(pro)
    def after(need):
        last = max(i for i, it in enumerate(seq) if it in need)
        return sum(cnt[k] for k, _ in seq[last + 1:])
    w_first = after({('W', 0)})
    waits = {}
    for s in range(24):
        waits[s] = after({('O', s), ('W', s + 1)})
        seq.append(('O', s + OLA)); seq.append(('W', s + WLA))
    wv = [min(waits[s] for s in range(r, 24, 8)) for r in range(8)]
    assert max(wv + [w_first]) <= 63
    for kind, i in pro[:3]:
        for g in (w_groups(i % NS) if kind == 'W' else o_groups(i % 4)):
            for x in g: P(x)
    for r in range(4): P(f"v_mov_b32 v{4+r}, 0")
    Z = [f"v_mfma_f32_16x16x32_bf16 {rng('a', 4*k)}, v[4:7], v[4:7], 0" for k in range(36)]
    G = []
    for kind, i in pro[3:]:
        G += (w_groups(i % NS) if kind == 'W' else o_groups(i % 4))
    zi = 0
    for g in G:
        for x in g: P(x)
        if zi < len(Z): P(Z[zi]); zi += 1
    for z in Z[zi:]: P(z)
    P(f"s_waitcnt vmcnt({w_first})")
    for g in a_reads(0, 0):
        for x in g: P(x)
    P("s_waitcnt lgkmcnt(0)")
    stamp(P, 1)
    P("s_mov_b32 s31, 4")
    pre, _ = finalize_linear(P.items)
    out = Prog(); out.extend(pre)
    body = Prog()
    for r in range(8):
        body(f"s_waitcnt vmcnt({wv[r]})")
        M = []
        for t in range(9):
            for j in range(4):
                a = acc(t, j)
                M.append(f"v_mfma_f32_16x16x32_bf16 {rng('a', a)}, {rng('v', A_REG[r % 2][j])}, {rng('v', V_B[r % 4] + 4*t)}, {rng('a', a)}")
        fill = [[] for _ in M]
        R = a_reads((r + 1) % NS, (r + 1) % 2)
        for i, g in enumerate(R): fill[i] += g
        DO, DW = o_groups((r + OLA) % 4), w_groups((r + WLA) % NS)
        k = 8
        for g in DO + DW:
            pos = min(k, len(M) - 1)
            if 'm0' in g[0] and pos > 0:
                fill[pos - 1].append(g[0]); fill[pos] += g[1:]
            else: fill[pos] += g
            if any('buffer_load' in y for y in g): k += 2
        for m, f in zip(M, fill):
            body(m)
            for x in f: body(x)
    body("s_sub_u32 s31, s31, 1")
    body("s_cmp_lg_u32 s31, 0")
    b_items, fifo = finalize_loop(body.items)
    out.label(f"{name}_loop")
    out.extend(b_items)
    out(f"s_cbranch_scc1 {name}_loop")
    E = Prog()
    stamp(E, 2)
    E("s_waitcnt vmcnt(0) lgkmcnt(0)\ns_nop 7\ns_barrier")
    E(f"""
    v_lshlrev_b32 v3, 4, v2
    s_mul_i32 s32, s24, 36864
    v_add_u32 v4, s32, v3
    """)
    for k in range(36):
        E(f"ds_write_b128 v4, {rng('a', 4*k)} offset:{k*1024}")
    E(f"""
    s_and_b32 s29, s24, 1
    s_lshr_b32 s30, s24, 1
    s_mul_i32 s32, s30, {5*4096}
    s_lshl_b32 s33, s29, 11
    s_add_u32 s32, s32, s33
    v_add_u32 v5, s32, v3
    v_add_u32 v6, 36864, v5
    v_add_u32 v7, {2*36864}, v5
    v_add_u32 v8, {3*36864}, v5
    s_mul_i32 s32, s26, {144*4096}
    s_lshl_b32 s33, s25, 11
    s_add_u32 s32, s32, s33
    s_lshl_b32 s33, s27, 7
    s_add_u32 s32, s32, s33
    s_lshl_b32 s33, s29, 6
    s_add_u32 s32, s32, s33
    s_add_u32 s20, s6, s32
    s_addc_u32 s21, s7, 0
    s_and_b32 s21, s21, 0xffff
    s_sub_u32 s22, {8*144*4096}, s32
    s_mov_b32 s23, 0x20000
    v_and_b32 v9, 15, v2
    v_lshlrev_b32 v9, 12, v9
    v_lshrrev_b32 v21, 4, v2
    v_lshlrev_b32 v21, 4, v21
    v_add_u32 v9, v9, v21
    s_mul_i32 s40, s30, {5*16*4096}
    """)
    E("s_waitcnt lgkmcnt(0)\ns_barrier")
    def rd(i):
        base = 32 + 32 * (i % 3)
        for ww in range(4):
            for x in range(2):
                E(f"ds_read_b128 {rng('v', base + ww*8 + 4*x)}, v{5+ww} offset:{i*4096 + x*1024}")
    rd(0)
    for i in range(5):
        if i == 4:
            E(f"s_cmp_lg_u32 s30, 0\ns_cbranch_scc1 {name}_fin")
        if i + 1 < 5: rd(i + 1)
        base = 32 + 32 * (i % 3)
        for r in range(8): E(f"v_add_f32 v{base+r}, v{base+r}, v{base+8+r}")
        for r in range(8): E(f"v_add_f32 v{base+16+r}, v{base+16+r}, v{base+24+r}")
        for r in range(8): E(f"v_add_f32 v{base+r}, v{base+r}, v{base+16+r}")
        for r in range(4): E(f"v_cvt_pk_bf16_f32 v{140+4*(i % 3)+r}, v{base+2*r}, v{base+2*r+1}")
        E(f"s_add_u32 s33, s40, {i*16*4096}")
        E(f"buffer_store_dwordx4 {rng('v', 140+4*(i % 3))}, v9, s[20:23], s33 offen{st_flags}")
    E.label(f"{name}_fin")
    stamp(E, 3)
    if stamps and not dbg:
        E(f"""s_mov_b32 s64, s63
        s_lshl_b32 s32, s2, 2
        s_add_u32 s32, s32, s24
        s_lshl_b32 s32, s32, 6
        s_add_u32 s32, s32, {(64 << 20) + (1 << 17)}
        s_add_u32 s4, s4, s32
        s_addc_u32 s5, s5, 0
        v_mov_b32 v2, 0""")
        for i in range(5):
            E(f"v_mov_b32 v3, s{60+i}\nglobal_store_dword v2, v3, s[4:5] offset:{4*i}")
    e_items, _ = finalize_linear(E.items)
    out.extend(e_items)
    out.label(f"{name}_done")
    out("s_endpgm")
    return kernel_text(name, out.text(), vgpr=400, sgpr=96, acc=256), LDS
```

```python
import sys, importlib
sys.path.insert(0, 'gen')
import fa as fa_mod, fa_v2, fa_v3, oproj3, oproj4, oproj5, oproj6
def make(path, fa_kw=None, op_kw=None, order='fo', mod=fa_mod, opmod=oproj3):
    f = mod.FA(name='fa_kernel', **(fa_kw or {}))
    t1, l1 = f.build()
    t2, l2 = opmod.gen_oproj('oproj_kernel', **(op_kw or {}))
    hdr = open('concat_heads__mha_block_cached__gqa_block_cached__near_ridge.s.ref').read().split('; Override')[0]
    for k in order:
        if k == 'f': hdr += f"; @launch kernel=fa_kernel grid=(256,1,1) block=(256,1,1) lds={l1}\n"
        else: hdr += f"; @launch kernel=oproj_kernel grid=(256,1,1) block=(256,1,1) lds={l2}\n"
    open(path, 'w').write(hdr + '.amdgcn_target "amdgcn-amd-amdhsa--gfx950"\n.text\n' + t1 + t2)
def make_fused(path, fa_kw=None, op_kw=None, kname='fa_kernel', listfmt=True):
    op = oproj4.gen_oproj(kname + '_o', fused=True, **(op_kw or {}))
    kw = dict(fa_kw or {})
    kw['op_label'] = kname + '_op'
    f = fa_mod.FA(name=kname, fuse=op, **kw)
    t1, l1 = f.build()
    hdr = open('concat_heads__mha_block_cached__gqa_block_cached__near_ridge.s.ref').read().split('; Override')[0]
    if listfmt: hdr += f"; @launch kernel={kname} grid=(256,1,1) block=(256,1,1) lds={l1}\n"
    else: hdr += f"; @launch grid=(256,1,1) block=(256,1,1) lds={l1}\n"
    open(path, 'w').write(hdr + '.amdgcn_target "amdgcn-amd-amdhsa--gfx950"\n.text\n' + t1)
if __name__ == '__main__':
    M = 'cdna_kernels/'
    D = 'dev/'
    base = dict(pf_wo=True, op_label='oproj_kernel', nt_w=True, pf_code2=True, st_flags=' sc1', omt=True)
    make(M + 'n1.s', fa_kw=dict(base), opmod=oproj6)
    make(M + 'o1.s', fa_kw=dict(base), opmod=oproj5)
    make(M + 'e_a.s', fa_kw=dict(base, st_flags=''), opmod=oproj6)
```

```python
from asmlib import *
import math

RING = 0
SLOT = 32768
STG = 98304
XB = [STG, STG + 18432]
WB = [STG + 36864 + 8192 * i for i in range(3)]
QX = STG
LDS_TOTAL = 163840
O_WS_OFF = 0
CSCALE = math.log2(math.e) / math.sqrt(128.0)

import struct
def f2u(x): return struct.unpack('<I', struct.pack('<f', x))[0]

V_LANE = 1
V_RING = 10
V_KPAT, V_VPAT, V_KA, V_VA = 20, 24, 28, 32
V_P = 36
V_MX, V_T1, V_T2, V_T3 = 48, 49, 50, 51
V_ONES = 52
V_NEGM = 56
V_L = 76
V_S = 96
V_KF = {'A': 120, 'B': 184}
V_VF = {'A': 152, 'B': 216}
A_O = 0
A_Q = 160
V_XD, V_WD = 106, 98
V_WD2 = 96
V_WPH = 112
V_ZERO = 116
QXBASE = 98304
V_PFW, V_PFX, V_PFD = 14, 15, 16
V_RINGK, V_RINGV = 17, 18
V_RINGH = 248
V_VA2 = 252
V_XPAT = 100
V_WPAT = 104
V_XA = 106
V_WA = 110
QF_W = [120, 156]
QF_X = [136, 172]

S_W, S_QH, S_HH, S_BLK, S_B, S_H0 = 24, 25, 26, 27, 28, 29
S_CH, S_DSLOT, S_RSLOT, S_CNT = 30, 31, 32, 33
S_T = 34
S_GOFF, S_LB, S_TMP, S_TMP2 = 41, 42, 40, 43
S_DWRAP, S_DBASE = 30, 42
S_XI, S_WI, S_XOFF, S_WOFF, S_XBUF, S_WBUF, S_XRB, S_WRB = 44, 45, 46, 47, 48, 49, 50, 51
S_XW_G, S_XW_L = 54, 55
S_XC = 96
S_WW_L, S_WLIM = 101, 56
S_BAD, S_SAFE, S_NREC2 = 44, 45, 53
S_KOOB = 51
S_FREE = 49
S_ITEM = 58
S_FL = 59
S_QI = 70
S_FLAG = 72
S_LATE, S_PR, S_FI, S_FMAX, S_FG, S_FL2 = 71, 74, 75, 52, 53, 56
S_KVO = 66

QP_PAT = [98, 99, 100, 101, 102, 103, 104, 105, 106, 107, 108, 109, 110]
def qacc(k): return (56 + 4 * k) if k < 10 else (192 + 4 * (k - 10))
def acc_o(slot, jl): return A_O + slot * 32 + jl * 4
def q_frag(slot, jp): return A_Q + slot * 16 + jp * 4
def rng(f, b, n=4): return f"{f}[{b}:{b+n-1}]"

def interleave(M, fillers, start=0):
    out = []
    k = 0
    for i, m in enumerate(M):
        out.append(m)
        if i >= start and k < len(fillers):
            out += fillers[k]; k += 1
    while k < len(fillers):
        out += fillers[k]; k += 1
    return out

def spread(M, groups, start=0):
    m = len(M) - start
    n = len(groups)
    out = []
    for i, x in enumerate(M):
        out.append(x)
        if i >= start:
            k = i - start
            for g in groups[(k * n) // m:((k + 1) * n) // m]:
                out += g
    return out

class FA:
    def __init__(self, name='fa_kernel', nt_kv=True, nt_w=False, nt_x=False, dbg=None, order='early', stamps=False, pf_qp=True, pf_att=True, late_bit=1, x_nodma=False, x_nosm=False, x_nobr=False, x_nord=False, x_nobar=False, x_qv=False, q_nodma=False, q_nord=False, q_nobar=False, q_nowait=False, same_kv=False, x_nohead=False, x_noX=False, x_nomax=False, fill_qp=True, fast=True, force_bad=False, pf_wo=False, pf_code=False, op_label=None, dbg_stamps=None, pf0=False, pf1=False, pf_nt=False, qstamp=False, cstamp=False, st_flags='', qp0_nt=False, pf0x=False, rot=False, pf_tlb=False, dbg_rt=False, pf_code2=False, kvreg=False, kvdma=True, qn1=4, cfast=True, c_nost=False, c_nonan=False, c_now=False, fuse=None, omt=False, op_end='oproj_kernel_done', altmap=False, pf_wo_early=False, pf_wo_spread=False, pf_late_g=4):
        self.pf_late_g = pf_late_g
        self.pf_wo_spread = pf_wo_spread
        self.pf_wo_early = pf_wo_early
        self.altmap = altmap
        self.op_end = op_end
        self.omt = omt
        self.fuse = fuse
        self.c_nost, self.c_nonan, self.c_now = c_nost, c_nonan, c_now
        self.cfast = cfast
        self.qn1 = qn1
        self.kvdma = kvdma
        self.kvreg = kvreg
        self.pf_code2 = pf_code2
        self.dbg_rt = dbg_rt
        self.pf_tlb = pf_tlb
        self.rot = rot
        self.st_flags, self.qp0_nt, self.pf0x = st_flags, qp0_nt, pf0x
        self.cstamp = cstamp
        self.qstamp = qstamp
        self.pf0, self.pf1 = pf0, pf1
        self.pf_nt = ' nt' if pf_nt else ''
        self.dbg_stamps = dbg_stamps
        self.pf_wo, self.pf_code, self.op_label = pf_wo, pf_code, op_label
        self.fast = fast
        self.force_bad = force_bad
        self.fill_qp = fill_qp
        self.x_nomax = x_nomax
        self.x_nohead, self.x_noX = x_nohead, x_noX
        self.same_kv = same_kv
        self.q_nowait = q_nowait
        self.q_nodma, self.q_nord, self.q_nobar = q_nodma, q_nord, q_nobar
        self.x_nodma, self.x_nosm, self.x_nobr, self.x_nord, self.x_nobar, self.x_qv = x_nodma, x_nosm, x_nobr, x_nord, x_nobar, x_qv
        self.pf_qp = pf_qp
        self.pf_att = pf_att
        self.late_bit = late_bit
        self.stamps = stamps
        self.nst = 0
        self.name = name
        self.nt_kv = ' nt' if nt_kv else ''
        self.nt_w = ' nt' if nt_w else ''
        self.nt_x = ' nt' if nt_x else ''
        self.dbg = dbg
        self.order = order
        self.rare = []
        self.uid = 0

    def setup(self):
        P = Prog()
        n = self.name
        P(f"""
        s_cmp_ge_u32 s2, 256
        s_cbranch_scc1 {n}_done
        s_and_b32 s39, s2, 7
        s_lshr_b32 s40, s2, 3
        {'s_and_b32' if self.altmap else 's_lshr_b32'} s{S_BLK}, s39, {1 if self.altmap else 2}
        {'s_lshr_b32' if self.altmap else 's_and_b32'} s39, s39, {1 if self.altmap else 3}
        s_and_b32 s{S_B}, s40, 7
        s_lshr_b32 s40, s40, 3
        s_mov_b32 s{S_PR}, s40
        s_lshl_b32 s39, s39, 3
        s_lshl_b32 s40, s40, 1
        s_add_u32 s{S_H0}, s39, s40
        s_mul_i32 s39, s{S_BLK}, 40
        s_add_u32 s60, s0, s39
        s_addc_u32 s61, s1, 0
        s_load_dwordx2 s[4:5], s[60:61], 0
        s_load_dwordx2 s[62:63], s[60:61], 8
        s_load_dwordx2 s[64:65], s[60:61], 16
        s_load_dwordx2 s[66:67], s[60:61], 24
        s_load_dwordx2 s[68:69], s[0:1], 96
        s_load_dwordx2 s[76:77], s[60:61], 32
        v_lshrrev_b32 v2, 6, v0
        v_and_b32 v{V_LANE}, 63, v0
        v_readfirstlane_b32 s{S_W}, v2
        s_and_b32 s{S_QH}, s{S_W}, 1
        s_lshr_b32 s{S_HH}, s{S_W}, 1
        """)
        L = V_LANE
        P(f"""
        v_lshrrev_b32 v2, 4, v{L}
        v_and_b32 v3, 15, v{L}
        v_xor_b32 v4, v3, v2
        v_lshlrev_b32 v5, 2, v2
        v_xor_b32 v5, v3, v5
        v_lshlrev_b32 v4, 4, v4
        v_lshlrev_b32 v5, 4, v5
        v_lshlrev_b32 v2, 8, v2
        v_add_u32 v{V_RINGK}, v4, v2
        v_add_u32 v{V_RINGV}, v5, v2
        s_cmp_eq_u32 s{S_QH}, 0
        s_cselect_b32 s39, 64, 16
        s_cselect_b64 vcc, -1, 0
        v_cndmask_b32 v{V_RING}, v{V_RINGV}, v{V_RINGK}, vcc
        v_xor_b32 v{V_RING+1}, s39, v{V_RING}
        s_lshl_b32 s40, s39, 1
        v_xor_b32 v{V_RING+2}, s40, v{V_RING}
        s_add_u32 s40, s40, s39
        v_xor_b32 v{V_RING+3}, s40, v{V_RING}
        v_add_u32 v{V_RINGH}, 4096, v{V_RING}
        v_add_u32 v{V_RINGH+1}, 4096, v{V_RING+1}
        v_add_u32 v{V_RINGH+2}, 4096, v{V_RING+2}
        v_add_u32 v{V_RINGH+3}, 4096, v{V_RING+3}
        """)
        P(self.pf_setup())
        P(f"""
        v_and_b32 v3, 15, v{L}
        v_lshrrev_b32 v2, 4, v{L}
        v_xor_b32 v4, v2, v3
        v_lshlrev_b32 v4, 4, v4
        v_lshlrev_b32 v5, 8, v3
        s_lshl_b32 s39, s{S_HH}, 14
        v_add_u32 v5, s39, v5
        """)
        for jp in range(4):
            P(f"v_xor_b32 v6, {64*jp}, v4\nv_add_u32 v{V_KPAT+jp}, v5, v6")
        P(f"""
        v_lshrrev_b32 v3, 2, v{L}
        v_and_b32 v3, 3, v3
        v_and_b32 v4, 3, v{L}
        v_xor_b32 v4, v4, v2
        v_lshlrev_b32 v4, 4, v4
        v_lshlrev_b32 v5, 6, v3
        v_add_u32 v4, v4, v5
        v_lshlrev_b32 v5, 2, v2
        v_add_u32 v5, v5, v3
        v_lshlrev_b32 v5, 8, v5
        s_lshl_b32 s39, s{S_HH}, 14
        s_add_u32 s39, s39, 8192
        v_add_u32 v5, s39, v5
        """)
        for ml in range(4):
            P(f"""
            s_lshl_b32 s39, s{S_HH}, 1
            s_add_u32 s39, s39, {ml}
            s_and_b32 s39, s39, 3
            s_lshl_b32 s39, s39, 6
            v_xor_b32 v6, s39, v4
            v_add_u32 v{V_VPAT+ml}, v5, v6
            """)
        if self.pf_code:
            P(f"""
            s_lshr_b32 s39, s2, 3
            s_cmp_ge_u32 s39, 16
            s_cbranch_scc1 {n}_npc
            s_cmp_lg_u32 s{S_W}, 0
            s_cbranch_scc1 {n}_npc
            s_getpc_b64 s[72:73]
            {n}_pc0:
            s_lshl_b32 s39, s39, 13
            s_add_u32 s72, s72, s39
            s_addc_u32 s73, s73, 0
            v_lshlrev_b32 v3, 7, v{L}
            global_load_dword v{V_PFD}, v3, s[72:73]
            {n}_npc:
            """)
        for r in range(4):
            P(f"v_mov_b32 v{V_ONES+r}, 0x3f803f80")
        P.extend(self.qp_patterns())
        P("s_waitcnt lgkmcnt(0)")
        P(f"""
        s_cmp_eq_u32 s{S_QH}, 0
        s_cselect_b32 s8, s62, s64
        s_cselect_b32 s9, s63, s65
        s_lshl_b32 s39, s{S_B}, 5
        s_add_u32 s39, s39, s{S_H0}
        s_lshr_b32 s40, s39, 14
        s_lshl_b32 s39, s39, {18 if not self.same_kv else 31}
        s_and_b32 s39, s39, {'-1' if not self.same_kv else '0'}
        s_add_u32 s8, s8, s39
        s_addc_u32 s9, s9, s40
        s_lshl_b32 s39, s{S_HH}, 13
        s_add_u32 s8, s8, s39
        s_addc_u32 s9, s9, 0
        s_and_b32 s9, s9, 0xffff
        s_sub_u32 s10, {2*262144}, s39
        s_mov_b32 s11, 0x20000
        s_mul_i32 s39, s{S_B}, {144*2048}
        s_add_u32 s12, s4, s39
        s_addc_u32 s13, s5, 0
        s_and_b32 s13, s13, 0xffff
        s_mov_b32 s14, {144*2048}
        s_mov_b32 s15, 0x20000
        s_lshl_b32 s39, s{S_H0}, 8
        s_add_u32 s16, s66, s39
        s_addc_u32 s17, s67, 0
        s_and_b32 s17, s17, 0xffff
        s_sub_u32 s18, {1024*8192}, s39
        s_mov_b32 s19, 0x20000
        s_lshl_b32 s39, s{S_BLK}, 3
        s_add_u32 s39, s39, s{S_B}
        s_lshl_b32 s39, s39, 5
        s_add_u32 s39, s39, s{S_H0}
        s_mul_i32 s39, s39, 36864
        s_add_u32 s20, s68, s39
        s_addc_u32 s21, s69, 0
        s_add_u32 s20, s20, {O_WS_OFF}
        s_addc_u32 s21, s21, 0
        s_and_b32 s21, s21, 0xffff
        s_mov_b32 s22, {2*36864}
        s_mov_b32 s23, 0x20000
        s_lshl_b32 s{S_DBASE}, s{S_W}, 13
        s_add_u32 s{S_DSLOT}, s{S_DBASE}, {SLOT if self.kvdma else 0}
        s_add_u32 s{S_DWRAP}, s{S_DBASE}, {3*SLOT}
        s_mov_b32 s{S_GOFF}, 0
        s_mov_b32 s{S_RSLOT}, {SLOT if self.kvdma else 0}
        s_mov_b32 s{S_ITEM}, 0
        s_mov_b32 s{S_QI}, 0
        s_mov_b32 s{S_FMAX}, 1
        s_lshl_b32 s39, s{S_B}, 5
        s_add_u32 s39, s39, s{S_H0}
        s_lshl_b32 s{S_KVO}, s39, 18
        s_mov_b32 s{S_KVO+1}, 0
        s_lshr_b32 s39, s{S_H0}, 3
        s_lshl_b32 s39, s39, 5
        s_lshr_b32 s40, s2, 3
        s_add_u32 s39, s39, s40
        s_lshl_b32 s39, s39, 16
        s_add_u32 s76, s76, s39
        s_addc_u32 s77, s77, 0
        s_and_b32 s77, s77, 0xffff
        s_mov_b32 s78, 65536
        s_mov_b32 s79, 0x20000
        v_lshlrev_b32 v19, 7, v{L}
        """)
        if self.order == 'early': P(f"s_mov_b32 s{S_LATE}, 0")
        elif self.order == 'late': P(f"s_mov_b32 s{S_LATE}, 1")
        else: P(f"s_lshr_b32 s{S_LATE}, s2, {self.late_bit}\ns_and_b32 s{S_LATE}, s{S_LATE}, 1")
        P(f"""s_xor_b32 s{S_FMAX}, s{S_LATE}, 1
        s_mov_b32 s{S_BAD}, 0
        s_mov_b32 s{S_SAFE}, 0
        s_mov_b32 s{S_NREC2}, s10
        s_mov_b32 s{S_QI}, 0""")
        if self.pf0:
            for x in self.pf_w(f"s{S_W}", "0"): P(x)
            for x in self.pf_x(f"s{S_W}"): P(x)
            P(f"s_add_u32 s39, s{S_W}, 4")
            for x in self.pf_x("s39"): P(x)
            P(f"s_add_u32 s39, s{S_W}, 8\ns_min_u32 s39, s39, 8")
            for x in self.pf_x("s39"): P(x)
            P(f"s_cmp_eq_u32 s{S_LATE}, 0\ns_cbranch_scc1 {n}_npf0")
            for x in self.pf_w(f"s{S_W}", "1"): P(x)
            P.label(f"{n}_npf0")
        if self.pf0x:
            for x in self.pf_x(f"s{S_W}"): P(x)
            P(f"s_add_u32 s39, s{S_W}, 4")
            for x in self.pf_x("s39"): P(x)
            P(f"s_add_u32 s39, s{S_W}, 8\ns_min_u32 s39, s39, 8")
            for x in self.pf_x("s39"): P(x)
            P(f"s_cmp_eq_u32 s{S_LATE}, 0\ns_cbranch_scc1 {n}_npf0x")
            for x in self.pf_w(f"s{S_W}", "1"): P(x)
            P.label(f"{n}_npf0x")
        if self.pf_tlb:
            P(f"""
            s_cmp_lg_u32 s{S_W}, 0
            s_cbranch_scc1 {n}_ntlb
            s_lshr_b32 s39, s2, 3
            s_lshl_b32 s39, s39, 18
            v_lshlrev_b32 v2, 13, v{V_LANE}
            s_mov_b32 exec_hi, 0
            buffer_load_dword v{V_PFD}, v2, s[16:19], s39 offen
            s_mul_i32 s39, s{S_PR}, {18*4096}
            v_lshlrev_b32 v2, 12, v{V_LANE}
            s_mov_b32 exec_lo, 0x3ffff
            buffer_load_dword v{V_PFD}, v2, s[12:15], s39 offen
            s_mov_b64 exec, -1
            {n}_ntlb:
            """)
        return P

    def ring_instrs(self):
        nt = self.nt_kv
        D = []
        for m in range(8):
            g = []
            if m == 0: g.append(f"s_mov_b32 m0, s{S_DSLOT}")
            if m == 4: g.append(f"s_add_u32 m0, s{S_DSLOT}, 4096")
            v = V_RING + m if m < 4 else V_RINGH + m - 4
            g.append(f"buffer_load_dwordx4 v{v}, s[8:11], s{S_GOFF} offen offset:{(m & 3) * 1024}{nt} lds")
            D.append(g)
        adv = [f"s_add_u32 s{S_GOFF}, s{S_GOFF}, 16384",
               f"s_add_u32 s{S_DSLOT}, s{S_DSLOT}, {SLOT}",
               f"s_cmp_eq_u32 s{S_DSLOT}, s{S_DWRAP}",
               f"s_cselect_b32 s{S_DSLOT}, s{S_DBASE}, s{S_DSLOT}"]
        return D, adv
    def ring_groups(self):
        D, adv = self.ring_instrs()
        return D + [adv]

    def ring_fill(self):
        P = Prog()
        for _ in range(3):
            for g in self.ring_groups():
                for x in g: P(x)
        return P

    def pf_setup(self):
        L = V_LANE
        return f"""
        v_lshrrev_b32 v2, 1, v{L}
        v_lshlrev_b32 v2, 13, v2
        v_and_b32 v3, 1, v{L}
        v_lshlrev_b32 v3, 7, v3
        v_add_u32 v{V_PFW}, v2, v3
        v_lshrrev_b32 v2, 4, v{L}
        v_lshlrev_b32 v2, 11, v2
        v_and_b32 v3, 15, v{L}
        v_lshlrev_b32 v3, 7, v3
        v_add_u32 v{V_PFX}, v2, v3
        """
    def pf_w(self, i_expr_sgpr, head_sgpr):
        return [f"s_lshl_b32 s{S_TMP}, s{S_B}, 20",
                f"s_lshl_b32 s{S_TMP2}, {i_expr_sgpr}, 18",
                f"s_add_u32 s{S_TMP}, s{S_TMP}, s{S_TMP2}",
                f"s_lshl_b32 s{S_TMP2}, {head_sgpr}, 8",
                f"s_add_u32 s{S_TMP}, s{S_TMP}, s{S_TMP2}",
                f"buffer_load_dword v{V_PFD}, v{V_PFW}, s[16:19], s{S_TMP} offen{self.pf_nt}"]
    def pf_x(self, i_expr):
        return [f"s_mul_i32 s{S_TMP}, s{S_PR}, {36*2048}",
                f"s_lshl_b32 s{S_TMP2}, {i_expr}, 13",
                f"s_add_u32 s{S_TMP}, s{S_TMP}, s{S_TMP2}",
                f"buffer_load_dword v{V_PFD}, v{V_PFX}, s[12:15], s{S_TMP} offen{self.pf_nt}"]

    def code_pf(self, label, uid, waves_chunks, end_label=None, pre=()):
        n = self.name
        end_label = end_label or f"{n}_done"
        return list(pre) + [f"s_cmp_ge_u32 s{S_W}, {waves_chunks}", f"s_cbranch_scc1 {n}_ncp{uid}",
                f"s_getpc_b64 s[60:61]", f"{n}_cp{uid}:",
                f"s_add_u32 s60, s60, {label}-{n}_cp{uid}", f"s_addc_u32 s61, s61, 0",
                f"s_lshl_b32 s39, s{S_W}, 13",
                f"v_add_u32 v2, s39, v19",
                f"s_mov_b32 s39, {end_label}-{label}",
                f"v_cmp_gt_u32 vcc, s39, v2",
                f"s_and_saveexec_b64 s[72:73], vcc",
                f"s_cbranch_execz {n}_rcp{uid}",
                f"global_load_dword v{V_PFD}, v2, s[60:61]",
                f"{n}_rcp{uid}:",
                f"s_mov_b64 exec, s[72:73]",
                f"{n}_ncp{uid}:"]

    def qp_patterns(self):
        L = V_LANE
        P = Prog()
        P(f"""
        v_lshrrev_b32 v2, 3, v{L}
        v_and_b32 v3, 7, v{L}
        v_lshrrev_b32 v4, 4, v{L}
        v_xor_b32 v3, v3, v4
        v_lshlrev_b32 v3, 4, v3
        v_lshlrev_b32 v2, 11, v2
        v_add_u32 v2, v2, v3
        """)
        for x in range(5):
            P(f"""
            s_mul_i32 s39, s{S_W}, 5
            s_add_u32 s39, s39, {x}
            s_cmp_gt_u32 s39, 17
            s_cselect_b32 s40, 2, 0
            s_sub_u32 s39, s39, s40
            s_lshl_b32 s{S_XC+x}, s39, 10
            s_and_b32 s40, s39, 1
            s_lshl_b32 s40, s40, 6
            v_xor_b32 v3, s40, v2
            s_lshl_b32 s39, s39, 14
            v_add_u32 v{V_XD+x}, s39, v3
            """)
        P(f"""
        v_lshrrev_b32 v2, 4, v{L}
        v_and_b32 v3, 15, v{L}
        v_lshlrev_b32 v4, 2, v2
        v_xor_b32 v3, v3, v4
        v_xor_b32 v3, s{S_W}, v3
        v_lshlrev_b32 v3, 4, v3
        v_lshlrev_b32 v4, 13, v2
        v_add_u32 v3, v3, v4
        s_lshl_b32 s39, s{S_W}, 16
        v_add_u32 v{V_WD}, s39, v3
        v_add_u32 v{V_WD+1}, 32768, v{V_WD}
        v_and_b32 v3, 15, v{L}
        v_lshrrev_b32 v4, 1, v3
        v_xor_b32 v4, v4, v2
        v_lshlrev_b32 v4, 4, v4
        v_lshlrev_b32 v5, 7, v3
        v_xor_b32 v6, 64, v4
        v_add_u32 v4, v4, v5
        v_add_u32 v6, v6, v5
        s_lshl_b32 s39, s{S_QH}, 13
        s_add_u32 s39, s39, {QXBASE}
        v_add_u32 v{V_XPAT}, s39, v4
        v_add_u32 v{V_XPAT+1}, s39, v6
        v_add_u32 v{V_XPAT+2}, {8*2048 + QXBASE}, v4
        v_add_u32 v{V_XPAT+3}, {8*2048 + QXBASE}, v6
        v_lshrrev_b32 v3, 2, v{L}
        v_and_b32 v3, 3, v3
        v_and_b32 v4, 3, v{L}
        v_xor_b32 v4, v4, v2
        v_lshlrev_b32 v4, 4, v4
        v_lshlrev_b32 v5, 6, v3
        v_add_u32 v4, v4, v5
        v_lshlrev_b32 v5, 3, v2
        v_add_u32 v5, v5, v3
        v_lshlrev_b32 v5, 8, v5
        """)
        for p in range(2):
            P(f"""
            s_xor_b32 s39, s{S_QH}, {p}
            s_lshl_b32 s40, s{S_HH}, 1
            s_add_u32 s39, s39, s40
            s_lshl_b32 s39, s39, 6
            v_xor_b32 v6, s39, v4
            v_add_u32 v{V_WPAT+p}, v5, v6
            """)
        for k, r in enumerate(QP_PAT): P(f"v_accvgpr_write_b32 a{240+k}, v{r}")
        P(f"s_lshl_b32 s{S_WW_L}, s{S_W}, 11")
        return P

    def qp2(self, tag):
        n = self.name
        L = V_LANE
        NX, NW = 3, 6
        XB0 = 98304
        PER = 6
        NIT = 4
        FW = [120, 172]; FX = [152, 204]
        P = Prog()
        for k, r in enumerate(QP_PAT): P(f"v_accvgpr_read_b32 v{r}, a{240+k}")
        P(f"""
        v_add_u32 v{V_WD2}, 256, v{V_WD}
        v_add_u32 v{V_WD2+1}, 256, v{V_WD+1}
        v_add_u32 v{V_WPH}, 65536, v{V_WPAT}
        v_add_u32 v{V_WPH+1}, 65536, v{V_WPAT+1}
        s_mov_b32 s{S_WOFF}, 0
        s_mov_b32 s{S_XOFF}, 0
        """)
        def x_groups(buf):
            G = []
            for x in range(5):
                G.append([f"s_add_u32 m0, s{S_XC+x}, {XB0 + buf*18432}",
                          f"buffer_load_dwordx4 v{V_XD+x}, s[12:15], s{S_XOFF} offen{self.nt_x} lds"])
            G.append([f"s_add_u32 s{S_XOFF}, s{S_XOFF}, 128"])
            return G
        def w_groups(buf):
            G = []
            for h in range(2):
                for x in range(2):
                    G.append([f"s_add_u32 m0, s{S_WW_L}, {buf*16384 + h*8192 + x*1024}",
                              f"buffer_load_dwordx4 v{(V_WD if h == 0 else V_WD2) + x}, s[16:19], s{S_WOFF} offen{self.nt_w} lds"])
            G.append([f"s_add_u32 s{S_WOFF}, s{S_WOFF}, {1 << 18}"])
            return G
        def read_groups(k, i):
            G = []
            wbuf = i % NW
            wp = V_WPAT if wbuf < 4 else V_WPH
            wb = (wbuf % 4) * 16384
            xb = ((i >> 1) % NX) * 18432
            ss = i & 1
            GX = []
            for t in range(4):
                GX.append([f"ds_read_b128 {rng('v', FX[k]+4*t)}, v{V_XPAT+ss} offset:{xb + t*2048}"])
            GX.append([f"ds_read_b128 {rng('v', FX[k]+16)}, v{V_XPAT+2+ss} offset:{xb}"])
            for h in range(2):
                for jl in range(4):
                    a = FW[k] + 16 * h + 4 * jl
                    p, hh = jl >> 1, jl & 1
                    G.append([f"ds_read_b64_tr_b16 v[{a}:{a+1}], v{wp+p} offset:{wb + h*8192 + 8*hh}"])
                    G.append([f"ds_read_b64_tr_b16 v[{a+2}:{a+3}], v{wp+p} offset:{wb + h*8192 + 8*hh + 1024}"])
            return G[:8] + GX + G[8:]
        def qa(h, k): return 72 * h + 4 * k
        def mf(k):
            M = []
            for h in range(2):
                for t in range(4):
                    for jl in range(4):
                        a = qa(h, 4 * t + jl)
                        M.append(f"v_mfma_f32_16x16x32_bf16 {rng('a', a)}, {rng('v', FW[k]+16*h+4*jl)}, {rng('v', FX[k]+4*t)}, {rng('a', a)}")
                for x in range(2):
                    a = qa(h, 16 + x)
                    M.append(f"v_mfma_f32_16x16x32_bf16 {rng('a', a)}, {rng('v', FW[k]+16*h+4*x)}, {rng('v', FX[k]+16)}, {rng('a', a)}")
            return M
        pro = []
        xi = wi = 0
        while xi < NX or wi < NW:
            if xi < NX and 2 * xi <= wi: pro.append(('X', xi)); xi += 1
            elif wi < NW: pro.append(('W', wi)); wi += 1
            else: pro.append(('X', xi)); xi += 1
        cnt = {'X': 5, 'W': 4, 'K': 8}
        kv_at = {27: 0, 29: 1, 31: 2} if self.kvdma else {}
        seq = list(pro)
        def outstanding_after(need):
            idx = [i for i, it in enumerate(seq) if it in need]
            last = max(idx)
            return sum(cnt[k] for k, _ in seq[last + 1:])
        waits = {}
        for i in range(0, 32):
            need = set()
            if i + 1 < 32: need = {('W', i + 1), ('X', (i + 1) >> 1)}
            waits[i] = outstanding_after(need) if need else 63
            if i + NW < 32: seq.append(('W', i + NW))
            if (i & 1) and (i >> 1) + NX < 16: seq.append(('X', (i >> 1) + NX))
            if i in kv_at: seq.append(('K', kv_at[i]))
        wr = [min(waits[i] for i in range(r, NIT * PER, PER)) for r in range(PER)]
        assert max(wr) <= 63
        P("s_waitcnt vmcnt(0)\ns_barrier")
        def issue(lst):
            for kind, idx in lst:
                for g in (x_groups(idx) if kind == 'X' else w_groups(idx)):
                    for x in g: P(x)
        n1 = self.qn1
        n2 = len(pro)
        issue(pro[:n1])
        for r in range(0, 144, 4): P(f"v_mfma_f32_16x16x32_bf16 a[{r}:{r+3}], v[{V_ZERO}:{V_ZERO+3}], v[{V_ZERO}:{V_ZERO+3}], 0")
        issue(pro[n1:n2])
        w0 = sum(cnt[k] for k, _ in pro[2:n2])
        P(f"s_waitcnt vmcnt({w0})\ns_barrier")
        if self.qstamp:
            P(f"s_memtime s[72:73]\ns_waitcnt lgkmcnt(0)\ns_mov_b32 s82, s72")
        for g in read_groups(0, 0):
            for x in g: P(x)
        issue(pro[n2:])
        if self.pf_code2:
            for x in self.code_pf(f"{n}_hot0", 'a', 3): P(x)
        if self.pf_wo_early:
            for i in range(2):
                P(f"s_lshl_b32 s39, s{S_W}, 14\ns_add_u32 s39, s39, {8192*i}\nbuffer_load_dword v{V_PFD}, v19, s[76:79], s39 offen")
        P(f"s_waitcnt lgkmcnt(0)\ns_mov_b32 s{S_CNT}, {NIT}")
        Z = Prog()
        for r in range(4): Z(f"v_mov_b32 v{V_ZERO+r}, 0")
        P.items = Z.items + P.items
        pre, _ = finalize_linear(P.items)
        out = Prog(); out.extend(pre)
        def substep(body, i, wait):
            ss = i & 1
            body(f"s_waitcnt vmcnt({min(wait, 63)}) lgkmcnt(0)")
            body("s_barrier")
            R = read_groups(1 - ss, i + 1) if i + 1 < 32 else []
            D = []
            if i + NW < 32: D += w_groups(i % NW)
            if (i & 1) and (i >> 1) + NX < 16: D += x_groups((i >> 1) % NX)
            if i in kv_at: D += self.ring_groups()
            if self.q_nodma: D = []
            M = mf(ss)
            fill = [[] for _ in M]
            hv = []
            ri = di = 0
            while ri < len(R) or di < len(D):
                for _ in range(2):
                    if ri < len(R): hv.append(R[ri]); ri += 1
                if di < len(D): hv.append(D[di]); di += 1
            npos = len(M)
            k = 0
            for g in hv:
                pos = min(k, npos - 1)
                if 'm0' in g[0] and pos > 0 and not any('buffer_load' in y for y in fill[pos - 1]):
                    fill[pos - 1].append(g[0]); fill[pos] += g[1:]
                else:
                    fill[pos] += g
                if any(('ds_read' in y or 'buffer_load' in y) for y in g): k += 1
            for x in interleave(M, fill): body(x)
        body = Prog()
        for r in range(PER): substep(body, r, wr[r])
        if self.qstamp:
            body("s_waitcnt lgkmcnt(0)\ns_memtime s[72:73]\ns_waitcnt lgkmcnt(0)")
            for it in range(4):
                body(f"s_cmp_eq_u32 s{S_CNT}, {4 - it}\ns_cselect_b32 s{83+it}, s72, s{83+it}")
        body(f"s_sub_u32 s{S_CNT}, s{S_CNT}, 1\ns_cmp_lg_u32 s{S_CNT}, 0")
        b, _ = finalize_loop(body.items)
        out.label(f"{n}_qp{tag}")
        out.extend(b)
        out(f"s_cbranch_scc1 {n}_qp{tag}")
        tail = Prog()
        for i in range(NIT * PER, 32): substep(tail, i, waits[i])
        l1, f = auto_lgkm(b, None)
        l2, _ = auto_lgkm(tail.items, f)
        l3 = fix_hazards(l2, wrap=b)
        out.extend(l3)
        out.label(f"{n}_hot0")
        E = Prog()
        E("s_waitcnt lgkmcnt(0)\ns_nop 7\ns_barrier")
        e1, _ = finalize_linear(E.items)
        out.extend(e1)
        return out

    def qconv(self, h, with_fill, nfill=3):
        L = V_LANE
        C = Prog()
        C(f"""
        v_mov_b32 v8, {f2u(CSCALE):#x}
        v_lshlrev_b32 v2, 4, v{L}
        v_add_u32 v2, {QX}, v2
        s_lshl_b32 s40, s{S_QH}, 14
        s_lshl_b32 s{S_TMP2}, s{S_HH}, 11
        s_add_u32 s40, s40, s{S_TMP2}
        s_lshl_b32 s{S_TMP2}, s{S_QH}, 10
        s_add_u32 s{S_XOFF}, s40, s{S_TMP2}
        s_xor_b32 s{S_TMP2}, s{S_TMP2}, 1024
        s_add_u32 s{S_WOFF}, s40, s{S_TMP2}
        v_add_u32 v3, s{S_XOFF}, v2
        v_add_u32 v4, s{S_WOFF}, v2
        s_lshl_b32 s40, s{S_HH}, 11
        s_lshl_b32 s{S_TMP2}, s{S_QH}, 10
        s_add_u32 s40, s40, s{S_TMP2}
        v_add_u32 v5, s40, v2
        """)
        def conv(k0, dst):
            t = dst + 4
            for r in range(8): C(f"v_accvgpr_read_b32 v{t+r}, a{72*h + 4*k0 + r}")
            for r in range(8): C(f"v_mul_f32 v{t+r}, v8, v{t+r}")
            for r in range(4): C(f"v_cvt_pk_bf16_f32 v{dst+r}, v{t+2*r}, v{t+2*r+1}")
        k = 0
        for t in range(4):
            for p in range(2):
                d = 120 + 12 * (k % 9); k += 1
                conv(4 * t + 2 * p, d)
                C(f"ds_write_b128 v{3+p}, {rng('v', d)} offset:{t*4096}")
        d = 120 + 12 * (k % 9)
        conv(16, d)
        C(f"ds_write_b128 v5, {rng('v', d)} offset:{8*4096}")
        if with_fill:
            RF = []
            for _ in range(nfill): RF += self.ring_groups()
            CI = Prog()
            ci = C.items
            step = max(1, len(ci) // len(RF))
            k = 0
            for i, it in enumerate(ci):
                if i % step == 0 and k < len(RF):
                    for x in RF[k]: CI(x)
                    k += 1
                CI.items.append(it)
            while k < len(RF):
                for x in RF[k]: CI(x)
                k += 1
            C = CI
        C("s_waitcnt lgkmcnt(0)\ns_barrier")
        it, _ = finalize_linear(C.items)
        o = Prog(); o.extend(it)
        return o

    def lq(self):
        L = V_LANE
        P = Prog()
        P(f"""
        v_lshlrev_b32 v2, 4, v{L}
        v_add_u32 v2, {QX}, v2
        s_lshl_b32 s39, s{S_QH}, 14
        v_add_u32 v3, s39, v2
        """)
        for t in range(4):
            for jp in range(4):
                P(f"ds_read_b128 {rng('a', q_frag(t, jp))}, v3 offset:{t*4096 + jp*1024}")
        for jp in range(4):
            P(f"ds_read_b128 {rng('a', q_frag(4, jp))}, v2 offset:{8*4096 + jp*1024}")
        P("s_waitcnt lgkmcnt(0)")
        it, _ = finalize_linear(P.items)
        o = Prog(); o.extend(it)
        return o

    def s_mfmas(self, unit, sb):
        slot, fs = unit
        M = []
        for kt in range(2):
            for jp in range(4):
                d = V_S + sb * 8 + kt * 4
                c = rng('v', V_NEGM + slot * 4) if jp == 0 else rng('v', d)
                M.append(f"v_mfma_f32_16x16x32_bf16 {rng('v', d)}, {rng('v', V_KF[fs] + (kt*4+jp)*4)}, {rng('a', q_frag(slot, jp))}, {c}")
        return M
    def pv_mfmas(self, unit, pb):
        slot, fs = unit
        M = []
        p = rng('v', V_P + pb * 4)
        for jl in range(8):
            M.append(f"v_mfma_f32_16x16x32_bf16 {rng('a', acc_o(slot, jl))}, {rng('v', V_VF[fs] + jl*4)}, {p}, {rng('a', acc_o(slot, jl))}")
        M.append(f"v_mfma_f32_16x16x32_bf16 {rng('v', V_L + slot*4)}, {rng('v', V_ONES)}, {p}, {rng('v', V_L + slot*4)}")
        return M
    def max_ops(self, unit, sb):
        slot, fs = unit
        s = V_S + sb * 8
        return [[f"v_max3_f32 v{V_MX}, v{s}, v{s+1}, v{s+2}"],
                [f"v_max3_f32 v{V_MX}, v{V_MX}, v{s+3}, v{s+4}"],
                [f"v_max3_f32 v{V_MX}, v{V_MX}, v{s+5}, v{s+6}"],
                [f"v_max_f32 v{V_MX}, v{V_MX}, v{s+7}"],
                [f"v_cmp_lt_f32 vcc, s{S_T+slot}, v{V_MX}"]]
    def check_ops(self, unit, sb):
        slot, fs = unit
        s = V_S + sb * 8
        self.uid += 1
        u = self.uid
        lab_r, lab_b = f"{self.name}_rare{u}", f"{self.name}_back{u}"
        R = Prog()
        R.label(lab_r)
        R(f"""
        s_nop 7
        v_mov_b32 v{V_T1}, v{V_MX}
        s_nop 1
        v_permlane16_swap_b32 v{V_MX}, v{V_T1}
        s_nop 1
        v_max_f32 v{V_MX}, v{V_MX}, v{V_T1}
        v_mov_b32 v{V_T1}, v{V_MX}
        s_nop 1
        v_permlane32_swap_b32 v{V_MX}, v{V_T1}
        s_nop 1
        v_max_f32 v{V_MX}, v{V_MX}, v{V_T1}
        s_ashr_i32 s{S_FL}, s{S_T+slot}, 31
        s_and_b32 s{S_FL}, s{S_FL}, 0xff800000
        s_mov_b32 s{S_T+slot}, 0x41000000
        v_max_f32 v{V_MX}, s{S_FL}, v{V_MX}
        """)
        for r in range(8): R(f"v_sub_f32 v{s+r}, v{s+r}, v{V_MX}")
        for r in range(4): R(f"v_sub_f32 v{V_NEGM+slot*4+r}, v{V_NEGM+slot*4+r}, v{V_MX}")
        R(f"s_cmp_lg_u32 s{S_FL}, 0\ns_cbranch_scc1 {lab_b}")
        R(f"v_sub_f32 v{V_T1}, 0, v{V_MX}")
        R(f"v_exp_f32 v{V_T1}, v{V_T1}")
        R("s_nop 1")
        for r in range(4): R(f"v_mul_f32 v{V_L+slot*4+r}, v{V_L+slot*4+r}, v{V_T1}")
        for r in range(0, 32, 2):
            a = A_O + slot * 32 + r
            R(f"v_accvgpr_read_b32 v{V_T2}, a{a}\nv_accvgpr_read_b32 v{V_T3}, a{a+1}\nv_mul_f32 v{V_T2}, v{V_T2}, v{V_T1}\nv_mul_f32 v{V_T3}, v{V_T3}, v{V_T1}\nv_accvgpr_write_b32 a{a}, v{V_T2}\nv_accvgpr_write_b32 a{a+1}, v{V_T3}")
        R("s_nop 2")
        R(f"s_branch {lab_b}")
        self.rare.append(R)
        return [f"s_cbranch_vccnz {lab_r}", f"{lab_b}:"]
    def exp_ops(self, unit, sb, pb):
        s = V_S + sb * 8
        p = V_P + pb * 4
        return [[f"v_exp_f32 v{s}, v{s}"], [f"v_exp_f32 v{s+1}, v{s+1}"], [f"v_exp_f32 v{s+2}, v{s+2}"],
                [f"v_cvt_pk_bf16_f32 v{p}, v{s}, v{s+1}"],
                [f"v_exp_f32 v{s+3}, v{s+3}"], [f"v_exp_f32 v{s+4}, v{s+4}"],
                [f"v_cvt_pk_bf16_f32 v{p+1}, v{s+2}, v{s+3}"],
                [f"v_exp_f32 v{s+5}, v{s+5}"], [f"v_exp_f32 v{s+6}, v{s+6}"],
                [f"v_cvt_pk_bf16_f32 v{p+2}, v{s+4}, v{s+5}"],
                [f"v_exp_f32 v{s+7}, v{s+7}"],
                [f"v_cvt_pk_bf16_f32 v{p+3}, v{s+6}, v{s+7}"]]
    def kv_reads(self, fs, which):
        G = []
        if which == 'K':
            for kt in range(2):
                for jp in range(4):
                    G.append([f"ds_read_b128 {rng('v', V_KF[fs] + (kt*4+jp)*4)}, v{V_KA+jp} offset:{kt*4096}"])
        else:
            for jl in range(8):
                a = V_VF[fs] + jl * 4
                ml, h = jl >> 1, jl & 1
                va = V_VA if fs == 'A' else V_VA2
                G.append([f"ds_read_b64_tr_b16 v[{a}:{a+1}], v{va+ml} offset:{8*h}"])
                G.append([f"ds_read_b64_tr_b16 v[{a+2}:{a+3}], v{va+ml} offset:{8*h+4096}"])
        return G
    def kv_addr(self, fs):
        va = V_VA if fs == 'A' else V_VA2
        G = [[f"v_add_u32 v{V_KA+j}, s{S_RSLOT}, v{V_KPAT+j}"] for j in range(4)]
        G += [[f"v_add_u32 v{va+j}, s{S_RSLOT}, v{V_VPAT+j}"] for j in range(4)]
        G.append([f"s_add_u32 s{S_RSLOT}, s{S_RSLOT}, {SLOT}", f"s_cmp_eq_u32 s{S_RSLOT}, {3*SLOT}", f"s_cselect_b32 s{S_RSLOT}, 0, s{S_RSLOT}"])
        return G

    def units(self, qh):
        if qh == 0: return [(0,'A'),(1,'A'),(2,'A'),(3,'A'),(4,'A'),(0,'B'),(1,'B'),(2,'B'),(3,'B')]
        return [(0,'A'),(1,'A'),(2,'A'),(3,'A'),(0,'B'),(1,'B'),(2,'B'),(3,'B'),(4,'B')]

    def attn_body(self, qh, last):
        U = self.units(qh)
        B = Prog()
        RG = self.ring_groups()
        for g in range(9):
            if g in (0, 4):
                B(f"s_waitcnt vmcnt({9 if (self.pf_wo_spread and self.x_nomax) else 8}) lgkmcnt(0)")
                if not self.x_nobar: B("s_barrier")
            M = []
            if not (last and g + 3 >= 9):
                M += self.s_mfmas(U[(g + 3) % 9], g % 3)
            M += self.pv_mfmas(U[g], g % 3)
            V = []
            head = []
            if not (last and g + 1 >= 9):
                head = self.check_ops(U[(g + 1) % 9], (g + 1) % 3)
                ex = self.exp_ops(U[(g + 1) % 9], (g + 1) % 3, (g + 1) % 3)
            else: ex = []
            mx = self.max_ops(U[(g + 2) % 9], (g + 2) % 3) if not (last and g + 2 >= 9) else []
            V = []
            ei = mi = 0
            pat = "eeemcemecemecemcm" if False else "eemeemeemeemm"
            order = []
            if self.x_nomax and ex:
                e_ = [g_ for g_ in ex if g_[0].startswith('v_exp')]
                c_ = [g_ for g_ in ex if g_[0].startswith('v_cvt')]
                pat = "e-ee-eC-ee-e-eC--"
                ei = ci = 0
                for ch in pat:
                    if ch == 'e': order.append(e_[ei]); ei += 1
                    elif ch == 'C': order.append(c_[ci] + c_[ci + 1]); ci += 2
                    else: order.append([])
            else:
                for i in range(17):
                    if i in (1, 3, 5, 7, 9) and mi < len(mx): order.append(mx[mi]); mi += 1
                    elif ei < len(ex): order.append(ex[ei]); ei += 1
                    elif mi < len(mx): order.append(mx[mi]); mi += 1
            V = order
            PF = []
            if last and (self.pf_wo or self.op_label) and self.x_nomax == self.fast and g == self.pf_late_g:
                self.uid += 1
                lab = f"{self.name}_npf{self.uid}"
                pf = [f"s_cmp_eq_u32 s{S_ITEM}, 0", f"s_cbranch_scc1 {lab}"]
                if self.pf_wo:
                    for i in range(2):
                        pf += [f"s_lshl_b32 s39, s{S_W}, 14", f"s_add_u32 s39, s39, {8192 * i}",
                               f"buffer_load_dword v{V_PFD}, v19, s[76:79], s39 offen"]
                if self.op_label:
                    pf += self.code_pf(self.op_label, f"o{self.uid}", 2, end_label=self.op_end)
                pf.append(f"{lab}:")
                PF = [pf]
            XP = []
            if self.pf_wo_spread and self.x_nomax and g == 3:
                if last:
                    XP = [[f"s_mov_b32 s40, 65536", f"buffer_load_dword v{V_PFD}, v19, s[76:79], s40 offen"]]
                else:
                    XP = [[f"s_sub_u32 s39, 7, s{S_CNT}", f"s_lshl_b32 s40, s{S_ITEM}, 2", f"s_add_u32 s40, s40, s39", f"s_lshl_b32 s40, s40, 13",
                           f"s_cmp_eq_u32 s39, s{S_W}", f"s_cselect_b32 s40, s40, 65536",
                           f"buffer_load_dword v{V_PFD}, v19, s[76:79], s40 offen"]]
            if last and self.pf_code2 and self.x_nomax == self.fast and g == self.pf_late_g:
                self.uid += 1
                lab = f"{self.name}_npc{self.uid}"
                pf = [f"s_cmp_lg_u32 s{S_ITEM}, 0", f"s_cbranch_scc1 {lab}"] + self.code_pf(f"{self.name}_cmb", f"c{self.uid}", 1) + [f"{lab}:"]
                PF = PF + [pf]
            if last and self.pf1 and self.x_nomax == self.fast and g in (0, 4):
                self.uid += 1
                lab = f"{self.name}_np1{self.uid}"
                pf = [f"s_or_b32 s39, s{S_LATE}, s{S_ITEM}", f"s_cmp_lg_u32 s39, 0", f"s_cbranch_scc1 {lab}"]
                if g == 0:
                    pf += self.pf_w(f"s{S_W}", "1") + self.pf_x(f"s{S_W}")
                else:
                    pf += [f"s_add_u32 s39, s{S_W}, 4"] + self.pf_x("s39") + [f"s_add_u32 s39, s{S_W}, 8", "s_min_u32 s39, s39, 8"] + self.pf_x("s39")
                pf.append(f"{lab}:")
                PF = PF + [pf]
            KA, VA_ = (self.kv_reads('A', 'K'), self.kv_reads('A', 'V')) if not last else ([], [])
            KB, VB_ = self.kv_reads('B', 'K'), self.kv_reads('B', 'V')
            ADA = self.kv_addr('A') if not last else []
            ADB = self.kv_addr('B') if not last else []
            D, adv = self.ring_instrs()
            H = []
            Lt = []
            if g == 0: H = KB + PF + D[0:1]
            if g == 1: H = VB_[:6] + D[1:4];
            if g == 2: H = VB_[6:11] + D[4:6]; Lt = ADA[:4]
            if g == 3: H = D[6:8] + VB_[11:]; Lt = ADA[4:] + [adv]
            if g == 4: H = KA + PF + D[0:1]
            if g == 5: H = VA_[:5] + D[1:4]
            if g == 6: H = VA_[5:10] + D[4:6]; Lt = ADB[:4]
            if g == 7: H = D[6:8] + VA_[10:]; Lt = ADB[4:8]
            if g == 8: Lt = ADB[8:] + [adv]
            if self.x_nomax:
                if g == 0: H = KB + PF
                if g == 1: H = VB_[:5] + D[0:3]
                if g == 2: H = VB_[5:11] + D[3:5]
                if g == 3: H = D[5:8] + XP + VB_[11:]
                if g == 4: H = KA[:7] + PF
                if g == 5: H = KA[7:] + D[0:2] + VA_[:4]
                if g == 6: H = D[2:4] + VA_[4:9]
                if g == 7: H = D[4:6] + VA_[9:14]
                if g == 8: H = VA_[14:] + D[6:8] + (PF if self.pf_late_g == 8 else [])
            if last and self.x_nomax and self.cfast and g >= 4:
                H = [x for x in H if not any('lds' in y and 'buffer_load' in y for y in x)]
                Lt = [x for x in Lt if not any(f"s{S_GOFF}," in y for y in x)]
                if g == 4: Lt = Lt + [[f"s_sub_u32 s{S_FREE}, s{S_DSLOT}, s{S_DBASE}"]]
            if self.x_nodma: H = [x for x in H if not any('lds' in y and 'buffer_load' in y for y in x)]
            if self.x_nord: H = [x for x in H if not any('ds_read' in y for y in x)]
            if self.x_nosm: V = []; head = []
            if self.x_nobr: head = []
            if self.x_noX: H = []; Lt = []
            if self.x_nomax: V = [[] if (x and (x[0].startswith('v_max') or x[0].startswith('v_cmp'))) else x for x in V]; head = []
            n = len(M)
            fill = [list(V[i]) if i < len(V) else [] for i in range(n)]
            light = [i for i in range(n) if not (fill[i] and fill[i][0].startswith('v_exp'))]
            empty = [i for i in range(n) if not fill[i]]
            pos = light[:]
            if self.x_nomax and empty:
                pos = empty[:]
                more = [i for i in light if i not in pos] + [i for i in range(n) if i not in light]
                if len(H) > len(pos): pos = sorted(pos + more[:len(H) - len(pos)])
            if len(H) > len(pos):
                extra_pos = [i for i in range(n) if i not in pos][:len(H) - len(pos)]
                pos = sorted(pos + extra_pos)
            if H:
                k = len(pos)
                chosen = [pos[(j * k) // len(H)] for j in range(len(H))]
                for j, h in enumerate(H):
                    h = list(h)
                    if ' m0,' in h[0] and chosen[j] > 0 and not any('lds' in y and 'buffer_load' in y for y in fill[chosen[j] - 1]):
                        fill[chosen[j] - 1].append(h[0]); h = h[1:]
                    fill[chosen[j]] += h
            if Lt:
                has_heavy = lambda i: any(('ds_read' in y or 'buffer_load' in y) for y in fill[i])
                last_dma = max([i for i in range(n) if any('buffer_load' in y for y in fill[i])] + [-1])
                free = [i for i in light if not has_heavy(i)] + [i for i in range(n) if i not in light]
                used = set()
                for l_ in Lt:
                    need_after = last_dma if any(f"s{S_GOFF}," in y for y in l_) else -1
                    cand = [i for i in free if i not in used and i > need_after] or [n - 1]
                    if any(f"s{S_RSLOT}, s{S_RSLOT}" in y for y in l_):
                        la = max([i for i in range(n) if any(f"s{S_RSLOT}, v" in y for y in fill[i])] + [-1])
                        cand = [i for i in range(n) if i >= la]
                        cand = [max(cand[0], 0)]
                    i = cand[0]; used.add(i)
                    fill[i] += l_
            extra = V[n:]
            for x in head: B(x)
            for x in interleave(M, fill + extra): B(x)
        return B

    def attention(self, qh, tag):
        n = self.name
        U = self.units(qh)
        P = Prog()
        for r in range(20): P(f"v_mov_b32 v{V_L + r}, 0\nv_mov_b32 v{V_NEGM + r}, 0")
        P("s_nop 1")
        for r in range(0, 160, 4): P(f"v_mfma_f32_16x16x32_bf16 a[{A_O + r}:{A_O + r + 3}], v[{V_L}:{V_L+3}], v[{V_L}:{V_L+3}], 0")
        for s in range(5): P(f"s_mov_b32 s{S_T+s}, 0xff800000")
        P("s_waitcnt vmcnt(16)\ns_barrier")
        for g in self.kv_addr('A') + self.kv_reads('A', 'K') + self.kv_reads('A', 'V') + self.kv_addr('B'):
            for x in g: P(x)
        for x in self.s_mfmas(U[0], 0) + self.s_mfmas(U[1], 1) + self.s_mfmas(U[2], 2): P(x)
        if not self.x_nomax:
            for g in self.max_ops(U[0], 0):
                for x in g: P(x)
            P("s_nop 3")
            for x in self.check_ops(U[0], 0): P(x)
        for g in self.exp_ops(U[0], 0, 0) + (self.max_ops(U[1], 1) if not self.x_nomax else []):
            for x in g: P(x)
        if self.pf_wo_spread and self.x_nomax:
            P(f"s_mov_b32 s40, 65536\nbuffer_load_dword v{V_PFD}, v19, s[76:79], s40 offen")
        P(f"s_waitcnt lgkmcnt(0)\ns_mov_b32 s{S_CNT}, 7")
        pre, _ = finalize_linear(P.items)
        out = Prog(); out.extend(pre)
        body, _ = finalize_loop(self.attn_body(qh, False).items)
        if self.stamps:
            self.stamp(out, 5)
        out.label(f"{n}_at{tag}")
        out.extend(body)
        out(f"s_sub_u32 s{S_CNT}, s{S_CNT}, 1\ns_cmp_lg_u32 s{S_CNT}, 0\ns_cbranch_scc1 {n}_at{tag}")
        if self.stamps:
            self.stamp(out, 6)
        lastb = self.attn_body(qh, True)
        l1, f = auto_lgkm(body, None)
        l2, _ = auto_lgkm(lastb.items, f)
        l3 = fix_hazards(l2, wrap=body)
        out.extend(l3)
        return out

    def combine(self, qh):
        L = V_LANE
        E = Prog()
        MLO = 32768
        if self.cstamp: E(f"s_waitcnt lgkmcnt(0)\ns_memtime s[48:49]\ns_waitcnt lgkmcnt(0)\ns_cmp_eq_u32 s{S_ITEM}, 0\ns_cselect_b32 s82, s48, s82")
        E("s_nop 7\ns_waitcnt lgkmcnt(0)\ns_barrier")
        if self.cstamp: E(f"s_waitcnt lgkmcnt(0)\ns_memtime s[48:49]\ns_waitcnt lgkmcnt(0)\ns_cmp_eq_u32 s{S_ITEM}, 0\ns_cselect_b32 s83, s48, s83")
        E(f"""
        v_lshlrev_b32 v2, 2, v{L}
        v_add_u32 v2, {STG + MLO}, v2
        s_mul_i32 s39, s{S_W}, 2560
        v_add_u32 v3, s39, v2
        v_lshlrev_b32 v8, 4, v{L}
        v_add_u32 v8, {STG}, v8
        s_lshl_b32 s39, s{S_W}, 13
        s_lshl_b32 s40, s{S_HH}, 12
        s_add_u32 s{S_TMP2}, s39, s40
        v_add_u32 v5, s{S_TMP2}, v8
        s_xor_b32 s{S_TMP2}, s{S_TMP2}, 4096
        v_add_u32 v6, s{S_TMP2}, v8
        """)
        for s_ in range(5):
            E(f"ds_write_b32 v3, v{V_NEGM + s_*4} offset:{s_*512}")
            E(f"ds_write_b32 v3, v{V_L + s_*4} offset:{s_*512 + 256}")
        for jl in range(8):
            E(f"ds_write_b128 v{5 + (jl >> 2)}, {rng('a', acc_o(4, jl))} offset:{(jl & 3)*1024}")
        E(f"""s_mov_b64 s[72:73], 0
        s_mov_b32 s{S_XRB}, 0x21800000
        v_mov_b32 v{V_T3}, 0x5d800000
        v_mov_b32 v{V_P}, 0
        v_mov_b32 v{V_P+1}, 0
        v_mov_b32 v{V_P+2}, 0
        v_mov_b32 v{V_P+3}, 0
        s_xor_b32 s39, s{S_W}, 2
        s_mul_i32 s39, s39, 2560
        v_add_u32 v4, s39, v2
        s_lshl_b32 s39, s{S_W}, 11
        v_add_u32 v5, s39, v8
        v_lshlrev_b32 v7, 4, v{L}
        s_mul_i32 s{S_XOFF}, s{S_ITEM}, 36864
        s_mul_i32 s{S_WOFF}, s{S_W}, {9216 if self.omt else 1024}
        s_add_u32 s{S_WOFF}, s{S_WOFF}, {8*1024 if self.omt else 32*1024}
        s_add_u32 s{S_WOFF}, s{S_WOFF}, s{S_XOFF}
        s_lshl_b32 s39, s{S_QH}, {12 if self.omt else 14}
        s_mul_i32 s40, s{S_HH}, {2*9216 if self.omt else 2048}
        s_add_u32 s39, s39, s40
        s_add_u32 s{S_XOFF}, s{S_XOFF}, s39
        """)
        E("s_waitcnt lgkmcnt(0)\ns_barrier")
        if self.cstamp: E(f"s_waitcnt lgkmcnt(0)\ns_memtime s[48:49]\ns_waitcnt lgkmcnt(0)\ns_cmp_eq_u32 s{S_ITEM}, 0\ns_cselect_b32 s84, s48, s84")
        for s_ in range(4):
            E(f"ds_read_b32 v{120 + 2*s_}, v4 offset:{s_*512}")
            E(f"ds_read_b32 v{121 + 2*s_}, v4 offset:{s_*512 + 256}")
        for ww in range(4):
            E(f"ds_read_b32 v{128 + 2*ww}, v2 offset:{ww*2560 + 4*512}")
            E(f"ds_read_b32 v{129 + 2*ww}, v2 offset:{ww*2560 + 4*512 + 256}")
        for ww in range(4):
            for x in range(2):
                E(f"ds_read_b128 {rng('v', 160 + (ww*2+x)*4)}, v5 offset:{ww*8192 + x*1024}")
        E(f"""
        s_lshl_b32 s39, s{S_W}, 14
        v_add_u32 v3, s39, v8
        s_xor_b32 s39, s39, {2 << 14}
        v_add_u32 v4, s39, v8
        """)
        for s_ in range(4):
            for r in range(16):
                E(f"v_accvgpr_read_b32 v{192 + 16*(s_ % 3) + r if s_ < 3 else 96 + r}, a{acc_o(s_, 0) + r}")
        E("s_waitcnt lgkmcnt(0)\ns_barrier")
        if self.cstamp: E(f"s_waitcnt lgkmcnt(0)\ns_memtime s[48:49]\ns_waitcnt lgkmcnt(0)\ns_cmp_eq_u32 s{S_ITEM}, 0\ns_cselect_b32 s85, s48, s85")
        for s_ in range(4):
            for x in range(4):
                E(f"ds_write_b128 v3, {rng('a', acc_o(s_, 4 + x))} offset:{(s_*4+x)*1024}")
        for s_ in range(4):
            nm, l_ = V_NEGM + 4 * s_, V_L + 4 * s_
            no, lo = 120 + 2 * s_, 121 + 2 * s_
            E(f"""
            v_min_f32 v2, v{nm}, v{no}
            v_sub_f32 v6, v2, v{nm}
            v_sub_f32 v5, v2, v{no}
            v_exp_f32 v6, v6
            v_exp_f32 v5, v5
            s_nop 0
            v_mul_f32 v9, v6, v{l_}
            v_fma_f32 v9, v5, v{lo}, v9
            v_cmp_nge_f32 s[60:61], v9, s{S_XRB}
            v_cmp_nle_f32 vcc, v9, v{V_T3}
            v_rcp_f32 v9, v9
            s_or_b64 s[72:73], s[72:73], s[60:61]
            s_or_b64 s[72:73], s[72:73], vcc
            v_mul_f32 v{136+4*s_}, v6, v9
            v_mul_f32 v{137+4*s_}, v6, v9
            v_mul_f32 v{138+4*s_}, v5, v9
            v_mul_f32 v{139+4*s_}, v5, v9
            """)
        E(f"""
        v_min_f32 v2, v128, v130
        v_min_f32 v6, v132, v134
        v_min_f32 v2, v2, v6
        """)
        for ww in range(4):
            E(f"v_sub_f32 v{152+2*ww}, v2, v{128+2*ww}\nv_exp_f32 v{152+2*ww}, v{152+2*ww}")
        E(f"""
        s_nop 0
        v_mul_f32 v9, v152, v129
        v_fma_f32 v9, v154, v131, v9
        v_fma_f32 v9, v156, v133, v9
        v_fma_f32 v9, v158, v135, v9
        v_cmp_nge_f32 s[60:61], v9, s{S_XRB}
        v_cmp_nle_f32 vcc, v9, v{V_T3}
        v_rcp_f32 v9, v9
        s_or_b64 s[72:73], s[72:73], s[60:61]
        s_or_b64 s[72:73], s[72:73], vcc
        """)
        for ww in range(4): E(f"v_mul_f32 v{152+2*ww}, v{152+2*ww}, v9\nv_mov_b32 v{153+2*ww}, v{152+2*ww}")
        for r in range(8):
            E(f"v_mul_f32 v{112+r}, v{160+r}, v152")
        for ww in range(1, 4):
            for r in range(8):
                E(f"v_fma_f32 v{112+r}, v{160+ww*8+r}, v{152+2*ww}, v{112+r}")
        for r in range(4):
            E(f"v_fma_f32 v{V_P+2}, v{112+2*r}, v{V_P}, v{V_P+2}")
            E(f"v_fma_f32 v{V_P+3}, v{113+2*r}, v{V_P}, v{V_P+3}")
            E(f"v_cvt_pk_bf16_f32 v{V_P+4+r}, v{112+2*r}, v{113+2*r}")
        E(f"buffer_store_dwordx4 {rng('v', V_P+4)}, v7, s[20:23], s{S_WOFF} offen{self.st_flags}")
        mine = lambda s_: (192 + 16 * s_) if s_ < 3 else 96
        for s_ in range(4):
            for r in range(16):
                E(f"v_mul_f32 v{mine(s_)+r}, v{mine(s_)+r}, v{136+4*s_}")
        if self.cstamp: E(f"s_waitcnt lgkmcnt(0)\ns_memtime s[48:49]\ns_waitcnt lgkmcnt(0)\ns_cmp_eq_u32 s{S_ITEM}, 0\ns_cselect_b32 s86, s48, s86")
        E("s_waitcnt lgkmcnt(0)\ns_barrier")
        if self.cstamp: E(f"s_waitcnt lgkmcnt(0)\ns_memtime s[48:49]\ns_waitcnt lgkmcnt(0)\ns_cmp_eq_u32 s{S_ITEM}, 0\ns_cselect_b32 s87, s48, s87")
        recv = lambda s_: 160 + 16 * (s_ % 2)
        def rd(s_):
            for x in range(4):
                E(f"ds_read_b128 {rng('v', recv(s_) + 4*x)}, v4 offset:{(s_*4+x)*1024}")
        rd(0); rd(1)
        for s_ in range(4):
            m_, rc = mine(s_), recv(s_)
            for r in range(16):
                E(f"v_fma_f32 v{m_+r}, v{rc+r}, v{138+4*s_}, v{m_+r}")
            if s_ + 2 < 4: rd(s_ + 2)
            pk = 56 + 8 * s_
            for r in range(8):
                E(f"v_fma_f32 v{V_P+2}, v{m_+2*r}, v{V_P}, v{V_P+2}")
                E(f"v_fma_f32 v{V_P+3}, v{m_+2*r+1}, v{V_P}, v{V_P+3}")
                E(f"v_cvt_pk_bf16_f32 v{pk+r}, v{m_+2*r}, v{m_+2*r+1}")
            E(f"s_add_u32 s39, s{S_XOFF}, {s_*1024 if self.omt else s_*4096}\ns_add_u32 s40, s39, 9216")
            for p in range(2):
                E(f"buffer_store_dwordx4 {rng('v', pk+4*p)}, v7, s[20:23], {('s39' if p == 0 else 's40') if self.omt else 's39'} offen offset:{0 if self.omt else 1024*p}{self.st_flags}")
        E(f"""
        v_cmp_u_f32 vcc, v{V_P+2}, v{V_P+3}
        s_nop 1
        s_or_b64 s[72:73], s[72:73], vcc
        s_cmp_lg_u64 s[72:73], 0
        s_cselect_b32 s39, 1, {1 if self.force_bad else 0}
        s_xor_b32 s40, s{S_SAFE}, 1
        s_and_b32 s39, s39, s40
        s_lshl_b32 s39, s39, s{S_ITEM}
        s_or_b32 s{S_BAD}, s{S_BAD}, s39
        s_waitcnt lgkmcnt(0)
        """)
        if self.cstamp: E(f"s_waitcnt lgkmcnt(0)\ns_memtime s[48:49]\ns_waitcnt lgkmcnt(0)\ns_cmp_eq_u32 s{S_ITEM}, 0\ns_cselect_b32 s88, s48, s88")
        it, _ = finalize_linear(E.items)
        o = Prog(); o.extend(it)
        return o

    def combine_fast(self):
        n = self.name
        L = V_LANE
        E = Prog()
        if self.cstamp: E(f"s_waitcnt lgkmcnt(0)\ns_memtime s[64:65]\ns_waitcnt lgkmcnt(0)\ns_cmp_eq_u32 s{S_ITEM}, 1\ns_cselect_b32 s82, s64, s82")
        E("s_nop 7\ns_waitcnt lgkmcnt(0)\ns_barrier")
        if self.cstamp: E(f"s_waitcnt lgkmcnt(0)\ns_memtime s[64:65]\ns_waitcnt lgkmcnt(0)\ns_cmp_eq_u32 s{S_ITEM}, 1\ns_cselect_b32 s83, s64, s83")
        E(f"""
        v_lshlrev_b32 v8, 4, v{L}
        s_lshl_b32 s39, s{S_W}, 14
        s_add_u32 s39, s39, {STG}
        v_add_u32 v3, s39, v8
        s_xor_b32 s40, s{S_W}, 2
        s_lshl_b32 s40, s40, 14
        s_add_u32 s40, s40, {STG}
        v_add_u32 v4, s40, v8
        """)
        mine = lambda s_: (192 + 16 * s_) if s_ < 3 else 96
        for s_ in range(4):
            for x in range(4):
                E(f"ds_write_b128 v3, {rng('a', acc_o(s_, 4 + x))} offset:{(s_*4+x)*1024}")
                for r in range(4):
                    E(f"v_accvgpr_read_b32 v{mine(s_) + 4*x + r}, a{acc_o(s_, 0) + 4*x + r}")
        for lp in range(4):
            E(f"""
            s_lshl_b32 s39, s{S_HH}, 1
            s_xor_b32 s39, s39, {lp}
            s_sub_u32 s40, s{S_W}, s39
            s_sub_u32 s40, s40, 1
            s_and_b32 s40, s40, 3
            s_mul_i32 s39, s39, 3
            s_add_u32 s39, s39, s40
            s_lshl_b32 s39, s39, 11
            s_cmp_eq_u32 s40, 3
            s_cselect_b32 s39, 24576, s39
            s_add_u32 s39, s39, s{S_FREE}
            v_add_u32 v{120+lp}, s39, v8
            """)
            for x in range(2):
                E(f"ds_write_b128 v{120+lp}, {rng('a', acc_o(4, 2*lp + x))} offset:{x*1024}")
        E(f"""
        v_lshlrev_b32 v2, 2, v{L}
        s_add_u32 s39, s{S_FREE}, 26624
        v_add_u32 v2, s39, v2
        s_mul_i32 s39, s{S_W}, 1280
        v_add_u32 v5, s39, v2
        """)
        for s_ in range(5):
            E(f"ds_write_b32 v5, v{V_L + s_*4} offset:{s_*256}")
        if self.cstamp: E(f"s_waitcnt lgkmcnt(0)\ns_memtime s[64:65]\ns_waitcnt lgkmcnt(0)\ns_cmp_eq_u32 s{S_ITEM}, 1\ns_cselect_b32 s84, s64, s84")
        E(f"s_cmp_lg_u32 s{S_QH}, 0\ns_cbranch_scc1 {n}_cf1")
        for r in range(8): E(f"v_accvgpr_read_b32 v{112+r}, a{acc_o(4, 0) + r}")
        E(f"s_branch {n}_cf2")
        E.label(f"{n}_cf1")
        for r in range(8): E(f"v_accvgpr_read_b32 v{112+r}, a{acc_o(4, 2) + r}")
        E.label(f"{n}_cf2")
        E(f"""
        s_mov_b64 s[72:73], 0
        s_mov_b32 s{S_XRB}, 0x21800000
        v_mov_b32 v{V_T3}, 0x5d800000
        v_mov_b32 v{V_P}, 0
        v_mov_b32 v{V_P+2}, 0
        v_mov_b32 v{V_P+3}, 0
        s_xor_b32 s39, s{S_W}, 2
        s_mul_i32 s39, s39, 1280
        v_add_u32 v5, s39, v2
        s_mul_i32 s39, s{S_W}, 6144
        s_add_u32 s39, s39, s{S_FREE}
        v_add_u32 v6, s39, v8
        v_lshlrev_b32 v7, 4, v{L}
        s_mul_i32 s{S_XOFF}, s{S_ITEM}, 36864
        s_mul_i32 s{S_WOFF}, s{S_W}, {9216 if self.omt else 1024}
        s_add_u32 s{S_WOFF}, s{S_WOFF}, {8*1024 if self.omt else 32*1024}
        s_add_u32 s{S_WOFF}, s{S_WOFF}, s{S_XOFF}
        s_lshl_b32 s39, s{S_QH}, {12 if self.omt else 14}
        s_mul_i32 s40, s{S_HH}, {2*9216 if self.omt else 2048}
        s_add_u32 s39, s39, s40
        s_add_u32 s{S_XOFF}, s{S_XOFF}, s39
        """)
        if self.cstamp: E(f"s_waitcnt lgkmcnt(0)\ns_memtime s[64:65]\ns_waitcnt lgkmcnt(0)\ns_cmp_eq_u32 s{S_ITEM}, 1\ns_cselect_b32 s85, s64, s85")
        E("s_waitcnt lgkmcnt(0)\ns_barrier")
        for s_ in range(4): E(f"ds_read_b32 v{124+s_}, v5 offset:{s_*256}")
        for ww in range(4): E(f"ds_read_b32 v{128+ww}, v2 offset:{ww*1280 + 4*256}")
        for rk in range(3):
            for x in range(2):
                E(f"ds_read_b128 {rng('v', 136 + (rk*2+x)*4)}, v6 offset:{rk*2048 + x*1024}")
        recv = lambda s_: 160 + 16 * (s_ % 2)
        def rd(s_):
            for x in range(4):
                E(f"ds_read_b128 {rng('v', recv(s_) + 4*x)}, v4 offset:{(s_*4+x)*1024}")
        rd(0)
        for s_ in range(4):
            E(f"""
            v_add_f32 v{124+s_}, v{124+s_}, v{V_L + 4*s_}
            v_cmp_nge_f32 s[60:61], v{124+s_}, s{S_XRB}
            v_cmp_nle_f32 vcc, v{124+s_}, v{V_T3}
            v_rcp_f32 v{124+s_}, v{124+s_}
            s_or_b64 s[72:73], s[72:73], s[60:61]
            s_or_b64 s[72:73], s[72:73], vcc
            """)
        E(f"""
        v_add_f32 v128, v128, v129
        v_add_f32 v130, v130, v131
        v_add_f32 v128, v128, v130
        v_cmp_nge_f32 s[60:61], v128, s{S_XRB}
        v_cmp_nle_f32 vcc, v128, v{V_T3}
        v_rcp_f32 v128, v128
        s_or_b64 s[72:73], s[72:73], s[60:61]
        s_or_b64 s[72:73], s[72:73], vcc
        """)
        rd(1)
        for rk in range(3):
            for r in range(8): E(f"v_add_f32 v{112+r}, v{112+r}, v{136+rk*8+r}")
        for r in range(8): E(f"v_mul_f32 v{112+r}, v{112+r}, v128")
        for r in range(4):
            E(f"v_fma_f32 v{V_P+2}, v{112+2*r}, v{V_P}, v{V_P+2}")
            E(f"v_fma_f32 v{V_P+3}, v{113+2*r}, v{V_P}, v{V_P+3}")
            E(f"v_cvt_pk_bf16_f32 v{V_P+4+r}, v{112+2*r}, v{113+2*r}")
        E(f"buffer_store_dwordx4 {rng('v', V_P+4)}, v7, s[20:23], s{S_WOFF} offen{self.st_flags}")
        if self.cstamp: E(f"s_waitcnt lgkmcnt(0)\ns_memtime s[64:65]\ns_waitcnt lgkmcnt(0)\ns_cmp_eq_u32 s{S_ITEM}, 1\ns_cselect_b32 s86, s64, s86")
        for s_ in range(4):
            m_, rc = mine(s_), recv(s_)
            for r in range(16): E(f"v_add_f32 v{m_+r}, v{m_+r}, v{rc+r}")
            if s_ + 2 < 4: rd(s_ + 2)
            for r in range(16): E(f"v_mul_f32 v{m_+r}, v{m_+r}, v{124+s_}")
            pk = 56 + 8 * s_
            for r in range(8):
                E(f"v_fma_f32 v{V_P+2}, v{m_+2*r}, v{V_P}, v{V_P+2}")
                E(f"v_fma_f32 v{V_P+3}, v{m_+2*r+1}, v{V_P}, v{V_P+3}")
                E(f"v_cvt_pk_bf16_f32 v{pk+r}, v{m_+2*r}, v{m_+2*r+1}")
            E(f"s_add_u32 s39, s{S_XOFF}, {s_*1024 if self.omt else s_*4096}\ns_add_u32 s40, s39, 9216")
            for p in range(2):
                E(f"buffer_store_dwordx4 {rng('v', pk+4*p)}, v7, s[20:23], {('s39' if p == 0 else 's40') if self.omt else 's39'} offen offset:{0 if self.omt else 1024*p}{self.st_flags}")
        if self.cstamp: E(f"s_waitcnt lgkmcnt(0)\ns_memtime s[64:65]\ns_waitcnt lgkmcnt(0)\ns_cmp_eq_u32 s{S_ITEM}, 1\ns_cselect_b32 s87, s64, s87")
        E(f"""
        v_cmp_u_f32 vcc, v{V_P+2}, v{V_P+3}
        s_nop 1
        s_or_b64 s[72:73], s[72:73], vcc
        s_cmp_lg_u64 s[72:73], 0
        s_cselect_b32 s39, 1, {1 if self.force_bad else 0}
        s_lshl_b32 s39, s39, s{S_ITEM}
        s_or_b32 s{S_BAD}, s{S_BAD}, s39
        s_waitcnt lgkmcnt(0)
        s_cmp_lg_u32 s{S_ITEM}, 0
        s_cbranch_scc1 {n}_cf3
        s_barrier
        """)
        for g in self.ring_groups():
            for x in g: E(x)
        E.label(f"{n}_cf3")
        if self.cstamp: E(f"s_waitcnt lgkmcnt(0)\ns_memtime s[64:65]\ns_waitcnt lgkmcnt(0)\ns_cmp_eq_u32 s{S_ITEM}, 1\ns_cselect_b32 s88, s64, s88")
        if self.c_nost: E.items = [x for x in E.items if not x.op.startswith('buffer_store')]
        if self.c_nonan: E.items = [x for x in E.items if not (x.op == 'v_fma_f32' and f"v{V_P+2}," in x.text or x.op == 'v_fma_f32' and f"v{V_P+3}," in x.text)]
        if self.c_now: E.items = [x for x in E.items if not x.op.startswith('ds_write_b128')]
        it, _ = finalize_linear(E.items)
        o = Prog(); o.extend(it)
        return o

    def agree_bad(self):
        E = Prog()
        E(f"""
        s_barrier
        v_mov_b32 v5, {STG}
        s_lshl_b32 s40, s{S_W}, 2
        v_add_u32 v6, s40, v5
        v_mov_b32 v3, s{S_BAD}
        ds_write_b32 v6, v3
        s_waitcnt lgkmcnt(0)
        s_barrier
        ds_read_b128 v[120:123], v5
        s_waitcnt lgkmcnt(0)
        v_or_b32 v120, v120, v121
        v_or_b32 v122, v122, v123
        v_or_b32 v120, v120, v122
        s_nop 0
        v_readfirstlane_b32 s{S_BAD}, v120
        s_nop 3
        """)
        it, _ = finalize_linear(E.items)
        o = Prog(); o.extend(it)
        return o

    def stamp(self, out, idx_expr, sel=None):
        if not self.stamps: return
        if (self.qstamp or self.cstamp) and idx_expr not in (0, 1): return
        base = idx_expr
        u = self.nst; self.nst += 1
        out(f"""s_waitcnt lgkmcnt(0)
        {'s_memrealtime' if (self.dbg_stamps is not None or self.dbg_rt) else 's_memtime'} s[72:73]
        s_waitcnt lgkmcnt(0)
        s_cmp_eq_u32 s{sel if sel is not None else S_ITEM}, 0
        s_cselect_b32 s{80+base}, s72, s{80+base}
        s_cselect_b32 s{88+base}, s{88+base}, s72""")

    def build(self):
        n = self.name
        out = Prog()
        st, _ = finalize_linear(self.setup().items)
        out.extend(st)
        cold = Prog()
        out.label(f"{n}_qpL")
        self.stamp(out, 0)
        out.extend(self.qp2('x'))
        out(f"s_cmp_lg_u32 s{S_SAFE}, 0\ns_cbranch_scc1 {n}_qredo")
        out.extend(self.qconv(0, not self.kvdma, 1))
        out.extend(self.lq())
        out("s_barrier")
        out.extend(self.qconv(1, not self.kvdma, 2))
        out.label(f"{n}_qdone")
        cold.label(f"{n}_qredo")
        cold(f"s_cmp_lg_u32 s{S_ITEM}, 0\ns_cbranch_scc1 {n}_qredo1")
        cold.extend(self.qconv(0, not self.kvdma))
        cold(f"s_branch {n}_qredo2")
        cold.label(f"{n}_qredo1")
        cold.extend(self.qconv(1, not self.kvdma))
        cold.label(f"{n}_qredo2")
        cold.extend(self.lq())
        cold(f"s_branch {n}_safe")
        self.stamp(out, 1)
        out.label(f"{n}_att")
        self.stamp(out, 2)
        out(f"s_cmp_lg_u32 s{S_QH}, 0\ns_cbranch_scc1 {n}_q1")
        self.x_nomax = self.fast
        out.extend(self.attention(0, 'a'))
        out(f"s_branch {n}_cmb")
        out.label(f"{n}_q1")
        out.extend(self.attention(1, 'b'))
        cold.label(f"{n}_safe")
        self.x_nomax = False
        st, self.stamps = self.stamps, False
        cold(f"s_cmp_lg_u32 s{S_QH}, 0\ns_cbranch_scc1 {n}_sq1")
        cold.extend(self.attention(0, 'c'))
        cold(f"s_branch {n}_scmb")
        cold.label(f"{n}_sq1")
        cold.extend(self.attention(1, 'd'))
        cold(f"s_branch {n}_scmb")
        self.stamps = st
        out.label(f"{n}_cmb")
        self.stamp(out, 3)
        out(f"s_cmp_lg_u32 s{S_ITEM}, 0\ns_cbranch_scc1 {n}_nolq")
        out.extend(self.lq())
        out.label(f"{n}_nolq")
        if self.cfast and self.fast:
            out.extend(self.combine_fast())
        else:
            out.extend(self.combine(0))
        self.stamp(out, 4)
        out(f"s_add_u32 s{S_ITEM}, s{S_ITEM}, 1\ns_cmp_ge_u32 s{S_ITEM}, 2\ns_cbranch_scc1 {n}_agree")
        out(f"s_branch {n}_att")
        cold.label(f"{n}_scmb")
        st2, self.stamps, cs = self.stamps, False, self.cstamp
        self.cstamp = False
        cold.extend(self.combine(0))
        self.stamps, self.cstamp = st2, cs
        cold(f"s_branch {n}_redo")
        out.label(f"{n}_agree")
        out.extend(self.agree_bad())
        out.label(f"{n}_redo")
        out(f"s_cmp_eq_u32 s{S_BAD}, 0\ns_cbranch_scc1 {n}_fin")
        out(f"""s_and_b32 s39, s{S_BAD}, 1
        s_xor_b32 s{S_ITEM}, s39, 1
        s_lshl_b32 s39, 1, s{S_ITEM}
        s_andn2_b32 s{S_BAD}, s{S_BAD}, s39
        s_mov_b32 s{S_SAFE}, 1
        s_lshl_b32 s{S_GOFF}, s{S_ITEM}, 18
        s_add_u32 s{S_DSLOT}, s{S_DBASE}, {SLOT if self.kvdma else 0}
        s_mov_b32 s{S_RSLOT}, {SLOT if self.kvdma else 0}
        s_branch {n}_qpL""")
        out.label(f"{n}_fin")
        out(f"""s_lshl_b32 s39, s2, 7
        s_add_u32 s39, s39, {48 << 20}
        s_add_u32 s72, s68, s39
        s_addc_u32 s73, s69, 0
        v_mov_b32 v2, 0
        v_lshlrev_b32 v3, 2, v{V_LANE}
        s_mov_b32 exec_hi, 0
        global_store_dword v3, v2, s[72:73]
        s_mov_b32 exec_hi, -1""")
        self.cold = cold
        if self.stamps and self.dbg_stamps is not None:
            out(f"""s_cmp_lg_u32 s2, {self.dbg_stamps}
            s_cbranch_scc1 {n}_done
            s_cmp_lg_u32 s{S_W}, 0
            s_cbranch_scc1 {n}_done
            s_memrealtime s[72:73]
            s_waitcnt lgkmcnt(0)
            s_mov_b32 s95, s72
            s_add_u32 s68, s68, {64 << 20}
            s_addc_u32 s69, s69, 0
            v_mov_b32 v2, 0""")
            for i in range(16):
                out(f"v_mov_b32 v3, s{80+i}\nglobal_store_dword v2, v3, s[68:69] offset:{4*i}")
        elif self.stamps:
            out(f"""s_lshl_b32 s39, s2, 2
            s_add_u32 s39, s39, s{S_W}
            s_lshl_b32 s39, s39, 6
            s_add_u32 s39, s39, {64 << 20}
            s_add_u32 s68, s68, s39
            s_addc_u32 s69, s69, 0
            v_mov_b32 v2, 0""")
            for i in range(16):
                out(f"v_mov_b32 v3, s{80+i}\nglobal_store_dword v2, v3, s[68:69] offset:{4*i}")
        if self.fuse is not None:
            out.label(f"{n}_pub")
            out(f"""s_load_dwordx2 s[78:79], s[0:1], 88
            s_waitcnt vmcnt(0) lgkmcnt(0)
            s_barrier
            s_cmp_lg_u32 s{S_W}, 0
            s_cbranch_scc1 {n}_pub2
            s_lshl_b32 s39, s{S_BLK}, 3
            s_add_u32 s39, s39, s{S_B}
            s_lshl_b32 s39, s39, 2
            v_mov_b32 v2, s39
            s_lshl_b32 s40, 3, s{S_H0}
            v_mov_b32 v3, s40
            s_mov_b64 exec, 1
            global_atomic_or v2, v3, s[78:79]
            s_mov_b64 exec, -1
            {n}_pub2:
            {n}_op:""")
            out.extend(self.fuse)
        out.label(f"{n}_done")
        out("s_endpgm")
        out.extend(self.cold)
        labs = {it.text for it in out.items if it.kind == 'label'}
        for r in self.rare:
            back = r.items[-1].ops[0] + ':'
            if back in labs: out.extend(r)
        return kernel_text(n, out.text(), vgpr=512, sgpr=102, acc=256), LDS_TOTAL

if __name__ == '__main__':
    import sys
    b = dict(nt_w=True)
    variants = [('fa_a_kernel', dict(b)), ('fa_c_kernel', dict(b, cstamp=True)), ('fa_forcebad_kernel', dict(b, force_bad=True))]
    hdr = ''; body = ''
    for nm, kw in variants:
        txt, lds = FA(name=nm, stamps=True, **kw).build()
        hdr += f"; @launch kernel={nm} grid=(256,1,1) block=(256,1,1) lds={lds}\n"
        body += txt
    open('fa.s', 'w').write(hdr + '.amdgcn_target "amdgcn-amd-amdhsa--gfx950"\n.text\n' + body)
```

```python
from asmlib import *

XCH_OFF = 32 << 20
FLAG_OFF = 48 << 20
WSL = 8192
NS = 5
LDS = 163840
WREG = 40960

def rng(f, b, n=4): return f"{f}[{b}:{b+n-1}]"
def acc(t, jl):
    k = t * 8 + jl
    return ('a', 4 * k) if k < 64 else ('v', 200 + 4 * (k - 64))
V_B = [32, 68, 104, 140]
V_A = 176 - 0
A_REG = [176, 180, 184, 188, 192, 196, 232, 236]

def gen_oproj(name='oproj_kernel', stamps=False, rt=False, dbg=False, nt_w=False, xfl=' sc1', x_noO=False, x_noW=False, x_noA=False, spacing=3, out_fl=''):
    RT = 's_memrealtime' if (dbg or rt) else 's_memtime'
    ntw = ' nt' if nt_w else ''
    P = Prog()
    def stamp(X, i):
        if stamps: X(f"s_waitcnt lgkmcnt(0)\n{RT} s[50:51]\ns_waitcnt lgkmcnt(0)\ns_mov_b32 s{60+i}, s50")
    P(f"""
    s_cmp_ge_u32 s2, 256
    s_cbranch_scc1 {name}_done
    s_load_dwordx2 s[4:5], s[0:1], 96
    s_load_dwordx2 s[6:7], s[0:1], 80
    s_load_dwordx2 s[8:9], s[0:1], 32
    s_load_dwordx2 s[10:11], s[0:1], 72
    v_lshrrev_b32 v1, 6, v0
    v_and_b32 v2, 63, v0
    v_readfirstlane_b32 s24, v1
    s_and_b32 s32, s2, 7
    s_lshr_b32 s33, s2, 3
    s_lshr_b32 s25, s32, 2
    s_and_b32 s28, s33, 1
    s_and_b32 s34, s32, 1
    s_lshl_b32 s34, s34, 2
    s_lshr_b32 s35, s33, 1
    s_and_b32 s35, s35, 3
    s_add_u32 s26, s34, s35
    s_lshr_b32 s34, s32, 1
    s_and_b32 s34, s34, 1
    s_lshl_b32 s34, s34, 2
    s_lshr_b32 s35, s33, 3
    s_add_u32 s27, s34, s35
    s_and_b32 s29, s24, 1
    s_lshr_b32 s30, s24, 1
    """)
    P("""
    v_lshlrev_b32 v10, 4, v2
    v_add_u32 v11, 4096, v10
    v_add_u32 v12, 8192, v10
    v_lshrrev_b32 v3, 4, v2
    v_and_b32 v4, 15, v2
    v_lshlrev_b32 v5, 2, v3
    v_xor_b32 v4, v4, v5
    v_lshlrev_b32 v4, 4, v4
    v_lshlrev_b32 v5, 11, v3
    v_add_u32 v13, v5, v4
    """)
    for m in range(8):
        P(f"v_xor_b32 v{14+m}, {16*(m >> 1)}, v13\nv_add_u32 v{14+m}, {m*8192}, v{14+m}")
    P(f"""
    v_lshrrev_b32 v3, 2, v2
    v_and_b32 v3, 3, v3
    v_lshrrev_b32 v4, 4, v2
    v_and_b32 v5, 3, v2
    v_xor_b32 v5, v5, v4
    v_lshlrev_b32 v5, 4, v5
    v_lshlrev_b32 v6, 6, v3
    v_add_u32 v5, v5, v6
    v_lshlrev_b32 v6, 3, v4
    v_add_u32 v6, v6, v3
    v_lshlrev_b32 v6, 8, v6
    s_mul_i32 s75, s24, {WREG}
    v_add_u32 v6, s75, v6
    """)
    for lp in range(4):
        P(f"s_xor_b32 s32, s24, {lp}\ns_lshl_b32 s32, s32, 6\nv_xor_b32 v7, s32, v5\nv_add_u32 v{22+lp}, v6, v7")
    P("s_waitcnt lgkmcnt(0)")
    stamp(P, 0)
    P(f"""
    s_add_u32 s52, s4, {FLAG_OFF}
    s_addc_u32 s53, s5, 0
    s_lshl_b32 s32, s25, 3
    s_add_u32 s32, s32, s26
    s_mul_i32 s32, s32, {32*36864}
    s_add_u32 s12, s4, s32
    s_addc_u32 s13, s5, 0
    s_and_b32 s13, s13, 0xffff
    s_mov_b32 s14, {32*36864}
    s_mov_b32 s15, 0x20000
    s_cmp_eq_u32 s25, 0
    s_cselect_b32 s16, s8, s10
    s_cselect_b32 s17, s9, s11
    s_lshl_b32 s32, s27, 8
    s_add_u32 s16, s16, s32
    s_addc_u32 s17, s17, 0
    s_and_b32 s17, s17, 0xffff
    s_sub_u32 s18, {4096*2048}, s32
    s_mov_b32 s19, 0x20000
    s_lshl_b32 s32, s28, 4
    s_lshl_b32 s33, s24, 2
    s_add_u32 s32, s32, s33
    s_mul_i32 s36, s32, 36864
    s_add_u32 s38, s36, {4*36864}
    s_lshl_b32 s37, s32, 18
    s_add_u32 s39, s37, {16 << 16}
    """)
    def o_groups(bset):
        L = [[f"s_cmp_lt_u32 s36, s38", f"s_cselect_b32 s41, s36, {32*36864}"]]
        for t in range(9):
            b = V_B[bset] + 4 * t
            L.append([f"buffer_load_dwordx4 {rng('v', b)}, v{10 + (t >> 2)}, s[12:15], s41 offen offset:{(t & 3)*1024}"])
        L.append([f"s_add_u32 s36, s36, 9216"])
        return L
    def w_groups(slot=None):
        L = [[f"s_cmp_lt_u32 s37, s39", f"s_cselect_b32 s42, s37, {4096*2048}"]]
        for m in range(8):
            L.append([f"s_add_u32 m0, s77, {m*1024}", f"buffer_load_dwordx4 v{14+m}, s[16:19], s42 offen{ntw} lds"])
        L.append([f"s_add_u32 s37, s37, 65536", f"s_add_u32 s77, s77, {WSL}", f"s_cmp_eq_u32 s77, s79", f"s_cselect_b32 s77, s75, s77"])
        return L
    def a_addr():
        return [[f"v_add_u32 v{26+lp}, s78, v{22+lp}"] for lp in range(4)] + [[f"s_add_u32 s78, s78, {WSL}", f"s_cmp_eq_u32 s78, {NS*WSL}", f"s_cselect_b32 s78, 0, s78"]]
    def a_reads(slot, jl):
        a = A_REG[jl]
        lp, h = jl >> 1, jl & 1
        return [[f"ds_read_b64_tr_b16 v[{a}:{a+1}], v{26+lp} offset:{8*h}"],
                [f"ds_read_b64_tr_b16 v[{a+2}:{a+3}], v{26+lp} offset:{8*h + 1024}"]]
    P(f"s_mov_b32 s77, s75\ns_add_u32 s79, s75, {NS*WSL}\ns_mov_b32 s78, 0")
    order = [('W', 0), ('O', 0), ('W', 1), ('O', 1), ('W', 2), ('O', 2), ('W', 3), ('W', 4)]
    for kind, i in order[:3]:
        for g in (w_groups(i) if kind == 'W' else o_groups(i)):
            for x in g: P(x)
    for r in range(4): P(f"v_mov_b32 v{4+r}, 0")
    Z = []
    for t in range(9):
        for jl in range(8):
            f, b = acc(t, jl)
            Z.append(f"v_mfma_f32_16x16x32_bf16 {rng(f, b)}, v[4:7], v[4:7], 0")
    G = []
    for kind, i in order[3:]:
        G += (w_groups(i) if kind == 'W' else o_groups(i))
    zi = 0
    for g in G:
        for x in g: P(x)
        for _ in range(2):
            if zi < len(Z): P(Z[zi]); zi += 1
    for z in Z[zi:]: P(z)
    P("s_waitcnt vmcnt(59)")
    for g in a_addr():
        for x in g: P(x)
    for jl in range(8):
        for g in a_reads(0, jl):
            for x in g: P(x)
    for g in a_addr():
        for x in g: P(x)
    P("s_waitcnt lgkmcnt(0)")
    stamp(P, 1)
    P("s_mov_b32 s31, 4")
    pre, _ = finalize_linear(P.items)
    out = Prog(); out.extend(pre)
    body = Prog()
    for r in range(4):
        body(f"s_waitcnt vmcnt(42)")
        M = []
        for jl in range(8):
            for t in range(9):
                f, b = acc(t, jl)
                M.append(f"v_mfma_f32_16x16x32_bf16 {rng(f, b)}, {rng('v', A_REG[jl])}, {rng('v', V_B[r] + 4*t)}, {rng(f, b)}")
        fill = [[] for _ in M]
        for jl in range(8):
            R = a_reads((r + 1) % NS, jl)
            p = 9 * jl + 8
            fill[p] += R[0]
            fill[min(p + 1, len(M) - 1)] += R[1]
        fill[6].append("s_waitcnt lgkmcnt(0)")
        DO, DW = o_groups((r + 3) % 4), w_groups(r)
        if x_noO: DO = []
        if x_noW: DW = []
        if x_noA: fill = [[] for _ in M]
        free = [i for i in range(len(M)) if not fill[i]]
        k = 0
        for g in DO:
            fill[free[k]] += g
            if any('buffer_load' in y for y in g): k += spacing
        k = max(k, next(i for i, v in enumerate(free) if v > 8))
        for g in DW:
            pos = free[min(k, len(free) - 1)]
            if 'm0' in g[0] and pos > 0 and not any('buffer_load' in y and 'lds' in y for y in fill[pos - 1]):
                fill[pos - 1].append(g[0]); fill[pos] += g[1:]
            else: fill[pos] += g
            if any('buffer_load' in y for y in g): k += spacing
        for g in a_addr(): fill[len(M) - 1] += g
        for m, f in zip(M, fill):
            body(m)
            for x in f: body(x)
    body("s_sub_u32 s31, s31, 1")
    body("s_cmp_lg_u32 s31, 0")
    b_items, fifo = finalize_loop(body.items)
    out.label(f"{name}_loop")
    out.extend(b_items)
    out(f"s_cbranch_scc1 {name}_loop")
    E = Prog()
    stamp(E, 2)
    E("s_waitcnt vmcnt(0) lgkmcnt(0)\ns_nop 7\ns_barrier")
    E("v_lshlrev_b32 v3, 4, v2")
    def q_src(t, jl):
        f, b = acc(t, jl)
        return rng(f, b)
    for rnd, ts in enumerate((range(0, 5), range(5, 9))):
        nq = 2 * len(ts)
        reg = nq * 1024
        if rnd: E("s_waitcnt lgkmcnt(0)\ns_barrier")
        for lp in range(1, 4):
            E(f"""
            s_xor_b32 s32, s24, {lp}
            s_mul_i32 s32, s32, {3*reg}
            s_add_u32 s32, s32, {(lp-1)*reg}
            v_add_u32 v{3+lp}, s32, v3
            """)
        for lp in range(1, 4):
            for i, t in enumerate(ts):
                for x in range(2):
                    E(f"ds_write_b128 v{3+lp}, {q_src(t, 2*lp + x)} offset:{(i*2+x)*1024}")
        if rnd == 0:
            for t in range(9):
                for x in range(2):
                    f, b = acc(t, x)
                    for r in range(4):
                        if f == 'a': E(f"v_accvgpr_read_b32 v{32+8*t+4*x+r}, a{b+r}")
                        else: E(f"v_mov_b32 v{32+8*t+4*x+r}, v{b+r}")
        E(f"s_mul_i32 s32, s24, {3*reg}\nv_add_u32 v7, s32, v3")
        E("s_waitcnt lgkmcnt(0)\ns_barrier")
        for i, t in enumerate(ts):
            for rk in range(3):
                for x in range(2):
                    E(f"ds_read_b128 {rng('v', 104 + (rk*2+x)*4 + 24*(i % 3))}, v7 offset:{rk*reg + (i*2+x)*1024}")
            for rk in range(3):
                for r in range(8):
                    E(f"v_add_f32 v{32+8*t+r}, v{32+8*t+r}, v{104 + rk*8 + 24*(i % 3) + r}")
    E("v_lshlrev_b32 v3, 4, v2")
    E(f"""
    s_lshl_b32 s32, s2, 1
    s_add_u32 s32, s32, s29
    s_mul_i32 s32, s32, 18432
    s_add_u32 s44, s4, s32
    s_addc_u32 s45, s5, 0
    s_add_u32 s44, s44, {XCH_OFF}
    s_addc_u32 s45, s45, 0
    s_and_b32 s45, s45, 0xffff
    s_mov_b32 s46, 18432
    s_mov_b32 s47, 0x20000
    s_xor_b32 s33, s2, 8
    s_lshl_b32 s32, s33, 1
    s_add_u32 s32, s32, s29
    s_mul_i32 s32, s32, 18432
    s_add_u32 s56, s4, s32
    s_addc_u32 s57, s5, 0
    s_add_u32 s56, s56, {XCH_OFF}
    s_addc_u32 s57, s57, 0
    s_and_b32 s57, s57, 0xffff
    s_mov_b32 s58, 18432
    s_mov_b32 s59, 0x20000
    """)
    E(f"s_cmp_eq_u32 s30, s28\ns_cbranch_scc1 {name}_keep")
    for t in range(9):
        for x in range(2):
            E(f"s_mov_b32 s76, {(t*2+x)*1024}\nbuffer_store_dwordx4 {rng('v', 32+8*t+4*x)}, v3, s[44:47], s76 offen{xfl}")
    E(f"""
    s_waitcnt vmcnt(0)
    s_xor_b32 s33, s2, 8
    s_lshl_b32 s33, s33, 7
    s_lshl_b32 s34, s29, 2
    s_add_u32 s33, s33, s34
    v_mov_b32 v6, s33
    v_mov_b32 v7, 1
    s_mov_b64 exec, 1
    global_store_dword v6, v7, s[52:53] sc1
    s_mov_b64 exec, -1
    s_branch {name}_sync
    """)
    E.label(f"{name}_keep")
    E(f"""
    s_lshl_b32 s33, s2, 7
    s_lshl_b32 s34, s29, 2
    s_add_u32 s33, s33, s34
    v_mov_b32 v6, s33
    s_mov_b32 s35, 0x100000
    """)
    E.label(f"{name}_poll")
    E(f"""
    global_load_dword v7, v6, s[52:53] sc1
    s_waitcnt vmcnt(0)
    v_readfirstlane_b32 s33, v7
    s_sub_u32 s35, s35, 1
    s_cmp_eq_u32 s33, 1
    s_cbranch_scc1 {name}_sync
    s_sleep 1
    s_cmp_lg_u32 s35, 0
    s_cbranch_scc1 {name}_poll
    """)
    E.label(f"{name}_sync")
    stamp(E, 4)
    E("s_barrier")
    E(f"s_cmp_lg_u32 s30, s28\ns_cbranch_scc1 {name}_fin")
    for t in range(9):
        for x in range(2):
            E(f"s_mov_b32 s76, {(t*2+x)*1024}\nbuffer_load_dwordx4 {rng('v', 104 + 8*t + 4*x)}, v3, s[56:59], s76 offen{' sc1' if xfl else ''}")
    E(f"""
    s_mul_i32 s32, s26, {144*4096}
    s_lshl_b32 s33, s25, 11
    s_add_u32 s32, s32, s33
    s_lshl_b32 s33, s27, 8
    s_add_u32 s32, s32, s33
    s_lshl_b32 s33, s24, 6
    s_add_u32 s32, s32, s33
    s_add_u32 s20, s6, s32
    s_addc_u32 s21, s7, 0
    s_and_b32 s21, s21, 0xffff
    s_sub_u32 s22, {8*144*4096}, s32
    s_mov_b32 s23, 0x20000
    v_and_b32 v9, 15, v2
    v_lshlrev_b32 v9, 12, v9
    v_lshrrev_b32 v21, 4, v2
    v_lshlrev_b32 v21, 4, v21
    v_add_u32 v9, v9, v21
    """)
    for t in range(9):
        src = 104 + 8 * t
        E(f"s_waitcnt vmcnt({2*(8-t) + t})")
        for r in range(8): E(f"v_add_f32 v{32+8*t+r}, v{32+8*t+r}, v{src+r}")
        for r in range(4): E(f"v_cvt_pk_bf16_f32 v{208+4*(t % 3)+r}, v{32+8*t+2*r}, v{33+8*t+2*r}")
        E(f"s_mov_b32 s33, {t*16*4096}")
        E(f"buffer_store_dwordx4 {rng('v', 208+4*(t % 3))}, v9, s[20:23], s33 offen{out_fl}")
    E.label(f"{name}_fin")
    stamp(E, 3)
    if stamps and not dbg:
        E(f"""s_lshl_b32 s32, s2, 2
        s_add_u32 s32, s32, s24
        s_lshl_b32 s32, s32, 6
        s_add_u32 s32, s32, {(64 << 20) + (1 << 17)}
        s_add_u32 s4, s4, s32
        s_addc_u32 s5, s5, 0
        v_mov_b32 v2, 0""")
        for i in range(5):
            E(f"v_mov_b32 v3, s{60+i}\nglobal_store_dword v2, v3, s[4:5] offset:{4*i}")
    e_items, _ = finalize_linear(E.items)
    out.extend(e_items)
    out.label(f"{name}_done")
    out("s_endpgm")
    return kernel_text(name, out.text(), vgpr=512, sgpr=96, acc=256), LDS
```

```python
import sys, importlib
sys.path.insert(0, 'gen')
import fa as fa_mod, fa_v2, fa_v3, oproj3, oproj4, oproj5, oproj5b, oproj6
def make(path, fa_kw=None, op_kw=None, order='fo', mod=fa_mod, opmod=oproj3):
    f = mod.FA(name='fa_kernel', **(fa_kw or {}))
    t1, l1 = f.build()
    t2, l2 = opmod.gen_oproj('oproj_kernel', **(op_kw or {}))
    hdr = open('concat_heads__mha_block_cached__gqa_block_cached__near_ridge.s.ref').read().split('; Override')[0]
    for k in order:
        if k == 'f': hdr += f"; @launch kernel=fa_kernel grid=(256,1,1) block=(256,1,1) lds={l1}\n"
        else: hdr += f"; @launch kernel=oproj_kernel grid=(256,1,1) block=(256,1,1) lds={l2}\n"
    open(path, 'w').write(hdr + '.amdgcn_target "amdgcn-amd-amdhsa--gfx950"\n.text\n' + t1 + t2)
def make_fused(path, fa_kw=None, op_kw=None, kname='fa_kernel', listfmt=True):
    op = oproj4.gen_oproj(kname + '_o', fused=True, **(op_kw or {}))
    kw = dict(fa_kw or {})
    kw['op_label'] = kname + '_op'
    f = fa_mod.FA(name=kname, fuse=op, **kw)
    t1, l1 = f.build()
    hdr = open('concat_heads__mha_block_cached__gqa_block_cached__near_ridge.s.ref').read().split('; Override')[0]
    if listfmt: hdr += f"; @launch kernel={kname} grid=(256,1,1) block=(256,1,1) lds={l1}\n"
    else: hdr += f"; @launch grid=(256,1,1) block=(256,1,1) lds={l1}\n"
    open(path, 'w').write(hdr + '.amdgcn_target "amdgcn-amd-amdhsa--gfx950"\n.text\n' + t1)
if __name__ == '__main__':
    M = 'cdna_kernels/'
    base = dict(op_label='oproj_kernel', nt_w=True, pf_code2=True, st_flags=' sc1', omt=True, pf_wo=True)
    make(M + 'concat_heads__mha_block_cached__gqa_block_cached__near_ridge.s', fa_kw=dict(base, pf_late_g=4), op_kw=dict(out_fl=' sc1'), opmod=oproj5)
    make(M + 'o1.s', fa_kw=dict(base, pf_late_g=0), op_kw=dict(out_fl=' sc1'), opmod=oproj5)
    make(M + 'e_a.s', fa_kw=dict(base, pf_late_g=8), op_kw=dict(out_fl=' sc1'), opmod=oproj5)
```

```python
from asmlib import *
import math

RING = 0
SLOT = 32768
STG = 98304
XB = [STG, STG + 18432]
WB = [STG + 36864 + 8192 * i for i in range(3)]
QX = STG
LDS_TOTAL = 163840
O_WS_OFF = 0
CSCALE = math.log2(math.e) / math.sqrt(128.0)

import struct
def f2u(x): return struct.unpack('<I', struct.pack('<f', x))[0]

V_LANE = 1
V_RING = 10
V_KPAT, V_VPAT, V_KA, V_VA = 20, 24, 28, 32
V_P = 36
V_MX, V_T1, V_T2, V_T3 = 48, 49, 50, 51
V_ONES = 52
V_NEGM = 56
V_L = 76
V_S = 96
V_KF = {'A': 120, 'B': 184}
V_VF = {'A': 152, 'B': 216}
A_O = 0
A_Q = 160
V_XD, V_WD = 106, 98
V_WD2 = 96
V_WPH = 112
V_ZERO = 116
QXBASE = 98304
V_PFW, V_PFX, V_PFD = 14, 15, 16
V_RINGK, V_RINGV = 17, 18
V_RINGH = 248
V_VA2 = 252
V_XPAT = 100
V_WPAT = 104
V_XA = 106
V_WA = 110
QF_W = [120, 156]
QF_X = [136, 172]

S_W, S_QH, S_HH, S_BLK, S_B, S_H0 = 24, 25, 26, 27, 28, 29
S_CH, S_DSLOT, S_RSLOT, S_CNT = 30, 31, 32, 33
S_T = 34
S_GOFF, S_LB, S_TMP, S_TMP2 = 41, 42, 40, 43
S_DWRAP, S_DBASE = 30, 42
S_XI, S_WI, S_XOFF, S_WOFF, S_XBUF, S_WBUF, S_XRB, S_WRB = 44, 45, 46, 47, 48, 49, 50, 51
S_XW_G, S_XW_L = 54, 55
S_XC = 96
S_WW_L, S_WLIM = 101, 56
S_BAD, S_SAFE, S_NREC2 = 44, 45, 53
S_KOOB = 51
S_FREE = 49
S_ITEM = 58
S_FL = 59
S_QI = 70
S_FLAG = 72
S_LATE, S_PR, S_FI, S_FMAX, S_FG, S_FL2 = 71, 74, 75, 52, 53, 56
S_KVO = 66

QP_PAT = [98, 99, 100, 101, 102, 103, 104, 105, 106, 107, 108, 109, 110]
def qacc(k): return (56 + 4 * k) if k < 10 else (192 + 4 * (k - 10))
def acc_o(slot, jl): return A_O + slot * 32 + jl * 4
def q_frag(slot, jp): return A_Q + slot * 16 + jp * 4
def rng(f, b, n=4): return f"{f}[{b}:{b+n-1}]"

def interleave(M, fillers, start=0):
    out = []
    k = 0
    for i, m in enumerate(M):
        out.append(m)
        if i >= start and k < len(fillers):
            out += fillers[k]; k += 1
    while k < len(fillers):
        out += fillers[k]; k += 1
    return out

def spread(M, groups, start=0):
    m = len(M) - start
    n = len(groups)
    out = []
    for i, x in enumerate(M):
        out.append(x)
        if i >= start:
            k = i - start
            for g in groups[(k * n) // m:((k + 1) * n) // m]:
                out += g
    return out

class FA:
    def __init__(self, name='fa_kernel', nt_kv=True, nt_w=False, nt_x=False, dbg=None, order='early', stamps=False, pf_qp=True, pf_att=True, late_bit=1, x_nodma=False, x_nosm=False, x_nobr=False, x_nord=False, x_nobar=False, x_qv=False, q_nodma=False, q_nord=False, q_nobar=False, q_nowait=False, same_kv=False, x_nohead=False, x_noX=False, x_nomax=False, fill_qp=True, fast=True, force_bad=False, pf_wo=False, pf_code=False, op_label=None, dbg_stamps=None, pf0=False, pf1=False, pf_nt=False, qstamp=False, cstamp=False, st_flags='', qp0_nt=False, pf0x=False, rot=False, pf_tlb=False, dbg_rt=False, pf_code2=False, kvreg=False, kvdma=True, qn1=4, cfast=True, c_nost=False, c_nonan=False, c_now=False, fuse=None, omt=False, op_end='oproj_kernel_done', altmap=False, pf_wo_early=False, pf_wo_spread=False, pf_late_g=4, wsb=0, pf_wo_qp=False):
        self.pf_wo_qp = pf_wo_qp
        self.wsb = wsb
        self.pf_late_g = pf_late_g
        self.pf_wo_spread = pf_wo_spread
        self.pf_wo_early = pf_wo_early
        self.altmap = altmap
        self.op_end = op_end
        self.omt = omt
        self.fuse = fuse
        self.c_nost, self.c_nonan, self.c_now = c_nost, c_nonan, c_now
        self.cfast = cfast
        self.qn1 = qn1
        self.kvdma = kvdma
        self.kvreg = kvreg
        self.pf_code2 = pf_code2
        self.dbg_rt = dbg_rt
        self.pf_tlb = pf_tlb
        self.rot = rot
        self.st_flags, self.qp0_nt, self.pf0x = st_flags, qp0_nt, pf0x
        self.cstamp = cstamp
        self.qstamp = qstamp
        self.pf0, self.pf1 = pf0, pf1
        self.pf_nt = ' nt' if pf_nt else ''
        self.dbg_stamps = dbg_stamps
        self.pf_wo, self.pf_code, self.op_label = pf_wo, pf_code, op_label
        self.fast = fast
        self.force_bad = force_bad
        self.fill_qp = fill_qp
        self.x_nomax = x_nomax
        self.x_nohead, self.x_noX = x_nohead, x_noX
        self.same_kv = same_kv
        self.q_nowait = q_nowait
        self.q_nodma, self.q_nord, self.q_nobar = q_nodma, q_nord, q_nobar
        self.x_nodma, self.x_nosm, self.x_nobr, self.x_nord, self.x_nobar, self.x_qv = x_nodma, x_nosm, x_nobr, x_nord, x_nobar, x_qv
        self.pf_qp = pf_qp
        self.pf_att = pf_att
        self.late_bit = late_bit
        self.stamps = stamps
        self.nst = 0
        self.name = name
        self.nt_kv = ' nt' if nt_kv else ''
        self.nt_w = ' nt' if nt_w else ''
        self.nt_x = ' nt' if nt_x else ''
        self.dbg = dbg
        self.order = order
        self.rare = []
        self.uid = 0

    def setup(self):
        P = Prog()
        n = self.name
        P(f"""
        s_cmp_ge_u32 s2, 256
        s_cbranch_scc1 {n}_done
        s_and_b32 s39, s2, 7
        s_lshr_b32 s40, s2, 3
        {'s_and_b32' if self.altmap else 's_lshr_b32'} s{S_BLK}, s39, {1 if self.altmap else 2}
        {'s_lshr_b32' if self.altmap else 's_and_b32'} s39, s39, {1 if self.altmap else 3}
        s_and_b32 s{S_B}, s40, 7
        s_lshr_b32 s40, s40, 3
        s_mov_b32 s{S_PR}, s40
        s_lshl_b32 s39, s39, 3
        s_lshl_b32 s40, s40, 1
        s_add_u32 s{S_H0}, s39, s40
        s_mul_i32 s39, s{S_BLK}, 40
        s_add_u32 s60, s0, s39
        s_addc_u32 s61, s1, 0
        s_load_dwordx2 s[4:5], s[60:61], 0
        s_load_dwordx2 s[62:63], s[60:61], 8
        s_load_dwordx2 s[64:65], s[60:61], 16
        s_load_dwordx2 s[66:67], s[60:61], 24
        s_load_dwordx2 s[68:69], s[0:1], 96
        s_load_dwordx2 s[76:77], s[60:61], 32
        v_lshrrev_b32 v2, 6, v0
        v_and_b32 v{V_LANE}, 63, v0
        v_readfirstlane_b32 s{S_W}, v2
        s_and_b32 s{S_QH}, s{S_W}, 1
        s_lshr_b32 s{S_HH}, s{S_W}, 1
        """)
        L = V_LANE
        P(f"""
        v_lshrrev_b32 v2, 4, v{L}
        v_and_b32 v3, 15, v{L}
        v_xor_b32 v4, v3, v2
        v_lshlrev_b32 v5, 2, v2
        v_xor_b32 v5, v3, v5
        v_lshlrev_b32 v4, 4, v4
        v_lshlrev_b32 v5, 4, v5
        v_lshlrev_b32 v2, 8, v2
        v_add_u32 v{V_RINGK}, v4, v2
        v_add_u32 v{V_RINGV}, v5, v2
        s_cmp_eq_u32 s{S_QH}, 0
        s_cselect_b32 s39, 64, 16
        s_cselect_b64 vcc, -1, 0
        v_cndmask_b32 v{V_RING}, v{V_RINGV}, v{V_RINGK}, vcc
        v_xor_b32 v{V_RING+1}, s39, v{V_RING}
        s_lshl_b32 s40, s39, 1
        v_xor_b32 v{V_RING+2}, s40, v{V_RING}
        s_add_u32 s40, s40, s39
        v_xor_b32 v{V_RING+3}, s40, v{V_RING}
        v_add_u32 v{V_RINGH}, 4096, v{V_RING}
        v_add_u32 v{V_RINGH+1}, 4096, v{V_RING+1}
        v_add_u32 v{V_RINGH+2}, 4096, v{V_RING+2}
        v_add_u32 v{V_RINGH+3}, 4096, v{V_RING+3}
        """)
        P(self.pf_setup())
        P(f"""
        v_and_b32 v3, 15, v{L}
        v_lshrrev_b32 v2, 4, v{L}
        v_xor_b32 v4, v2, v3
        v_lshlrev_b32 v4, 4, v4
        v_lshlrev_b32 v5, 8, v3
        s_lshl_b32 s39, s{S_HH}, 14
        v_add_u32 v5, s39, v5
        """)
        for jp in range(4):
            P(f"v_xor_b32 v6, {64*jp}, v4\nv_add_u32 v{V_KPAT+jp}, v5, v6")
        P(f"""
        v_lshrrev_b32 v3, 2, v{L}
        v_and_b32 v3, 3, v3
        v_and_b32 v4, 3, v{L}
        v_xor_b32 v4, v4, v2
        v_lshlrev_b32 v4, 4, v4
        v_lshlrev_b32 v5, 6, v3
        v_add_u32 v4, v4, v5
        v_lshlrev_b32 v5, 2, v2
        v_add_u32 v5, v5, v3
        v_lshlrev_b32 v5, 8, v5
        s_lshl_b32 s39, s{S_HH}, 14
        s_add_u32 s39, s39, 8192
        v_add_u32 v5, s39, v5
        """)
        for ml in range(4):
            P(f"""
            s_lshl_b32 s39, s{S_HH}, 1
            s_add_u32 s39, s39, {ml}
            s_and_b32 s39, s39, 3
            s_lshl_b32 s39, s39, 6
            v_xor_b32 v6, s39, v4
            v_add_u32 v{V_VPAT+ml}, v5, v6
            """)
        if self.pf_code:
            P(f"""
            s_lshr_b32 s39, s2, 3
            s_cmp_ge_u32 s39, 16
            s_cbranch_scc1 {n}_npc
            s_cmp_lg_u32 s{S_W}, 0
            s_cbranch_scc1 {n}_npc
            s_getpc_b64 s[72:73]
            {n}_pc0:
            s_lshl_b32 s39, s39, 13
            s_add_u32 s72, s72, s39
            s_addc_u32 s73, s73, 0
            v_lshlrev_b32 v3, 7, v{L}
            global_load_dword v{V_PFD}, v3, s[72:73]
            {n}_npc:
            """)
        for r in range(4):
            P(f"v_mov_b32 v{V_ONES+r}, 0x3f803f80")
        P.extend(self.qp_patterns())
        P("s_waitcnt lgkmcnt(0)")
        if self.wsb: P(f"s_add_u32 s68, s68, {self.wsb}\ns_addc_u32 s69, s69, 0")
        P(f"""
        s_cmp_eq_u32 s{S_QH}, 0
        s_cselect_b32 s8, s62, s64
        s_cselect_b32 s9, s63, s65
        s_lshl_b32 s39, s{S_B}, 5
        s_add_u32 s39, s39, s{S_H0}
        s_lshr_b32 s40, s39, 14
        s_lshl_b32 s39, s39, {18 if not self.same_kv else 31}
        s_and_b32 s39, s39, {'-1' if not self.same_kv else '0'}
        s_add_u32 s8, s8, s39
        s_addc_u32 s9, s9, s40
        s_lshl_b32 s39, s{S_HH}, 13
        s_add_u32 s8, s8, s39
        s_addc_u32 s9, s9, 0
        s_and_b32 s9, s9, 0xffff
        s_sub_u32 s10, {2*262144}, s39
        s_mov_b32 s11, 0x20000
        s_mul_i32 s39, s{S_B}, {144*2048}
        s_add_u32 s12, s4, s39
        s_addc_u32 s13, s5, 0
        s_and_b32 s13, s13, 0xffff
        s_mov_b32 s14, {144*2048}
        s_mov_b32 s15, 0x20000
        s_lshl_b32 s39, s{S_H0}, 8
        s_add_u32 s16, s66, s39
        s_addc_u32 s17, s67, 0
        s_and_b32 s17, s17, 0xffff
        s_sub_u32 s18, {1024*8192}, s39
        s_mov_b32 s19, 0x20000
        s_lshl_b32 s39, s{S_BLK}, 3
        s_add_u32 s39, s39, s{S_B}
        s_lshl_b32 s39, s39, 5
        s_add_u32 s39, s39, s{S_H0}
        s_mul_i32 s39, s39, 36864
        s_add_u32 s20, s68, s39
        s_addc_u32 s21, s69, 0
        s_add_u32 s20, s20, {O_WS_OFF}
        s_addc_u32 s21, s21, 0
        s_and_b32 s21, s21, 0xffff
        s_mov_b32 s22, {2*36864}
        s_mov_b32 s23, 0x20000
        s_lshl_b32 s{S_DBASE}, s{S_W}, 13
        s_add_u32 s{S_DSLOT}, s{S_DBASE}, {SLOT if self.kvdma else 0}
        s_add_u32 s{S_DWRAP}, s{S_DBASE}, {3*SLOT}
        s_mov_b32 s{S_GOFF}, 0
        s_mov_b32 s{S_RSLOT}, {SLOT if self.kvdma else 0}
        s_mov_b32 s{S_ITEM}, 0
        s_mov_b32 s{S_QI}, 0
        s_mov_b32 s{S_FMAX}, 1
        s_lshl_b32 s39, s{S_B}, 5
        s_add_u32 s39, s39, s{S_H0}
        s_lshl_b32 s{S_KVO}, s39, 18
        s_mov_b32 s{S_KVO+1}, 0
        s_lshr_b32 s39, s{S_H0}, 3
        s_lshl_b32 s39, s39, 5
        s_lshr_b32 s40, s2, 3
        s_add_u32 s39, s39, s40
        s_lshl_b32 s39, s39, 16
        s_add_u32 s76, s76, s39
        s_addc_u32 s77, s77, 0
        s_and_b32 s77, s77, 0xffff
        s_mov_b32 s78, 65536
        s_mov_b32 s79, 0x20000
        v_lshlrev_b32 v19, 7, v{L}
        """)
        if self.order == 'early': P(f"s_mov_b32 s{S_LATE}, 0")
        elif self.order == 'late': P(f"s_mov_b32 s{S_LATE}, 1")
        else: P(f"s_lshr_b32 s{S_LATE}, s2, {self.late_bit}\ns_and_b32 s{S_LATE}, s{S_LATE}, 1")
        P(f"""s_xor_b32 s{S_FMAX}, s{S_LATE}, 1
        s_mov_b32 s{S_BAD}, 0
        s_mov_b32 s{S_SAFE}, 0
        s_mov_b32 s{S_NREC2}, s10
        s_mov_b32 s{S_QI}, 0""")
        if self.pf0:
            for x in self.pf_w(f"s{S_W}", "0"): P(x)
            for x in self.pf_x(f"s{S_W}"): P(x)
            P(f"s_add_u32 s39, s{S_W}, 4")
            for x in self.pf_x("s39"): P(x)
            P(f"s_add_u32 s39, s{S_W}, 8\ns_min_u32 s39, s39, 8")
            for x in self.pf_x("s39"): P(x)
            P(f"s_cmp_eq_u32 s{S_LATE}, 0\ns_cbranch_scc1 {n}_npf0")
            for x in self.pf_w(f"s{S_W}", "1"): P(x)
            P.label(f"{n}_npf0")
        if self.pf0x:
            for x in self.pf_x(f"s{S_W}"): P(x)
            P(f"s_add_u32 s39, s{S_W}, 4")
            for x in self.pf_x("s39"): P(x)
            P(f"s_add_u32 s39, s{S_W}, 8\ns_min_u32 s39, s39, 8")
            for x in self.pf_x("s39"): P(x)
            P(f"s_cmp_eq_u32 s{S_LATE}, 0\ns_cbranch_scc1 {n}_npf0x")
            for x in self.pf_w(f"s{S_W}", "1"): P(x)
            P.label(f"{n}_npf0x")
        if self.pf_tlb:
            P(f"""
            s_cmp_lg_u32 s{S_W}, 0
            s_cbranch_scc1 {n}_ntlb
            s_lshr_b32 s39, s2, 3
            s_lshl_b32 s39, s39, 18
            v_lshlrev_b32 v2, 13, v{V_LANE}
            s_mov_b32 exec_hi, 0
            buffer_load_dword v{V_PFD}, v2, s[16:19], s39 offen
            s_mul_i32 s39, s{S_PR}, {18*4096}
            v_lshlrev_b32 v2, 12, v{V_LANE}
            s_mov_b32 exec_lo, 0x3ffff
            buffer_load_dword v{V_PFD}, v2, s[12:15], s39 offen
            s_mov_b64 exec, -1
            {n}_ntlb:
            """)
        return P

    def ring_instrs(self):
        nt = self.nt_kv
        D = []
        for m in range(8):
            g = []
            if m == 0: g.append(f"s_mov_b32 m0, s{S_DSLOT}")
            if m == 4: g.append(f"s_add_u32 m0, s{S_DSLOT}, 4096")
            v = V_RING + m if m < 4 else V_RINGH + m - 4
            g.append(f"buffer_load_dwordx4 v{v}, s[8:11], s{S_GOFF} offen offset:{(m & 3) * 1024}{nt} lds")
            D.append(g)
        adv = [f"s_add_u32 s{S_GOFF}, s{S_GOFF}, 16384",
               f"s_add_u32 s{S_DSLOT}, s{S_DSLOT}, {SLOT}",
               f"s_cmp_eq_u32 s{S_DSLOT}, s{S_DWRAP}",
               f"s_cselect_b32 s{S_DSLOT}, s{S_DBASE}, s{S_DSLOT}"]
        return D, adv
    def ring_groups(self):
        D, adv = self.ring_instrs()
        return D + [adv]

    def ring_fill(self):
        P = Prog()
        for _ in range(3):
            for g in self.ring_groups():
                for x in g: P(x)
        return P

    def pf_setup(self):
        L = V_LANE
        return f"""
        v_lshrrev_b32 v2, 1, v{L}
        v_lshlrev_b32 v2, 13, v2
        v_and_b32 v3, 1, v{L}
        v_lshlrev_b32 v3, 7, v3
        v_add_u32 v{V_PFW}, v2, v3
        v_lshrrev_b32 v2, 4, v{L}
        v_lshlrev_b32 v2, 11, v2
        v_and_b32 v3, 15, v{L}
        v_lshlrev_b32 v3, 7, v3
        v_add_u32 v{V_PFX}, v2, v3
        """
    def pf_w(self, i_expr_sgpr, head_sgpr):
        return [f"s_lshl_b32 s{S_TMP}, s{S_B}, 20",
                f"s_lshl_b32 s{S_TMP2}, {i_expr_sgpr}, 18",
                f"s_add_u32 s{S_TMP}, s{S_TMP}, s{S_TMP2}",
                f"s_lshl_b32 s{S_TMP2}, {head_sgpr}, 8",
                f"s_add_u32 s{S_TMP}, s{S_TMP}, s{S_TMP2}",
                f"buffer_load_dword v{V_PFD}, v{V_PFW}, s[16:19], s{S_TMP} offen{self.pf_nt}"]
    def pf_x(self, i_expr):
        return [f"s_mul_i32 s{S_TMP}, s{S_PR}, {36*2048}",
                f"s_lshl_b32 s{S_TMP2}, {i_expr}, 13",
                f"s_add_u32 s{S_TMP}, s{S_TMP}, s{S_TMP2}",
                f"buffer_load_dword v{V_PFD}, v{V_PFX}, s[12:15], s{S_TMP} offen{self.pf_nt}"]

    def code_pf(self, label, uid, waves_chunks, end_label=None, pre=()):
        n = self.name
        end_label = end_label or f"{n}_done"
        return list(pre) + [f"s_cmp_ge_u32 s{S_W}, {waves_chunks}", f"s_cbranch_scc1 {n}_ncp{uid}",
                f"s_getpc_b64 s[60:61]", f"{n}_cp{uid}:",
                f"s_add_u32 s60, s60, {label}-{n}_cp{uid}", f"s_addc_u32 s61, s61, 0",
                f"s_lshl_b32 s39, s{S_W}, 13",
                f"v_add_u32 v2, s39, v19",
                f"s_mov_b32 s39, {end_label}-{label}",
                f"v_cmp_gt_u32 vcc, s39, v2",
                f"s_and_saveexec_b64 s[72:73], vcc",
                f"s_cbranch_execz {n}_rcp{uid}",
                f"global_load_dword v{V_PFD}, v2, s[60:61]",
                f"{n}_rcp{uid}:",
                f"s_mov_b64 exec, s[72:73]",
                f"{n}_ncp{uid}:"]

    def qp_patterns(self):
        L = V_LANE
        P = Prog()
        P(f"""
        v_lshrrev_b32 v2, 3, v{L}
        v_and_b32 v3, 7, v{L}
        v_lshrrev_b32 v4, 4, v{L}
        v_xor_b32 v3, v3, v4
        v_lshlrev_b32 v3, 4, v3
        v_lshlrev_b32 v2, 11, v2
        v_add_u32 v2, v2, v3
        """)
        for x in range(5):
            P(f"""
            s_mul_i32 s39, s{S_W}, 5
            s_add_u32 s39, s39, {x}
            s_cmp_gt_u32 s39, 17
            s_cselect_b32 s40, 2, 0
            s_sub_u32 s39, s39, s40
            s_lshl_b32 s{S_XC+x}, s39, 10
            s_and_b32 s40, s39, 1
            s_lshl_b32 s40, s40, 6
            v_xor_b32 v3, s40, v2
            s_lshl_b32 s39, s39, 14
            v_add_u32 v{V_XD+x}, s39, v3
            """)
        P(f"""
        v_lshrrev_b32 v2, 4, v{L}
        v_and_b32 v3, 15, v{L}
        v_lshlrev_b32 v4, 2, v2
        v_xor_b32 v3, v3, v4
        v_xor_b32 v3, s{S_W}, v3
        v_lshlrev_b32 v3, 4, v3
        v_lshlrev_b32 v4, 13, v2
        v_add_u32 v3, v3, v4
        s_lshl_b32 s39, s{S_W}, 16
        v_add_u32 v{V_WD}, s39, v3
        v_add_u32 v{V_WD+1}, 32768, v{V_WD}
        v_and_b32 v3, 15, v{L}
        v_lshrrev_b32 v4, 1, v3
        v_xor_b32 v4, v4, v2
        v_lshlrev_b32 v4, 4, v4
        v_lshlrev_b32 v5, 7, v3
        v_xor_b32 v6, 64, v4
        v_add_u32 v4, v4, v5
        v_add_u32 v6, v6, v5
        s_lshl_b32 s39, s{S_QH}, 13
        s_add_u32 s39, s39, {QXBASE}
        v_add_u32 v{V_XPAT}, s39, v4
        v_add_u32 v{V_XPAT+1}, s39, v6
        v_add_u32 v{V_XPAT+2}, {8*2048 + QXBASE}, v4
        v_add_u32 v{V_XPAT+3}, {8*2048 + QXBASE}, v6
        v_lshrrev_b32 v3, 2, v{L}
        v_and_b32 v3, 3, v3
        v_and_b32 v4, 3, v{L}
        v_xor_b32 v4, v4, v2
        v_lshlrev_b32 v4, 4, v4
        v_lshlrev_b32 v5, 6, v3
        v_add_u32 v4, v4, v5
        v_lshlrev_b32 v5, 3, v2
        v_add_u32 v5, v5, v3
        v_lshlrev_b32 v5, 8, v5
        """)
        for p in range(2):
            P(f"""
            s_xor_b32 s39, s{S_QH}, {p}
            s_lshl_b32 s40, s{S_HH}, 1
            s_add_u32 s39, s39, s40
            s_lshl_b32 s39, s39, 6
            v_xor_b32 v6, s39, v4
            v_add_u32 v{V_WPAT+p}, v5, v6
            """)
        for k, r in enumerate(QP_PAT): P(f"v_accvgpr_write_b32 a{240+k}, v{r}")
        P(f"s_lshl_b32 s{S_WW_L}, s{S_W}, 11")
        return P

    def qp2(self, tag):
        n = self.name
        L = V_LANE
        NX, NW = 3, 6
        XB0 = 98304
        PER = 6
        NIT = 4
        FW = [120, 172]; FX = [152, 204]
        P = Prog()
        for k, r in enumerate(QP_PAT): P(f"v_accvgpr_read_b32 v{r}, a{240+k}")
        P(f"""
        v_add_u32 v{V_WD2}, 256, v{V_WD}
        v_add_u32 v{V_WD2+1}, 256, v{V_WD+1}
        v_add_u32 v{V_WPH}, 65536, v{V_WPAT}
        v_add_u32 v{V_WPH+1}, 65536, v{V_WPAT+1}
        s_mov_b32 s{S_WOFF}, 0
        s_mov_b32 s{S_XOFF}, 0
        """)
        def x_groups(buf):
            G = []
            for x in range(5):
                G.append([f"s_add_u32 m0, s{S_XC+x}, {XB0 + buf*18432}",
                          f"buffer_load_dwordx4 v{V_XD+x}, s[12:15], s{S_XOFF} offen{self.nt_x} lds"])
            G.append([f"s_add_u32 s{S_XOFF}, s{S_XOFF}, 128"])
            return G
        def w_groups(buf):
            G = []
            for h in range(2):
                for x in range(2):
                    G.append([f"s_add_u32 m0, s{S_WW_L}, {buf*16384 + h*8192 + x*1024}",
                              f"buffer_load_dwordx4 v{(V_WD if h == 0 else V_WD2) + x}, s[16:19], s{S_WOFF} offen{self.nt_w} lds"])
            G.append([f"s_add_u32 s{S_WOFF}, s{S_WOFF}, {1 << 18}"])
            return G
        def read_groups(k, i):
            G = []
            wbuf = i % NW
            wp = V_WPAT if wbuf < 4 else V_WPH
            wb = (wbuf % 4) * 16384
            xb = ((i >> 1) % NX) * 18432
            ss = i & 1
            GX = []
            for t in range(4):
                GX.append([f"ds_read_b128 {rng('v', FX[k]+4*t)}, v{V_XPAT+ss} offset:{xb + t*2048}"])
            GX.append([f"ds_read_b128 {rng('v', FX[k]+16)}, v{V_XPAT+2+ss} offset:{xb}"])
            for h in range(2):
                for jl in range(4):
                    a = FW[k] + 16 * h + 4 * jl
                    p, hh = jl >> 1, jl & 1
                    G.append([f"ds_read_b64_tr_b16 v[{a}:{a+1}], v{wp+p} offset:{wb + h*8192 + 8*hh}"])
                    G.append([f"ds_read_b64_tr_b16 v[{a+2}:{a+3}], v{wp+p} offset:{wb + h*8192 + 8*hh + 1024}"])
            return G[:8] + GX + G[8:]
        def qa(h, k): return 72 * h + 4 * k
        def mf(k):
            M = []
            for h in range(2):
                for t in range(4):
                    for jl in range(4):
                        a = qa(h, 4 * t + jl)
                        M.append(f"v_mfma_f32_16x16x32_bf16 {rng('a', a)}, {rng('v', FW[k]+16*h+4*jl)}, {rng('v', FX[k]+4*t)}, {rng('a', a)}")
                for x in range(2):
                    a = qa(h, 16 + x)
                    M.append(f"v_mfma_f32_16x16x32_bf16 {rng('a', a)}, {rng('v', FW[k]+16*h+4*x)}, {rng('v', FX[k]+16)}, {rng('a', a)}")
            return M
        pro = []
        xi = wi = 0
        while xi < NX or wi < NW:
            if xi < NX and 2 * xi <= wi: pro.append(('X', xi)); xi += 1
            elif wi < NW: pro.append(('W', wi)); wi += 1
            else: pro.append(('X', xi)); xi += 1
        cnt = {'X': 5, 'W': 4, 'K': 8, 'P': 1}
        kv_at = {27: 0, 29: 1, 31: 2} if self.kvdma else {}
        seq = list(pro)
        def outstanding_after(need):
            idx = [i for i, it in enumerate(seq) if it in need]
            last = max(idx)
            return sum(cnt[k] for k, _ in seq[last + 1:])
        waits = {}
        for i in range(0, 32):
            need = set()
            if i + 1 < 32: need = {('W', i + 1), ('X', (i + 1) >> 1)}
            waits[i] = outstanding_after(need) if need else 63
            if i + NW < 32: seq.append(('W', i + NW))
            if (i & 1) and (i >> 1) + NX < 16: seq.append(('X', (i >> 1) + NX))
            if i in kv_at: seq.append(('K', kv_at[i]))
            if self.pf_wo_qp and i < NIT * PER and (i % PER) in (1, 4): seq.append(('P', i))
        wr = [min(waits[i] for i in range(r, NIT * PER, PER)) for r in range(PER)]
        assert max(wr) <= 63
        P("s_waitcnt vmcnt(0)\ns_barrier")
        def issue(lst):
            for kind, idx in lst:
                for g in (x_groups(idx) if kind == 'X' else w_groups(idx)):
                    for x in g: P(x)
        n1 = self.qn1
        n2 = len(pro)
        issue(pro[:n1])
        for r in range(0, 144, 4): P(f"v_mfma_f32_16x16x32_bf16 a[{r}:{r+3}], v[{V_ZERO}:{V_ZERO+3}], v[{V_ZERO}:{V_ZERO+3}], 0")
        issue(pro[n1:n2])
        w0 = sum(cnt[k] for k, _ in pro[2:n2])
        P(f"s_waitcnt vmcnt({w0})\ns_barrier")
        if self.qstamp:
            P(f"s_memtime s[72:73]\ns_waitcnt lgkmcnt(0)\ns_mov_b32 s82, s72")
        for g in read_groups(0, 0):
            for x in g: P(x)
        issue(pro[n2:])
        if self.pf_code2:
            for x in self.code_pf(f"{n}_hot0", 'a', 3): P(x)
        if self.pf_wo_early:
            for i in range(2):
                P(f"s_lshl_b32 s39, s{S_W}, 14\ns_add_u32 s39, s39, {8192*i}\nbuffer_load_dword v{V_PFD}, v19, s[76:79], s39 offen")
        P(f"s_waitcnt lgkmcnt(0)\ns_mov_b32 s{S_CNT}, {NIT}")
        Z = Prog()
        for r in range(4): Z(f"v_mov_b32 v{V_ZERO+r}, 0")
        P.items = Z.items + P.items
        pre, _ = finalize_linear(P.items)
        out = Prog(); out.extend(pre)
        def substep(body, i, wait, inloop=False):
            ss = i & 1
            body(f"s_waitcnt vmcnt({min(wait, 63)}) lgkmcnt(0)")
            body("s_barrier")
            R = read_groups(1 - ss, i + 1) if i + 1 < 32 else []
            D = []
            if i + NW < 32: D += w_groups(i % NW)
            if (i & 1) and (i >> 1) + NX < 16: D += x_groups((i >> 1) % NX)
            if i in kv_at: D += self.ring_groups()
            if self.pf_wo_qp and inloop and (i % PER) in (1, 4):
                D += [[f"s_sub_u32 s39, {NIT}, s{S_CNT}", f"s_lshl_b32 s39, s39, 1", f"s_add_u32 s39, s39, {0 if (i % PER) == 1 else 1}",
                       f"s_and_b32 s40, s39, 3", f"s_lshl_b32 s39, s39, 13", f"s_cmp_eq_u32 s40, s{S_W}", f"s_cselect_b32 s39, s39, 65536",
                       f"buffer_load_dword v{V_PFD}, v19, s[76:79], s39 offen"]]
            if self.q_nodma: D = []
            M = mf(ss)
            fill = [[] for _ in M]
            hv = []
            ri = di = 0
            while ri < len(R) or di < len(D):
                for _ in range(2):
                    if ri < len(R): hv.append(R[ri]); ri += 1
                if di < len(D): hv.append(D[di]); di += 1
            npos = len(M)
            k = 0
            for g in hv:
                pos = min(k, npos - 1)
                if 'm0' in g[0] and pos > 0 and not any('buffer_load' in y for y in fill[pos - 1]):
                    fill[pos - 1].append(g[0]); fill[pos] += g[1:]
                else:
                    fill[pos] += g
                if any(('ds_read' in y or 'buffer_load' in y) for y in g): k += 1
            for x in interleave(M, fill): body(x)
        body = Prog()
        for r in range(PER): substep(body, r, wr[r], True)
        if self.qstamp:
            body("s_waitcnt lgkmcnt(0)\ns_memtime s[72:73]\ns_waitcnt lgkmcnt(0)")
            for it in range(4):
                body(f"s_cmp_eq_u32 s{S_CNT}, {4 - it}\ns_cselect_b32 s{83+it}, s72, s{83+it}")
        body(f"s_sub_u32 s{S_CNT}, s{S_CNT}, 1\ns_cmp_lg_u32 s{S_CNT}, 0")
        b, _ = finalize_loop(body.items)
        out.label(f"{n}_qp{tag}")
        out.extend(b)
        out(f"s_cbranch_scc1 {n}_qp{tag}")
        tail = Prog()
        for i in range(NIT * PER, 32): substep(tail, i, waits[i])
        l1, f = auto_lgkm(b, None)
        l2, _ = auto_lgkm(tail.items, f)
        l3 = fix_hazards(l2, wrap=b)
        out.extend(l3)
        out.label(f"{n}_hot0")
        E = Prog()
        E("s_waitcnt lgkmcnt(0)\ns_nop 7\ns_barrier")
        e1, _ = finalize_linear(E.items)
        out.extend(e1)
        return out

    def qconv(self, h, with_fill, nfill=3):
        L = V_LANE
        C = Prog()
        C(f"""
        v_mov_b32 v8, {f2u(CSCALE):#x}
        v_lshlrev_b32 v2, 4, v{L}
        v_add_u32 v2, {QX}, v2
        s_lshl_b32 s40, s{S_QH}, 14
        s_lshl_b32 s{S_TMP2}, s{S_HH}, 11
        s_add_u32 s40, s40, s{S_TMP2}
        s_lshl_b32 s{S_TMP2}, s{S_QH}, 10
        s_add_u32 s{S_XOFF}, s40, s{S_TMP2}
        s_xor_b32 s{S_TMP2}, s{S_TMP2}, 1024
        s_add_u32 s{S_WOFF}, s40, s{S_TMP2}
        v_add_u32 v3, s{S_XOFF}, v2
        v_add_u32 v4, s{S_WOFF}, v2
        s_lshl_b32 s40, s{S_HH}, 11
        s_lshl_b32 s{S_TMP2}, s{S_QH}, 10
        s_add_u32 s40, s40, s{S_TMP2}
        v_add_u32 v5, s40, v2
        """)
        def conv(k0, dst):
            t = dst + 4
            for r in range(8): C(f"v_accvgpr_read_b32 v{t+r}, a{72*h + 4*k0 + r}")
            for r in range(8): C(f"v_mul_f32 v{t+r}, v8, v{t+r}")
            for r in range(4): C(f"v_cvt_pk_bf16_f32 v{dst+r}, v{t+2*r}, v{t+2*r+1}")
        k = 0
        for t in range(4):
            for p in range(2):
                d = 120 + 12 * (k % 9); k += 1
                conv(4 * t + 2 * p, d)
                C(f"ds_write_b128 v{3+p}, {rng('v', d)} offset:{t*4096}")
        d = 120 + 12 * (k % 9)
        conv(16, d)
        C(f"ds_write_b128 v5, {rng('v', d)} offset:{8*4096}")
        if with_fill:
            RF = []
            for _ in range(nfill): RF += self.ring_groups()
            CI = Prog()
            ci = C.items
            step = max(1, len(ci) // len(RF))
            k = 0
            for i, it in enumerate(ci):
                if i % step == 0 and k < len(RF):
                    for x in RF[k]: CI(x)
                    k += 1
                CI.items.append(it)
            while k < len(RF):
                for x in RF[k]: CI(x)
                k += 1
            C = CI
        C("s_waitcnt lgkmcnt(0)\ns_barrier")
        it, _ = finalize_linear(C.items)
        o = Prog(); o.extend(it)
        return o

    def lq(self):
        L = V_LANE
        P = Prog()
        P(f"""
        v_lshlrev_b32 v2, 4, v{L}
        v_add_u32 v2, {QX}, v2
        s_lshl_b32 s39, s{S_QH}, 14
        v_add_u32 v3, s39, v2
        """)
        for t in range(4):
            for jp in range(4):
                P(f"ds_read_b128 {rng('a', q_frag(t, jp))}, v3 offset:{t*4096 + jp*1024}")
        for jp in range(4):
            P(f"ds_read_b128 {rng('a', q_frag(4, jp))}, v2 offset:{8*4096 + jp*1024}")
        P("s_waitcnt lgkmcnt(0)")
        it, _ = finalize_linear(P.items)
        o = Prog(); o.extend(it)
        return o

    def s_mfmas(self, unit, sb):
        slot, fs = unit
        M = []
        for kt in range(2):
            for jp in range(4):
                d = V_S + sb * 8 + kt * 4
                c = rng('v', V_NEGM + slot * 4) if jp == 0 else rng('v', d)
                M.append(f"v_mfma_f32_16x16x32_bf16 {rng('v', d)}, {rng('v', V_KF[fs] + (kt*4+jp)*4)}, {rng('a', q_frag(slot, jp))}, {c}")
        return M
    def pv_mfmas(self, unit, pb):
        slot, fs = unit
        M = []
        p = rng('v', V_P + pb * 4)
        for jl in range(8):
            M.append(f"v_mfma_f32_16x16x32_bf16 {rng('a', acc_o(slot, jl))}, {rng('v', V_VF[fs] + jl*4)}, {p}, {rng('a', acc_o(slot, jl))}")
        M.append(f"v_mfma_f32_16x16x32_bf16 {rng('v', V_L + slot*4)}, {rng('v', V_ONES)}, {p}, {rng('v', V_L + slot*4)}")
        return M
    def max_ops(self, unit, sb):
        slot, fs = unit
        s = V_S + sb * 8
        return [[f"v_max3_f32 v{V_MX}, v{s}, v{s+1}, v{s+2}"],
                [f"v_max3_f32 v{V_MX}, v{V_MX}, v{s+3}, v{s+4}"],
                [f"v_max3_f32 v{V_MX}, v{V_MX}, v{s+5}, v{s+6}"],
                [f"v_max_f32 v{V_MX}, v{V_MX}, v{s+7}"],
                [f"v_cmp_lt_f32 vcc, s{S_T+slot}, v{V_MX}"]]
    def check_ops(self, unit, sb):
        slot, fs = unit
        s = V_S + sb * 8
        self.uid += 1
        u = self.uid
        lab_r, lab_b = f"{self.name}_rare{u}", f"{self.name}_back{u}"
        R = Prog()
        R.label(lab_r)
        R(f"""
        s_nop 7
        v_mov_b32 v{V_T1}, v{V_MX}
        s_nop 1
        v_permlane16_swap_b32 v{V_MX}, v{V_T1}
        s_nop 1
        v_max_f32 v{V_MX}, v{V_MX}, v{V_T1}
        v_mov_b32 v{V_T1}, v{V_MX}
        s_nop 1
        v_permlane32_swap_b32 v{V_MX}, v{V_T1}
        s_nop 1
        v_max_f32 v{V_MX}, v{V_MX}, v{V_T1}
        s_ashr_i32 s{S_FL}, s{S_T+slot}, 31
        s_and_b32 s{S_FL}, s{S_FL}, 0xff800000
        s_mov_b32 s{S_T+slot}, 0x41000000
        v_max_f32 v{V_MX}, s{S_FL}, v{V_MX}
        """)
        for r in range(8): R(f"v_sub_f32 v{s+r}, v{s+r}, v{V_MX}")
        for r in range(4): R(f"v_sub_f32 v{V_NEGM+slot*4+r}, v{V_NEGM+slot*4+r}, v{V_MX}")
        R(f"s_cmp_lg_u32 s{S_FL}, 0\ns_cbranch_scc1 {lab_b}")
        R(f"v_sub_f32 v{V_T1}, 0, v{V_MX}")
        R(f"v_exp_f32 v{V_T1}, v{V_T1}")
        R("s_nop 1")
        for r in range(4): R(f"v_mul_f32 v{V_L+slot*4+r}, v{V_L+slot*4+r}, v{V_T1}")
        for r in range(0, 32, 2):
            a = A_O + slot * 32 + r
            R(f"v_accvgpr_read_b32 v{V_T2}, a{a}\nv_accvgpr_read_b32 v{V_T3}, a{a+1}\nv_mul_f32 v{V_T2}, v{V_T2}, v{V_T1}\nv_mul_f32 v{V_T3}, v{V_T3}, v{V_T1}\nv_accvgpr_write_b32 a{a}, v{V_T2}\nv_accvgpr_write_b32 a{a+1}, v{V_T3}")
        R("s_nop 2")
        R(f"s_branch {lab_b}")
        self.rare.append(R)
        return [f"s_cbranch_vccnz {lab_r}", f"{lab_b}:"]
    def exp_ops(self, unit, sb, pb):
        s = V_S + sb * 8
        p = V_P + pb * 4
        return [[f"v_exp_f32 v{s}, v{s}"], [f"v_exp_f32 v{s+1}, v{s+1}"], [f"v_exp_f32 v{s+2}, v{s+2}"],
                [f"v_cvt_pk_bf16_f32 v{p}, v{s}, v{s+1}"],
                [f"v_exp_f32 v{s+3}, v{s+3}"], [f"v_exp_f32 v{s+4}, v{s+4}"],
                [f"v_cvt_pk_bf16_f32 v{p+1}, v{s+2}, v{s+3}"],
                [f"v_exp_f32 v{s+5}, v{s+5}"], [f"v_exp_f32 v{s+6}, v{s+6}"],
                [f"v_cvt_pk_bf16_f32 v{p+2}, v{s+4}, v{s+5}"],
                [f"v_exp_f32 v{s+7}, v{s+7}"],
                [f"v_cvt_pk_bf16_f32 v{p+3}, v{s+6}, v{s+7}"]]
    def kv_reads(self, fs, which):
        G = []
        if which == 'K':
            for kt in range(2):
                for jp in range(4):
                    G.append([f"ds_read_b128 {rng('v', V_KF[fs] + (kt*4+jp)*4)}, v{V_KA+jp} offset:{kt*4096}"])
        else:
            for jl in range(8):
                a = V_VF[fs] + jl * 4
                ml, h = jl >> 1, jl & 1
                va = V_VA if fs == 'A' else V_VA2
                G.append([f"ds_read_b64_tr_b16 v[{a}:{a+1}], v{va+ml} offset:{8*h}"])
                G.append([f"ds_read_b64_tr_b16 v[{a+2}:{a+3}], v{va+ml} offset:{8*h+4096}"])
        return G
    def kv_addr(self, fs):
        va = V_VA if fs == 'A' else V_VA2
        G = [[f"v_add_u32 v{V_KA+j}, s{S_RSLOT}, v{V_KPAT+j}"] for j in range(4)]
        G += [[f"v_add_u32 v{va+j}, s{S_RSLOT}, v{V_VPAT+j}"] for j in range(4)]
        G.append([f"s_add_u32 s{S_RSLOT}, s{S_RSLOT}, {SLOT}", f"s_cmp_eq_u32 s{S_RSLOT}, {3*SLOT}", f"s_cselect_b32 s{S_RSLOT}, 0, s{S_RSLOT}"])
        return G

    def units(self, qh):
        if qh == 0: return [(0,'A'),(1,'A'),(2,'A'),(3,'A'),(4,'A'),(0,'B'),(1,'B'),(2,'B'),(3,'B')]
        return [(0,'A'),(1,'A'),(2,'A'),(3,'A'),(0,'B'),(1,'B'),(2,'B'),(3,'B'),(4,'B')]

    def attn_body(self, qh, last):
        U = self.units(qh)
        B = Prog()
        RG = self.ring_groups()
        for g in range(9):
            if g in (0, 4):
                B(f"s_waitcnt vmcnt({9 if (self.pf_wo_spread and self.x_nomax) else 8}) lgkmcnt(0)")
                if not self.x_nobar: B("s_barrier")
            M = []
            if not (last and g + 3 >= 9):
                M += self.s_mfmas(U[(g + 3) % 9], g % 3)
            M += self.pv_mfmas(U[g], g % 3)
            V = []
            head = []
            if not (last and g + 1 >= 9):
                head = self.check_ops(U[(g + 1) % 9], (g + 1) % 3)
                ex = self.exp_ops(U[(g + 1) % 9], (g + 1) % 3, (g + 1) % 3)
            else: ex = []
            mx = self.max_ops(U[(g + 2) % 9], (g + 2) % 3) if not (last and g + 2 >= 9) else []
            V = []
            ei = mi = 0
            pat = "eeemcemecemecemcm" if False else "eemeemeemeemm"
            order = []
            if self.x_nomax and ex:
                e_ = [g_ for g_ in ex if g_[0].startswith('v_exp')]
                c_ = [g_ for g_ in ex if g_[0].startswith('v_cvt')]
                pat = "e-ee-eC-ee-e-eC--"
                ei = ci = 0
                for ch in pat:
                    if ch == 'e': order.append(e_[ei]); ei += 1
                    elif ch == 'C': order.append(c_[ci] + c_[ci + 1]); ci += 2
                    else: order.append([])
            else:
                for i in range(17):
                    if i in (1, 3, 5, 7, 9) and mi < len(mx): order.append(mx[mi]); mi += 1
                    elif ei < len(ex): order.append(ex[ei]); ei += 1
                    elif mi < len(mx): order.append(mx[mi]); mi += 1
            V = order
            PF = []
            if last and (self.pf_wo or self.op_label) and self.x_nomax == self.fast and g == self.pf_late_g:
                self.uid += 1
                lab = f"{self.name}_npf{self.uid}"
                pf = [f"s_cmp_eq_u32 s{S_ITEM}, 0", f"s_cbranch_scc1 {lab}"]
                if self.pf_wo:
                    for i in range(2):
                        pf += [f"s_lshl_b32 s39, s{S_W}, 14", f"s_add_u32 s39, s39, {8192 * i}",
                               f"buffer_load_dword v{V_PFD}, v19, s[76:79], s39 offen"]
                if self.op_label:
                    pf += self.code_pf(self.op_label, f"o{self.uid}", 2, end_label=self.op_end)
                pf.append(f"{lab}:")
                PF = [pf]
            XP = []
            if self.pf_wo_spread and self.x_nomax and g == 3:
                if last:
                    XP = [[f"s_mov_b32 s40, 65536", f"buffer_load_dword v{V_PFD}, v19, s[76:79], s40 offen"]]
                else:
                    XP = [[f"s_sub_u32 s39, 7, s{S_CNT}", f"s_lshl_b32 s40, s{S_ITEM}, 2", f"s_add_u32 s40, s40, s39", f"s_lshl_b32 s40, s40, 13",
                           f"s_cmp_eq_u32 s39, s{S_W}", f"s_cselect_b32 s40, s40, 65536",
                           f"buffer_load_dword v{V_PFD}, v19, s[76:79], s40 offen"]]
            if last and self.pf_code2 and self.x_nomax == self.fast and g == self.pf_late_g:
                self.uid += 1
                lab = f"{self.name}_npc{self.uid}"
                pf = [f"s_cmp_lg_u32 s{S_ITEM}, 0", f"s_cbranch_scc1 {lab}"] + self.code_pf(f"{self.name}_cmb", f"c{self.uid}", 1) + [f"{lab}:"]
                PF = PF + [pf]
            if last and self.pf1 and self.x_nomax == self.fast and g in (0, 4):
                self.uid += 1
                lab = f"{self.name}_np1{self.uid}"
                pf = [f"s_or_b32 s39, s{S_LATE}, s{S_ITEM}", f"s_cmp_lg_u32 s39, 0", f"s_cbranch_scc1 {lab}"]
                if g == 0:
                    pf += self.pf_w(f"s{S_W}", "1") + self.pf_x(f"s{S_W}")
                else:
                    pf += [f"s_add_u32 s39, s{S_W}, 4"] + self.pf_x("s39") + [f"s_add_u32 s39, s{S_W}, 8", "s_min_u32 s39, s39, 8"] + self.pf_x("s39")
                pf.append(f"{lab}:")
                PF = PF + [pf]
            KA, VA_ = (self.kv_reads('A', 'K'), self.kv_reads('A', 'V')) if not last else ([], [])
            KB, VB_ = self.kv_reads('B', 'K'), self.kv_reads('B', 'V')
            ADA = self.kv_addr('A') if not last else []
            ADB = self.kv_addr('B') if not last else []
            D, adv = self.ring_instrs()
            H = []
            Lt = []
            if g == 0: H = KB + PF + D[0:1]
            if g == 1: H = VB_[:6] + D[1:4];
            if g == 2: H = VB_[6:11] + D[4:6]; Lt = ADA[:4]
            if g == 3: H = D[6:8] + VB_[11:]; Lt = ADA[4:] + [adv]
            if g == 4: H = KA + PF + D[0:1]
            if g == 5: H = VA_[:5] + D[1:4]
            if g == 6: H = VA_[5:10] + D[4:6]; Lt = ADB[:4]
            if g == 7: H = D[6:8] + VA_[10:]; Lt = ADB[4:8]
            if g == 8: Lt = ADB[8:] + [adv]
            if self.x_nomax:
                if g == 0: H = KB + PF
                if g == 1: H = VB_[:5] + D[0:3]
                if g == 2: H = VB_[5:11] + D[3:5]
                if g == 3: H = D[5:8] + XP + VB_[11:]
                if g == 4: H = KA[:7] + PF
                if g == 5: H = KA[7:] + D[0:2] + VA_[:4]
                if g == 6: H = D[2:4] + VA_[4:9]
                if g == 7: H = D[4:6] + VA_[9:14]
                if g == 8: H = VA_[14:] + D[6:8] + (PF if self.pf_late_g == 8 else [])
            if last and self.x_nomax and self.cfast and g >= 4:
                H = [x for x in H if not any('lds' in y and 'buffer_load' in y for y in x)]
                Lt = [x for x in Lt if not any(f"s{S_GOFF}," in y for y in x)]
                if g == 4: Lt = Lt + [[f"s_sub_u32 s{S_FREE}, s{S_DSLOT}, s{S_DBASE}"]]
            if self.x_nodma: H = [x for x in H if not any('lds' in y and 'buffer_load' in y for y in x)]
            if self.x_nord: H = [x for x in H if not any('ds_read' in y for y in x)]
            if self.x_nosm: V = []; head = []
            if self.x_nobr: head = []
            if self.x_noX: H = []; Lt = []
            if self.x_nomax: V = [[] if (x and (x[0].startswith('v_max') or x[0].startswith('v_cmp'))) else x for x in V]; head = []
            n = len(M)
            fill = [list(V[i]) if i < len(V) else [] for i in range(n)]
            light = [i for i in range(n) if not (fill[i] and fill[i][0].startswith('v_exp'))]
            empty = [i for i in range(n) if not fill[i]]
            pos = light[:]
            if self.x_nomax and empty:
                pos = empty[:]
                more = [i for i in light if i not in pos] + [i for i in range(n) if i not in light]
                if len(H) > len(pos): pos = sorted(pos + more[:len(H) - len(pos)])
            if len(H) > len(pos):
                extra_pos = [i for i in range(n) if i not in pos][:len(H) - len(pos)]
                pos = sorted(pos + extra_pos)
            if H:
                k = len(pos)
                chosen = [pos[(j * k) // len(H)] for j in range(len(H))]
                for j, h in enumerate(H):
                    h = list(h)
                    if ' m0,' in h[0] and chosen[j] > 0 and not any('lds' in y and 'buffer_load' in y for y in fill[chosen[j] - 1]):
                        fill[chosen[j] - 1].append(h[0]); h = h[1:]
                    fill[chosen[j]] += h
            if Lt:
                has_heavy = lambda i: any(('ds_read' in y or 'buffer_load' in y) for y in fill[i])
                last_dma = max([i for i in range(n) if any('buffer_load' in y for y in fill[i])] + [-1])
                free = [i for i in light if not has_heavy(i)] + [i for i in range(n) if i not in light]
                used = set()
                for l_ in Lt:
                    need_after = last_dma if any(f"s{S_GOFF}," in y for y in l_) else -1
                    cand = [i for i in free if i not in used and i > need_after] or [n - 1]
                    if any(f"s{S_RSLOT}, s{S_RSLOT}" in y for y in l_):
                        la = max([i for i in range(n) if any(f"s{S_RSLOT}, v" in y for y in fill[i])] + [-1])
                        cand = [i for i in range(n) if i >= la]
                        cand = [max(cand[0], 0)]
                    i = cand[0]; used.add(i)
                    fill[i] += l_
            extra = V[n:]
            for x in head: B(x)
            for x in interleave(M, fill + extra): B(x)
        return B

    def attention(self, qh, tag):
        n = self.name
        U = self.units(qh)
        P = Prog()
        for r in range(20): P(f"v_mov_b32 v{V_L + r}, 0\nv_mov_b32 v{V_NEGM + r}, 0")
        P("s_nop 1")
        for r in range(0, 160, 4): P(f"v_mfma_f32_16x16x32_bf16 a[{A_O + r}:{A_O + r + 3}], v[{V_L}:{V_L+3}], v[{V_L}:{V_L+3}], 0")
        for s in range(5): P(f"s_mov_b32 s{S_T+s}, 0xff800000")
        P("s_waitcnt vmcnt(16)\ns_barrier")
        for g in self.kv_addr('A') + self.kv_reads('A', 'K') + self.kv_reads('A', 'V') + self.kv_addr('B'):
            for x in g: P(x)
        for x in self.s_mfmas(U[0], 0) + self.s_mfmas(U[1], 1) + self.s_mfmas(U[2], 2): P(x)
        if not self.x_nomax:
            for g in self.max_ops(U[0], 0):
                for x in g: P(x)
            P("s_nop 3")
            for x in self.check_ops(U[0], 0): P(x)
        for g in self.exp_ops(U[0], 0, 0) + (self.max_ops(U[1], 1) if not self.x_nomax else []):
            for x in g: P(x)
        if self.pf_wo_spread and self.x_nomax:
            P(f"s_mov_b32 s40, 65536\nbuffer_load_dword v{V_PFD}, v19, s[76:79], s40 offen")
        P(f"s_waitcnt lgkmcnt(0)\ns_mov_b32 s{S_CNT}, 7")
        pre, _ = finalize_linear(P.items)
        out = Prog(); out.extend(pre)
        body, _ = finalize_loop(self.attn_body(qh, False).items)
        if self.stamps:
            self.stamp(out, 5)
        out.label(f"{n}_at{tag}")
        out.extend(body)
        out(f"s_sub_u32 s{S_CNT}, s{S_CNT}, 1\ns_cmp_lg_u32 s{S_CNT}, 0\ns_cbranch_scc1 {n}_at{tag}")
        if self.stamps:
            self.stamp(out, 6)
        lastb = self.attn_body(qh, True)
        l1, f = auto_lgkm(body, None)
        l2, _ = auto_lgkm(lastb.items, f)
        l3 = fix_hazards(l2, wrap=body)
        out.extend(l3)
        return out

    def combine(self, qh):
        L = V_LANE
        E = Prog()
        MLO = 32768
        if self.cstamp: E(f"s_waitcnt lgkmcnt(0)\ns_memtime s[48:49]\ns_waitcnt lgkmcnt(0)\ns_cmp_eq_u32 s{S_ITEM}, 0\ns_cselect_b32 s82, s48, s82")
        E("s_nop 7\ns_waitcnt lgkmcnt(0)\ns_barrier")
        if self.cstamp: E(f"s_waitcnt lgkmcnt(0)\ns_memtime s[48:49]\ns_waitcnt lgkmcnt(0)\ns_cmp_eq_u32 s{S_ITEM}, 0\ns_cselect_b32 s83, s48, s83")
        E(f"""
        v_lshlrev_b32 v2, 2, v{L}
        v_add_u32 v2, {STG + MLO}, v2
        s_mul_i32 s39, s{S_W}, 2560
        v_add_u32 v3, s39, v2
        v_lshlrev_b32 v8, 4, v{L}
        v_add_u32 v8, {STG}, v8
        s_lshl_b32 s39, s{S_W}, 13
        s_lshl_b32 s40, s{S_HH}, 12
        s_add_u32 s{S_TMP2}, s39, s40
        v_add_u32 v5, s{S_TMP2}, v8
        s_xor_b32 s{S_TMP2}, s{S_TMP2}, 4096
        v_add_u32 v6, s{S_TMP2}, v8
        """)
        for s_ in range(5):
            E(f"ds_write_b32 v3, v{V_NEGM + s_*4} offset:{s_*512}")
            E(f"ds_write_b32 v3, v{V_L + s_*4} offset:{s_*512 + 256}")
        for jl in range(8):
            E(f"ds_write_b128 v{5 + (jl >> 2)}, {rng('a', acc_o(4, jl))} offset:{(jl & 3)*1024}")
        E(f"""s_mov_b64 s[72:73], 0
        s_mov_b32 s{S_XRB}, 0x21800000
        v_mov_b32 v{V_T3}, 0x5d800000
        v_mov_b32 v{V_P}, 0
        v_mov_b32 v{V_P+1}, 0
        v_mov_b32 v{V_P+2}, 0
        v_mov_b32 v{V_P+3}, 0
        s_xor_b32 s39, s{S_W}, 2
        s_mul_i32 s39, s39, 2560
        v_add_u32 v4, s39, v2
        s_lshl_b32 s39, s{S_W}, 11
        v_add_u32 v5, s39, v8
        v_lshlrev_b32 v7, 4, v{L}
        s_mul_i32 s{S_XOFF}, s{S_ITEM}, 36864
        s_mul_i32 s{S_WOFF}, s{S_W}, {9216 if self.omt else 1024}
        s_add_u32 s{S_WOFF}, s{S_WOFF}, {8*1024 if self.omt else 32*1024}
        s_add_u32 s{S_WOFF}, s{S_WOFF}, s{S_XOFF}
        s_lshl_b32 s39, s{S_QH}, {12 if self.omt else 14}
        s_mul_i32 s40, s{S_HH}, {2*9216 if self.omt else 2048}
        s_add_u32 s39, s39, s40
        s_add_u32 s{S_XOFF}, s{S_XOFF}, s39
        """)
        E("s_waitcnt lgkmcnt(0)\ns_barrier")
        if self.cstamp: E(f"s_waitcnt lgkmcnt(0)\ns_memtime s[48:49]\ns_waitcnt lgkmcnt(0)\ns_cmp_eq_u32 s{S_ITEM}, 0\ns_cselect_b32 s84, s48, s84")
        for s_ in range(4):
            E(f"ds_read_b32 v{120 + 2*s_}, v4 offset:{s_*512}")
            E(f"ds_read_b32 v{121 + 2*s_}, v4 offset:{s_*512 + 256}")
        for ww in range(4):
            E(f"ds_read_b32 v{128 + 2*ww}, v2 offset:{ww*2560 + 4*512}")
            E(f"ds_read_b32 v{129 + 2*ww}, v2 offset:{ww*2560 + 4*512 + 256}")
        for ww in range(4):
            for x in range(2):
                E(f"ds_read_b128 {rng('v', 160 + (ww*2+x)*4)}, v5 offset:{ww*8192 + x*1024}")
        E(f"""
        s_lshl_b32 s39, s{S_W}, 14
        v_add_u32 v3, s39, v8
        s_xor_b32 s39, s39, {2 << 14}
        v_add_u32 v4, s39, v8
        """)
        for s_ in range(4):
            for r in range(16):
                E(f"v_accvgpr_read_b32 v{192 + 16*(s_ % 3) + r if s_ < 3 else 96 + r}, a{acc_o(s_, 0) + r}")
        E("s_waitcnt lgkmcnt(0)\ns_barrier")
        if self.cstamp: E(f"s_waitcnt lgkmcnt(0)\ns_memtime s[48:49]\ns_waitcnt lgkmcnt(0)\ns_cmp_eq_u32 s{S_ITEM}, 0\ns_cselect_b32 s85, s48, s85")
        for s_ in range(4):
            for x in range(4):
                E(f"ds_write_b128 v3, {rng('a', acc_o(s_, 4 + x))} offset:{(s_*4+x)*1024}")
        for s_ in range(4):
            nm, l_ = V_NEGM + 4 * s_, V_L + 4 * s_
            no, lo = 120 + 2 * s_, 121 + 2 * s_
            E(f"""
            v_min_f32 v2, v{nm}, v{no}
            v_sub_f32 v6, v2, v{nm}
            v_sub_f32 v5, v2, v{no}
            v_exp_f32 v6, v6
            v_exp_f32 v5, v5
            s_nop 0
            v_mul_f32 v9, v6, v{l_}
            v_fma_f32 v9, v5, v{lo}, v9
            v_cmp_nge_f32 s[60:61], v9, s{S_XRB}
            v_cmp_nle_f32 vcc, v9, v{V_T3}
            v_rcp_f32 v9, v9
            s_or_b64 s[72:73], s[72:73], s[60:61]
            s_or_b64 s[72:73], s[72:73], vcc
            v_mul_f32 v{136+4*s_}, v6, v9
            v_mul_f32 v{137+4*s_}, v6, v9
            v_mul_f32 v{138+4*s_}, v5, v9
            v_mul_f32 v{139+4*s_}, v5, v9
            """)
        E(f"""
        v_min_f32 v2, v128, v130
        v_min_f32 v6, v132, v134
        v_min_f32 v2, v2, v6
        """)
        for ww in range(4):
            E(f"v_sub_f32 v{152+2*ww}, v2, v{128+2*ww}\nv_exp_f32 v{152+2*ww}, v{152+2*ww}")
        E(f"""
        s_nop 0
        v_mul_f32 v9, v152, v129
        v_fma_f32 v9, v154, v131, v9
        v_fma_f32 v9, v156, v133, v9
        v_fma_f32 v9, v158, v135, v9
        v_cmp_nge_f32 s[60:61], v9, s{S_XRB}
        v_cmp_nle_f32 vcc, v9, v{V_T3}
        v_rcp_f32 v9, v9
        s_or_b64 s[72:73], s[72:73], s[60:61]
        s_or_b64 s[72:73], s[72:73], vcc
        """)
        for ww in range(4): E(f"v_mul_f32 v{152+2*ww}, v{152+2*ww}, v9\nv_mov_b32 v{153+2*ww}, v{152+2*ww}")
        for r in range(8):
            E(f"v_mul_f32 v{112+r}, v{160+r}, v152")
        for ww in range(1, 4):
            for r in range(8):
                E(f"v_fma_f32 v{112+r}, v{160+ww*8+r}, v{152+2*ww}, v{112+r}")
        for r in range(4):
            E(f"v_fma_f32 v{V_P+2}, v{112+2*r}, v{V_P}, v{V_P+2}")
            E(f"v_fma_f32 v{V_P+3}, v{113+2*r}, v{V_P}, v{V_P+3}")
            E(f"v_cvt_pk_bf16_f32 v{V_P+4+r}, v{112+2*r}, v{113+2*r}")
        E(f"buffer_store_dwordx4 {rng('v', V_P+4)}, v7, s[20:23], s{S_WOFF} offen{self.st_flags}")
        mine = lambda s_: (192 + 16 * s_) if s_ < 3 else 96
        for s_ in range(4):
            for r in range(16):
                E(f"v_mul_f32 v{mine(s_)+r}, v{mine(s_)+r}, v{136+4*s_}")
        if self.cstamp: E(f"s_waitcnt lgkmcnt(0)\ns_memtime s[48:49]\ns_waitcnt lgkmcnt(0)\ns_cmp_eq_u32 s{S_ITEM}, 0\ns_cselect_b32 s86, s48, s86")
        E("s_waitcnt lgkmcnt(0)\ns_barrier")
        if self.cstamp: E(f"s_waitcnt lgkmcnt(0)\ns_memtime s[48:49]\ns_waitcnt lgkmcnt(0)\ns_cmp_eq_u32 s{S_ITEM}, 0\ns_cselect_b32 s87, s48, s87")
        recv = lambda s_: 160 + 16 * (s_ % 2)
        def rd(s_):
            for x in range(4):
                E(f"ds_read_b128 {rng('v', recv(s_) + 4*x)}, v4 offset:{(s_*4+x)*1024}")
        rd(0); rd(1)
        for s_ in range(4):
            m_, rc = mine(s_), recv(s_)
            for r in range(16):
                E(f"v_fma_f32 v{m_+r}, v{rc+r}, v{138+4*s_}, v{m_+r}")
            if s_ + 2 < 4: rd(s_ + 2)
            pk = 56 + 8 * s_
            for r in range(8):
                E(f"v_fma_f32 v{V_P+2}, v{m_+2*r}, v{V_P}, v{V_P+2}")
                E(f"v_fma_f32 v{V_P+3}, v{m_+2*r+1}, v{V_P}, v{V_P+3}")
                E(f"v_cvt_pk_bf16_f32 v{pk+r}, v{m_+2*r}, v{m_+2*r+1}")
            E(f"s_add_u32 s39, s{S_XOFF}, {s_*1024 if self.omt else s_*4096}\ns_add_u32 s40, s39, 9216")
            for p in range(2):
                E(f"buffer_store_dwordx4 {rng('v', pk+4*p)}, v7, s[20:23], {('s39' if p == 0 else 's40') if self.omt else 's39'} offen offset:{0 if self.omt else 1024*p}{self.st_flags}")
        E(f"""
        v_cmp_u_f32 vcc, v{V_P+2}, v{V_P+3}
        s_nop 1
        s_or_b64 s[72:73], s[72:73], vcc
        s_cmp_lg_u64 s[72:73], 0
        s_cselect_b32 s39, 1, {1 if self.force_bad else 0}
        s_xor_b32 s40, s{S_SAFE}, 1
        s_and_b32 s39, s39, s40
        s_lshl_b32 s39, s39, s{S_ITEM}
        s_or_b32 s{S_BAD}, s{S_BAD}, s39
        s_waitcnt lgkmcnt(0)
        """)
        if self.cstamp: E(f"s_waitcnt lgkmcnt(0)\ns_memtime s[48:49]\ns_waitcnt lgkmcnt(0)\ns_cmp_eq_u32 s{S_ITEM}, 0\ns_cselect_b32 s88, s48, s88")
        it, _ = finalize_linear(E.items)
        o = Prog(); o.extend(it)
        return o

    def combine_fast(self):
        n = self.name
        L = V_LANE
        E = Prog()
        if self.cstamp: E(f"s_waitcnt lgkmcnt(0)\ns_memtime s[64:65]\ns_waitcnt lgkmcnt(0)\ns_cmp_eq_u32 s{S_ITEM}, 1\ns_cselect_b32 s82, s64, s82")
        E("s_nop 7\ns_waitcnt lgkmcnt(0)\ns_barrier")
        if self.cstamp: E(f"s_waitcnt lgkmcnt(0)\ns_memtime s[64:65]\ns_waitcnt lgkmcnt(0)\ns_cmp_eq_u32 s{S_ITEM}, 1\ns_cselect_b32 s83, s64, s83")
        E(f"""
        v_lshlrev_b32 v8, 4, v{L}
        s_lshl_b32 s39, s{S_W}, 14
        s_add_u32 s39, s39, {STG}
        v_add_u32 v3, s39, v8
        s_xor_b32 s40, s{S_W}, 2
        s_lshl_b32 s40, s40, 14
        s_add_u32 s40, s40, {STG}
        v_add_u32 v4, s40, v8
        """)
        mine = lambda s_: (192 + 16 * s_) if s_ < 3 else 96
        for s_ in range(4):
            for x in range(4):
                E(f"ds_write_b128 v3, {rng('a', acc_o(s_, 4 + x))} offset:{(s_*4+x)*1024}")
                for r in range(4):
                    E(f"v_accvgpr_read_b32 v{mine(s_) + 4*x + r}, a{acc_o(s_, 0) + 4*x + r}")
        for lp in range(4):
            E(f"""
            s_lshl_b32 s39, s{S_HH}, 1
            s_xor_b32 s39, s39, {lp}
            s_sub_u32 s40, s{S_W}, s39
            s_sub_u32 s40, s40, 1
            s_and_b32 s40, s40, 3
            s_mul_i32 s39, s39, 3
            s_add_u32 s39, s39, s40
            s_lshl_b32 s39, s39, 11
            s_cmp_eq_u32 s40, 3
            s_cselect_b32 s39, 24576, s39
            s_add_u32 s39, s39, s{S_FREE}
            v_add_u32 v{120+lp}, s39, v8
            """)
            for x in range(2):
                E(f"ds_write_b128 v{120+lp}, {rng('a', acc_o(4, 2*lp + x))} offset:{x*1024}")
        E(f"""
        v_lshlrev_b32 v2, 2, v{L}
        s_add_u32 s39, s{S_FREE}, 26624
        v_add_u32 v2, s39, v2
        s_mul_i32 s39, s{S_W}, 1280
        v_add_u32 v5, s39, v2
        """)
        for s_ in range(5):
            E(f"ds_write_b32 v5, v{V_L + s_*4} offset:{s_*256}")
        if self.cstamp: E(f"s_waitcnt lgkmcnt(0)\ns_memtime s[64:65]\ns_waitcnt lgkmcnt(0)\ns_cmp_eq_u32 s{S_ITEM}, 1\ns_cselect_b32 s84, s64, s84")
        E(f"s_cmp_lg_u32 s{S_QH}, 0\ns_cbranch_scc1 {n}_cf1")
        for r in range(8): E(f"v_accvgpr_read_b32 v{112+r}, a{acc_o(4, 0) + r}")
        E(f"s_branch {n}_cf2")
        E.label(f"{n}_cf1")
        for r in range(8): E(f"v_accvgpr_read_b32 v{112+r}, a{acc_o(4, 2) + r}")
        E.label(f"{n}_cf2")
        E(f"""
        s_mov_b64 s[72:73], 0
        s_mov_b32 s{S_XRB}, 0x21800000
        v_mov_b32 v{V_T3}, 0x5d800000
        v_mov_b32 v{V_P}, 0
        v_mov_b32 v{V_P+2}, 0
        v_mov_b32 v{V_P+3}, 0
        s_xor_b32 s39, s{S_W}, 2
        s_mul_i32 s39, s39, 1280
        v_add_u32 v5, s39, v2
        s_mul_i32 s39, s{S_W}, 6144
        s_add_u32 s39, s39, s{S_FREE}
        v_add_u32 v6, s39, v8
        v_lshlrev_b32 v7, 4, v{L}
        s_mul_i32 s{S_XOFF}, s{S_ITEM}, 36864
        s_mul_i32 s{S_WOFF}, s{S_W}, {9216 if self.omt else 1024}
        s_add_u32 s{S_WOFF}, s{S_WOFF}, {8*1024 if self.omt else 32*1024}
        s_add_u32 s{S_WOFF}, s{S_WOFF}, s{S_XOFF}
        s_lshl_b32 s39, s{S_QH}, {12 if self.omt else 14}
        s_mul_i32 s40, s{S_HH}, {2*9216 if self.omt else 2048}
        s_add_u32 s39, s39, s40
        s_add_u32 s{S_XOFF}, s{S_XOFF}, s39
        """)
        if self.cstamp: E(f"s_waitcnt lgkmcnt(0)\ns_memtime s[64:65]\ns_waitcnt lgkmcnt(0)\ns_cmp_eq_u32 s{S_ITEM}, 1\ns_cselect_b32 s85, s64, s85")
        E("s_waitcnt lgkmcnt(0)\ns_barrier")
        for s_ in range(4): E(f"ds_read_b32 v{124+s_}, v5 offset:{s_*256}")
        for ww in range(4): E(f"ds_read_b32 v{128+ww}, v2 offset:{ww*1280 + 4*256}")
        for rk in range(3):
            for x in range(2):
                E(f"ds_read_b128 {rng('v', 136 + (rk*2+x)*4)}, v6 offset:{rk*2048 + x*1024}")
        recv = lambda s_: 160 + 16 * (s_ % 2)
        def rd(s_):
            for x in range(4):
                E(f"ds_read_b128 {rng('v', recv(s_) + 4*x)}, v4 offset:{(s_*4+x)*1024}")
        rd(0)
        for s_ in range(4):
            E(f"""
            v_add_f32 v{124+s_}, v{124+s_}, v{V_L + 4*s_}
            v_cmp_nge_f32 s[60:61], v{124+s_}, s{S_XRB}
            v_cmp_nle_f32 vcc, v{124+s_}, v{V_T3}
            v_rcp_f32 v{124+s_}, v{124+s_}
            s_or_b64 s[72:73], s[72:73], s[60:61]
            s_or_b64 s[72:73], s[72:73], vcc
            """)
        E(f"""
        v_add_f32 v128, v128, v129
        v_add_f32 v130, v130, v131
        v_add_f32 v128, v128, v130
        v_cmp_nge_f32 s[60:61], v128, s{S_XRB}
        v_cmp_nle_f32 vcc, v128, v{V_T3}
        v_rcp_f32 v128, v128
        s_or_b64 s[72:73], s[72:73], s[60:61]
        s_or_b64 s[72:73], s[72:73], vcc
        """)
        rd(1)
        for rk in range(3):
            for r in range(8): E(f"v_add_f32 v{112+r}, v{112+r}, v{136+rk*8+r}")
        for r in range(8): E(f"v_mul_f32 v{112+r}, v{112+r}, v128")
        for r in range(4):
            E(f"v_fma_f32 v{V_P+2}, v{112+2*r}, v{V_P}, v{V_P+2}")
            E(f"v_fma_f32 v{V_P+3}, v{113+2*r}, v{V_P}, v{V_P+3}")
            E(f"v_cvt_pk_bf16_f32 v{V_P+4+r}, v{112+2*r}, v{113+2*r}")
        E(f"buffer_store_dwordx4 {rng('v', V_P+4)}, v7, s[20:23], s{S_WOFF} offen{self.st_flags}")
        if self.cstamp: E(f"s_waitcnt lgkmcnt(0)\ns_memtime s[64:65]\ns_waitcnt lgkmcnt(0)\ns_cmp_eq_u32 s{S_ITEM}, 1\ns_cselect_b32 s86, s64, s86")
        for s_ in range(4):
            m_, rc = mine(s_), recv(s_)
            for r in range(16): E(f"v_add_f32 v{m_+r}, v{m_+r}, v{rc+r}")
            if s_ + 2 < 4: rd(s_ + 2)
            for r in range(16): E(f"v_mul_f32 v{m_+r}, v{m_+r}, v{124+s_}")
            pk = 56 + 8 * s_
            for r in range(8):
                E(f"v_fma_f32 v{V_P+2}, v{m_+2*r}, v{V_P}, v{V_P+2}")
                E(f"v_fma_f32 v{V_P+3}, v{m_+2*r+1}, v{V_P}, v{V_P+3}")
                E(f"v_cvt_pk_bf16_f32 v{pk+r}, v{m_+2*r}, v{m_+2*r+1}")
            E(f"s_add_u32 s39, s{S_XOFF}, {s_*1024 if self.omt else s_*4096}\ns_add_u32 s40, s39, 9216")
            for p in range(2):
                E(f"buffer_store_dwordx4 {rng('v', pk+4*p)}, v7, s[20:23], {('s39' if p == 0 else 's40') if self.omt else 's39'} offen offset:{0 if self.omt else 1024*p}{self.st_flags}")
        if self.cstamp: E(f"s_waitcnt lgkmcnt(0)\ns_memtime s[64:65]\ns_waitcnt lgkmcnt(0)\ns_cmp_eq_u32 s{S_ITEM}, 1\ns_cselect_b32 s87, s64, s87")
        E(f"""
        v_cmp_u_f32 vcc, v{V_P+2}, v{V_P+3}
        s_nop 1
        s_or_b64 s[72:73], s[72:73], vcc
        s_cmp_lg_u64 s[72:73], 0
        s_cselect_b32 s39, 1, {1 if self.force_bad else 0}
        s_lshl_b32 s39, s39, s{S_ITEM}
        s_or_b32 s{S_BAD}, s{S_BAD}, s39
        s_waitcnt lgkmcnt(0)
        s_cmp_lg_u32 s{S_ITEM}, 0
        s_cbranch_scc1 {n}_cf3
        s_barrier
        """)
        for g in self.ring_groups():
            for x in g: E(x)
        E.label(f"{n}_cf3")
        if self.cstamp: E(f"s_waitcnt lgkmcnt(0)\ns_memtime s[64:65]\ns_waitcnt lgkmcnt(0)\ns_cmp_eq_u32 s{S_ITEM}, 1\ns_cselect_b32 s88, s64, s88")
        if self.c_nost: E.items = [x for x in E.items if not x.op.startswith('buffer_store')]
        if self.c_nonan: E.items = [x for x in E.items if not (x.op == 'v_fma_f32' and f"v{V_P+2}," in x.text or x.op == 'v_fma_f32' and f"v{V_P+3}," in x.text)]
        if self.c_now: E.items = [x for x in E.items if not x.op.startswith('ds_write_b128')]
        it, _ = finalize_linear(E.items)
        o = Prog(); o.extend(it)
        return o

    def agree_bad(self):
        E = Prog()
        E(f"""
        s_barrier
        v_mov_b32 v5, {STG}
        s_lshl_b32 s40, s{S_W}, 2
        v_add_u32 v6, s40, v5
        v_mov_b32 v3, s{S_BAD}
        ds_write_b32 v6, v3
        s_waitcnt lgkmcnt(0)
        s_barrier
        ds_read_b128 v[120:123], v5
        s_waitcnt lgkmcnt(0)
        v_or_b32 v120, v120, v121
        v_or_b32 v122, v122, v123
        v_or_b32 v120, v120, v122
        s_nop 0
        v_readfirstlane_b32 s{S_BAD}, v120
        s_nop 3
        """)
        it, _ = finalize_linear(E.items)
        o = Prog(); o.extend(it)
        return o

    def stamp(self, out, idx_expr, sel=None):
        if not self.stamps: return
        if (self.qstamp or self.cstamp) and idx_expr not in (0, 1): return
        base = idx_expr
        u = self.nst; self.nst += 1
        out(f"""s_waitcnt lgkmcnt(0)
        {'s_memrealtime' if (self.dbg_stamps is not None or self.dbg_rt) else 's_memtime'} s[72:73]
        s_waitcnt lgkmcnt(0)
        s_cmp_eq_u32 s{sel if sel is not None else S_ITEM}, 0
        s_cselect_b32 s{80+base}, s72, s{80+base}
        s_cselect_b32 s{88+base}, s{88+base}, s72""")

    def build(self):
        n = self.name
        out = Prog()
        st, _ = finalize_linear(self.setup().items)
        out.extend(st)
        cold = Prog()
        out.label(f"{n}_qpL")
        self.stamp(out, 0)
        out.extend(self.qp2('x'))
        out(f"s_cmp_lg_u32 s{S_SAFE}, 0\ns_cbranch_scc1 {n}_qredo")
        out.extend(self.qconv(0, not self.kvdma, 1))
        out.extend(self.lq())
        out("s_barrier")
        out.extend(self.qconv(1, not self.kvdma, 2))
        out.label(f"{n}_qdone")
        cold.label(f"{n}_qredo")
        cold(f"s_cmp_lg_u32 s{S_ITEM}, 0\ns_cbranch_scc1 {n}_qredo1")
        cold.extend(self.qconv(0, not self.kvdma))
        cold(f"s_branch {n}_qredo2")
        cold.label(f"{n}_qredo1")
        cold.extend(self.qconv(1, not self.kvdma))
        cold.label(f"{n}_qredo2")
        cold.extend(self.lq())
        cold(f"s_branch {n}_safe")
        self.stamp(out, 1)
        out.label(f"{n}_att")
        self.stamp(out, 2)
        out(f"s_cmp_lg_u32 s{S_QH}, 0\ns_cbranch_scc1 {n}_q1")
        self.x_nomax = self.fast
        out.extend(self.attention(0, 'a'))
        out(f"s_branch {n}_cmb")
        out.label(f"{n}_q1")
        out.extend(self.attention(1, 'b'))
        cold.label(f"{n}_safe")
        self.x_nomax = False
        st, self.stamps = self.stamps, False
        cold(f"s_cmp_lg_u32 s{S_QH}, 0\ns_cbranch_scc1 {n}_sq1")
        cold.extend(self.attention(0, 'c'))
        cold(f"s_branch {n}_scmb")
        cold.label(f"{n}_sq1")
        cold.extend(self.attention(1, 'd'))
        cold(f"s_branch {n}_scmb")
        self.stamps = st
        out.label(f"{n}_cmb")
        self.stamp(out, 3)
        out(f"s_cmp_lg_u32 s{S_ITEM}, 0\ns_cbranch_scc1 {n}_nolq")
        out.extend(self.lq())
        out.label(f"{n}_nolq")
        if self.cfast and self.fast:
            out.extend(self.combine_fast())
        else:
            out.extend(self.combine(0))
        self.stamp(out, 4)
        out(f"s_add_u32 s{S_ITEM}, s{S_ITEM}, 1\ns_cmp_ge_u32 s{S_ITEM}, 2\ns_cbranch_scc1 {n}_agree")
        out(f"s_branch {n}_att")
        cold.label(f"{n}_scmb")
        st2, self.stamps, cs = self.stamps, False, self.cstamp
        self.cstamp = False
        cold.extend(self.combine(0))
        self.stamps, self.cstamp = st2, cs
        cold(f"s_branch {n}_redo")
        out.label(f"{n}_agree")
        out.extend(self.agree_bad())
        out.label(f"{n}_redo")
        out(f"s_cmp_eq_u32 s{S_BAD}, 0\ns_cbranch_scc1 {n}_fin")
        out(f"""s_and_b32 s39, s{S_BAD}, 1
        s_xor_b32 s{S_ITEM}, s39, 1
        s_lshl_b32 s39, 1, s{S_ITEM}
        s_andn2_b32 s{S_BAD}, s{S_BAD}, s39
        s_mov_b32 s{S_SAFE}, 1
        s_lshl_b32 s{S_GOFF}, s{S_ITEM}, 18
        s_add_u32 s{S_DSLOT}, s{S_DBASE}, {SLOT if self.kvdma else 0}
        s_mov_b32 s{S_RSLOT}, {SLOT if self.kvdma else 0}
        s_branch {n}_qpL""")
        out.label(f"{n}_fin")
        out(f"""s_lshl_b32 s39, s2, 7
        s_add_u32 s39, s39, {48 << 20}
        s_add_u32 s72, s68, s39
        s_addc_u32 s73, s69, 0
        v_mov_b32 v2, 0
        v_lshlrev_b32 v3, 2, v{V_LANE}
        s_mov_b32 exec_hi, 0
        global_store_dword v3, v2, s[72:73]
        s_mov_b32 exec_hi, -1""")
        self.cold = cold
        if self.stamps and self.dbg_stamps is not None:
            out(f"""s_cmp_lg_u32 s2, {self.dbg_stamps}
            s_cbranch_scc1 {n}_done
            s_cmp_lg_u32 s{S_W}, 0
            s_cbranch_scc1 {n}_done
            s_memrealtime s[72:73]
            s_waitcnt lgkmcnt(0)
            s_mov_b32 s95, s72
            s_add_u32 s68, s68, {64 << 20}
            s_addc_u32 s69, s69, 0
            v_mov_b32 v2, 0""")
            for i in range(16):
                out(f"v_mov_b32 v3, s{80+i}\nglobal_store_dword v2, v3, s[68:69] offset:{4*i}")
        elif self.stamps:
            out(f"""s_lshl_b32 s39, s2, 2
            s_add_u32 s39, s39, s{S_W}
            s_lshl_b32 s39, s39, 6
            s_add_u32 s39, s39, {64 << 20}
            s_add_u32 s68, s68, s39
            s_addc_u32 s69, s69, 0
            v_mov_b32 v2, 0""")
            for i in range(16):
                out(f"v_mov_b32 v3, s{80+i}\nglobal_store_dword v2, v3, s[68:69] offset:{4*i}")
        if self.fuse is not None:
            out.label(f"{n}_pub")
            out(f"""s_load_dwordx2 s[78:79], s[0:1], 88
            s_waitcnt vmcnt(0) lgkmcnt(0)
            s_barrier
            s_cmp_lg_u32 s{S_W}, 0
            s_cbranch_scc1 {n}_pub2
            s_lshl_b32 s39, s{S_BLK}, 3
            s_add_u32 s39, s39, s{S_B}
            s_lshl_b32 s39, s39, 2
            v_mov_b32 v2, s39
            s_lshl_b32 s40, 3, s{S_H0}
            v_mov_b32 v3, s40
            s_mov_b64 exec, 1
            global_atomic_or v2, v3, s[78:79]
            s_mov_b64 exec, -1
            {n}_pub2:
            {n}_op:""")
            out.extend(self.fuse)
        out.label(f"{n}_done")
        out("s_endpgm")
        out.extend(self.cold)
        labs = {it.text for it in out.items if it.kind == 'label'}
        for r in self.rare:
            back = r.items[-1].ops[0] + ':'
            if back in labs: out.extend(r)
        return kernel_text(n, out.text(), vgpr=512, sgpr=102, acc=256), LDS_TOTAL

if __name__ == '__main__':
    import sys
    b = dict(nt_w=True)
    variants = [('fa_a_kernel', dict(b)), ('fa_c_kernel', dict(b, cstamp=True)), ('fa_forcebad_kernel', dict(b, force_bad=True))]
    hdr = ''; body = ''
    for nm, kw in variants:
        txt, lds = FA(name=nm, stamps=True, **kw).build()
        hdr += f"; @launch kernel={nm} grid=(256,1,1) block=(256,1,1) lds={lds}\n"
        body += txt
    open('fa.s', 'w').write(hdr + '.amdgcn_target "amdgcn-amd-amdhsa--gfx950"\n.text\n' + body)
```

```python
import sys, importlib
sys.path.insert(0, 'gen')
import fa as fa_mod, fa_v2, fa_v3, oproj3, oproj4, oproj5, oproj5b, oproj6
DESC = """; Two launches (generated by the author's own Python scripts):
"""
def make(path, fa_kw=None, op_kw=None, order='fo', mod=fa_mod, opmod=oproj3):
    f = mod.FA(name='fa_kernel', **(fa_kw or {}))
    t1, l1 = f.build()
    t2, l2 = opmod.gen_oproj('oproj_kernel', **(op_kw or {}))
    hdr = open('concat_heads__mha_block_cached__gqa_block_cached__near_ridge.s.ref').read().split('; Override')[0]
    for k in order:
        if k == 'f': hdr += f"; @launch kernel=fa_kernel grid=(256,1,1) block=(256,1,1) lds={l1}\n"
        else: hdr += f"; @launch kernel=oproj_kernel grid=(256,1,1) block=(256,1,1) lds={l2}\n"
    hdr += DESC
    open(path, 'w').write(hdr + '.amdgcn_target "amdgcn-amd-amdhsa--gfx950"\n.text\n' + t1 + t2)
def make_fused(path, fa_kw=None, op_kw=None, kname='fa_kernel', listfmt=True):
    op = oproj4.gen_oproj(kname + '_o', fused=True, **(op_kw or {}))
    kw = dict(fa_kw or {})
    kw['op_label'] = kname + '_op'
    f = fa_mod.FA(name=kname, fuse=op, **kw)
    t1, l1 = f.build()
    hdr = open('concat_heads__mha_block_cached__gqa_block_cached__near_ridge.s.ref').read().split('; Override')[0]
    if listfmt: hdr += f"; @launch kernel={kname} grid=(256,1,1) block=(256,1,1) lds={l1}\n"
    else: hdr += f"; @launch grid=(256,1,1) block=(256,1,1) lds={l1}\n"
    open(path, 'w').write(hdr + '.amdgcn_target "amdgcn-amd-amdhsa--gfx950"\n.text\n' + t1)
if __name__ == '__main__':
    M = 'cdna_kernels/'
    base = dict(op_label='oproj_kernel', nt_w=True, pf_code2=True, st_flags=' sc1', omt=True, pf_wo=True, pf_late_g=4)
    make(M + 'concat_heads__mha_block_cached__gqa_block_cached__near_ridge.s', fa_kw=dict(base), op_kw=dict(out_fl=' sc1'), opmod=oproj5)
```

```python
from asmlib import *
import math

RING = 0
SLOT = 32768
STG = 98304
XB = [STG, STG + 18432]
WB = [STG + 36864 + 8192 * i for i in range(3)]
QX = STG
LDS_TOTAL = 163840
O_WS_OFF = 0
CSCALE = math.log2(math.e) / math.sqrt(128.0)

import struct
def f2u(x): return struct.unpack('<I', struct.pack('<f', x))[0]

V_LANE = 1
V_RING = 10
V_KPAT, V_VPAT, V_KA, V_VA = 20, 24, 28, 32
V_P = 36
V_MX, V_T1, V_T2, V_T3 = 48, 49, 50, 51
V_ONES = 52
V_NEGM = 56
V_L = 76
V_S = 96
V_KF = {'A': 120, 'B': 184}
V_VF = {'A': 152, 'B': 216}
A_O = 0
A_Q = 160
V_XD, V_WD = 106, 98
V_WD2 = 96
V_WPH = 112
V_ZERO = 116
QXBASE = 98304
V_PFW, V_PFX, V_PFD = 14, 15, 16
V_RINGK, V_RINGV = 17, 18
V_RINGH = 248
V_VA2 = 252
V_XPAT = 100
V_WPAT = 104
V_XA = 106
V_WA = 110
QF_W = [120, 156]
QF_X = [136, 172]

S_W, S_QH, S_HH, S_BLK, S_B, S_H0 = 24, 25, 26, 27, 28, 29
S_CH, S_DSLOT, S_RSLOT, S_CNT = 30, 31, 32, 33
S_T = 34
S_GOFF, S_LB, S_TMP, S_TMP2 = 41, 42, 40, 43
S_DWRAP, S_DBASE = 30, 42
S_XI, S_WI, S_XOFF, S_WOFF, S_XBUF, S_WBUF, S_XRB, S_WRB = 44, 45, 46, 47, 48, 49, 50, 51
S_XW_G, S_XW_L = 54, 55
S_XC = 96
S_WW_L, S_WLIM = 101, 56
S_BAD, S_SAFE, S_NREC2 = 44, 45, 53
S_KOOB = 51
S_FREE = 49
S_ITEM = 58
S_FL = 59
S_QI = 70
S_FLAG = 72
S_LATE, S_PR, S_FI, S_FMAX, S_FG, S_FL2 = 71, 74, 75, 52, 53, 56
S_KVO = 66

QP_PAT = [98, 99, 100, 101, 102, 103, 104, 105, 106, 107, 108, 109, 110]
def qacc(k): return (56 + 4 * k) if k < 10 else (192 + 4 * (k - 10))
def acc_o(slot, jl): return A_O + slot * 32 + jl * 4
def q_frag(slot, jp): return A_Q + slot * 16 + jp * 4
def rng(f, b, n=4): return f"{f}[{b}:{b+n-1}]"

def interleave(M, fillers, start=0):
    out = []
    k = 0
    for i, m in enumerate(M):
        out.append(m)
        if i >= start and k < len(fillers):
            out += fillers[k]; k += 1
    while k < len(fillers):
        out += fillers[k]; k += 1
    return out

def spread(M, groups, start=0):
    m = len(M) - start
    n = len(groups)
    out = []
    for i, x in enumerate(M):
        out.append(x)
        if i >= start:
            k = i - start
            for g in groups[(k * n) // m:((k + 1) * n) // m]:
                out += g
    return out

class FA:
    def __init__(self, name='fa_kernel', nt_kv=True, nt_w=False, nt_x=False, dbg=None, order='early', stamps=False, pf_qp=True, pf_att=True, late_bit=1, x_nodma=False, x_nosm=False, x_nobr=False, x_nord=False, x_nobar=False, x_qv=False, q_nodma=False, q_nord=False, q_nobar=False, q_nowait=False, same_kv=False, x_nohead=False, x_noX=False, x_nomax=False, fill_qp=True, fast=True, force_bad=False, pf_wo=False, pf_code=False, op_label=None, dbg_stamps=None, pf0=False, pf1=False, pf_nt=False, qstamp=False, cstamp=False, st_flags='', qp0_nt=False, pf0x=False, rot=False, pf_tlb=False, dbg_rt=False, pf_code2=False, kvreg=False, kvdma=True, qn1=4, cfast=True, c_nost=False, c_nonan=False, c_now=False, fuse=None, omt=False, op_end='oproj_kernel_done', altmap=False, pf_wo_early=False, pf_wo_spread=False, pf_late_g=4, wsb=0, pf_wo_qp=False, pf_wo_at=None, pf_wo_end=False, op_pf_end=False, cpf_a=True, cpf_fl=''):
        self.cpf_a, self.cpf_fl = cpf_a, cpf_fl
        self.op_pf_end = op_pf_end
        self.pf_wo_end = pf_wo_end
        self.pf_wo_at = pf_wo_at
        self.pf_wo_qp = pf_wo_qp
        self.wsb = wsb
        self.pf_late_g = pf_late_g
        self.pf_wo_spread = pf_wo_spread
        self.pf_wo_early = pf_wo_early
        self.altmap = altmap
        self.op_end = op_end
        self.omt = omt
        self.fuse = fuse
        self.c_nost, self.c_nonan, self.c_now = c_nost, c_nonan, c_now
        self.cfast = cfast
        self.qn1 = qn1
        self.kvdma = kvdma
        self.kvreg = kvreg
        self.pf_code2 = pf_code2
        self.dbg_rt = dbg_rt
        self.pf_tlb = pf_tlb
        self.rot = rot
        self.st_flags, self.qp0_nt, self.pf0x = st_flags, qp0_nt, pf0x
        self.cstamp = cstamp
        self.qstamp = qstamp
        self.pf0, self.pf1 = pf0, pf1
        self.pf_nt = ' nt' if pf_nt else ''
        self.dbg_stamps = dbg_stamps
        self.pf_wo, self.pf_code, self.op_label = pf_wo, pf_code, op_label
        self.fast = fast
        self.force_bad = force_bad
        self.fill_qp = fill_qp
        self.x_nomax = x_nomax
        self.x_nohead, self.x_noX = x_nohead, x_noX
        self.same_kv = same_kv
        self.q_nowait = q_nowait
        self.q_nodma, self.q_nord, self.q_nobar = q_nodma, q_nord, q_nobar
        self.x_nodma, self.x_nosm, self.x_nobr, self.x_nord, self.x_nobar, self.x_qv = x_nodma, x_nosm, x_nobr, x_nord, x_nobar, x_qv
        self.pf_qp = pf_qp
        self.pf_att = pf_att
        self.late_bit = late_bit
        self.stamps = stamps
        self.nst = 0
        self.name = name
        self.nt_kv = ' nt' if nt_kv else ''
        self.nt_w = ' nt' if nt_w else ''
        self.nt_x = ' nt' if nt_x else ''
        self.dbg = dbg
        self.order = order
        self.rare = []
        self.uid = 0

    def setup(self):
        P = Prog()
        n = self.name
        P(f"""
        s_cmp_ge_u32 s2, 256
        s_cbranch_scc1 {n}_done
        s_and_b32 s39, s2, 7
        s_lshr_b32 s40, s2, 3
        {'s_and_b32' if self.altmap else 's_lshr_b32'} s{S_BLK}, s39, {1 if self.altmap else 2}
        {'s_lshr_b32' if self.altmap else 's_and_b32'} s39, s39, {1 if self.altmap else 3}
        s_and_b32 s{S_B}, s40, 7
        s_lshr_b32 s40, s40, 3
        s_mov_b32 s{S_PR}, s40
        s_lshl_b32 s39, s39, 3
        s_lshl_b32 s40, s40, 1
        s_add_u32 s{S_H0}, s39, s40
        s_mul_i32 s39, s{S_BLK}, 40
        s_add_u32 s60, s0, s39
        s_addc_u32 s61, s1, 0
        s_load_dwordx2 s[4:5], s[60:61], 0
        s_load_dwordx2 s[62:63], s[60:61], 8
        s_load_dwordx2 s[64:65], s[60:61], 16
        s_load_dwordx2 s[66:67], s[60:61], 24
        s_load_dwordx2 s[68:69], s[0:1], 96
        s_load_dwordx2 s[76:77], s[60:61], 32
        v_lshrrev_b32 v2, 6, v0
        v_and_b32 v{V_LANE}, 63, v0
        v_readfirstlane_b32 s{S_W}, v2
        s_and_b32 s{S_QH}, s{S_W}, 1
        s_lshr_b32 s{S_HH}, s{S_W}, 1
        """)
        L = V_LANE
        P(f"""
        v_lshrrev_b32 v2, 4, v{L}
        v_and_b32 v3, 15, v{L}
        v_xor_b32 v4, v3, v2
        v_lshlrev_b32 v5, 2, v2
        v_xor_b32 v5, v3, v5
        v_lshlrev_b32 v4, 4, v4
        v_lshlrev_b32 v5, 4, v5
        v_lshlrev_b32 v2, 8, v2
        v_add_u32 v{V_RINGK}, v4, v2
        v_add_u32 v{V_RINGV}, v5, v2
        s_cmp_eq_u32 s{S_QH}, 0
        s_cselect_b32 s39, 64, 16
        s_cselect_b64 vcc, -1, 0
        v_cndmask_b32 v{V_RING}, v{V_RINGV}, v{V_RINGK}, vcc
        v_xor_b32 v{V_RING+1}, s39, v{V_RING}
        s_lshl_b32 s40, s39, 1
        v_xor_b32 v{V_RING+2}, s40, v{V_RING}
        s_add_u32 s40, s40, s39
        v_xor_b32 v{V_RING+3}, s40, v{V_RING}
        v_add_u32 v{V_RINGH}, 4096, v{V_RING}
        v_add_u32 v{V_RINGH+1}, 4096, v{V_RING+1}
        v_add_u32 v{V_RINGH+2}, 4096, v{V_RING+2}
        v_add_u32 v{V_RINGH+3}, 4096, v{V_RING+3}
        """)
        P(self.pf_setup())
        P(f"""
        v_and_b32 v3, 15, v{L}
        v_lshrrev_b32 v2, 4, v{L}
        v_xor_b32 v4, v2, v3
        v_lshlrev_b32 v4, 4, v4
        v_lshlrev_b32 v5, 8, v3
        s_lshl_b32 s39, s{S_HH}, 14
        v_add_u32 v5, s39, v5
        """)
        for jp in range(4):
            P(f"v_xor_b32 v6, {64*jp}, v4\nv_add_u32 v{V_KPAT+jp}, v5, v6")
        P(f"""
        v_lshrrev_b32 v3, 2, v{L}
        v_and_b32 v3, 3, v3
        v_and_b32 v4, 3, v{L}
        v_xor_b32 v4, v4, v2
        v_lshlrev_b32 v4, 4, v4
        v_lshlrev_b32 v5, 6, v3
        v_add_u32 v4, v4, v5
        v_lshlrev_b32 v5, 2, v2
        v_add_u32 v5, v5, v3
        v_lshlrev_b32 v5, 8, v5
        s_lshl_b32 s39, s{S_HH}, 14
        s_add_u32 s39, s39, 8192
        v_add_u32 v5, s39, v5
        """)
        for ml in range(4):
            P(f"""
            s_lshl_b32 s39, s{S_HH}, 1
            s_add_u32 s39, s39, {ml}
            s_and_b32 s39, s39, 3
            s_lshl_b32 s39, s39, 6
            v_xor_b32 v6, s39, v4
            v_add_u32 v{V_VPAT+ml}, v5, v6
            """)
        if self.pf_code:
            P(f"""
            s_lshr_b32 s39, s2, 3
            s_cmp_ge_u32 s39, 16
            s_cbranch_scc1 {n}_npc
            s_cmp_lg_u32 s{S_W}, 0
            s_cbranch_scc1 {n}_npc
            s_getpc_b64 s[72:73]
            {n}_pc0:
            s_lshl_b32 s39, s39, 13
            s_add_u32 s72, s72, s39
            s_addc_u32 s73, s73, 0
            v_lshlrev_b32 v3, 7, v{L}
            global_load_dword v{V_PFD}, v3, s[72:73]
            {n}_npc:
            """)
        for r in range(4):
            P(f"v_mov_b32 v{V_ONES+r}, 0x3f803f80")
        P.extend(self.qp_patterns())
        P("s_waitcnt lgkmcnt(0)")
        if self.wsb: P(f"s_add_u32 s68, s68, {self.wsb}\ns_addc_u32 s69, s69, 0")
        P(f"""
        s_cmp_eq_u32 s{S_QH}, 0
        s_cselect_b32 s8, s62, s64
        s_cselect_b32 s9, s63, s65
        s_lshl_b32 s39, s{S_B}, 5
        s_add_u32 s39, s39, s{S_H0}
        s_lshr_b32 s40, s39, 14
        s_lshl_b32 s39, s39, {18 if not self.same_kv else 31}
        s_and_b32 s39, s39, {'-1' if not self.same_kv else '0'}
        s_add_u32 s8, s8, s39
        s_addc_u32 s9, s9, s40
        s_lshl_b32 s39, s{S_HH}, 13
        s_add_u32 s8, s8, s39
        s_addc_u32 s9, s9, 0
        s_and_b32 s9, s9, 0xffff
        s_sub_u32 s10, {2*262144}, s39
        s_mov_b32 s11, 0x20000
        s_mul_i32 s39, s{S_B}, {144*2048}
        s_add_u32 s12, s4, s39
        s_addc_u32 s13, s5, 0
        s_and_b32 s13, s13, 0xffff
        s_mov_b32 s14, {144*2048}
        s_mov_b32 s15, 0x20000
        s_lshl_b32 s39, s{S_H0}, 8
        s_add_u32 s16, s66, s39
        s_addc_u32 s17, s67, 0
        s_and_b32 s17, s17, 0xffff
        s_sub_u32 s18, {1024*8192}, s39
        s_mov_b32 s19, 0x20000
        s_lshl_b32 s39, s{S_BLK}, 3
        s_add_u32 s39, s39, s{S_B}
        s_lshl_b32 s39, s39, 5
        s_add_u32 s39, s39, s{S_H0}
        s_mul_i32 s39, s39, 36864
        s_add_u32 s20, s68, s39
        s_addc_u32 s21, s69, 0
        s_add_u32 s20, s20, {O_WS_OFF}
        s_addc_u32 s21, s21, 0
        s_and_b32 s21, s21, 0xffff
        s_mov_b32 s22, {2*36864}
        s_mov_b32 s23, 0x20000
        s_lshl_b32 s{S_DBASE}, s{S_W}, 13
        s_add_u32 s{S_DSLOT}, s{S_DBASE}, {SLOT if self.kvdma else 0}
        s_add_u32 s{S_DWRAP}, s{S_DBASE}, {3*SLOT}
        s_mov_b32 s{S_GOFF}, 0
        s_mov_b32 s{S_RSLOT}, {SLOT if self.kvdma else 0}
        s_mov_b32 s{S_ITEM}, 0
        s_mov_b32 s{S_QI}, 0
        s_mov_b32 s{S_FMAX}, 1
        s_lshl_b32 s39, s{S_B}, 5
        s_add_u32 s39, s39, s{S_H0}
        s_lshl_b32 s{S_KVO}, s39, 18
        s_mov_b32 s{S_KVO+1}, 0
        s_lshr_b32 s39, s{S_H0}, 3
        s_lshl_b32 s39, s39, 5
        s_lshr_b32 s40, s2, 3
        s_add_u32 s39, s39, s40
        s_lshl_b32 s39, s39, 16
        s_add_u32 s76, s76, s39
        s_addc_u32 s77, s77, 0
        s_and_b32 s77, s77, 0xffff
        s_mov_b32 s78, 65536
        s_mov_b32 s79, 0x20000
        v_lshlrev_b32 v19, 7, v{L}
        """)
        if self.order == 'early': P(f"s_mov_b32 s{S_LATE}, 0")
        elif self.order == 'late': P(f"s_mov_b32 s{S_LATE}, 1")
        else: P(f"s_lshr_b32 s{S_LATE}, s2, {self.late_bit}\ns_and_b32 s{S_LATE}, s{S_LATE}, 1")
        P(f"""s_xor_b32 s{S_FMAX}, s{S_LATE}, 1
        s_mov_b32 s{S_BAD}, 0
        s_mov_b32 s{S_SAFE}, 0
        s_mov_b32 s{S_NREC2}, s10
        s_mov_b32 s{S_QI}, 0""")
        if self.pf0:
            for x in self.pf_w(f"s{S_W}", "0"): P(x)
            for x in self.pf_x(f"s{S_W}"): P(x)
            P(f"s_add_u32 s39, s{S_W}, 4")
            for x in self.pf_x("s39"): P(x)
            P(f"s_add_u32 s39, s{S_W}, 8\ns_min_u32 s39, s39, 8")
            for x in self.pf_x("s39"): P(x)
            P(f"s_cmp_eq_u32 s{S_LATE}, 0\ns_cbranch_scc1 {n}_npf0")
            for x in self.pf_w(f"s{S_W}", "1"): P(x)
            P.label(f"{n}_npf0")
        if self.pf0x:
            for x in self.pf_x(f"s{S_W}"): P(x)
            P(f"s_add_u32 s39, s{S_W}, 4")
            for x in self.pf_x("s39"): P(x)
            P(f"s_add_u32 s39, s{S_W}, 8\ns_min_u32 s39, s39, 8")
            for x in self.pf_x("s39"): P(x)
            P(f"s_cmp_eq_u32 s{S_LATE}, 0\ns_cbranch_scc1 {n}_npf0x")
            for x in self.pf_w(f"s{S_W}", "1"): P(x)
            P.label(f"{n}_npf0x")
        if self.pf_tlb:
            P(f"""
            s_cmp_lg_u32 s{S_W}, 0
            s_cbranch_scc1 {n}_ntlb
            s_lshr_b32 s39, s2, 3
            s_lshl_b32 s39, s39, 18
            v_lshlrev_b32 v2, 13, v{V_LANE}
            s_mov_b32 exec_hi, 0
            buffer_load_dword v{V_PFD}, v2, s[16:19], s39 offen
            s_mul_i32 s39, s{S_PR}, {18*4096}
            v_lshlrev_b32 v2, 12, v{V_LANE}
            s_mov_b32 exec_lo, 0x3ffff
            buffer_load_dword v{V_PFD}, v2, s[12:15], s39 offen
            s_mov_b64 exec, -1
            {n}_ntlb:
            """)
        return P

    def ring_instrs(self):
        nt = self.nt_kv
        D = []
        for m in range(8):
            g = []
            if m == 0: g.append(f"s_mov_b32 m0, s{S_DSLOT}")
            if m == 4: g.append(f"s_add_u32 m0, s{S_DSLOT}, 4096")
            v = V_RING + m if m < 4 else V_RINGH + m - 4
            g.append(f"buffer_load_dwordx4 v{v}, s[8:11], s{S_GOFF} offen offset:{(m & 3) * 1024}{nt} lds")
            D.append(g)
        adv = [f"s_add_u32 s{S_GOFF}, s{S_GOFF}, 16384",
               f"s_add_u32 s{S_DSLOT}, s{S_DSLOT}, {SLOT}",
               f"s_cmp_eq_u32 s{S_DSLOT}, s{S_DWRAP}",
               f"s_cselect_b32 s{S_DSLOT}, s{S_DBASE}, s{S_DSLOT}"]
        return D, adv
    def ring_groups(self):
        D, adv = self.ring_instrs()
        return D + [adv]

    def ring_fill(self):
        P = Prog()
        for _ in range(3):
            for g in self.ring_groups():
                for x in g: P(x)
        return P

    def pf_setup(self):
        L = V_LANE
        return f"""
        v_lshrrev_b32 v2, 1, v{L}
        v_lshlrev_b32 v2, 13, v2
        v_and_b32 v3, 1, v{L}
        v_lshlrev_b32 v3, 7, v3
        v_add_u32 v{V_PFW}, v2, v3
        v_lshrrev_b32 v2, 4, v{L}
        v_lshlrev_b32 v2, 11, v2
        v_and_b32 v3, 15, v{L}
        v_lshlrev_b32 v3, 7, v3
        v_add_u32 v{V_PFX}, v2, v3
        """
    def pf_w(self, i_expr_sgpr, head_sgpr):
        return [f"s_lshl_b32 s{S_TMP}, s{S_B}, 20",
                f"s_lshl_b32 s{S_TMP2}, {i_expr_sgpr}, 18",
                f"s_add_u32 s{S_TMP}, s{S_TMP}, s{S_TMP2}",
                f"s_lshl_b32 s{S_TMP2}, {head_sgpr}, 8",
                f"s_add_u32 s{S_TMP}, s{S_TMP}, s{S_TMP2}",
                f"buffer_load_dword v{V_PFD}, v{V_PFW}, s[16:19], s{S_TMP} offen{self.pf_nt}"]
    def pf_x(self, i_expr):
        return [f"s_mul_i32 s{S_TMP}, s{S_PR}, {36*2048}",
                f"s_lshl_b32 s{S_TMP2}, {i_expr}, 13",
                f"s_add_u32 s{S_TMP}, s{S_TMP}, s{S_TMP2}",
                f"buffer_load_dword v{V_PFD}, v{V_PFX}, s[12:15], s{S_TMP} offen{self.pf_nt}"]

    def code_pf(self, label, uid, waves_chunks, end_label=None, pre=(), fl=''):
        n = self.name
        end_label = end_label or f"{n}_done"
        return list(pre) + [f"s_cmp_ge_u32 s{S_W}, {waves_chunks}", f"s_cbranch_scc1 {n}_ncp{uid}",
                f"s_getpc_b64 s[60:61]", f"{n}_cp{uid}:",
                f"s_add_u32 s60, s60, {label}-{n}_cp{uid}", f"s_addc_u32 s61, s61, 0",
                f"s_lshl_b32 s39, s{S_W}, 13",
                f"v_add_u32 v2, s39, v19",
                f"s_mov_b32 s39, {end_label}-{label}",
                f"v_cmp_gt_u32 vcc, s39, v2",
                f"s_and_saveexec_b64 s[72:73], vcc",
                f"s_cbranch_execz {n}_rcp{uid}",
                f"global_load_dword v{V_PFD}, v2, s[60:61]{fl}",
                f"{n}_rcp{uid}:",
                f"s_mov_b64 exec, s[72:73]",
                f"{n}_ncp{uid}:"]

    def qp_patterns(self):
        L = V_LANE
        P = Prog()
        P(f"""
        v_lshrrev_b32 v2, 3, v{L}
        v_and_b32 v3, 7, v{L}
        v_lshrrev_b32 v4, 4, v{L}
        v_xor_b32 v3, v3, v4
        v_lshlrev_b32 v3, 4, v3
        v_lshlrev_b32 v2, 11, v2
        v_add_u32 v2, v2, v3
        """)
        for x in range(5):
            P(f"""
            s_mul_i32 s39, s{S_W}, 5
            s_add_u32 s39, s39, {x}
            s_cmp_gt_u32 s39, 17
            s_cselect_b32 s40, 2, 0
            s_sub_u32 s39, s39, s40
            s_lshl_b32 s{S_XC+x}, s39, 10
            s_and_b32 s40, s39, 1
            s_lshl_b32 s40, s40, 6
            v_xor_b32 v3, s40, v2
            s_lshl_b32 s39, s39, 14
            v_add_u32 v{V_XD+x}, s39, v3
            """)
        P(f"""
        v_lshrrev_b32 v2, 4, v{L}
        v_and_b32 v3, 15, v{L}
        v_lshlrev_b32 v4, 2, v2
        v_xor_b32 v3, v3, v4
        v_xor_b32 v3, s{S_W}, v3
        v_lshlrev_b32 v3, 4, v3
        v_lshlrev_b32 v4, 13, v2
        v_add_u32 v3, v3, v4
        s_lshl_b32 s39, s{S_W}, 16
        v_add_u32 v{V_WD}, s39, v3
        v_add_u32 v{V_WD+1}, 32768, v{V_WD}
        v_and_b32 v3, 15, v{L}
        v_lshrrev_b32 v4, 1, v3
        v_xor_b32 v4, v4, v2
        v_lshlrev_b32 v4, 4, v4
        v_lshlrev_b32 v5, 7, v3
        v_xor_b32 v6, 64, v4
        v_add_u32 v4, v4, v5
        v_add_u32 v6, v6, v5
        s_lshl_b32 s39, s{S_QH}, 13
        s_add_u32 s39, s39, {QXBASE}
        v_add_u32 v{V_XPAT}, s39, v4
        v_add_u32 v{V_XPAT+1}, s39, v6
        v_add_u32 v{V_XPAT+2}, {8*2048 + QXBASE}, v4
        v_add_u32 v{V_XPAT+3}, {8*2048 + QXBASE}, v6
        v_lshrrev_b32 v3, 2, v{L}
        v_and_b32 v3, 3, v3
        v_and_b32 v4, 3, v{L}
        v_xor_b32 v4, v4, v2
        v_lshlrev_b32 v4, 4, v4
        v_lshlrev_b32 v5, 6, v3
        v_add_u32 v4, v4, v5
        v_lshlrev_b32 v5, 3, v2
        v_add_u32 v5, v5, v3
        v_lshlrev_b32 v5, 8, v5
        """)
        for p in range(2):
            P(f"""
            s_xor_b32 s39, s{S_QH}, {p}
            s_lshl_b32 s40, s{S_HH}, 1
            s_add_u32 s39, s39, s40
            s_lshl_b32 s39, s39, 6
            v_xor_b32 v6, s39, v4
            v_add_u32 v{V_WPAT+p}, v5, v6
            """)
        for k, r in enumerate(QP_PAT): P(f"v_accvgpr_write_b32 a{240+k}, v{r}")
        P(f"s_lshl_b32 s{S_WW_L}, s{S_W}, 11")
        return P

    def qp2(self, tag):
        n = self.name
        L = V_LANE
        NX, NW = 3, 6
        XB0 = 98304
        PER = 6
        NIT = 4
        FW = [120, 172]; FX = [152, 204]
        P = Prog()
        for k, r in enumerate(QP_PAT): P(f"v_accvgpr_read_b32 v{r}, a{240+k}")
        P(f"""
        v_add_u32 v{V_WD2}, 256, v{V_WD}
        v_add_u32 v{V_WD2+1}, 256, v{V_WD+1}
        v_add_u32 v{V_WPH}, 65536, v{V_WPAT}
        v_add_u32 v{V_WPH+1}, 65536, v{V_WPAT+1}
        s_mov_b32 s{S_WOFF}, 0
        s_mov_b32 s{S_XOFF}, 0
        """)
        def x_groups(buf):
            G = []
            for x in range(5):
                G.append([f"s_add_u32 m0, s{S_XC+x}, {XB0 + buf*18432}",
                          f"buffer_load_dwordx4 v{V_XD+x}, s[12:15], s{S_XOFF} offen{self.nt_x} lds"])
            G.append([f"s_add_u32 s{S_XOFF}, s{S_XOFF}, 128"])
            return G
        def w_groups(buf):
            G = []
            for h in range(2):
                for x in range(2):
                    G.append([f"s_add_u32 m0, s{S_WW_L}, {buf*16384 + h*8192 + x*1024}",
                              f"buffer_load_dwordx4 v{(V_WD if h == 0 else V_WD2) + x}, s[16:19], s{S_WOFF} offen{self.nt_w} lds"])
            G.append([f"s_add_u32 s{S_WOFF}, s{S_WOFF}, {1 << 18}"])
            return G
        def read_groups(k, i):
            G = []
            wbuf = i % NW
            wp = V_WPAT if wbuf < 4 else V_WPH
            wb = (wbuf % 4) * 16384
            xb = ((i >> 1) % NX) * 18432
            ss = i & 1
            GX = []
            for t in range(4):
                GX.append([f"ds_read_b128 {rng('v', FX[k]+4*t)}, v{V_XPAT+ss} offset:{xb + t*2048}"])
            GX.append([f"ds_read_b128 {rng('v', FX[k]+16)}, v{V_XPAT+2+ss} offset:{xb}"])
            for h in range(2):
                for jl in range(4):
                    a = FW[k] + 16 * h + 4 * jl
                    p, hh = jl >> 1, jl & 1
                    G.append([f"ds_read_b64_tr_b16 v[{a}:{a+1}], v{wp+p} offset:{wb + h*8192 + 8*hh}"])
                    G.append([f"ds_read_b64_tr_b16 v[{a+2}:{a+3}], v{wp+p} offset:{wb + h*8192 + 8*hh + 1024}"])
            return G[:8] + GX + G[8:]
        def qa(h, k): return 72 * h + 4 * k
        def mf(k):
            M = []
            for h in range(2):
                for t in range(4):
                    for jl in range(4):
                        a = qa(h, 4 * t + jl)
                        M.append(f"v_mfma_f32_16x16x32_bf16 {rng('a', a)}, {rng('v', FW[k]+16*h+4*jl)}, {rng('v', FX[k]+4*t)}, {rng('a', a)}")
                for x in range(2):
                    a = qa(h, 16 + x)
                    M.append(f"v_mfma_f32_16x16x32_bf16 {rng('a', a)}, {rng('v', FW[k]+16*h+4*x)}, {rng('v', FX[k]+16)}, {rng('a', a)}")
            return M
        pro = []
        xi = wi = 0
        while xi < NX or wi < NW:
            if xi < NX and 2 * xi <= wi: pro.append(('X', xi)); xi += 1
            elif wi < NW: pro.append(('W', wi)); wi += 1
            else: pro.append(('X', xi)); xi += 1
        cnt = {'X': 5, 'W': 4, 'K': 8, 'P': 1}
        kv_at = {27: 0, 29: 1, 31: 2} if self.kvdma else {}
        seq = list(pro)
        def outstanding_after(need):
            idx = [i for i, it in enumerate(seq) if it in need]
            last = max(idx)
            return sum(cnt[k] for k, _ in seq[last + 1:])
        waits = {}
        for i in range(0, 32):
            need = set()
            if i + 1 < 32: need = {('W', i + 1), ('X', (i + 1) >> 1)}
            waits[i] = outstanding_after(need) if need else 63
            if i + NW < 32: seq.append(('W', i + NW))
            if (i & 1) and (i >> 1) + NX < 16: seq.append(('X', (i >> 1) + NX))
            if i in kv_at: seq.append(('K', kv_at[i]))
            if self.pf_wo_qp and i < NIT * PER and (i % PER) in (1, 4): seq.append(('P', i))
            if self.pf_wo_at == i: seq.append(('P', 100)); seq.append(('P', 101))
        wr = [min(waits[i] for i in range(r, NIT * PER, PER)) for r in range(PER)]
        assert max(wr) <= 63
        P("s_waitcnt vmcnt(0)\ns_barrier")
        def issue(lst):
            for kind, idx in lst:
                for g in (x_groups(idx) if kind == 'X' else w_groups(idx)):
                    for x in g: P(x)
        n1 = self.qn1
        n2 = len(pro)
        issue(pro[:n1])
        for r in range(0, 144, 4): P(f"v_mfma_f32_16x16x32_bf16 a[{r}:{r+3}], v[{V_ZERO}:{V_ZERO+3}], v[{V_ZERO}:{V_ZERO+3}], 0")
        issue(pro[n1:n2])
        w0 = sum(cnt[k] for k, _ in pro[2:n2])
        P(f"s_waitcnt vmcnt({w0})\ns_barrier")
        if self.qstamp:
            P(f"s_memtime s[72:73]\ns_waitcnt lgkmcnt(0)\ns_mov_b32 s82, s72")
        for g in read_groups(0, 0):
            for x in g: P(x)
        issue(pro[n2:])
        if self.pf_code2:
            if self.cpf_a:
                for x in self.code_pf(f"{n}_hot0", 'a', 3, fl=self.cpf_fl): P(x)
        if self.pf_wo_early:
            for i in range(2):
                P(f"s_lshl_b32 s39, s{S_W}, 14\ns_add_u32 s39, s39, {8192*i}\nbuffer_load_dword v{V_PFD}, v19, s[76:79], s39 offen")
        P(f"s_waitcnt lgkmcnt(0)\ns_mov_b32 s{S_CNT}, {NIT}")
        Z = Prog()
        for r in range(4): Z(f"v_mov_b32 v{V_ZERO+r}, 0")
        P.items = Z.items + P.items
        pre, _ = finalize_linear(P.items)
        out = Prog(); out.extend(pre)
        def substep(body, i, wait, inloop=False):
            ss = i & 1
            body(f"s_waitcnt vmcnt({min(wait, 63)}) lgkmcnt(0)")
            body("s_barrier")
            R = read_groups(1 - ss, i + 1) if i + 1 < 32 else []
            D = []
            if i + NW < 32: D += w_groups(i % NW)
            if (i & 1) and (i >> 1) + NX < 16: D += x_groups((i >> 1) % NX)
            if self.pf_wo_at == i and not inloop:
                for k in range(2):
                    D += [[f"s_lshl_b32 s39, s{S_W}, 14", f"s_add_u32 s39, s39, {8192*k}", f"buffer_load_dword v{V_PFD}, v19, s[76:79], s39 offen"]]
            if i in kv_at: D += self.ring_groups()
            if self.pf_wo_qp and inloop and (i % PER) in (1, 4):
                D += [[f"s_sub_u32 s39, {NIT}, s{S_CNT}", f"s_lshl_b32 s39, s39, 1", f"s_add_u32 s39, s39, {0 if (i % PER) == 1 else 1}",
                       f"s_and_b32 s40, s39, 3", f"s_lshl_b32 s39, s39, 13", f"s_cmp_eq_u32 s40, s{S_W}", f"s_cselect_b32 s39, s39, 65536",
                       f"buffer_load_dword v{V_PFD}, v19, s[76:79], s39 offen"]]
            if self.q_nodma: D = []
            M = mf(ss)
            fill = [[] for _ in M]
            hv = []
            ri = di = 0
            while ri < len(R) or di < len(D):
                for _ in range(2):
                    if ri < len(R): hv.append(R[ri]); ri += 1
                if di < len(D): hv.append(D[di]); di += 1
            npos = len(M)
            k = 0
            for g in hv:
                pos = min(k, npos - 1)
                if 'm0' in g[0] and pos > 0 and not any('buffer_load' in y for y in fill[pos - 1]):
                    fill[pos - 1].append(g[0]); fill[pos] += g[1:]
                else:
                    fill[pos] += g
                if any(('ds_read' in y or 'buffer_load' in y) for y in g): k += 1
            for x in interleave(M, fill): body(x)
        body = Prog()
        for r in range(PER): substep(body, r, wr[r], True)
        if self.qstamp:
            body("s_waitcnt lgkmcnt(0)\ns_memtime s[72:73]\ns_waitcnt lgkmcnt(0)")
            for it in range(4):
                body(f"s_cmp_eq_u32 s{S_CNT}, {4 - it}\ns_cselect_b32 s{83+it}, s72, s{83+it}")
        body(f"s_sub_u32 s{S_CNT}, s{S_CNT}, 1\ns_cmp_lg_u32 s{S_CNT}, 0")
        b, _ = finalize_loop(body.items)
        out.label(f"{n}_qp{tag}")
        out.extend(b)
        out(f"s_cbranch_scc1 {n}_qp{tag}")
        tail = Prog()
        for i in range(NIT * PER, 32): substep(tail, i, waits[i])
        l1, f = auto_lgkm(b, None)
        l2, _ = auto_lgkm(tail.items, f)
        l3 = fix_hazards(l2, wrap=b)
        out.extend(l3)
        out.label(f"{n}_hot0")
        E = Prog()
        E("s_waitcnt lgkmcnt(0)\ns_nop 7\ns_barrier")
        e1, _ = finalize_linear(E.items)
        out.extend(e1)
        return out

    def qconv(self, h, with_fill, nfill=3):
        L = V_LANE
        C = Prog()
        C(f"""
        v_mov_b32 v8, {f2u(CSCALE):#x}
        v_lshlrev_b32 v2, 4, v{L}
        v_add_u32 v2, {QX}, v2
        s_lshl_b32 s40, s{S_QH}, 14
        s_lshl_b32 s{S_TMP2}, s{S_HH}, 11
        s_add_u32 s40, s40, s{S_TMP2}
        s_lshl_b32 s{S_TMP2}, s{S_QH}, 10
        s_add_u32 s{S_XOFF}, s40, s{S_TMP2}
        s_xor_b32 s{S_TMP2}, s{S_TMP2}, 1024
        s_add_u32 s{S_WOFF}, s40, s{S_TMP2}
        v_add_u32 v3, s{S_XOFF}, v2
        v_add_u32 v4, s{S_WOFF}, v2
        s_lshl_b32 s40, s{S_HH}, 11
        s_lshl_b32 s{S_TMP2}, s{S_QH}, 10
        s_add_u32 s40, s40, s{S_TMP2}
        v_add_u32 v5, s40, v2
        """)
        def conv(k0, dst):
            t = dst + 4
            for r in range(8): C(f"v_accvgpr_read_b32 v{t+r}, a{72*h + 4*k0 + r}")
            for r in range(8): C(f"v_mul_f32 v{t+r}, v8, v{t+r}")
            for r in range(4): C(f"v_cvt_pk_bf16_f32 v{dst+r}, v{t+2*r}, v{t+2*r+1}")
        k = 0
        for t in range(4):
            for p in range(2):
                d = 120 + 12 * (k % 9); k += 1
                conv(4 * t + 2 * p, d)
                C(f"ds_write_b128 v{3+p}, {rng('v', d)} offset:{t*4096}")
        d = 120 + 12 * (k % 9)
        conv(16, d)
        C(f"ds_write_b128 v5, {rng('v', d)} offset:{8*4096}")
        if with_fill:
            RF = []
            for _ in range(nfill): RF += self.ring_groups()
            CI = Prog()
            ci = C.items
            step = max(1, len(ci) // len(RF))
            k = 0
            for i, it in enumerate(ci):
                if i % step == 0 and k < len(RF):
                    for x in RF[k]: CI(x)
                    k += 1
                CI.items.append(it)
            while k < len(RF):
                for x in RF[k]: CI(x)
                k += 1
            C = CI
        C("s_waitcnt lgkmcnt(0)\ns_barrier")
        it, _ = finalize_linear(C.items)
        o = Prog(); o.extend(it)
        return o

    def lq(self):
        L = V_LANE
        P = Prog()
        P(f"""
        v_lshlrev_b32 v2, 4, v{L}
        v_add_u32 v2, {QX}, v2
        s_lshl_b32 s39, s{S_QH}, 14
        v_add_u32 v3, s39, v2
        """)
        for t in range(4):
            for jp in range(4):
                P(f"ds_read_b128 {rng('a', q_frag(t, jp))}, v3 offset:{t*4096 + jp*1024}")
        for jp in range(4):
            P(f"ds_read_b128 {rng('a', q_frag(4, jp))}, v2 offset:{8*4096 + jp*1024}")
        P("s_waitcnt lgkmcnt(0)")
        it, _ = finalize_linear(P.items)
        o = Prog(); o.extend(it)
        return o

    def s_mfmas(self, unit, sb):
        slot, fs = unit
        M = []
        for kt in range(2):
            for jp in range(4):
                d = V_S + sb * 8 + kt * 4
                c = rng('v', V_NEGM + slot * 4) if jp == 0 else rng('v', d)
                M.append(f"v_mfma_f32_16x16x32_bf16 {rng('v', d)}, {rng('v', V_KF[fs] + (kt*4+jp)*4)}, {rng('a', q_frag(slot, jp))}, {c}")
        return M
    def pv_mfmas(self, unit, pb):
        slot, fs = unit
        M = []
        p = rng('v', V_P + pb * 4)
        for jl in range(8):
            M.append(f"v_mfma_f32_16x16x32_bf16 {rng('a', acc_o(slot, jl))}, {rng('v', V_VF[fs] + jl*4)}, {p}, {rng('a', acc_o(slot, jl))}")
        M.append(f"v_mfma_f32_16x16x32_bf16 {rng('v', V_L + slot*4)}, {rng('v', V_ONES)}, {p}, {rng('v', V_L + slot*4)}")
        return M
    def max_ops(self, unit, sb):
        slot, fs = unit
        s = V_S + sb * 8
        return [[f"v_max3_f32 v{V_MX}, v{s}, v{s+1}, v{s+2}"],
                [f"v_max3_f32 v{V_MX}, v{V_MX}, v{s+3}, v{s+4}"],
                [f"v_max3_f32 v{V_MX}, v{V_MX}, v{s+5}, v{s+6}"],
                [f"v_max_f32 v{V_MX}, v{V_MX}, v{s+7}"],
                [f"v_cmp_lt_f32 vcc, s{S_T+slot}, v{V_MX}"]]
    def check_ops(self, unit, sb):
        slot, fs = unit
        s = V_S + sb * 8
        self.uid += 1
        u = self.uid
        lab_r, lab_b = f"{self.name}_rare{u}", f"{self.name}_back{u}"
        R = Prog()
        R.label(lab_r)
        R(f"""
        s_nop 7
        v_mov_b32 v{V_T1}, v{V_MX}
        s_nop 1
        v_permlane16_swap_b32 v{V_MX}, v{V_T1}
        s_nop 1
        v_max_f32 v{V_MX}, v{V_MX}, v{V_T1}
        v_mov_b32 v{V_T1}, v{V_MX}
        s_nop 1
        v_permlane32_swap_b32 v{V_MX}, v{V_T1}
        s_nop 1
        v_max_f32 v{V_MX}, v{V_MX}, v{V_T1}
        s_ashr_i32 s{S_FL}, s{S_T+slot}, 31
        s_and_b32 s{S_FL}, s{S_FL}, 0xff800000
        s_mov_b32 s{S_T+slot}, 0x41000000
        v_max_f32 v{V_MX}, s{S_FL}, v{V_MX}
        """)
        for r in range(8): R(f"v_sub_f32 v{s+r}, v{s+r}, v{V_MX}")
        for r in range(4): R(f"v_sub_f32 v{V_NEGM+slot*4+r}, v{V_NEGM+slot*4+r}, v{V_MX}")
        R(f"s_cmp_lg_u32 s{S_FL}, 0\ns_cbranch_scc1 {lab_b}")
        R(f"v_sub_f32 v{V_T1}, 0, v{V_MX}")
        R(f"v_exp_f32 v{V_T1}, v{V_T1}")
        R("s_nop 1")
        for r in range(4): R(f"v_mul_f32 v{V_L+slot*4+r}, v{V_L+slot*4+r}, v{V_T1}")
        for r in range(0, 32, 2):
            a = A_O + slot * 32 + r
            R(f"v_accvgpr_read_b32 v{V_T2}, a{a}\nv_accvgpr_read_b32 v{V_T3}, a{a+1}\nv_mul_f32 v{V_T2}, v{V_T2}, v{V_T1}\nv_mul_f32 v{V_T3}, v{V_T3}, v{V_T1}\nv_accvgpr_write_b32 a{a}, v{V_T2}\nv_accvgpr_write_b32 a{a+1}, v{V_T3}")
        R("s_nop 2")
        R(f"s_branch {lab_b}")
        self.rare.append(R)
        return [f"s_cbranch_vccnz {lab_r}", f"{lab_b}:"]
    def exp_ops(self, unit, sb, pb):
        s = V_S + sb * 8
        p = V_P + pb * 4
        return [[f"v_exp_f32 v{s}, v{s}"], [f"v_exp_f32 v{s+1}, v{s+1}"], [f"v_exp_f32 v{s+2}, v{s+2}"],
                [f"v_cvt_pk_bf16_f32 v{p}, v{s}, v{s+1}"],
                [f"v_exp_f32 v{s+3}, v{s+3}"], [f"v_exp_f32 v{s+4}, v{s+4}"],
                [f"v_cvt_pk_bf16_f32 v{p+1}, v{s+2}, v{s+3}"],
                [f"v_exp_f32 v{s+5}, v{s+5}"], [f"v_exp_f32 v{s+6}, v{s+6}"],
                [f"v_cvt_pk_bf16_f32 v{p+2}, v{s+4}, v{s+5}"],
                [f"v_exp_f32 v{s+7}, v{s+7}"],
                [f"v_cvt_pk_bf16_f32 v{p+3}, v{s+6}, v{s+7}"]]
    def kv_reads(self, fs, which):
        G = []
        if which == 'K':
            for kt in range(2):
                for jp in range(4):
                    G.append([f"ds_read_b128 {rng('v', V_KF[fs] + (kt*4+jp)*4)}, v{V_KA+jp} offset:{kt*4096}"])
        else:
            for jl in range(8):
                a = V_VF[fs] + jl * 4
                ml, h = jl >> 1, jl & 1
                va = V_VA if fs == 'A' else V_VA2
                G.append([f"ds_read_b64_tr_b16 v[{a}:{a+1}], v{va+ml} offset:{8*h}"])
                G.append([f"ds_read_b64_tr_b16 v[{a+2}:{a+3}], v{va+ml} offset:{8*h+4096}"])
        return G
    def kv_addr(self, fs):
        va = V_VA if fs == 'A' else V_VA2
        G = [[f"v_add_u32 v{V_KA+j}, s{S_RSLOT}, v{V_KPAT+j}"] for j in range(4)]
        G += [[f"v_add_u32 v{va+j}, s{S_RSLOT}, v{V_VPAT+j}"] for j in range(4)]
        G.append([f"s_add_u32 s{S_RSLOT}, s{S_RSLOT}, {SLOT}", f"s_cmp_eq_u32 s{S_RSLOT}, {3*SLOT}", f"s_cselect_b32 s{S_RSLOT}, 0, s{S_RSLOT}"])
        return G

    def units(self, qh):
        if qh == 0: return [(0,'A'),(1,'A'),(2,'A'),(3,'A'),(4,'A'),(0,'B'),(1,'B'),(2,'B'),(3,'B')]
        return [(0,'A'),(1,'A'),(2,'A'),(3,'A'),(0,'B'),(1,'B'),(2,'B'),(3,'B'),(4,'B')]

    def attn_body(self, qh, last):
        U = self.units(qh)
        B = Prog()
        RG = self.ring_groups()
        for g in range(9):
            if g in (0, 4):
                B(f"s_waitcnt vmcnt({9 if (self.pf_wo_spread and self.x_nomax) else 8}) lgkmcnt(0)")
                if not self.x_nobar: B("s_barrier")
            M = []
            if not (last and g + 3 >= 9):
                M += self.s_mfmas(U[(g + 3) % 9], g % 3)
            M += self.pv_mfmas(U[g], g % 3)
            V = []
            head = []
            if not (last and g + 1 >= 9):
                head = self.check_ops(U[(g + 1) % 9], (g + 1) % 3)
                ex = self.exp_ops(U[(g + 1) % 9], (g + 1) % 3, (g + 1) % 3)
            else: ex = []
            mx = self.max_ops(U[(g + 2) % 9], (g + 2) % 3) if not (last and g + 2 >= 9) else []
            V = []
            ei = mi = 0
            pat = "eeemcemecemecemcm" if False else "eemeemeemeemm"
            order = []
            if self.x_nomax and ex:
                e_ = [g_ for g_ in ex if g_[0].startswith('v_exp')]
                c_ = [g_ for g_ in ex if g_[0].startswith('v_cvt')]
                pat = "e-ee-eC-ee-e-eC--"
                ei = ci = 0
                for ch in pat:
                    if ch == 'e': order.append(e_[ei]); ei += 1
                    elif ch == 'C': order.append(c_[ci] + c_[ci + 1]); ci += 2
                    else: order.append([])
            else:
                for i in range(17):
                    if i in (1, 3, 5, 7, 9) and mi < len(mx): order.append(mx[mi]); mi += 1
                    elif ei < len(ex): order.append(ex[ei]); ei += 1
                    elif mi < len(mx): order.append(mx[mi]); mi += 1
            V = order
            PF = []
            if last and (self.pf_wo or self.op_label) and self.x_nomax == self.fast and g == self.pf_late_g:
                self.uid += 1
                lab = f"{self.name}_npf{self.uid}"
                pf = [f"s_cmp_eq_u32 s{S_ITEM}, 0", f"s_cbranch_scc1 {lab}"]
                if self.pf_wo:
                    for i in range(2):
                        pf += [f"s_lshl_b32 s39, s{S_W}, 14", f"s_add_u32 s39, s39, {8192 * i}",
                               f"buffer_load_dword v{V_PFD}, v19, s[76:79], s39 offen"]
                if self.op_label and not self.op_pf_end:
                    pf += self.code_pf(self.op_label, f"o{self.uid}", 2, end_label=self.op_end)
                pf.append(f"{lab}:")
                PF = [pf]
            XP = []
            if self.pf_wo_spread and self.x_nomax and g == 3:
                if last:
                    XP = [[f"s_mov_b32 s40, 65536", f"buffer_load_dword v{V_PFD}, v19, s[76:79], s40 offen"]]
                else:
                    XP = [[f"s_sub_u32 s39, 7, s{S_CNT}", f"s_lshl_b32 s40, s{S_ITEM}, 2", f"s_add_u32 s40, s40, s39", f"s_lshl_b32 s40, s40, 13",
                           f"s_cmp_eq_u32 s39, s{S_W}", f"s_cselect_b32 s40, s40, 65536",
                           f"buffer_load_dword v{V_PFD}, v19, s[76:79], s40 offen"]]
            if last and self.pf_code2 and self.x_nomax == self.fast and g == self.pf_late_g:
                self.uid += 1
                lab = f"{self.name}_npc{self.uid}"
                pf = [f"s_cmp_lg_u32 s{S_ITEM}, 0", f"s_cbranch_scc1 {lab}"] + self.code_pf(f"{self.name}_cmb", f"c{self.uid}", 1) + [f"{lab}:"]
                PF = PF + [pf]
            if last and self.pf1 and self.x_nomax == self.fast and g in (0, 4):
                self.uid += 1
                lab = f"{self.name}_np1{self.uid}"
                pf = [f"s_or_b32 s39, s{S_LATE}, s{S_ITEM}", f"s_cmp_lg_u32 s39, 0", f"s_cbranch_scc1 {lab}"]
                if g == 0:
                    pf += self.pf_w(f"s{S_W}", "1") + self.pf_x(f"s{S_W}")
                else:
                    pf += [f"s_add_u32 s39, s{S_W}, 4"] + self.pf_x("s39") + [f"s_add_u32 s39, s{S_W}, 8", "s_min_u32 s39, s39, 8"] + self.pf_x("s39")
                pf.append(f"{lab}:")
                PF = PF + [pf]
            KA, VA_ = (self.kv_reads('A', 'K'), self.kv_reads('A', 'V')) if not last else ([], [])
            KB, VB_ = self.kv_reads('B', 'K'), self.kv_reads('B', 'V')
            ADA = self.kv_addr('A') if not last else []
            ADB = self.kv_addr('B') if not last else []
            D, adv = self.ring_instrs()
            H = []
            Lt = []
            if g == 0: H = KB + PF + D[0:1]
            if g == 1: H = VB_[:6] + D[1:4];
            if g == 2: H = VB_[6:11] + D[4:6]; Lt = ADA[:4]
            if g == 3: H = D[6:8] + VB_[11:]; Lt = ADA[4:] + [adv]
            if g == 4: H = KA + PF + D[0:1]
            if g == 5: H = VA_[:5] + D[1:4]
            if g == 6: H = VA_[5:10] + D[4:6]; Lt = ADB[:4]
            if g == 7: H = D[6:8] + VA_[10:]; Lt = ADB[4:8]
            if g == 8: Lt = ADB[8:] + [adv]
            if self.x_nomax:
                if g == 0: H = KB + PF
                if g == 1: H = VB_[:5] + D[0:3]
                if g == 2: H = VB_[5:11] + D[3:5]
                if g == 3: H = D[5:8] + XP + VB_[11:]
                if g == 4: H = KA[:7] + PF
                if g == 5: H = KA[7:] + D[0:2] + VA_[:4]
                if g == 6: H = D[2:4] + VA_[4:9]
                if g == 7: H = D[4:6] + VA_[9:14]
                if g == 8: H = VA_[14:] + D[6:8] + (PF if self.pf_late_g == 8 else [])
            if last and self.x_nomax and self.cfast and g >= 4:
                H = [x for x in H if not any('lds' in y and 'buffer_load' in y for y in x)]
                Lt = [x for x in Lt if not any(f"s{S_GOFF}," in y for y in x)]
                if g == 4: Lt = Lt + [[f"s_sub_u32 s{S_FREE}, s{S_DSLOT}, s{S_DBASE}"]]
            if self.x_nodma: H = [x for x in H if not any('lds' in y and 'buffer_load' in y for y in x)]
            if self.x_nord: H = [x for x in H if not any('ds_read' in y for y in x)]
            if self.x_nosm: V = []; head = []
            if self.x_nobr: head = []
            if self.x_noX: H = []; Lt = []
            if self.x_nomax: V = [[] if (x and (x[0].startswith('v_max') or x[0].startswith('v_cmp'))) else x for x in V]; head = []
            n = len(M)
            fill = [list(V[i]) if i < len(V) else [] for i in range(n)]
            light = [i for i in range(n) if not (fill[i] and fill[i][0].startswith('v_exp'))]
            empty = [i for i in range(n) if not fill[i]]
            pos = light[:]
            if self.x_nomax and empty:
                pos = empty[:]
                more = [i for i in light if i not in pos] + [i for i in range(n) if i not in light]
                if len(H) > len(pos): pos = sorted(pos + more[:len(H) - len(pos)])
            if len(H) > len(pos):
                extra_pos = [i for i in range(n) if i not in pos][:len(H) - len(pos)]
                pos = sorted(pos + extra_pos)
            if H:
                k = len(pos)
                chosen = [pos[(j * k) // len(H)] for j in range(len(H))]
                for j, h in enumerate(H):
                    h = list(h)
                    if ' m0,' in h[0] and chosen[j] > 0 and not any('lds' in y and 'buffer_load' in y for y in fill[chosen[j] - 1]):
                        fill[chosen[j] - 1].append(h[0]); h = h[1:]
                    fill[chosen[j]] += h
            if Lt:
                has_heavy = lambda i: any(('ds_read' in y or 'buffer_load' in y) for y in fill[i])
                last_dma = max([i for i in range(n) if any('buffer_load' in y for y in fill[i])] + [-1])
                free = [i for i in light if not has_heavy(i)] + [i for i in range(n) if i not in light]
                used = set()
                for l_ in Lt:
                    need_after = last_dma if any(f"s{S_GOFF}," in y for y in l_) else -1
                    cand = [i for i in free if i not in used and i > need_after] or [n - 1]
                    if any(f"s{S_RSLOT}, s{S_RSLOT}" in y for y in l_):
                        la = max([i for i in range(n) if any(f"s{S_RSLOT}, v" in y for y in fill[i])] + [-1])
                        cand = [i for i in range(n) if i >= la]
                        cand = [max(cand[0], 0)]
                    i = cand[0]; used.add(i)
                    fill[i] += l_
            extra = V[n:]
            for x in head: B(x)
            for x in interleave(M, fill + extra): B(x)
        return B

    def attention(self, qh, tag):
        n = self.name
        U = self.units(qh)
        P = Prog()
        for r in range(20): P(f"v_mov_b32 v{V_L + r}, 0\nv_mov_b32 v{V_NEGM + r}, 0")
        P("s_nop 1")
        for r in range(0, 160, 4): P(f"v_mfma_f32_16x16x32_bf16 a[{A_O + r}:{A_O + r + 3}], v[{V_L}:{V_L+3}], v[{V_L}:{V_L+3}], 0")
        for s in range(5): P(f"s_mov_b32 s{S_T+s}, 0xff800000")
        P("s_waitcnt vmcnt(16)\ns_barrier")
        for g in self.kv_addr('A') + self.kv_reads('A', 'K') + self.kv_reads('A', 'V') + self.kv_addr('B'):
            for x in g: P(x)
        for x in self.s_mfmas(U[0], 0) + self.s_mfmas(U[1], 1) + self.s_mfmas(U[2], 2): P(x)
        if not self.x_nomax:
            for g in self.max_ops(U[0], 0):
                for x in g: P(x)
            P("s_nop 3")
            for x in self.check_ops(U[0], 0): P(x)
        for g in self.exp_ops(U[0], 0, 0) + (self.max_ops(U[1], 1) if not self.x_nomax else []):
            for x in g: P(x)
        if self.pf_wo_spread and self.x_nomax:
            P(f"s_mov_b32 s40, 65536\nbuffer_load_dword v{V_PFD}, v19, s[76:79], s40 offen")
        P(f"s_waitcnt lgkmcnt(0)\ns_mov_b32 s{S_CNT}, 7")
        pre, _ = finalize_linear(P.items)
        out = Prog(); out.extend(pre)
        body, _ = finalize_loop(self.attn_body(qh, False).items)
        if self.stamps:
            self.stamp(out, 5)
        out.label(f"{n}_at{tag}")
        out.extend(body)
        out(f"s_sub_u32 s{S_CNT}, s{S_CNT}, 1\ns_cmp_lg_u32 s{S_CNT}, 0\ns_cbranch_scc1 {n}_at{tag}")
        if self.stamps:
            self.stamp(out, 6)
        lastb = self.attn_body(qh, True)
        l1, f = auto_lgkm(body, None)
        l2, _ = auto_lgkm(lastb.items, f)
        l3 = fix_hazards(l2, wrap=body)
        out.extend(l3)
        return out

    def combine(self, qh):
        L = V_LANE
        E = Prog()
        MLO = 32768
        if self.cstamp: E(f"s_waitcnt lgkmcnt(0)\ns_memtime s[48:49]\ns_waitcnt lgkmcnt(0)\ns_cmp_eq_u32 s{S_ITEM}, 0\ns_cselect_b32 s82, s48, s82")
        E("s_nop 7\ns_waitcnt lgkmcnt(0)\ns_barrier")
        if self.cstamp: E(f"s_waitcnt lgkmcnt(0)\ns_memtime s[48:49]\ns_waitcnt lgkmcnt(0)\ns_cmp_eq_u32 s{S_ITEM}, 0\ns_cselect_b32 s83, s48, s83")
        E(f"""
        v_lshlrev_b32 v2, 2, v{L}
        v_add_u32 v2, {STG + MLO}, v2
        s_mul_i32 s39, s{S_W}, 2560
        v_add_u32 v3, s39, v2
        v_lshlrev_b32 v8, 4, v{L}
        v_add_u32 v8, {STG}, v8
        s_lshl_b32 s39, s{S_W}, 13
        s_lshl_b32 s40, s{S_HH}, 12
        s_add_u32 s{S_TMP2}, s39, s40
        v_add_u32 v5, s{S_TMP2}, v8
        s_xor_b32 s{S_TMP2}, s{S_TMP2}, 4096
        v_add_u32 v6, s{S_TMP2}, v8
        """)
        for s_ in range(5):
            E(f"ds_write_b32 v3, v{V_NEGM + s_*4} offset:{s_*512}")
            E(f"ds_write_b32 v3, v{V_L + s_*4} offset:{s_*512 + 256}")
        for jl in range(8):
            E(f"ds_write_b128 v{5 + (jl >> 2)}, {rng('a', acc_o(4, jl))} offset:{(jl & 3)*1024}")
        E(f"""s_mov_b64 s[72:73], 0
        s_mov_b32 s{S_XRB}, 0x21800000
        v_mov_b32 v{V_T3}, 0x5d800000
        v_mov_b32 v{V_P}, 0
        v_mov_b32 v{V_P+1}, 0
        v_mov_b32 v{V_P+2}, 0
        v_mov_b32 v{V_P+3}, 0
        s_xor_b32 s39, s{S_W}, 2
        s_mul_i32 s39, s39, 2560
        v_add_u32 v4, s39, v2
        s_lshl_b32 s39, s{S_W}, 11
        v_add_u32 v5, s39, v8
        v_lshlrev_b32 v7, 4, v{L}
        s_mul_i32 s{S_XOFF}, s{S_ITEM}, 36864
        s_mul_i32 s{S_WOFF}, s{S_W}, {9216 if self.omt else 1024}
        s_add_u32 s{S_WOFF}, s{S_WOFF}, {8*1024 if self.omt else 32*1024}
        s_add_u32 s{S_WOFF}, s{S_WOFF}, s{S_XOFF}
        s_lshl_b32 s39, s{S_QH}, {12 if self.omt else 14}
        s_mul_i32 s40, s{S_HH}, {2*9216 if self.omt else 2048}
        s_add_u32 s39, s39, s40
        s_add_u32 s{S_XOFF}, s{S_XOFF}, s39
        """)
        E("s_waitcnt lgkmcnt(0)\ns_barrier")
        if self.cstamp: E(f"s_waitcnt lgkmcnt(0)\ns_memtime s[48:49]\ns_waitcnt lgkmcnt(0)\ns_cmp_eq_u32 s{S_ITEM}, 0\ns_cselect_b32 s84, s48, s84")
        for s_ in range(4):
            E(f"ds_read_b32 v{120 + 2*s_}, v4 offset:{s_*512}")
            E(f"ds_read_b32 v{121 + 2*s_}, v4 offset:{s_*512 + 256}")
        for ww in range(4):
            E(f"ds_read_b32 v{128 + 2*ww}, v2 offset:{ww*2560 + 4*512}")
            E(f"ds_read_b32 v{129 + 2*ww}, v2 offset:{ww*2560 + 4*512 + 256}")
        for ww in range(4):
            for x in range(2):
                E(f"ds_read_b128 {rng('v', 160 + (ww*2+x)*4)}, v5 offset:{ww*8192 + x*1024}")
        E(f"""
        s_lshl_b32 s39, s{S_W}, 14
        v_add_u32 v3, s39, v8
        s_xor_b32 s39, s39, {2 << 14}
        v_add_u32 v4, s39, v8
        """)
        for s_ in range(4):
            for r in range(16):
                E(f"v_accvgpr_read_b32 v{192 + 16*(s_ % 3) + r if s_ < 3 else 96 + r}, a{acc_o(s_, 0) + r}")
        E("s_waitcnt lgkmcnt(0)\ns_barrier")
        if self.cstamp: E(f"s_waitcnt lgkmcnt(0)\ns_memtime s[48:49]\ns_waitcnt lgkmcnt(0)\ns_cmp_eq_u32 s{S_ITEM}, 0\ns_cselect_b32 s85, s48, s85")
        for s_ in range(4):
            for x in range(4):
                E(f"ds_write_b128 v3, {rng('a', acc_o(s_, 4 + x))} offset:{(s_*4+x)*1024}")
        for s_ in range(4):
            nm, l_ = V_NEGM + 4 * s_, V_L + 4 * s_
            no, lo = 120 + 2 * s_, 121 + 2 * s_
            E(f"""
            v_min_f32 v2, v{nm}, v{no}
            v_sub_f32 v6, v2, v{nm}
            v_sub_f32 v5, v2, v{no}
            v_exp_f32 v6, v6
            v_exp_f32 v5, v5
            s_nop 0
            v_mul_f32 v9, v6, v{l_}
            v_fma_f32 v9, v5, v{lo}, v9
            v_cmp_nge_f32 s[60:61], v9, s{S_XRB}
            v_cmp_nle_f32 vcc, v9, v{V_T3}
            v_rcp_f32 v9, v9
            s_or_b64 s[72:73], s[72:73], s[60:61]
            s_or_b64 s[72:73], s[72:73], vcc
            v_mul_f32 v{136+4*s_}, v6, v9
            v_mul_f32 v{137+4*s_}, v6, v9
            v_mul_f32 v{138+4*s_}, v5, v9
            v_mul_f32 v{139+4*s_}, v5, v9
            """)
        E(f"""
        v_min_f32 v2, v128, v130
        v_min_f32 v6, v132, v134
        v_min_f32 v2, v2, v6
        """)
        for ww in range(4):
            E(f"v_sub_f32 v{152+2*ww}, v2, v{128+2*ww}\nv_exp_f32 v{152+2*ww}, v{152+2*ww}")
        E(f"""
        s_nop 0
        v_mul_f32 v9, v152, v129
        v_fma_f32 v9, v154, v131, v9
        v_fma_f32 v9, v156, v133, v9
        v_fma_f32 v9, v158, v135, v9
        v_cmp_nge_f32 s[60:61], v9, s{S_XRB}
        v_cmp_nle_f32 vcc, v9, v{V_T3}
        v_rcp_f32 v9, v9
        s_or_b64 s[72:73], s[72:73], s[60:61]
        s_or_b64 s[72:73], s[72:73], vcc
        """)
        for ww in range(4): E(f"v_mul_f32 v{152+2*ww}, v{152+2*ww}, v9\nv_mov_b32 v{153+2*ww}, v{152+2*ww}")
        for r in range(8):
            E(f"v_mul_f32 v{112+r}, v{160+r}, v152")
        for ww in range(1, 4):
            for r in range(8):
                E(f"v_fma_f32 v{112+r}, v{160+ww*8+r}, v{152+2*ww}, v{112+r}")
        for r in range(4):
            E(f"v_fma_f32 v{V_P+2}, v{112+2*r}, v{V_P}, v{V_P+2}")
            E(f"v_fma_f32 v{V_P+3}, v{113+2*r}, v{V_P}, v{V_P+3}")
            E(f"v_cvt_pk_bf16_f32 v{V_P+4+r}, v{112+2*r}, v{113+2*r}")
        E(f"buffer_store_dwordx4 {rng('v', V_P+4)}, v7, s[20:23], s{S_WOFF} offen{self.st_flags}")
        mine = lambda s_: (192 + 16 * s_) if s_ < 3 else 96
        for s_ in range(4):
            for r in range(16):
                E(f"v_mul_f32 v{mine(s_)+r}, v{mine(s_)+r}, v{136+4*s_}")
        if self.cstamp: E(f"s_waitcnt lgkmcnt(0)\ns_memtime s[48:49]\ns_waitcnt lgkmcnt(0)\ns_cmp_eq_u32 s{S_ITEM}, 0\ns_cselect_b32 s86, s48, s86")
        E("s_waitcnt lgkmcnt(0)\ns_barrier")
        if self.cstamp: E(f"s_waitcnt lgkmcnt(0)\ns_memtime s[48:49]\ns_waitcnt lgkmcnt(0)\ns_cmp_eq_u32 s{S_ITEM}, 0\ns_cselect_b32 s87, s48, s87")
        recv = lambda s_: 160 + 16 * (s_ % 2)
        def rd(s_):
            for x in range(4):
                E(f"ds_read_b128 {rng('v', recv(s_) + 4*x)}, v4 offset:{(s_*4+x)*1024}")
        rd(0); rd(1)
        for s_ in range(4):
            m_, rc = mine(s_), recv(s_)
            for r in range(16):
                E(f"v_fma_f32 v{m_+r}, v{rc+r}, v{138+4*s_}, v{m_+r}")
            if s_ + 2 < 4: rd(s_ + 2)
            pk = 56 + 8 * s_
            for r in range(8):
                E(f"v_fma_f32 v{V_P+2}, v{m_+2*r}, v{V_P}, v{V_P+2}")
                E(f"v_fma_f32 v{V_P+3}, v{m_+2*r+1}, v{V_P}, v{V_P+3}")
                E(f"v_cvt_pk_bf16_f32 v{pk+r}, v{m_+2*r}, v{m_+2*r+1}")
            E(f"s_add_u32 s39, s{S_XOFF}, {s_*1024 if self.omt else s_*4096}\ns_add_u32 s40, s39, 9216")
            for p in range(2):
                E(f"buffer_store_dwordx4 {rng('v', pk+4*p)}, v7, s[20:23], {('s39' if p == 0 else 's40') if self.omt else 's39'} offen offset:{0 if self.omt else 1024*p}{self.st_flags}")
        E(f"""
        v_cmp_u_f32 vcc, v{V_P+2}, v{V_P+3}
        s_nop 1
        s_or_b64 s[72:73], s[72:73], vcc
        s_cmp_lg_u64 s[72:73], 0
        s_cselect_b32 s39, 1, {1 if self.force_bad else 0}
        s_xor_b32 s40, s{S_SAFE}, 1
        s_and_b32 s39, s39, s40
        s_lshl_b32 s39, s39, s{S_ITEM}
        s_or_b32 s{S_BAD}, s{S_BAD}, s39
        s_waitcnt lgkmcnt(0)
        """)
        if self.cstamp: E(f"s_waitcnt lgkmcnt(0)\ns_memtime s[48:49]\ns_waitcnt lgkmcnt(0)\ns_cmp_eq_u32 s{S_ITEM}, 0\ns_cselect_b32 s88, s48, s88")
        it, _ = finalize_linear(E.items)
        o = Prog(); o.extend(it)
        return o

    def combine_fast(self):
        n = self.name
        L = V_LANE
        E = Prog()
        if self.cstamp: E(f"s_waitcnt lgkmcnt(0)\ns_memtime s[64:65]\ns_waitcnt lgkmcnt(0)\ns_cmp_eq_u32 s{S_ITEM}, 1\ns_cselect_b32 s82, s64, s82")
        E("s_nop 7\ns_waitcnt lgkmcnt(0)\ns_barrier")
        if self.cstamp: E(f"s_waitcnt lgkmcnt(0)\ns_memtime s[64:65]\ns_waitcnt lgkmcnt(0)\ns_cmp_eq_u32 s{S_ITEM}, 1\ns_cselect_b32 s83, s64, s83")
        E(f"""
        v_lshlrev_b32 v8, 4, v{L}
        s_lshl_b32 s39, s{S_W}, 14
        s_add_u32 s39, s39, {STG}
        v_add_u32 v3, s39, v8
        s_xor_b32 s40, s{S_W}, 2
        s_lshl_b32 s40, s40, 14
        s_add_u32 s40, s40, {STG}
        v_add_u32 v4, s40, v8
        """)
        mine = lambda s_: (192 + 16 * s_) if s_ < 3 else 96
        for s_ in range(4):
            for x in range(4):
                E(f"ds_write_b128 v3, {rng('a', acc_o(s_, 4 + x))} offset:{(s_*4+x)*1024}")
                for r in range(4):
                    E(f"v_accvgpr_read_b32 v{mine(s_) + 4*x + r}, a{acc_o(s_, 0) + 4*x + r}")
        for lp in range(4):
            E(f"""
            s_lshl_b32 s39, s{S_HH}, 1
            s_xor_b32 s39, s39, {lp}
            s_sub_u32 s40, s{S_W}, s39
            s_sub_u32 s40, s40, 1
            s_and_b32 s40, s40, 3
            s_mul_i32 s39, s39, 3
            s_add_u32 s39, s39, s40
            s_lshl_b32 s39, s39, 11
            s_cmp_eq_u32 s40, 3
            s_cselect_b32 s39, 24576, s39
            s_add_u32 s39, s39, s{S_FREE}
            v_add_u32 v{120+lp}, s39, v8
            """)
            for x in range(2):
                E(f"ds_write_b128 v{120+lp}, {rng('a', acc_o(4, 2*lp + x))} offset:{x*1024}")
        E(f"""
        v_lshlrev_b32 v2, 2, v{L}
        s_add_u32 s39, s{S_FREE}, 26624
        v_add_u32 v2, s39, v2
        s_mul_i32 s39, s{S_W}, 1280
        v_add_u32 v5, s39, v2
        """)
        for s_ in range(5):
            E(f"ds_write_b32 v5, v{V_L + s_*4} offset:{s_*256}")
        if self.cstamp: E(f"s_waitcnt lgkmcnt(0)\ns_memtime s[64:65]\ns_waitcnt lgkmcnt(0)\ns_cmp_eq_u32 s{S_ITEM}, 1\ns_cselect_b32 s84, s64, s84")
        E(f"s_cmp_lg_u32 s{S_QH}, 0\ns_cbranch_scc1 {n}_cf1")
        for r in range(8): E(f"v_accvgpr_read_b32 v{112+r}, a{acc_o(4, 0) + r}")
        E(f"s_branch {n}_cf2")
        E.label(f"{n}_cf1")
        for r in range(8): E(f"v_accvgpr_read_b32 v{112+r}, a{acc_o(4, 2) + r}")
        E.label(f"{n}_cf2")
        E(f"""
        s_mov_b64 s[72:73], 0
        s_mov_b32 s{S_XRB}, 0x21800000
        v_mov_b32 v{V_T3}, 0x5d800000
        v_mov_b32 v{V_P}, 0
        v_mov_b32 v{V_P+2}, 0
        v_mov_b32 v{V_P+3}, 0
        s_xor_b32 s39, s{S_W}, 2
        s_mul_i32 s39, s39, 1280
        v_add_u32 v5, s39, v2
        s_mul_i32 s39, s{S_W}, 6144
        s_add_u32 s39, s39, s{S_FREE}
        v_add_u32 v6, s39, v8
        v_lshlrev_b32 v7, 4, v{L}
        s_mul_i32 s{S_XOFF}, s{S_ITEM}, 36864
        s_mul_i32 s{S_WOFF}, s{S_W}, {9216 if self.omt else 1024}
        s_add_u32 s{S_WOFF}, s{S_WOFF}, {8*1024 if self.omt else 32*1024}
        s_add_u32 s{S_WOFF}, s{S_WOFF}, s{S_XOFF}
        s_lshl_b32 s39, s{S_QH}, {12 if self.omt else 14}
        s_mul_i32 s40, s{S_HH}, {2*9216 if self.omt else 2048}
        s_add_u32 s39, s39, s40
        s_add_u32 s{S_XOFF}, s{S_XOFF}, s39
        """)
        if self.cstamp: E(f"s_waitcnt lgkmcnt(0)\ns_memtime s[64:65]\ns_waitcnt lgkmcnt(0)\ns_cmp_eq_u32 s{S_ITEM}, 1\ns_cselect_b32 s85, s64, s85")
        E("s_waitcnt lgkmcnt(0)\ns_barrier")
        for s_ in range(4): E(f"ds_read_b32 v{124+s_}, v5 offset:{s_*256}")
        for ww in range(4): E(f"ds_read_b32 v{128+ww}, v2 offset:{ww*1280 + 4*256}")
        for rk in range(3):
            for x in range(2):
                E(f"ds_read_b128 {rng('v', 136 + (rk*2+x)*4)}, v6 offset:{rk*2048 + x*1024}")
        recv = lambda s_: 160 + 16 * (s_ % 2)
        def rd(s_):
            for x in range(4):
                E(f"ds_read_b128 {rng('v', recv(s_) + 4*x)}, v4 offset:{(s_*4+x)*1024}")
        rd(0)
        for s_ in range(4):
            E(f"""
            v_add_f32 v{124+s_}, v{124+s_}, v{V_L + 4*s_}
            v_cmp_nge_f32 s[60:61], v{124+s_}, s{S_XRB}
            v_cmp_nle_f32 vcc, v{124+s_}, v{V_T3}
            v_rcp_f32 v{124+s_}, v{124+s_}
            s_or_b64 s[72:73], s[72:73], s[60:61]
            s_or_b64 s[72:73], s[72:73], vcc
            """)
        E(f"""
        v_add_f32 v128, v128, v129
        v_add_f32 v130, v130, v131
        v_add_f32 v128, v128, v130
        v_cmp_nge_f32 s[60:61], v128, s{S_XRB}
        v_cmp_nle_f32 vcc, v128, v{V_T3}
        v_rcp_f32 v128, v128
        s_or_b64 s[72:73], s[72:73], s[60:61]
        s_or_b64 s[72:73], s[72:73], vcc
        """)
        rd(1)
        for rk in range(3):
            for r in range(8): E(f"v_add_f32 v{112+r}, v{112+r}, v{136+rk*8+r}")
        for r in range(8): E(f"v_mul_f32 v{112+r}, v{112+r}, v128")
        for r in range(4):
            E(f"v_fma_f32 v{V_P+2}, v{112+2*r}, v{V_P}, v{V_P+2}")
            E(f"v_fma_f32 v{V_P+3}, v{113+2*r}, v{V_P}, v{V_P+3}")
            E(f"v_cvt_pk_bf16_f32 v{V_P+4+r}, v{112+2*r}, v{113+2*r}")
        E(f"buffer_store_dwordx4 {rng('v', V_P+4)}, v7, s[20:23], s{S_WOFF} offen{self.st_flags}")
        if self.cstamp: E(f"s_waitcnt lgkmcnt(0)\ns_memtime s[64:65]\ns_waitcnt lgkmcnt(0)\ns_cmp_eq_u32 s{S_ITEM}, 1\ns_cselect_b32 s86, s64, s86")
        for s_ in range(4):
            m_, rc = mine(s_), recv(s_)
            for r in range(16): E(f"v_add_f32 v{m_+r}, v{m_+r}, v{rc+r}")
            if s_ + 2 < 4: rd(s_ + 2)
            for r in range(16): E(f"v_mul_f32 v{m_+r}, v{m_+r}, v{124+s_}")
            pk = 56 + 8 * s_
            for r in range(8):
                E(f"v_fma_f32 v{V_P+2}, v{m_+2*r}, v{V_P}, v{V_P+2}")
                E(f"v_fma_f32 v{V_P+3}, v{m_+2*r+1}, v{V_P}, v{V_P+3}")
                E(f"v_cvt_pk_bf16_f32 v{pk+r}, v{m_+2*r}, v{m_+2*r+1}")
            E(f"s_add_u32 s39, s{S_XOFF}, {s_*1024 if self.omt else s_*4096}\ns_add_u32 s40, s39, 9216")
            for p in range(2):
                E(f"buffer_store_dwordx4 {rng('v', pk+4*p)}, v7, s[20:23], {('s39' if p == 0 else 's40') if self.omt else 's39'} offen offset:{0 if self.omt else 1024*p}{self.st_flags}")
        if self.cstamp: E(f"s_waitcnt lgkmcnt(0)\ns_memtime s[64:65]\ns_waitcnt lgkmcnt(0)\ns_cmp_eq_u32 s{S_ITEM}, 1\ns_cselect_b32 s87, s64, s87")
        E(f"""
        v_cmp_u_f32 vcc, v{V_P+2}, v{V_P+3}
        s_nop 1
        s_or_b64 s[72:73], s[72:73], vcc
        s_cmp_lg_u64 s[72:73], 0
        s_cselect_b32 s39, 1, {1 if self.force_bad else 0}
        s_lshl_b32 s39, s39, s{S_ITEM}
        s_or_b32 s{S_BAD}, s{S_BAD}, s39
        s_waitcnt lgkmcnt(0)
        s_cmp_lg_u32 s{S_ITEM}, 0
        s_cbranch_scc1 {n}_cf3
        s_barrier
        """)
        for g in self.ring_groups():
            for x in g: E(x)
        E.label(f"{n}_cf3")
        if self.cstamp: E(f"s_waitcnt lgkmcnt(0)\ns_memtime s[64:65]\ns_waitcnt lgkmcnt(0)\ns_cmp_eq_u32 s{S_ITEM}, 1\ns_cselect_b32 s88, s64, s88")
        if self.c_nost: E.items = [x for x in E.items if not x.op.startswith('buffer_store')]
        if self.c_nonan: E.items = [x for x in E.items if not (x.op == 'v_fma_f32' and f"v{V_P+2}," in x.text or x.op == 'v_fma_f32' and f"v{V_P+3}," in x.text)]
        if self.c_now: E.items = [x for x in E.items if not x.op.startswith('ds_write_b128')]
        it, _ = finalize_linear(E.items)
        o = Prog(); o.extend(it)
        return o

    def agree_bad(self):
        E = Prog()
        E(f"""
        s_barrier
        v_mov_b32 v5, {STG}
        s_lshl_b32 s40, s{S_W}, 2
        v_add_u32 v6, s40, v5
        v_mov_b32 v3, s{S_BAD}
        ds_write_b32 v6, v3
        s_waitcnt lgkmcnt(0)
        s_barrier
        ds_read_b128 v[120:123], v5
        s_waitcnt lgkmcnt(0)
        v_or_b32 v120, v120, v121
        v_or_b32 v122, v122, v123
        v_or_b32 v120, v120, v122
        s_nop 0
        v_readfirstlane_b32 s{S_BAD}, v120
        s_nop 3
        """)
        it, _ = finalize_linear(E.items)
        o = Prog(); o.extend(it)
        return o

    def stamp(self, out, idx_expr, sel=None):
        if not self.stamps: return
        if (self.qstamp or self.cstamp) and idx_expr not in (0, 1): return
        base = idx_expr
        u = self.nst; self.nst += 1
        out(f"""s_waitcnt lgkmcnt(0)
        {'s_memrealtime' if (self.dbg_stamps is not None or self.dbg_rt) else 's_memtime'} s[72:73]
        s_waitcnt lgkmcnt(0)
        s_cmp_eq_u32 s{sel if sel is not None else S_ITEM}, 0
        s_cselect_b32 s{80+base}, s72, s{80+base}
        s_cselect_b32 s{88+base}, s{88+base}, s72""")

    def build(self):
        n = self.name
        out = Prog()
        st, _ = finalize_linear(self.setup().items)
        out.extend(st)
        cold = Prog()
        out.label(f"{n}_qpL")
        self.stamp(out, 0)
        out.extend(self.qp2('x'))
        out(f"s_cmp_lg_u32 s{S_SAFE}, 0\ns_cbranch_scc1 {n}_qredo")
        out.extend(self.qconv(0, not self.kvdma, 1))
        out.extend(self.lq())
        out("s_barrier")
        out.extend(self.qconv(1, not self.kvdma, 2))
        out.label(f"{n}_qdone")
        cold.label(f"{n}_qredo")
        cold(f"s_cmp_lg_u32 s{S_ITEM}, 0\ns_cbranch_scc1 {n}_qredo1")
        cold.extend(self.qconv(0, not self.kvdma))
        cold(f"s_branch {n}_qredo2")
        cold.label(f"{n}_qredo1")
        cold.extend(self.qconv(1, not self.kvdma))
        cold.label(f"{n}_qredo2")
        cold.extend(self.lq())
        cold(f"s_branch {n}_safe")
        self.stamp(out, 1)
        out.label(f"{n}_att")
        self.stamp(out, 2)
        out(f"s_cmp_lg_u32 s{S_QH}, 0\ns_cbranch_scc1 {n}_q1")
        self.x_nomax = self.fast
        out.extend(self.attention(0, 'a'))
        out(f"s_branch {n}_cmb")
        out.label(f"{n}_q1")
        out.extend(self.attention(1, 'b'))
        cold.label(f"{n}_safe")
        self.x_nomax = False
        st, self.stamps = self.stamps, False
        cold(f"s_cmp_lg_u32 s{S_QH}, 0\ns_cbranch_scc1 {n}_sq1")
        cold.extend(self.attention(0, 'c'))
        cold(f"s_branch {n}_scmb")
        cold.label(f"{n}_sq1")
        cold.extend(self.attention(1, 'd'))
        cold(f"s_branch {n}_scmb")
        self.stamps = st
        out.label(f"{n}_cmb")
        self.stamp(out, 3)
        out(f"s_cmp_lg_u32 s{S_ITEM}, 0\ns_cbranch_scc1 {n}_nolq")
        out.extend(self.lq())
        out.label(f"{n}_nolq")
        if self.cfast and self.fast:
            out.extend(self.combine_fast())
        else:
            out.extend(self.combine(0))
        self.stamp(out, 4)
        out(f"s_add_u32 s{S_ITEM}, s{S_ITEM}, 1\ns_cmp_ge_u32 s{S_ITEM}, 2\ns_cbranch_scc1 {n}_agree")
        out(f"s_branch {n}_att")
        cold.label(f"{n}_scmb")
        st2, self.stamps, cs = self.stamps, False, self.cstamp
        self.cstamp = False
        cold.extend(self.combine(0))
        self.stamps, self.cstamp = st2, cs
        cold(f"s_branch {n}_redo")
        out.label(f"{n}_agree")
        out.extend(self.agree_bad())
        out.label(f"{n}_redo")
        out(f"s_cmp_eq_u32 s{S_BAD}, 0\ns_cbranch_scc1 {n}_fin")
        out(f"""s_and_b32 s39, s{S_BAD}, 1
        s_xor_b32 s{S_ITEM}, s39, 1
        s_lshl_b32 s39, 1, s{S_ITEM}
        s_andn2_b32 s{S_BAD}, s{S_BAD}, s39
        s_mov_b32 s{S_SAFE}, 1
        s_lshl_b32 s{S_GOFF}, s{S_ITEM}, 18
        s_add_u32 s{S_DSLOT}, s{S_DBASE}, {SLOT if self.kvdma else 0}
        s_mov_b32 s{S_RSLOT}, {SLOT if self.kvdma else 0}
        s_branch {n}_qpL""")
        out.label(f"{n}_fin")
        out(f"""s_lshl_b32 s39, s2, 7
        s_add_u32 s39, s39, {48 << 20}
        s_add_u32 s72, s68, s39
        s_addc_u32 s73, s69, 0
        v_mov_b32 v2, 0
        v_lshlrev_b32 v3, 2, v{V_LANE}
        s_mov_b32 exec_hi, 0
        global_store_dword v3, v2, s[72:73]
        s_mov_b32 exec_hi, -1""")
        if self.pf_wo_end and self.op_label and self.op_pf_end:
            for x in self.code_pf(self.op_label, "oe", 2, end_label=self.op_end): out(x)
        if self.pf_wo_end:
            for k in range(2):
                out(f"s_lshl_b32 s39, s{S_W}, 14\ns_add_u32 s39, s39, {8192*k}\nbuffer_load_dword v{V_PFD}, v19, s[76:79], s39 offen")
        self.cold = cold
        if self.stamps and self.dbg_stamps is not None:
            out(f"""s_cmp_lg_u32 s2, {self.dbg_stamps}
            s_cbranch_scc1 {n}_done
            s_cmp_lg_u32 s{S_W}, 0
            s_cbranch_scc1 {n}_done
            s_memrealtime s[72:73]
            s_waitcnt lgkmcnt(0)
            s_mov_b32 s95, s72
            s_add_u32 s68, s68, {64 << 20}
            s_addc_u32 s69, s69, 0
            v_mov_b32 v2, 0""")
            for i in range(16):
                out(f"v_mov_b32 v3, s{80+i}\nglobal_store_dword v2, v3, s[68:69] offset:{4*i}")
        elif self.stamps:
            out(f"""s_lshl_b32 s39, s2, 2
            s_add_u32 s39, s39, s{S_W}
            s_lshl_b32 s39, s39, 6
            s_add_u32 s39, s39, {64 << 20}
            s_add_u32 s68, s68, s39
            s_addc_u32 s69, s69, 0
            v_mov_b32 v2, 0""")
            for i in range(16):
                out(f"v_mov_b32 v3, s{80+i}\nglobal_store_dword v2, v3, s[68:69] offset:{4*i}")
        if self.fuse is not None:
            out.label(f"{n}_pub")
            out(f"""s_load_dwordx2 s[78:79], s[0:1], 88
            s_waitcnt vmcnt(0) lgkmcnt(0)
            s_barrier
            s_cmp_lg_u32 s{S_W}, 0
            s_cbranch_scc1 {n}_pub2
            s_lshl_b32 s39, s{S_BLK}, 3
            s_add_u32 s39, s39, s{S_B}
            s_lshl_b32 s39, s39, 2
            v_mov_b32 v2, s39
            s_lshl_b32 s40, 3, s{S_H0}
            v_mov_b32 v3, s40
            s_mov_b64 exec, 1
            global_atomic_or v2, v3, s[78:79]
            s_mov_b64 exec, -1
            {n}_pub2:
            {n}_op:""")
            out.extend(self.fuse)
        out.label(f"{n}_done")
        out("s_endpgm")
        out.extend(self.cold)
        labs = {it.text for it in out.items if it.kind == 'label'}
        for r in self.rare:
            back = r.items[-1].ops[0] + ':'
            if back in labs: out.extend(r)
        return kernel_text(n, out.text(), vgpr=512, sgpr=102, acc=256), LDS_TOTAL

if __name__ == '__main__':
    import sys
    b = dict(nt_w=True)
    variants = [('fa_a_kernel', dict(b)), ('fa_c_kernel', dict(b, cstamp=True)), ('fa_forcebad_kernel', dict(b, force_bad=True))]
    hdr = ''; body = ''
    for nm, kw in variants:
        txt, lds = FA(name=nm, stamps=True, **kw).build()
        hdr += f"; @launch kernel={nm} grid=(256,1,1) block=(256,1,1) lds={lds}\n"
        body += txt
    open('fa.s', 'w').write(hdr + '.amdgcn_target "amdgcn-amd-amdhsa--gfx950"\n.text\n' + body)
```

```python
import sys, importlib
sys.path.insert(0, 'gen')
import fa as fa_mod, fa_v2, fa_v3, oproj3, oproj4, oproj5, oproj5b, oproj6
DESC = """; Two launches (generated by the author's own Python scripts):
"""
def make(path, fa_kw=None, op_kw=None, order='fo', mod=fa_mod, opmod=oproj3):
    f = mod.FA(name='fa_kernel', **(fa_kw or {}))
    t1, l1 = f.build()
    t2, l2 = opmod.gen_oproj('oproj_kernel', **(op_kw or {}))
    hdr = open('concat_heads__mha_block_cached__gqa_block_cached__near_ridge.s.ref').read().split('; Override')[0]
    for k in order:
        if k == 'f': hdr += f"; @launch kernel=fa_kernel grid=(256,1,1) block=(256,1,1) lds={l1}\n"
        else: hdr += f"; @launch kernel=oproj_kernel grid=(256,1,1) block=(256,1,1) lds={l2}\n"
    hdr += DESC
    open(path, 'w').write(hdr + '.amdgcn_target "amdgcn-amd-amdhsa--gfx950"\n.text\n' + t1 + t2)
def make_fused(path, fa_kw=None, op_kw=None, kname='fa_kernel', listfmt=True):
    op = oproj4.gen_oproj(kname + '_o', fused=True, **(op_kw or {}))
    kw = dict(fa_kw or {})
    kw['op_label'] = kname + '_op'
    f = fa_mod.FA(name=kname, fuse=op, **kw)
    t1, l1 = f.build()
    hdr = open('concat_heads__mha_block_cached__gqa_block_cached__near_ridge.s.ref').read().split('; Override')[0]
    if listfmt: hdr += f"; @launch kernel={kname} grid=(256,1,1) block=(256,1,1) lds={l1}\n"
    else: hdr += f"; @launch grid=(256,1,1) block=(256,1,1) lds={l1}\n"
    open(path, 'w').write(hdr + '.amdgcn_target "amdgcn-amd-amdhsa--gfx950"\n.text\n' + t1)
if __name__ == '__main__':
    M = 'cdna_kernels/'
    base = dict(op_label='oproj_kernel', nt_w=True, pf_code2=True, st_flags=' sc1', omt=True, pf_late_g=4, pf_wo_end=True)
    make(M + 'o1.s', fa_kw=dict(base), op_kw=dict(out_fl=' sc1'), opmod=oproj5)
    make(M + 'n1.s', fa_kw=dict(base, nt_x=True), op_kw=dict(out_fl=' sc1'), opmod=oproj5)
    make(M + 'e_a.s', fa_kw=dict(base, pf0x=True), op_kw=dict(out_fl=' sc1'), opmod=oproj5)
```
